```python
import torch

def _softmax(x, axis=-1):
    return torch.softmax(x, dim=axis)

def _gelu(x):
    return torch.nn.functional.gelu(x, approximate='tanh')

def _silu(x):
    return torch.nn.functional.silu(x)

def _sigmoid(x):
    return torch.sigmoid(x)

def _layernorm(x, axis=-1, eps=1e-05):
    m = x.mean(dim=axis, keepdim=True)
    v = x.var(dim=axis, keepdim=True, unbiased=False)
    return (x - m) / torch.sqrt(v + eps)

def _scatter_add(tgt, idx, src, axis=0):
    return tgt.clone().index_add_(axis, idx, src)

def _segment_sum(src, seg, n):
    out = torch.zeros((n,) + src.shape[1:], dtype=src.dtype)
    return out.index_add_(0, seg, src)

def _pad(x, pw):
    flat = tuple((v for pair in reversed(pw) for v in pair))
    return torch.nn.functional.pad(x, flat)
kernel_name = 'recurrent_scan__spectral_fnet__mixer_gmlp__prompt'

def setup_inputs():

    _w = lambda a: (lambda t: t.to(torch.bfloat16) if t.is_floating_point() else t)(torch.as_tensor(a))

    def _A_setup():
        B, S, D = (1, 2048, 512)
        ns = torch.arange(S)[:, None] * torch.arange(S)[None, :]
        nd = torch.arange(D)[:, None] * torch.arange(D)[None, :]
        Ws_re = torch.cos(-2.0 * torch.pi * ns / S).to(float)
        Ws_im = torch.sin(-2.0 * torch.pi * ns / S).to(float)
        Wd_re = torch.cos(-2.0 * torch.pi * nd / D).to(float)
        Wd_im = torch.sin(-2.0 * torch.pi * nd / D).to(float)
        return {'x': _w((lambda *s: torch.randn(*s, dtype=torch.bfloat16) * 0.05)(B, S, D)), 'dft_seq_re': _w(Ws_re), 'dft_seq_im': _w(Ws_im), 'dft_hid_re': _w(Wd_re), 'dft_hid_im': _w(Wd_im)}
    _A_in = _A_setup()

    def _B_setup():
        B, S, D, F = (1, 2048, 512, 1376)
        Fh = F // 2
        return {'x': _w((lambda *s: torch.randn(*s, dtype=torch.bfloat16) * 0.05)(B, S, D)), 'w_in': _w((lambda *s: torch.randn(*s, dtype=torch.bfloat16) * 0.4)(D, 2 * Fh)), 'w_sp': _w(0.01 * (lambda *s: torch.randn(*s, dtype=torch.bfloat16) * 0.4)(S, S)), 'b_sp': _w(1.0 + 0.01 * (lambda *s: torch.randn(*s, dtype=torch.bfloat16) * 0.05)(S)), 'w_out': _w((lambda *s: torch.randn(*s, dtype=torch.bfloat16) * 0.05)(Fh, D))}
    _B_in = _B_setup()
    return {'A_x': _A_in['x'], 'A_dft_seq_re': _A_in['dft_seq_re'], 'A_dft_seq_im': _A_in['dft_seq_im'], 'A_dft_hid_re': _A_in['dft_hid_re'], 'A_dft_hid_im': _A_in['dft_hid_im'], 'B_x': _B_in['x'], 'B_w_in': _B_in['w_in'], 'B_w_sp': _B_in['w_sp'], 'B_b_sp': _B_in['b_sp'], 'B_w_out': _B_in['w_out']}

def reference(A_x, A_dft_seq_re, A_dft_seq_im, A_dft_hid_re, A_dft_hid_im, B_x, B_w_in, B_w_sp, B_b_sp, B_w_out):

    def _A_ref(x, dft_seq_re, dft_seq_im, dft_hid_re, dft_hid_im):
        a = torch.einsum('bsd,ed->bse', x, dft_hid_re)
        b = torch.einsum('bsd,ed->bse', x, dft_hid_im)
        y = torch.einsum('ts,bse->bte', dft_seq_re, a) - torch.einsum('ts,bse->bte', dft_seq_im, b)
        return y

    def _B_ref(x, w_in, w_sp, b_sp, w_out):
        B, S, D = x.shape
        F = w_in.shape[-1]
        Fh = F // 2
        z = _gelu(torch.einsum('bsd,df->bsf', x, w_in))
        z1 = z[..., :Fh].clone()
        z2 = _layernorm(z[..., Fh:], axis=-1)
        g = torch.einsum('ts,bsf->btf', w_sp, z2) + b_sp[None, :, None]
        return torch.einsum('bsf,fd->bsd', z1 * g, w_out)
    x = A_x
    xn = _layernorm(x, axis=-1)
    s = _A_ref(xn, A_dft_seq_re, A_dft_seq_im, A_dft_hid_re, A_dft_hid_im)
    g = _silu(_B_ref(xn, B_w_in, B_w_sp, B_b_sp, B_w_out))
    return x + s * g
```

```python
import re

TRANS = ("v_exp_f32", "v_log_f32", "v_rcp_f32", "v_rsq_f32", "v_sqrt_f32", "v_sin_f32", "v_cos_f32")

def _regs(tok):
    tok = tok.strip()
    tok = tok.lstrip("-")
    m = re.fullmatch(r"abs\((.*)\)", tok)
    if m: tok = m.group(1)
    m = re.fullmatch(r"\|(.*)\|", tok)
    if m: tok = m.group(1)
    m = re.fullmatch(r"([vas])(\d+)", tok)
    if m: return [(m.group(1), int(m.group(2)))]
    m = re.fullmatch(r"([vas])\[(\d+):(\d+)\]", tok)
    if m: return [(m.group(1), i) for i in range(int(m.group(2)), int(m.group(3)) + 1)]
    if tok == "vcc": return [("s", 106), ("s", 107)]
    if tok == "vcc_lo": return [("s", 106)]
    if tok == "vcc_hi": return [("s", 107)]
    if tok == "exec": return [("s", 126), ("s", 127)]
    if tok == "m0": return [("s", 124)]
    return []

class Ins:
    __slots__ = ("text", "mn", "kind", "rd", "wr", "srcc", "ws", "is_label", "target", "lds_dma", "store_data", "passes", "ab")
    def __init__(self, text):
        self.text = text
        self.is_label = False; self.target = None; self.lds_dma = False
        self.rd = set(); self.wr = set(); self.srcc = set(); self.store_data = set(); self.ab = set()
        self.ws = 1; self.passes = 0
        t = text.split(";")[0].strip()
        if t.endswith(":"):
            self.is_label = True; self.mn = t[:-1]; self.kind = "label"; self.ws = 0; return
        if t.startswith(".") or t == "":
            self.kind = "dir"; self.mn = t; self.ws = 0; return
        parts = t.split(None, 1)
        mn = parts[0]; self.mn = mn
        rest = parts[1] if len(parts) > 1 else ""
        ops = []; depth = 0; cur = ""
        for ch in rest:
            if ch in "[(": depth += 1
            if ch in "])": depth -= 1
            if ch == "," and depth == 0: ops.append(cur.strip()); cur = ""
            else: cur += ch
        if cur.strip(): ops.append(cur.strip())
        mods = ""
        if ops:
            sp = ops[-1].split(None, 1)
            if len(sp) > 1 and not ops[-1].startswith("gpr_idx") and not ops[-1].startswith("hwreg"):
                ops[-1] = sp[0]; mods = sp[1]
        R = lambda i: _regs(ops[i]) if i < len(ops) else []
        if mn == "s_nop":
            self.kind = "nop"; self.ws = int(ops[0], 0) + 1; return
        if mn.startswith("s_cbranch") or mn == "s_branch":
            self.kind = "branch"; self.target = ops[0]
            if "vcc" in mn: self.rd |= {("s", 106), ("s", 107)}
            return
        if mn in ("s_waitcnt", "s_barrier", "s_endpgm", "s_sleep", "s_setprio"):
            self.kind = "misc"; return
        if mn.startswith("v_mfma"):
            self.kind = "mfma"
            self.passes = 8 if "32x32" in mn else 4
            self.wr |= set(R(0)); self.ab |= set(R(1)) | set(R(2)); self.srcc |= set(R(3))
            self.rd |= self.ab | self.srcc
            return
        if mn.startswith("buffer_") or mn.startswith("global_"):
            self.kind = "vmem"
            allmods = (mods + " " + ops[-1]) if ops else ""
            if mn in ("buffer_inv", "buffer_wbl2"): return
            is_lds = bool(re.search(r"\blds\b", mods)) or "load_lds" in mn
            if is_lds:
                self.lds_dma = True; self.rd |= {("s", 124)}
                for i in range(len(ops)): self.rd |= set(R(i))
            elif "load" in mn:
                self.wr |= set(R(0))
                for i in range(1, len(ops)): self.rd |= set(R(i))
            elif "store" in mn or "atomic" in mn:
                if mn.startswith("buffer_"):
                    d = set(R(0))
                else:
                    d = set(R(1))
                for i in range(len(ops)): self.rd |= set(R(i))
                if len(d) >= 3: self.store_data = d
                if "atomic" in mn and "sc0" in mods: self.wr |= d
            return
        if mn.startswith("ds_"):
            self.kind = "ds"
            if mn.startswith("ds_read") or mn.startswith("ds_bpermute") or mn.startswith("ds_swizzle"):
                self.wr |= set(R(0))
                for i in range(1, len(ops)): self.rd |= set(R(i))
            else:
                for i in range(len(ops)): self.rd |= set(R(i))
            return
        if mn.startswith("s_load") or mn.startswith("s_memtime") or mn.startswith("s_memrealtime") or mn.startswith("s_buffer_load"):
            self.kind = "smem"; self.wr |= set(R(0))
            for i in range(1, len(ops)): self.rd |= set(R(i))
            return
        if mn.startswith("s_"):
            self.kind = "salu"
            if mn.startswith("s_cmp") or mn.startswith("s_bitcmp"):
                for i in range(len(ops)): self.rd |= set(R(i))
            else:
                self.wr |= set(R(0))
                for i in range(1, len(ops)): self.rd |= set(R(i))
                if "saveexec" in mn: self.wr |= {("s", 126), ("s", 127)}
            return
        if mn.startswith("v_"):
            base = re.sub(r"_(e32|e64|dpp|sdwa)$", "", mn)
            self.kind = "trans" if base in TRANS else "valu"
            if base.startswith("v_cmp"):
                self.wr |= set(R(0))
                for i in range(1, len(ops)): self.rd |= set(R(i))
            elif base.startswith("v_permlane") and "swap" in base:
                self.wr |= set(R(0)) | set(R(1)); self.rd |= set(R(0)) | set(R(1))
            elif base in ("v_add_co_u32", "v_sub_co_u32", "v_addc_co_u32", "v_subb_co_u32"):
                self.wr |= set(R(0)) | set(R(1))
                for i in range(2, len(ops)): self.rd |= set(R(i))
            else:
                self.wr |= set(R(0))
                for i in range(1, len(ops)): self.rd |= set(R(i))
                if base in ("v_fmac_f32", "v_dot2c_f32_bf16", "v_pk_fmac_f16"): self.rd |= set(R(0))
                if base == "v_cndmask_b32" and len(ops) == 3: self.rd |= {("s", 106), ("s", 107)}
            return
        raise ValueError("unknown instruction: " + text)

def need(p, c):
    n = 0
    isv = lambda S: {r for r in S if r[0] in "va"}
    iss = lambda S: {r for r in S if r[0] == "s"}
    pv = p.kind in ("valu", "trans"); cv = c.kind in ("valu", "trans")
    if pv:
        w = p.wr
        if c.kind == "mfma" and isv(w) & c.rd: n = max(n, 2)
        if p.kind == "trans" and c.kind == "valu" and isv(w) & (c.rd | c.wr): n = max(n, 1)
        if p.kind == "trans" and c.kind in ("vmem", "ds", "mfma") and isv(w) & c.rd: n = max(n, 1)
        if iss(w):
            if cv and iss(w) & c.rd:
                n = max(n, 4 if c.mn.startswith(("v_readlane", "v_writelane")) else 2)
            if c.kind == "vmem" and iss(w) & c.rd: n = max(n, 5)
            if c.kind == "salu" and iss(w) & c.rd: n = max(n, 1)
            if c.kind == "branch" and iss(w) & c.rd: n = max(n, 1)
        if cv and c.mn.startswith(("v_readlane", "v_readfirstlane")) and isv(w) & c.rd: n = max(n, 1)
        if cv and c.mn.startswith("v_permlane") and isv(w) & c.rd: n = max(n, 2)
        if cv and ("dpp" in c.mn or "quad_perm" in c.text or "row_" in c.text) and isv(w) & c.rd: n = max(n, 2)
    if p.kind == "mfma":
        full = {8: 12, 4: 8}[p.passes]
        if c.kind == "mfma":
            if p.wr & c.ab: n = max(n, full)
            if p.wr & c.srcc:
                if not (p.wr == c.srcc and p.passes == c.passes): n = max(n, {8: 10, 4: 6}[p.passes])
            elif p.wr & c.wr and not (p.wr == c.srcc): n = max(n, {8: 10, 4: 6}[p.passes])
        elif cv:
            if p.wr & (c.rd | c.wr): n = max(n, full)
            if p.srcc & c.wr: n = max(n, {8: 7, 4: 3}[p.passes])
        elif c.kind in ("vmem", "ds"):
            if p.wr & (c.rd | c.wr): n = max(n, full)
    if p.kind == "salu" and ("s", 124) in p.wr and (c.lds_dma): n = max(n, 1)
    if p.kind == "vmem" and p.store_data:
        if cv and p.store_data & c.wr: n = max(n, 2)
        elif p.store_data & c.wr: n = max(n, 1)
    return n

class Asm:
    def __init__(self):
        self.ins = []
        self.uid = 0
    def __call__(self, text):
        for line in text.split("\n"):
            line = line.strip()
            if line == "" or line.startswith(";") :
                continue
            self.ins.append(Ins(line))
    def label(self, name): self.ins.append(Ins(name + ":"))
    def newlabel(self, base):
        self.uid += 1
        return "L_%s_%d" % (base, self.uid)
    def comment(self, text):
        i = Ins(""); i.text = "; " + text; self.ins.append(i)

    def _fix_seq(self, seq):
        out = {}
        WIN = 24
        hist = []
        pos = 0
        for idx, c in enumerate(seq):
            if c.kind in ("label", "dir"): continue
            req = 0
            for (p, ppos) in hist[-WIN:]:
                n = need(p, c)
                if n:
                    dist = pos - ppos
                    if dist < n: req = max(req, n - dist)
            if req:
                out[idx] = req; pos += req
            pos += c.ws
            hist.append((c, pos))
        return out

    def finalize(self):
        fix = self._fix_seq(self.ins)
        new = []
        for idx, c in enumerate(self.ins):
            if idx in fix:
                n = fix[idx]
                while n > 0:
                    k = min(n, 16); new.append(Ins("s_nop %d" % (k - 1))); n -= k
            new.append(c)
        self.ins = new
        for _ in range(3):
            labels = {c.mn: i for i, c in enumerate(self.ins) if c.is_label}
            changed = False
            i = 0
            while i < len(self.ins):
                c = self.ins[i]
                if c.kind == "branch" and c.target in labels:
                    a = labels[c.target]
                    pre = [x for x in self.ins[max(0, i - 40):i + 1] if x.kind not in ("label", "dir")]
                    post = [x for x in self.ins[a:a + 60] if x.kind not in ("label", "dir")][:24]
                    f = self._fix_seq(pre + post)
                    f = {k: v for k, v in f.items() if k >= len(pre)}
                    if f:
                        n = max(f.values())
                        ins = []
                        while n > 0:
                            k = min(n, 16); ins.append(Ins("s_nop %d" % (k - 1))); n -= k
                        self.ins[i:i] = ins
                        i += len(ins); changed = True
                        labels = {c.mn: i2 for i2, c in enumerate(self.ins) if c.is_label}
                i += 1
            if not changed: break
        return self
    def text(self):
        out = []
        for c in self.ins:
            if c.is_label: out.append(c.text)
            else: out.append("  " + c.text)
        return "\n".join(out) + "\n"

class VQ:
    def __init__(self, a): self.a = a; self.q = []
    def issue(self, tag): self.q.append(tag)
    def wait(self, tag):
        idx = max([i for i, t in enumerate(self.q) if t == tag], default=None)
        if idx is None: return
        n = len(self.q) - 1 - idx
        assert n <= 63, n
        self.a("s_waitcnt vmcnt(%d)" % n)
        self.q = self.q[idx + 1:]
    def wait_all(self):
        self.a("s_waitcnt vmcnt(0)"); self.q = []

def vr(b, n=1): return "v%d" % b if n == 1 else "v[%d:%d]" % (b, b + n - 1)
def ar(b, n=1): return "a%d" % b if n == 1 else "a[%d:%d]" % (b, b + n - 1)
def sr(b, n=1): return "s%d" % b if n == 1 else "s[%d:%d]" % (b, b + n - 1)
```

```python
import sys, math, struct
sys.path.insert(0, "gen")
from asmlib import *

NAME = "recurrent_scan__spectral_fnet__mixer_gmlp__prompt"

WS_FLAG = 0x000000
WS_STATS = 0x020000
WS_Z2N = 0x100000
WS_AB = 0x400000
WS_H = 0x600000
WS_YT = 0x900000
WS_DBG = 0xC00000
WS_STAMP = 0xF00000
WS_SIZE = 0x4000000
OOB = 0x80000000

LDS_X = 0
LDS_WR = 65536
SLOT = 16384
NSLOT = 5
LDS_T1 = 147456
LDS_T3 = LDS_T1 + 2048
LDS_T4 = LDS_T3 + 512
LDS_FX = 131072
LDS_FR = LDS_FX + 8192
LDS_WO = 73728
LDS_TOTAL = 163840

SRD_X, SRD_WIN, SRD_DFT, SRD_WSP, SRD_WOUT, SRD_WS, SRD_OUT, SRD_BSP, SRD_DBG = 4, 8, 12, 20, 24, 28, 32, 36, 40
S_IMLO, S_IMHI = 16, 17
S_MB, S_J, S_W, S_F0, S_WID, S_NONCE, S_L = 44, 45, 46, 47, 48, 49, 50
S_C, S_SLOT, S_XOFF = 51, 52, 53
S_CN, S_KC128, S_WSOFF, S_SLOTN = 54, 55, 56, 57
S_XS0, S_XL0, S_DL0, S_WL0, S_W2 = 58, 59, 60, 61, 62
S_T0, S_T1, S_T2, S_T3 = 63, 90, 91, 92
S_PASS = 93
S_EX = 94
S_K2 = 96
S_SPIN = 98
S_ST0 = 100

V_TID, V_LANE, V_JL, V_H, V_SIG = 0, 1, 2, 3, 4
V_T = 5
V_OX, V_OD, V_OW = 10, 12, 13
V_XA, V_AA, V_XC, V_AC = 16, 20, 24, 28
V_FA, V_FB = 32, 48
V_ACC, V_CS = 80, 112
V_LN = 128
V_ONES = 132
V_Z2P, V_Z1P = 136, 152
V_R1 = 168
V_E = 32
V_TRB, V_FF, V_FT, V_FG = 176, 184, 208, 240
V_C1 = 172
V_NON = 174

class Gen:
    def __init__(self, stop_after=None, stamps=False, dump=False):
        self.a = Asm()
        self.stop_after = stop_after
        self.stamps = stamps
        self.dump = dump
        self.nstamp = 0

    def stamp(self, idx):
        if not self.stamps: return
        a = self.a
        a("s_memrealtime s[%d:%d]" % (S_ST0, S_ST0 + 1))
        a("s_waitcnt lgkmcnt(0)")
        a("v_mov_b32 v%d, s%d" % (V_T + 4, S_ST0))
        a("s_lshl_b32 s%d, s%d, 2" % (S_ST0, S_L))
        a("s_add_u32 s%d, s%d, s%d" % (S_ST0, S_ST0, S_W))
        a("s_lshl_b32 s%d, s%d, 7" % (S_ST0, S_ST0))
        a("s_add_u32 s%d, s%d, 0x%x" % (S_ST0, S_ST0, WS_STAMP + idx * 4))
        a("v_mov_b32 v%d, 0" % (V_T + 3))
        a("s_mov_b64 s[%d:%d], exec" % (S_EX, S_EX + 1))
        a("s_mov_b64 exec, 1")
        a("buffer_store_dword v%d, v%d, s[%d:%d], s%d offen" % (V_T + 4, V_T + 3, SRD_WS, SRD_WS + 3, S_ST0))
        a("s_mov_b64 exec, s[%d:%d]" % (S_EX, S_EX + 1))

    def srd(self, base, plo, size):
        a = self.a
        a("s_mov_b32 s%d, s%d" % (base, plo))
        a("s_and_b32 s%d, s%d, 0xffff" % (base + 1, plo + 1))
        a("s_mov_b32 s%d, 0x%x" % (base + 2, size))
        a("s_mov_b32 s%d, 0x20000" % (base + 3))

    def prologue(self):
        a = self.a
        a("s_cmp_ge_u32 s2, 256")
        a("s_cbranch_scc1 L_end")
        a("s_load_dwordx16 s[64:79], s[0:1], 0")
        a("s_load_dwordx8 s[80:87], s[0:1], 64")
        a("s_load_dwordx2 s[88:89], s[0:1], 96")
        a("s_and_b32 s%d, s2, 7" % S_MB)
        a("s_lshl_b32 s%d, s%d, 2" % (S_MB, S_MB))
        a("s_lshr_b32 s3, s2, 3")
        a("s_and_b32 s3, s3, 3")
        a("s_add_u32 s%d, s%d, s3" % (S_MB, S_MB))
        a("s_lshr_b32 s%d, s2, 5" % S_J)
        a("s_lshl_b32 s%d, s%d, 5" % (S_L, S_J))
        a("s_add_u32 s%d, s%d, s%d" % (S_L, S_L, S_MB))
        a("v_lshrrev_b32 v5, 6, v0")
        a("v_and_b32 v%d, 63, v0" % V_LANE)
        a("v_readfirstlane_b32 s%d, v5" % S_W)
        a("v_and_b32 v%d, 31, v0" % V_JL)
        a("v_bfe_u32 v%d, v0, 5, 1" % V_H)
        a("v_and_b32 v5, 0x13, v%d" % V_JL)
        a("v_and_b32 v6, 4, v%d" % V_JL)
        a("v_lshl_or_b32 v5, v6, 1, v5")
        a("v_and_b32 v6, 8, v%d" % V_JL)
        a("v_lshrrev_b32 v6, 1, v6")
        a("v_or_b32 v%d, v5, v6" % V_SIG)
        a("s_mul_i32 s%d, s%d, 88" % (S_F0, S_J))
        a("s_cmp_eq_u32 s%d, 7" % S_J)
        a("s_cselect_b32 s3, 8, 0")
        a("s_sub_u32 s%d, s%d, s3" % (S_F0, S_F0))
        a("s_cmp_ge_u32 s%d, 6" % S_J)
        a("s_cselect_b32 s3, 8, 0")
        a("s_sub_u32 s%d, 88, s3" % S_WID)
        L = V_LANE
        a("v_lshrrev_b32 v5, 3, v%d" % L)
        a("v_and_b32 v6, 7, v%d" % L)
        a("v_lshrrev_b32 v7, 4, v%d" % L)
        a("v_xor_b32 v8, v6, v7")
        a("v_lshlrev_b32 v8, 4, v8")
        a("v_lshl_add_u32 v%d, v5, 10, v8" % V_OX)
        a("v_xor_b32 v%d, 64, v%d" % (V_OX + 1, V_OX))
        a("s_lshl_b32 s3, s%d, 5" % S_J)
        a("s_lshl_b32 s%d, s%d, 3" % (S_T0, S_W))
        a("s_add_u32 s3, s3, s%d" % S_T0)
        a("v_add_u32 v9, s3, v5")
        a("v_cmp_eq_u32 vcc, 0, v9")
        a("v_mov_b32 v6, 256")
        a("v_cndmask_b32 v9, v9, v6, vcc")
        a("s_and_b32 s%d, s%d, 1" % (S_T0, S_W))
        a("s_lshl_b32 s%d, s%d, 6" % (S_T0, S_T0))
        a("v_xor_b32 v8, s%d, v8" % S_T0)
        a("v_lshl_add_u32 v%d, v9, 10, v8" % V_OD)
        for p in range(3):
            a("v_add_u32 v5, %d, v%d" % (64 * p, L))
            a("v_mul_u32_u24 v6, 171, v5")
            a("v_lshrrev_b32 v6, 11, v6")
            a("v_mul_u32_u24 v7, 12, v6")
            a("v_sub_u32 v7, v5, v7")
            a("v_mul_u32_u24 v6, 2752, v6")
            a("v_lshl_add_u32 v6, v7, 4, v6")
            a("v_lshlrev_b32 v7, 3, v7")
            a("v_cmp_gt_u32 vcc, s%d, v7" % S_WID)
            a("v_mov_b32 v8, 0x%x" % OOB)
            a("v_cndmask_b32 v%d, v8, v6, vcc" % (V_OW + p))
        a("s_lshl_b32 s%d, s%d, 6" % (S_XS0, S_MB))
        a("s_lshl_b32 s3, s%d, 4" % S_W)
        a("s_add_u32 s%d, s%d, s3" % (S_XS0, S_XS0))
        a("s_lshl_b32 s%d, s%d, 10" % (S_XS0, S_XS0))
        a("s_lshl_b32 s%d, s%d, 11" % (S_XL0, S_W))
        a("s_lshl_b32 s%d, s%d, 10" % (S_DL0, S_W))
        a("s_add_u32 s%d, s%d, 12288" % (S_DL0, S_DL0))
        a("s_mul_i32 s%d, s%d, 3072" % (S_WL0, S_W))
        a("s_mul_i32 s%d, s%d, %d" % (S_W2, S_W, 16 * 2752))
        a("s_lshl_b32 s3, s%d, 1" % S_F0)
        a("s_add_u32 s%d, s%d, s3" % (S_W2, S_W2))
        a("s_add_u32 s%d, s%d, %d" % (S_WSOFF, S_W2, 688 * 2))
        a("s_mov_b32 s%d, 0" % S_CN)
        a("s_mov_b32 s%d, 0" % S_KC128)
        a("s_mov_b32 s%d, %d" % (S_SLOTN, LDS_WR))
        a("s_waitcnt lgkmcnt(0)")
        self.srd(SRD_X, 64, 2048 * 1024)
        self.srd(SRD_WIN, 76, 512 * 2752)
        self.srd(SRD_DFT, 70, 512 * 1024)
        a("s_mov_b32 s%d, s72" % S_IMLO)
        a("s_and_b32 s%d, s73, 0xffff" % S_IMHI)
        self.srd(SRD_WSP, 78, 2048 * 4096)
        self.srd(SRD_WOUT, 82, 688 * 1024)
        self.srd(SRD_WS, 88, WS_SIZE)
        self.srd(SRD_OUT, 84, 2048 * 1024)
        self.srd(SRD_BSP, 80, 4096)
        self.srd(SRD_DBG, 86, 256)
        a("s_cmp_lg_u32 s2, 0")
        a("s_cbranch_scc1 L_nononce")
        a("s_cmp_lg_u32 s%d, 0" % S_W)
        a("s_cbranch_scc1 L_nononce")
        a("s_memrealtime s[%d:%d]" % (S_ST0, S_ST0 + 1))
        a("s_waitcnt lgkmcnt(0)")
        a("s_or_b32 s3, s%d, 1" % S_ST0)
        a("v_mov_b32 v5, s3")
        a("v_mov_b32 v6, 0")
        a("s_mov_b64 exec, 1")
        a("buffer_store_dword v5, v6, s[%d:%d], 0 offen sc1" % (SRD_DBG, SRD_DBG + 3))
        a("s_mov_b64 exec, -1")
        a.label("L_nononce")
        self.stamp(0)
        a("s_mov_b32 s%d, 4" % S_T3)
        a.label("L_dma0")
        self.dma_chunk("pro")
        a("s_sub_u32 s%d, s%d, 1" % (S_T3, S_T3))
        a("s_cmp_lg_u32 s%d, 0" % S_T3)
        a("s_cbranch_scc1 L_dma0")

    def dma_chunk(self, tag):
        a = self.a
        nox = "L_nox_" + tag
        np2 = "L_np2_" + tag
        nwr = "L_nwr_" + tag
        a("s_cmp_lt_u32 s%d, 8" % S_CN)
        a("s_cbranch_scc0 %s" % nox)
        a("s_add_u32 s%d, s%d, s%d" % (S_T0, S_XS0, S_KC128))
        a("s_lshl_b32 s%d, s%d, 6" % (S_T1, S_KC128))
        a("s_add_u32 m0, s%d, s%d" % (S_T1, S_XL0))
        a("buffer_load_dwordx4 v%d, s[%d:%d], s%d offen lds" % (V_OX, SRD_X, SRD_X + 3, S_T0))
        a("s_add_u32 m0, m0, 1024")
        a("s_add_u32 s%d, s%d, 8192" % (S_T0, S_T0))
        a("buffer_load_dwordx4 v%d, s[%d:%d], s%d offen lds" % (V_OX + 1, SRD_X, SRD_X + 3, S_T0))
        a.label(nox)
        a("s_add_u32 m0, s%d, s%d" % (S_SLOTN, S_DL0))
        a("s_nop 0")
        a("buffer_load_dwordx4 v%d, s[%d:%d], s%d offen lds" % (V_OD, SRD_DFT, SRD_DFT + 3, S_KC128))
        a("s_add_u32 m0, s%d, s%d" % (S_SLOTN, S_WL0))
        for p in range(3):
            a("s_nop 0")
            a("buffer_load_dwordx4 v%d, s[%d:%d], s%d offen lds" % (V_OW + p, SRD_WIN, SRD_WIN + 3, S_WSOFF))
            if p < 2: a("s_add_u32 m0, m0, 1024")
        a("s_add_u32 s%d, s%d, 1" % (S_CN, S_CN))
        a("s_add_u32 s%d, s%d, 128" % (S_KC128, S_KC128))
        a("s_and_b32 s%d, s%d, 1023" % (S_KC128, S_KC128))
        a("s_add_u32 s%d, s%d, %d" % (S_WSOFF, S_WSOFF, 64 * 2752))
        a("s_cmp_lg_u32 s%d, 8" % S_CN)
        a("s_cbranch_scc1 %s" % np2)
        a("s_mov_b32 s%d, s%d" % (S_WSOFF, S_W2))
        a("s_mov_b32 s%d, s%d" % (SRD_DFT, S_IMLO))
        a("s_mov_b32 s%d, s%d" % (SRD_DFT + 1, S_IMHI))
        a.label(np2)
        a("s_add_u32 s%d, s%d, %d" % (S_SLOTN, S_SLOTN, SLOT))
        a("s_cmp_lg_u32 s%d, %d" % (S_SLOTN, LDS_WR + NSLOT * SLOT))
        a("s_cbranch_scc1 %s" % nwr)
        a("s_mov_b32 s%d, %d" % (S_SLOTN, LDS_WR))
        a.label(nwr)

    def consts(self):
        a = self.a
        a("v_lshrrev_b32 v5, 1, v%d" % V_SIG)
        a("v_and_b32 v5, 7, v5")
        a("v_lshlrev_b32 v6, 7, v%d" % V_SIG)
        a("v_bfe_u32 v7, v%d, 2, 2" % V_LANE)
        a("v_lshl_add_u32 v7, v%d, 3, v7" % V_H)
        a("v_mul_u32_u24 v7, 192, v7")
        a("v_bfe_u32 v8, v%d, 4, 1" % V_LANE)
        a("v_lshlrev_b32 v8, 5, v8")
        a("v_and_b32 v9, 1, v%d" % V_LANE)
        a("v_lshl_add_u32 v8, v9, 4, v8")
        a("v_bfe_u32 v9, v%d, 1, 1" % V_LANE)
        a("v_lshl_add_u32 v8, v9, 3, v8")
        a("v_add_u32 v7, v7, v8")
        a("s_lshl_b32 s3, s%d, 6" % S_W)
        a("v_add_u32 v7, s3, v7")
        for k in range(4):
            a("s_add_u32 s3, s%d, %d" % (S_W, k))
            a("s_and_b32 s3, s3, 3")
            a("s_lshl_b32 s%d, s3, 1" % S_T0)
            a("v_add_u32 v8, s%d, v%d" % (S_T0, V_H))
            a("v_xor_b32 v8, v8, v5")
            a("v_lshl_add_u32 v%d, v8, 4, v6" % (V_XA + k))
            a("s_mul_i32 s%d, s3, 3072" % S_T0)
            a("v_add_u32 v%d, s%d, v7" % (V_AA + k, S_T0))
        a("s_cmp_lg_u32 s%d, 3" % S_W)
        a("s_cbranch_scc1 L_c_nw3")
        for k in range(4):
            a("v_add_u32 v%d, 12288, v%d" % (V_AA + k, V_XA + k))
        a.label("L_c_nw3")
        for k in range(4): a("v_mov_b32 v%d, 0x3f803f80" % (V_ONES + k))
        c1 = -2.0 * math.sqrt(2.0 / math.pi) * math.log2(math.e)
        c2 = c1 * 0.044715
        f2u = lambda x: struct.unpack("<I", struct.pack("<f", x))[0]
        a("v_mov_b32 v%d, 0x%x" % (V_C1, f2u(c1)))
        a("s_mov_b32 s%d, 0x%x" % (S_K2, f2u(c2)))
        a("s_mov_b32 s%d, 0x%x" % (S_K2 + 1, f2u(c2)))
        for Q in range(2):
            a("v_lshlrev_b32 v5, 3, v%d" % V_H)
            a("v_sub_u32 v5, v%d, v5" % V_SIG)
            if Q: a("v_subrev_u32 v5, 16, v5")
            a("v_and_b32 v6, 1, v5")
            a("v_lshlrev_b32 v6, 4, v6")
            a("v_mov_b32 v7, 0x3f80")
            a("v_lshlrev_b32 v6, v6, v7")
            a("v_lshrrev_b32 v5, 1, v5")
            for r in range(4):
                a("v_cmp_eq_u32 vcc, %d, v5" % r)
                a("v_cndmask_b32 v%d, 0, v6, vcc" % (V_TRB + 4 * Q + r))

    def p1_wait(self, tag):
        a = self.a
        l12, l8, l4, l0, ld = ["L_w%s_%s" % (x, tag) for x in ("12", "8", "4", "0", "d")]
        a("s_cmp_gt_u32 s%d, 4" % S_C)
        a("s_cbranch_scc1 %s" % l12)
        a("s_waitcnt vmcnt(18)")
        a("s_branch %s" % ld)
        a.label(l12)
        a("s_cmp_gt_u32 s%d, 12" % S_C)
        a("s_cbranch_scc1 %s" % l8)
        a("s_waitcnt vmcnt(12)")
        a("s_branch %s" % ld)
        a.label(l8)
        a("s_cmp_gt_u32 s%d, 13" % S_C)
        a("s_cbranch_scc1 %s" % l4)
        a("s_waitcnt vmcnt(8)")
        a("s_branch %s" % ld)
        a.label(l4)
        a("s_cmp_gt_u32 s%d, 14" % S_C)
        a("s_cbranch_scc1 %s" % l0)
        a("s_waitcnt vmcnt(4)")
        a("s_branch %s" % ld)
        a.label(l0)
        a("s_waitcnt vmcnt(0)")
        a.label(ld)

    def ln1_ops(self, regs):
        ops = []
        t = V_T
        for st in range(2):
            for r in range(4):
                src = regs[st] + r
                lo, hi = (t + 0, t + 1) if r % 2 == 0 else (t + 2, t + 3)
                ops.append("v_lshlrev_b32 v%d, 16, v%d" % (lo, src))
                ops.append("v_and_b32 v%d, 0xffff0000, v%d" % (hi, src))
                ops.append("v_add_f32 v%d, v%d, v%d" % (V_LN + 2 * st, V_LN + 2 * st, lo))
                ops.append("v_fmac_f32 v%d, v%d, v%d" % (V_LN + 2 * st + 1, lo, lo))
                ops.append("v_add_f32 v%d, v%d, v%d" % (V_LN + 2 * st, V_LN + 2 * st, hi))
                ops.append("v_fmac_f32 v%d, v%d, v%d" % (V_LN + 2 * st + 1, hi, hi))
        return ops

    def p1_loop(self, w3):
        a = self.a
        tag = "w3" if w3 else "w"
        a.label("L_p1_%s" % tag)
        self.p1_wait(tag)
        a("s_barrier")
        a("s_cmp_lt_u32 s%d, 16" % S_CN)
        a("s_cbranch_scc0 L_p1nd_%s" % tag)
        self.dma_chunk(tag)
        a.label("L_p1nd_%s" % tag)
        if w3:
            a("s_cmp_lg_u32 s%d, 10" % S_C)
            a("s_cbranch_scc1 L_p1nf")
            a("s_waitcnt vmcnt(12)")
            self.flag_store(0)
            a.label("L_p1nf")
        for k in range(4):
            a("v_add_u32 v%d, s%d, v%d" % (V_XC + k, S_XOFF, V_XA + k))
            a("v_add_u32 v%d, s%d, v%d" % (V_AC + k, S_SLOT, V_AA + k))
        def reads(k):
            A = V_FA + 4 * k; B = V_FB + 8 * k
            if w3:
                a("ds_read_b128 v[%d:%d], v%d" % (A, A + 3, V_AC + k))
            else:
                a("ds_read_b64_tr_b16 v[%d:%d], v%d" % (A, A + 1, V_AC + k))
                a("ds_read_b64_tr_b16 v[%d:%d], v%d offset:768" % (A + 2, A + 3, V_AC + k))
            a("ds_read_b128 v[%d:%d], v%d" % (B, B + 3, V_XC + k))
            a("ds_read_b128 v[%d:%d], v%d offset:4096" % (B + 4, B + 7, V_XC + k))
        nr = 3 if w3 else 4
        ln = self.ln1_ops([V_FB, V_FB + 4])
        def mf(k, lnops):
            A = V_FA + 4 * k; B = V_FB + 8 * k
            ms = []
            if w3:
                ms.append("v_mfma_f32_32x32x16_bf16 v[%d:%d], v[%d:%d], v[%d:%d], v[%d:%d]" % (V_ACC, V_ACC + 15, B, B + 3, A, A + 3, V_ACC, V_ACC + 15))
                ms.append("v_mfma_f32_32x32x16_bf16 v[%d:%d], v[%d:%d], v[%d:%d], v[%d:%d]" % (V_ACC + 16, V_ACC + 31, B + 4, B + 7, A, A + 3, V_ACC + 16, V_ACC + 31))
                ms.append("v_mfma_f32_32x32x16_bf16 v[%d:%d], v[%d:%d], v[%d:%d], v[%d:%d]" % (V_CS, V_CS + 15, V_ONES, V_ONES + 3, A, A + 3, V_CS, V_CS + 15))
            else:
                ms.append("v_mfma_f32_32x32x16_bf16 v[%d:%d], v[%d:%d], v[%d:%d], v[%d:%d]" % (V_ACC, V_ACC + 15, A, A + 3, B, B + 3, V_ACC, V_ACC + 15))
                ms.append("v_mfma_f32_32x32x16_bf16 v[%d:%d], v[%d:%d], v[%d:%d], v[%d:%d]" % (V_ACC + 16, V_ACC + 31, A, A + 3, B + 4, B + 7, V_ACC + 16, V_ACC + 31))
                ms.append("v_mfma_f32_32x32x16_bf16 v[%d:%d], v[%d:%d], v[%d:%d], v[%d:%d]" % (V_CS, V_CS + 15, A, A + 3, V_ONES, V_ONES + 3, V_CS, V_CS + 15))
            for m in ms:
                a(m)
                for _ in range(4):
                    if lnops: a(lnops.pop(0))
        reads(0); reads(1); reads(2)
        a("s_waitcnt lgkmcnt(%d)" % (2 * nr))
        mf(0, ln)
        reads(3)
        a("s_waitcnt lgkmcnt(%d)" % (2 * nr))
        mf(1, ln)
        a("s_waitcnt lgkmcnt(%d)" % nr)
        mf(2, ln)
        a("s_waitcnt lgkmcnt(0)")
        mf(3, ln)
        assert not ln
        a("s_add_u32 s%d, s%d, 1" % (S_C, S_C))
        a("s_add_u32 s%d, s%d, 8192" % (S_XOFF, S_XOFF))
        a("s_add_u32 s%d, s%d, %d" % (S_SLOT, S_SLOT, SLOT))
        a("s_cmp_lg_u32 s%d, %d" % (S_SLOT, LDS_WR + NSLOT * SLOT))
        a("s_cbranch_scc1 L_p1ns_%s" % tag)
        a("s_mov_b32 s%d, %d" % (S_SLOT, LDS_WR))
        a.label("L_p1ns_%s" % tag)
        a("s_and_b32 s%d, s%d, 7" % (S_T0, S_C))
        a("s_cmp_lg_u32 s%d, 0" % S_T0)
        a("s_cbranch_scc1 L_p1_%s" % tag)

    def hsum(self, regs, tmp):
        a = self.a
        for i, r in enumerate(regs):
            a("v_mov_b32 v%d, v%d" % (tmp + i, r))
        for i, r in enumerate(regs):
            a("v_permlane32_swap_b32 v%d, v%d" % (r, tmp + i))
        for i, r in enumerate(regs):
            a("v_add_f32 v%d, v%d, v%d" % (r, r, tmp + i))

    def ln1_final(self):
        a = self.a
        E = V_E
        self.hsum([V_LN, V_LN + 1, V_LN + 2, V_LN + 3], E)
        a("s_lshl_b32 s3, s%d, 9" % S_W)
        a("v_lshlrev_b32 v%d, 3, v%d" % (E + 4, V_JL))
        a("v_add_u32 v%d, %d, v%d" % (E + 4, LDS_T1, E + 4))
        a("v_add_u32 v%d, s3, v%d" % (E + 5, E + 4))
        a("ds_write_b64 v%d, v[%d:%d]" % (E + 5, V_LN, V_LN + 1))
        a("ds_write_b64 v%d, v[%d:%d] offset:256" % (E + 5, V_LN + 2, V_LN + 3))
        a("s_waitcnt lgkmcnt(0)")
        a("s_barrier")
        for w in range(4):
            for st in range(2):
                d = E + 8 + (w * 2 + st) * 2
                a("ds_read_b64 v[%d:%d], v%d offset:%d" % (d, d + 1, E + 4, w * 512 + st * 256))
        a("s_waitcnt lgkmcnt(0)")
        for st in range(2):
            b = E + 8 + st * 2
            for w in range(1, 4):
                d = E + 8 + (w * 2 + st) * 2
                a("v_pk_add_f32 v[%d:%d], v[%d:%d], v[%d:%d]" % (b, b + 1, b, b + 1, d, d + 1))
        for st in range(2):
            b = E + 8 + st * 2
            self.mean_rstd(b, b + 1, 512, V_R1 + 2 * st, V_R1 + 2 * st + 1, E + 30)

    def mean_rstd(self, vsum, vsq, n, dst_r, dst_nm, t):
        a = self.a
        f2u = lambda x: struct.unpack("<I", struct.pack("<f", x))[0]
        a("v_mul_f32 v%d, 0x%x, v%d" % (t, f2u(1.0 / n), vsum))
        a("v_mul_f32 v%d, 0x%x, v%d" % (t + 1, f2u(1.0 / n), vsq))
        a("v_fma_f32 v%d, -v%d, v%d, v%d" % (t + 1, t, t, t + 1))
        a("v_max_f32 v%d, 0, v%d" % (t + 1, t + 1))
        a("v_add_f32 v%d, 0x%x, v%d" % (t + 1, f2u(1e-5), t + 1))
        a("v_rsq_f32 v%d, v%d" % (dst_r, t + 1))
        a("v_mul_f32 v%d, v%d, v%d" % (dst_nm, t, dst_r))
        a("v_sub_f32 v%d, 0, v%d" % (dst_nm, dst_nm))

    def z_epilogue(self, dst):
        a = self.a
        E = V_E
        for st in range(2):
            r1 = V_R1 + 2 * st; nm = r1 + 1
            for pp in range(0, 8, 2):
                T = []
                for u in range(2):
                    p = pp + u
                    acc = V_ACC + 16 * st + 2 * p; cs = V_CS + 2 * p
                    b = E + u * 8
                    T.append((acc, cs, b))
                seq = [[], []]
                for u, (acc, cs, b) in enumerate(T):
                    pre, p2, e = b, b + 2, b + 4
                    s = seq[u]
                    s.append("v_pk_mul_f32 v[%d:%d], v[%d:%d], v[%d:%d] op_sel:[0,1] op_sel_hi:[1,1]" % (pre, pre + 1, cs, cs + 1, r1, r1 + 1))
                    s.append("v_pk_fma_f32 v[%d:%d], v[%d:%d], v[%d:%d], v[%d:%d] op_sel_hi:[1,0,1]" % (pre, pre + 1, acc, acc + 1, r1, r1 + 1, pre, pre + 1))
                    s.append("v_pk_mul_f32 v[%d:%d], v[%d:%d], v[%d:%d]" % (p2, p2 + 1, pre, pre + 1, pre, pre + 1))
                    s.append("v_pk_fma_f32 v[%d:%d], v[%d:%d], s[%d:%d], v[%d:%d] op_sel_hi:[1,1,0]" % (p2, p2 + 1, p2, p2 + 1, S_K2, S_K2 + 1, V_C1, V_C1 + 1))
                    s.append("v_pk_mul_f32 v[%d:%d], v[%d:%d], v[%d:%d]" % (p2, p2 + 1, p2, p2 + 1, pre, pre + 1))
                    s.append("v_exp_f32 v%d, v%d" % (e, p2))
                    s.append("v_exp_f32 v%d, v%d" % (e + 1, p2 + 1))
                    s.append("v_pk_add_f32 v[%d:%d], v[%d:%d], 1.0 op_sel_hi:[1,0]" % (e, e + 1, e, e + 1))
                    s.append("v_rcp_f32 v%d, v%d" % (e, e))
                    s.append("v_rcp_f32 v%d, v%d" % (e + 1, e + 1))
                    s.append("v_pk_mul_f32 v[%d:%d], v[%d:%d], v[%d:%d]" % (pre, pre + 1, pre, pre + 1, e, e + 1))
                    s.append("v_cvt_pk_bf16_f32 v%d, v%d, v%d" % (dst + 8 * st + pp + u, pre, pre + 1))
                for i in range(len(seq[0])):
                    a(seq[0][i]); a(seq[1][i])

    def flag_store(self, kind):
        a = self.a
        a("s_lshl_b32 s%d, s%d, 7" % (S_T0, S_L))
        a("s_add_u32 s%d, s%d, 0x%x" % (S_T0, S_T0, WS_FLAG + kind * 256 * 128))
        a("v_mov_b32 v5, s%d" % S_NONCE)
        a("v_mov_b32 v6, 0")
        a("s_mov_b64 exec, 1")
        a("buffer_store_dword v5, v6, s[%d:%d], s%d offen sc1" % (SRD_WS, SRD_WS + 3, S_T0))
        a("s_mov_b64 exec, -1")

    def get_nonce(self):
        a = self.a
        lab = a.newlabel("nonce")
        a("v_mov_b32 v6, 0")
        a("s_mov_b32 s%d, 0" % S_SPIN)
        a.label(lab)
        a("buffer_load_dword v5, v6, s[%d:%d], 0 offen sc1" % (SRD_DBG, SRD_DBG + 3))
        a("s_waitcnt vmcnt(0)")
        a("v_readfirstlane_b32 s%d, v5" % S_NONCE)
        a("s_add_u32 s%d, s%d, 1" % (S_SPIN, S_SPIN))
        a("s_cmp_gt_u32 s%d, 0x40000" % S_SPIN)
        a("s_cbranch_scc1 %s_x" % lab)
        a("s_cmp_eq_u32 s%d, 0" % S_NONCE)
        a("s_cbranch_scc1 %s" % lab)
        a.label(lab + "_x")

    def poll_flags(self, vaddr, nlanes, kindoff_in_vaddr=True):
        a = self.a
        lab = a.newlabel("poll")
        a("s_mov_b32 s%d, 0" % S_SPIN)
        mask = (1 << nlanes) - 1
        a("s_mov_b32 exec_lo, 0x%x" % (mask & 0xffffffff))
        a("s_mov_b32 exec_hi, 0x%x" % (mask >> 32))
        a.label(lab)
        a("buffer_load_dword v5, v%d, s[%d:%d], 0 offen sc1" % (vaddr, SRD_WS, SRD_WS + 3))
        a("s_waitcnt vmcnt(0)")
        a("v_cmp_ne_u32 vcc, s%d, v5" % S_NONCE)
        a("s_add_u32 s%d, s%d, 1" % (S_SPIN, S_SPIN))
        a("s_cmp_gt_u32 s%d, 0x40000" % S_SPIN)
        a("s_cbranch_scc1 %s_x" % lab)
        a("s_cbranch_vccnz %s" % lab)
        a.label(lab + "_x")
        a("s_mov_b64 exec, -1")

    def zero_acc(self):
        a = self.a
        for i in range(48): a("v_mov_b32 v%d, 0" % (V_ACC + i))

    def dft_epilogue(self, part):
        a = self.a
        E = V_E
        a("v_lshlrev_b32 v%d, 5, v%d" % (V_T, V_H))
        a("v_add_u32 v%d, %d, v%d" % (V_T, LDS_T3, V_T))
        a("s_lshl_b32 s3, s%d, 5" % S_J)
        a("v_add_u32 v%d, s3, v%d" % (V_T + 1, V_SIG))
        a("v_lshlrev_b32 v%d, 13, v%d" % (V_T + 1, V_T + 1))
        a("v_lshl_add_u32 v%d, v%d, 4, v%d" % (V_T + 1, V_H, V_T + 1))
        a("s_lshl_b32 s%d, s%d, 7" % (S_T0, S_MB))
        a("s_add_u32 s%d, s%d, 0x%x" % (S_T0, S_T0, WS_AB + part * 4096))
        for st in range(2):
            for Q in range(2):
                b = E + (st * 2 + Q) * 0
                off = (32 * st + 16 * Q) * 4
                a("ds_read_b128 v[%d:%d], v%d offset:%d" % (E, E + 3, V_T, off))
                a("ds_read_b128 v[%d:%d], v%d offset:%d" % (E + 4, E + 7, V_T, off + 16))
                a("ds_read_b128 v[%d:%d], v%d offset:%d" % (E + 8, E + 11, V_T, off + 256))
                a("ds_read_b128 v[%d:%d], v%d offset:%d" % (E + 12, E + 15, V_T, off + 256 + 16))
                a("s_waitcnt lgkmcnt(0)")
                o = E + 16 + (st * 2 + Q) * 4
                for p in range(4):
                    acc = V_ACC + 16 * st + 8 * Q + 2 * p
                    a("v_pk_mul_f32 v[%d:%d], v[%d:%d], v[%d:%d] op_sel_hi:[1,0]" % (E + 8 + 2 * p, E + 9 + 2 * p, E + 8 + 2 * p, E + 9 + 2 * p, V_CS, V_CS + 1))
                    a("v_pk_fma_f32 v[%d:%d], v[%d:%d], v[%d:%d], v[%d:%d]" % (E + 8 + 2 * p, E + 9 + 2 * p, acc, acc + 1, E + 2 * p, E + 2 * p + 1, E + 8 + 2 * p, E + 9 + 2 * p))
                    a("v_cvt_pk_bf16_f32 v%d, v%d, v%d" % (o + p, E + 8 + 2 * p, E + 9 + 2 * p))
                a("buffer_store_dwordx4 v[%d:%d], v%d, s[%d:%d], s%d offen offset:%d sc1" % (o, o + 3, V_T + 1, SRD_WS, SRD_WS + 3, S_T0, (32 * st + 16 * Q) * 2))

    def stats2_partial(self, src):
        a = self.a
        E = V_E
        for i in range(4): a("v_mov_b32 v%d, 0" % (E + i))
        for st in range(2):
            for r in range(8):
                a("v_dot2c_f32_bf16 v%d, v%d, v%d" % (E + 2 * st, src + 8 * st + r, V_ONES))
                a("v_dot2c_f32_bf16 v%d, v%d, v%d" % (E + 2 * st + 1, src + 8 * st + r, src + 8 * st + r))
        self.hsum([E, E + 1, E + 2, E + 3], E + 4)
        a("s_lshl_b32 s3, s%d, 9" % S_W)
        a("v_lshlrev_b32 v%d, 3, v%d" % (E + 8, V_JL))
        a("v_add_u32 v%d, s3, v%d" % (E + 8, E + 8))
        a("v_add_u32 v%d, %d, v%d" % (E + 8, LDS_T4, E + 8))
        a("ds_write_b64 v%d, v[%d:%d]" % (E + 8, E, E + 1))
        a("ds_write_b64 v%d, v[%d:%d] offset:256" % (E + 8, E + 2, E + 3))
        a("s_waitcnt lgkmcnt(0)")

    def stats2_publish(self):
        a = self.a
        E = V_E
        a("v_lshlrev_b32 v%d, 3, v%d" % (E + 20, V_JL))
        a("v_add_u32 v%d, %d, v%d" % (E + 20, LDS_T4, E + 20))
        for w in range(3):
            for st in range(2):
                d = E + w * 4 + st * 2
                a("ds_read_b64 v[%d:%d], v%d offset:%d" % (d, d + 1, E + 20, w * 512 + st * 256))
        a("s_waitcnt lgkmcnt(0)")
        for w in range(1, 3):
            for st in range(2):
                a("v_pk_add_f32 v[%d:%d], v[%d:%d], v[%d:%d]" % (E + st * 2, E + st * 2 + 1, E + st * 2, E + st * 2 + 1, E + w * 4 + st * 2, E + w * 4 + st * 2 + 1))
        a("s_lshl_b32 s%d, s%d, 3" % (S_T0, S_MB))
        a("s_add_u32 s%d, s%d, s%d" % (S_T0, S_T0, S_J))
        a("s_lshl_b32 s%d, s%d, 9" % (S_T0, S_T0))
        a("s_add_u32 s%d, s%d, 0x%x" % (S_T0, S_T0, WS_STATS))
        a("v_lshlrev_b32 v%d, 4, v%d" % (E + 20, V_JL))
        a("s_mov_b32 exec_hi, 0")
        a("buffer_store_dwordx4 v[%d:%d], v%d, s[%d:%d], s%d offen sc1" % (E, E + 3, E + 20, SRD_WS, SRD_WS + 3, S_T0))
        a("s_mov_b64 exec, -1")

    def z2n_publish(self):
        a = self.a
        E = V_E
        a("v_lshlrev_b32 v%d, 5, v%d" % (E, V_LANE))
        a("v_add_u32 v%d, s%d, v%d" % (E, S_MB, E))
        a("v_lshlrev_b32 v%d, 7, v%d" % (E, E))
        if WS_FLAG: a("v_add_u32 v%d, 0x%x, v%d" % (E, WS_FLAG, E))
        self.poll_flags(E, 8)
        self.stamp(6)
        a("s_lshl_b32 s%d, s%d, 12" % (S_T0, S_MB))
        a("s_add_u32 s%d, s%d, 0x%x" % (S_T0, S_T0, WS_STATS))
        a("v_lshlrev_b32 v%d, 4, v%d" % (E, V_JL))
        for jj in range(8):
            a("buffer_load_dwordx4 v[%d:%d], v%d, s[%d:%d], s%d offen offset:%d sc1" % (E + 4 + 4 * jj, E + 7 + 4 * jj, E, SRD_WS, SRD_WS + 3, S_T0, jj * 512))
        a("s_waitcnt vmcnt(0)")
        for jj in range(1, 8):
            for q in range(2):
                a("v_pk_add_f32 v[%d:%d], v[%d:%d], v[%d:%d]" % (E + 4 + 2 * q, E + 5 + 2 * q, E + 4 + 2 * q, E + 5 + 2 * q, E + 4 + 4 * jj + 2 * q, E + 5 + 4 * jj + 2 * q))
        for st in range(2):
            self.mean_rstd(E + 4 + 2 * st, E + 5 + 2 * st, 688, E + 8 + 2 * st, E + 9 + 2 * st, E + 40)
        N = E + 12
        for st in range(2):
            r2 = E + 8 + 2 * st
            for r in range(8):
                src = V_Z2P + 8 * st + r
                t = E + 30 + 2 * (r % 4)
                a("v_lshlrev_b32 v%d, 16, v%d" % (t, src))
                a("v_and_b32 v%d, 0xffff0000, v%d" % (t + 1, src))
                a("v_pk_fma_f32 v[%d:%d], v[%d:%d], v[%d:%d], v[%d:%d] op_sel:[0,0,1] op_sel_hi:[1,0,1]" % (t, t + 1, t, t + 1, r2, r2 + 1, r2, r2 + 1))
                a("v_cvt_pk_bf16_f32 v%d, v%d, v%d" % (N + 8 * st + r, t, t + 1))
        for st in range(2):
            D = V_ACC + 16 * st
            a("v_mfma_f32_32x32x16_bf16 v[%d:%d], v[%d:%d], v[%d:%d], 0" % (D, D + 15, N + 8 * st, N + 8 * st + 3, V_TRB, V_TRB + 3))
            a("v_mfma_f32_32x32x16_bf16 v[%d:%d], v[%d:%d], v[%d:%d], v[%d:%d]" % (D, D + 15, N + 8 * st + 4, N + 8 * st + 7, V_TRB + 4, V_TRB + 7, D, D + 15))
        a("s_lshl_b32 s%d, s%d, 7" % (S_T0, S_J))
        a("s_lshl_b32 s%d, s%d, 2" % (S_T1, S_MB))
        a("s_add_u32 s%d, s%d, s%d" % (S_T0, S_T0, S_T1))
        a("s_mul_i32 s%d, s%d, 3" % (S_T0, S_T0))
        a("s_add_u32 s%d, s%d, s%d" % (S_T0, S_T0, S_W))
        a("s_lshl_b32 s%d, s%d, 10" % (S_T0, S_T0))
        a("s_add_u32 s%d, s%d, 0x%x" % (S_T0, S_T0, WS_Z2N))
        a("v_lshlrev_b32 v%d, 4, v%d" % (E, V_LANE))
        for st in range(2):
            for Q in range(2):
                D = V_ACC + 16 * st + 8 * Q
                o = E + 4 + (st * 2 + Q) * 4
                for p in range(4):
                    a("v_cvt_pk_bf16_f32 v%d, v%d, v%d" % (o + p, D + 2 * p, D + 2 * p + 1))
                a("s_add_u32 s%d, s%d, %d" % (S_T1, S_T0, (2 * st + Q) * 3072))
                a("buffer_store_dwordx4 v[%d:%d], v%d, s[%d:%d], s%d offen sc1" % (o, o + 3, E, SRD_WS, SRD_WS + 3, S_T1))

    def dump_regs(self, base, n, slot):
        a = self.a
        a("s_lshl_b32 s%d, s%d, 2" % (S_T0, S_L))
        a("s_add_u32 s%d, s%d, s%d" % (S_T0, S_T0, S_W))
        a("s_mul_i32 s%d, s%d, %d" % (S_T0, S_T0, 16 * 256))
        a("s_add_u32 s%d, s%d, 0x%x" % (S_T0, S_T0, 0x1000000 + slot * 0x400000))
        a("v_lshlrev_b32 v5, 2, v%d" % V_LANE)
        for i in range(n):
            a("buffer_store_dword v%d, v5, s[%d:%d], s%d offen offset:%d" % (base + i, SRD_WS, SRD_WS + 3, S_T0, i * 256))

    def phase1(self):
        a = self.a
        self.consts()
        self.fft_consts()
        a("v_mov_b32 v6, 0")
        a("buffer_load_dword v%d, v6, s[%d:%d], 0 offen sc1" % (V_NON, SRD_DBG, SRD_DBG + 3))
        self.zero_acc()
        for i in range(4): a("v_mov_b32 v%d, 0" % (V_LN + i))
        a("s_mov_b32 s%d, 0" % S_C)
        a("s_mov_b32 s%d, 0" % S_XOFF)
        a("s_mov_b32 s%d, %d" % (S_SLOT, LDS_WR))
        a("s_mov_b32 s%d, 0" % S_PASS)
        self.stamp(1)
        a("s_cmp_eq_u32 s%d, 3" % S_W)
        a("s_cbranch_scc1 L_wave3")
        a.label("L_pass")
        self.p1_loop(False)
        a("s_cmp_lg_u32 s%d, 0" % S_PASS)
        a("s_cbranch_scc1 L_skip_ln1")
        self.stamp(2)
        self.ln1_final()
        a("v_readfirstlane_b32 s%d, v%d" % (S_NONCE, V_NON))
        a.label("L_skip_ln1")
        a("s_nop 7")
        self.z_epilogue(V_Z1P)
        a("s_cmp_lg_u32 s%d, 0" % S_PASS)
        a("s_cbranch_scc1 L_p1_done")
        for i in range(16): a("v_mov_b32 v%d, v%d" % (V_Z2P + i, V_Z1P + i))
        self.stats2_partial(V_Z2P)
        a("s_barrier")
        self.stamp(3)
        self.zero_acc()
        a("s_mov_b32 s%d, 1" % S_PASS)
        a("s_mov_b32 s%d, 0" % S_XOFF)
        a("s_branch L_pass")
        a.label("L_p1_done")
        self.stamp(4)
        a("s_barrier")
        a("s_cmp_lg_u32 s%d, 0" % S_NONCE)
        a("s_cbranch_scc1 L_have_nonce")
        self.get_nonce()
        a.label("L_have_nonce")
        self.stamp(5)
        self.z2n_publish()
        a("s_branch L_p1_join")
        a.label("L_wave3")
        a.label("L_pass3")
        self.p1_loop(True)
        a("s_cmp_lg_u32 s%d, 0" % S_PASS)
        a("s_cbranch_scc1 L_skip_ln1_3")
        self.ln1_final()
        a("v_lshlrev_b32 v5, 2, v%d" % V_SIG)
        a("v_add_u32 v5, %d, v5" % LDS_T3)
        a("ds_write_b32 v5, v%d" % (V_R1))
        a("ds_write_b32 v5, v%d offset:256" % (V_R1 + 1))
        a("ds_write_b32 v5, v%d offset:128" % (V_R1 + 2))
        a("ds_write_b32 v5, v%d offset:%d" % (V_R1 + 3, 256 + 128))
        a("s_waitcnt lgkmcnt(0)")
        a("v_readfirstlane_b32 s%d, v%d" % (S_NONCE, V_NON))
        a("s_cmp_lg_u32 s%d, 0" % S_NONCE)
        a("s_cbranch_scc1 L_have_nonce3")
        self.get_nonce()
        a.label("L_have_nonce3")
        a("s_nop 7")
        self.dft_epilogue(0)
        a("s_barrier")
        self.stats2_publish()
        self.zero_acc()
        a("s_mov_b32 s%d, 1" % S_PASS)
        a("s_mov_b32 s%d, 0" % S_XOFF)
        a("s_branch L_pass3")
        a.label("L_skip_ln1_3")
        a("s_nop 7")
        self.dft_epilogue(1)
        a("s_barrier")
        a.label("L_p1_join")

    def finish_p1_debug(self):
        a = self.a
        a("s_waitcnt vmcnt(0)")
        a("s_barrier")
        a("s_cmp_lg_u32 s%d, 0" % S_W)
        a("s_cbranch_scc1 L_dbg_nf")
        self.flag_store(1)
        a.label("L_dbg_nf")
        self.dump_regs(V_Z1P, 16, 0)
        self.dump_regs(V_Z2P, 16, 1)


    def f2u(self, x): return struct.unpack("<I", struct.pack("<f", x))[0]

    def fft_consts(self):
        a = self.a
        f2u = self.f2u
        T = V_E
        a("s_and_b32 s%d, s%d, 1" % (S_T0, S_W))
        a("s_lshr_b32 s%d, s%d, 1" % (S_T1, S_W))
        a("v_bfe_u32 v%d, v%d, 2, 1" % (T, V_JL))
        a("v_lshlrev_b32 v%d, 4, v%d" % (T, T))
        a("v_bfe_u32 v%d, v%d, 3, 2" % (T + 1, V_JL))
        a("v_lshl_or_b32 v%d, v%d, 2, v%d" % (T, T + 1, T))
        a("v_and_b32 v%d, 3, v%d" % (T + 1, V_JL))
        a("v_or_b32 v%d, v%d, v%d" % (T, T, T + 1))
        a("s_lshl_b32 s%d, s%d, 3" % (S_T2, S_T0))
        a("v_xor_b32 v%d, s%d, v%d" % (T, S_T2, T))
        a("v_cvt_f32_u32 v%d, v%d" % (T, T))
        a("v_cvt_f32_u32 v%d, v%d" % (T + 1, V_H))
        a("v_mul_f32 v%d, 0x%x, v%d" % (T + 1, f2u(8.0), T + 1))
        a("v_mul_f32 v%d, 0x%x, v%d" % (T + 2, f2u(1.0 / 32), T))
        a("v_mul_f32 v%d, v%d, v%d" % (T + 3, T + 2, T + 1))
        def angles(n_list, tq, base, dst):
            for idx, n in enumerate(n_list):
                if n == 0: a("v_mov_b32 v%d, v%d" % (dst + idx, base))
                else: a("v_fmamk_f32 v%d, v%d, 0x%x, v%d" % (dst + idx, tq, f2u(float(n)), base))
        A = T + 4
        C = T + 12; S = T + 20
        for ks in range(2):
            angles([16 * ks + i for i in range(8)], T + 2, T + 3, A)
            for i in range(8): a("v_fract_f32 v%d, v%d" % (A + i, A + i))
            for i in range(8):
                a("v_cos_f32 v%d, v%d" % (C + i, A + i))
                a("v_sin_f32 v%d, v%d" % (S + i, A + i))
            for p in range(4):
                a("v_cvt_pk_bf16_f32 v%d, v%d, v%d" % (V_FF + 4 * ks + p, C + 2 * p, C + 2 * p + 1))
                a("v_cvt_pk_bf16_f32 v%d, -v%d, -v%d" % (V_FF + 8 + 4 * ks + p, S + 2 * p, S + 2 * p + 1))
                a("v_cvt_pk_bf16_f32 v%d, v%d, v%d" % (V_FF + 16 + 4 * ks + p, S + 2 * p, S + 2 * p + 1))
        a("s_lshl_b32 s%d, s%d, 5" % (S_T2, S_T0))
        a("v_cvt_f32_u32 v%d, s%d" % (T + 28, S_T2))
        a("v_add_f32 v%d, v%d, v%d" % (T + 28, T + 28, T + 1))
        a("v_mul_f32 v%d, 0x%x, v%d" % (T + 2, f2u(1.0 / 2048), T))
        a("v_mul_f32 v%d, v%d, v%d" % (T + 3, T + 2, T + 28))
        for half in range(2):
            angles([16 * half + i for i in range(8)], T + 2, T + 3, A)
            for i in range(8):
                a("v_cos_f32 v%d, v%d" % (V_FT + 8 * half + i, A + i))
                a("v_sin_f32 v%d, v%d" % (V_FT + 16 + 8 * half + i, A + i))
        a("s_lshl_b32 s%d, s%d, 5" % (S_T2, S_T1))
        a("v_add_u32 v%d, s%d, v%d" % (T + 2, S_T2, V_JL))
        a("v_cvt_f32_u32 v%d, v%d" % (T + 2, T + 2))
        a("v_mul_f32 v%d, 0x%x, v%d" % (T + 2, f2u(1.0 / 64), T + 2))
        a("v_mul_f32 v%d, v%d, v%d" % (T + 3, T + 2, T + 28))
        for kp in range(2):
            angles([16 * kp + i for i in range(8)], T + 2, T + 3, A)
            for i in range(8): a("v_fract_f32 v%d, v%d" % (A + i, A + i))
            for i in range(8):
                a("v_cos_f32 v%d, v%d" % (C + i, A + i))
                a("v_sin_f32 v%d, v%d" % (S + i, A + i))
            for p in range(4):
                a("v_cvt_pk_bf16_f32 v%d, v%d, v%d" % (V_FG + 4 * kp + p, C + 2 * p, C + 2 * p + 1))
                a("v_cvt_pk_bf16_f32 v%d, v%d, v%d" % (V_FG + 8 + 4 * kp + p, S + 2 * p, S + 2 * p + 1))

    G_B = 32
    G_VB = 48
    G_VZ = 52
    G_VS = 55
    G_L16 = 57
    G_BS = 58
    G_X = 60

    def g_setup(self):
        a = self.a
        L = V_LANE
        a("v_lshrrev_b32 v5, 3, v%d" % L)
        a("v_and_b32 v6, 7, v%d" % L)
        a("v_lshrrev_b32 v7, 4, v%d" % L)
        a("v_xor_b32 v8, v6, v7")
        a("v_lshlrev_b32 v8, 4, v8")
        a("v_lshl_add_u32 v%d, v5, 12, v8" % self.G_VS)
        a("v_xor_b32 v%d, 64, v%d" % (self.G_VS + 1, self.G_VS))
        a("v_lshlrev_b32 v%d, 4, v%d" % (self.G_L16, L))
        a("v_lshrrev_b32 v5, 1, v%d" % V_SIG)
        a("v_and_b32 v5, 7, v5")
        a("v_lshlrev_b32 v6, 7, v%d" % V_SIG)
        a("s_lshl_b32 s3, s%d, 15" % S_W)
        a("v_add_u32 v6, s3, v6")
        for ks in range(4):
            a("v_add_u32 v8, %d, v%d" % (2 * ks, V_H))
            a("v_xor_b32 v8, v8, v5")
            a("v_lshl_add_u32 v%d, v8, 4, v6" % (self.G_VB + ks))
        a("s_sub_u32 s%d, s%d, 64" % (S_T2, S_WID))
        for tau in range(3):
            a("s_add_u32 s%d, s%d, %d" % (S_T0, S_W, tau))
            a("s_cmp_ge_u32 s%d, 3" % S_T0)
            a("s_cselect_b32 s%d, 3, 0" % S_T1)
            a("s_sub_u32 s%d, s%d, s%d" % (S_T0, S_T0, S_T1))
            a("s_lshl_b32 s%d, s%d, 10" % (S_T1, S_T0))
            a("v_add_u32 v5, s%d, v%d" % (S_T1, self.G_L16))
            a("v_mov_b32 v6, 0x%x" % OOB)
            a("v_cmp_le_u32 vcc, s%d, v%d" % (S_T2, V_SIG))
            a("s_cmp_eq_u32 s%d, 2" % S_T0)
            a("s_cselect_b64 s[%d:%d], vcc, 0" % (S_EX, S_EX + 1))
            a("v_cndmask_b32 v%d, v5, v6, s[%d:%d]" % (self.G_VZ + tau, S_EX, S_EX + 1))
        a("s_lshl_b32 s%d, s%d, 7" % (S_T0, S_MB))
        a("v_lshlrev_b32 v5, 1, v%d" % V_SIG)
        a("buffer_load_ushort v%d, v5, s[%d:%d], s%d offen" % (self.G_BS, SRD_BSP, SRD_BSP + 3, S_T0))
        a("buffer_load_ushort v%d, v5, s[%d:%d], s%d offen offset:64" % (self.G_BS + 1, SRD_BSP, SRD_BSP + 3, S_T0))

    def wsp_dma(self, c, vq):
        a = self.a
        for q in range(8):
            a("s_add_u32 s%d, s%d, %d" % (S_T0, 99, q * 8 * 4096 + c * 128))
            a("s_add_u32 m0, s%d, %d" % (S_T3, (c & 3) * 8192 + q * 1024))
            a("buffer_load_dwordx4 v%d, s[%d:%d], s%d offen lds" % (self.G_VS + (q & 1), SRD_WSP, SRD_WSP + 3, S_T0))
            vq.issue(("w", c))

    def z2n_load(self, c, ks, vq):
        a = self.a
        slot = c % 3
        a("s_add_u32 s%d, s%d, %d" % (S_T0, S_T1, (4 * c + ks) * 3072))
        for tau in range(3):
            r = 96 + slot * 48 + ks * 12 + tau * 4
            a("buffer_load_dwordx4 a[%d:%d], v%d, s[%d:%d], s%d offen sc1" % (r, r + 3, self.G_VZ + tau, SRD_WS, SRD_WS + 3, S_T0))
            vq.issue(("z", c, ks))

    def fft(self, vq):
        a = self.a
        X = self.G_X
        URE, UIM, A1 = 80, 96, 112
        vq.wait("ab")
        a("s_lshl_b32 s3, s%d, 10" % S_W)
        a("v_add_u32 v5, s3, v%d" % self.G_L16)
        a("v_add_u32 v5, %d, v5" % LDS_FX)
        a("ds_write_b128 v5, v[%d:%d]" % (X, X + 3))
        a("ds_write_b128 v5, v[%d:%d] offset:4096" % (X + 4, X + 7))
        a("s_waitcnt lgkmcnt(0)")
        a("s_barrier")
        a("v_bfe_u32 v7, v%d, 2, 2" % V_LANE)
        a("v_lshl_add_u32 v7, v%d, 3, v7" % V_H)
        a("v_lshlrev_b32 v7, 7, v7")
        a("v_bfe_u32 v8, v%d, 4, 1" % V_LANE)
        a("v_lshlrev_b32 v8, 5, v8")
        a("v_and_b32 v9, 1, v%d" % V_LANE)
        a("v_lshl_add_u32 v8, v9, 4, v8")
        a("v_bfe_u32 v9, v%d, 1, 1" % V_LANE)
        a("v_lshl_add_u32 v8, v9, 3, v8")
        a("v_add_u32 v7, v7, v8")
        a("s_and_b32 s3, s%d, 1" % S_W)
        a("s_lshl_b32 s3, s3, 6")
        a("s_add_u32 s3, s3, %d" % LDS_FX)
        a("v_add_u32 v7, s3, v7")
        for ks in range(4):
            for q in range(2):
                r = A1 + 4 * ks + 2 * q
                a("ds_read_b64_tr_b16 v[%d:%d], v7 offset:%d" % (r, r + 1, (ks >> 1) * 4096 + (ks & 1) * 2048 + q * 512))
        a("s_waitcnt lgkmcnt(0)")
        def mm(D, A, B, first):
            a("v_mfma_f32_32x32x16_bf16 v[%d:%d], v[%d:%d], v[%d:%d], %s" % (D, D + 15, A, A + 3, B, B + 3, "0" if first else "v[%d:%d]" % (D, D + 15)))
        FRE, FIM, NFIM = V_FF, V_FF + 8, V_FF + 16
        mm(URE, A1, FRE, True); mm(UIM, A1, FIM, True)
        mm(URE, A1 + 4, FRE + 4, False); mm(UIM, A1 + 4, FIM + 4, False)
        mm(URE, A1 + 8, NFIM, False); mm(UIM, A1 + 8, FRE, False)
        mm(URE, A1 + 12, NFIM + 4, False); mm(UIM, A1 + 12, FRE + 4, False)
        TC, TS = V_FT, V_FT + 16
        t = 128
        for p in range(8):
            re, im, c, s_ = URE + 2 * p, UIM + 2 * p, TC + 2 * p, TS + 2 * p
            t0 = t + (p % 2) * 4
            a("v_pk_mul_f32 v[%d:%d], v[%d:%d], v[%d:%d]" % (t0, t0 + 1, im, im + 1, s_, s_ + 1))
            a("v_pk_mul_f32 v[%d:%d], v[%d:%d], v[%d:%d]" % (t0 + 2, t0 + 3, re, re + 1, s_, s_ + 1))
            a("v_pk_fma_f32 v[%d:%d], v[%d:%d], v[%d:%d], v[%d:%d]" % (t0, t0 + 1, re, re + 1, c, c + 1, t0, t0 + 1))
            a("v_pk_fma_f32 v[%d:%d], v[%d:%d], v[%d:%d], v[%d:%d] neg_lo:[0,0,1] neg_hi:[0,0,1]" % (t0 + 2, t0 + 3, im, im + 1, c, c + 1, t0 + 2, t0 + 3))
            a("v_cvt_pk_bf16_f32 v%d, v%d, v%d" % (X + p, t0, t0 + 1))
            a("v_cvt_pk_bf16_f32 v%d, v%d, v%d" % (X + 8 + p, t0 + 2, t0 + 3))
        D2 = A1
        mm(D2, X, V_FG, True); mm(D2, X + 4, V_FG + 4, False)
        mm(D2, X + 8, V_FG + 8, False); mm(D2, X + 12, V_FG + 12, False)
        a("s_lshl_b32 s3, s%d, 11" % S_W)
        a("v_add_u32 v5, s3, v%d" % self.G_L16)
        a("v_add_u32 v5, %d, v5" % LDS_FR)
        a("ds_write_b128 v5, v[%d:%d]" % (D2 + 8, D2 + 11))
        a("ds_write_b128 v5, v[%d:%d] offset:1024" % (D2 + 12, D2 + 15))
        a("s_waitcnt lgkmcnt(0)")
        a("s_barrier")
        a("v_xor_b32 v5, 2048, v5")
        a("ds_read_b128 v[%d:%d], v5" % (X, X + 3))
        a("ds_read_b128 v[%d:%d], v5 offset:1024" % (X + 4, X + 7))
        a("s_lshr_b32 s3, s%d, 1" % S_W)
        a("s_lshl_b32 s3, s3, 12")
        a("s_and_b32 s%d, s%d, 1" % (S_T0, S_W))
        a("s_lshl_b32 s%d, s%d, 5" % (S_T0, S_T0))
        a("s_add_u32 s3, s3, s%d" % S_T0)
        a("s_lshl_b32 s%d, s%d, 13" % (S_T0, S_L))
        a("s_add_u32 s3, s3, s%d" % S_T0)
        a("s_add_u32 s3, s3, 0x%x" % WS_YT)
        a("v_lshlrev_b32 v6, 7, v%d" % V_JL)
        a("v_lshl_add_u32 v6, v%d, 6, v6" % V_H)
        a("s_waitcnt lgkmcnt(0)")
        for p in range(4):
            a("v_pk_add_f32 v[%d:%d], v[%d:%d], v[%d:%d]" % (X + 2 * p, X + 2 * p + 1, X + 2 * p, X + 2 * p + 1, D2 + 2 * p, D2 + 2 * p + 1))
        a("buffer_store_dwordx4 v[%d:%d], v6, s[%d:%d], s3 offen sc1" % (X, X + 3, SRD_WS, SRD_WS + 3)); vq.issue("yt")
        a("buffer_store_dwordx4 v[%d:%d], v6, s[%d:%d], s3 offen offset:16 sc1" % (X + 4, X + 7, SRD_WS, SRD_WS + 3)); vq.issue("yt")

    def phase_g(self):
        a = self.a
        vq = VQ(a)
        self.g_setup()
        a("s_lshl_b32 s99, s%d, 18" % S_MB)
        a("s_lshl_b32 s3, s%d, 10" % S_W)
        a("s_add_u32 s99, s99, s3")
        a("s_lshl_b32 s%d, s%d, 15" % (S_T3, S_W))
        for c in range(4): self.wsp_dma(c, vq)
        a("s_waitcnt vmcnt(32)")
        a("s_barrier")
        a("s_cmp_lg_u32 s%d, 0" % S_W)
        a("s_cbranch_scc1 L_g_nf")
        self.flag_store(1)
        a.label("L_g_nf")
        self.stamp(7)
        a("s_lshl_b32 s3, s%d, 5" % S_J)
        a("s_lshl_b32 s%d, s%d, 3" % (S_T0, S_W))
        a("s_add_u32 s3, s3, s%d" % S_T0)
        a("v_add_u32 v%d, s3, v%d" % (self.G_X, V_LANE))
        a("v_lshlrev_b32 v%d, 7, v%d" % (self.G_X, self.G_X))
        a("v_add_u32 v%d, 0x%x, v%d" % (self.G_X, WS_FLAG + 256 * 128, self.G_X))
        self.poll_flags(self.G_X, 8)
        vq.q = []
        self.stamp(8)
        a("s_lshl_b32 s3, s%d, 13" % S_L)
        a("s_lshl_b32 s%d, s%d, 10" % (S_T0, S_W))
        a("s_add_u32 s3, s3, s%d" % S_T0)
        a("s_add_u32 s3, s3, 0x%x" % WS_AB)
        X = self.G_X
        a("buffer_load_dwordx4 v[%d:%d], v%d, s[%d:%d], s3 offen sc1" % (X, X + 3, self.G_L16, SRD_WS, SRD_WS + 3)); vq.issue("ab")
        a("s_add_u32 s3, s3, 4096")
        a("buffer_load_dwordx4 v[%d:%d], v%d, s[%d:%d], s3 offen sc1" % (X + 4, X + 7, self.G_L16, SRD_WS, SRD_WS + 3)); vq.issue("ab")
        a("s_lshl_b32 s%d, s%d, 7" % (S_T1, S_J))
        a("s_lshl_b32 s3, s%d, 5" % S_W)
        a("s_add_u32 s%d, s%d, s3" % (S_T1, S_T1))
        a("s_mul_i32 s%d, s%d, 3072" % (S_T1, S_T1))
        a("s_add_u32 s%d, s%d, 0x%x" % (S_T1, S_T1, WS_Z2N))
        for c in range(3):
            for ks in range(4): self.z2n_load(c, ks, vq)
        self.fft(vq)
        self.stamp(9)
        B = self.G_B
        def breads(c, ks, buf):
            for st in range(2):
                r = B + buf * 8 + st * 4
                a("ds_read_b128 v[%d:%d], v%d offset:%d" % (r, r + 3, self.G_VB + ks, (c & 3) * 8192 + st * 4096))
        breads(0, 0, 0)
        step = 0
        for c in range(8):
            for ks in range(4):
                buf = step & 1
                nc, nks = (c, ks + 1) if ks < 3 else (c + 1, 0)
                vq.wait(("z", c, ks))
                if nc < 8:
                    breads(nc, nks, buf ^ 1)
                    a("s_waitcnt lgkmcnt(2)")
                else:
                    a("s_waitcnt lgkmcnt(0)")
                for tau in range(3):
                    for st in range(2):
                        D = (tau * 2 + st) * 16
                        Ar = 96 + (c % 3) * 48 + ks * 12 + tau * 4
                        Br = B + buf * 8 + st * 4
                        cc = "0" if (c == 0 and ks == 0) else "a[%d:%d]" % (D, D + 15)
                        a("v_mfma_f32_32x32x16_bf16 a[%d:%d], a[%d:%d], v[%d:%d], %s" % (D, D + 15, Ar, Ar + 3, Br, Br + 3, cc))
                if ks == 3 and c + 4 < 8:
                    self.wsp_dma(c + 4, vq)
                if c + 3 < 8:
                    self.z2n_load(c + 3, ks, vq)
                step += 1
        self.stamp(10)
        self.g_reduce()

    def g_reduce(self):
        a = self.a
        L16 = self.G_L16
        a("s_barrier")
        L = V_LANE
        a("v_lshrrev_b32 v5, 3, v%d" % L)
        a("v_and_b32 v6, 7, v%d" % L)
        a("v_bfe_u32 v7, v%d, 4, 1" % L)
        a("v_lshlrev_b32 v7, 2, v7")
        a("v_xor_b32 v6, v6, v7")
        a("v_lshlrev_b32 v6, 4, v6")
        a("v_lshl_add_u32 v9, v5, 10, v6")
        a("s_lshl_b32 s3, s%d, 7" % S_J)
        a("v_add_u32 v9, s3, v9")
        a("s_mul_i32 s%d, s%d, %d" % (S_T0, S_W, 22 * 8192))
        a("s_mul_i32 s%d, s%d, %d" % (S_T1, S_W, 22 * 1024))
        a("s_add_u32 s%d, s%d, %d" % (S_T1, S_T1, LDS_WO))
        a("s_mov_b32 s%d, 22" % S_T2)
        a.label("L_wo_dma")
        a("s_mov_b32 m0, s%d" % S_T1)
        a("s_add_u32 s%d, s%d, 1024" % (S_T1, S_T1))
        a("buffer_load_dwordx4 v9, s[%d:%d], s%d offen lds" % (SRD_WOUT, SRD_WOUT + 3, S_T0))
        a("s_add_u32 s%d, s%d, 8192" % (S_T0, S_T0))
        a("s_sub_u32 s%d, s%d, 1" % (S_T2, S_T2))
        a("s_cmp_lg_u32 s%d, 0" % S_T2)
        a("s_cbranch_scc1 L_wo_dma")
        for tau in (1, 2, 0):
            if tau == 0:
                a("s_cmp_lg_u32 s%d, 3" % S_W)
                a("s_cbranch_scc1 L_exp_done")
            a("s_add_u32 s%d, s%d, %d" % (S_T0, S_W, tau))
            a("s_cmp_ge_u32 s%d, 3" % S_T0)
            a("s_cselect_b32 s%d, 3, 0" % S_T1)
            a("s_sub_u32 s%d, s%d, s%d" % (S_T0, S_T0, S_T1))
            a("s_sub_u32 s%d, s%d, s%d" % (S_T1, S_W, S_T0))
            a("s_sub_u32 s%d, s%d, 1" % (S_T1, S_T1))
            a("s_and_b32 s%d, s%d, 3" % (S_T1, S_T1))
            a("s_mul_i32 s%d, s%d, 3" % (S_T0, S_T0))
            a("s_add_u32 s%d, s%d, s%d" % (S_T0, S_T0, S_T1))
            a("s_lshl_b32 s%d, s%d, 13" % (S_T0, S_T0))
            a("v_add_u32 v5, s%d, v%d" % (S_T0, L16))
            for st in range(2):
                for q in range(4):
                    r = (tau * 2 + st) * 16 + 4 * q
                    a("ds_write_b128 v5, a[%d:%d] offset:%d" % (r, r + 3, st * 4096 + q * 1024))
        a.label("L_exp_done")
        a("s_waitcnt lgkmcnt(0)")
        a("s_barrier")
        self.stamp(11)
        a("s_cmp_eq_u32 s%d, 3" % S_W)
        a("s_cbranch_scc1 L_h_done")
        G = 80
        for i in range(32): a("v_accvgpr_read_b32 v%d, a%d" % (G + i, i))
        a("s_mul_i32 s%d, s%d, %d" % (S_T0, S_W, 3 * 8192))
        a("v_add_u32 v5, s%d, v%d" % (S_T0, L16))
        I = 184
        for sg in range(3):
            base = I if sg != 1 else I + 32
            for st in range(2):
                for q in range(4):
                    r = base + st * 16 + 4 * q
                    a("ds_read_b128 v[%d:%d], v5 offset:%d" % (r, r + 3, sg * 8192 + st * 4096 + q * 1024))
            if sg == 0: continue
            prev = I if sg == 1 else I + 32
            if sg == 1:
                a("s_waitcnt lgkmcnt(8)")
                for p in range(16): a("v_pk_add_f32 v[%d:%d], v[%d:%d], v[%d:%d]" % (G + 2 * p, G + 2 * p + 1, G + 2 * p, G + 2 * p + 1, prev + 2 * p, prev + 2 * p + 1))
            else:
                pass

        a("s_waitcnt lgkmcnt(8)")
        prev = I + 32
        for p in range(16): a("v_pk_add_f32 v[%d:%d], v[%d:%d], v[%d:%d]" % (G + 2 * p, G + 2 * p + 1, G + 2 * p, G + 2 * p + 1, prev + 2 * p, prev + 2 * p + 1))
        a("s_waitcnt lgkmcnt(0)")
        prev = I
        for p in range(16): a("v_pk_add_f32 v[%d:%d], v[%d:%d], v[%d:%d]" % (G + 2 * p, G + 2 * p + 1, G + 2 * p, G + 2 * p + 1, prev + 2 * p, prev + 2 * p + 1))
        for st in range(2): a("v_lshlrev_b32 v%d, 16, v%d" % (self.G_BS + st, self.G_BS + st))
        for st in range(2):
            for r in range(8):
                src = V_Z1P + 8 * st + r
                g = G + 16 * st + 2 * r
                t = 60 + 2 * (r % 4)
                a("v_lshlrev_b32 v%d, 16, v%d" % (t, src))
                a("v_and_b32 v%d, 0xffff0000, v%d" % (t + 1, src))
                bs = self.G_BS + st
                sel = "op_sel:[0,%d] op_sel_hi:[1,%d]" % (st, st)
                a("v_pk_add_f32 v[%d:%d], v[%d:%d], v[%d:%d] %s" % (g, g + 1, g, g + 1, self.G_BS, self.G_BS + 1, sel))
                a("v_pk_mul_f32 v[%d:%d], v[%d:%d], v[%d:%d]" % (g, g + 1, g, g + 1, t, t + 1))
                a("v_cvt_pk_bf16_f32 v%d, v%d, v%d" % (I + 8 * st + r, g, g + 1))
        a("s_mul_i32 s%d, s%d, 96" % (S_T0, S_MB))
        a("s_mul_i32 s%d, s%d, 6" % (S_T1, S_J))
        a("s_add_u32 s%d, s%d, s%d" % (S_T0, S_T0, S_T1))
        a("s_lshl_b32 s%d, s%d, 1" % (S_T1, S_W))
        a("s_add_u32 s%d, s%d, s%d" % (S_T0, S_T0, S_T1))
        a("s_lshl_b32 s%d, s%d, 10" % (S_T0, S_T0))
        a("s_add_u32 s%d, s%d, 0x%x" % (S_T0, S_T0, WS_H))
        for st in range(2):
            for Q in range(2):
                r = I + 8 * st + 4 * Q
                a("s_add_u32 s%d, s%d, %d" % (S_T1, S_T0, (st * 48 + Q) * 1024))
                a("buffer_store_dwordx4 v[%d:%d], v%d, s[%d:%d], s%d offen sc1" % (r, r + 3, L16, SRD_WS, SRD_WS + 3, S_T1))
        a.label("L_h_done")
        a("s_waitcnt vmcnt(0)")
        a("s_barrier")
        a("s_cmp_lg_u32 s%d, 0" % S_W)
        a("s_cbranch_scc1 L_h_nf")
        self.flag_store(2)
        a.label("L_h_nf")
        self.stamp(12)

    def phase_o(self):
        a = self.a
        L16 = self.G_L16
        a("s_lshr_b32 s%d, s%d, 1" % (S_T0, S_W))
        a("s_lshl_b32 s3, s%d, 2" % S_T0)
        a("v_add_u32 v60, s3, v%d" % V_LANE)
        a("v_lshlrev_b32 v60, 5, v60")
        a("v_add_u32 v60, s%d, v60" % S_MB)
        a("v_lshlrev_b32 v60, 7, v60")
        a("v_add_u32 v60, 0x%x, v60" % (WS_FLAG + 2 * 256 * 128))
        self.poll_flags(60, 4)
        self.stamp(13)
        vq = VQ(a)
        a("s_lshl_b32 s3, s%d, 1" % S_MB)
        a("s_and_b32 s%d, s%d, 1" % (S_T1, S_W))
        a("s_add_u32 s3, s3, s%d" % S_T1)
        a("s_mul_i32 s3, s3, 48")
        a("s_mul_i32 s%d, s%d, 24" % (S_T2, S_T0))
        a("s_add_u32 s3, s3, s%d" % S_T2)
        a("s_lshl_b32 s3, s3, 10")
        a("s_add_u32 s3, s3, 0x%x" % WS_H)
        for n in range(24):
            r = 32 + 4 * n
            a("buffer_load_dwordx4 a[%d:%d], v%d, s[%d:%d], s3 offen sc1" % (r, r + 3, L16, SRD_WS, SRD_WS + 3)); vq.issue(("h", n))
            if n < 23: a("s_add_u32 s3, s3, 1024")
        XR = 64
        a("s_lshl_b32 s3, s%d, 6" % S_MB)
        a("s_lshl_b32 s%d, s%d, 5" % (S_T1, S_T1))
        a("s_add_u32 s3, s3, s%d" % S_T1)
        a("v_add_u32 v61, s3, v%d" % V_SIG)
        a("s_lshl_b32 s3, s%d, 6" % S_J)
        a("s_lshl_b32 s%d, s%d, 5" % (S_T2, S_T0))
        a("s_add_u32 s%d, s3, s%d" % (S_T2, S_T2))
        a("v_lshlrev_b32 v62, 10, v61")
        a("v_lshl_add_u32 v62, v%d, 4, v62" % V_H)
        a("s_lshl_b32 s3, s%d, 1" % S_T2)
        a("v_add_u32 v62, s3, v62")
        a("buffer_load_dwordx4 v[%d:%d], v62, s[%d:%d], 0 offen" % (XR, XR + 3, SRD_X, SRD_X + 3)); vq.issue("x")
        a("buffer_load_dwordx4 v[%d:%d], v62, s[%d:%d], 0 offen offset:32" % (XR + 4, XR + 7, SRD_X, SRD_X + 3)); vq.issue("x")
        a("v_bfe_u32 v5, v%d, 2, 2" % V_LANE)
        a("v_lshl_add_u32 v5, v%d, 3, v5" % V_H)
        a("v_lshlrev_b32 v5, 7, v5")
        a("v_bfe_u32 v6, v%d, 4, 1" % V_LANE)
        a("v_lshlrev_b32 v6, 1, v6")
        a("v_and_b32 v7, 1, v%d" % V_LANE)
        a("v_or_b32 v6, v6, v7")
        a("v_bfe_u32 v7, v%d, 3, 1" % V_LANE)
        a("v_lshlrev_b32 v7, 2, v7")
        a("v_xor_b32 v6, v6, v7")
        a("s_lshl_b32 s3, s%d, 2" % S_T0)
        a("v_xor_b32 v6, s3, v6")
        a("v_bfe_u32 v7, v%d, 1, 1" % V_LANE)
        a("v_lshlrev_b32 v7, 3, v7")
        a("v_add_u32 v5, v5, v7")
        a("s_mul_i32 s3, s%d, %d" % (S_T0, 352 * 128))
        a("s_add_u32 s3, s3, %d" % LDS_WO)
        a("v_add_u32 v5, s3, v5")
        WA = 72
        a("v_lshl_add_u32 v%d, v6, 4, v5" % WA)
        a("v_xor_b32 v6, 4, v6")
        a("v_lshl_add_u32 v%d, v6, 4, v5" % (WA + 1))
        a("s_cmp_eq_u32 s%d, 0" % S_T0)
        a("s_cselect_b32 s3, 8, 0")
        a("s_add_u32 s3, s3, 256")
        a("s_lshl_b32 s3, s3, 7")
        a("v_add_u32 v%d, s3, v%d" % (WA + 2, WA))
        a("v_add_u32 v%d, s3, v%d" % (WA + 3, WA + 1))
        FA = 32
        def areads(n, buf):
            jj, rem = divmod(n, 6); ft, Q = divmod(rem, 2)
            for tp in range(2):
                base = WA + tp if jj < 3 else WA + 2 + tp
                off = ((88 * jj if jj < 3 else 0) + 32 * ft + 16 * Q) * 128
                r = FA + buf * 8 + tp * 4
                a("ds_read_b64_tr_b16 v[%d:%d], v%d offset:%d" % (r, r + 1, base, off))
                a("ds_read_b64_tr_b16 v[%d:%d], v%d offset:%d" % (r + 2, r + 3, base, off + 512))
        areads(0, 0)
        for n in range(24):
            buf = n & 1
            if n < 23:
                areads(n + 1, buf ^ 1)
                vq.wait(("h", n))
                a("s_waitcnt lgkmcnt(4)")
            else:
                vq.wait(("h", n))
                a("s_waitcnt lgkmcnt(0)")
            for tp in range(2):
                D = tp * 16
                Ar = FA + buf * 8 + tp * 4
                Br = 32 + 4 * n
                cc = "0" if n == 0 else "a[%d:%d]" % (D, D + 15)
                a("v_mfma_f32_32x32x16_bf16 a[%d:%d], v[%d:%d], a[%d:%d], %s" % (D, D + 15, Ar, Ar + 3, Br, Br + 3, cc))
        self.stamp(14)
        a("v_add_u32 v5, s%d, v%d" % (S_T2, V_LANE))
        a("v_sub_u32 v6, 512, v5")
        a("v_cmp_lt_u32 vcc, 256, v5")
        a("v_cndmask_b32 v6, v5, v6, vcc")
        a("v_and_b32 v6, 255, v6")
        a("v_lshlrev_b32 v63, 7, v6")
        a("v_add_u32 v63, 0x%x, v63" % (WS_FLAG + 2 * 256 * 128))
        a("s_lshl_b32 s3, s%d, 12" % S_W)
        a("v_add_u32 v76, s3, v%d" % L16)
        for q in range(4):
            a("ds_write_b128 v76, a[%d:%d] offset:%d" % (16 + 4 * q, 16 + 4 * q + 3, q * 1024))
        self.poll_flags(63, 32)
        Y = 80
        a("v_lshlrev_b32 v5, 2, v61")
        a("v_sub_u32 v6, 2048, v61")
        a("v_and_b32 v6, 2047, v6")
        a("v_lshlrev_b32 v6, 2, v6")
        a("v_lshlrev_b32 v7, 3, v%d" % V_H)
        a("v_add_u32 v7, s%d, v7" % S_T2)
        a("v_lshl_add_u32 v8, v7, 13, v5")
        a("v_sub_u32 v9, %d, v7" % (512 - 23))
        a("v_lshl_add_u32 v9, v9, 13, v6")
        a("s_cmp_ge_u32 s%d, 256" % S_T2)
        a("s_cselect_b64 vcc, -1, 0")
        a("v_cndmask_b32 v77, v8, v9, vcc")
        a("s_cselect_b32 s%d, 1, 0" % S_T1)
        a("v_mov_b32 v78, v77")
        a("v_cmp_eq_u32 vcc, 0, v7")
        a("v_mov_b32 v8, 0x%x" % OOB)
        a("v_cndmask_b32 v78, v78, v8, vcc")
        a("v_cmp_eq_u32 vcc, 256, v7")
        a("v_subrev_u32 v8, %d, v5" % (23 * 8192))
        a("v_cndmask_b32 v78, v78, v5, vcc")
        a("s_cmp_eq_u32 s%d, 1" % S_T1)
        a("s_cselect_b32 s3, %d, 0" % (23 * 8192))
        a("v_add_u32 v8, s3, v77")
        a("v_cmp_eq_u32 vcc, 256, v7")
        a("s_mov_b64 s[%d:%d], vcc" % (S_EX, S_EX + 1))
        a("v_cmp_eq_u32 vcc, 0, v7")
        a("s_or_b64 vcc, vcc, s[%d:%d]" % (S_EX, S_EX + 1))
        a("v_cndmask_b32 v78, v8, v78, vcc")
        for rho in range(16):
            k = 16 * (rho >> 3) + (rho & 7)
            if rho == 0:
                a("s_mov_b32 s3, 0x%x" % WS_YT)
                a("buffer_load_dword v%d, v78, s[%d:%d], s3 offen sc1" % (Y, SRD_WS, SRD_WS + 3))
            else:
                a("s_cmp_eq_u32 s%d, 1" % S_T1)
                a("s_cselect_b32 s3, %d, %d" % (23 - k, k) if False else "s_cselect_b32 s3, %d, %d" % (23 - k, k))
                a("s_lshl_b32 s3, s3, 13")
                a("s_add_u32 s3, s3, 0x%x" % WS_YT)
                a("buffer_load_dword v%d, v77, s[%d:%d], s3 offen sc1" % (Y + rho, SRD_WS, SRD_WS + 3))
        a("s_waitcnt lgkmcnt(0)")
        a("s_barrier")
        a("v_xor_b32 v76, 0x2000, v76")
        O = 96
        for q in range(4):
            a("ds_read_b128 v[%d:%d], v76 offset:%d" % (O + 4 * q, O + 4 * q + 3, q * 1024))
        for i in range(16): a("v_accvgpr_read_b32 v%d, a%d" % (112 + i, i))
        a("s_waitcnt lgkmcnt(0)")
        for p in range(8):
            a("v_pk_add_f32 v[%d:%d], v[%d:%d], v[%d:%d]" % (O + 2 * p, O + 2 * p + 1, O + 2 * p, O + 2 * p + 1, 112 + 2 * p, 112 + 2 * p + 1))
        nl2e = self.f2u(-math.log2(math.e))
        a("s_mov_b32 s%d, 0x%x" % (S_K2, nl2e))
        a("s_mov_b32 s%d, 0x%x" % (S_K2 + 1, nl2e))
        for p in range(8):
            o = O + 2 * p; t = 112 + 2 * p
            a("v_pk_mul_f32 v[%d:%d], v[%d:%d], s[%d:%d]" % (t, t + 1, o, o + 1, S_K2, S_K2 + 1))
            a("v_exp_f32 v%d, v%d" % (t, t))
            a("v_exp_f32 v%d, v%d" % (t + 1, t + 1))
            a("v_pk_add_f32 v[%d:%d], v[%d:%d], 1.0 op_sel_hi:[1,0]" % (t, t + 1, t, t + 1))
            a("v_rcp_f32 v%d, v%d" % (t, t))
            a("v_rcp_f32 v%d, v%d" % (t + 1, t + 1))
            a("v_pk_mul_f32 v[%d:%d], v[%d:%d], v[%d:%d]" % (o, o + 1, o, o + 1, t, t + 1))
        a("s_waitcnt vmcnt(0)")
        for p in range(8):
            o = O + 2 * p; t = 112 + 2 * p; y = Y + 2 * p; xr = XR + p
            a("v_lshlrev_b32 v%d, 16, v%d" % (t, xr))
            a("v_and_b32 v%d, 0xffff0000, v%d" % (t + 1, xr))
            a("v_pk_fma_f32 v[%d:%d], v[%d:%d], v[%d:%d], v[%d:%d]" % (t, t + 1, y, y + 1, o, o + 1, t, t + 1))
            a("v_cvt_pk_bf16_f32 v%d, v%d, v%d" % (128 + p, t, t + 1))
        a("buffer_store_dwordx4 v[128:131], v62, s[%d:%d], 0 offen" % (SRD_OUT, SRD_OUT + 3))
        a("buffer_store_dwordx4 v[132:135], v62, s[%d:%d], 0 offen offset:32" % (SRD_OUT, SRD_OUT + 3))
        self.stamp(15)

    def rest(self):
        self.phase_g()
        if self.stop_after == "g": return
        self.phase_o()

    def build(self):
        a = self.a
        self.prologue()
        self.phase1()
        if self.stop_after == "p1":
            self.finish_p1_debug()
        else:
            self.rest()
        a.label("L_end")
        a("s_endpgm")
        a.finalize()
        hdr = open("cdna_kernels/%s.s.ref" % NAME).read().split("\n")
        head = []
        for line in hdr:
            if line.startswith("; @launch"):
                head.append("; @launch grid=(256,1,1) block=(256,1,1) lds=%d" % LDS_TOTAL)
            elif line.startswith(";"): head.append(line)
            else: break
        txt = "\n".join(head) + "\n"
        txt += '.amdgcn_target "amdgcn-amd-amdhsa--gfx950"\n.text\n.globl %s_kernel\n.p2align 8\n.type %s_kernel,@function\n%s_kernel:\n' % (NAME, NAME, NAME)
        txt += a.text()
        txt += '.section .rodata,"a"\n.p2align 6\n.amdhsa_kernel %s_kernel\n' % NAME
        txt += "  .amdhsa_next_free_vgpr 512\n  .amdhsa_next_free_sgpr 102\n  .amdhsa_accum_offset 256\n"
        txt += "  .amdhsa_group_segment_fixed_size 0\n  .amdhsa_kernarg_size 104\n  .amdhsa_user_sgpr_count 2\n"
        txt += "  .amdhsa_user_sgpr_kernarg_segment_ptr 1\n  .amdhsa_system_sgpr_workgroup_id_x 1\n"
        txt += "  .amdhsa_float_denorm_mode_32 3\n"
        txt += ".end_amdhsa_kernel\n"
        return txt

if __name__ == "__main__":
    import argparse
    ap = argparse.ArgumentParser()
    ap.add_argument("--stop", default=None)
    ap.add_argument("--stamps", action="store_true")
    ap.add_argument("-o", default="cdna_kernels/%s.s" % NAME)
    args = ap.parse_args()
    g = Gen(stop_after=args.stop, stamps=args.stamps)
    txt = g.build()
    open(args.o, "w").write(txt)
    print("wrote", args.o, len(txt), "bytes;", len([i for i in g.a.ins if i.kind not in ("label", "dir")]), "instrs")
```

```python
import re

TRANS = ("v_exp_f32", "v_log_f32", "v_rcp_f32", "v_rsq_f32", "v_sqrt_f32", "v_sin_f32", "v_cos_f32")

def _regs(tok):
    tok = tok.strip()
    tok = tok.lstrip("-")
    m = re.fullmatch(r"abs\((.*)\)", tok)
    if m: tok = m.group(1)
    m = re.fullmatch(r"\|(.*)\|", tok)
    if m: tok = m.group(1)
    m = re.fullmatch(r"([vas])(\d+)", tok)
    if m: return [(m.group(1), int(m.group(2)))]
    m = re.fullmatch(r"([vas])\[(\d+):(\d+)\]", tok)
    if m: return [(m.group(1), i) for i in range(int(m.group(2)), int(m.group(3)) + 1)]
    if tok == "vcc": return [("s", 106), ("s", 107)]
    if tok == "vcc_lo": return [("s", 106)]
    if tok == "vcc_hi": return [("s", 107)]
    if tok == "exec": return [("s", 126), ("s", 127)]
    if tok == "m0": return [("s", 124)]
    return []

class Ins:
    __slots__ = ("text", "mn", "kind", "rd", "wr", "srcc", "ws", "is_label", "target", "lds_dma", "store_data", "passes", "ab")
    def __init__(self, text):
        self.text = text
        self.is_label = False; self.target = None; self.lds_dma = False
        self.rd = set(); self.wr = set(); self.srcc = set(); self.store_data = set(); self.ab = set()
        self.ws = 1; self.passes = 0
        t = text.split(";")[0].strip()
        if t.endswith(":"):
            self.is_label = True; self.mn = t[:-1]; self.kind = "label"; self.ws = 0; return
        if t.startswith(".") or t == "":
            self.kind = "dir"; self.mn = t; self.ws = 0; return
        parts = t.split(None, 1)
        mn = parts[0]; self.mn = mn
        rest = parts[1] if len(parts) > 1 else ""
        ops = []; depth = 0; cur = ""
        for ch in rest:
            if ch in "[(": depth += 1
            if ch in "])": depth -= 1
            if ch == "," and depth == 0: ops.append(cur.strip()); cur = ""
            else: cur += ch
        if cur.strip(): ops.append(cur.strip())
        mods = ""
        if ops:
            sp = ops[-1].split(None, 1)
            if len(sp) > 1 and not ops[-1].startswith("gpr_idx") and not ops[-1].startswith("hwreg"):
                ops[-1] = sp[0]; mods = sp[1]
        R = lambda i: _regs(ops[i]) if i < len(ops) else []
        if mn == "s_nop":
            self.kind = "nop"; self.ws = int(ops[0], 0) + 1; return
        if mn.startswith("s_cbranch") or mn == "s_branch":
            self.kind = "branch"; self.target = ops[0]
            if "vcc" in mn: self.rd |= {("s", 106), ("s", 107)}
            return
        if mn in ("s_waitcnt", "s_barrier", "s_endpgm", "s_sleep", "s_setprio"):
            self.kind = "misc"; return
        if mn.startswith("v_mfma"):
            self.kind = "mfma"
            self.passes = 8 if "32x32" in mn else 4
            self.wr |= set(R(0)); self.ab |= set(R(1)) | set(R(2)); self.srcc |= set(R(3))
            self.rd |= self.ab | self.srcc
            return
        if mn.startswith("buffer_") or mn.startswith("global_"):
            self.kind = "vmem"
            allmods = (mods + " " + ops[-1]) if ops else ""
            if mn in ("buffer_inv", "buffer_wbl2"): return
            is_lds = bool(re.search(r"\blds\b", mods)) or "load_lds" in mn
            if is_lds:
                self.lds_dma = True; self.rd |= {("s", 124)}
                for i in range(len(ops)): self.rd |= set(R(i))
            elif "load" in mn:
                self.wr |= set(R(0))
                for i in range(1, len(ops)): self.rd |= set(R(i))
            elif "store" in mn or "atomic" in mn:
                if mn.startswith("buffer_"):
                    d = set(R(0))
                else:
                    d = set(R(1))
                for i in range(len(ops)): self.rd |= set(R(i))
                if len(d) >= 3: self.store_data = d
                if "atomic" in mn and "sc0" in mods: self.wr |= d
            return
        if mn.startswith("ds_"):
            self.kind = "ds"
            if mn.startswith("ds_read") or mn.startswith("ds_bpermute") or mn.startswith("ds_swizzle"):
                self.wr |= set(R(0))
                for i in range(1, len(ops)): self.rd |= set(R(i))
            else:
                for i in range(len(ops)): self.rd |= set(R(i))
            return
        if mn.startswith("s_load") or mn.startswith("s_memtime") or mn.startswith("s_memrealtime") or mn.startswith("s_buffer_load"):
            self.kind = "smem"; self.wr |= set(R(0))
            for i in range(1, len(ops)): self.rd |= set(R(i))
            return
        if mn.startswith("s_"):
            self.kind = "salu"
            if mn.startswith("s_cmp") or mn.startswith("s_bitcmp"):
                for i in range(len(ops)): self.rd |= set(R(i))
            else:
                self.wr |= set(R(0))
                for i in range(1, len(ops)): self.rd |= set(R(i))
                if "saveexec" in mn: self.wr |= {("s", 126), ("s", 127)}
            return
        if mn.startswith("v_"):
            base = re.sub(r"_(e32|e64|dpp|sdwa)$", "", mn)
            self.kind = "trans" if base in TRANS else "valu"
            if base.startswith("v_cmp"):
                self.wr |= set(R(0))
                for i in range(1, len(ops)): self.rd |= set(R(i))
            elif base.startswith("v_permlane") and "swap" in base:
                self.wr |= set(R(0)) | set(R(1)); self.rd |= set(R(0)) | set(R(1))
            elif base in ("v_add_co_u32", "v_sub_co_u32", "v_addc_co_u32", "v_subb_co_u32"):
                self.wr |= set(R(0)) | set(R(1))
                for i in range(2, len(ops)): self.rd |= set(R(i))
            else:
                self.wr |= set(R(0))
                for i in range(1, len(ops)): self.rd |= set(R(i))
                if base in ("v_fmac_f32", "v_dot2c_f32_bf16", "v_pk_fmac_f16"): self.rd |= set(R(0))
                if base == "v_cndmask_b32" and len(ops) == 3: self.rd |= {("s", 106), ("s", 107)}
            return
        raise ValueError("unknown instruction: " + text)

def need(p, c):
    n = 0
    isv = lambda S: {r for r in S if r[0] in "va"}
    iss = lambda S: {r for r in S if r[0] == "s"}
    pv = p.kind in ("valu", "trans"); cv = c.kind in ("valu", "trans")
    if pv:
        w = p.wr
        if c.kind == "mfma" and isv(w) & c.rd: n = max(n, 2)
        if p.kind == "trans" and c.kind == "valu" and isv(w) & (c.rd | c.wr): n = max(n, 1)
        if p.kind == "trans" and c.kind in ("vmem", "ds", "mfma") and isv(w) & c.rd: n = max(n, 1)
        if iss(w):
            if cv and iss(w) & c.rd:
                n = max(n, 4 if c.mn.startswith(("v_readlane", "v_writelane")) else 2)
            if c.kind == "vmem" and iss(w) & c.rd: n = max(n, 5)
            if c.kind == "salu" and iss(w) & c.rd: n = max(n, 1)
            if c.kind == "branch" and iss(w) & c.rd: n = max(n, 1)
        if cv and c.mn.startswith(("v_readlane", "v_readfirstlane")) and isv(w) & c.rd: n = max(n, 1)
        if cv and c.mn.startswith("v_permlane") and isv(w) & c.rd: n = max(n, 2)
        if cv and ("dpp" in c.mn or "quad_perm" in c.text or "row_" in c.text) and isv(w) & c.rd: n = max(n, 2)
    if p.mn.startswith("v_dot"):
        w = isv(p.wr)
        if c.mn == p.mn:
            others = c.rd - c.wr
            if w & others: n = max(n, 3)
        elif w & (c.rd | c.wr): n = max(n, 3)
    if p.kind == "mfma":
        full = {8: 12, 4: 8}[p.passes]
        if c.kind == "mfma":
            if p.wr & c.ab: n = max(n, full)
            if p.wr & c.srcc:
                if not (p.wr == c.srcc and p.passes == c.passes): n = max(n, {8: 10, 4: 6}[p.passes])
            elif p.wr & c.wr and not (p.wr == c.srcc): n = max(n, {8: 10, 4: 6}[p.passes])
        elif cv:
            if p.wr & (c.rd | c.wr): n = max(n, full)
            if p.srcc & c.wr: n = max(n, {8: 7, 4: 3}[p.passes])
        elif c.kind in ("vmem", "ds"):
            if p.wr & (c.rd | c.wr): n = max(n, full)
    if p.kind == "salu" and ("s", 124) in p.wr and (c.lds_dma): n = max(n, 1)
    if p.kind == "vmem" and p.store_data:
        if cv and p.store_data & c.wr: n = max(n, 2)
        elif p.store_data & c.wr: n = max(n, 1)
    return n

class Asm:
    def __init__(self):
        self.ins = []
        self.uid = 0
    def __call__(self, text):
        for line in text.split("\n"):
            line = line.strip()
            if line == "" or line.startswith(";") :
                continue
            self.ins.append(Ins(line))
    def label(self, name): self.ins.append(Ins(name + ":"))
    def newlabel(self, base):
        self.uid += 1
        return "L_%s_%d" % (base, self.uid)
    def comment(self, text):
        i = Ins(""); i.text = "; " + text; self.ins.append(i)

    def _fix_seq(self, seq):
        out = {}
        WIN = 24
        hist = []
        pos = 0
        for idx, c in enumerate(seq):
            if c.kind in ("label", "dir"): continue
            req = 0
            for (p, ppos) in hist[-WIN:]:
                n = need(p, c)
                if n:
                    dist = pos - ppos
                    if dist < n: req = max(req, n - dist)
            if req:
                out[idx] = req; pos += req
            pos += c.ws
            hist.append((c, pos))
        return out

    def finalize(self):
        fix = self._fix_seq(self.ins)
        new = []
        for idx, c in enumerate(self.ins):
            if idx in fix:
                n = fix[idx]
                while n > 0:
                    k = min(n, 16); new.append(Ins("s_nop %d" % (k - 1))); n -= k
            new.append(c)
        self.ins = new
        for _ in range(3):
            labels = {c.mn: i for i, c in enumerate(self.ins) if c.is_label}
            changed = False
            i = 0
            while i < len(self.ins):
                c = self.ins[i]
                if c.kind == "branch" and c.target in labels:
                    a = labels[c.target]
                    pre = [x for x in self.ins[max(0, i - 40):i + 1] if x.kind not in ("label", "dir")]
                    post = [x for x in self.ins[a:a + 60] if x.kind not in ("label", "dir")][:24]
                    f = self._fix_seq(pre + post)
                    f = {k: v for k, v in f.items() if k >= len(pre)}
                    if f:
                        n = max(f.values())
                        ins = []
                        while n > 0:
                            k = min(n, 16); ins.append(Ins("s_nop %d" % (k - 1))); n -= k
                        self.ins[i:i] = ins
                        i += len(ins); changed = True
                        labels = {c.mn: i2 for i2, c in enumerate(self.ins) if c.is_label}
                i += 1
            if not changed: break
        return self
    def text(self):
        out = []
        for c in self.ins:
            if c.is_label: out.append(c.text)
            else: out.append("  " + c.text)
        return "\n".join(out) + "\n"

class VQ:
    def __init__(self, a): self.a = a; self.q = []
    def issue(self, tag): self.q.append(tag)
    def wait(self, tag):
        idx = max([i for i, t in enumerate(self.q) if t == tag], default=None)
        if idx is None: return
        n = len(self.q) - 1 - idx
        assert n <= 63, n
        self.a("s_waitcnt vmcnt(%d)" % n)
        self.q = self.q[idx + 1:]
    def wait_all(self):
        self.a("s_waitcnt vmcnt(0)"); self.q = []

def vr(b, n=1): return "v%d" % b if n == 1 else "v[%d:%d]" % (b, b + n - 1)
def ar(b, n=1): return "a%d" % b if n == 1 else "a[%d:%d]" % (b, b + n - 1)
def sr(b, n=1): return "s%d" % b if n == 1 else "s[%d:%d]" % (b, b + n - 1)
```

```python
import sys, math, struct
sys.path.insert(0, "gen")
from asmlib import *

NAME = "recurrent_scan__spectral_fnet__mixer_gmlp__prompt"

WS_FLAG = 0x000000
WS_STATS = 0x020000
WS_Z2N = 0x100000
WS_AB = 0x400000
WS_H = 0x600000
WS_YT = 0x900000
WS_STAMP = 0xF00000
WS_SIZE = 0x4000000
OOB = 0x80000000

LDS_WR = 65536
SLOT = 16384
NSLOT = 5
LDS_T4 = 147456
LDS_T5 = LDS_T4 + 1536
LDS_SY = LDS_T5 + 512
LDS_FX = 131072
LDS_WO = 73728
LDS_TOTAL = 163840

SRD_X, SRD_WIN, SRD_DFT, SRD_WSP, SRD_WOUT, SRD_WS, SRD_OUT, SRD_BSP, SRD_DBG = 4, 8, 12, 20, 24, 28, 32, 36, 40
S_IMLO, S_IMHI = 16, 17
S_MB, S_J, S_W, S_F0, S_WID, S_NONCE, S_L = 44, 45, 46, 47, 48, 49, 50
S_C, S_SLOT, S_XD = 51, 52, 53
S_CN, S_KC128, S_WSOFF, S_SLOTN = 54, 55, 56, 57
S_HW = 58
S_DL0, S_WL0, S_W2 = 60, 61, 62
S_T0, S_T1, S_T2, S_T3 = 63, 90, 91, 92
S_PASS = 93
S_EX = 94
S_K2 = 96
S_SPIN = 98
S_B0 = 99
S_ST0 = 100
S_ROT1 = 59
S_RHO = 51

V_LANE, V_JL, V_H, V_SIG = 1, 2, 3, 4

def f2u(x): return struct.unpack("<I", struct.pack("<f", x))[0]

class Gen:
    def __init__(self, stop_after=None, stamps=False, exp=()):
        self.a = Asm()
        self.stop_after = stop_after
        self.stamps = stamps
        self.exp = set(exp)

    def stamp(self, idx):
        if not self.stamps: return
        a = self.a
        a(("s_memtime s[%d:%d]" if idx >= 24 else "s_memrealtime s[%d:%d]") % (S_ST0, S_ST0 + 1))
        a("s_waitcnt lgkmcnt(0)")
        a("v_mov_b32 v9, s%d" % S_ST0)
        a("s_lshl_b32 s%d, s%d, 3" % (S_ST0, S_L))
        a("s_add_u32 s%d, s%d, s%d" % (S_ST0, S_ST0, S_W))
        a("s_lshl_b32 s%d, s%d, 7" % (S_ST0, S_ST0))
        a("s_add_u32 s%d, s%d, 0x%x" % (S_ST0, S_ST0, WS_STAMP + idx * 4))
        a("v_mov_b32 v8, 0")
        a("s_mov_b64 s[%d:%d], exec" % (S_EX, S_EX + 1))
        a("s_mov_b64 exec, 1")
        a("buffer_store_dword v9, v8, s[%d:%d], s%d offen" % (SRD_WS, SRD_WS + 3, S_ST0))
        a("s_mov_b64 exec, s[%d:%d]" % (S_EX, S_EX + 1))

    def srd(self, base, plo, size):
        a = self.a
        a("s_mov_b32 s%d, s%d" % (base, plo))
        a("s_and_b32 s%d, s%d, 0xffff" % (base + 1, plo + 1))
        a("s_mov_b32 s%d, 0x%x" % (base + 2, size))
        a("s_mov_b32 s%d, 0x20000" % (base + 3))

    def flag_store(self, kind, dw=0, dw_sreg=None):
        a = self.a
        a("s_lshl_b32 s%d, s%d, 7" % (S_T0, S_L))
        a("s_add_u32 s%d, s%d, 0x%x" % (S_T0, S_T0, WS_FLAG + kind * 256 * 128 + dw * 4))
        if dw_sreg is not None:
            a("s_lshl_b32 s3, s%d, 2" % dw_sreg)
            a("s_add_u32 s%d, s%d, s3" % (S_T0, S_T0))
        a("v_mov_b32 v5, s%d" % S_NONCE)
        a("v_mov_b32 v6, 0")
        a("s_mov_b64 exec, 1")
        a("buffer_store_dword v5, v6, s[%d:%d], s%d offen sc1" % (SRD_WS, SRD_WS + 3, S_T0))
        a("s_mov_b64 exec, -1")

    def poll_flags_n(self, vaddr, nlanes, ndw, vt):
        a = self.a
        lab = a.newlabel("poll")
        a("s_mov_b32 s%d, 0" % S_SPIN)
        mask = (1 << nlanes) - 1
        a("s_mov_b32 exec_lo, 0x%x" % (mask & 0xffffffff))
        a("s_mov_b32 exec_hi, 0x%x" % (mask >> 32))
        a.label(lab)
        if ndw == 1: a("buffer_load_dword v%d, v%d, s[%d:%d], 0 offen sc1" % (vt, vaddr, SRD_WS, SRD_WS + 3))
        elif ndw == 2: a("buffer_load_dwordx2 v[%d:%d], v%d, s[%d:%d], 0 offen sc1" % (vt, vt + 1, vaddr, SRD_WS, SRD_WS + 3))
        else: a("buffer_load_dwordx4 v[%d:%d], v%d, s[%d:%d], 0 offen sc1" % (vt, vt + 3, vaddr, SRD_WS, SRD_WS + 3))
        a("s_waitcnt vmcnt(0)")
        a("v_cmp_ne_u32 vcc, s%d, v%d" % (S_NONCE, vt))
        for i in range(1, ndw):
            a("v_cmp_ne_u32 s[%d:%d], s%d, v%d" % (S_EX, S_EX + 1, S_NONCE, vt + i))
            a("s_or_b64 vcc, vcc, s[%d:%d]" % (S_EX, S_EX + 1))
        a("s_add_u32 s%d, s%d, 1" % (S_SPIN, S_SPIN))
        a("s_cmp_gt_u32 s%d, 0x40000" % S_SPIN)
        a("s_cbranch_scc1 %s_x" % lab)
        a("s_cbranch_vccnz %s" % lab)
        a.label(lab + "_x")
        a("s_mov_b64 exec, -1")

    def get_nonce(self):
        a = self.a
        lab = a.newlabel("nonce")
        a("v_mov_b32 v6, 0")
        a("s_mov_b32 s%d, 0" % S_SPIN)
        a.label(lab)
        a("buffer_load_dword v5, v6, s[%d:%d], 0 offen sc1" % (SRD_DBG, SRD_DBG + 3))
        a("s_waitcnt vmcnt(0)")
        a("v_readfirstlane_b32 s%d, v5" % S_NONCE)
        a("s_add_u32 s%d, s%d, 1" % (S_SPIN, S_SPIN))
        a("s_cmp_gt_u32 s%d, 0x40000" % S_SPIN)
        a("s_cbranch_scc1 %s_x" % lab)
        a("s_cmp_eq_u32 s%d, 0" % S_NONCE)
        a("s_cbranch_scc1 %s" % lab)
        a.label(lab + "_x")

    def nonce_from(self, vreg):
        a = self.a
        lab = a.newlabel("hn")
        a("v_readfirstlane_b32 s%d, v%d" % (S_NONCE, vreg))
        a("s_cmp_lg_u32 s%d, 0" % S_NONCE)
        a("s_cbranch_scc1 %s" % lab)
        self.get_nonce()
        a.label(lab)

    def poll_flags(self, vaddr, nlanes):
        a = self.a
        lab = a.newlabel("poll")
        a("s_mov_b32 s%d, 0" % S_SPIN)
        mask = (1 << nlanes) - 1
        a("s_mov_b32 exec_lo, 0x%x" % (mask & 0xffffffff))
        a("s_mov_b32 exec_hi, 0x%x" % (mask >> 32))
        a.label(lab)
        a("buffer_load_dword v5, v%d, s[%d:%d], 0 offen sc1" % (vaddr, SRD_WS, SRD_WS + 3))
        a("s_waitcnt vmcnt(0)")
        a("v_cmp_ne_u32 vcc, s%d, v5" % S_NONCE)
        a("s_add_u32 s%d, s%d, 1" % (S_SPIN, S_SPIN))
        a("s_cmp_gt_u32 s%d, 0x40000" % S_SPIN)
        a("s_cbranch_scc1 %s_x" % lab)
        a("s_cbranch_vccnz %s" % lab)
        a.label(lab + "_x")
        a("s_mov_b64 exec, -1")

    def lds_wait_ge(self, addr, val, vt=5):
        a = self.a
        lab = a.newlabel("lw")
        a("s_mov_b32 s%d, 0" % S_SPIN)
        a("v_mov_b32 v%d, %d" % (vt + 1, addr))
        a.label(lab)
        a("ds_read_b32 v%d, v%d" % (vt, vt + 1))
        a("s_waitcnt lgkmcnt(0)")
        a("v_readfirstlane_b32 s%d, v%d" % (S_T0, vt))
        a("s_add_u32 s%d, s%d, 1" % (S_SPIN, S_SPIN))
        a("s_cmp_gt_u32 s%d, 0x100000" % S_SPIN)
        a("s_cbranch_scc1 %s_x" % lab)
        a("s_cmp_lt_u32 s%d, %d" % (S_T0, val))
        a("s_cbranch_scc1 %s" % lab)
        a.label(lab + "_x")

    def hsum(self, regs, tmp):
        a = self.a
        for i, r in enumerate(regs): a("v_mov_b32 v%d, v%d" % (tmp + i, r))
        for i, r in enumerate(regs): a("v_permlane32_swap_b32 v%d, v%d" % (r, tmp + i))
        for i, r in enumerate(regs): a("v_add_f32 v%d, v%d, v%d" % (r, r, tmp + i))

    def mean_rstd(self, vsum, vsq, n, dst_r, dst_nm, t):
        a = self.a
        a("v_mul_f32 v%d, 0x%x, v%d" % (t, f2u(1.0 / n), vsum))
        a("v_mul_f32 v%d, 0x%x, v%d" % (t + 1, f2u(1.0 / n), vsq))
        a("v_fma_f32 v%d, -v%d, v%d, v%d" % (t + 1, t, t, t + 1))
        a("v_max_f32 v%d, 0, v%d" % (t + 1, t + 1))
        a("v_add_f32 v%d, 0x%x, v%d" % (t + 1, f2u(1e-5), t + 1))
        a("v_rsq_f32 v%d, v%d" % (dst_r, t + 1))
        a("v_mul_f32 v%d, v%d, v%d" % (dst_nm, t, dst_r))
        a("v_sub_f32 v%d, 0, v%d" % (dst_nm, dst_nm))

    V_OD, V_OW = 10, 11
    V_NON = 14
    def prologue(self):
        a = self.a
        a("s_cmp_ge_u32 s2, 256")
        a("s_cbranch_scc1 L_end")
        a("s_load_dwordx16 s[64:79], s[0:1], 0")
        a("s_load_dwordx8 s[80:87], s[0:1], 64")
        a("s_load_dwordx2 s[88:89], s[0:1], 96")
        if "map42" in self.exp:
            a("s_bfe_u32 s%d, s2, 0x20001" % S_MB)
            a("s_lshl_b32 s%d, s%d, 3" % (S_MB, S_MB))
            a("s_bfe_u32 s3, s2, 0x30003")
            a("s_add_u32 s%d, s%d, s3" % (S_MB, S_MB))
            a("s_and_b32 s%d, s2, 1" % S_J)
            a("s_lshl_b32 s%d, s%d, 2" % (S_J, S_J))
            a("s_lshr_b32 s3, s2, 6")
            a("s_add_u32 s%d, s%d, s3" % (S_J, S_J))
        else:
            a("s_and_b32 s%d, s2, 7" % S_MB)
            a("s_lshl_b32 s%d, s%d, 2" % (S_MB, S_MB))
            a("s_bfe_u32 s3, s2, 0x20003")
            a("s_add_u32 s%d, s%d, s3" % (S_MB, S_MB))
            a("s_lshr_b32 s%d, s2, 5" % S_J)
        a("s_lshl_b32 s%d, s%d, 5" % (S_L, S_J))
        a("s_add_u32 s%d, s%d, s%d" % (S_L, S_L, S_MB))
        a("v_lshrrev_b32 v5, 6, v0")
        a("v_and_b32 v%d, 63, v0" % V_LANE)
        a("v_readfirstlane_b32 s%d, v5" % S_W)
        a("v_lshrrev_b32 v20, 3, v0")
        a("v_and_b32 v21, 7, v0")
        a("v_lshlrev_b32 v22, 10, v20")
        a("v_lshl_add_u32 v22, v21, 4, v22")
        a("s_lshl_b32 s%d, s%d, 16" % (S_T1, S_MB))
        a("s_and_b32 s%d, s%d, 3" % (S_HW, S_W))
        a("v_and_b32 v%d, 31, v0" % V_JL)
        a("v_bfe_u32 v%d, v0, 5, 1" % V_H)
        a("v_and_b32 v5, 0x13, v%d" % V_JL)
        a("v_and_b32 v6, 4, v%d" % V_JL)
        a("v_lshl_or_b32 v5, v6, 1, v5")
        a("v_and_b32 v6, 8, v%d" % V_JL)
        a("v_lshrrev_b32 v6, 1, v6")
        a("v_or_b32 v%d, v5, v6" % V_SIG)
        a("s_mul_i32 s%d, s%d, 88" % (S_F0, S_J))
        a("s_cmp_eq_u32 s%d, 7" % S_J)
        a("s_cselect_b32 s3, 8, 0")
        a("s_sub_u32 s%d, s%d, s3" % (S_F0, S_F0))
        a("s_cmp_ge_u32 s%d, 6" % S_J)
        a("s_cselect_b32 s3, 8, 0")
        a("s_sub_u32 s%d, 88, s3" % S_WID)
        for i in range(10, 14): a("v_mov_b32 v%d, 0" % i)
        a("s_waitcnt lgkmcnt(0)")
        self.srd(SRD_X, 64, 2048 * 1024)
        a("s_and_b32 s%d, s%d, 3" % (S_ROT1, S_MB))
        a("s_lshl_b32 s%d, s%d, 1" % (S_ROT1, S_ROT1))
        a("s_add_u32 s%d, s%d, s%d" % (S_ROT1, S_ROT1, S_J))
        a("s_and_b32 s%d, s%d, 7" % (S_ROT1, S_ROT1))
        if "norot" in self.exp: a("s_mov_b32 s%d, 0" % S_ROT1)
        for i in range(8):
            a("s_add_u32 s3, s%d, %d" % (S_ROT1, i))
            a("s_and_b32 s3, s3, 7")
            a("s_lshl_b32 s3, s3, 7")
            a("s_add_u32 s3, s3, s%d" % S_T1)
            a("buffer_load_dwordx4 v[%d:%d], v22, s[%d:%d], s3 offen" % (32 + 4 * i, 35 + 4 * i, SRD_X, SRD_X + 3))
        self.srd(SRD_WIN, 76, 512 * 2752)
        self.srd(SRD_DFT, 70, 512 * 1024)
        self.srd(S_IMLO, 72, 512 * 1024)
        self.srd(SRD_WS, 88, WS_SIZE)
        self.srd(SRD_DBG, 86, 256)
        self.srd(SRD_WSP, 78, 2048 * 4096)
        self.srd(SRD_WOUT, 82, 688 * 1024)
        self.srd(SRD_OUT, 84, 2048 * 1024)
        self.srd(SRD_BSP, 80, 4096)
        a("s_cmp_lt_u32 s%d, 4" % S_W)
        a("s_cbranch_scc0 L_pro_h")
        self.npf = self.prefetch_start() if "nopf" not in self.exp else 0
        a("s_branch L_pro_c")
        a.label("L_pro_h")
        L = V_LANE
        a("v_lshrrev_b32 v5, 3, v%d" % L)
        a("v_and_b32 v6, 7, v%d" % L)
        a("v_lshrrev_b32 v7, 4, v%d" % L)
        a("v_xor_b32 v8, v6, v7")
        a("v_lshlrev_b32 v8, 4, v8")
        a("s_lshl_b32 s3, s%d, 5" % S_J)
        a("s_lshl_b32 s%d, s%d, 3" % (S_T0, S_HW))
        a("s_add_u32 s3, s3, s%d" % S_T0)
        a("v_add_u32 v9, s3, v5")
        a("v_cmp_eq_u32 vcc, 0, v9")
        a("v_mov_b32 v6, 256")
        a("v_cndmask_b32 v9, v9, v6, vcc")
        a("s_and_b32 s%d, s%d, 1" % (S_T0, S_HW))
        a("s_lshl_b32 s%d, s%d, 6" % (S_T0, S_T0))
        a("v_xor_b32 v8, s%d, v8" % S_T0)
        a("v_lshl_add_u32 v%d, v9, 10, v8" % self.V_OD)
        for p in range(3):
            a("v_add_u32 v5, %d, v%d" % (64 * p, L))
            a("v_mul_u32_u24 v6, 171, v5")
            a("v_lshrrev_b32 v6, 11, v6")
            a("v_mul_u32_u24 v7, 12, v6")
            a("v_sub_u32 v7, v5, v7")
            a("v_mul_u32_u24 v6, 2752, v6")
            a("v_lshl_add_u32 v6, v7, 4, v6")
            a("v_lshlrev_b32 v7, 3, v7")
            a("v_cmp_gt_u32 vcc, s%d, v7" % S_WID)
            a("v_mov_b32 v8, 0x%x" % OOB)
            a("v_cndmask_b32 v%d, v8, v6, vcc" % (self.V_OW + p))
        a("s_lshl_b32 s%d, s%d, 10" % (S_DL0, S_HW))
        a("s_mul_i32 s%d, s%d, 3072" % (S_WL0, S_HW))
        a("s_mul_i32 s%d, s%d, %d" % (S_W2, S_HW, 16 * 2752))
        a("s_lshl_b32 s3, s%d, 1" % S_F0)
        a("s_add_u32 s%d, s%d, s3" % (S_W2, S_W2))
        a("s_add_u32 s%d, s%d, %d" % (S_WSOFF, S_W2, 688 * 2))
        for k in range(4): self.dma_chunk(k)
        a("s_cmp_lg_u32 s2, 0")
        a("s_cbranch_scc1 L_nononce")
        a("s_cmp_lg_u32 s%d, 4" % S_W)
        a("s_cbranch_scc1 L_nononce")
        a("s_memrealtime s[%d:%d]" % (S_ST0, S_ST0 + 1))
        a("s_waitcnt lgkmcnt(0)")
        a("s_or_b32 s3, s%d, 1" % S_ST0)
        a("v_mov_b32 v5, s3")
        a("v_mov_b32 v6, 0")
        a("s_mov_b64 exec, 1")
        a("buffer_store_dword v5, v6, s[%d:%d], 0 offen sc1" % (SRD_DBG, SRD_DBG + 3))
        a("s_mov_b64 exec, -1")
        a.label("L_nononce")
        a("v_lshlrev_b32 v5, 2, v%d" % V_LANE)
        a("v_add_u32 v5, %d, v5" % LDS_SY)
        a("v_mov_b32 v6, 0")
        a("s_mov_b64 exec, 0xffff")
        a("ds_write_b32 v5, v6")
        a("s_mov_b64 exec, -1")
        a.label("L_pro_c")
        self.stamp(0)
        self.stamp(24)

    def pf_wrows(self, colbyte_sreg, row0_sreg, nrows16, dst):
        a = self.a
        a("v_lshrrev_b32 v5, 2, v%d" % V_LANE)
        a("v_add_u32 v5, s%d, v5" % row0_sreg)
        a("v_mul_u32_u24 v5, 2752, v5")
        a("v_and_b32 v6, 3, v%d" % V_LANE)
        a("v_lshlrev_b32 v6, 6, v6")
        a("v_min_u32 v6, 172, v6")
        a("v_add_u32 v5, v5, v6")
        for i in range(nrows16):
            a("s_add_u32 s3, s%d, %d" % (colbyte_sreg, i * 16 * 2752))
            a("buffer_load_dword a%d, v5, s[%d:%d], s3 offen" % (dst, SRD_WIN, SRD_WIN + 3))
        return nrows16

    def prefetch_start(self):
        a = self.a
        a("s_and_b32 s%d, s%d, 3" % (S_T0, S_MB))
        a("s_lshl_b32 s%d, s%d, 6" % (S_T0, S_T0))
        a("s_lshl_b32 s3, s%d, 4" % S_W)
        a("s_add_u32 s%d, s%d, s3" % (S_T0, S_T0))
        a("s_add_u32 s%d, s%d, 256" % (S_T0, S_T0))
        a("s_add_u32 s%d, s%d, 688" % (S_T1, S_F0))
        a("s_lshl_b32 s%d, s%d, 1" % (S_T1, S_T1))
        return self.pf_wrows(S_T1, S_T0, 1, 16)

    def prefetch_b(self):
        a = self.a
        a("s_and_b32 s%d, s%d, 3" % (S_T0, S_MB))
        a("s_lshl_b32 s%d, s%d, 7" % (S_T0, S_T0))
        a("s_lshl_b32 s3, s%d, 5" % S_W)
        a("s_add_u32 s%d, s%d, s3" % (S_T0, S_T0))
        a("s_lshl_b32 s%d, s%d, 1" % (S_T1, S_F0))
        self.pf_wrows(S_T1, S_T0, 2, 16)
        a("s_lshl_b32 s%d, s%d, 5" % (S_T0, S_J))
        a("s_and_b32 s3, s%d, 3" % S_MB)
        a("s_lshl_b32 s3, s3, 3")
        a("s_add_u32 s%d, s%d, s3" % (S_T0, S_T0))
        a("s_lshl_b32 s3, s%d, 1" % S_W)
        a("s_add_u32 s%d, s%d, s3" % (S_T0, S_T0))
        a("s_lshl_b32 s%d, s%d, 10" % (S_T0, S_T0))
        a("v_lshlrev_b32 v5, 4, v%d" % V_LANE)
        for i in range(2):
            a("buffer_load_dwordx4 a[16:19], v5, s[%d:%d], s%d offen offset:%d" % (S_IMLO, S_IMLO + 3, S_T0, i * 1024))

    def prefetch_wsp(self):
        a = self.a
        a("s_lshl_b32 s%d, s%d, 6" % (S_T0, S_MB))
        a("s_lshl_b32 s3, s%d, 3" % S_J)
        a("s_add_u32 s%d, s%d, s3" % (S_T0, S_T0))
        a("s_lshl_b32 s3, s%d, 1" % S_W)
        a("s_add_u32 s%d, s%d, s3" % (S_T0, S_T0))
        a("s_lshl_b32 s%d, s%d, 12" % (S_T0, S_T0))
        a("v_lshlrev_b32 v5, 4, v%d" % V_LANE)
        for i in range(8):
            a("buffer_load_dwordx4 a[16:19], v5, s[%d:%d], s%d offen" % (SRD_WSP, SRD_WSP + 3, S_T0))
            if i < 7: a("s_add_u32 s%d, s%d, 1024" % (S_T0, S_T0))

    def prefetch_wout(self):
        a = self.a
        a("s_and_b32 s3, s%d, 3" % S_MB)
        a("s_lshl_b32 s3, s3, 2")
        a("s_add_u32 s3, s3, s%d" % S_W)
        a("s_mul_i32 s%d, s3, 43" % S_T0)
        a("v_lshrrev_b32 v5, 1, v%d" % V_LANE)
        a("v_add_u32 v5, s%d, v5" % S_T0)
        a("v_lshlrev_b32 v5, 10, v5")
        a("v_and_b32 v6, 1, v%d" % V_LANE)
        a("v_lshl_add_u32 v5, v6, 6, v5")
        a("s_lshl_b32 s%d, s%d, 7" % (S_T0, S_J))
        a("buffer_load_dword a16, v5, s[%d:%d], s%d offen" % (SRD_WOUT, SRD_WOUT + 3, S_T0))
        a("s_add_u32 s%d, s%d, %d" % (S_T0, S_T0, 32 * 1024))
        a("buffer_load_dword a16, v5, s[%d:%d], s%d offen" % (SRD_WOUT, SRD_WOUT + 3, S_T0))

    def dma_chunk(self, k):
        a = self.a
        slot = LDS_WR + (k % NSLOT) * SLOT
        srd = SRD_DFT if k < 8 else S_IMLO
        a("s_add_u32 s%d, s%d, %d" % (S_T1, S_ROT1, k & 7))
        a("s_and_b32 s%d, s%d, 7" % (S_T1, S_T1))
        a("s_add_u32 m0, s%d, %d" % (S_DL0, slot + 12288))
        a("s_lshl_b32 s%d, s%d, 7" % (S_T0, S_T1))
        a("buffer_load_dwordx4 v%d, s[%d:%d], s%d offen lds" % (self.V_OD, srd, srd + 3, S_T0))
        a("s_mul_i32 s%d, s%d, %d" % (S_T1, S_T1, 64 * 2752))
        a("s_add_u32 m0, s%d, %d" % (S_WL0, slot))
        a("s_add_u32 s%d, s%d, s%d" % (S_T0, S_WSOFF if k < 8 else S_W2, S_T1))
        for p in range(3):
            a("buffer_load_dwordx4 v%d, s[%d:%d], s%d offen lds" % (self.V_OW + p, SRD_WIN, SRD_WIN + 3, S_T0))
            if p < 2:
                a("s_add_u32 m0, m0, 1024")
                a("s_nop 0")

    def xstage(self):
        a = self.a
        X = 32
        a("v_mov_b32 v23, 0x3f803f80")
        for i in range(4): a("v_mov_b32 v%d, 0" % (24 + i))
        a("v_bfe_u32 v5, v20, 1, 3")
        a("v_xor_b32 v5, v5, v21")
        a("v_lshlrev_b32 v5, 4, v5")
        a("v_lshl_add_u32 v28, v20, 7, v5")
        a("s_cmp_lt_u32 s%d, 4" % S_W)
        a("s_cbranch_scc1 L_xw_c")
        for path, younger in (("h", 16), ("c", self.npf)):
            if path == "c": a.label("L_xw_c")
            for i in range(8):
                a("s_waitcnt vmcnt(%d)" % (younger + 7 - i))
                for r in range(4):
                    k = 4 * i + r
                    a("v_dot2c_f32_bf16 v%d, v%d, v23" % (24 + (k & 1), X + k))
                    a("v_dot2c_f32_bf16 v%d, v%d, v%d" % (26 + (k & 1), X + k, X + k))
            if path == "h": a("s_branch L_xw_d")
        a.label("L_xw_d")
        a("v_add_f32 v24, v24, v25")
        a("v_add_f32 v26, v26, v27")
        for dpp in ("quad_perm:[1,0,3,2]", "quad_perm:[2,3,0,1]", "row_half_mirror"):
            a("v_add_f32_dpp v25, v24, v24 %s row_mask:0xf bank_mask:0xf" % dpp)
            a("v_add_f32_dpp v27, v26, v26 %s row_mask:0xf bank_mask:0xf" % dpp)
            a("v_mov_b32 v24, v25")
            a("v_mov_b32 v26, v27")
        self.mean_rstd(24, 26, 512, 30, 31, 6)
        U = 64
        for i in range(8):
            for r in range(4):
                src = X + 4 * i + r
                t = U + 2 * ((4 * i + r) % 8)
                a("v_lshlrev_b32 v%d, 16, v%d" % (t, src))
                a("v_and_b32 v%d, 0xffff0000, v%d" % (t + 1, src))
                a("v_pk_fma_f32 v[%d:%d], v[%d:%d], v[30:31], v[30:31] op_sel:[0,0,1] op_sel_hi:[1,0,1]" % (t, t + 1, t, t + 1))
                a("v_cvt_pk_bf16_f32 v%d, v%d, v%d" % (src, t, t + 1))
            a("ds_write_b128 v28, v[%d:%d] offset:%d" % (X + 4 * i, X + 4 * i + 3, i * 8192))

    C_XA, C_AC, C_AN = 10, 14, 15
    C_FA, C_FB = 16, 32
    C_ACC = 64
    C_Z2P, C_Z1P = 96, 112
    C_GC1 = 6

    def c_setup(self, w3):
        a = self.a
        a("v_bfe_u32 v5, v%d, 1, 3" % V_SIG)
        a("v_lshlrev_b32 v6, 7, v%d" % V_SIG)
        for ks in range(4):
            a("v_add_u32 v8, %d, v%d" % (2 * ks, V_H))
            a("v_xor_b32 v8, v8, v5")
            a("v_lshl_add_u32 v%d, v8, 4, v6" % (self.C_XA + ks))
        if w3:
            for ks in range(4):
                a("v_add_u32 v%d, %d, v%d" % (116 + ks, LDS_WR + 12288, self.C_XA + ks))
        else:
            a("v_bfe_u32 v7, v%d, 2, 2" % V_LANE)
            a("v_lshl_add_u32 v7, v%d, 3, v7" % V_H)
            a("v_mul_u32_u24 v7, 192, v7")
            a("v_bfe_u32 v8, v%d, 4, 1" % V_LANE)
            a("v_lshlrev_b32 v8, 5, v8")
            a("v_and_b32 v9, 1, v%d" % V_LANE)
            a("v_lshl_add_u32 v8, v9, 4, v8")
            a("v_bfe_u32 v9, v%d, 1, 1" % V_LANE)
            a("v_lshl_add_u32 v8, v9, 3, v8")
            a("v_add_u32 v7, v7, v8")
            a("s_lshl_b32 s3, s%d, 6" % S_W)
            a("s_add_u32 s3, s3, %d" % LDS_WR)
            a("v_add_u32 v%d, s3, v7" % self.C_AC)
            a("v_add_u32 v%d, %d, v%d" % (self.C_AN, SLOT, self.C_AC))
            for Q in range(2):
                a("v_lshlrev_b32 v5, 3, v%d" % V_H)
                a("v_sub_u32 v5, v%d, v5" % V_SIG)
                if Q: a("v_subrev_u32 v5, 16, v5")
                a("v_and_b32 v6, 1, v5")
                a("v_lshlrev_b32 v6, 4, v6")
                a("v_mov_b32 v7, 0x3f80")
                a("v_lshlrev_b32 v6, v6, v7")
                a("v_lshrrev_b32 v5, 1, v5")
                for r in range(4):
                    a("v_cmp_eq_u32 vcc, %d, v5" % r)
                    a("v_cndmask_b32 v7, 0, v6, vcc")
                    a("v_accvgpr_write_b32 a%d, v7" % (4 * Q + r))

    def c_reads(self, w3, c, ks, nxt):
        A = self.C_FA + 4 * ks; B = self.C_FB + 8 * ks
        out = []
        xo = (c & 7) * 8192
        if w3:
            base = 124 + ks if nxt else 120 + ks
            out.append("ds_read_b128 v[%d:%d], v%d" % (A, A + 3, base))
        else:
            base = self.C_AN if nxt else self.C_AC
            out.append("ds_read_b64_tr_b16 v[%d:%d], v%d offset:%d" % (A, A + 1, base, ks * 3072))
            out.append("ds_read_b64_tr_b16 v[%d:%d], v%d offset:%d" % (A + 2, A + 3, base, ks * 3072 + 768))
        out.append("ds_read_b128 v[%d:%d], v%d offset:%d" % (B, B + 3, self.C_XA + ks, xo))
        out.append("ds_read_b128 v[%d:%d], v%d offset:%d" % (B + 4, B + 7, self.C_XA + ks, xo + 4096))
        return out

    def c_loop(self, w3):
        a = self.a
        nr = 3 if w3 else 4
        ACC = self.C_ACC
        def mfs(ks, first):
            A = self.C_FA + 4 * ks; B = self.C_FB + 8 * ks
            out = []
            for st in range(2):
                D = ACC + 16 * st
                cc = "0" if first else "v[%d:%d]" % (D, D + 15)
                if w3: out.append("v_mfma_f32_32x32x16_bf16 v[%d:%d], v[%d:%d], v[%d:%d], %s" % (D, D + 15, B + 4 * st, B + 4 * st + 3, A, A + 3, cc))
                else: out.append("v_mfma_f32_32x32x16_bf16 v[%d:%d], v[%d:%d], v[%d:%d], %s" % (D, D + 15, A, A + 3, B + 4 * st, B + 4 * st + 3, cc))
            return out
        a("s_mov_b32 s64, %d" % SLOT)
        if w3:
            for ks in range(4): a("v_add_u32 v%d, s%d, v%d" % (120 + ks, S_SLOT, 116 + ks))
        for r in self.c_reads(w3, 0, 0, False): a(r)
        for r in self.c_reads(w3, 0, 1, False): a(r)
        for c in range(8):
            a("s_barrier")
            extra = []
            if w3:
                extra += ["s_add_u32 s%d, s%d, %d" % (S_T1, S_SLOT, SLOT), "s_cmp_eq_u32 s%d, %d" % (S_T1, NSLOT * SLOT), "s_cselect_b32 s%d, 0, s%d" % (S_T1, S_T1),
                          "v_add_u32 v124, s%d, v116" % S_T1, "v_add_u32 v125, s%d, v117" % S_T1]
            for ks in range(4):
                if ks < 2: rd = self.c_reads(w3, c, ks + 2, False)
                else: rd = self.c_reads(w3, c + 1, ks - 2, True)
                if "cnoread" in self.exp: rd = []
                m = mfs(ks, c == 0 and ks == 0)
                if "cnomfma" in self.exp: m = []
                a("s_waitcnt lgkmcnt(%d)" % nr)
                half = (len(rd) + 1) // 2
                if m: a(m[0])
                if ks == 0:
                    for e in extra: a(e)
                for r in rd[:half]: a(r)
                if m: a(m[1])
                for r in rd[half:]: a(r)
                if ks == 3:
                    if w3:
                        a("s_mov_b32 s%d, s%d" % (S_SLOT, S_T1))
                        for k2 in range(4): a("v_add_u32 v%d, s%d, v%d" % (120 + k2, S_SLOT, 116 + k2))
                    else:
                        a("v_mov_b32 v%d, v%d" % (self.C_AC, self.C_AN))
                        a("s_add_u32 s%d, s%d, %d" % (S_SLOT, S_SLOT, SLOT))
                        a("s_cmp_eq_u32 s%d, %d" % (S_SLOT, NSLOT * SLOT))
                        a("s_cselect_b32 s%d, 0x%x, s64" % (S_T1, (-(NSLOT - 1) * SLOT) & 0xffffffff))
                        a("s_cselect_b32 s%d, 0, s%d" % (S_SLOT, S_SLOT))
                        a("v_add_u32 v%d, s%d, v%d" % (self.C_AN, S_T1, self.C_AN))
        a("s_waitcnt lgkmcnt(0)")

    def gelu_epilogue(self, dst):
        a = self.a
        E = 16
        c1 = -2.0 * math.sqrt(2.0 / math.pi) * math.log2(math.e)
        c2 = c1 * 0.044715
        a("v_mov_b32 v6, 0x%x" % f2u(c1))
        a("s_mov_b32 s%d, 0x%x" % (S_K2, f2u(c2)))
        a("s_mov_b32 s%d, 0x%x" % (S_K2 + 1, f2u(c2)))
        for pp in range(0, 16, 2):
            seq = [[], []]
            for u in range(2):
                pre = self.C_ACC + 2 * (pp + u)
                p2, e = E + u * 4, E + u * 4 + 2
                s = seq[u]
                s.append("v_pk_mul_f32 v[%d:%d], v[%d:%d], v[%d:%d]" % (p2, p2 + 1, pre, pre + 1, pre, pre + 1))
                s.append("v_pk_fma_f32 v[%d:%d], v[%d:%d], s[%d:%d], v[6:7] op_sel_hi:[1,1,0]" % (p2, p2 + 1, p2, p2 + 1, S_K2, S_K2 + 1))
                s.append("v_pk_mul_f32 v[%d:%d], v[%d:%d], v[%d:%d]" % (p2, p2 + 1, p2, p2 + 1, pre, pre + 1))
                s.append("v_exp_f32 v%d, v%d" % (e, p2))
                s.append("v_exp_f32 v%d, v%d" % (e + 1, p2 + 1))
                s.append("v_pk_add_f32 v[%d:%d], v[%d:%d], 1.0 op_sel_hi:[1,0]" % (e, e + 1, e, e + 1))
                s.append("v_rcp_f32 v%d, v%d" % (e, e))
                s.append("v_rcp_f32 v%d, v%d" % (e + 1, e + 1))
                s.append("v_pk_mul_f32 v[%d:%d], v[%d:%d], v[%d:%d]" % (e, e + 1, pre, pre + 1, e, e + 1))
                s.append("v_cvt_pk_bf16_f32 v%d, v%d, v%d" % (dst + pp + u, e, e + 1))
            for i in range(len(seq[0])):
                a(seq[0][i]); a(seq[1][i])

    def stats2_partial(self, src):
        a = self.a
        E = 16
        a("v_mov_b32 v24, 0x3f803f80")
        for i in range(4): a("v_mov_b32 v%d, 0" % (E + i))
        for r in range(8):
            for st in range(2):
                a("v_dot2c_f32_bf16 v%d, v%d, v24" % (E + 2 * st, src + 8 * st + r))
                a("v_dot2c_f32_bf16 v%d, v%d, v%d" % (E + 2 * st + 1, src + 8 * st + r, src + 8 * st + r))
        self.hsum([E, E + 1, E + 2, E + 3], E + 4)
        a("s_lshl_b32 s3, s%d, 9" % S_W)
        a("s_add_u32 s3, s3, %d" % LDS_T4)
        a("v_lshlrev_b32 v8, 3, v%d" % V_JL)
        a("v_add_u32 v8, s3, v8")
        a("ds_write_b64 v8, v[%d:%d]" % (E, E + 1))
        a("ds_write_b64 v8, v[%d:%d] offset:256" % (E + 2, E + 3))
        a("s_waitcnt lgkmcnt(0)")

    def dft_store(self, part):
        a = self.a
        a("s_lshl_b32 s3, s%d, 5" % S_J)
        a("v_add_u32 v6, s3, v%d" % V_SIG)
        a("v_lshlrev_b32 v6, 13, v6")
        a("v_lshl_add_u32 v6, v%d, 4, v6" % V_H)
        a("s_lshl_b32 s%d, s%d, 7" % (S_T0, S_MB))
        a("s_add_u32 s%d, s%d, 0x%x" % (S_T0, S_T0, WS_AB + part * 4096))
        for st in range(2):
            for Q in range(2):
                o = 16 + (st * 2 + Q) * 4
                for p in range(4):
                    acc = self.C_ACC + 16 * st + 8 * Q + 2 * p
                    a("v_cvt_pk_bf16_f32 v%d, v%d, v%d" % (o + p, acc, acc + 1))
                a("buffer_store_dwordx4 v[%d:%d], v6, s[%d:%d], s%d offen offset:%d sc1" % (o, o + 3, SRD_WS, SRD_WS + 3, S_T0, (32 * st + 16 * Q) * 2))

    def z2n_publish(self):
        a = self.a
        a("v_lshlrev_b32 v8, 3, v%d" % V_JL)
        a("v_add_u32 v8, %d, v8" % LDS_T5)
        a("ds_read_b64 v[16:17], v8")
        a("ds_read_b64 v[18:19], v8 offset:256")
        a("s_waitcnt lgkmcnt(0)")
        N = 32
        for st in range(2):
            r2 = 16 + 2 * st
            for r in range(8):
                src = self.C_Z2P + 8 * st + r
                t = 20 + 2 * (r % 4)
                a("v_lshlrev_b32 v%d, 16, v%d" % (t, src))
                a("v_and_b32 v%d, 0xffff0000, v%d" % (t + 1, src))
                a("v_pk_fma_f32 v[%d:%d], v[%d:%d], v[%d:%d], v[%d:%d] op_sel:[0,0,1] op_sel_hi:[1,0,1]" % (t, t + 1, t, t + 1, r2, r2 + 1, r2, r2 + 1))
                a("v_cvt_pk_bf16_f32 v%d, v%d, v%d" % (N + 8 * st + r, t, t + 1))
        for st in range(2):
            D = self.C_ACC + 16 * st
            a("v_mfma_f32_32x32x16_bf16 v[%d:%d], v[%d:%d], a[0:3], 0" % (D, D + 15, N + 8 * st, N + 8 * st + 3))
        for st in range(2):
            D = self.C_ACC + 16 * st
            a("v_mfma_f32_32x32x16_bf16 v[%d:%d], v[%d:%d], a[4:7], v[%d:%d]" % (D, D + 15, N + 8 * st + 4, N + 8 * st + 7, D, D + 15))
        a("s_lshl_b32 s%d, s%d, 7" % (S_T0, S_J))
        a("s_lshl_b32 s%d, s%d, 2" % (S_T1, S_MB))
        a("s_add_u32 s%d, s%d, s%d" % (S_T0, S_T0, S_T1))
        a("s_mul_i32 s%d, s%d, 3" % (S_T0, S_T0))
        a("s_add_u32 s%d, s%d, s%d" % (S_T0, S_T0, S_W))
        a("s_lshl_b32 s%d, s%d, 10" % (S_T0, S_T0))
        a("s_add_u32 s%d, s%d, 0x%x" % (S_T0, S_T0, WS_Z2N))
        a("v_lshlrev_b32 v8, 4, v%d" % V_LANE)
        for st in range(2):
            for Q in range(2):
                D = self.C_ACC + 16 * st + 8 * Q
                o = 48 + (st * 2 + Q) * 4
                for p in range(4):
                    a("v_cvt_pk_bf16_f32 v%d, v%d, v%d" % (o + p, D + 2 * p, D + 2 * p + 1))
                a("s_add_u32 s%d, s%d, %d" % (S_T1, S_T0, (2 * st + Q) * 3072))
                a("buffer_store_dwordx4 v[%d:%d], v8, s[%d:%d], s%d offen sc1" % (o, o + 3, SRD_WS, SRD_WS + 3, S_T1))

    def zero_acc(self):
        for i in range(32): self.a("v_mov_b32 v%d, 0" % (self.C_ACC + i))

    def p1_compute(self):
        a = self.a
        a("s_cmp_eq_u32 s%d, 3" % S_W)
        a("s_cbranch_scc1 L_c3")
        self.c_setup(False)
        a("s_mov_b32 s%d, 0" % S_C)
        a("s_mov_b32 s%d, %d" % (S_SLOT, SLOT))
        a("s_mov_b32 s%d, 0" % S_PASS)
        a("s_waitcnt lgkmcnt(0)")
        a("s_barrier")
        if "nopf" not in self.exp: self.prefetch_b()
        self.stamp(1)
        a.label("L_pass")
        self.c_loop(False)
        a("s_cmp_lg_u32 s%d, 0" % S_PASS)
        a("s_cbranch_scc1 L_passB_done")
        self.stamp(2)
        if "nopf" not in self.exp: self.prefetch_wsp()
        self.gelu_epilogue(self.C_Z2P)
        self.stats2_partial(self.C_Z2P)
        a("s_barrier")
        a("v_mov_b32 v6, 0")
        a("buffer_load_dword a8, v6, s[%d:%d], 0 offen sc1" % (SRD_DBG, SRD_DBG + 3))
        if "nopf" not in self.exp: self.prefetch_wout()
        self.stamp(3)
        a("s_mov_b32 s%d, 1" % S_PASS)
        a("s_branch L_pass")
        a.label("L_passB_done")
        self.stamp(4)
        self.gelu_epilogue(self.C_Z1P)
        a("s_barrier")
        self.stamp(5)
        self.z2n_publish()
        a("s_branch L_c_join")
        a.label("L_c3")
        self.c_setup(True)
        a("s_mov_b32 s%d, 0" % S_C)
        a("s_mov_b32 s%d, 0" % S_SLOT)
        a("s_mov_b32 s%d, 0" % S_PASS)
        a("s_waitcnt lgkmcnt(0)")
        a("s_barrier")
        if "nopf" not in self.exp: self.prefetch_b()
        a.label("L_pass3")
        self.c_loop(True)
        a("s_cmp_lg_u32 s%d, 0" % S_PASS)
        a("s_cbranch_scc1 L_passB3_done")
        if "nopf" not in self.exp: self.prefetch_wsp()
        self.dft_store(0)
        a("s_barrier")
        a("v_mov_b32 v6, 0")
        a("buffer_load_dword a8, v6, s[%d:%d], 0 offen sc1" % (SRD_DBG, SRD_DBG + 3))
        if "nopf" not in self.exp: self.prefetch_wout()
        a("s_mov_b32 s%d, 1" % S_PASS)
        a("s_branch L_pass3")
        a.label("L_passB3_done")
        self.dft_store(1)
        a("s_waitcnt vmcnt(0)")
        a("v_accvgpr_read_b32 v39, a8")
        self.nonce_from(39)
        self.flag_store(1, 3)
        a("s_barrier")
        a.label("L_c_join")

    def fix_x_after_pass(self):
        a = self.a
        a("v_subrev_u32 v%d, 8192, v%d" % (self.C_XA, self.C_XA))
        a("v_subrev_u32 v%d, 8192, v%d" % (self.C_XA + 1, self.C_XA + 1))

    def capture(self, fn):
        save = self.a
        tmp = Asm(); tmp.uid = save.uid + 1000
        self.a = tmp
        fn()
        self.a = save
        save.uid = tmp.uid
        return [i.text for i in tmp.ins]

    def h_loop(self, k0):
        a = self.a
        consts = self.capture(self.fft_consts) if (k0 == 8 and "nofft" not in self.exp) else []
        per = (len(consts) + 7) // 8
        for k in range(k0, k0 + 8):
            if k + 1 <= 15 and "hnowait" not in self.exp:
                younger = 4 * (min(k + 3, 15) - (k + 1))
                a("s_waitcnt vmcnt(%d)" % younger)
            a("s_barrier")
            if k + 4 <= 15: self.dma_chunk(k + 4)
            if k == 9:
                a("s_cmp_lg_u32 s%d, 0" % S_HW)
                a("s_cbranch_scc1 L_h_nf0")
                a("s_waitcnt vmcnt(8)")
                self.flag_store(0)
                a.label("L_h_nf0")
            if consts:
                piece = consts[(k - k0) * per:(k - k0 + 1) * per]
                lab = a.newlabel("fc")
                a("s_cmp_lt_u32 s%d, 2" % S_HW)
                a("s_cbranch_scc1 %s" % lab)
                for t in piece: a(t)
                a.label(lab)

    def stats2_publish(self):
        a = self.a
        E = 16
        a("v_lshlrev_b32 v8, 3, v%d" % V_JL)
        a("v_add_u32 v8, %d, v8" % LDS_T4)
        for w in range(3):
            for st in range(2):
                d = E + w * 4 + st * 2
                a("ds_read_b64 v[%d:%d], v8 offset:%d" % (d, d + 1, w * 512 + st * 256))
        a("s_waitcnt lgkmcnt(0)")
        for w in range(1, 3):
            for st in range(2):
                a("v_pk_add_f32 v[%d:%d], v[%d:%d], v[%d:%d]" % (E + st * 2, E + st * 2 + 1, E + st * 2, E + st * 2 + 1, E + w * 4 + st * 2, E + w * 4 + st * 2 + 1))
        a("s_lshl_b32 s%d, s%d, 3" % (S_T0, S_MB))
        a("s_add_u32 s%d, s%d, s%d" % (S_T0, S_T0, S_J))
        a("s_lshl_b32 s%d, s%d, 9" % (S_T0, S_T0))
        a("s_add_u32 s%d, s%d, 0x%x" % (S_T0, S_T0, WS_STATS))
        a("v_lshlrev_b32 v8, 4, v%d" % V_JL)
        a("s_mov_b32 exec_hi, 0")
        a("buffer_store_dwordx4 v[%d:%d], v8, s[%d:%d], s%d offen sc1" % (E, E + 3, SRD_WS, SRD_WS + 3, S_T0))
        a("s_mov_b64 exec, -1")

    def stats2_consume(self):
        a = self.a
        E = 16
        a("v_lshlrev_b32 v8, 5, v%d" % V_LANE)
        a("v_add_u32 v8, s%d, v8" % S_MB)
        a("v_lshlrev_b32 v8, 7, v8")
        self.poll_flags(8, 8)
        a("s_lshl_b32 s%d, s%d, 12" % (S_T0, S_MB))
        a("s_add_u32 s%d, s%d, 0x%x" % (S_T0, S_T0, WS_STATS))
        a("v_lshlrev_b32 v8, 4, v%d" % V_JL)
        for jj in range(8):
            a("buffer_load_dwordx4 v[%d:%d], v8, s[%d:%d], s%d offen offset:%d sc1" % (E + 4 * jj, E + 3 + 4 * jj, SRD_WS, SRD_WS + 3, S_T0, jj * 512))
        a("s_waitcnt vmcnt(0)")
        for jj in range(1, 8):
            for q in range(2):
                a("v_pk_add_f32 v[%d:%d], v[%d:%d], v[%d:%d]" % (E + 2 * q, E + 1 + 2 * q, E + 2 * q, E + 1 + 2 * q, E + 4 * jj + 2 * q, E + 1 + 4 * jj + 2 * q))
        for st in range(2):
            self.mean_rstd(E + 2 * st, E + 1 + 2 * st, 688, E + 4 + 2 * st, E + 5 + 2 * st, E + 10)
        a("v_lshlrev_b32 v8, 3, v%d" % V_JL)
        a("v_add_u32 v8, %d, v8" % LDS_T5)
        a("ds_write_b64 v8, v[%d:%d]" % (E + 4, E + 5))
        a("ds_write_b64 v8, v[%d:%d] offset:256" % (E + 6, E + 7))
        a("s_waitcnt lgkmcnt(0)")

    def angles(self, n_list, tq, base, dst):
        a = self.a
        for idx, n in enumerate(n_list):
            if n == 0: a("v_mov_b32 v%d, v%d" % (dst + idx, base))
            else: a("v_fmamk_f32 v%d, v%d, 0x%x, v%d" % (dst + idx, tq, f2u(float(n)), base))

    H_T1F, H_8H = 46, 47
    def fft_consts(self):
        a = self.a
        T = 16
        a("v_bfe_u32 v%d, v%d, 2, 1" % (T, V_JL))
        a("v_lshlrev_b32 v%d, 4, v%d" % (T, T))
        a("v_bfe_u32 v%d, v%d, 3, 2" % (T + 1, V_JL))
        a("v_lshl_or_b32 v%d, v%d, 2, v%d" % (T, T + 1, T))
        a("v_and_b32 v%d, 3, v%d" % (T + 1, V_JL))
        a("v_or_b32 v%d, v%d, v%d" % (T, T, T + 1))
        a("v_cvt_f32_u32 v%d, v%d" % (self.H_T1F, T))
        a("v_cvt_f32_u32 v%d, v%d" % (self.H_8H, V_H))
        a("v_mul_f32 v%d, 0x%x, v%d" % (self.H_8H, f2u(8.0), self.H_8H))
        a("v_mul_f32 v%d, 0x%x, v%d" % (T + 2, f2u(1.0 / 32), self.H_T1F))
        a("v_mul_f32 v%d, v%d, v%d" % (T + 3, T + 2, self.H_8H))
        A = T + 4; C = T + 12; S = T + 20
        for ks in range(2):
            self.angles([16 * ks + i for i in range(8)], T + 2, T + 3, A)
            for i in range(8): a("v_fract_f32 v%d, v%d" % (A + i, A + i))
            for i in range(8):
                a("v_cos_f32 v%d, v%d" % (C + i, A + i))
                a("v_sin_f32 v%d, v%d" % (S + i, A + i))
            for p in range(4):
                a("v_cvt_pk_bf16_f32 v%d, v%d, v%d" % (A + 0, C + 2 * p, C + 2 * p + 1))
                a("v_cvt_pk_bf16_f32 v%d, -v%d, -v%d" % (A + 1, S + 2 * p, S + 2 * p + 1))
                a("v_cvt_pk_bf16_f32 v%d, v%d, v%d" % (A + 2, S + 2 * p, S + 2 * p + 1))
                a("v_accvgpr_write_b32 a%d, v%d" % (4 * ks + p, A + 0))
                a("v_accvgpr_write_b32 a%d, v%d" % (8 + 4 * ks + p, A + 1))
                a("v_accvgpr_write_b32 a%d, v%d" % (16 + 4 * ks + p, A + 2))
        a("v_accvgpr_write_b32 a60, v%d" % self.H_T1F)
        a("v_accvgpr_write_b32 a61, v%d" % self.H_8H)
        a("s_sub_u32 s3, s%d, 2" % S_HW)
        a("s_lshl_b32 s3, s3, 5")
        a("v_add_u32 v%d, s3, v%d" % (T + 2, V_JL))
        a("v_cvt_f32_u32 v%d, v%d" % (T + 2, T + 2))
        a("v_mul_f32 v%d, 0x%x, v%d" % (T + 2, f2u(1.0 / 64), T + 2))
        a("v_mul_f32 v%d, v%d, v%d" % (T + 3, T + 2, self.H_8H))
        for kt in range(2):
            for kp in range(2):
                self.angles([32 * kt + 16 * kp + i for i in range(8)], T + 2, T + 3, A)
                for i in range(8): a("v_fract_f32 v%d, v%d" % (A + i, A + i))
                for i in range(8):
                    a("v_cos_f32 v%d, v%d" % (C + i, A + i))
                    a("v_sin_f32 v%d, v%d" % (S + i, A + i))
                for p in range(4):
                    a("v_cvt_pk_bf16_f32 v%d, v%d, v%d" % (A + 0, C + 2 * p, C + 2 * p + 1))
                    a("v_cvt_pk_bf16_f32 v%d, v%d, v%d" % (A + 1, S + 2 * p, S + 2 * p + 1))
                    a("v_accvgpr_write_b32 a%d, v%d" % (24 + 16 * kt + 4 * kp + p, A + 0))
                    a("v_accvgpr_write_b32 a%d, v%d" % (24 + 16 * kt + 8 + 4 * kp + p, A + 1))

    def p1_helper(self):
        a = self.a
        a("s_mov_b32 s%d, 0" % S_C)
        a("v_mov_b32 v6, 0")
        a("buffer_load_dword v%d, v6, s[%d:%d], 0 offen sc1" % (self.V_NON, SRD_DBG, SRD_DBG + 3))
        a("s_waitcnt vmcnt(13) lgkmcnt(0)")
        a("s_barrier")
        self.h_loop(0)
        self.nonce_from(self.V_NON)
        a("s_barrier")
        a("s_cmp_lg_u32 s%d, 0" % S_HW)
        a("s_cbranch_scc1 L_h_nopub")
        self.stats2_publish()
        a.label("L_h_nopub")
        self.h_loop(8)
        a("s_cmp_lg_u32 s%d, 1" % S_HW)
        a("s_cbranch_scc1 L_h_nocons")
        self.stats2_consume()
        a.label("L_h_nocons")
        a("s_barrier")

    G_B = 16
    G_VB = 10
    G_VZ = 32
    G_L16 = 35
    G_BS = 36
    G_RV = 40
    def ring_reg(self, f):
        if f < 8: return "a[%d:%d]" % (96 + 4 * f, 96 + 4 * f + 3)
        r = self.G_RV + 4 * (f - 8)
        return "v[%d:%d]" % (r, r + 3)

    def g_compute(self):
        a = self.a
        a("v_lshlrev_b32 v%d, 4, v%d" % (self.G_L16, V_LANE))
        a("v_and_b32 v5, 15, v%d" % V_SIG)
        a("v_xor_b32 v5, v5, v%d" % V_H)
        a("v_lshlrev_b32 v5, 4, v5")
        a("v_lshl_add_u32 v5, v%d, 8, v5" % V_SIG)
        a("s_lshl_b32 s3, s%d, 15" % S_W)
        a("v_add_u32 v104, s3, v5")
        for k in range(1, 8): a("v_xor_b32 v%d, %d, v104" % (104 + k, k * 32))
        a("s_sub_u32 s%d, s%d, 64" % (S_T2, S_WID))
        for tau in range(3):
            a("s_add_u32 s%d, s%d, %d" % (S_T0, S_W, tau))
            a("s_cmp_ge_u32 s%d, 3" % S_T0)
            a("s_cselect_b32 s%d, 3, 0" % S_T1)
            a("s_sub_u32 s%d, s%d, s%d" % (S_T0, S_T0, S_T1))
            a("s_lshl_b32 s%d, s%d, 10" % (S_T1, S_T0))
            a("v_add_u32 v5, s%d, v%d" % (S_T1, self.G_L16))
            a("v_mov_b32 v6, 0x%x" % OOB)
            a("v_cmp_le_u32 vcc, s%d, v%d" % (S_T2, V_SIG))
            a("s_cmp_eq_u32 s%d, 2" % S_T0)
            a("s_cselect_b64 s[%d:%d], vcc, 0" % (S_EX, S_EX + 1))
            a("v_cndmask_b32 v%d, v5, v6, s[%d:%d]" % (self.G_VZ + tau, S_EX, S_EX + 1))
        a("s_lshl_b32 s%d, s%d, 7" % (S_T0, S_MB))
        a("v_lshlrev_b32 v5, 1, v%d" % V_SIG)
        a("buffer_load_ushort v%d, v5, s[%d:%d], s%d offen" % (self.G_BS, SRD_BSP, SRD_BSP + 3, S_T0))
        a("buffer_load_ushort v%d, v5, s[%d:%d], s%d offen offset:64" % (self.G_BS + 1, SRD_BSP, SRD_BSP + 3, S_T0))
        a("s_lshl_b32 s3, s%d, 5" % S_J)
        a("s_lshl_b32 s%d, s%d, 3" % (S_T0, S_W))
        a("s_add_u32 s3, s3, s%d" % S_T0)
        a("v_add_u32 v38, s3, v%d" % V_LANE)
        a("v_lshlrev_b32 v38, 7, v38")
        a("v_add_u32 v38, 0x%x, v38" % (WS_FLAG + 256 * 128))
        a("s_lshl_b32 s%d, s%d, 7" % (S_B0, S_J))
        a("s_lshl_b32 s3, s%d, 5" % S_W)
        a("s_add_u32 s%d, s%d, s3" % (S_B0, S_B0))
        a("s_add_u32 s%d, s%d, s%d" % (S_RHO, S_MB, S_J))
        if "norot" in self.exp: a("s_mov_b32 s%d, 0" % S_RHO)
        for cc in range(4):
            a("s_add_u32 s3, s%d, %d" % (S_RHO, cc))
            a("s_and_b32 s3, s3, 3")
            a("s_lshl_b32 s3, s3, 3")
            a("s_add_u32 s3, s3, s%d" % S_B0)
            a("s_mul_i32 s3, s3, 3072")
            a("s_add_u32 s%d, s3, 0x%x" % (67 + cc, WS_Z2N))
        a("s_waitcnt vmcnt(0)")
        a("s_cmp_eq_u32 s%d, 3" % S_W)
        a("s_cbranch_scc1 L_g_nf")
        a("v_accvgpr_read_b32 v39, a8")
        self.nonce_from(39)
        self.flag_store(1, 0, S_W)
        a.label("L_g_nf")
        self.stamp(7)
        self.poll_flags_n(38, 8, 3, 16)
        self.stamp(8)
        self.stamp(26)
        vq = VQ(a)
        def zload(n):
            a("s_add_u32 s%d, s%d, %d" % (S_T0, 67 + n // 8, (n % 8) * 3072))
            for tau in range(3):
                f = (n % 8) * 3 + tau
                a("buffer_load_dwordx4 %s, v%d, s[%d:%d], s%d offen %s" % (self.ring_reg(f), self.G_VZ + tau, SRD_WS, SRD_WS + 3, S_T0, "" if "gplain" in self.exp else "sc1"))
                vq.issue(("z", n))
        for n in range(8): zload(n)
        B = self.G_B
        SY_FREE = LDS_SY + 0
        SY_LAND = LDS_SY + 16
        a("s_lshl_b32 s3, s%d, 2" % S_W)
        a("s_add_u32 s3, s3, %d" % LDS_SY)
        a("v_mov_b32 v14, s3")
        def land_check(cnt):
            lab = a.newlabel("ld")
            a("s_mov_b32 s%d, 0" % S_SPIN)
            a.label(lab)
            a("ds_read_b32 v15, v14 offset:16")
            a("s_waitcnt lgkmcnt(0)")
            a("v_readfirstlane_b32 s%d, v15" % S_T1)
            a("s_add_u32 s%d, s%d, 1" % (S_SPIN, S_SPIN))
            a("s_cmp_gt_u32 s%d, 0x100000" % S_SPIN)
            a("s_cbranch_scc1 %s_x" % lab)
            a("s_cmp_lt_u32 s%d, %d" % (S_T1, cnt))
            a("s_cbranch_scc1 %s" % lab)
            a.label(lab + "_x")
        def bread(n, st):
            cc, k = divmod(n, 8)
            r = B + (n & 1) * 8 + st * 4
            return "ds_read_b128 v[%d:%d], v%d offset:%d" % (r, r + 3, 104 + k, (cc & 1) * 16384 + st * 8192)
        land_check(2)
        a(bread(0, 0)); a(bread(0, 1))
        for n in range(32):
            cc, k = divmod(n, 8)
            buf = n & 1
            vq.wait(("z", n))
            nxt = n + 1 < 32
            if nxt and (n + 1) % 8 == 0 and (n + 1) // 8 >= 2 and "gnoland" not in self.exp:
                a("s_waitcnt lgkmcnt(0)")
                land_check((n + 1) // 8 + 1)
            else:
                a("s_waitcnt lgkmcnt(0)")
            fill = []
            if nxt: fill += [bread(n + 1, 0), bread(n + 1, 1)]
            zl = []
            if n + 8 < 32:
                zl.append("s_add_u32 s%d, s%d, %d" % (S_T0, 67 + (n + 8) // 8, ((n + 8) % 8) * 3072))
            mi = 0
            for tau in range(3):
                for st in range(2):
                    D = (tau * 2 + st) * 16
                    Br = B + buf * 8 + st * 4
                    cc_ = "0" if n == 0 else "a[%d:%d]" % (D, D + 15)
                    a("v_mfma_f32_32x32x16_bf16 a[%d:%d], %s, v[%d:%d], %s" % (D, D + 15, self.ring_reg((n % 8) * 3 + tau), Br, Br + 3, cc_))
                    if mi == 0:
                        for f in fill: a(f)
                        for f in zl: a(f)
                    if st == 1 and n + 8 < 32 and "gnoz" not in self.exp:
                        f = (n % 8) * 3 + tau
                        a("buffer_load_dwordx4 %s, v%d, s[%d:%d], s%d offen %s" % (self.ring_reg(f), self.G_VZ + tau, SRD_WS, SRD_WS + 3, S_T0, "" if "gplain" in self.exp else "sc1"))
                        vq.issue(("z", n + 8))
                    mi += 1
            if k == 7 and cc < 2:
                a("v_mov_b32 v15, %d" % (cc + 1))
                a("ds_write_b32 v14, v15")
        self.stamp(27)
        self.stamp(10)
        self.g_reduce()

    def wsp_dma16(self, cc, sbase, slds):
        a = self.a
        for q in range(16):
            a("s_add_u32 s%d, s%d, %d" % (S_T0, 67 + cc, q * 4 * 4096))
            a("s_add_u32 m0, s%d, %d" % (slds, (cc & 1) * 16384 + q * 1024))
            a("buffer_load_dwordx4 v%d, s[%d:%d], s%d offen lds" % (16 + (q & 3), SRD_WSP, SRD_WSP + 3, S_T0))

    def g_helper(self):
        a = self.a
        L = V_LANE
        a("v_lshrrev_b32 v5, 4, v%d" % L)
        a("v_and_b32 v6, 15, v%d" % L)
        for qq in range(4):
            a("v_add_u32 v7, %d, v5" % (4 * qq))
            a("v_xor_b32 v7, v7, v6")
            a("v_lshlrev_b32 v7, 4, v7")
            a("v_lshl_add_u32 v%d, v5, 12, v7" % (16 + qq))
        a("s_lshl_b32 s%d, s%d, 18" % (S_B0, S_MB))
        a("s_lshl_b32 s3, s%d, 10" % S_HW)
        a("s_add_u32 s%d, s%d, s3" % (S_B0, S_B0))
        a("s_add_u32 s%d, s%d, s%d" % (S_RHO, S_MB, S_J))
        if "norot" in self.exp: a("s_mov_b32 s%d, 0" % S_RHO)
        for cc in range(4):
            a("s_add_u32 s3, s%d, %d" % (S_RHO, cc))
            a("s_and_b32 s3, s3, 3")
            a("s_lshl_b32 s3, s3, 8")
            a("s_add_u32 s%d, s3, s%d" % (67 + cc, S_B0))
        a("s_lshl_b32 s%d, s%d, 15" % (S_T3, S_HW))
        for c in range(2): self.wsp_dma16(c, S_B0, S_T3)
        a("s_cmp_lt_u32 s%d, 2" % S_HW)
        a("s_cbranch_scc1 L_gh_nofft")
        a.label("L_gh_nofft")
        a("s_waitcnt vmcnt(0)")
        a("s_lshl_b32 s3, s%d, 2" % S_HW)
        a("s_add_u32 s%d, s3, %d" % (S_T2, LDS_SY))
        a("v_mov_b32 v8, s%d" % S_T2)
        a("v_mov_b32 v6, 2")
        a("ds_write_b32 v8, v6 offset:16")
        a("s_cmp_lt_u32 s%d, 2" % S_HW)
        a("s_cbranch_scc1 L_gh_noy")
        if "nofft" not in self.exp: self.fft()
        a("s_waitcnt vmcnt(0)")
        a("s_sub_u32 s%d, s%d, 2" % (S_T1, S_HW))
        self.flag_store(3, 0, S_T1)
        a.label("L_gh_noy")
        self.stamp(19)
        a("s_lshl_b32 s3, s%d, 2" % S_HW)
        a("s_add_u32 s3, s3, %d" % LDS_SY)
        a("v_mov_b32 v12, s3")
        a("v_lshrrev_b32 v5, 4, v%d" % L)
        a("v_and_b32 v6, 15, v%d" % L)
        for qq in range(4):
            a("v_add_u32 v7, %d, v5" % (4 * qq))
            a("v_xor_b32 v7, v7, v6")
            a("v_lshlrev_b32 v7, 4, v7")
            a("v_lshl_add_u32 v%d, v5, 12, v7" % (16 + qq))
        for cc in ((2, 3) if "nostage" not in self.exp else ()):
            for q in range(16):
                r = (cc - 2) * 64 + 4 * q
                a("s_add_u32 s%d, s%d, %d" % (S_T0, 67 + cc, q * 4 * 4096))
                a("buffer_load_dwordx4 a[%d:%d], v%d, s[%d:%d], s%d offen" % (r, r + 3, 16 + (q & 3), SRD_WSP, SRD_WSP + 3, S_T0))
        self.stamp(20)
        a("v_lshlrev_b32 v13, 4, v%d" % L)
        a("s_lshl_b32 s3, s%d, 15" % S_HW)
        a("v_add_u32 v13, s3, v13")
        for cc in (2, 3):
            lab = a.newlabel("fr")
            a("s_mov_b32 s%d, 0" % S_SPIN)
            a.label(lab)
            a("ds_read_b32 v5, v12")
            a("s_waitcnt lgkmcnt(0)")
            a("v_readfirstlane_b32 s%d, v5" % S_T0)
            a("s_add_u32 s%d, s%d, 1" % (S_SPIN, S_SPIN))
            a("s_cmp_gt_u32 s%d, 0x100000" % S_SPIN)
            a("s_cbranch_scc1 %s_x" % lab)
            a("s_cmp_lt_u32 s%d, %d" % (S_T0, cc - 1))
            a("s_cbranch_scc0 %s_x" % lab)
            a("s_sleep 1")
            a("s_branch %s" % lab)
            a.label(lab + "_x")
            self.stamp(21 if cc == 2 else 23)
            a("s_waitcnt vmcnt(%d)" % (16 if cc == 2 else 0))
            if cc == 2: self.stamp(22)
            for q in range(16):
                r = (cc - 2) * 64 + 4 * q
                a("ds_write_b128 v13, a[%d:%d] offset:%d" % (r, r + 3, (cc & 1) * 16384 + q * 1024))
            a("v_mov_b32 v6, %d" % (cc + 1))
            a("s_waitcnt lgkmcnt(0)")
            a("ds_write_b32 v12, v6 offset:16")
        self.stamp(9)
        a("s_barrier")
        a("v_lshrrev_b32 v5, 3, v%d" % L)
        a("v_and_b32 v6, 7, v%d" % L)
        a("v_bfe_u32 v7, v%d, 4, 1" % L)
        a("v_lshlrev_b32 v7, 2, v7")
        a("v_xor_b32 v6, v6, v7")
        a("v_lshlrev_b32 v6, 4, v6")
        a("v_lshl_add_u32 v9, v5, 10, v6")
        a("s_lshl_b32 s3, s%d, 7" % S_J)
        a("v_add_u32 v9, s3, v9")
        a("s_add_u32 s3, s%d, s%d" % (S_HW, S_MB))
        a("s_and_b32 s3, s3, 3")
        a("s_mul_i32 s%d, s3, %d" % (S_T1, 22 * 8192))
        a("s_mul_i32 s%d, s3, %d" % (S_T2, 22 * 1024))
        for q in range(22):
            if q == 8: a("s_barrier")
            a("s_add_u32 m0, s%d, %d" % (S_T2, LDS_WO + q * 1024))
            a("s_add_u32 s%d, s%d, %d" % (S_T0, S_T1, q * 8192))
            a("buffer_load_dwordx4 v9, s[%d:%d], s%d offen lds" % (SRD_WOUT, SRD_WOUT + 3, S_T0))
        a("s_waitcnt vmcnt(0)")
        a("s_barrier")
        a("s_barrier")

    def fft(self):
        a = self.a
        a("v_accvgpr_read_b32 v10, a60")
        a("v_accvgpr_read_b32 v11, a61")
        a("s_lshl_b32 s3, s%d, 5" % S_J)
        a("v_add_u32 v12, s3, v%d" % V_LANE)
        a("v_lshlrev_b32 v12, 7, v12")
        a("v_add_u32 v12, 0x%x, v12" % (WS_FLAG + 256 * 128 + 12))
        self.stamp(16)
        self.poll_flags_n(12, 32, 1, 16)
        self.stamp(17)
        a("v_lshlrev_b32 v13, 4, v%d" % V_LANE)
        a("s_lshl_b32 s3, s%d, 13" % S_L)
        a("s_add_u32 s3, s3, 0x%x" % WS_AB)
        X = 32
        for i in range(8):
            a("buffer_load_dwordx4 v[%d:%d], v13, s[%d:%d], s3 offen sc1" % (X + 4 * i, X + 4 * i + 3, SRD_WS, SRD_WS + 3))
            if i < 7: a("s_add_u32 s3, s3, 1024")
        a("s_sub_u32 s%d, s%d, 2" % (S_T1, S_HW))
        a("s_lshl_b32 s%d, s%d, 13" % (S_T2, S_T1))
        a("s_add_u32 s%d, s%d, %d" % (S_T2, S_T2, LDS_FX))
        a("v_add_u32 v14, s%d, v13" % S_T2)
        a("v_bfe_u32 v7, v%d, 2, 2" % V_LANE)
        a("v_lshl_add_u32 v7, v%d, 3, v7" % V_H)
        a("v_lshlrev_b32 v7, 7, v7")
        a("v_bfe_u32 v8, v%d, 4, 1" % V_LANE)
        a("v_lshlrev_b32 v8, 5, v8")
        a("v_and_b32 v9, 1, v%d" % V_LANE)
        a("v_lshl_add_u32 v8, v9, 4, v8")
        a("v_bfe_u32 v9, v%d, 1, 1" % V_LANE)
        a("v_lshl_add_u32 v8, v9, 3, v8")
        a("v_add_u32 v7, v7, v8")
        a("v_add_u32 v15, s%d, v7" % S_T2)
        a("s_waitcnt vmcnt(0)")
        self.stamp(18)
        for i in range(8):
            a("ds_write_b128 v14, v[%d:%d] offset:%d" % (X + 4 * i, X + 4 * i + 3, i * 1024))
        URE, UIM, A1, TC, TS, A2 = 32, 48, 16, 64, 80, 104
        D2 = 64
        def mm(D, A, B, first, dfile="v", afile="v", bfile="a"):
            a("v_mfma_f32_32x32x16_bf16 %s[%d:%d], %s[%d:%d], %s[%d:%d], %s" % (dfile, D, D + 15, afile, A, A + 3, bfile, B, B + 3, "0" if first else "%s[%d:%d]" % (dfile, D, D + 15)))
        for kt in range(2):
            a("v_mul_f32 v12, 0x%x, v10" % (f2u(1.0 / 2048)))
            a("v_mul_f32 v13, v12, v11")
            if kt == 0: a("s_waitcnt lgkmcnt(0)")
            for ks in range(4):
                for q in range(2):
                    r = A1 + 4 * ks + 2 * q
                    a("ds_read_b64_tr_b16 v[%d:%d], v15 offset:%d" % (r, r + 1, (ks >> 1) * 4096 + (ks & 1) * 2048 + q * 512 + kt * 64))
            for half in range(2):
                self.angles([32 * kt + 16 * half + i for i in range(8)], 12, 13, 120)
                for i in range(8):
                    a("v_cos_f32 v%d, v%d" % (TC + 8 * half + i, 120 + i))
                    a("v_sin_f32 v%d, v%d" % (TS + 8 * half + i, 120 + i))
            a("s_waitcnt lgkmcnt(0)")
            FRE, FIM, NFIM = 0, 8, 16
            mm(URE, A1, FRE, True); mm(UIM, A1, FIM, True)
            mm(URE, A1 + 4, FRE + 4, False); mm(UIM, A1 + 4, FIM + 4, False)
            mm(URE, A1 + 8, NFIM, False); mm(UIM, A1 + 8, FRE, False)
            mm(URE, A1 + 12, NFIM + 4, False); mm(UIM, A1 + 12, FRE + 4, False)
            for p in range(8):
                re, im, c, s_ = URE + 2 * p, UIM + 2 * p, TC + 2 * p, TS + 2 * p
                t0 = 96 + (p % 2) * 4
                a("v_pk_mul_f32 v[%d:%d], v[%d:%d], v[%d:%d]" % (t0, t0 + 1, im, im + 1, s_, s_ + 1))
                a("v_pk_mul_f32 v[%d:%d], v[%d:%d], v[%d:%d]" % (t0 + 2, t0 + 3, re, re + 1, s_, s_ + 1))
                a("v_pk_fma_f32 v[%d:%d], v[%d:%d], v[%d:%d], v[%d:%d]" % (t0, t0 + 1, re, re + 1, c, c + 1, t0, t0 + 1))
                a("v_pk_fma_f32 v[%d:%d], v[%d:%d], v[%d:%d], v[%d:%d] neg_lo:[0,0,1] neg_hi:[0,0,1]" % (t0 + 2, t0 + 3, im, im + 1, c, c + 1, t0 + 2, t0 + 3))
                a("v_cvt_pk_bf16_f32 v%d, v%d, v%d" % (A2 + p, t0, t0 + 1))
                a("v_cvt_pk_bf16_f32 v%d, v%d, v%d" % (A2 + 8 + p, t0 + 2, t0 + 3))
            G = 24 + 16 * kt
            mm(D2, A2, G, kt == 0, dfile="a"); mm(D2, A2 + 4, G + 4, False, dfile="a")
            mm(D2, A2 + 8, G + 8, False, dfile="a"); mm(D2, A2 + 12, G + 12, False, dfile="a")
        a("s_lshl_b32 s3, s%d, 12" % S_T1)
        a("s_lshl_b32 s%d, s%d, 13" % (S_T0, S_L))
        a("s_add_u32 s3, s3, s%d" % S_T0)
        a("s_add_u32 s3, s3, 0x%x" % WS_YT)
        a("v_lshlrev_b32 v6, 7, v%d" % V_JL)
        a("v_lshl_add_u32 v6, v%d, 6, v6" % V_H)
        for q in range(4):
            a("buffer_store_dwordx4 a[%d:%d], v6, s[%d:%d], s3 offen offset:%d sc1" % (D2 + 4 * q, D2 + 4 * q + 3, SRD_WS, SRD_WS + 3, q * 16))

    def g_reduce(self):
        a = self.a
        L16 = self.G_L16
        a("s_barrier")
        for tau in (1, 2, 0):
            if tau == 0:
                a("s_cmp_lg_u32 s%d, 3" % S_W)
                a("s_cbranch_scc1 L_exp_done")
            a("s_add_u32 s%d, s%d, %d" % (S_T0, S_W, tau))
            a("s_cmp_ge_u32 s%d, 3" % S_T0)
            a("s_cselect_b32 s%d, 3, 0" % S_T1)
            a("s_sub_u32 s%d, s%d, s%d" % (S_T0, S_T0, S_T1))
            a("s_sub_u32 s%d, s%d, s%d" % (S_T1, S_W, S_T0))
            a("s_sub_u32 s%d, s%d, 1" % (S_T1, S_T1))
            a("s_and_b32 s%d, s%d, 3" % (S_T1, S_T1))
            a("s_mul_i32 s%d, s%d, 3" % (S_T0, S_T0))
            a("s_add_u32 s%d, s%d, s%d" % (S_T0, S_T0, S_T1))
            a("s_lshl_b32 s%d, s%d, 13" % (S_T0, S_T0))
            a("v_add_u32 v5, s%d, v%d" % (S_T0, L16))
            for st in range(2):
                for q in range(4):
                    r = (tau * 2 + st) * 16 + 4 * q
                    a("ds_write_b128 v5, a[%d:%d] offset:%d" % (r, r + 3, st * 4096 + q * 1024))
        a.label("L_exp_done")
        a("s_waitcnt lgkmcnt(0)")
        a("s_barrier")
        self.stamp(11)
        a("s_cmp_eq_u32 s%d, 3" % S_W)
        a("s_cbranch_scc1 L_h_done")
        G = 40
        I = 72
        a("s_mul_i32 s%d, s%d, %d" % (S_T0, S_W, 3 * 8192))
        a("v_add_u32 v5, s%d, v%d" % (S_T0, L16))
        for st in range(2):
            for q in range(4):
                r = G + st * 16 + 4 * q
                a("ds_read_b128 v[%d:%d], v5 offset:%d" % (r, r + 3, 0 * 8192 + st * 4096 + q * 1024))
        for st in range(2):
            for q in range(4):
                r = I + st * 16 + 4 * q
                a("ds_read_b128 v[%d:%d], v5 offset:%d" % (r, r + 3, 1 * 8192 + st * 4096 + q * 1024))
        a("s_waitcnt lgkmcnt(0)")
        for p in range(16): a("v_pk_add_f32 v[%d:%d], v[%d:%d], v[%d:%d]" % (G + 2 * p, G + 2 * p + 1, G + 2 * p, G + 2 * p + 1, I + 2 * p, I + 2 * p + 1))
        for st in range(2):
            for q in range(4):
                r = I + st * 16 + 4 * q
                a("ds_read_b128 v[%d:%d], v5 offset:%d" % (r, r + 3, 2 * 8192 + st * 4096 + q * 1024))
        for i in range(0, 32, 8):
            for k in range(8): a("v_accvgpr_read_b32 v%d, a%d" % (16 + k, i + k))
            for p in range(4): a("v_pk_add_f32 v[%d:%d], v[%d:%d], v[%d:%d]" % (G + i + 2 * p, G + i + 2 * p + 1, G + i + 2 * p, G + i + 2 * p + 1, 16 + 2 * p, 16 + 2 * p + 1))
        a("s_waitcnt lgkmcnt(0)")
        for p in range(16): a("v_pk_add_f32 v[%d:%d], v[%d:%d], v[%d:%d]" % (G + 2 * p, G + 2 * p + 1, G + 2 * p, G + 2 * p + 1, I + 2 * p, I + 2 * p + 1))
        for st in range(2): a("v_lshlrev_b32 v%d, 16, v%d" % (self.G_BS + st, self.G_BS + st))
        for st in range(2):
            for r in range(8):
                src = self.C_Z1P + 8 * st + r
                g = G + 16 * st + 2 * r
                t = 16 + 2 * (r % 4)
                a("v_lshlrev_b32 v%d, 16, v%d" % (t, src))
                a("v_and_b32 v%d, 0xffff0000, v%d" % (t + 1, src))
                sel = "op_sel:[0,%d] op_sel_hi:[1,%d]" % (st, st)
                a("v_pk_add_f32 v[%d:%d], v[%d:%d], v[%d:%d] %s" % (g, g + 1, g, g + 1, self.G_BS, self.G_BS + 1, sel))
                a("v_pk_mul_f32 v[%d:%d], v[%d:%d], v[%d:%d]" % (g, g + 1, g, g + 1, t, t + 1))
                a("v_cvt_pk_bf16_f32 v%d, v%d, v%d" % (I + 8 * st + r, g, g + 1))
        a("s_mul_i32 s%d, s%d, 96" % (S_T0, S_MB))
        a("s_mul_i32 s%d, s%d, 6" % (S_T1, S_J))
        a("s_add_u32 s%d, s%d, s%d" % (S_T0, S_T0, S_T1))
        a("s_lshl_b32 s%d, s%d, 1" % (S_T1, S_W))
        a("s_add_u32 s%d, s%d, s%d" % (S_T0, S_T0, S_T1))
        a("s_lshl_b32 s%d, s%d, 10" % (S_T0, S_T0))
        a("s_add_u32 s%d, s%d, 0x%x" % (S_T0, S_T0, WS_H))
        for st in range(2):
            for Q in range(2):
                r = I + 8 * st + 4 * Q
                a("s_add_u32 s%d, s%d, %d" % (S_T1, S_T0, (st * 48 + Q) * 1024))
                a("buffer_store_dwordx4 v[%d:%d], v%d, s[%d:%d], s%d offen sc1" % (r, r + 3, L16, SRD_WS, SRD_WS + 3, S_T1))
        a("s_waitcnt vmcnt(0)")
        self.flag_store(2, 0, S_W)
        a.label("L_h_done")
        self.o_pre()
        a("s_barrier")
        self.stamp(12)

    def o_pre(self):
        a = self.a
        L16 = self.G_L16
        a("s_lshr_b32 s%d, s%d, 1" % (S_T0, S_W))
        a("s_lshl_b32 s3, s%d, 6" % S_J)
        a("s_lshl_b32 s%d, s%d, 5" % (S_T2, S_T0))
        a("s_add_u32 s%d, s3, s%d" % (S_T2, S_T2))
        a("s_lshl_b32 s3, s%d, 2" % S_T0)
        a("v_add_u32 v40, s3, v%d" % V_LANE)
        a("v_lshlrev_b32 v40, 5, v40")
        a("v_add_u32 v40, s%d, v40" % S_MB)
        a("v_lshlrev_b32 v40, 7, v40")
        a("v_add_u32 v40, 0x%x, v40" % (WS_FLAG + 2 * 256 * 128))
        a("v_add_u32 v5, s%d, v%d" % (S_T2, V_LANE))
        a("v_sub_u32 v6, 512, v5")
        a("v_cmp_lt_u32 vcc, 256, v5")
        a("v_cndmask_b32 v6, v5, v6, vcc")
        a("v_and_b32 v6, 255, v6")
        a("v_lshlrev_b32 v43, 7, v6")
        a("v_add_u32 v43, 0x%x, v43" % (WS_FLAG + 3 * 256 * 128))
        a("s_and_b32 s%d, s%d, 1" % (S_T1, S_W))
        a("s_lshl_b32 s3, s%d, 6" % S_MB)
        a("s_lshl_b32 s%d, s%d, 5" % (S_T3, S_T1))
        a("s_add_u32 s3, s3, s%d" % S_T3)
        a("v_add_u32 v41, s3, v%d" % V_SIG)
        a("v_lshlrev_b32 v42, 10, v41")
        a("v_lshl_add_u32 v42, v%d, 4, v42" % V_H)
        a("s_lshl_b32 s3, s%d, 1" % S_T2)
        a("v_add_u32 v42, s3, v42")
        XR = 44
        a("buffer_load_dwordx4 v[%d:%d], v42, s[%d:%d], 0 offen" % (XR, XR + 3, SRD_X, SRD_X + 3))
        a("buffer_load_dwordx4 v[%d:%d], v42, s[%d:%d], 0 offen offset:32" % (XR + 4, XR + 7, SRD_X, SRD_X + 3))
        a("v_bfe_u32 v5, v%d, 2, 2" % V_LANE)
        a("v_lshl_add_u32 v5, v%d, 3, v5" % V_H)
        a("v_lshlrev_b32 v5, 7, v5")
        a("v_bfe_u32 v6, v%d, 4, 1" % V_LANE)
        a("v_lshlrev_b32 v6, 1, v6")
        a("v_and_b32 v7, 1, v%d" % V_LANE)
        a("v_or_b32 v6, v6, v7")
        a("v_bfe_u32 v7, v%d, 3, 1" % V_LANE)
        a("v_lshlrev_b32 v7, 2, v7")
        a("v_xor_b32 v6, v6, v7")
        a("s_lshl_b32 s3, s%d, 2" % S_T0)
        a("v_xor_b32 v6, s3, v6")
        a("v_bfe_u32 v7, v%d, 1, 1" % V_LANE)
        a("v_lshlrev_b32 v7, 3, v7")
        a("v_add_u32 v5, v5, v7")
        a("s_mul_i32 s3, s%d, %d" % (S_T0, 352 * 128))
        a("s_add_u32 s3, s3, %d" % LDS_WO)
        a("v_add_u32 v5, s3, v5")
        WA = 52
        a("v_lshl_add_u32 v%d, v6, 4, v5" % WA)
        a("v_xor_b32 v6, 4, v6")
        a("v_lshl_add_u32 v%d, v6, 4, v5" % (WA + 1))
        a("s_cmp_eq_u32 s%d, 0" % S_T0)
        a("s_cselect_b32 s3, 8, 0")
        a("s_add_u32 s3, s3, 256")
        a("s_lshl_b32 s3, s3, 7")
        a("v_add_u32 v%d, s3, v%d" % (WA + 2, WA))
        a("v_add_u32 v%d, s3, v%d" % (WA + 3, WA + 1))
        a("v_lshlrev_b32 v5, 2, v41")
        a("v_sub_u32 v6, 2048, v41")
        a("v_and_b32 v6, 2047, v6")
        a("v_lshlrev_b32 v6, 2, v6")
        a("v_lshlrev_b32 v7, 3, v%d" % V_H)
        a("v_add_u32 v7, s%d, v7" % S_T2)
        a("v_lshl_add_u32 v8, v7, 13, v5")
        a("v_sub_u32 v9, %d, v7" % (512 - 23))
        a("v_lshl_add_u32 v9, v9, 13, v6")
        a("s_cmp_ge_u32 s%d, 256" % S_T2)
        a("s_cselect_b64 vcc, -1, 0")
        a("s_cselect_b32 s%d, 1, 0" % S_T3)
        a("v_cndmask_b32 v56, v8, v9, vcc")
        a("s_cselect_b32 s3, %d, 0" % (23 * 8192))
        a("v_add_u32 v8, s3, v56")
        a("v_mov_b32 v9, 0x%x" % OOB)
        a("v_cmp_eq_u32 vcc, 0, v7")
        a("v_cndmask_b32 v8, v8, v9, vcc")
        a("v_cmp_eq_u32 vcc, 256, v7")
        a("v_cndmask_b32 v57, v8, v5, vcc")
        a("s_lshl_b32 s3, s%d, 1" % S_MB)
        a("s_add_u32 s3, s3, s%d" % S_T1)
        a("s_mul_i32 s3, s3, 48")
        a("s_mul_i32 s%d, s%d, 24" % (S_B0, S_T0))
        a("s_add_u32 s%d, s%d, s3" % (S_B0, S_B0))
        a("s_lshl_b32 s%d, s%d, 10" % (S_B0, S_B0))
        a("s_add_u32 s%d, s%d, 0x%x" % (S_B0, S_B0, WS_H))
        self.poll_flags_n(43, 32, 2, 60)
        Y = 64
        for rho in range(16):
            k = 16 * (rho >> 3) + (rho & 7)
            if rho == 0:
                a("s_mov_b32 s3, 0x%x" % WS_YT)
                a("buffer_load_dword v%d, v57, s[%d:%d], s3 offen sc1" % (Y, SRD_WS, SRD_WS + 3))
            else:
                a("s_cmp_eq_u32 s%d, 1" % S_T3)
                a("s_cselect_b32 s3, %d, %d" % (23 - k, k))
                a("s_lshl_b32 s3, s3, 13")
                a("s_add_u32 s3, s3, 0x%x" % WS_YT)
                a("buffer_load_dword v%d, v56, s[%d:%d], s3 offen sc1" % (Y + rho, SRD_WS, SRD_WS + 3))

    def phase_o(self):
        a = self.a
        L16 = self.G_L16
        XR = 44; WA = 52; Y = 64
        self.poll_flags_n(40, 4, 3, 60)
        self.stamp(13)
        vq = VQ(a)
        for n in range(24):
            r = 32 + 4 * n
            a("buffer_load_dwordx4 a[%d:%d], v%d, s[%d:%d], s%d offen sc1" % (r, r + 3, L16, SRD_WS, SRD_WS + 3, S_B0)); vq.issue(("h", n))
            if n < 23: a("s_add_u32 s%d, s%d, 1024" % (S_B0, S_B0))
        FA = 16
        def areads(n, buf):
            jj, rem = divmod(n, 6); ft, Q = divmod(rem, 2)
            for tp in range(2):
                base = WA + tp if jj < 3 else WA + 2 + tp
                off = ((88 * jj if jj < 3 else 0) + 32 * ft + 16 * Q) * 128
                r = FA + buf * 8 + tp * 4
                a("ds_read_b64_tr_b16 v[%d:%d], v%d offset:%d" % (r, r + 1, base, off))
                a("ds_read_b64_tr_b16 v[%d:%d], v%d offset:%d" % (r + 2, r + 3, base, off + 512))
        areads(0, 0)
        for n in range(24):
            buf = n & 1
            if n < 23:
                areads(n + 1, buf ^ 1)
                vq.wait(("h", n))
                a("s_waitcnt lgkmcnt(4)")
            else:
                vq.wait(("h", n))
                a("s_waitcnt lgkmcnt(0)")
            for tp in range(2):
                D = tp * 16
                Ar = FA + buf * 8 + tp * 4
                Br = 32 + 4 * n
                cc = "0" if n == 0 else "a[%d:%d]" % (D, D + 15)
                a("v_mfma_f32_32x32x16_bf16 a[%d:%d], v[%d:%d], a[%d:%d], %s" % (D, D + 15, Ar, Ar + 3, Br, Br + 3, cc))
        self.stamp(14)
        a("s_lshl_b32 s3, s%d, 12" % S_W)
        a("v_add_u32 v58, s3, v%d" % L16)
        for q in range(4):
            a("ds_write_b128 v58, a[%d:%d] offset:%d" % (16 + 4 * q, 16 + 4 * q + 3, q * 1024))
        a("s_waitcnt lgkmcnt(0)")
        a("s_barrier")
        a("v_xor_b32 v58, 0x2000, v58")
        O = 80
        for q in range(4):
            a("ds_read_b128 v[%d:%d], v58 offset:%d" % (O + 4 * q, O + 4 * q + 3, q * 1024))
        for i in range(16): a("v_accvgpr_read_b32 v%d, a%d" % (96 + i, i))
        a("s_waitcnt lgkmcnt(0)")
        for p in range(8):
            a("v_pk_add_f32 v[%d:%d], v[%d:%d], v[%d:%d]" % (O + 2 * p, O + 2 * p + 1, O + 2 * p, O + 2 * p + 1, 96 + 2 * p, 96 + 2 * p + 1))
        nl2e = f2u(-math.log2(math.e))
        a("s_mov_b32 s%d, 0x%x" % (S_K2, nl2e))
        a("s_mov_b32 s%d, 0x%x" % (S_K2 + 1, nl2e))
        for p in range(8):
            o = O + 2 * p; t = 96 + 2 * p
            a("v_pk_mul_f32 v[%d:%d], v[%d:%d], s[%d:%d]" % (t, t + 1, o, o + 1, S_K2, S_K2 + 1))
            a("v_exp_f32 v%d, v%d" % (t, t))
            a("v_exp_f32 v%d, v%d" % (t + 1, t + 1))
            a("v_pk_add_f32 v[%d:%d], v[%d:%d], 1.0 op_sel_hi:[1,0]" % (t, t + 1, t, t + 1))
            a("v_rcp_f32 v%d, v%d" % (t, t))
            a("v_rcp_f32 v%d, v%d" % (t + 1, t + 1))
            a("v_pk_mul_f32 v[%d:%d], v[%d:%d], v[%d:%d]" % (o, o + 1, o, o + 1, t, t + 1))
        a("s_waitcnt vmcnt(0)")
        for p in range(8):
            o = O + 2 * p; t = 96 + 2 * p; y = Y + 2 * p; xr = XR + p
            a("v_lshlrev_b32 v%d, 16, v%d" % (t, xr))
            a("v_and_b32 v%d, 0xffff0000, v%d" % (t + 1, xr))
            a("v_pk_fma_f32 v[%d:%d], v[%d:%d], v[%d:%d], v[%d:%d]" % (t, t + 1, y, y + 1, o, o + 1, t, t + 1))
            a("v_cvt_pk_bf16_f32 v%d, v%d, v%d" % (112 + p, t, t + 1))
        a("buffer_store_dwordx4 v[112:115], v42, s[%d:%d], 0 offen" % (SRD_OUT, SRD_OUT + 3))
        a("buffer_store_dwordx4 v[116:119], v42, s[%d:%d], 0 offen offset:32" % (SRD_OUT, SRD_OUT + 3))
        self.stamp(15)
        self.stamp(25)

    def build(self):
        a = self.a
        self.prologue()
        self.xstage()
        a("s_cmp_ge_u32 s%d, 4" % S_W)
        a("s_cbranch_scc1 L_helper")
        self.p1_compute()
        self.g_compute()
        self.phase_o()
        a("s_branch L_end")
        a.label("L_helper")
        self.p1_helper()
        self.g_helper()
        a.label("L_end")
        a("s_endpgm")
        a.finalize()
        hdr = open("cdna_kernels/%s.s.ref" % NAME).read().split("\n")
        head = []
        for line in hdr:
            if line.startswith("; @launch"):
                head.append("; @launch grid=(256,1,1) block=(512,1,1) lds=%d" % LDS_TOTAL)
            elif line.startswith(";"): head.append(line)
            else: break
        txt = "\n".join(head) + "\n"
        txt += '.amdgcn_target "amdgcn-amd-amdhsa--gfx950"\n.text\n.globl %s_kernel\n.p2align 8\n.type %s_kernel,@function\n%s_kernel:\n' % (NAME, NAME, NAME)
        txt += a.text()
        txt += '.section .rodata,"a"\n.p2align 6\n.amdhsa_kernel %s_kernel\n' % NAME
        txt += "  .amdhsa_next_free_vgpr 256\n  .amdhsa_next_free_sgpr 102\n  .amdhsa_accum_offset 128\n"
        txt += "  .amdhsa_group_segment_fixed_size 0\n  .amdhsa_kernarg_size 104\n  .amdhsa_user_sgpr_count 2\n"
        txt += "  .amdhsa_user_sgpr_kernarg_segment_ptr 1\n  .amdhsa_system_sgpr_workgroup_id_x 1\n"
        txt += "  .amdhsa_float_denorm_mode_32 3\n"
        txt += ".end_amdhsa_kernel\n"
        return txt

if __name__ == "__main__":
    import argparse
    ap = argparse.ArgumentParser()
    ap.add_argument("--stamps", action="store_true")
    ap.add_argument("--exp", default="")
    ap.add_argument("-o", default="cdna_kernels/%s.s" % NAME)
    args = ap.parse_args()
    g = Gen(stamps=args.stamps, exp=[e for e in args.exp.split(',') if e])
    txt = g.build()
    open(args.o, "w").write(txt)
    print("wrote", args.o, len(txt), "bytes;", len([i for i in g.a.ins if i.kind not in ("label", "dir")]), "instrs")
```

```python
import sys, math, struct
sys.path.insert(0, "gen")
from asmlib import *

NAME = "recurrent_scan__spectral_fnet__mixer_gmlp__prompt"

WS_FLAG = 0x000000
WS_STATS = 0x020000
WS_Z2N = 0x100000
WS_AB = 0x400000
WS_H = 0x600000
WS_YT = 0x900000
WS_STAMP = 0xF00000
WS_SIZE = 0x4000000
OOB = 0x80000000

LDS_WR = 65536
SLOT = 16384
NSLOT = 5
LDS_T4 = 147456
LDS_T5 = LDS_T4 + 1536
LDS_SY = LDS_T5 + 512
LDS_FX = 131072
LDS_WO = 73728
LDS_TOTAL = 163840

SRD_X, SRD_WIN, SRD_DFT, SRD_WSP, SRD_WOUT, SRD_WS, SRD_OUT, SRD_BSP, SRD_DBG = 4, 8, 12, 20, 24, 28, 32, 36, 40
S_IMLO, S_IMHI = 16, 17
S_MB, S_J, S_W, S_F0, S_WID, S_NONCE, S_L = 44, 45, 46, 47, 48, 49, 50
S_C, S_SLOT, S_XD = 51, 52, 53
S_CN, S_KC128, S_WSOFF, S_SLOTN = 54, 55, 56, 57
S_HW = 58
S_DL0, S_WL0, S_W2 = 60, 61, 62
S_T0, S_T1, S_T2, S_T3 = 63, 90, 91, 92
S_PASS = 93
S_EX = 94
S_K2 = 96
S_SPIN = 98
S_B0 = 99
S_ST0 = 100
S_ROT1 = 59
S_RHO = 51

V_LANE, V_JL, V_H, V_SIG = 1, 2, 3, 4

def f2u(x): return struct.unpack("<I", struct.pack("<f", x))[0]

class Gen:
    def __init__(self, stop_after=None, stamps=False, exp=()):
        self.a = Asm()
        self.stop_after = stop_after
        self.stamps = stamps
        self.exp = set(exp)

    def stamp(self, idx):
        if "dbgst" in self.exp:
            m = {0: 1, 1: 2, 2: 3, 3: 4, 4: 5, 5: 6, 7: 7, 8: 8, 10: 9, 11: 10, 12: 11, 13: 12, 14: 13, 15: 14}
            if idx in m:
                a = self.a
                lab = a.newlabel("ds")
                a("s_cmp_lg_u32 s%d, %d" % (S_L, 0 * 256 + 37))
                a("s_cbranch_scc1 %s" % lab)
                a("s_cmp_lg_u32 s%d, 0" % S_W)
                a("s_cbranch_scc1 %s" % lab)
                a("s_memrealtime s[%d:%d]" % (S_ST0, S_ST0 + 1))
                a("s_waitcnt lgkmcnt(0)")
                a("v_mov_b32 v9, s%d" % S_ST0)
                a("v_mov_b32 v8, %d" % (4 * m[idx]))
                a("s_mov_b64 exec, 1")
                a("buffer_store_dword v9, v8, s[%d:%d], 0 offen sc1" % (SRD_DBG, SRD_DBG + 3))
                a("s_mov_b64 exec, -1")
                a.label(lab)
            return
        if not self.stamps: return
        a = self.a
        a(("s_memtime s[%d:%d]" if idx >= 24 else "s_memrealtime s[%d:%d]") % (S_ST0, S_ST0 + 1))
        a("s_waitcnt lgkmcnt(0)")
        a("v_mov_b32 v9, s%d" % S_ST0)
        a("s_lshl_b32 s%d, s%d, 3" % (S_ST0, S_L))
        a("s_add_u32 s%d, s%d, s%d" % (S_ST0, S_ST0, S_W))
        a("s_lshl_b32 s%d, s%d, 7" % (S_ST0, S_ST0))
        a("s_add_u32 s%d, s%d, 0x%x" % (S_ST0, S_ST0, WS_STAMP + idx * 4))
        a("v_mov_b32 v8, 0")
        a("s_mov_b64 s[%d:%d], exec" % (S_EX, S_EX + 1))
        a("s_mov_b64 exec, 1")
        a("buffer_store_dword v9, v8, s[%d:%d], s%d offen" % (SRD_WS, SRD_WS + 3, S_ST0))
        a("s_mov_b64 exec, s[%d:%d]" % (S_EX, S_EX + 1))

    def srd(self, base, plo, size):
        a = self.a
        a("s_mov_b32 s%d, s%d" % (base, plo))
        a("s_and_b32 s%d, s%d, 0xffff" % (base + 1, plo + 1))
        a("s_mov_b32 s%d, 0x%x" % (base + 2, size))
        a("s_mov_b32 s%d, 0x20000" % (base + 3))

    def flag_store(self, kind, dw=0, dw_sreg=None):
        a = self.a
        a("s_lshl_b32 s%d, s%d, 7" % (S_T0, S_L))
        a("s_add_u32 s%d, s%d, 0x%x" % (S_T0, S_T0, WS_FLAG + kind * 256 * 128 + dw * 4))
        if dw_sreg is not None:
            a("s_lshl_b32 s3, s%d, 2" % dw_sreg)
            a("s_add_u32 s%d, s%d, s3" % (S_T0, S_T0))
        a("v_mov_b32 v5, s%d" % S_NONCE)
        a("v_mov_b32 v6, 0")
        a("s_mov_b64 exec, 1")
        a("buffer_store_dword v5, v6, s[%d:%d], s%d offen sc1" % (SRD_WS, SRD_WS + 3, S_T0))
        a("s_mov_b64 exec, -1")

    def poll_flags_n(self, vaddr, nlanes, ndw, vt):
        a = self.a
        lab = a.newlabel("poll")
        a("s_mov_b32 s%d, 0" % S_SPIN)
        mask = (1 << nlanes) - 1
        a("s_mov_b32 exec_lo, 0x%x" % (mask & 0xffffffff))
        a("s_mov_b32 exec_hi, 0x%x" % (mask >> 32))
        a.label(lab)
        if ndw == 1: a("buffer_load_dword v%d, v%d, s[%d:%d], 0 offen sc1" % (vt, vaddr, SRD_WS, SRD_WS + 3))
        elif ndw == 2: a("buffer_load_dwordx2 v[%d:%d], v%d, s[%d:%d], 0 offen sc1" % (vt, vt + 1, vaddr, SRD_WS, SRD_WS + 3))
        else: a("buffer_load_dwordx4 v[%d:%d], v%d, s[%d:%d], 0 offen sc1" % (vt, vt + 3, vaddr, SRD_WS, SRD_WS + 3))
        a("s_waitcnt vmcnt(0)")
        a("v_cmp_ne_u32 vcc, s%d, v%d" % (S_NONCE, vt))
        for i in range(1, ndw):
            a("v_cmp_ne_u32 s[%d:%d], s%d, v%d" % (S_EX, S_EX + 1, S_NONCE, vt + i))
            a("s_or_b64 vcc, vcc, s[%d:%d]" % (S_EX, S_EX + 1))
        a("s_add_u32 s%d, s%d, 1" % (S_SPIN, S_SPIN))
        a("s_cmp_gt_u32 s%d, 0x8000" % S_SPIN)
        a("s_cbranch_scc1 %s_x" % lab)
        a("s_cbranch_vccnz %s" % lab)
        a.label(lab + "_x")
        a("s_mov_b64 exec, -1")

    def get_nonce(self):
        a = self.a
        lab = a.newlabel("nonce")
        a("v_mov_b32 v6, 0")
        a("s_mov_b32 s%d, 0" % S_SPIN)
        a.label(lab)
        a("buffer_load_dword v5, v6, s[%d:%d], 0 offen sc1" % (SRD_DBG, SRD_DBG + 3))
        a("s_waitcnt vmcnt(0)")
        a("v_readfirstlane_b32 s%d, v5" % S_NONCE)
        a("s_add_u32 s%d, s%d, 1" % (S_SPIN, S_SPIN))
        a("s_cmp_gt_u32 s%d, 0x8000" % S_SPIN)
        a("s_cbranch_scc1 %s_x" % lab)
        a("s_cmp_eq_u32 s%d, 0" % S_NONCE)
        a("s_cbranch_scc1 %s" % lab)
        a.label(lab + "_x")

    def nonce_from(self, vreg):
        a = self.a
        lab = a.newlabel("hn")
        a("v_readfirstlane_b32 s%d, v%d" % (S_NONCE, vreg))
        a("s_cmp_lg_u32 s%d, 0" % S_NONCE)
        a("s_cbranch_scc1 %s" % lab)
        self.get_nonce()
        a.label(lab)

    def poll_flags(self, vaddr, nlanes):
        a = self.a
        lab = a.newlabel("poll")
        a("s_mov_b32 s%d, 0" % S_SPIN)
        mask = (1 << nlanes) - 1
        a("s_mov_b32 exec_lo, 0x%x" % (mask & 0xffffffff))
        a("s_mov_b32 exec_hi, 0x%x" % (mask >> 32))
        a.label(lab)
        a("buffer_load_dword v5, v%d, s[%d:%d], 0 offen sc1" % (vaddr, SRD_WS, SRD_WS + 3))
        a("s_waitcnt vmcnt(0)")
        a("v_cmp_ne_u32 vcc, s%d, v5" % S_NONCE)
        a("s_add_u32 s%d, s%d, 1" % (S_SPIN, S_SPIN))
        a("s_cmp_gt_u32 s%d, 0x8000" % S_SPIN)
        a("s_cbranch_scc1 %s_x" % lab)
        a("s_cbranch_vccnz %s" % lab)
        a.label(lab + "_x")
        a("s_mov_b64 exec, -1")

    def lds_wait_ge(self, addr, val, vt=5):
        a = self.a
        lab = a.newlabel("lw")
        a("s_mov_b32 s%d, 0" % S_SPIN)
        a("v_mov_b32 v%d, %d" % (vt + 1, addr))
        a.label(lab)
        a("ds_read_b32 v%d, v%d" % (vt, vt + 1))
        a("s_waitcnt lgkmcnt(0)")
        a("v_readfirstlane_b32 s%d, v%d" % (S_T0, vt))
        a("s_add_u32 s%d, s%d, 1" % (S_SPIN, S_SPIN))
        a("s_cmp_gt_u32 s%d, 0x100000" % S_SPIN)
        a("s_cbranch_scc1 %s_x" % lab)
        a("s_cmp_lt_u32 s%d, %d" % (S_T0, val))
        a("s_cbranch_scc1 %s" % lab)
        a.label(lab + "_x")

    def hsum(self, regs, tmp):
        a = self.a
        for i, r in enumerate(regs): a("v_mov_b32 v%d, v%d" % (tmp + i, r))
        for i, r in enumerate(regs): a("v_permlane32_swap_b32 v%d, v%d" % (r, tmp + i))
        for i, r in enumerate(regs): a("v_add_f32 v%d, v%d, v%d" % (r, r, tmp + i))

    def mean_rstd(self, vsum, vsq, n, dst_r, dst_nm, t):
        a = self.a
        a("v_mul_f32 v%d, 0x%x, v%d" % (t, f2u(1.0 / n), vsum))
        a("v_mul_f32 v%d, 0x%x, v%d" % (t + 1, f2u(1.0 / n), vsq))
        a("v_fma_f32 v%d, -v%d, v%d, v%d" % (t + 1, t, t, t + 1))
        a("v_max_f32 v%d, 0, v%d" % (t + 1, t + 1))
        a("v_add_f32 v%d, 0x%x, v%d" % (t + 1, f2u(1e-5), t + 1))
        a("v_rsq_f32 v%d, v%d" % (dst_r, t + 1))
        a("v_mul_f32 v%d, v%d, v%d" % (dst_nm, t, dst_r))
        a("v_sub_f32 v%d, 0, v%d" % (dst_nm, dst_nm))

    V_OD, V_OW = 10, 11
    V_NON = 14
    def prologue(self):
        a = self.a
        a("s_cmp_ge_u32 s2, 256")
        a("s_cbranch_scc1 L_end")
        a("s_load_dwordx16 s[64:79], s[0:1], 0")
        a("s_load_dwordx8 s[80:87], s[0:1], 64")
        a("s_load_dwordx2 s[88:89], s[0:1], 96")
        if "map42" in self.exp:
            a("s_bfe_u32 s%d, s2, 0x20001" % S_MB)
            a("s_lshl_b32 s%d, s%d, 3" % (S_MB, S_MB))
            a("s_bfe_u32 s3, s2, 0x30003")
            a("s_add_u32 s%d, s%d, s3" % (S_MB, S_MB))
            a("s_and_b32 s%d, s2, 1" % S_J)
            a("s_lshl_b32 s%d, s%d, 2" % (S_J, S_J))
            a("s_lshr_b32 s3, s2, 6")
            a("s_add_u32 s%d, s%d, s3" % (S_J, S_J))
        else:
            a("s_and_b32 s%d, s2, 7" % S_MB)
            a("s_lshl_b32 s%d, s%d, 2" % (S_MB, S_MB))
            a("s_bfe_u32 s3, s2, 0x20003")
            a("s_add_u32 s%d, s%d, s3" % (S_MB, S_MB))
            a("s_lshr_b32 s%d, s2, 5" % S_J)
        a("s_lshl_b32 s%d, s%d, 5" % (S_L, S_J))
        a("s_add_u32 s%d, s%d, s%d" % (S_L, S_L, S_MB))
        a("v_lshrrev_b32 v5, 6, v0")
        a("v_and_b32 v%d, 63, v0" % V_LANE)
        a("v_readfirstlane_b32 s%d, v5" % S_W)
        a("v_lshrrev_b32 v20, 3, v0")
        a("v_and_b32 v21, 7, v0")
        a("v_lshlrev_b32 v22, 10, v20")
        a("v_lshl_add_u32 v22, v21, 4, v22")
        a("s_lshl_b32 s%d, s%d, 16" % (S_T1, S_MB))
        a("s_and_b32 s%d, s%d, 3" % (S_HW, S_W))
        a("v_and_b32 v%d, 31, v0" % V_JL)
        a("v_bfe_u32 v%d, v0, 5, 1" % V_H)
        a("v_and_b32 v5, 0x13, v%d" % V_JL)
        a("v_and_b32 v6, 4, v%d" % V_JL)
        a("v_lshl_or_b32 v5, v6, 1, v5")
        a("v_and_b32 v6, 8, v%d" % V_JL)
        a("v_lshrrev_b32 v6, 1, v6")
        a("v_or_b32 v%d, v5, v6" % V_SIG)
        a("s_mul_i32 s%d, s%d, 88" % (S_F0, S_J))
        a("s_cmp_eq_u32 s%d, 7" % S_J)
        a("s_cselect_b32 s3, 8, 0")
        a("s_sub_u32 s%d, s%d, s3" % (S_F0, S_F0))
        a("s_cmp_ge_u32 s%d, 6" % S_J)
        a("s_cselect_b32 s3, 8, 0")
        a("s_sub_u32 s%d, 88, s3" % S_WID)
        for i in range(10, 14): a("v_mov_b32 v%d, 0" % i)
        a("s_waitcnt lgkmcnt(0)")
        self.srd(SRD_X, 64, 2048 * 1024)
        a("s_and_b32 s%d, s%d, 3" % (S_ROT1, S_MB))
        a("s_lshl_b32 s%d, s%d, 1" % (S_ROT1, S_ROT1))
        a("s_add_u32 s%d, s%d, s%d" % (S_ROT1, S_ROT1, S_J))
        a("s_and_b32 s%d, s%d, 7" % (S_ROT1, S_ROT1))
        if "norot" in self.exp: a("s_mov_b32 s%d, 0" % S_ROT1)
        for i in range(8):
            a("s_add_u32 s3, s%d, %d" % (S_ROT1, i))
            a("s_and_b32 s3, s3, 7")
            a("s_lshl_b32 s3, s3, 7")
            a("s_add_u32 s3, s3, s%d" % S_T1)
            a("buffer_load_dwordx4 v[%d:%d], v22, s[%d:%d], s3 offen" % (32 + 4 * i, 35 + 4 * i, SRD_X, SRD_X + 3))
        self.srd(SRD_WIN, 76, 512 * 2752)
        self.srd(SRD_DFT, 70, 512 * 1024)
        self.srd(S_IMLO, 72, 512 * 1024)
        self.srd(SRD_WS, 88, WS_SIZE)
        self.srd(SRD_DBG, 86, 256)
        self.srd(SRD_WSP, 78, 2048 * 4096)
        self.srd(SRD_WOUT, 82, 688 * 1024)
        self.srd(SRD_OUT, 84, 2048 * 1024)
        self.srd(SRD_BSP, 80, 4096)
        a("s_cmp_lt_u32 s%d, 4" % S_W)
        a("s_cbranch_scc0 L_pro_h")
        self.npf = self.prefetch_start() if "nopf" not in self.exp else 0
        a("s_branch L_pro_c")
        a.label("L_pro_h")
        L = V_LANE
        a("v_lshrrev_b32 v5, 3, v%d" % L)
        a("v_and_b32 v6, 7, v%d" % L)
        a("v_lshrrev_b32 v7, 4, v%d" % L)
        a("v_xor_b32 v8, v6, v7")
        a("v_lshlrev_b32 v8, 4, v8")
        a("s_lshl_b32 s3, s%d, 5" % S_J)
        a("s_lshl_b32 s%d, s%d, 3" % (S_T0, S_HW))
        a("s_add_u32 s3, s3, s%d" % S_T0)
        a("v_add_u32 v9, s3, v5")
        a("v_cmp_eq_u32 vcc, 0, v9")
        a("v_mov_b32 v6, 256")
        a("v_cndmask_b32 v9, v9, v6, vcc")
        a("s_and_b32 s%d, s%d, 1" % (S_T0, S_HW))
        a("s_lshl_b32 s%d, s%d, 6" % (S_T0, S_T0))
        a("v_xor_b32 v8, s%d, v8" % S_T0)
        a("v_lshl_add_u32 v%d, v9, 10, v8" % self.V_OD)
        for p in range(3):
            a("v_add_u32 v5, %d, v%d" % (64 * p, L))
            a("v_mul_u32_u24 v6, 171, v5")
            a("v_lshrrev_b32 v6, 11, v6")
            a("v_mul_u32_u24 v7, 12, v6")
            a("v_sub_u32 v7, v5, v7")
            a("v_mul_u32_u24 v6, 2752, v6")
            a("v_lshl_add_u32 v6, v7, 4, v6")
            a("v_lshlrev_b32 v7, 3, v7")
            a("v_cmp_gt_u32 vcc, s%d, v7" % S_WID)
            a("v_mov_b32 v8, 0x%x" % OOB)
            a("v_cndmask_b32 v%d, v8, v6, vcc" % (self.V_OW + p))
        a("s_lshl_b32 s%d, s%d, 10" % (S_DL0, S_HW))
        a("s_mul_i32 s%d, s%d, 3072" % (S_WL0, S_HW))
        a("s_mul_i32 s%d, s%d, %d" % (S_W2, S_HW, 16 * 2752))
        a("s_lshl_b32 s3, s%d, 1" % S_F0)
        a("s_add_u32 s%d, s%d, s3" % (S_W2, S_W2))
        a("s_add_u32 s%d, s%d, %d" % (S_WSOFF, S_W2, 688 * 2))
        for k in range(4): self.dma_chunk(k)
        a("s_cmp_lg_u32 s2, 0")
        a("s_cbranch_scc1 L_nononce")
        a("s_cmp_lg_u32 s%d, 4" % S_W)
        a("s_cbranch_scc1 L_nononce")
        a("s_memrealtime s[%d:%d]" % (S_ST0, S_ST0 + 1))
        a("s_waitcnt lgkmcnt(0)")
        a("s_or_b32 s3, s%d, 1" % S_ST0)
        a("v_mov_b32 v5, s3")
        a("v_mov_b32 v6, 0")
        a("s_mov_b64 exec, 1")
        a("buffer_store_dword v5, v6, s[%d:%d], 0 offen sc1" % (SRD_DBG, SRD_DBG + 3))
        a("s_mov_b64 exec, -1")
        a.label("L_nononce")
        a("v_lshlrev_b32 v5, 2, v%d" % V_LANE)
        a("v_add_u32 v5, %d, v5" % LDS_SY)
        a("v_mov_b32 v6, 0")
        a("s_mov_b64 exec, 0xffff")
        a("ds_write_b32 v5, v6")
        a("s_mov_b64 exec, -1")
        a.label("L_pro_c")
        self.stamp(0)
        self.stamp(24)

    def pf_wrows(self, colbyte_sreg, row0_sreg, nrows16, dst):
        a = self.a
        a("v_lshrrev_b32 v5, 2, v%d" % V_LANE)
        a("v_add_u32 v5, s%d, v5" % row0_sreg)
        a("v_mul_u32_u24 v5, 2752, v5")
        a("v_and_b32 v6, 3, v%d" % V_LANE)
        a("v_lshlrev_b32 v6, 6, v6")
        a("v_min_u32 v6, 172, v6")
        a("v_add_u32 v5, v5, v6")
        for i in range(nrows16):
            a("s_add_u32 s3, s%d, %d" % (colbyte_sreg, i * 16 * 2752))
            a("buffer_load_dword a%d, v5, s[%d:%d], s3 offen" % (dst, SRD_WIN, SRD_WIN + 3))
        return nrows16

    def prefetch_start(self):
        a = self.a
        a("s_and_b32 s%d, s%d, 3" % (S_T0, S_MB))
        a("s_lshl_b32 s%d, s%d, 6" % (S_T0, S_T0))
        a("s_lshl_b32 s3, s%d, 4" % S_W)
        a("s_add_u32 s%d, s%d, s3" % (S_T0, S_T0))
        a("s_add_u32 s%d, s%d, 256" % (S_T0, S_T0))
        a("s_add_u32 s%d, s%d, 688" % (S_T1, S_F0))
        a("s_lshl_b32 s%d, s%d, 1" % (S_T1, S_T1))
        return self.pf_wrows(S_T1, S_T0, 1, 16)

    def prefetch_b(self):
        a = self.a
        a("s_and_b32 s%d, s%d, 3" % (S_T0, S_MB))
        a("s_lshl_b32 s%d, s%d, 7" % (S_T0, S_T0))
        a("s_lshl_b32 s3, s%d, 5" % S_W)
        a("s_add_u32 s%d, s%d, s3" % (S_T0, S_T0))
        a("s_lshl_b32 s%d, s%d, 1" % (S_T1, S_F0))
        self.pf_wrows(S_T1, S_T0, 2, 16)
        a("s_lshl_b32 s%d, s%d, 5" % (S_T0, S_J))
        a("s_and_b32 s3, s%d, 3" % S_MB)
        a("s_lshl_b32 s3, s3, 3")
        a("s_add_u32 s%d, s%d, s3" % (S_T0, S_T0))
        a("s_lshl_b32 s3, s%d, 1" % S_W)
        a("s_add_u32 s%d, s%d, s3" % (S_T0, S_T0))
        a("s_lshl_b32 s%d, s%d, 10" % (S_T0, S_T0))
        a("v_lshlrev_b32 v5, 4, v%d" % V_LANE)
        for i in range(2):
            a("buffer_load_dwordx4 a[16:19], v5, s[%d:%d], s%d offen offset:%d" % (S_IMLO, S_IMLO + 3, S_T0, i * 1024))

    def prefetch_wsp(self):
        a = self.a
        a("s_lshl_b32 s%d, s%d, 6" % (S_T0, S_MB))
        a("s_lshl_b32 s3, s%d, 3" % S_J)
        a("s_add_u32 s%d, s%d, s3" % (S_T0, S_T0))
        a("s_lshl_b32 s3, s%d, 1" % S_W)
        a("s_add_u32 s%d, s%d, s3" % (S_T0, S_T0))
        a("s_lshl_b32 s%d, s%d, 12" % (S_T0, S_T0))
        a("v_lshlrev_b32 v5, 4, v%d" % V_LANE)
        for i in range(8):
            a("buffer_load_dwordx4 a[16:19], v5, s[%d:%d], s%d offen" % (SRD_WSP, SRD_WSP + 3, S_T0))
            if i < 7: a("s_add_u32 s%d, s%d, 1024" % (S_T0, S_T0))

    def prefetch_wout(self):
        a = self.a
        a("s_and_b32 s3, s%d, 3" % S_MB)
        a("s_lshl_b32 s3, s3, 2")
        a("s_add_u32 s3, s3, s%d" % S_W)
        a("s_mul_i32 s%d, s3, 43" % S_T0)
        a("v_lshrrev_b32 v5, 1, v%d" % V_LANE)
        a("v_add_u32 v5, s%d, v5" % S_T0)
        a("v_lshlrev_b32 v5, 10, v5")
        a("v_and_b32 v6, 1, v%d" % V_LANE)
        a("v_lshl_add_u32 v5, v6, 6, v5")
        a("s_lshl_b32 s%d, s%d, 7" % (S_T0, S_J))
        a("buffer_load_dword a16, v5, s[%d:%d], s%d offen" % (SRD_WOUT, SRD_WOUT + 3, S_T0))
        a("s_add_u32 s%d, s%d, %d" % (S_T0, S_T0, 32 * 1024))
        a("buffer_load_dword a16, v5, s[%d:%d], s%d offen" % (SRD_WOUT, SRD_WOUT + 3, S_T0))

    def dma_chunk(self, k):
        a = self.a
        slot = LDS_WR + (k % NSLOT) * SLOT
        srd = SRD_DFT if k < 8 else S_IMLO
        a("s_add_u32 s%d, s%d, %d" % (S_T1, S_ROT1, k & 7))
        a("s_and_b32 s%d, s%d, 7" % (S_T1, S_T1))
        a("s_add_u32 m0, s%d, %d" % (S_DL0, slot + 12288))
        a("s_lshl_b32 s%d, s%d, 7" % (S_T0, S_T1))
        a("buffer_load_dwordx4 v%d, s[%d:%d], s%d offen lds" % (self.V_OD, srd, srd + 3, S_T0))
        a("s_mul_i32 s%d, s%d, %d" % (S_T1, S_T1, 64 * 2752))
        a("s_add_u32 m0, s%d, %d" % (S_WL0, slot))
        a("s_add_u32 s%d, s%d, s%d" % (S_T0, S_WSOFF if k < 8 else S_W2, S_T1))
        for p in range(3):
            a("buffer_load_dwordx4 v%d, s[%d:%d], s%d offen lds" % (self.V_OW + p, SRD_WIN, SRD_WIN + 3, S_T0))
            if p < 2:
                a("s_add_u32 m0, m0, 1024")
                a("s_nop 0")

    def xstage(self):
        a = self.a
        X = 32
        a("v_mov_b32 v23, 0x3f803f80")
        for i in range(4): a("v_mov_b32 v%d, 0" % (24 + i))
        a("v_bfe_u32 v5, v20, 1, 3")
        a("v_xor_b32 v5, v5, v21")
        a("v_lshlrev_b32 v5, 4, v5")
        a("v_lshl_add_u32 v28, v20, 7, v5")
        a("s_cmp_lt_u32 s%d, 4" % S_W)
        a("s_cbranch_scc1 L_xw_c")
        for path, younger in (("h", 16), ("c", self.npf)):
            if path == "c": a.label("L_xw_c")
            for i in range(8):
                a("s_waitcnt vmcnt(%d)" % (younger + 7 - i))
                for r in range(4):
                    k = 4 * i + r
                    a("v_dot2c_f32_bf16 v%d, v%d, v23" % (24 + (k & 1), X + k))
                    a("v_dot2c_f32_bf16 v%d, v%d, v%d" % (26 + (k & 1), X + k, X + k))
            if path == "h": a("s_branch L_xw_d")
        a.label("L_xw_d")
        a("v_add_f32 v24, v24, v25")
        a("v_add_f32 v26, v26, v27")
        for dpp in ("quad_perm:[1,0,3,2]", "quad_perm:[2,3,0,1]", "row_half_mirror"):
            a("v_add_f32_dpp v25, v24, v24 %s row_mask:0xf bank_mask:0xf" % dpp)
            a("v_add_f32_dpp v27, v26, v26 %s row_mask:0xf bank_mask:0xf" % dpp)
            a("v_mov_b32 v24, v25")
            a("v_mov_b32 v26, v27")
        self.mean_rstd(24, 26, 512, 30, 31, 6)
        U = 64
        for i in range(8):
            for r in range(4):
                src = X + 4 * i + r
                t = U + 2 * ((4 * i + r) % 8)
                a("v_lshlrev_b32 v%d, 16, v%d" % (t, src))
                a("v_and_b32 v%d, 0xffff0000, v%d" % (t + 1, src))
                a("v_pk_fma_f32 v[%d:%d], v[%d:%d], v[30:31], v[30:31] op_sel:[0,0,1] op_sel_hi:[1,0,1]" % (t, t + 1, t, t + 1))
                a("v_cvt_pk_bf16_f32 v%d, v%d, v%d" % (src, t, t + 1))
            a("ds_write_b128 v28, v[%d:%d] offset:%d" % (X + 4 * i, X + 4 * i + 3, i * 8192))

    C_XA, C_AC, C_AN = 10, 14, 15
    C_FA, C_FB = 16, 32
    C_ACC = 64
    C_Z2P, C_Z1P = 96, 112
    C_GC1 = 6

    def c_setup(self, w3):
        a = self.a
        a("v_bfe_u32 v5, v%d, 1, 3" % V_SIG)
        a("v_lshlrev_b32 v6, 7, v%d" % V_SIG)
        for ks in range(4):
            a("v_add_u32 v8, %d, v%d" % (2 * ks, V_H))
            a("v_xor_b32 v8, v8, v5")
            a("v_lshl_add_u32 v%d, v8, 4, v6" % (self.C_XA + ks))
        if w3:
            for ks in range(4):
                a("v_add_u32 v%d, %d, v%d" % (116 + ks, LDS_WR + 12288, self.C_XA + ks))
        else:
            a("v_bfe_u32 v7, v%d, 2, 2" % V_LANE)
            a("v_lshl_add_u32 v7, v%d, 3, v7" % V_H)
            a("v_mul_u32_u24 v7, 192, v7")
            a("v_bfe_u32 v8, v%d, 4, 1" % V_LANE)
            a("v_lshlrev_b32 v8, 5, v8")
            a("v_and_b32 v9, 1, v%d" % V_LANE)
            a("v_lshl_add_u32 v8, v9, 4, v8")
            a("v_bfe_u32 v9, v%d, 1, 1" % V_LANE)
            a("v_lshl_add_u32 v8, v9, 3, v8")
            a("v_add_u32 v7, v7, v8")
            a("s_lshl_b32 s3, s%d, 6" % S_W)
            a("s_add_u32 s3, s3, %d" % LDS_WR)
            a("v_add_u32 v%d, s3, v7" % self.C_AC)
            a("v_add_u32 v%d, %d, v%d" % (self.C_AN, SLOT, self.C_AC))
            for Q in range(2):
                a("v_lshlrev_b32 v5, 3, v%d" % V_H)
                a("v_sub_u32 v5, v%d, v5" % V_SIG)
                if Q: a("v_subrev_u32 v5, 16, v5")
                a("v_and_b32 v6, 1, v5")
                a("v_lshlrev_b32 v6, 4, v6")
                a("v_mov_b32 v7, 0x3f80")
                a("v_lshlrev_b32 v6, v6, v7")
                a("v_lshrrev_b32 v5, 1, v5")
                for r in range(4):
                    a("v_cmp_eq_u32 vcc, %d, v5" % r)
                    a("v_cndmask_b32 v7, 0, v6, vcc")
                    a("v_accvgpr_write_b32 a%d, v7" % (4 * Q + r))

    def c_reads(self, w3, c, ks, nxt):
        A = self.C_FA + 4 * ks; B = self.C_FB + 8 * ks
        out = []
        xo = (c & 7) * 8192
        if w3:
            base = 124 + ks if nxt else 120 + ks
            out.append("ds_read_b128 v[%d:%d], v%d" % (A, A + 3, base))
        else:
            base = self.C_AN if nxt else self.C_AC
            out.append("ds_read_b64_tr_b16 v[%d:%d], v%d offset:%d" % (A, A + 1, base, ks * 3072))
            out.append("ds_read_b64_tr_b16 v[%d:%d], v%d offset:%d" % (A + 2, A + 3, base, ks * 3072 + 768))
        out.append("ds_read_b128 v[%d:%d], v%d offset:%d" % (B, B + 3, self.C_XA + ks, xo))
        out.append("ds_read_b128 v[%d:%d], v%d offset:%d" % (B + 4, B + 7, self.C_XA + ks, xo + 4096))
        return out

    def c_loop(self, w3):
        a = self.a
        nr = 3 if w3 else 4
        ACC = self.C_ACC
        def mfs(ks, first):
            A = self.C_FA + 4 * ks; B = self.C_FB + 8 * ks
            out = []
            for st in range(2):
                D = ACC + 16 * st
                cc = "0" if first else "v[%d:%d]" % (D, D + 15)
                if w3: out.append("v_mfma_f32_32x32x16_bf16 v[%d:%d], v[%d:%d], v[%d:%d], %s" % (D, D + 15, B + 4 * st, B + 4 * st + 3, A, A + 3, cc))
                else: out.append("v_mfma_f32_32x32x16_bf16 v[%d:%d], v[%d:%d], v[%d:%d], %s" % (D, D + 15, A, A + 3, B + 4 * st, B + 4 * st + 3, cc))
            return out
        a("s_mov_b32 s64, %d" % SLOT)
        if w3:
            for ks in range(4): a("v_add_u32 v%d, s%d, v%d" % (120 + ks, S_SLOT, 116 + ks))
        for r in self.c_reads(w3, 0, 0, False): a(r)
        for r in self.c_reads(w3, 0, 1, False): a(r)
        for c in range(8):
            a("s_barrier")
            extra = []
            if w3:
                extra += ["s_add_u32 s%d, s%d, %d" % (S_T1, S_SLOT, SLOT), "s_cmp_eq_u32 s%d, %d" % (S_T1, NSLOT * SLOT), "s_cselect_b32 s%d, 0, s%d" % (S_T1, S_T1),
                          "v_add_u32 v124, s%d, v116" % S_T1, "v_add_u32 v125, s%d, v117" % S_T1]
            for ks in range(4):
                if ks < 2: rd = self.c_reads(w3, c, ks + 2, False)
                else: rd = self.c_reads(w3, c + 1, ks - 2, True)
                if "cnoread" in self.exp: rd = []
                m = mfs(ks, c == 0 and ks == 0)
                if "cnomfma" in self.exp: m = []
                a("s_waitcnt lgkmcnt(%d)" % nr)
                half = (len(rd) + 1) // 2
                if m: a(m[0])
                if ks == 0:
                    for e in extra: a(e)
                for r in rd[:half]: a(r)
                if m: a(m[1])
                for r in rd[half:]: a(r)
                if ks == 3:
                    if w3:
                        a("s_mov_b32 s%d, s%d" % (S_SLOT, S_T1))
                        for k2 in range(4): a("v_add_u32 v%d, s%d, v%d" % (120 + k2, S_SLOT, 116 + k2))
                    else:
                        a("v_mov_b32 v%d, v%d" % (self.C_AC, self.C_AN))
                        a("s_add_u32 s%d, s%d, %d" % (S_SLOT, S_SLOT, SLOT))
                        a("s_cmp_eq_u32 s%d, %d" % (S_SLOT, NSLOT * SLOT))
                        a("s_cselect_b32 s%d, 0x%x, s64" % (S_T1, (-(NSLOT - 1) * SLOT) & 0xffffffff))
                        a("s_cselect_b32 s%d, 0, s%d" % (S_SLOT, S_SLOT))
                        a("v_add_u32 v%d, s%d, v%d" % (self.C_AN, S_T1, self.C_AN))
        a("s_waitcnt lgkmcnt(0)")

    def gelu_epilogue(self, dst):
        a = self.a
        E = 16
        c1 = -2.0 * math.sqrt(2.0 / math.pi) * math.log2(math.e)
        c2 = c1 * 0.044715
        a("v_mov_b32 v6, 0x%x" % f2u(c1))
        a("s_mov_b32 s%d, 0x%x" % (S_K2, f2u(c2)))
        a("s_mov_b32 s%d, 0x%x" % (S_K2 + 1, f2u(c2)))
        for pp in range(0, 16, 2):
            seq = [[], []]
            for u in range(2):
                pre = self.C_ACC + 2 * (pp + u)
                p2, e = E + u * 4, E + u * 4 + 2
                s = seq[u]
                s.append("v_pk_mul_f32 v[%d:%d], v[%d:%d], v[%d:%d]" % (p2, p2 + 1, pre, pre + 1, pre, pre + 1))
                s.append("v_pk_fma_f32 v[%d:%d], v[%d:%d], s[%d:%d], v[6:7] op_sel_hi:[1,1,0]" % (p2, p2 + 1, p2, p2 + 1, S_K2, S_K2 + 1))
                s.append("v_pk_mul_f32 v[%d:%d], v[%d:%d], v[%d:%d]" % (p2, p2 + 1, p2, p2 + 1, pre, pre + 1))
                s.append("v_exp_f32 v%d, v%d" % (e, p2))
                s.append("v_exp_f32 v%d, v%d" % (e + 1, p2 + 1))
                s.append("v_pk_add_f32 v[%d:%d], v[%d:%d], 1.0 op_sel_hi:[1,0]" % (e, e + 1, e, e + 1))
                s.append("v_rcp_f32 v%d, v%d" % (e, e))
                s.append("v_rcp_f32 v%d, v%d" % (e + 1, e + 1))
                s.append("v_pk_mul_f32 v[%d:%d], v[%d:%d], v[%d:%d]" % (e, e + 1, pre, pre + 1, e, e + 1))
                s.append("v_cvt_pk_bf16_f32 v%d, v%d, v%d" % (dst + pp + u, e, e + 1))
            for i in range(len(seq[0])):
                a(seq[0][i]); a(seq[1][i])

    def stats2_partial(self, src):
        a = self.a
        E = 16
        a("v_mov_b32 v24, 0x3f803f80")
        for i in range(4): a("v_mov_b32 v%d, 0" % (E + i))
        for r in range(8):
            for st in range(2):
                a("v_dot2c_f32_bf16 v%d, v%d, v24" % (E + 2 * st, src + 8 * st + r))
                a("v_dot2c_f32_bf16 v%d, v%d, v%d" % (E + 2 * st + 1, src + 8 * st + r, src + 8 * st + r))
        self.hsum([E, E + 1, E + 2, E + 3], E + 4)
        a("s_lshl_b32 s3, s%d, 9" % S_W)
        a("s_add_u32 s3, s3, %d" % LDS_T4)
        a("v_lshlrev_b32 v8, 3, v%d" % V_JL)
        a("v_add_u32 v8, s3, v8")
        a("ds_write_b64 v8, v[%d:%d]" % (E, E + 1))
        a("ds_write_b64 v8, v[%d:%d] offset:256" % (E + 2, E + 3))
        a("s_waitcnt lgkmcnt(0)")

    def dft_store(self, part):
        a = self.a
        a("s_lshl_b32 s3, s%d, 5" % S_J)
        a("v_add_u32 v6, s3, v%d" % V_SIG)
        a("v_lshlrev_b32 v6, 13, v6")
        a("v_lshl_add_u32 v6, v%d, 4, v6" % V_H)
        a("s_lshl_b32 s%d, s%d, 7" % (S_T0, S_MB))
        a("s_add_u32 s%d, s%d, 0x%x" % (S_T0, S_T0, WS_AB + part * 4096))
        for st in range(2):
            for Q in range(2):
                o = 16 + (st * 2 + Q) * 4
                for p in range(4):
                    acc = self.C_ACC + 16 * st + 8 * Q + 2 * p
                    a("v_cvt_pk_bf16_f32 v%d, v%d, v%d" % (o + p, acc, acc + 1))
                a("buffer_store_dwordx4 v[%d:%d], v6, s[%d:%d], s%d offen offset:%d sc1" % (o, o + 3, SRD_WS, SRD_WS + 3, S_T0, (32 * st + 16 * Q) * 2))

    def z2n_publish(self):
        a = self.a
        a("v_lshlrev_b32 v8, 3, v%d" % V_JL)
        a("v_add_u32 v8, %d, v8" % LDS_T5)
        a("ds_read_b64 v[16:17], v8")
        a("ds_read_b64 v[18:19], v8 offset:256")
        a("s_waitcnt lgkmcnt(0)")
        N = 32
        for st in range(2):
            r2 = 16 + 2 * st
            for r in range(8):
                src = self.C_Z2P + 8 * st + r
                t = 20 + 2 * (r % 4)
                a("v_lshlrev_b32 v%d, 16, v%d" % (t, src))
                a("v_and_b32 v%d, 0xffff0000, v%d" % (t + 1, src))
                a("v_pk_fma_f32 v[%d:%d], v[%d:%d], v[%d:%d], v[%d:%d] op_sel:[0,0,1] op_sel_hi:[1,0,1]" % (t, t + 1, t, t + 1, r2, r2 + 1, r2, r2 + 1))
                a("v_cvt_pk_bf16_f32 v%d, v%d, v%d" % (N + 8 * st + r, t, t + 1))
        for st in range(2):
            D = self.C_ACC + 16 * st
            a("v_mfma_f32_32x32x16_bf16 v[%d:%d], v[%d:%d], a[0:3], 0" % (D, D + 15, N + 8 * st, N + 8 * st + 3))
        for st in range(2):
            D = self.C_ACC + 16 * st
            a("v_mfma_f32_32x32x16_bf16 v[%d:%d], v[%d:%d], a[4:7], v[%d:%d]" % (D, D + 15, N + 8 * st + 4, N + 8 * st + 7, D, D + 15))
        a("s_lshl_b32 s%d, s%d, 7" % (S_T0, S_J))
        a("s_lshl_b32 s%d, s%d, 2" % (S_T1, S_MB))
        a("s_add_u32 s%d, s%d, s%d" % (S_T0, S_T0, S_T1))
        a("s_mul_i32 s%d, s%d, 3" % (S_T0, S_T0))
        a("s_add_u32 s%d, s%d, s%d" % (S_T0, S_T0, S_W))
        a("s_lshl_b32 s%d, s%d, 10" % (S_T0, S_T0))
        a("s_add_u32 s%d, s%d, 0x%x" % (S_T0, S_T0, WS_Z2N))
        a("v_lshlrev_b32 v8, 4, v%d" % V_LANE)
        for st in range(2):
            for Q in range(2):
                D = self.C_ACC + 16 * st + 8 * Q
                o = 48 + (st * 2 + Q) * 4
                for p in range(4):
                    a("v_cvt_pk_bf16_f32 v%d, v%d, v%d" % (o + p, D + 2 * p, D + 2 * p + 1))
                a("s_add_u32 s%d, s%d, %d" % (S_T1, S_T0, (2 * st + Q) * 3072))
                a("buffer_store_dwordx4 v[%d:%d], v8, s[%d:%d], s%d offen sc1" % (o, o + 3, SRD_WS, SRD_WS + 3, S_T1))

    def zero_acc(self):
        for i in range(32): self.a("v_mov_b32 v%d, 0" % (self.C_ACC + i))

    def p1_compute(self):
        a = self.a
        a("s_cmp_eq_u32 s%d, 3" % S_W)
        a("s_cbranch_scc1 L_c3")
        self.c_setup(False)
        a("s_mov_b32 s%d, 0" % S_C)
        a("s_mov_b32 s%d, %d" % (S_SLOT, SLOT))
        a("s_mov_b32 s%d, 0" % S_PASS)
        a("s_waitcnt lgkmcnt(0)")
        a("s_barrier")
        if "nopf" not in self.exp: self.prefetch_b()
        self.stamp(1)
        a.label("L_pass")
        self.c_loop(False)
        a("s_cmp_lg_u32 s%d, 0" % S_PASS)
        a("s_cbranch_scc1 L_passB_done")
        self.stamp(2)
        if "nopf" not in self.exp: self.prefetch_wsp()
        self.gelu_epilogue(self.C_Z2P)
        self.stats2_partial(self.C_Z2P)
        a("s_barrier")
        a("v_mov_b32 v6, 0")
        a("buffer_load_dword a8, v6, s[%d:%d], 0 offen sc1" % (SRD_DBG, SRD_DBG + 3))
        if "nopf" not in self.exp: self.prefetch_wout()
        self.stamp(3)
        a("s_mov_b32 s%d, 1" % S_PASS)
        a("s_branch L_pass")
        a.label("L_passB_done")
        self.stamp(4)
        self.gelu_epilogue(self.C_Z1P)
        a("s_barrier")
        self.stamp(5)
        self.z2n_publish()
        a("s_branch L_c_join")
        a.label("L_c3")
        self.c_setup(True)
        a("s_mov_b32 s%d, 0" % S_C)
        a("s_mov_b32 s%d, 0" % S_SLOT)
        a("s_mov_b32 s%d, 0" % S_PASS)
        a("s_waitcnt lgkmcnt(0)")
        a("s_barrier")
        if "nopf" not in self.exp: self.prefetch_b()
        a.label("L_pass3")
        self.c_loop(True)
        a("s_cmp_lg_u32 s%d, 0" % S_PASS)
        a("s_cbranch_scc1 L_passB3_done")
        if "nopf" not in self.exp: self.prefetch_wsp()
        self.dft_store(0)
        a("s_barrier")
        a("v_mov_b32 v6, 0")
        a("buffer_load_dword a8, v6, s[%d:%d], 0 offen sc1" % (SRD_DBG, SRD_DBG + 3))
        if "nopf" not in self.exp: self.prefetch_wout()
        a("s_mov_b32 s%d, 1" % S_PASS)
        a("s_branch L_pass3")
        a.label("L_passB3_done")
        self.dft_store(1)
        a("s_waitcnt vmcnt(0)")
        a("v_accvgpr_read_b32 v39, a8")
        self.nonce_from(39)
        self.flag_store(1, 3)
        a("s_barrier")
        a.label("L_c_join")

    def fix_x_after_pass(self):
        a = self.a
        a("v_subrev_u32 v%d, 8192, v%d" % (self.C_XA, self.C_XA))
        a("v_subrev_u32 v%d, 8192, v%d" % (self.C_XA + 1, self.C_XA + 1))

    def capture(self, fn):
        save = self.a
        tmp = Asm(); tmp.uid = save.uid + 1000
        self.a = tmp
        fn()
        self.a = save
        save.uid = tmp.uid
        return [i.text for i in tmp.ins]

    def h_loop(self, k0):
        a = self.a
        consts = self.capture(self.fft_consts) if (k0 == 8 and "nofft" not in self.exp) else []
        per = (len(consts) + 7) // 8
        for k in range(k0, k0 + 8):
            if k + 1 <= 15 and "hnowait" not in self.exp:
                younger = 4 * (min(k + 3, 15) - (k + 1))
                a("s_waitcnt vmcnt(%d)" % younger)
            a("s_barrier")
            if k + 4 <= 15: self.dma_chunk(k + 4)
            if k == 9:
                a("s_cmp_lg_u32 s%d, 0" % S_HW)
                a("s_cbranch_scc1 L_h_nf0")
                a("s_waitcnt vmcnt(8)")
                self.flag_store(0)
                a.label("L_h_nf0")
            if consts:
                piece = consts[(k - k0) * per:(k - k0 + 1) * per]
                lab = a.newlabel("fc")
                a("s_cmp_lt_u32 s%d, 2" % S_HW)
                a("s_cbranch_scc1 %s" % lab)
                for t in piece: a(t)
                a.label(lab)

    def stats2_publish(self):
        a = self.a
        E = 16
        a("v_lshlrev_b32 v8, 3, v%d" % V_JL)
        a("v_add_u32 v8, %d, v8" % LDS_T4)
        for w in range(3):
            for st in range(2):
                d = E + w * 4 + st * 2
                a("ds_read_b64 v[%d:%d], v8 offset:%d" % (d, d + 1, w * 512 + st * 256))
        a("s_waitcnt lgkmcnt(0)")
        for w in range(1, 3):
            for st in range(2):
                a("v_pk_add_f32 v[%d:%d], v[%d:%d], v[%d:%d]" % (E + st * 2, E + st * 2 + 1, E + st * 2, E + st * 2 + 1, E + w * 4 + st * 2, E + w * 4 + st * 2 + 1))
        a("s_lshl_b32 s%d, s%d, 3" % (S_T0, S_MB))
        a("s_add_u32 s%d, s%d, s%d" % (S_T0, S_T0, S_J))
        a("s_lshl_b32 s%d, s%d, 9" % (S_T0, S_T0))
        a("s_add_u32 s%d, s%d, 0x%x" % (S_T0, S_T0, WS_STATS))
        a("v_lshlrev_b32 v8, 4, v%d" % V_JL)
        a("s_mov_b32 exec_hi, 0")
        a("buffer_store_dwordx4 v[%d:%d], v8, s[%d:%d], s%d offen sc1" % (E, E + 3, SRD_WS, SRD_WS + 3, S_T0))
        a("s_mov_b64 exec, -1")

    def stats2_consume(self):
        a = self.a
        E = 16
        a("v_lshlrev_b32 v8, 5, v%d" % V_LANE)
        a("v_add_u32 v8, s%d, v8" % S_MB)
        a("v_lshlrev_b32 v8, 7, v8")
        self.poll_flags(8, 8)
        a("s_lshl_b32 s%d, s%d, 12" % (S_T0, S_MB))
        a("s_add_u32 s%d, s%d, 0x%x" % (S_T0, S_T0, WS_STATS))
        a("v_lshlrev_b32 v8, 4, v%d" % V_JL)
        for jj in range(8):
            a("buffer_load_dwordx4 v[%d:%d], v8, s[%d:%d], s%d offen offset:%d sc1" % (E + 4 * jj, E + 3 + 4 * jj, SRD_WS, SRD_WS + 3, S_T0, jj * 512))
        a("s_waitcnt vmcnt(0)")
        for jj in range(1, 8):
            for q in range(2):
                a("v_pk_add_f32 v[%d:%d], v[%d:%d], v[%d:%d]" % (E + 2 * q, E + 1 + 2 * q, E + 2 * q, E + 1 + 2 * q, E + 4 * jj + 2 * q, E + 1 + 4 * jj + 2 * q))
        for st in range(2):
            self.mean_rstd(E + 2 * st, E + 1 + 2 * st, 688, E + 4 + 2 * st, E + 5 + 2 * st, E + 10)
        a("v_lshlrev_b32 v8, 3, v%d" % V_JL)
        a("v_add_u32 v8, %d, v8" % LDS_T5)
        a("ds_write_b64 v8, v[%d:%d]" % (E + 4, E + 5))
        a("ds_write_b64 v8, v[%d:%d] offset:256" % (E + 6, E + 7))
        a("s_waitcnt lgkmcnt(0)")

    def angles(self, n_list, tq, base, dst):
        a = self.a
        for idx, n in enumerate(n_list):
            if n == 0: a("v_mov_b32 v%d, v%d" % (dst + idx, base))
            else: a("v_fmamk_f32 v%d, v%d, 0x%x, v%d" % (dst + idx, tq, f2u(float(n)), base))

    H_T1F, H_8H = 46, 47
    def fft_consts(self):
        a = self.a
        T = 16
        a("v_bfe_u32 v%d, v%d, 2, 1" % (T, V_JL))
        a("v_lshlrev_b32 v%d, 4, v%d" % (T, T))
        a("v_bfe_u32 v%d, v%d, 3, 2" % (T + 1, V_JL))
        a("v_lshl_or_b32 v%d, v%d, 2, v%d" % (T, T + 1, T))
        a("v_and_b32 v%d, 3, v%d" % (T + 1, V_JL))
        a("v_or_b32 v%d, v%d, v%d" % (T, T, T + 1))
        a("v_cvt_f32_u32 v%d, v%d" % (self.H_T1F, T))
        a("v_cvt_f32_u32 v%d, v%d" % (self.H_8H, V_H))
        a("v_mul_f32 v%d, 0x%x, v%d" % (self.H_8H, f2u(8.0), self.H_8H))
        a("v_mul_f32 v%d, 0x%x, v%d" % (T + 2, f2u(1.0 / 32), self.H_T1F))
        a("v_mul_f32 v%d, v%d, v%d" % (T + 3, T + 2, self.H_8H))
        A = T + 4; C = T + 12; S = T + 20
        for ks in range(2):
            self.angles([16 * ks + i for i in range(8)], T + 2, T + 3, A)
            for i in range(8): a("v_fract_f32 v%d, v%d" % (A + i, A + i))
            for i in range(8):
                a("v_cos_f32 v%d, v%d" % (C + i, A + i))
                a("v_sin_f32 v%d, v%d" % (S + i, A + i))
            for p in range(4):
                a("v_cvt_pk_bf16_f32 v%d, v%d, v%d" % (A + 0, C + 2 * p, C + 2 * p + 1))
                a("v_cvt_pk_bf16_f32 v%d, -v%d, -v%d" % (A + 1, S + 2 * p, S + 2 * p + 1))
                a("v_cvt_pk_bf16_f32 v%d, v%d, v%d" % (A + 2, S + 2 * p, S + 2 * p + 1))
                a("v_accvgpr_write_b32 a%d, v%d" % (4 * ks + p, A + 0))
                a("v_accvgpr_write_b32 a%d, v%d" % (8 + 4 * ks + p, A + 1))
                a("v_accvgpr_write_b32 a%d, v%d" % (16 + 4 * ks + p, A + 2))
        a("v_accvgpr_write_b32 a60, v%d" % self.H_T1F)
        a("v_accvgpr_write_b32 a61, v%d" % self.H_8H)
        a("s_sub_u32 s3, s%d, 2" % S_HW)
        a("s_lshl_b32 s3, s3, 5")
        a("v_add_u32 v%d, s3, v%d" % (T + 2, V_JL))
        a("v_cvt_f32_u32 v%d, v%d" % (T + 2, T + 2))
        a("v_mul_f32 v%d, 0x%x, v%d" % (T + 2, f2u(1.0 / 64), T + 2))
        a("v_mul_f32 v%d, v%d, v%d" % (T + 3, T + 2, self.H_8H))
        for kt in range(2):
            for kp in range(2):
                self.angles([32 * kt + 16 * kp + i for i in range(8)], T + 2, T + 3, A)
                for i in range(8): a("v_fract_f32 v%d, v%d" % (A + i, A + i))
                for i in range(8):
                    a("v_cos_f32 v%d, v%d" % (C + i, A + i))
                    a("v_sin_f32 v%d, v%d" % (S + i, A + i))
                for p in range(4):
                    a("v_cvt_pk_bf16_f32 v%d, v%d, v%d" % (A + 0, C + 2 * p, C + 2 * p + 1))
                    a("v_cvt_pk_bf16_f32 v%d, v%d, v%d" % (A + 1, S + 2 * p, S + 2 * p + 1))
                    a("v_accvgpr_write_b32 a%d, v%d" % (24 + 16 * kt + 4 * kp + p, A + 0))
                    a("v_accvgpr_write_b32 a%d, v%d" % (24 + 16 * kt + 8 + 4 * kp + p, A + 1))

    def p1_helper(self):
        a = self.a
        a("s_mov_b32 s%d, 0" % S_C)
        a("v_mov_b32 v6, 0")
        a("buffer_load_dword v%d, v6, s[%d:%d], 0 offen sc1" % (self.V_NON, SRD_DBG, SRD_DBG + 3))
        a("s_waitcnt vmcnt(13) lgkmcnt(0)")
        a("s_barrier")
        self.h_loop(0)
        self.nonce_from(self.V_NON)
        a("s_barrier")
        a("s_cmp_lg_u32 s%d, 0" % S_HW)
        a("s_cbranch_scc1 L_h_nopub")
        self.stats2_publish()
        a.label("L_h_nopub")
        self.h_loop(8)
        a("s_cmp_lg_u32 s%d, 1" % S_HW)
        a("s_cbranch_scc1 L_h_nocons")
        self.stats2_consume()
        a.label("L_h_nocons")
        a("s_barrier")

    G_B = 16
    G_VB = 10
    G_VZ = 32
    G_L16 = 35
    G_BS = 36
    G_RV = 40
    def ring_reg(self, f):
        if f < 8: return "a[%d:%d]" % (96 + 4 * f, 96 + 4 * f + 3)
        r = self.G_RV + 4 * (f - 8)
        return "v[%d:%d]" % (r, r + 3)

    def g_compute(self):
        a = self.a
        a("v_lshlrev_b32 v%d, 4, v%d" % (self.G_L16, V_LANE))
        a("v_and_b32 v5, 15, v%d" % V_SIG)
        a("v_xor_b32 v5, v5, v%d" % V_H)
        a("v_lshlrev_b32 v5, 4, v5")
        a("v_lshl_add_u32 v5, v%d, 8, v5" % V_SIG)
        a("s_lshl_b32 s3, s%d, 15" % S_W)
        a("v_add_u32 v104, s3, v5")
        for k in range(1, 8): a("v_xor_b32 v%d, %d, v104" % (104 + k, k * 32))
        a("s_sub_u32 s%d, s%d, 64" % (S_T2, S_WID))
        for tau in range(3):
            a("s_add_u32 s%d, s%d, %d" % (S_T0, S_W, tau))
            a("s_cmp_ge_u32 s%d, 3" % S_T0)
            a("s_cselect_b32 s%d, 3, 0" % S_T1)
            a("s_sub_u32 s%d, s%d, s%d" % (S_T0, S_T0, S_T1))
            a("s_lshl_b32 s%d, s%d, 10" % (S_T1, S_T0))
            a("v_add_u32 v5, s%d, v%d" % (S_T1, self.G_L16))
            a("v_mov_b32 v6, 0x%x" % OOB)
            a("v_cmp_le_u32 vcc, s%d, v%d" % (S_T2, V_SIG))
            a("s_cmp_eq_u32 s%d, 2" % S_T0)
            a("s_cselect_b64 s[%d:%d], vcc, 0" % (S_EX, S_EX + 1))
            a("v_cndmask_b32 v%d, v5, v6, s[%d:%d]" % (self.G_VZ + tau, S_EX, S_EX + 1))
        a("s_lshl_b32 s%d, s%d, 7" % (S_T0, S_MB))
        a("v_lshlrev_b32 v5, 1, v%d" % V_SIG)
        a("buffer_load_ushort v%d, v5, s[%d:%d], s%d offen" % (self.G_BS, SRD_BSP, SRD_BSP + 3, S_T0))
        a("buffer_load_ushort v%d, v5, s[%d:%d], s%d offen offset:64" % (self.G_BS + 1, SRD_BSP, SRD_BSP + 3, S_T0))
        a("s_lshl_b32 s3, s%d, 5" % S_J)
        a("s_lshl_b32 s%d, s%d, 3" % (S_T0, S_W))
        a("s_add_u32 s3, s3, s%d" % S_T0)
        a("v_add_u32 v38, s3, v%d" % V_LANE)
        a("v_lshlrev_b32 v38, 7, v38")
        a("v_add_u32 v38, 0x%x, v38" % (WS_FLAG + 256 * 128))
        a("s_lshl_b32 s%d, s%d, 7" % (S_B0, S_J))
        a("s_lshl_b32 s3, s%d, 5" % S_W)
        a("s_add_u32 s%d, s%d, s3" % (S_B0, S_B0))
        a("s_add_u32 s%d, s%d, s%d" % (S_RHO, S_MB, S_J))
        if "norot" in self.exp: a("s_mov_b32 s%d, 0" % S_RHO)
        for cc in range(4):
            a("s_add_u32 s3, s%d, %d" % (S_RHO, cc))
            a("s_and_b32 s3, s3, 3")
            a("s_lshl_b32 s3, s3, 3")
            a("s_add_u32 s3, s3, s%d" % S_B0)
            a("s_mul_i32 s3, s3, 3072")
            a("s_add_u32 s%d, s3, 0x%x" % (67 + cc, WS_Z2N))
        a("s_waitcnt vmcnt(0)")
        a("s_cmp_eq_u32 s%d, 3" % S_W)
        a("s_cbranch_scc1 L_g_nf")
        a("v_accvgpr_read_b32 v39, a8")
        self.nonce_from(39)
        self.flag_store(1, 0, S_W)
        a.label("L_g_nf")
        self.stamp(7)
        self.poll_flags_n(38, 8, 3, 16)
        self.stamp(8)
        self.stamp(26)
        vq = VQ(a)
        def zload(n):
            a("s_add_u32 s%d, s%d, %d" % (S_T0, 67 + n // 8, (n % 8) * 3072))
            for tau in range(3):
                f = (n % 8) * 3 + tau
                a("buffer_load_dwordx4 %s, v%d, s[%d:%d], s%d offen %s" % (self.ring_reg(f), self.G_VZ + tau, SRD_WS, SRD_WS + 3, S_T0, "" if "gplain" in self.exp else "sc1"))
                vq.issue(("z", n))
        for n in range(8): zload(n)
        B = self.G_B
        SY_FREE = LDS_SY + 0
        SY_LAND = LDS_SY + 16
        a("s_lshl_b32 s3, s%d, 2" % S_W)
        a("s_add_u32 s3, s3, %d" % LDS_SY)
        a("v_mov_b32 v14, s3")
        def land_check(cnt):
            lab = a.newlabel("ld")
            a("s_mov_b32 s%d, 0" % S_SPIN)
            a.label(lab)
            a("ds_read_b32 v15, v14 offset:16")
            a("s_waitcnt lgkmcnt(0)")
            a("v_readfirstlane_b32 s%d, v15" % S_T1)
            a("s_add_u32 s%d, s%d, 1" % (S_SPIN, S_SPIN))
            a("s_cmp_gt_u32 s%d, 0x100000" % S_SPIN)
            a("s_cbranch_scc1 %s_x" % lab)
            a("s_cmp_lt_u32 s%d, %d" % (S_T1, cnt))
            a("s_cbranch_scc1 %s" % lab)
            a.label(lab + "_x")
        def bread(n, st):
            cc, k = divmod(n, 8)
            r = B + (n & 1) * 8 + st * 4
            return "ds_read_b128 v[%d:%d], v%d offset:%d" % (r, r + 3, 104 + k, (cc & 1) * 16384 + st * 8192)
        land_check(2)
        a(bread(0, 0)); a(bread(0, 1))
        for n in range(32):
            cc, k = divmod(n, 8)
            buf = n & 1
            vq.wait(("z", n))
            nxt = n + 1 < 32
            if nxt and (n + 1) % 8 == 0 and (n + 1) // 8 >= 2 and "gnoland" not in self.exp:
                a("s_waitcnt lgkmcnt(0)")
                land_check((n + 1) // 8 + 1)
            else:
                a("s_waitcnt lgkmcnt(0)")
            fill = []
            if nxt: fill += [bread(n + 1, 0), bread(n + 1, 1)]
            zl = []
            if n + 8 < 32:
                zl.append("s_add_u32 s%d, s%d, %d" % (S_T0, 67 + (n + 8) // 8, ((n + 8) % 8) * 3072))
            mi = 0
            for tau in range(3):
                for st in range(2):
                    D = (tau * 2 + st) * 16
                    Br = B + buf * 8 + st * 4
                    cc_ = "0" if n == 0 else "a[%d:%d]" % (D, D + 15)
                    a("v_mfma_f32_32x32x16_bf16 a[%d:%d], %s, v[%d:%d], %s" % (D, D + 15, self.ring_reg((n % 8) * 3 + tau), Br, Br + 3, cc_))
                    if mi == 0:
                        for f in fill: a(f)
                        for f in zl: a(f)
                    if st == 1 and n + 8 < 32 and "gnoz" not in self.exp:
                        f = (n % 8) * 3 + tau
                        a("buffer_load_dwordx4 %s, v%d, s[%d:%d], s%d offen %s" % (self.ring_reg(f), self.G_VZ + tau, SRD_WS, SRD_WS + 3, S_T0, "" if "gplain" in self.exp else "sc1"))
                        vq.issue(("z", n + 8))
                    mi += 1
            if k == 7 and cc < 2:
                a("v_mov_b32 v15, %d" % (cc + 1))
                a("ds_write_b32 v14, v15")
        self.stamp(27)
        self.stamp(10)
        self.g_reduce()

    def wsp_dma16(self, cc, sbase, slds):
        a = self.a
        for q in range(16):
            a("s_add_u32 s%d, s%d, %d" % (S_T0, 67 + cc, q * 4 * 4096))
            a("s_add_u32 m0, s%d, %d" % (slds, (cc & 1) * 16384 + q * 1024))
            a("buffer_load_dwordx4 v%d, s[%d:%d], s%d offen lds" % (16 + (q & 3), SRD_WSP, SRD_WSP + 3, S_T0))

    def g_helper(self):
        a = self.a
        L = V_LANE
        a("v_lshrrev_b32 v5, 4, v%d" % L)
        a("v_and_b32 v6, 15, v%d" % L)
        for qq in range(4):
            a("v_add_u32 v7, %d, v5" % (4 * qq))
            a("v_xor_b32 v7, v7, v6")
            a("v_lshlrev_b32 v7, 4, v7")
            a("v_lshl_add_u32 v%d, v5, 12, v7" % (16 + qq))
        a("s_lshl_b32 s%d, s%d, 18" % (S_B0, S_MB))
        a("s_lshl_b32 s3, s%d, 10" % S_HW)
        a("s_add_u32 s%d, s%d, s3" % (S_B0, S_B0))
        a("s_add_u32 s%d, s%d, s%d" % (S_RHO, S_MB, S_J))
        if "norot" in self.exp: a("s_mov_b32 s%d, 0" % S_RHO)
        for cc in range(4):
            a("s_add_u32 s3, s%d, %d" % (S_RHO, cc))
            a("s_and_b32 s3, s3, 3")
            a("s_lshl_b32 s3, s3, 8")
            a("s_add_u32 s%d, s3, s%d" % (67 + cc, S_B0))
        a("s_lshl_b32 s%d, s%d, 15" % (S_T3, S_HW))
        for c in range(2): self.wsp_dma16(c, S_B0, S_T3)
        a("s_cmp_lt_u32 s%d, 2" % S_HW)
        a("s_cbranch_scc1 L_gh_nofft")
        a.label("L_gh_nofft")
        a("s_waitcnt vmcnt(0)")
        a("s_lshl_b32 s3, s%d, 2" % S_HW)
        a("s_add_u32 s%d, s3, %d" % (S_T2, LDS_SY))
        a("v_mov_b32 v8, s%d" % S_T2)
        a("v_mov_b32 v6, 2")
        a("ds_write_b32 v8, v6 offset:16")
        a("s_cmp_lt_u32 s%d, 2" % S_HW)
        a("s_cbranch_scc1 L_gh_noy")
        if "nofft" not in self.exp: self.fft()
        a("s_waitcnt vmcnt(0)")
        a("s_sub_u32 s%d, s%d, 2" % (S_T1, S_HW))
        self.flag_store(3, 0, S_T1)
        a.label("L_gh_noy")
        self.stamp(19)
        a("s_lshl_b32 s3, s%d, 2" % S_HW)
        a("s_add_u32 s3, s3, %d" % LDS_SY)
        a("v_mov_b32 v12, s3")
        a("v_lshrrev_b32 v5, 4, v%d" % L)
        a("v_and_b32 v6, 15, v%d" % L)
        for qq in range(4):
            a("v_add_u32 v7, %d, v5" % (4 * qq))
            a("v_xor_b32 v7, v7, v6")
            a("v_lshlrev_b32 v7, 4, v7")
            a("v_lshl_add_u32 v%d, v5, 12, v7" % (16 + qq))
        for cc in ((2, 3) if "nostage" not in self.exp else ()):
            for q in range(16):
                r = (cc - 2) * 64 + 4 * q
                a("s_add_u32 s%d, s%d, %d" % (S_T0, 67 + cc, q * 4 * 4096))
                a("buffer_load_dwordx4 a[%d:%d], v%d, s[%d:%d], s%d offen" % (r, r + 3, 16 + (q & 3), SRD_WSP, SRD_WSP + 3, S_T0))
        self.stamp(20)
        a("v_lshlrev_b32 v13, 4, v%d" % L)
        a("s_lshl_b32 s3, s%d, 15" % S_HW)
        a("v_add_u32 v13, s3, v13")
        for cc in (2, 3):
            lab = a.newlabel("fr")
            a("s_mov_b32 s%d, 0" % S_SPIN)
            a.label(lab)
            a("ds_read_b32 v5, v12")
            a("s_waitcnt lgkmcnt(0)")
            a("v_readfirstlane_b32 s%d, v5" % S_T0)
            a("s_add_u32 s%d, s%d, 1" % (S_SPIN, S_SPIN))
            a("s_cmp_gt_u32 s%d, 0x100000" % S_SPIN)
            a("s_cbranch_scc1 %s_x" % lab)
            a("s_cmp_lt_u32 s%d, %d" % (S_T0, cc - 1))
            a("s_cbranch_scc0 %s_x" % lab)
            a("s_sleep 1")
            a("s_branch %s" % lab)
            a.label(lab + "_x")
            self.stamp(21 if cc == 2 else 23)
            a("s_waitcnt vmcnt(%d)" % (16 if cc == 2 else 0))
            if cc == 2: self.stamp(22)
            for q in range(16):
                r = (cc - 2) * 64 + 4 * q
                a("ds_write_b128 v13, a[%d:%d] offset:%d" % (r, r + 3, (cc & 1) * 16384 + q * 1024))
            a("v_mov_b32 v6, %d" % (cc + 1))
            a("s_waitcnt lgkmcnt(0)")
            a("ds_write_b32 v12, v6 offset:16")
        self.stamp(9)
        a("s_barrier")
        a("v_lshrrev_b32 v5, 3, v%d" % L)
        a("v_and_b32 v6, 7, v%d" % L)
        a("v_bfe_u32 v7, v%d, 4, 1" % L)
        a("v_lshlrev_b32 v7, 2, v7")
        a("v_xor_b32 v6, v6, v7")
        a("v_lshlrev_b32 v6, 4, v6")
        a("v_lshl_add_u32 v9, v5, 10, v6")
        a("s_lshl_b32 s3, s%d, 7" % S_J)
        a("v_add_u32 v9, s3, v9")
        a("s_add_u32 s3, s%d, s%d" % (S_HW, S_MB))
        a("s_and_b32 s3, s3, 3")
        a("s_mul_i32 s%d, s3, %d" % (S_T1, 22 * 8192))
        a("s_mul_i32 s%d, s3, %d" % (S_T2, 22 * 1024))
        for q in range(22):
            if q == 8: a("s_barrier")
            a("s_add_u32 m0, s%d, %d" % (S_T2, LDS_WO + q * 1024))
            a("s_add_u32 s%d, s%d, %d" % (S_T0, S_T1, q * 8192))
            a("buffer_load_dwordx4 v9, s[%d:%d], s%d offen lds" % (SRD_WOUT, SRD_WOUT + 3, S_T0))
        a("s_waitcnt vmcnt(0)")
        a("s_barrier")
        a("s_barrier")

    def fft(self):
        a = self.a
        a("v_accvgpr_read_b32 v10, a60")
        a("v_accvgpr_read_b32 v11, a61")
        a("s_lshl_b32 s3, s%d, 5" % S_J)
        a("v_add_u32 v12, s3, v%d" % V_LANE)
        a("v_lshlrev_b32 v12, 7, v12")
        a("v_add_u32 v12, 0x%x, v12" % (WS_FLAG + 256 * 128 + 12))
        self.stamp(16)
        self.poll_flags_n(12, 32, 1, 16)
        self.stamp(17)
        a("v_lshlrev_b32 v13, 4, v%d" % V_LANE)
        a("s_lshl_b32 s3, s%d, 13" % S_L)
        a("s_add_u32 s3, s3, 0x%x" % WS_AB)
        X = 32
        for i in range(8):
            a("buffer_load_dwordx4 v[%d:%d], v13, s[%d:%d], s3 offen sc1" % (X + 4 * i, X + 4 * i + 3, SRD_WS, SRD_WS + 3))
            if i < 7: a("s_add_u32 s3, s3, 1024")
        a("s_sub_u32 s%d, s%d, 2" % (S_T1, S_HW))
        a("s_lshl_b32 s%d, s%d, 13" % (S_T2, S_T1))
        a("s_add_u32 s%d, s%d, %d" % (S_T2, S_T2, LDS_FX))
        a("v_add_u32 v14, s%d, v13" % S_T2)
        a("v_bfe_u32 v7, v%d, 2, 2" % V_LANE)
        a("v_lshl_add_u32 v7, v%d, 3, v7" % V_H)
        a("v_lshlrev_b32 v7, 7, v7")
        a("v_bfe_u32 v8, v%d, 4, 1" % V_LANE)
        a("v_lshlrev_b32 v8, 5, v8")
        a("v_and_b32 v9, 1, v%d" % V_LANE)
        a("v_lshl_add_u32 v8, v9, 4, v8")
        a("v_bfe_u32 v9, v%d, 1, 1" % V_LANE)
        a("v_lshl_add_u32 v8, v9, 3, v8")
        a("v_add_u32 v7, v7, v8")
        a("v_add_u32 v15, s%d, v7" % S_T2)
        a("s_waitcnt vmcnt(0)")
        self.stamp(18)
        for i in range(8):
            a("ds_write_b128 v14, v[%d:%d] offset:%d" % (X + 4 * i, X + 4 * i + 3, i * 1024))
        URE, UIM, A1, TC, TS, A2 = 32, 48, 16, 64, 80, 104
        D2 = 64
        def mm(D, A, B, first, dfile="v", afile="v", bfile="a"):
            a("v_mfma_f32_32x32x16_bf16 %s[%d:%d], %s[%d:%d], %s[%d:%d], %s" % (dfile, D, D + 15, afile, A, A + 3, bfile, B, B + 3, "0" if first else "%s[%d:%d]" % (dfile, D, D + 15)))
        for kt in range(2):
            a("v_mul_f32 v12, 0x%x, v10" % (f2u(1.0 / 2048)))
            a("v_mul_f32 v13, v12, v11")
            if kt == 0: a("s_waitcnt lgkmcnt(0)")
            for ks in range(4):
                for q in range(2):
                    r = A1 + 4 * ks + 2 * q
                    a("ds_read_b64_tr_b16 v[%d:%d], v15 offset:%d" % (r, r + 1, (ks >> 1) * 4096 + (ks & 1) * 2048 + q * 512 + kt * 64))
            for half in range(2):
                self.angles([32 * kt + 16 * half + i for i in range(8)], 12, 13, 120)
                for i in range(8):
                    a("v_cos_f32 v%d, v%d" % (TC + 8 * half + i, 120 + i))
                    a("v_sin_f32 v%d, v%d" % (TS + 8 * half + i, 120 + i))
            a("s_waitcnt lgkmcnt(0)")
            FRE, FIM, NFIM = 0, 8, 16
            mm(URE, A1, FRE, True); mm(UIM, A1, FIM, True)
            mm(URE, A1 + 4, FRE + 4, False); mm(UIM, A1 + 4, FIM + 4, False)
            mm(URE, A1 + 8, NFIM, False); mm(UIM, A1 + 8, FRE, False)
            mm(URE, A1 + 12, NFIM + 4, False); mm(UIM, A1 + 12, FRE + 4, False)
            for p in range(8):
                re, im, c, s_ = URE + 2 * p, UIM + 2 * p, TC + 2 * p, TS + 2 * p
                t0 = 96 + (p % 2) * 4
                a("v_pk_mul_f32 v[%d:%d], v[%d:%d], v[%d:%d]" % (t0, t0 + 1, im, im + 1, s_, s_ + 1))
                a("v_pk_mul_f32 v[%d:%d], v[%d:%d], v[%d:%d]" % (t0 + 2, t0 + 3, re, re + 1, s_, s_ + 1))
                a("v_pk_fma_f32 v[%d:%d], v[%d:%d], v[%d:%d], v[%d:%d]" % (t0, t0 + 1, re, re + 1, c, c + 1, t0, t0 + 1))
                a("v_pk_fma_f32 v[%d:%d], v[%d:%d], v[%d:%d], v[%d:%d] neg_lo:[0,0,1] neg_hi:[0,0,1]" % (t0 + 2, t0 + 3, im, im + 1, c, c + 1, t0 + 2, t0 + 3))
                a("v_cvt_pk_bf16_f32 v%d, v%d, v%d" % (A2 + p, t0, t0 + 1))
                a("v_cvt_pk_bf16_f32 v%d, v%d, v%d" % (A2 + 8 + p, t0 + 2, t0 + 3))
            G = 24 + 16 * kt
            mm(D2, A2, G, kt == 0, dfile="a"); mm(D2, A2 + 4, G + 4, False, dfile="a")
            mm(D2, A2 + 8, G + 8, False, dfile="a"); mm(D2, A2 + 12, G + 12, False, dfile="a")
        a("s_lshl_b32 s3, s%d, 12" % S_T1)
        a("s_lshl_b32 s%d, s%d, 13" % (S_T0, S_L))
        a("s_add_u32 s3, s3, s%d" % S_T0)
        a("s_add_u32 s3, s3, 0x%x" % WS_YT)
        a("v_lshlrev_b32 v6, 7, v%d" % V_JL)
        a("v_lshl_add_u32 v6, v%d, 6, v6" % V_H)
        for q in range(4):
            a("buffer_store_dwordx4 a[%d:%d], v6, s[%d:%d], s3 offen offset:%d sc1" % (D2 + 4 * q, D2 + 4 * q + 3, SRD_WS, SRD_WS + 3, q * 16))

    def g_reduce(self):
        a = self.a
        L16 = self.G_L16
        a("s_barrier")
        for tau in (1, 2, 0):
            if tau == 0:
                a("s_cmp_lg_u32 s%d, 3" % S_W)
                a("s_cbranch_scc1 L_exp_done")
            a("s_add_u32 s%d, s%d, %d" % (S_T0, S_W, tau))
            a("s_cmp_ge_u32 s%d, 3" % S_T0)
            a("s_cselect_b32 s%d, 3, 0" % S_T1)
            a("s_sub_u32 s%d, s%d, s%d" % (S_T0, S_T0, S_T1))
            a("s_sub_u32 s%d, s%d, s%d" % (S_T1, S_W, S_T0))
            a("s_sub_u32 s%d, s%d, 1" % (S_T1, S_T1))
            a("s_and_b32 s%d, s%d, 3" % (S_T1, S_T1))
            a("s_mul_i32 s%d, s%d, 3" % (S_T0, S_T0))
            a("s_add_u32 s%d, s%d, s%d" % (S_T0, S_T0, S_T1))
            a("s_lshl_b32 s%d, s%d, 13" % (S_T0, S_T0))
            a("v_add_u32 v5, s%d, v%d" % (S_T0, L16))
            for st in range(2):
                for q in range(4):
                    r = (tau * 2 + st) * 16 + 4 * q
                    a("ds_write_b128 v5, a[%d:%d] offset:%d" % (r, r + 3, st * 4096 + q * 1024))
        a.label("L_exp_done")
        a("s_waitcnt lgkmcnt(0)")
        a("s_barrier")
        self.stamp(11)
        a("s_cmp_eq_u32 s%d, 3" % S_W)
        a("s_cbranch_scc1 L_h_done")
        G = 40
        I = 72
        a("s_mul_i32 s%d, s%d, %d" % (S_T0, S_W, 3 * 8192))
        a("v_add_u32 v5, s%d, v%d" % (S_T0, L16))
        for st in range(2):
            for q in range(4):
                r = G + st * 16 + 4 * q
                a("ds_read_b128 v[%d:%d], v5 offset:%d" % (r, r + 3, 0 * 8192 + st * 4096 + q * 1024))
        for st in range(2):
            for q in range(4):
                r = I + st * 16 + 4 * q
                a("ds_read_b128 v[%d:%d], v5 offset:%d" % (r, r + 3, 1 * 8192 + st * 4096 + q * 1024))
        a("s_waitcnt lgkmcnt(0)")
        for p in range(16): a("v_pk_add_f32 v[%d:%d], v[%d:%d], v[%d:%d]" % (G + 2 * p, G + 2 * p + 1, G + 2 * p, G + 2 * p + 1, I + 2 * p, I + 2 * p + 1))
        for st in range(2):
            for q in range(4):
                r = I + st * 16 + 4 * q
                a("ds_read_b128 v[%d:%d], v5 offset:%d" % (r, r + 3, 2 * 8192 + st * 4096 + q * 1024))
        for i in range(0, 32, 8):
            for k in range(8): a("v_accvgpr_read_b32 v%d, a%d" % (16 + k, i + k))
            for p in range(4): a("v_pk_add_f32 v[%d:%d], v[%d:%d], v[%d:%d]" % (G + i + 2 * p, G + i + 2 * p + 1, G + i + 2 * p, G + i + 2 * p + 1, 16 + 2 * p, 16 + 2 * p + 1))
        a("s_waitcnt lgkmcnt(0)")
        for p in range(16): a("v_pk_add_f32 v[%d:%d], v[%d:%d], v[%d:%d]" % (G + 2 * p, G + 2 * p + 1, G + 2 * p, G + 2 * p + 1, I + 2 * p, I + 2 * p + 1))
        for st in range(2): a("v_lshlrev_b32 v%d, 16, v%d" % (self.G_BS + st, self.G_BS + st))
        for st in range(2):
            for r in range(8):
                src = self.C_Z1P + 8 * st + r
                g = G + 16 * st + 2 * r
                t = 16 + 2 * (r % 4)
                a("v_lshlrev_b32 v%d, 16, v%d" % (t, src))
                a("v_and_b32 v%d, 0xffff0000, v%d" % (t + 1, src))
                sel = "op_sel:[0,%d] op_sel_hi:[1,%d]" % (st, st)
                a("v_pk_add_f32 v[%d:%d], v[%d:%d], v[%d:%d] %s" % (g, g + 1, g, g + 1, self.G_BS, self.G_BS + 1, sel))
                a("v_pk_mul_f32 v[%d:%d], v[%d:%d], v[%d:%d]" % (g, g + 1, g, g + 1, t, t + 1))
                a("v_cvt_pk_bf16_f32 v%d, v%d, v%d" % (I + 8 * st + r, g, g + 1))
        a("s_mul_i32 s%d, s%d, 96" % (S_T0, S_MB))
        a("s_mul_i32 s%d, s%d, 6" % (S_T1, S_J))
        a("s_add_u32 s%d, s%d, s%d" % (S_T0, S_T0, S_T1))
        a("s_lshl_b32 s%d, s%d, 1" % (S_T1, S_W))
        a("s_add_u32 s%d, s%d, s%d" % (S_T0, S_T0, S_T1))
        a("s_lshl_b32 s%d, s%d, 10" % (S_T0, S_T0))
        a("s_add_u32 s%d, s%d, 0x%x" % (S_T0, S_T0, WS_H))
        for st in range(2):
            for Q in range(2):
                r = I + 8 * st + 4 * Q
                a("s_add_u32 s%d, s%d, %d" % (S_T1, S_T0, (st * 48 + Q) * 1024))
                a("buffer_store_dwordx4 v[%d:%d], v%d, s[%d:%d], s%d offen sc1" % (r, r + 3, L16, SRD_WS, SRD_WS + 3, S_T1))
        a("s_waitcnt vmcnt(0)")
        self.flag_store(2, 0, S_W)
        a.label("L_h_done")
        self.o_pre()
        a("s_barrier")
        self.stamp(12)

    def o_pre(self):
        a = self.a
        L16 = self.G_L16
        a("s_lshr_b32 s%d, s%d, 1" % (S_T0, S_W))
        a("s_lshl_b32 s3, s%d, 6" % S_J)
        a("s_lshl_b32 s%d, s%d, 5" % (S_T2, S_T0))
        a("s_add_u32 s%d, s3, s%d" % (S_T2, S_T2))
        a("s_lshl_b32 s3, s%d, 2" % S_T0)
        a("v_add_u32 v40, s3, v%d" % V_LANE)
        a("v_lshlrev_b32 v40, 5, v40")
        a("v_add_u32 v40, s%d, v40" % S_MB)
        a("v_lshlrev_b32 v40, 7, v40")
        a("v_add_u32 v40, 0x%x, v40" % (WS_FLAG + 2 * 256 * 128))
        a("v_add_u32 v5, s%d, v%d" % (S_T2, V_LANE))
        a("v_sub_u32 v6, 512, v5")
        a("v_cmp_lt_u32 vcc, 256, v5")
        a("v_cndmask_b32 v6, v5, v6, vcc")
        a("v_and_b32 v6, 255, v6")
        a("v_lshlrev_b32 v43, 7, v6")
        a("v_add_u32 v43, 0x%x, v43" % (WS_FLAG + 3 * 256 * 128))
        a("s_and_b32 s%d, s%d, 1" % (S_T1, S_W))
        a("s_lshl_b32 s3, s%d, 6" % S_MB)
        a("s_lshl_b32 s%d, s%d, 5" % (S_T3, S_T1))
        a("s_add_u32 s3, s3, s%d" % S_T3)
        a("v_add_u32 v41, s3, v%d" % V_SIG)
        a("v_lshlrev_b32 v42, 10, v41")
        a("v_lshl_add_u32 v42, v%d, 4, v42" % V_H)
        a("s_lshl_b32 s3, s%d, 1" % S_T2)
        a("v_add_u32 v42, s3, v42")
        XR = 44
        a("buffer_load_dwordx4 v[%d:%d], v42, s[%d:%d], 0 offen" % (XR, XR + 3, SRD_X, SRD_X + 3))
        a("buffer_load_dwordx4 v[%d:%d], v42, s[%d:%d], 0 offen offset:32" % (XR + 4, XR + 7, SRD_X, SRD_X + 3))
        a("v_bfe_u32 v5, v%d, 2, 2" % V_LANE)
        a("v_lshl_add_u32 v5, v%d, 3, v5" % V_H)
        a("v_lshlrev_b32 v5, 7, v5")
        a("v_bfe_u32 v6, v%d, 4, 1" % V_LANE)
        a("v_lshlrev_b32 v6, 1, v6")
        a("v_and_b32 v7, 1, v%d" % V_LANE)
        a("v_or_b32 v6, v6, v7")
        a("v_bfe_u32 v7, v%d, 3, 1" % V_LANE)
        a("v_lshlrev_b32 v7, 2, v7")
        a("v_xor_b32 v6, v6, v7")
        a("s_lshl_b32 s3, s%d, 2" % S_T0)
        a("v_xor_b32 v6, s3, v6")
        a("v_bfe_u32 v7, v%d, 1, 1" % V_LANE)
        a("v_lshlrev_b32 v7, 3, v7")
        a("v_add_u32 v5, v5, v7")
        a("s_mul_i32 s3, s%d, %d" % (S_T0, 352 * 128))
        a("s_add_u32 s3, s3, %d" % LDS_WO)
        a("v_add_u32 v5, s3, v5")
        WA = 52
        a("v_lshl_add_u32 v%d, v6, 4, v5" % WA)
        a("v_xor_b32 v6, 4, v6")
        a("v_lshl_add_u32 v%d, v6, 4, v5" % (WA + 1))
        a("s_cmp_eq_u32 s%d, 0" % S_T0)
        a("s_cselect_b32 s3, 8, 0")
        a("s_add_u32 s3, s3, 256")
        a("s_lshl_b32 s3, s3, 7")
        a("v_add_u32 v%d, s3, v%d" % (WA + 2, WA))
        a("v_add_u32 v%d, s3, v%d" % (WA + 3, WA + 1))
        a("v_lshlrev_b32 v5, 2, v41")
        a("v_sub_u32 v6, 2048, v41")
        a("v_and_b32 v6, 2047, v6")
        a("v_lshlrev_b32 v6, 2, v6")
        a("v_lshlrev_b32 v7, 3, v%d" % V_H)
        a("v_add_u32 v7, s%d, v7" % S_T2)
        a("v_lshl_add_u32 v8, v7, 13, v5")
        a("v_sub_u32 v9, %d, v7" % (512 - 23))
        a("v_lshl_add_u32 v9, v9, 13, v6")
        a("s_cmp_ge_u32 s%d, 256" % S_T2)
        a("s_cselect_b64 vcc, -1, 0")
        a("s_cselect_b32 s%d, 1, 0" % S_T3)
        a("v_cndmask_b32 v56, v8, v9, vcc")
        a("s_cselect_b32 s3, %d, 0" % (23 * 8192))
        a("v_add_u32 v8, s3, v56")
        a("v_mov_b32 v9, 0x%x" % OOB)
        a("v_cmp_eq_u32 vcc, 0, v7")
        a("v_cndmask_b32 v8, v8, v9, vcc")
        a("v_cmp_eq_u32 vcc, 256, v7")
        a("v_cndmask_b32 v57, v8, v5, vcc")
        a("s_lshl_b32 s3, s%d, 1" % S_MB)
        a("s_add_u32 s3, s3, s%d" % S_T1)
        a("s_mul_i32 s3, s3, 48")
        a("s_mul_i32 s%d, s%d, 24" % (S_B0, S_T0))
        a("s_add_u32 s%d, s%d, s3" % (S_B0, S_B0))
        a("s_lshl_b32 s%d, s%d, 10" % (S_B0, S_B0))
        a("s_add_u32 s%d, s%d, 0x%x" % (S_B0, S_B0, WS_H))
        self.poll_flags_n(43, 32, 2, 60)
        Y = 64
        for rho in range(16):
            k = 16 * (rho >> 3) + (rho & 7)
            if rho == 0:
                a("s_mov_b32 s3, 0x%x" % WS_YT)
                a("buffer_load_dword v%d, v57, s[%d:%d], s3 offen sc1" % (Y, SRD_WS, SRD_WS + 3))
            else:
                a("s_cmp_eq_u32 s%d, 1" % S_T3)
                a("s_cselect_b32 s3, %d, %d" % (23 - k, k))
                a("s_lshl_b32 s3, s3, 13")
                a("s_add_u32 s3, s3, 0x%x" % WS_YT)
                a("buffer_load_dword v%d, v56, s[%d:%d], s3 offen sc1" % (Y + rho, SRD_WS, SRD_WS + 3))

    def phase_o(self):
        a = self.a
        L16 = self.G_L16
        XR = 44; WA = 52; Y = 64
        self.poll_flags_n(40, 4, 3, 60)
        self.stamp(13)
        vq = VQ(a)
        for n in range(24):
            r = 32 + 4 * n
            a("buffer_load_dwordx4 a[%d:%d], v%d, s[%d:%d], s%d offen sc1" % (r, r + 3, L16, SRD_WS, SRD_WS + 3, S_B0)); vq.issue(("h", n))
            if n < 23: a("s_add_u32 s%d, s%d, 1024" % (S_B0, S_B0))
        FA = 16
        def areads(n, buf):
            jj, rem = divmod(n, 6); ft, Q = divmod(rem, 2)
            for tp in range(2):
                base = WA + tp if jj < 3 else WA + 2 + tp
                off = ((88 * jj if jj < 3 else 0) + 32 * ft + 16 * Q) * 128
                r = FA + buf * 8 + tp * 4
                a("ds_read_b64_tr_b16 v[%d:%d], v%d offset:%d" % (r, r + 1, base, off))
                a("ds_read_b64_tr_b16 v[%d:%d], v%d offset:%d" % (r + 2, r + 3, base, off + 512))
        areads(0, 0)
        for n in range(24):
            buf = n & 1
            if n < 23:
                areads(n + 1, buf ^ 1)
                vq.wait(("h", n))
                a("s_waitcnt lgkmcnt(4)")
            else:
                vq.wait(("h", n))
                a("s_waitcnt lgkmcnt(0)")
            for tp in range(2):
                D = tp * 16
                Ar = FA + buf * 8 + tp * 4
                Br = 32 + 4 * n
                cc = "0" if n == 0 else "a[%d:%d]" % (D, D + 15)
                a("v_mfma_f32_32x32x16_bf16 a[%d:%d], v[%d:%d], a[%d:%d], %s" % (D, D + 15, Ar, Ar + 3, Br, Br + 3, cc))
        self.stamp(14)
        a("s_lshl_b32 s3, s%d, 12" % S_W)
        a("v_add_u32 v58, s3, v%d" % L16)
        for q in range(4):
            a("ds_write_b128 v58, a[%d:%d] offset:%d" % (16 + 4 * q, 16 + 4 * q + 3, q * 1024))
        a("s_waitcnt lgkmcnt(0)")
        a("s_barrier")
        a("v_xor_b32 v58, 0x2000, v58")
        O = 80
        for q in range(4):
            a("ds_read_b128 v[%d:%d], v58 offset:%d" % (O + 4 * q, O + 4 * q + 3, q * 1024))
        for i in range(16): a("v_accvgpr_read_b32 v%d, a%d" % (96 + i, i))
        a("s_waitcnt lgkmcnt(0)")
        for p in range(8):
            a("v_pk_add_f32 v[%d:%d], v[%d:%d], v[%d:%d]" % (O + 2 * p, O + 2 * p + 1, O + 2 * p, O + 2 * p + 1, 96 + 2 * p, 96 + 2 * p + 1))
        nl2e = f2u(-math.log2(math.e))
        a("s_mov_b32 s%d, 0x%x" % (S_K2, nl2e))
        a("s_mov_b32 s%d, 0x%x" % (S_K2 + 1, nl2e))
        for p in range(8):
            o = O + 2 * p; t = 96 + 2 * p
            a("v_pk_mul_f32 v[%d:%d], v[%d:%d], s[%d:%d]" % (t, t + 1, o, o + 1, S_K2, S_K2 + 1))
            a("v_exp_f32 v%d, v%d" % (t, t))
            a("v_exp_f32 v%d, v%d" % (t + 1, t + 1))
            a("v_pk_add_f32 v[%d:%d], v[%d:%d], 1.0 op_sel_hi:[1,0]" % (t, t + 1, t, t + 1))
            a("v_rcp_f32 v%d, v%d" % (t, t))
            a("v_rcp_f32 v%d, v%d" % (t + 1, t + 1))
            a("v_pk_mul_f32 v[%d:%d], v[%d:%d], v[%d:%d]" % (o, o + 1, o, o + 1, t, t + 1))
        a("s_waitcnt vmcnt(0)")
        for p in range(8):
            o = O + 2 * p; t = 96 + 2 * p; y = Y + 2 * p; xr = XR + p
            a("v_lshlrev_b32 v%d, 16, v%d" % (t, xr))
            a("v_and_b32 v%d, 0xffff0000, v%d" % (t + 1, xr))
            a("v_pk_fma_f32 v[%d:%d], v[%d:%d], v[%d:%d], v[%d:%d]" % (t, t + 1, y, y + 1, o, o + 1, t, t + 1))
            a("v_cvt_pk_bf16_f32 v%d, v%d, v%d" % (112 + p, t, t + 1))
        a("buffer_store_dwordx4 v[112:115], v42, s[%d:%d], 0 offen" % (SRD_OUT, SRD_OUT + 3))
        a("buffer_store_dwordx4 v[116:119], v42, s[%d:%d], 0 offen offset:32" % (SRD_OUT, SRD_OUT + 3))
        self.stamp(15)
        self.stamp(25)

    def build(self):
        a = self.a
        self.prologue()
        self.xstage()
        a("s_cmp_ge_u32 s%d, 4" % S_W)
        a("s_cbranch_scc1 L_helper")
        self.p1_compute()
        self.g_compute()
        self.phase_o()
        a("s_branch L_end")
        a.label("L_helper")
        self.p1_helper()
        self.g_helper()
        a.label("L_end")
        a("s_endpgm")
        a.finalize()
        hdr = open("cdna_kernels/%s.s.ref" % NAME).read().split("\n")
        head = []
        for line in hdr:
            if line.startswith("; @launch"):
                head.append("; @launch grid=(256,1,1) block=(512,1,1) lds=%d" % LDS_TOTAL)
            elif line.startswith(";"): head.append(line)
            else: break
        txt = "\n".join(head) + "\n"
        txt += '.amdgcn_target "amdgcn-amd-amdhsa--gfx950"\n.text\n.globl %s_kernel\n.p2align 8\n.type %s_kernel,@function\n%s_kernel:\n' % (NAME, NAME, NAME)
        txt += a.text()
        txt += '.section .rodata,"a"\n.p2align 6\n.amdhsa_kernel %s_kernel\n' % NAME
        txt += "  .amdhsa_next_free_vgpr 256\n  .amdhsa_next_free_sgpr 102\n  .amdhsa_accum_offset 128\n"
        txt += "  .amdhsa_group_segment_fixed_size 0\n  .amdhsa_kernarg_size 104\n  .amdhsa_user_sgpr_count 2\n"
        txt += "  .amdhsa_user_sgpr_kernarg_segment_ptr 1\n  .amdhsa_system_sgpr_workgroup_id_x 1\n"
        txt += "  .amdhsa_float_denorm_mode_32 3\n"
        txt += ".end_amdhsa_kernel\n"
        return txt

if __name__ == "__main__":
    import argparse
    ap = argparse.ArgumentParser()
    ap.add_argument("--stamps", action="store_true")
    ap.add_argument("--exp", default="")
    ap.add_argument("-o", default="cdna_kernels/%s.s" % NAME)
    args = ap.parse_args()
    g = Gen(stamps=args.stamps, exp=[e for e in args.exp.split(',') if e])
    txt = g.build()
    open(args.o, "w").write(txt)
    print("wrote", args.o, len(txt), "bytes;", len([i for i in g.a.ins if i.kind not in ("label", "dir")]), "instrs")
```

```python
import sys, math, struct
sys.path.insert(0, "gen")
from asmlib import *

NAME = "recurrent_scan__spectral_fnet__mixer_gmlp__prompt"

WS_FLAG = 0x000000
WS_STATS = 0x020000
WS_Z2N = 0x100000
WS_AB = 0x400000
WS_H = 0x600000
WS_YT = 0x900000
WS_STAMP = 0xF00000
WS_SIZE = 0x4000000
OOB = 0x80000000

LDS_WR = 65536
SLOT = 16384
NSLOT = 5
LDS_T4 = 147456
LDS_T5 = LDS_T4 + 1536
LDS_SY = LDS_T5 + 512
LDS_AT = 151552
LDS_FX = 131072
LDS_WO = 73728
LDS_TOTAL = 163840

SRD_X, SRD_WIN, SRD_DFT, SRD_WSP, SRD_WOUT, SRD_WS, SRD_OUT, SRD_BSP, SRD_DBG = 4, 8, 12, 20, 24, 28, 32, 36, 40
S_IMLO, S_IMHI = 16, 17
S_MB, S_J, S_W, S_F0, S_WID, S_NONCE, S_L = 44, 45, 46, 47, 48, 49, 50
S_C, S_SLOT, S_XD = 51, 52, 53
S_CN, S_KC128, S_WSOFF, S_SLOTN = 54, 55, 56, 57
S_HW = 58
S_DL0, S_WL0, S_W2 = 60, 61, 62
S_T0, S_T1, S_T2, S_T3 = 63, 90, 91, 92
S_PASS = 93
S_EX = 94
S_K2 = 96
S_SPIN = 98
S_B0 = 99
S_ST0 = 100
S_ROT1 = 59
S_RHO = 51

V_LANE, V_JL, V_H, V_SIG = 1, 2, 3, 4

def f2u(x): return struct.unpack("<I", struct.pack("<f", x))[0]

class Gen:
    def __init__(self, stop_after=None, stamps=False, exp=()):
        self.a = Asm()
        self.stop_after = stop_after
        self.stamps = stamps
        self.exp = set(exp)

    def stamp(self, idx):
        if "dbgst" in self.exp:
            m = {0: 1, 1: 2, 2: 3, 3: 4, 4: 5, 5: 6, 7: 7, 8: 8, 10: 9, 11: 10, 12: 11, 13: 12, 14: 13, 15: 14}
            if idx in m:
                a = self.a
                lab = a.newlabel("ds")
                a("s_cmp_lg_u32 s%d, %d" % (S_L, 0 * 256 + 37))
                a("s_cbranch_scc1 %s" % lab)
                a("s_cmp_lg_u32 s%d, 0" % S_W)
                a("s_cbranch_scc1 %s" % lab)
                a("s_memrealtime s[%d:%d]" % (S_ST0, S_ST0 + 1))
                a("s_waitcnt lgkmcnt(0)")
                a("v_mov_b32 v9, s%d" % S_ST0)
                a("v_mov_b32 v8, %d" % (4 * m[idx]))
                a("s_mov_b64 exec, 1")
                a("buffer_store_dword v9, v8, s[%d:%d], 0 offen sc1" % (SRD_DBG, SRD_DBG + 3))
                a("s_mov_b64 exec, -1")
                a.label(lab)
            return
        if not self.stamps: return
        a = self.a
        a(("s_memtime s[%d:%d]" if idx >= 24 else "s_memrealtime s[%d:%d]") % (S_ST0, S_ST0 + 1))
        a("s_waitcnt lgkmcnt(0)")
        a("v_mov_b32 v9, s%d" % S_ST0)
        a("s_lshl_b32 s%d, s%d, 3" % (S_ST0, S_L))
        a("s_add_u32 s%d, s%d, s%d" % (S_ST0, S_ST0, S_W))
        a("s_lshl_b32 s%d, s%d, 7" % (S_ST0, S_ST0))
        a("s_add_u32 s%d, s%d, 0x%x" % (S_ST0, S_ST0, WS_STAMP + idx * 4))
        a("v_mov_b32 v8, 0")
        a("s_mov_b64 s[%d:%d], exec" % (S_EX, S_EX + 1))
        a("s_mov_b64 exec, 1")
        a("buffer_store_dword v9, v8, s[%d:%d], s%d offen" % (SRD_WS, SRD_WS + 3, S_ST0))
        a("s_mov_b64 exec, s[%d:%d]" % (S_EX, S_EX + 1))

    def srd(self, base, plo, size):
        a = self.a
        a("s_mov_b32 s%d, s%d" % (base, plo))
        a("s_and_b32 s%d, s%d, 0xffff" % (base + 1, plo + 1))
        a("s_mov_b32 s%d, 0x%x" % (base + 2, size))
        a("s_mov_b32 s%d, 0x20000" % (base + 3))

    def flag_store(self, kind, dw=0, dw_sreg=None):
        a = self.a
        a("s_lshl_b32 s%d, s%d, 7" % (S_T0, S_L))
        a("s_add_u32 s%d, s%d, 0x%x" % (S_T0, S_T0, WS_FLAG + kind * 256 * 128 + dw * 4))
        if dw_sreg is not None:
            a("s_lshl_b32 s3, s%d, 2" % dw_sreg)
            a("s_add_u32 s%d, s%d, s3" % (S_T0, S_T0))
        a("v_mov_b32 v5, s%d" % S_NONCE)
        a("v_mov_b32 v6, 0")
        a("s_mov_b64 exec, 1")
        a("buffer_store_dword v5, v6, s[%d:%d], s%d offen sc1" % (SRD_WS, SRD_WS + 3, S_T0))
        a("s_mov_b64 exec, -1")

    def poll_flags_n(self, vaddr, nlanes, ndw, vt):
        a = self.a
        lab = a.newlabel("poll")
        a("s_mov_b32 s%d, 0" % S_SPIN)
        mask = (1 << nlanes) - 1
        a("s_mov_b32 exec_lo, 0x%x" % (mask & 0xffffffff))
        a("s_mov_b32 exec_hi, 0x%x" % (mask >> 32))
        a.label(lab)
        if ndw == 1: a("buffer_load_dword v%d, v%d, s[%d:%d], 0 offen sc1" % (vt, vaddr, SRD_WS, SRD_WS + 3))
        elif ndw == 2: a("buffer_load_dwordx2 v[%d:%d], v%d, s[%d:%d], 0 offen sc1" % (vt, vt + 1, vaddr, SRD_WS, SRD_WS + 3))
        else: a("buffer_load_dwordx4 v[%d:%d], v%d, s[%d:%d], 0 offen sc1" % (vt, vt + 3, vaddr, SRD_WS, SRD_WS + 3))
        a("s_waitcnt vmcnt(0)")
        a("v_cmp_ne_u32 vcc, s%d, v%d" % (S_NONCE, vt))
        for i in range(1, ndw):
            a("v_cmp_ne_u32 s[%d:%d], s%d, v%d" % (S_EX, S_EX + 1, S_NONCE, vt + i))
            a("s_or_b64 vcc, vcc, s[%d:%d]" % (S_EX, S_EX + 1))
        a("s_add_u32 s%d, s%d, 1" % (S_SPIN, S_SPIN))
        a("s_cmp_gt_u32 s%d, 0x8000" % S_SPIN)
        a("s_cbranch_scc1 %s_x" % lab)
        a("s_cbranch_vccnz %s" % lab)
        a.label(lab + "_x")
        a("s_mov_b64 exec, -1")

    def get_nonce(self):
        a = self.a
        lab = a.newlabel("nonce")
        a("v_mov_b32 v6, 0")
        a("s_mov_b32 s%d, 0" % S_SPIN)
        a.label(lab)
        a("buffer_load_dword v5, v6, s[%d:%d], 0 offen sc1" % (SRD_DBG, SRD_DBG + 3))
        a("s_waitcnt vmcnt(0)")
        a("v_readfirstlane_b32 s%d, v5" % S_NONCE)
        a("s_add_u32 s%d, s%d, 1" % (S_SPIN, S_SPIN))
        a("s_cmp_gt_u32 s%d, 0x8000" % S_SPIN)
        a("s_cbranch_scc1 %s_x" % lab)
        a("s_cmp_eq_u32 s%d, 0" % S_NONCE)
        a("s_cbranch_scc1 %s" % lab)
        a.label(lab + "_x")

    def nonce_from(self, vreg):
        a = self.a
        lab = a.newlabel("hn")
        a("v_readfirstlane_b32 s%d, v%d" % (S_NONCE, vreg))
        a("s_cmp_lg_u32 s%d, 0" % S_NONCE)
        a("s_cbranch_scc1 %s" % lab)
        self.get_nonce()
        a.label(lab)

    def poll_flags(self, vaddr, nlanes):
        a = self.a
        lab = a.newlabel("poll")
        a("s_mov_b32 s%d, 0" % S_SPIN)
        mask = (1 << nlanes) - 1
        a("s_mov_b32 exec_lo, 0x%x" % (mask & 0xffffffff))
        a("s_mov_b32 exec_hi, 0x%x" % (mask >> 32))
        a.label(lab)
        a("buffer_load_dword v5, v%d, s[%d:%d], 0 offen sc1" % (vaddr, SRD_WS, SRD_WS + 3))
        a("s_waitcnt vmcnt(0)")
        a("v_cmp_ne_u32 vcc, s%d, v5" % S_NONCE)
        a("s_add_u32 s%d, s%d, 1" % (S_SPIN, S_SPIN))
        a("s_cmp_gt_u32 s%d, 0x8000" % S_SPIN)
        a("s_cbranch_scc1 %s_x" % lab)
        a("s_cbranch_vccnz %s" % lab)
        a.label(lab + "_x")
        a("s_mov_b64 exec, -1")

    def lds_wait_ge(self, addr, val, vt=5):
        a = self.a
        lab = a.newlabel("lw")
        a("s_mov_b32 s%d, 0" % S_SPIN)
        a("v_mov_b32 v%d, %d" % (vt + 1, addr))
        a.label(lab)
        a("ds_read_b32 v%d, v%d" % (vt, vt + 1))
        a("s_waitcnt lgkmcnt(0)")
        a("v_readfirstlane_b32 s%d, v%d" % (S_T0, vt))
        a("s_add_u32 s%d, s%d, 1" % (S_SPIN, S_SPIN))
        a("s_cmp_gt_u32 s%d, 0x100000" % S_SPIN)
        a("s_cbranch_scc1 %s_x" % lab)
        a("s_cmp_lt_u32 s%d, %d" % (S_T0, val))
        a("s_cbranch_scc1 %s" % lab)
        a.label(lab + "_x")

    def hsum(self, regs, tmp):
        a = self.a
        for i, r in enumerate(regs): a("v_mov_b32 v%d, v%d" % (tmp + i, r))
        for i, r in enumerate(regs): a("v_permlane32_swap_b32 v%d, v%d" % (r, tmp + i))
        for i, r in enumerate(regs): a("v_add_f32 v%d, v%d, v%d" % (r, r, tmp + i))

    def mean_rstd(self, vsum, vsq, n, dst_r, dst_nm, t):
        a = self.a
        a("v_mul_f32 v%d, 0x%x, v%d" % (t, f2u(1.0 / n), vsum))
        a("v_mul_f32 v%d, 0x%x, v%d" % (t + 1, f2u(1.0 / n), vsq))
        a("v_fma_f32 v%d, -v%d, v%d, v%d" % (t + 1, t, t, t + 1))
        a("v_max_f32 v%d, 0, v%d" % (t + 1, t + 1))
        a("v_add_f32 v%d, 0x%x, v%d" % (t + 1, f2u(1e-5), t + 1))
        a("v_rsq_f32 v%d, v%d" % (dst_r, t + 1))
        a("v_mul_f32 v%d, v%d, v%d" % (dst_nm, t, dst_r))
        a("v_sub_f32 v%d, 0, v%d" % (dst_nm, dst_nm))

    V_OD, V_OW = 10, 11
    V_NON = 14
    def prologue(self):
        a = self.a
        a("s_cmp_ge_u32 s2, 256")
        a("s_cbranch_scc1 L_end")
        a("s_load_dwordx16 s[64:79], s[0:1], 0")
        a("s_load_dwordx8 s[80:87], s[0:1], 64")
        a("s_load_dwordx2 s[88:89], s[0:1], 96")
        if "map42" in self.exp:
            a("s_bfe_u32 s%d, s2, 0x20001" % S_MB)
            a("s_lshl_b32 s%d, s%d, 3" % (S_MB, S_MB))
            a("s_bfe_u32 s3, s2, 0x30003")
            a("s_add_u32 s%d, s%d, s3" % (S_MB, S_MB))
            a("s_and_b32 s%d, s2, 1" % S_J)
            a("s_lshl_b32 s%d, s%d, 2" % (S_J, S_J))
            a("s_lshr_b32 s3, s2, 6")
            a("s_add_u32 s%d, s%d, s3" % (S_J, S_J))
        else:
            a("s_and_b32 s%d, s2, 7" % S_MB)
            a("s_lshl_b32 s%d, s%d, 2" % (S_MB, S_MB))
            a("s_bfe_u32 s3, s2, 0x20003")
            a("s_add_u32 s%d, s%d, s3" % (S_MB, S_MB))
            a("s_lshr_b32 s%d, s2, 5" % S_J)
        a("s_lshl_b32 s%d, s%d, 5" % (S_L, S_J))
        a("s_add_u32 s%d, s%d, s%d" % (S_L, S_L, S_MB))
        a("v_lshrrev_b32 v5, 6, v0")
        a("v_and_b32 v%d, 63, v0" % V_LANE)
        a("v_readfirstlane_b32 s%d, v5" % S_W)
        a("v_lshrrev_b32 v20, 3, v0")
        a("v_and_b32 v21, 7, v0")
        a("v_lshlrev_b32 v22, 10, v20")
        a("v_lshl_add_u32 v22, v21, 4, v22")
        a("s_lshl_b32 s%d, s%d, 16" % (S_T1, S_MB))
        a("s_and_b32 s%d, s%d, 3" % (S_HW, S_W))
        a("v_and_b32 v%d, 31, v0" % V_JL)
        a("v_bfe_u32 v%d, v0, 5, 1" % V_H)
        a("v_and_b32 v5, 0x13, v%d" % V_JL)
        a("v_and_b32 v6, 4, v%d" % V_JL)
        a("v_lshl_or_b32 v5, v6, 1, v5")
        a("v_and_b32 v6, 8, v%d" % V_JL)
        a("v_lshrrev_b32 v6, 1, v6")
        a("v_or_b32 v%d, v5, v6" % V_SIG)
        a("s_mul_i32 s%d, s%d, 88" % (S_F0, S_J))
        a("s_cmp_eq_u32 s%d, 7" % S_J)
        a("s_cselect_b32 s3, 8, 0")
        a("s_sub_u32 s%d, s%d, s3" % (S_F0, S_F0))
        a("s_cmp_ge_u32 s%d, 6" % S_J)
        a("s_cselect_b32 s3, 8, 0")
        a("s_sub_u32 s%d, 88, s3" % S_WID)
        for i in range(10, 14): a("v_mov_b32 v%d, 0" % i)
        a("s_waitcnt lgkmcnt(0)")
        self.srd(SRD_X, 64, 2048 * 1024)
        a("s_and_b32 s%d, s%d, 3" % (S_ROT1, S_MB))
        a("s_lshl_b32 s%d, s%d, 1" % (S_ROT1, S_ROT1))
        a("s_add_u32 s%d, s%d, s%d" % (S_ROT1, S_ROT1, S_J))
        a("s_and_b32 s%d, s%d, 7" % (S_ROT1, S_ROT1))
        if "norot" in self.exp: a("s_mov_b32 s%d, 0" % S_ROT1)
        for i in range(8):
            a("s_add_u32 s3, s%d, %d" % (S_ROT1, i))
            a("s_and_b32 s3, s3, 7")
            a("s_lshl_b32 s3, s3, 7")
            a("s_add_u32 s3, s3, s%d" % S_T1)
            a("buffer_load_dwordx4 v[%d:%d], v22, s[%d:%d], s3 offen" % (32 + 4 * i, 35 + 4 * i, SRD_X, SRD_X + 3))
        self.srd(SRD_WIN, 76, 512 * 2752)
        self.srd(SRD_DFT, 70, 512 * 1024)
        self.srd(S_IMLO, 72, 512 * 1024)
        self.srd(SRD_WS, 88, WS_SIZE)
        self.srd(SRD_DBG, 86, 256)
        self.srd(SRD_WSP, 78, 2048 * 4096)
        self.srd(SRD_WOUT, 82, 688 * 1024)
        self.srd(SRD_OUT, 84, 2048 * 1024)
        self.srd(SRD_BSP, 80, 4096)
        a("s_cmp_lt_u32 s%d, 4" % S_W)
        a("s_cbranch_scc0 L_pro_h")
        self.npf = self.prefetch_start() if "nopf" not in self.exp else 0
        a("s_branch L_pro_c")
        a.label("L_pro_h")
        L = V_LANE
        a("v_lshrrev_b32 v5, 3, v%d" % L)
        a("v_and_b32 v6, 7, v%d" % L)
        a("v_lshrrev_b32 v7, 4, v%d" % L)
        a("v_xor_b32 v8, v6, v7")
        a("v_lshlrev_b32 v8, 4, v8")
        a("s_lshl_b32 s3, s%d, 5" % S_J)
        a("s_lshl_b32 s%d, s%d, 3" % (S_T0, S_HW))
        a("s_add_u32 s3, s3, s%d" % S_T0)
        a("v_add_u32 v9, s3, v5")
        a("v_cmp_eq_u32 vcc, 0, v9")
        a("v_mov_b32 v6, 256")
        a("v_cndmask_b32 v9, v9, v6, vcc")
        a("s_and_b32 s%d, s%d, 1" % (S_T0, S_HW))
        a("s_lshl_b32 s%d, s%d, 6" % (S_T0, S_T0))
        a("v_xor_b32 v8, s%d, v8" % S_T0)
        a("v_lshl_add_u32 v%d, v9, 10, v8" % self.V_OD)
        for p in range(3):
            a("v_add_u32 v5, %d, v%d" % (64 * p, L))
            a("v_mul_u32_u24 v6, 171, v5")
            a("v_lshrrev_b32 v6, 11, v6")
            a("v_mul_u32_u24 v7, 12, v6")
            a("v_sub_u32 v7, v5, v7")
            a("v_mul_u32_u24 v6, 2752, v6")
            a("v_lshl_add_u32 v6, v7, 4, v6")
            a("v_lshlrev_b32 v7, 3, v7")
            a("v_cmp_gt_u32 vcc, s%d, v7" % S_WID)
            a("v_mov_b32 v8, 0x%x" % OOB)
            a("v_cndmask_b32 v%d, v8, v6, vcc" % (self.V_OW + p))
        a("s_lshl_b32 s%d, s%d, 10" % (S_DL0, S_HW))
        a("s_mul_i32 s%d, s%d, 3072" % (S_WL0, S_HW))
        a("s_mul_i32 s%d, s%d, %d" % (S_W2, S_HW, 16 * 2752))
        a("s_lshl_b32 s3, s%d, 1" % S_F0)
        a("s_add_u32 s%d, s%d, s3" % (S_W2, S_W2))
        a("s_add_u32 s%d, s%d, %d" % (S_WSOFF, S_W2, 688 * 2))
        for k in range(4): self.dma_chunk(k)
        a("s_cmp_lg_u32 s2, 0")
        a("s_cbranch_scc1 L_nononce")
        a("s_cmp_lg_u32 s%d, 4" % S_W)
        a("s_cbranch_scc1 L_nononce")
        a("s_memrealtime s[%d:%d]" % (S_ST0, S_ST0 + 1))
        a("s_waitcnt lgkmcnt(0)")
        a("s_or_b32 s3, s%d, 1" % S_ST0)
        a("v_mov_b32 v5, s3")
        a("v_mov_b32 v6, 0")
        a("s_mov_b64 exec, 1")
        a("buffer_store_dword v5, v6, s[%d:%d], 0 offen sc1" % (SRD_DBG, SRD_DBG + 3))
        a("s_mov_b64 exec, -1")
        a.label("L_nononce")
        a("v_lshlrev_b32 v5, 2, v%d" % V_LANE)
        a("v_add_u32 v5, %d, v5" % LDS_SY)
        a("v_mov_b32 v6, 0")
        a("s_mov_b64 exec, 0xffff")
        a("ds_write_b32 v5, v6")
        a("s_mov_b64 exec, -1")
        a.label("L_pro_c")
        self.stamp(0)
        self.stamp(24)

    def pf_wrows(self, colbyte_sreg, row0_sreg, nrows16, dst):
        a = self.a
        a("v_lshrrev_b32 v5, 2, v%d" % V_LANE)
        a("v_add_u32 v5, s%d, v5" % row0_sreg)
        a("v_mul_u32_u24 v5, 2752, v5")
        a("v_and_b32 v6, 3, v%d" % V_LANE)
        a("v_lshlrev_b32 v6, 6, v6")
        a("v_min_u32 v6, 172, v6")
        a("v_add_u32 v5, v5, v6")
        for i in range(nrows16):
            a("s_add_u32 s3, s%d, %d" % (colbyte_sreg, i * 16 * 2752))
            a("buffer_load_dword a%d, v5, s[%d:%d], s3 offen" % (dst, SRD_WIN, SRD_WIN + 3))
        return nrows16

    def prefetch_start(self):
        a = self.a
        a("s_and_b32 s%d, s%d, 3" % (S_T0, S_MB))
        a("s_lshl_b32 s%d, s%d, 6" % (S_T0, S_T0))
        a("s_lshl_b32 s3, s%d, 4" % S_W)
        a("s_add_u32 s%d, s%d, s3" % (S_T0, S_T0))
        a("s_add_u32 s%d, s%d, 256" % (S_T0, S_T0))
        a("s_add_u32 s%d, s%d, 688" % (S_T1, S_F0))
        a("s_lshl_b32 s%d, s%d, 1" % (S_T1, S_T1))
        return self.pf_wrows(S_T1, S_T0, 1, 16)

    def prefetch_b(self):
        a = self.a
        a("s_and_b32 s%d, s%d, 3" % (S_T0, S_MB))
        a("s_lshl_b32 s%d, s%d, 7" % (S_T0, S_T0))
        a("s_lshl_b32 s3, s%d, 5" % S_W)
        a("s_add_u32 s%d, s%d, s3" % (S_T0, S_T0))
        a("s_lshl_b32 s%d, s%d, 1" % (S_T1, S_F0))
        self.pf_wrows(S_T1, S_T0, 2, 16)
        a("s_lshl_b32 s%d, s%d, 5" % (S_T0, S_J))
        a("s_and_b32 s3, s%d, 3" % S_MB)
        a("s_lshl_b32 s3, s3, 3")
        a("s_add_u32 s%d, s%d, s3" % (S_T0, S_T0))
        a("s_lshl_b32 s3, s%d, 1" % S_W)
        a("s_add_u32 s%d, s%d, s3" % (S_T0, S_T0))
        a("s_lshl_b32 s%d, s%d, 10" % (S_T0, S_T0))
        a("v_lshlrev_b32 v5, 4, v%d" % V_LANE)
        for i in range(2):
            a("buffer_load_dwordx4 a[16:19], v5, s[%d:%d], s%d offen offset:%d" % (S_IMLO, S_IMLO + 3, S_T0, i * 1024))

    def prefetch_wsp(self):
        a = self.a
        a("s_lshl_b32 s%d, s%d, 6" % (S_T0, S_MB))
        a("s_lshl_b32 s3, s%d, 3" % S_J)
        a("s_add_u32 s%d, s%d, s3" % (S_T0, S_T0))
        a("s_lshl_b32 s3, s%d, 1" % S_W)
        a("s_add_u32 s%d, s%d, s3" % (S_T0, S_T0))
        a("s_lshl_b32 s%d, s%d, 12" % (S_T0, S_T0))
        a("v_lshlrev_b32 v5, 4, v%d" % V_LANE)
        for i in range(8):
            a("buffer_load_dwordx4 a[16:19], v5, s[%d:%d], s%d offen" % (SRD_WSP, SRD_WSP + 3, S_T0))
            if i < 7: a("s_add_u32 s%d, s%d, 1024" % (S_T0, S_T0))

    def prefetch_wout(self):
        a = self.a
        a("s_and_b32 s3, s%d, 3" % S_MB)
        a("s_lshl_b32 s3, s3, 2")
        a("s_add_u32 s3, s3, s%d" % S_W)
        a("s_mul_i32 s%d, s3, 43" % S_T0)
        a("v_lshrrev_b32 v5, 1, v%d" % V_LANE)
        a("v_add_u32 v5, s%d, v5" % S_T0)
        a("v_lshlrev_b32 v5, 10, v5")
        a("v_and_b32 v6, 1, v%d" % V_LANE)
        a("v_lshl_add_u32 v5, v6, 6, v5")
        a("s_lshl_b32 s%d, s%d, 7" % (S_T0, S_J))
        a("buffer_load_dword a16, v5, s[%d:%d], s%d offen" % (SRD_WOUT, SRD_WOUT + 3, S_T0))
        a("s_add_u32 s%d, s%d, %d" % (S_T0, S_T0, 32 * 1024))
        a("buffer_load_dword a16, v5, s[%d:%d], s%d offen" % (SRD_WOUT, SRD_WOUT + 3, S_T0))

    def dma_chunk(self, k):
        a = self.a
        slot = LDS_WR + (k % NSLOT) * SLOT
        srd = SRD_DFT if k < 8 else S_IMLO
        a("s_add_u32 s%d, s%d, %d" % (S_T1, S_ROT1, k & 7))
        a("s_and_b32 s%d, s%d, 7" % (S_T1, S_T1))
        a("s_add_u32 m0, s%d, %d" % (S_DL0, slot + 12288))
        a("s_lshl_b32 s%d, s%d, 7" % (S_T0, S_T1))
        a("buffer_load_dwordx4 v%d, s[%d:%d], s%d offen lds" % (self.V_OD, srd, srd + 3, S_T0))
        a("s_mul_i32 s%d, s%d, %d" % (S_T1, S_T1, 64 * 2752))
        a("s_add_u32 m0, s%d, %d" % (S_WL0, slot))
        a("s_add_u32 s%d, s%d, s%d" % (S_T0, S_WSOFF if k < 8 else S_W2, S_T1))
        for p in range(3):
            a("buffer_load_dwordx4 v%d, s[%d:%d], s%d offen lds" % (self.V_OW + p, SRD_WIN, SRD_WIN + 3, S_T0))
            if p < 2:
                a("s_add_u32 m0, m0, 1024")
                a("s_nop 0")

    def xstage(self):
        a = self.a
        X = 32
        a("v_mov_b32 v23, 0x3f803f80")
        for i in range(4): a("v_mov_b32 v%d, 0" % (24 + i))
        a("v_bfe_u32 v5, v20, 1, 3")
        a("v_xor_b32 v5, v5, v21")
        a("v_lshlrev_b32 v5, 4, v5")
        a("v_lshl_add_u32 v28, v20, 7, v5")
        a("s_cmp_lt_u32 s%d, 4" % S_W)
        a("s_cbranch_scc1 L_xw_c")
        for path, younger in (("h", 16), ("c", self.npf)):
            if path == "c": a.label("L_xw_c")
            for i in range(8):
                a("s_waitcnt vmcnt(%d)" % (younger + 7 - i))
                for r in range(4):
                    k = 4 * i + r
                    a("v_dot2c_f32_bf16 v%d, v%d, v23" % (24 + (k & 1), X + k))
                    a("v_dot2c_f32_bf16 v%d, v%d, v%d" % (26 + (k & 1), X + k, X + k))
            if path == "h": a("s_branch L_xw_d")
        a.label("L_xw_d")
        a("v_add_f32 v24, v24, v25")
        a("v_add_f32 v26, v26, v27")
        for dpp in ("quad_perm:[1,0,3,2]", "quad_perm:[2,3,0,1]", "row_half_mirror"):
            a("v_add_f32_dpp v25, v24, v24 %s row_mask:0xf bank_mask:0xf" % dpp)
            a("v_add_f32_dpp v27, v26, v26 %s row_mask:0xf bank_mask:0xf" % dpp)
            a("v_mov_b32 v24, v25")
            a("v_mov_b32 v26, v27")
        self.mean_rstd(24, 26, 512, 30, 31, 6)
        U = 64
        for i in range(8):
            for r in range(4):
                src = X + 4 * i + r
                t = U + 2 * ((4 * i + r) % 8)
                a("v_lshlrev_b32 v%d, 16, v%d" % (t, src))
                a("v_and_b32 v%d, 0xffff0000, v%d" % (t + 1, src))
                a("v_pk_fma_f32 v[%d:%d], v[%d:%d], v[30:31], v[30:31] op_sel:[0,0,1] op_sel_hi:[1,0,1]" % (t, t + 1, t, t + 1))
                a("v_cvt_pk_bf16_f32 v%d, v%d, v%d" % (src, t, t + 1))
            a("ds_write_b128 v28, v[%d:%d] offset:%d" % (X + 4 * i, X + 4 * i + 3, i * 8192))

    C_XA, C_AC, C_AN = 10, 14, 15
    C_FA, C_FB = 16, 32
    C_ACC = 64
    C_Z2P, C_Z1P = 96, 112
    C_GC1 = 6

    def c_setup(self, w3):
        a = self.a
        a("v_bfe_u32 v5, v%d, 1, 3" % V_SIG)
        a("v_lshlrev_b32 v6, 7, v%d" % V_SIG)
        for ks in range(4):
            a("v_add_u32 v8, %d, v%d" % (2 * ks, V_H))
            a("v_xor_b32 v8, v8, v5")
            a("v_lshl_add_u32 v%d, v8, 4, v6" % (self.C_XA + ks))
        if w3:
            for ks in range(4):
                a("v_add_u32 v%d, %d, v%d" % (116 + ks, LDS_WR + 12288, self.C_XA + ks))
        else:
            a("v_bfe_u32 v7, v%d, 2, 2" % V_LANE)
            a("v_lshl_add_u32 v7, v%d, 3, v7" % V_H)
            a("v_mul_u32_u24 v7, 192, v7")
            a("v_bfe_u32 v8, v%d, 4, 1" % V_LANE)
            a("v_lshlrev_b32 v8, 5, v8")
            a("v_and_b32 v9, 1, v%d" % V_LANE)
            a("v_lshl_add_u32 v8, v9, 4, v8")
            a("v_bfe_u32 v9, v%d, 1, 1" % V_LANE)
            a("v_lshl_add_u32 v8, v9, 3, v8")
            a("v_add_u32 v7, v7, v8")
            a("s_lshl_b32 s3, s%d, 6" % S_W)
            a("s_add_u32 s3, s3, %d" % LDS_WR)
            a("v_add_u32 v%d, s3, v7" % self.C_AC)
            a("v_add_u32 v%d, %d, v%d" % (self.C_AN, SLOT, self.C_AC))
            for Q in range(2):
                a("v_lshlrev_b32 v5, 3, v%d" % V_H)
                a("v_sub_u32 v5, v%d, v5" % V_SIG)
                if Q: a("v_subrev_u32 v5, 16, v5")
                a("v_and_b32 v6, 1, v5")
                a("v_lshlrev_b32 v6, 4, v6")
                a("v_mov_b32 v7, 0x3f80")
                a("v_lshlrev_b32 v6, v6, v7")
                a("v_lshrrev_b32 v5, 1, v5")
                for r in range(4):
                    a("v_cmp_eq_u32 vcc, %d, v5" % r)
                    a("v_cndmask_b32 v7, 0, v6, vcc")
                    a("v_accvgpr_write_b32 a%d, v7" % (4 * Q + r))

    def c_reads(self, w3, c, ks, nxt):
        A = self.C_FA + 4 * ks; B = self.C_FB + 8 * ks
        out = []
        xo = (c & 7) * 8192
        if w3:
            base = 124 + ks if nxt else 120 + ks
            out.append("ds_read_b128 v[%d:%d], v%d" % (A, A + 3, base))
        else:
            base = self.C_AN if nxt else self.C_AC
            out.append("ds_read_b64_tr_b16 v[%d:%d], v%d offset:%d" % (A, A + 1, base, ks * 3072))
            out.append("ds_read_b64_tr_b16 v[%d:%d], v%d offset:%d" % (A + 2, A + 3, base, ks * 3072 + 768))
        out.append("ds_read_b128 v[%d:%d], v%d offset:%d" % (B, B + 3, self.C_XA + ks, xo))
        out.append("ds_read_b128 v[%d:%d], v%d offset:%d" % (B + 4, B + 7, self.C_XA + ks, xo + 4096))
        return out

    def c_loop(self, w3):
        a = self.a
        nr = 3 if w3 else 4
        ACC = self.C_ACC
        def mfs(ks, first):
            A = self.C_FA + 4 * ks; B = self.C_FB + 8 * ks
            out = []
            for st in range(2):
                D = ACC + 16 * st
                cc = "0" if first else "v[%d:%d]" % (D, D + 15)
                if w3: out.append("v_mfma_f32_32x32x16_bf16 v[%d:%d], v[%d:%d], v[%d:%d], %s" % (D, D + 15, B + 4 * st, B + 4 * st + 3, A, A + 3, cc))
                else: out.append("v_mfma_f32_32x32x16_bf16 v[%d:%d], v[%d:%d], v[%d:%d], %s" % (D, D + 15, A, A + 3, B + 4 * st, B + 4 * st + 3, cc))
            return out
        a("s_mov_b32 s64, %d" % SLOT)
        if w3:
            for ks in range(4): a("v_add_u32 v%d, s%d, v%d" % (120 + ks, S_SLOT, 116 + ks))
        for r in self.c_reads(w3, 0, 0, False): a(r)
        for r in self.c_reads(w3, 0, 1, False): a(r)
        for c in range(8):
            a("s_barrier")
            extra = []
            if w3:
                extra += ["s_add_u32 s%d, s%d, %d" % (S_T1, S_SLOT, SLOT), "s_cmp_eq_u32 s%d, %d" % (S_T1, NSLOT * SLOT), "s_cselect_b32 s%d, 0, s%d" % (S_T1, S_T1),
                          "v_add_u32 v124, s%d, v116" % S_T1, "v_add_u32 v125, s%d, v117" % S_T1]
            for ks in range(4):
                if ks < 2: rd = self.c_reads(w3, c, ks + 2, False)
                else: rd = self.c_reads(w3, c + 1, ks - 2, True)
                if "cnoread" in self.exp: rd = []
                m = mfs(ks, c == 0 and ks == 0)
                if "cnomfma" in self.exp: m = []
                a("s_waitcnt lgkmcnt(%d)" % nr)
                half = (len(rd) + 1) // 2
                if m: a(m[0])
                if ks == 0:
                    for e in extra: a(e)
                for r in rd[:half]: a(r)
                if m: a(m[1])
                for r in rd[half:]: a(r)
                if ks == 3:
                    if w3:
                        a("s_mov_b32 s%d, s%d" % (S_SLOT, S_T1))
                        for k2 in range(4): a("v_add_u32 v%d, s%d, v%d" % (120 + k2, S_SLOT, 116 + k2))
                    else:
                        a("v_mov_b32 v%d, v%d" % (self.C_AC, self.C_AN))
                        a("s_add_u32 s%d, s%d, %d" % (S_SLOT, S_SLOT, SLOT))
                        a("s_cmp_eq_u32 s%d, %d" % (S_SLOT, NSLOT * SLOT))
                        a("s_cselect_b32 s%d, 0x%x, s64" % (S_T1, (-(NSLOT - 1) * SLOT) & 0xffffffff))
                        a("s_cselect_b32 s%d, 0, s%d" % (S_SLOT, S_SLOT))
                        a("v_add_u32 v%d, s%d, v%d" % (self.C_AN, S_T1, self.C_AN))
        a("s_waitcnt lgkmcnt(0)")

    def gelu_epilogue(self, dst):
        a = self.a
        E = 16
        c1 = -2.0 * math.sqrt(2.0 / math.pi) * math.log2(math.e)
        c2 = c1 * 0.044715
        a("v_mov_b32 v6, 0x%x" % f2u(c1))
        a("s_mov_b32 s%d, 0x%x" % (S_K2, f2u(c2)))
        a("s_mov_b32 s%d, 0x%x" % (S_K2 + 1, f2u(c2)))
        for pp in range(0, 16, 2):
            seq = [[], []]
            for u in range(2):
                pre = self.C_ACC + 2 * (pp + u)
                p2, e = E + u * 4, E + u * 4 + 2
                s = seq[u]
                s.append("v_pk_mul_f32 v[%d:%d], v[%d:%d], v[%d:%d]" % (p2, p2 + 1, pre, pre + 1, pre, pre + 1))
                s.append("v_pk_fma_f32 v[%d:%d], v[%d:%d], s[%d:%d], v[6:7] op_sel_hi:[1,1,0]" % (p2, p2 + 1, p2, p2 + 1, S_K2, S_K2 + 1))
                s.append("v_pk_mul_f32 v[%d:%d], v[%d:%d], v[%d:%d]" % (p2, p2 + 1, p2, p2 + 1, pre, pre + 1))
                s.append("v_exp_f32 v%d, v%d" % (e, p2))
                s.append("v_exp_f32 v%d, v%d" % (e + 1, p2 + 1))
                s.append("v_pk_add_f32 v[%d:%d], v[%d:%d], 1.0 op_sel_hi:[1,0]" % (e, e + 1, e, e + 1))
                s.append("v_rcp_f32 v%d, v%d" % (e, e))
                s.append("v_rcp_f32 v%d, v%d" % (e + 1, e + 1))
                s.append("v_pk_mul_f32 v[%d:%d], v[%d:%d], v[%d:%d]" % (e, e + 1, pre, pre + 1, e, e + 1))
                s.append("v_cvt_pk_bf16_f32 v%d, v%d, v%d" % (dst + pp + u, e, e + 1))
            for i in range(len(seq[0])):
                a(seq[0][i]); a(seq[1][i])

    def stats2_partial(self, src):
        a = self.a
        E = 16
        a("v_mov_b32 v24, 0x3f803f80")
        for i in range(4): a("v_mov_b32 v%d, 0" % (E + i))
        for r in range(8):
            for st in range(2):
                a("v_dot2c_f32_bf16 v%d, v%d, v24" % (E + 2 * st, src + 8 * st + r))
                a("v_dot2c_f32_bf16 v%d, v%d, v%d" % (E + 2 * st + 1, src + 8 * st + r, src + 8 * st + r))
        self.hsum([E, E + 1, E + 2, E + 3], E + 4)
        a("s_lshl_b32 s3, s%d, 9" % S_W)
        a("s_add_u32 s3, s3, %d" % LDS_T4)
        a("v_lshlrev_b32 v8, 3, v%d" % V_JL)
        a("v_add_u32 v8, s3, v8")
        a("ds_write_b64 v8, v[%d:%d]" % (E, E + 1))
        a("ds_write_b64 v8, v[%d:%d] offset:256" % (E + 2, E + 3))
        a("s_waitcnt lgkmcnt(0)")

    def dft_store(self, part):
        a = self.a
        a("v_and_b32 v5, 7, v%d" % V_SIG)
        a("v_xor_b32 v5, v5, v%d" % V_H)
        a("v_lshlrev_b32 v5, 4, v5")
        a("v_lshl_add_u32 v5, v%d, 7, v5" % V_SIG)
        a("v_add_u32 v5, %d, v5" % LDS_AT)
        for st in range(2):
            for Q in range(2):
                o = 16 + (st * 2 + Q) * 4
                for p in range(4):
                    acc = self.C_ACC + 16 * st + 8 * Q + 2 * p
                    a("v_cvt_pk_bf16_f32 v%d, v%d, v%d" % (o + p, acc, acc + 1))
                a("v_xor_b32 v6, %d, v5" % ((4 * st + 2 * Q) * 16))
                a("ds_write_b128 v6, v[%d:%d]" % (o, o + 3))
        a("v_lshrrev_b32 v7, 3, v%d" % V_LANE)
        a("v_and_b32 v8, 7, v%d" % V_LANE)
        a("v_xor_b32 v6, v7, v8")
        a("v_lshlrev_b32 v6, 4, v6")
        a("v_lshl_add_u32 v6, v7, 7, v6")
        a("v_add_u32 v6, %d, v6" % LDS_AT)
        a("s_waitcnt lgkmcnt(0)")
        for i in range(4):
            a("ds_read_b128 v[%d:%d], v6 offset:%d" % (32 + 4 * i, 35 + 4 * i, i * 1024))
        a("v_lshlrev_b32 v7, 13, v7")
        a("v_lshl_add_u32 v7, v8, 4, v7")
        a("s_lshl_b32 s%d, s%d, 18" % (S_T0, S_J))
        a("s_lshl_b32 s3, s%d, 7" % S_MB)
        a("s_add_u32 s%d, s%d, s3" % (S_T0, S_T0))
        a("s_add_u32 s%d, s%d, 0x%x" % (S_T0, S_T0, WS_AB + part * 4096))
        a("s_waitcnt lgkmcnt(0)")
        for i in range(4):
            a("buffer_store_dwordx4 v[%d:%d], v7, s[%d:%d], s%d offen sc1" % (32 + 4 * i, 35 + 4 * i, SRD_WS, SRD_WS + 3, S_T0))
            if i < 3: a("s_add_u32 s%d, s%d, %d" % (S_T0, S_T0, 8 * 8192))

    def z2n_publish(self):
        a = self.a
        a("v_lshlrev_b32 v8, 3, v%d" % V_JL)
        a("v_add_u32 v8, %d, v8" % LDS_T5)
        a("ds_read_b64 v[16:17], v8")
        a("ds_read_b64 v[18:19], v8 offset:256")
        a("s_waitcnt lgkmcnt(0)")
        N = 32
        for st in range(2):
            r2 = 16 + 2 * st
            for r in range(8):
                src = self.C_Z2P + 8 * st + r
                t = 20 + 2 * (r % 4)
                a("v_lshlrev_b32 v%d, 16, v%d" % (t, src))
                a("v_and_b32 v%d, 0xffff0000, v%d" % (t + 1, src))
                a("v_pk_fma_f32 v[%d:%d], v[%d:%d], v[%d:%d], v[%d:%d] op_sel:[0,0,1] op_sel_hi:[1,0,1]" % (t, t + 1, t, t + 1, r2, r2 + 1, r2, r2 + 1))
                a("v_cvt_pk_bf16_f32 v%d, v%d, v%d" % (N + 8 * st + r, t, t + 1))
        for st in range(2):
            D = self.C_ACC + 16 * st
            a("v_mfma_f32_32x32x16_bf16 v[%d:%d], v[%d:%d], a[0:3], 0" % (D, D + 15, N + 8 * st, N + 8 * st + 3))
        for st in range(2):
            D = self.C_ACC + 16 * st
            a("v_mfma_f32_32x32x16_bf16 v[%d:%d], v[%d:%d], a[4:7], v[%d:%d]" % (D, D + 15, N + 8 * st + 4, N + 8 * st + 7, D, D + 15))
        a("s_lshl_b32 s%d, s%d, 7" % (S_T0, S_J))
        a("s_lshl_b32 s%d, s%d, 2" % (S_T1, S_MB))
        a("s_add_u32 s%d, s%d, s%d" % (S_T0, S_T0, S_T1))
        a("s_mul_i32 s%d, s%d, 3" % (S_T0, S_T0))
        a("s_add_u32 s%d, s%d, s%d" % (S_T0, S_T0, S_W))
        a("s_lshl_b32 s%d, s%d, 10" % (S_T0, S_T0))
        a("s_add_u32 s%d, s%d, 0x%x" % (S_T0, S_T0, WS_Z2N))
        a("v_lshlrev_b32 v8, 4, v%d" % V_LANE)
        for st in range(2):
            for Q in range(2):
                D = self.C_ACC + 16 * st + 8 * Q
                o = 48 + (st * 2 + Q) * 4
                for p in range(4):
                    a("v_cvt_pk_bf16_f32 v%d, v%d, v%d" % (o + p, D + 2 * p, D + 2 * p + 1))
                a("s_add_u32 s%d, s%d, %d" % (S_T1, S_T0, (2 * st + Q) * 3072))
                a("buffer_store_dwordx4 v[%d:%d], v8, s[%d:%d], s%d offen sc1" % (o, o + 3, SRD_WS, SRD_WS + 3, S_T1))

    def zero_acc(self):
        for i in range(32): self.a("v_mov_b32 v%d, 0" % (self.C_ACC + i))

    def p1_compute(self):
        a = self.a
        a("s_cmp_eq_u32 s%d, 3" % S_W)
        a("s_cbranch_scc1 L_c3")
        self.c_setup(False)
        a("s_mov_b32 s%d, 0" % S_C)
        a("s_mov_b32 s%d, %d" % (S_SLOT, SLOT))
        a("s_mov_b32 s%d, 0" % S_PASS)
        a("s_waitcnt lgkmcnt(0)")
        a("s_barrier")
        if "nopf" not in self.exp: self.prefetch_b()
        self.stamp(1)
        a.label("L_pass")
        self.c_loop(False)
        a("s_cmp_lg_u32 s%d, 0" % S_PASS)
        a("s_cbranch_scc1 L_passB_done")
        self.stamp(2)
        if "nopf" not in self.exp: self.prefetch_wsp()
        self.gelu_epilogue(self.C_Z2P)
        self.stats2_partial(self.C_Z2P)
        a("s_barrier")
        a("v_mov_b32 v6, 0")
        a("buffer_load_dword a8, v6, s[%d:%d], 0 offen sc1" % (SRD_DBG, SRD_DBG + 3))
        if "nopf" not in self.exp: self.prefetch_wout()
        self.stamp(3)
        a("s_mov_b32 s%d, 1" % S_PASS)
        a("s_branch L_pass")
        a.label("L_passB_done")
        self.stamp(4)
        self.gelu_epilogue(self.C_Z1P)
        a("s_barrier")
        self.stamp(5)
        self.z2n_publish()
        a("s_branch L_c_join")
        a.label("L_c3")
        self.c_setup(True)
        a("s_mov_b32 s%d, 0" % S_C)
        a("s_mov_b32 s%d, 0" % S_SLOT)
        a("s_mov_b32 s%d, 0" % S_PASS)
        a("s_waitcnt lgkmcnt(0)")
        a("s_barrier")
        if "nopf" not in self.exp: self.prefetch_b()
        a.label("L_pass3")
        self.c_loop(True)
        a("s_cmp_lg_u32 s%d, 0" % S_PASS)
        a("s_cbranch_scc1 L_passB3_done")
        if "nopf" not in self.exp: self.prefetch_wsp()
        self.dft_store(0)
        a("s_barrier")
        a("v_mov_b32 v6, 0")
        a("buffer_load_dword a8, v6, s[%d:%d], 0 offen sc1" % (SRD_DBG, SRD_DBG + 3))
        if "nopf" not in self.exp: self.prefetch_wout()
        a("s_mov_b32 s%d, 1" % S_PASS)
        a("s_branch L_pass3")
        a.label("L_passB3_done")
        self.dft_store(1)
        a("s_waitcnt vmcnt(0)")
        a("v_accvgpr_read_b32 v39, a8")
        self.nonce_from(39)
        self.flag_store(1, 3)
        a("s_barrier")
        a.label("L_c_join")

    def fix_x_after_pass(self):
        a = self.a
        a("v_subrev_u32 v%d, 8192, v%d" % (self.C_XA, self.C_XA))
        a("v_subrev_u32 v%d, 8192, v%d" % (self.C_XA + 1, self.C_XA + 1))

    def capture(self, fn):
        save = self.a
        tmp = Asm(); tmp.uid = save.uid + 1000
        self.a = tmp
        fn()
        self.a = save
        save.uid = tmp.uid
        return [i.text for i in tmp.ins]

    def h_loop(self, k0):
        a = self.a
        consts = self.capture(self.fft_consts) if (k0 == 8 and "nofft" not in self.exp) else []
        per = (len(consts) + 7) // 8
        st = self.stage_loads() if k0 == 8 else []
        nst = 0
        for k in range(k0, k0 + 8):
            if k + 1 <= 15 and "hnowait" not in self.exp:
                younger = 4 * (min(k + 3, 15) - (k + 1))
                if nst:
                    lab = a.newlabel("hw")
                    a("s_cmp_ge_u32 s%d, 2" % S_HW)
                    a("s_cbranch_scc1 %s_b" % lab)
                    a("s_waitcnt vmcnt(%d)" % (younger + nst))
                    a("s_branch %s_d" % lab)
                    a.label(lab + "_b")
                    a("s_waitcnt vmcnt(%d)" % younger)
                    a.label(lab + "_d")
                else:
                    a("s_waitcnt vmcnt(%d)" % younger)
            a("s_barrier")
            if k + 4 <= 15: self.dma_chunk(k + 4)
            if k == 9:
                a("s_cmp_lg_u32 s%d, 0" % S_HW)
                a("s_cbranch_scc1 L_h_nf0")
                a("s_waitcnt vmcnt(8)")
                self.flag_store(0)
                a.label("L_h_nf0")
            if k == 11:
                self.wsp_voffsets(96)
                a("s_lshl_b32 s%d, s%d, 18" % (S_T1, S_MB))
                a("s_lshl_b32 s3, s%d, 10" % S_HW)
                a("s_add_u32 s%d, s%d, s3" % (S_T1, S_T1))
                a("s_add_u32 s67, s%d, %d" % (S_T1, 2 * 256))
                a("s_add_u32 s68, s%d, %d" % (S_T1, 3 * 256))
                a("s_add_u32 s69, s%d, %d" % (S_T1, 2 * 1024 + 2 * 256))
            if k0 == 0: continue
            lab = a.newlabel("role")
            a("s_cmp_lt_u32 s%d, 2" % S_HW)
            a("s_cbranch_scc1 %s_s" % lab)
            if consts:
                for t in consts[(k - k0) * per:(k - k0 + 1) * per]: a(t)
            a("s_branch %s_d" % lab)
            a.label(lab + "_s")
            if st and k >= 12:
                n = 12
                for t in st[2 * nst:2 * (nst + n)]: a(t)
                nst += n
            a.label(lab + "_d")

    def stats2_publish(self):
        a = self.a
        E = 16
        a("v_lshlrev_b32 v8, 3, v%d" % V_JL)
        a("v_add_u32 v8, %d, v8" % LDS_T4)
        for w in range(3):
            for st in range(2):
                d = E + w * 4 + st * 2
                a("ds_read_b64 v[%d:%d], v8 offset:%d" % (d, d + 1, w * 512 + st * 256))
        a("s_waitcnt lgkmcnt(0)")
        for w in range(1, 3):
            for st in range(2):
                a("v_pk_add_f32 v[%d:%d], v[%d:%d], v[%d:%d]" % (E + st * 2, E + st * 2 + 1, E + st * 2, E + st * 2 + 1, E + w * 4 + st * 2, E + w * 4 + st * 2 + 1))
        a("s_lshl_b32 s%d, s%d, 3" % (S_T0, S_MB))
        a("s_add_u32 s%d, s%d, s%d" % (S_T0, S_T0, S_J))
        a("s_lshl_b32 s%d, s%d, 9" % (S_T0, S_T0))
        a("s_add_u32 s%d, s%d, 0x%x" % (S_T0, S_T0, WS_STATS))
        a("v_lshlrev_b32 v8, 4, v%d" % V_JL)
        a("s_mov_b32 exec_hi, 0")
        a("buffer_store_dwordx4 v[%d:%d], v8, s[%d:%d], s%d offen sc1" % (E, E + 3, SRD_WS, SRD_WS + 3, S_T0))
        a("s_mov_b64 exec, -1")

    def stats2_consume(self):
        a = self.a
        E = 16
        a("v_lshlrev_b32 v8, 5, v%d" % V_LANE)
        a("v_add_u32 v8, s%d, v8" % S_MB)
        a("v_lshlrev_b32 v8, 7, v8")
        self.poll_flags(8, 8)
        a("s_lshl_b32 s%d, s%d, 12" % (S_T0, S_MB))
        a("s_add_u32 s%d, s%d, 0x%x" % (S_T0, S_T0, WS_STATS))
        a("v_lshlrev_b32 v8, 4, v%d" % V_JL)
        for jj in range(8):
            a("buffer_load_dwordx4 v[%d:%d], v8, s[%d:%d], s%d offen offset:%d sc1" % (E + 4 * jj, E + 3 + 4 * jj, SRD_WS, SRD_WS + 3, S_T0, jj * 512))
        a("s_waitcnt vmcnt(0)")
        for jj in range(1, 8):
            for q in range(2):
                a("v_pk_add_f32 v[%d:%d], v[%d:%d], v[%d:%d]" % (E + 2 * q, E + 1 + 2 * q, E + 2 * q, E + 1 + 2 * q, E + 4 * jj + 2 * q, E + 1 + 4 * jj + 2 * q))
        for st in range(2):
            self.mean_rstd(E + 2 * st, E + 1 + 2 * st, 688, E + 4 + 2 * st, E + 5 + 2 * st, E + 10)
        a("v_lshlrev_b32 v8, 3, v%d" % V_JL)
        a("v_add_u32 v8, %d, v8" % LDS_T5)
        a("ds_write_b64 v8, v[%d:%d]" % (E + 4, E + 5))
        a("ds_write_b64 v8, v[%d:%d] offset:256" % (E + 6, E + 7))
        a("s_waitcnt lgkmcnt(0)")

    def angles(self, n_list, tq, base, dst):
        a = self.a
        for idx, n in enumerate(n_list):
            if n == 0: a("v_mov_b32 v%d, v%d" % (dst + idx, base))
            else: a("v_fmamk_f32 v%d, v%d, 0x%x, v%d" % (dst + idx, tq, f2u(float(n)), base))

    H_T1F, H_8H = 46, 47
    def fft_consts(self):
        a = self.a
        T = 16
        a("v_bfe_u32 v%d, v%d, 2, 1" % (T, V_JL))
        a("v_lshlrev_b32 v%d, 4, v%d" % (T, T))
        a("v_bfe_u32 v%d, v%d, 3, 2" % (T + 1, V_JL))
        a("v_lshl_or_b32 v%d, v%d, 2, v%d" % (T, T + 1, T))
        a("v_and_b32 v%d, 3, v%d" % (T + 1, V_JL))
        a("v_or_b32 v%d, v%d, v%d" % (T, T, T + 1))
        a("v_cvt_f32_u32 v%d, v%d" % (self.H_T1F, T))
        a("v_cvt_f32_u32 v%d, v%d" % (self.H_8H, V_H))
        a("v_mul_f32 v%d, 0x%x, v%d" % (self.H_8H, f2u(8.0), self.H_8H))
        a("v_mul_f32 v%d, 0x%x, v%d" % (T + 2, f2u(1.0 / 32), self.H_T1F))
        a("v_mul_f32 v%d, v%d, v%d" % (T + 3, T + 2, self.H_8H))
        A = T + 4; C = T + 12; S = T + 20
        for ks in range(2):
            self.angles([16 * ks + i for i in range(8)], T + 2, T + 3, A)
            for i in range(8): a("v_fract_f32 v%d, v%d" % (A + i, A + i))
            for i in range(8):
                a("v_cos_f32 v%d, v%d" % (C + i, A + i))
                a("v_sin_f32 v%d, v%d" % (S + i, A + i))
            for p in range(4):
                a("v_cvt_pk_bf16_f32 v%d, v%d, v%d" % (A + 0, C + 2 * p, C + 2 * p + 1))
                a("v_cvt_pk_bf16_f32 v%d, -v%d, -v%d" % (A + 1, S + 2 * p, S + 2 * p + 1))
                a("v_cvt_pk_bf16_f32 v%d, v%d, v%d" % (A + 2, S + 2 * p, S + 2 * p + 1))
                a("v_accvgpr_write_b32 a%d, v%d" % (4 * ks + p, A + 0))
                a("v_accvgpr_write_b32 a%d, v%d" % (8 + 4 * ks + p, A + 1))
                a("v_accvgpr_write_b32 a%d, v%d" % (16 + 4 * ks + p, A + 2))
        a("v_accvgpr_write_b32 a60, v%d" % self.H_T1F)
        a("v_accvgpr_write_b32 a61, v%d" % self.H_8H)
        a("s_sub_u32 s3, s%d, 2" % S_HW)
        a("s_lshl_b32 s3, s3, 5")
        a("v_add_u32 v%d, s3, v%d" % (T + 2, V_JL))
        a("v_cvt_f32_u32 v%d, v%d" % (T + 2, T + 2))
        a("v_mul_f32 v%d, 0x%x, v%d" % (T + 2, f2u(1.0 / 64), T + 2))
        a("v_mul_f32 v%d, v%d, v%d" % (T + 3, T + 2, self.H_8H))
        for kt in range(2):
            for kp in range(2):
                self.angles([32 * kt + 16 * kp + i for i in range(8)], T + 2, T + 3, A)
                for i in range(8): a("v_fract_f32 v%d, v%d" % (A + i, A + i))
                for i in range(8):
                    a("v_cos_f32 v%d, v%d" % (C + i, A + i))
                    a("v_sin_f32 v%d, v%d" % (S + i, A + i))
                for p in range(4):
                    a("v_cvt_pk_bf16_f32 v%d, v%d, v%d" % (A + 0, C + 2 * p, C + 2 * p + 1))
                    a("v_cvt_pk_bf16_f32 v%d, v%d, v%d" % (A + 1, S + 2 * p, S + 2 * p + 1))
                    a("v_accvgpr_write_b32 a%d, v%d" % (24 + 16 * kt + 4 * kp + p, A + 0))
                    a("v_accvgpr_write_b32 a%d, v%d" % (24 + 16 * kt + 8 + 4 * kp + p, A + 1))

    def p1_helper(self):
        a = self.a
        a("s_mov_b32 s%d, 0" % S_C)
        a("v_mov_b32 v6, 0")
        a("buffer_load_dword v%d, v6, s[%d:%d], 0 offen sc1" % (self.V_NON, SRD_DBG, SRD_DBG + 3))
        a("s_waitcnt vmcnt(13) lgkmcnt(0)")
        a("s_barrier")
        self.h_loop(0)
        self.nonce_from(self.V_NON)
        a("s_barrier")
        a("s_cmp_lg_u32 s%d, 0" % S_HW)
        a("s_cbranch_scc1 L_h_nopub")
        self.stats2_publish()
        a.label("L_h_nopub")
        self.h_loop(8)
        a("s_cmp_lg_u32 s%d, 2" % S_HW)
        a("s_cbranch_scc1 L_h_nocons")
        self.stats2_consume()
        a.label("L_h_nocons")
        a("s_barrier")

    G_B = 16
    G_VB = 10
    G_VZ = 32
    G_L16 = 35
    G_BS = 36
    G_RV = 40
    def ring_reg(self, f):
        if f < 8: return "a[%d:%d]" % (96 + 4 * f, 96 + 4 * f + 3)
        r = self.G_RV + 4 * (f - 8)
        return "v[%d:%d]" % (r, r + 3)

    def g_compute(self):
        a = self.a
        a("v_lshlrev_b32 v%d, 4, v%d" % (self.G_L16, V_LANE))
        a("v_and_b32 v5, 15, v%d" % V_SIG)
        a("v_xor_b32 v5, v5, v%d" % V_H)
        a("v_lshlrev_b32 v5, 4, v5")
        a("v_lshl_add_u32 v5, v%d, 8, v5" % V_SIG)
        a("s_lshl_b32 s3, s%d, 15" % S_W)
        a("v_add_u32 v104, s3, v5")
        for k in range(1, 8): a("v_xor_b32 v%d, %d, v104" % (104 + k, k * 32))
        a("s_sub_u32 s%d, s%d, 64" % (S_T2, S_WID))
        for tau in range(3):
            a("s_add_u32 s%d, s%d, %d" % (S_T0, S_W, tau))
            a("s_cmp_ge_u32 s%d, 3" % S_T0)
            a("s_cselect_b32 s%d, 3, 0" % S_T1)
            a("s_sub_u32 s%d, s%d, s%d" % (S_T0, S_T0, S_T1))
            a("s_lshl_b32 s%d, s%d, 10" % (S_T1, S_T0))
            a("v_add_u32 v5, s%d, v%d" % (S_T1, self.G_L16))
            a("v_mov_b32 v6, 0x%x" % OOB)
            a("v_cmp_le_u32 vcc, s%d, v%d" % (S_T2, V_SIG))
            a("s_cmp_eq_u32 s%d, 2" % S_T0)
            a("s_cselect_b64 s[%d:%d], vcc, 0" % (S_EX, S_EX + 1))
            a("v_cndmask_b32 v%d, v5, v6, s[%d:%d]" % (self.G_VZ + tau, S_EX, S_EX + 1))
        a("s_lshl_b32 s%d, s%d, 7" % (S_T0, S_MB))
        a("v_lshlrev_b32 v5, 1, v%d" % V_SIG)
        a("buffer_load_ushort v%d, v5, s[%d:%d], s%d offen" % (self.G_BS, SRD_BSP, SRD_BSP + 3, S_T0))
        a("buffer_load_ushort v%d, v5, s[%d:%d], s%d offen offset:64" % (self.G_BS + 1, SRD_BSP, SRD_BSP + 3, S_T0))
        a("s_lshl_b32 s3, s%d, 5" % S_J)
        a("s_lshl_b32 s%d, s%d, 3" % (S_T0, S_W))
        a("s_add_u32 s3, s3, s%d" % S_T0)
        a("v_add_u32 v38, s3, v%d" % V_LANE)
        a("v_lshlrev_b32 v38, 7, v38")
        a("v_add_u32 v38, 0x%x, v38" % (WS_FLAG + 256 * 128))
        a("s_lshl_b32 s%d, s%d, 7" % (S_B0, S_J))
        a("s_lshl_b32 s3, s%d, 5" % S_W)
        a("s_add_u32 s%d, s%d, s3" % (S_B0, S_B0))
        a("s_mov_b32 s%d, 0" % S_RHO)
        for cc in range(4):
            a("s_add_u32 s3, s%d, %d" % (S_RHO, cc))
            a("s_and_b32 s3, s3, 3")
            a("s_lshl_b32 s3, s3, 3")
            a("s_add_u32 s3, s3, s%d" % S_B0)
            a("s_mul_i32 s3, s3, 3072")
            a("s_add_u32 s%d, s3, 0x%x" % (67 + cc, WS_Z2N))
        a("s_waitcnt vmcnt(0)")
        a("s_cmp_eq_u32 s%d, 3" % S_W)
        a("s_cbranch_scc1 L_g_nf")
        a("v_accvgpr_read_b32 v39, a8")
        self.nonce_from(39)
        self.flag_store(1, 0, S_W)
        a.label("L_g_nf")
        self.stamp(7)
        self.poll_flags_n(38, 8, 3, 16)
        self.stamp(8)
        self.stamp(26)
        vq = VQ(a)
        def zload(n):
            a("s_add_u32 s%d, s%d, %d" % (S_T0, 67 + n // 8, (n % 8) * 3072))
            for tau in range(3):
                f = (n % 8) * 3 + tau
                a("buffer_load_dwordx4 %s, v%d, s[%d:%d], s%d offen %s" % (self.ring_reg(f), self.G_VZ + tau, SRD_WS, SRD_WS + 3, S_T0, "" if "gplain" in self.exp else "sc1"))
                vq.issue(("z", n))
        for n in range(8): zload(n)
        B = self.G_B
        SY_FREE = LDS_SY + 0
        SY_LAND = LDS_SY + 16
        a("s_lshl_b32 s3, s%d, 2" % S_W)
        a("s_add_u32 s3, s3, %d" % LDS_SY)
        a("v_mov_b32 v14, s3")
        def land_check(cnt):
            lab = a.newlabel("ld")
            a("s_mov_b32 s%d, 0" % S_SPIN)
            a.label(lab)
            a("ds_read_b32 v15, v14 offset:16")
            a("s_waitcnt lgkmcnt(0)")
            a("v_readfirstlane_b32 s%d, v15" % S_T1)
            a("s_add_u32 s%d, s%d, 1" % (S_SPIN, S_SPIN))
            a("s_cmp_gt_u32 s%d, 0x100000" % S_SPIN)
            a("s_cbranch_scc1 %s_x" % lab)
            a("s_cmp_lt_u32 s%d, %d" % (S_T1, cnt))
            a("s_cbranch_scc1 %s" % lab)
            a.label(lab + "_x")
        def bread(n, st):
            cc, k = divmod(n, 8)
            r = B + (n & 1) * 8 + st * 4
            return "ds_read_b128 v[%d:%d], v%d offset:%d" % (r, r + 3, 104 + k, (cc & 1) * 16384 + st * 8192)
        land_check(2)
        a(bread(0, 0)); a(bread(0, 1))
        for n in range(32):
            cc, k = divmod(n, 8)
            buf = n & 1
            vq.wait(("z", n))
            nxt = n + 1 < 32
            if nxt and (n + 1) % 8 == 0 and (n + 1) // 8 >= 2 and "gnoland" not in self.exp:
                a("s_waitcnt lgkmcnt(0)")
                land_check((n + 1) // 8 + 1)
            else:
                a("s_waitcnt lgkmcnt(0)")
            fill = []
            if nxt: fill += [bread(n + 1, 0), bread(n + 1, 1)]
            zl = []
            if n + 8 < 32:
                zl.append("s_add_u32 s%d, s%d, %d" % (S_T0, 67 + (n + 8) // 8, ((n + 8) % 8) * 3072))
            mi = 0
            for tau in range(3):
                for st in range(2):
                    D = (tau * 2 + st) * 16
                    Br = B + buf * 8 + st * 4
                    cc_ = "0" if n == 0 else "a[%d:%d]" % (D, D + 15)
                    a("v_mfma_f32_32x32x16_bf16 a[%d:%d], %s, v[%d:%d], %s" % (D, D + 15, self.ring_reg((n % 8) * 3 + tau), Br, Br + 3, cc_))
                    if mi == 0:
                        for f in fill: a(f)
                        for f in zl: a(f)
                    if st == 1 and n + 8 < 32 and "gnoz" not in self.exp:
                        f = (n % 8) * 3 + tau
                        a("buffer_load_dwordx4 %s, v%d, s[%d:%d], s%d offen %s" % (self.ring_reg(f), self.G_VZ + tau, SRD_WS, SRD_WS + 3, S_T0, "" if "gplain" in self.exp else "sc1"))
                        vq.issue(("z", n + 8))
                    mi += 1
            if k == 7 and cc < 2:
                a("v_mov_b32 v15, %d" % (cc + 1))
                a("ds_write_b32 v14, v15")
        self.stamp(27)
        self.stamp(10)
        self.g_reduce()

    def wsp_dma16(self, cc, sbase, slds):
        a = self.a
        for q in range(16):
            a("s_add_u32 s%d, s%d, %d" % (S_T0, 67 + cc, q * 4 * 4096))
            a("s_add_u32 m0, s%d, %d" % (slds, (cc & 1) * 16384 + q * 1024))
            a("buffer_load_dwordx4 v%d, s[%d:%d], s%d offen lds" % (16 + (q & 3), SRD_WSP, SRD_WSP + 3, S_T0))

    def wsp_voffsets(self, base):
        a = self.a
        L = V_LANE
        a("v_lshrrev_b32 v5, 4, v%d" % L)
        a("v_and_b32 v6, 15, v%d" % L)
        for qq in range(4):
            a("v_add_u32 v7, %d, v5" % (4 * qq))
            a("v_xor_b32 v7, v7, v6")
            a("v_lshlrev_b32 v7, 4, v7")
            a("v_lshl_add_u32 v%d, v5, 12, v7" % (base + qq))

    def stage_reg(self, unit, q):
        if unit < 2:
            r = unit * 64 + 4 * q
            return "a[%d:%d]" % (r, r + 3)
        r = 32 + 4 * q
        return "v[%d:%d]" % (r, r + 3)

    def stage_loads(self):
        out = []
        for unit in range(3):
            for q in range(16):
                out.append("s_add_u32 s%d, s%d, %d" % (S_T0, 67 + unit, q * 4 * 4096))
                out.append("buffer_load_dwordx4 %s, v%d, s[%d:%d], s%d offen" % (self.stage_reg(unit, q), 96 + (q & 3), SRD_WSP, SRD_WSP + 3, S_T0))
        return out

    def g_helper(self):
        a = self.a
        L = V_LANE
        self.wsp_voffsets(16)
        a("s_lshl_b32 s%d, s%d, 18" % (S_B0, S_MB))
        a("s_lshl_b32 s3, s%d, 10" % S_HW)
        a("s_add_u32 s%d, s%d, s3" % (S_B0, S_B0))
        a("s_mov_b32 s70, s%d" % S_B0)
        a("s_add_u32 s71, s%d, 256" % S_B0)
        a("s_lshl_b32 s%d, s%d, 15" % (S_T3, S_HW))
        for cc in range(2):
            for q in range(16):
                a("s_add_u32 s%d, s%d, %d" % (S_T0, 70 + cc, q * 4 * 4096))
                a("s_add_u32 m0, s%d, %d" % (S_T3, cc * 16384 + q * 1024))
                a("buffer_load_dwordx4 v%d, s[%d:%d], s%d offen lds" % (16 + (q & 3), SRD_WSP, SRD_WSP + 3, S_T0))
        a("s_lshl_b32 s3, s%d, 2" % S_HW)
        a("s_add_u32 s3, s3, %d" % LDS_SY)
        a("v_mov_b32 v12, s3")
        def wait_free(off, cnt):
            lab = a.newlabel("fr")
            a("s_mov_b32 s%d, 0" % S_SPIN)
            a.label(lab)
            a("ds_read_b32 v5, v12 offset:%d" % off)
            a("s_waitcnt lgkmcnt(0)")
            a("v_readfirstlane_b32 s%d, v5" % S_T0)
            a("s_add_u32 s%d, s%d, 1" % (S_SPIN, S_SPIN))
            a("s_cmp_gt_u32 s%d, 0x100000" % S_SPIN)
            a("s_cbranch_scc1 %s_x" % lab)
            a("s_cmp_lt_u32 s%d, %d" % (S_T0, cnt))
            a("s_cbranch_scc0 %s_x" % lab)
            a("s_sleep 1")
            a("s_branch %s" % lab)
            a.label(lab + "_x")
        a("s_cmp_ge_u32 s%d, 2" % S_HW)
        a("s_cbranch_scc1 L_gh_fft")
        a("s_waitcnt vmcnt(0)")
        a("v_mov_b32 v6, 2")
        a("ds_write_b32 v12, v6 offset:16")
        a("v_lshlrev_b32 v13, 4, v%d" % L)
        a("s_lshl_b32 s3, s%d, 15" % S_HW)
        a("v_add_u32 v13, s3, v13")
        a("v_add_u32 v14, 65536, v13")
        def put(unit, vaddr, slot, landoff, cnt):
            for q in range(16 if "noput" not in self.exp else 0):
                a("ds_write_b128 v%d, %s offset:%d" % (vaddr, self.stage_reg(unit, q), slot * 16384 + q * 1024))
            a("v_mov_b32 v6, %d" % cnt)
            a("s_waitcnt lgkmcnt(0)")
            a("ds_write_b32 v12, v6 offset:%d" % landoff)
        wait_free(0, 1); put(0, 13, 0, 16, 3)
        for q in range(16):
            a("s_add_u32 s%d, s69, %d" % (S_T0, 256 + q * 4 * 4096))
            a("buffer_load_dwordx4 a[%d:%d], v%d, s[%d:%d], s%d offen" % (4 * q, 4 * q + 3, 96 + (q & 3), SRD_WSP, SRD_WSP + 3, S_T0))
        wait_free(8, 1); put(2, 14, 0, 24, 3)
        wait_free(0, 2); put(1, 13, 1, 16, 4)
        wait_free(8, 2)
        a("s_waitcnt vmcnt(0)")
        put(0, 14, 1, 24, 4)
        a("s_branch L_gh_done")
        a.label("L_gh_fft")
        a("s_waitcnt vmcnt(0)")
        a("v_mov_b32 v6, 2")
        a("ds_write_b32 v12, v6 offset:16")
        if "nofft" not in self.exp:
            a("s_setprio 3")
            self.fft()
            a("s_setprio 0")
        a("s_waitcnt vmcnt(0)")
        a("s_sub_u32 s%d, s%d, 2" % (S_T1, S_HW))
        self.flag_store(3, 0, S_T1)
        self.stamp(19)
        a.label("L_gh_done")
        self.stamp(9)
        a("s_barrier")
        a("v_lshrrev_b32 v5, 3, v%d" % L)
        a("v_and_b32 v6, 7, v%d" % L)
        a("v_bfe_u32 v7, v%d, 4, 1" % L)
        a("v_lshlrev_b32 v7, 2, v7")
        a("v_xor_b32 v6, v6, v7")
        a("v_lshlrev_b32 v6, 4, v6")
        a("v_lshl_add_u32 v9, v5, 10, v6")
        a("s_lshl_b32 s3, s%d, 7" % S_J)
        a("v_add_u32 v9, s3, v9")
        a("s_add_u32 s3, s%d, s%d" % (S_HW, S_MB))
        a("s_and_b32 s3, s3, 3")
        a("s_mul_i32 s%d, s3, %d" % (S_T1, 22 * 8192))
        a("s_mul_i32 s%d, s3, %d" % (S_T2, 22 * 1024))
        for q in range(22):
            if q == 8: a("s_barrier")
            a("s_add_u32 m0, s%d, %d" % (S_T2, LDS_WO + q * 1024))
            a("s_add_u32 s%d, s%d, %d" % (S_T0, S_T1, q * 8192))
            a("buffer_load_dwordx4 v9, s[%d:%d], s%d offen lds" % (SRD_WOUT, SRD_WOUT + 3, S_T0))
        self.final_pre()
        a("s_waitcnt vmcnt(18)")
        a("s_barrier")
        a("s_barrier")
        self.final_h()

    def fft(self):
        a = self.a
        a("v_accvgpr_read_b32 v10, a60")
        a("v_accvgpr_read_b32 v11, a61")
        a("s_lshl_b32 s3, s%d, 5" % S_J)
        a("v_add_u32 v12, s3, v%d" % V_LANE)
        a("v_lshlrev_b32 v12, 7, v12")
        a("v_add_u32 v12, 0x%x, v12" % (WS_FLAG + 256 * 128 + 12))
        self.stamp(16)
        self.poll_flags_n(12, 32, 1, 16)
        self.stamp(17)
        a("v_lshlrev_b32 v13, 4, v%d" % V_LANE)
        a("s_lshl_b32 s3, s%d, 13" % S_L)
        a("s_add_u32 s3, s3, 0x%x" % WS_AB)
        X = 32
        for i in range(8):
            a("buffer_load_dwordx4 v[%d:%d], v13, s[%d:%d], s3 offen sc1" % (X + 4 * i, X + 4 * i + 3, SRD_WS, SRD_WS + 3))
            if i < 7: a("s_add_u32 s3, s3, 1024")
        a("s_sub_u32 s%d, s%d, 2" % (S_T1, S_HW))
        a("s_lshl_b32 s%d, s%d, 13" % (S_T2, S_T1))
        a("s_add_u32 s%d, s%d, %d" % (S_T2, S_T2, LDS_FX))
        a("v_add_u32 v14, s%d, v13" % S_T2)
        a("v_bfe_u32 v7, v%d, 2, 2" % V_LANE)
        a("v_lshl_add_u32 v7, v%d, 3, v7" % V_H)
        a("v_lshlrev_b32 v7, 7, v7")
        a("v_bfe_u32 v8, v%d, 4, 1" % V_LANE)
        a("v_lshlrev_b32 v8, 5, v8")
        a("v_and_b32 v9, 1, v%d" % V_LANE)
        a("v_lshl_add_u32 v8, v9, 4, v8")
        a("v_bfe_u32 v9, v%d, 1, 1" % V_LANE)
        a("v_lshl_add_u32 v8, v9, 3, v8")
        a("v_add_u32 v7, v7, v8")
        a("v_add_u32 v15, s%d, v7" % S_T2)
        a("s_waitcnt vmcnt(0)")
        self.stamp(18)
        for i in range(8):
            a("ds_write_b128 v14, v[%d:%d] offset:%d" % (X + 4 * i, X + 4 * i + 3, i * 1024))
        URE, UIM, A1, TC, TS, A2 = 32, 48, 16, 64, 80, 104
        D2 = 64
        def mm(D, A, B, first, dfile="v", afile="v", bfile="a"):
            a("v_mfma_f32_32x32x16_bf16 %s[%d:%d], %s[%d:%d], %s[%d:%d], %s" % (dfile, D, D + 15, afile, A, A + 3, bfile, B, B + 3, "0" if first else "%s[%d:%d]" % (dfile, D, D + 15)))
        for kt in range(2):
            a("v_mul_f32 v12, 0x%x, v10" % (f2u(1.0 / 2048)))
            a("v_mul_f32 v13, v12, v11")
            if kt == 0: a("s_waitcnt lgkmcnt(0)")
            for ks in range(4):
                for q in range(2):
                    r = A1 + 4 * ks + 2 * q
                    a("ds_read_b64_tr_b16 v[%d:%d], v15 offset:%d" % (r, r + 1, (ks >> 1) * 4096 + (ks & 1) * 2048 + q * 512 + kt * 64))
            for half in range(2):
                self.angles([32 * kt + 16 * half + i for i in range(8)], 12, 13, 120)
                for i in range(8):
                    a("v_cos_f32 v%d, v%d" % (TC + 8 * half + i, 120 + i))
                    a("v_sin_f32 v%d, v%d" % (TS + 8 * half + i, 120 + i))
            a("s_waitcnt lgkmcnt(0)")
            FRE, FIM, NFIM = 0, 8, 16
            mm(URE, A1, FRE, True); mm(UIM, A1, FIM, True)
            mm(URE, A1 + 4, FRE + 4, False); mm(UIM, A1 + 4, FIM + 4, False)
            mm(URE, A1 + 8, NFIM, False); mm(UIM, A1 + 8, FRE, False)
            mm(URE, A1 + 12, NFIM + 4, False); mm(UIM, A1 + 12, FRE + 4, False)
            for p in range(8):
                t0 = 96 + (p % 2) * 4
                for e in range(2):
                    re, im, c, s_ = URE + 2 * p + e, UIM + 2 * p + e, TC + 2 * p + e, TS + 2 * p + e
                    a("v_mul_f32 v%d, v%d, v%d" % (t0 + e, im, s_))
                    a("v_mul_f32 v%d, v%d, v%d" % (t0 + 2 + e, re, s_))
                    a("v_fmac_f32 v%d, v%d, v%d" % (t0 + e, re, c))
                    a("v_fma_f32 v%d, v%d, v%d, -v%d" % (t0 + 2 + e, im, c, t0 + 2 + e))
                a("v_cvt_pk_bf16_f32 v%d, v%d, v%d" % (A2 + p, t0, t0 + 1))
                a("v_cvt_pk_bf16_f32 v%d, v%d, v%d" % (A2 + 8 + p, t0 + 2, t0 + 3))
            G = 24 + 16 * kt
            mm(D2, A2, G, kt == 0, dfile="a"); mm(D2, A2 + 4, G + 4, False, dfile="a")
            mm(D2, A2 + 8, G + 8, False, dfile="a"); mm(D2, A2 + 12, G + 12, False, dfile="a")
        a("v_lshlrev_b32 v6, 7, v%d" % V_JL)
        a("v_lshl_add_u32 v6, v%d, 6, v6" % V_H)
        a("v_add_u32 v6, s%d, v6" % S_T2)
        for q in range(4):
            a("ds_write_b128 v6, a[%d:%d] offset:%d" % (D2 + 4 * q, D2 + 4 * q + 3, q * 16))
        a("s_waitcnt lgkmcnt(0)")
        for q in range(4):
            a("ds_read_b128 v[%d:%d], v14 offset:%d" % (32 + 4 * q, 35 + 4 * q, q * 1024))
        a("s_lshl_b32 s3, s%d, 12" % S_T1)
        a("s_lshl_b32 s%d, s%d, 13" % (S_T0, S_L))
        a("s_add_u32 s3, s3, s%d" % S_T0)
        a("s_add_u32 s3, s3, 0x%x" % WS_YT)
        a("v_lshlrev_b32 v6, 4, v%d" % V_LANE)
        a("s_waitcnt lgkmcnt(0)")
        for q in range(4):
            a("buffer_store_dwordx4 v[%d:%d], v6, s[%d:%d], s3 offen offset:%d sc1" % (32 + 4 * q, 35 + 4 * q, SRD_WS, SRD_WS + 3, q * 1024))

    def g_reduce(self):
        a = self.a
        L16 = self.G_L16
        a("s_barrier")
        for tau in (1, 2, 0):
            if tau == 0:
                a("s_cmp_lg_u32 s%d, 3" % S_W)
                a("s_cbranch_scc1 L_exp_done")
            a("s_add_u32 s%d, s%d, %d" % (S_T0, S_W, tau))
            a("s_cmp_ge_u32 s%d, 3" % S_T0)
            a("s_cselect_b32 s%d, 3, 0" % S_T1)
            a("s_sub_u32 s%d, s%d, s%d" % (S_T0, S_T0, S_T1))
            a("s_sub_u32 s%d, s%d, s%d" % (S_T1, S_W, S_T0))
            a("s_sub_u32 s%d, s%d, 1" % (S_T1, S_T1))
            a("s_and_b32 s%d, s%d, 3" % (S_T1, S_T1))
            a("s_mul_i32 s%d, s%d, 3" % (S_T0, S_T0))
            a("s_add_u32 s%d, s%d, s%d" % (S_T0, S_T0, S_T1))
            a("s_lshl_b32 s%d, s%d, 13" % (S_T0, S_T0))
            a("v_add_u32 v5, s%d, v%d" % (S_T0, L16))
            for st in range(2):
                for q in range(4):
                    r = (tau * 2 + st) * 16 + 4 * q
                    a("ds_write_b128 v5, a[%d:%d] offset:%d" % (r, r + 3, st * 4096 + q * 1024))
        a.label("L_exp_done")
        a("s_waitcnt lgkmcnt(0)")
        a("s_barrier")
        self.stamp(11)
        a("s_cmp_eq_u32 s%d, 3" % S_W)
        a("s_cbranch_scc1 L_h_done")
        G = 40
        I = 72
        a("s_mul_i32 s%d, s%d, %d" % (S_T0, S_W, 3 * 8192))
        a("v_add_u32 v5, s%d, v%d" % (S_T0, L16))
        for st in range(2):
            for q in range(4):
                r = G + st * 16 + 4 * q
                a("ds_read_b128 v[%d:%d], v5 offset:%d" % (r, r + 3, 0 * 8192 + st * 4096 + q * 1024))
        for st in range(2):
            for q in range(4):
                r = I + st * 16 + 4 * q
                a("ds_read_b128 v[%d:%d], v5 offset:%d" % (r, r + 3, 1 * 8192 + st * 4096 + q * 1024))
        a("s_waitcnt lgkmcnt(0)")
        for p in range(16): a("v_pk_add_f32 v[%d:%d], v[%d:%d], v[%d:%d]" % (G + 2 * p, G + 2 * p + 1, G + 2 * p, G + 2 * p + 1, I + 2 * p, I + 2 * p + 1))
        for st in range(2):
            for q in range(4):
                r = I + st * 16 + 4 * q
                a("ds_read_b128 v[%d:%d], v5 offset:%d" % (r, r + 3, 2 * 8192 + st * 4096 + q * 1024))
        for i in range(0, 32, 8):
            for k in range(8): a("v_accvgpr_read_b32 v%d, a%d" % (16 + k, i + k))
            for p in range(4): a("v_pk_add_f32 v[%d:%d], v[%d:%d], v[%d:%d]" % (G + i + 2 * p, G + i + 2 * p + 1, G + i + 2 * p, G + i + 2 * p + 1, 16 + 2 * p, 16 + 2 * p + 1))
        a("s_waitcnt lgkmcnt(0)")
        for p in range(16): a("v_pk_add_f32 v[%d:%d], v[%d:%d], v[%d:%d]" % (G + 2 * p, G + 2 * p + 1, G + 2 * p, G + 2 * p + 1, I + 2 * p, I + 2 * p + 1))
        for st in range(2): a("v_lshlrev_b32 v%d, 16, v%d" % (self.G_BS + st, self.G_BS + st))
        for st in range(2):
            for r in range(8):
                src = self.C_Z1P + 8 * st + r
                g = G + 16 * st + 2 * r
                t = 16 + 2 * (r % 4)
                a("v_lshlrev_b32 v%d, 16, v%d" % (t, src))
                a("v_and_b32 v%d, 0xffff0000, v%d" % (t + 1, src))
                sel = "op_sel:[0,%d] op_sel_hi:[1,%d]" % (st, st)
                a("v_pk_add_f32 v[%d:%d], v[%d:%d], v[%d:%d] %s" % (g, g + 1, g, g + 1, self.G_BS, self.G_BS + 1, sel))
                a("v_pk_mul_f32 v[%d:%d], v[%d:%d], v[%d:%d]" % (g, g + 1, g, g + 1, t, t + 1))
                a("v_cvt_pk_bf16_f32 v%d, v%d, v%d" % (I + 8 * st + r, g, g + 1))
        a("s_mul_i32 s%d, s%d, 96" % (S_T0, S_MB))
        a("s_mul_i32 s%d, s%d, 6" % (S_T1, S_J))
        a("s_add_u32 s%d, s%d, s%d" % (S_T0, S_T0, S_T1))
        a("s_lshl_b32 s%d, s%d, 1" % (S_T1, S_W))
        a("s_add_u32 s%d, s%d, s%d" % (S_T0, S_T0, S_T1))
        a("s_lshl_b32 s%d, s%d, 10" % (S_T0, S_T0))
        a("s_add_u32 s%d, s%d, 0x%x" % (S_T0, S_T0, WS_H))
        for st in range(2):
            for Q in range(2):
                r = I + 8 * st + 4 * Q
                a("s_add_u32 s%d, s%d, %d" % (S_T1, S_T0, (st * 48 + Q) * 1024))
                a("buffer_store_dwordx4 v[%d:%d], v%d, s[%d:%d], s%d offen sc1" % (r, r + 3, L16, SRD_WS, SRD_WS + 3, S_T1))
        a("s_waitcnt vmcnt(0)")
        self.flag_store(2, 0, S_W)
        a.label("L_h_done")
        self.o_pre()
        a("s_barrier")
        self.stamp(12)

    def o_pre(self):
        a = self.a
        a("s_lshr_b32 s%d, s%d, 1" % (S_T0, S_W))
        a("s_lshl_b32 s3, s%d, 2" % S_T0)
        a("v_add_u32 v40, s3, v%d" % V_LANE)
        a("v_lshlrev_b32 v40, 5, v40")
        a("v_add_u32 v40, s%d, v40" % S_MB)
        a("v_lshlrev_b32 v40, 7, v40")
        a("v_add_u32 v40, 0x%x, v40" % (WS_FLAG + 2 * 256 * 128))
        a("v_bfe_u32 v5, v%d, 2, 2" % V_LANE)
        a("v_lshl_add_u32 v5, v%d, 3, v5" % V_H)
        a("v_lshlrev_b32 v5, 7, v5")
        a("v_bfe_u32 v6, v%d, 4, 1" % V_LANE)
        a("v_lshlrev_b32 v6, 1, v6")
        a("v_and_b32 v7, 1, v%d" % V_LANE)
        a("v_or_b32 v6, v6, v7")
        a("v_bfe_u32 v7, v%d, 3, 1" % V_LANE)
        a("v_lshlrev_b32 v7, 2, v7")
        a("v_xor_b32 v6, v6, v7")
        a("s_lshl_b32 s3, s%d, 2" % S_T0)
        a("v_xor_b32 v6, s3, v6")
        a("v_bfe_u32 v7, v%d, 1, 1" % V_LANE)
        a("v_lshlrev_b32 v7, 3, v7")
        a("v_add_u32 v5, v5, v7")
        a("s_mul_i32 s3, s%d, %d" % (S_T0, 352 * 128))
        a("s_add_u32 s3, s3, %d" % LDS_WO)
        a("v_add_u32 v5, s3, v5")
        WA = 52
        a("v_lshl_add_u32 v%d, v6, 4, v5" % WA)
        a("v_xor_b32 v6, 4, v6")
        a("v_lshl_add_u32 v%d, v6, 4, v5" % (WA + 1))
        a("s_cmp_eq_u32 s%d, 0" % S_T0)
        a("s_cselect_b32 s3, 8, 0")
        a("s_add_u32 s3, s3, 256")
        a("s_lshl_b32 s3, s3, 7")
        a("v_add_u32 v%d, s3, v%d" % (WA + 2, WA))
        a("v_add_u32 v%d, s3, v%d" % (WA + 3, WA + 1))
        a("s_and_b32 s%d, s%d, 1" % (S_T1, S_W))
        a("s_lshl_b32 s3, s%d, 1" % S_MB)
        a("s_add_u32 s3, s3, s%d" % S_T1)
        a("s_mul_i32 s3, s3, 48")
        a("s_mul_i32 s%d, s%d, 24" % (S_B0, S_T0))
        a("s_add_u32 s%d, s%d, s3" % (S_B0, S_B0))
        a("s_lshl_b32 s%d, s%d, 10" % (S_B0, S_B0))
        a("s_add_u32 s%d, s%d, 0x%x" % (S_B0, S_B0, WS_H))

    def phase_o(self):
        a = self.a
        L16 = self.G_L16
        WA = 52
        self.poll_flags_n(40, 4, 3, 60)
        self.stamp(13)
        vq = VQ(a)
        for n in range(24):
            r = 32 + 4 * n
            a("buffer_load_dwordx4 a[%d:%d], v%d, s[%d:%d], s%d offen sc1" % (r, r + 3, L16, SRD_WS, SRD_WS + 3, S_B0)); vq.issue(("h", n))
            if n < 23: a("s_add_u32 s%d, s%d, 1024" % (S_B0, S_B0))
        FA = 16
        def areads(n, buf):
            jj, rem = divmod(n, 6); ft, Q = divmod(rem, 2)
            out = []
            for tp in range(2):
                base = WA + tp if jj < 3 else WA + 2 + tp
                off = ((88 * jj if jj < 3 else 0) + 32 * ft + 16 * Q) * 128
                r = FA + buf * 8 + tp * 4
                out.append("ds_read_b64_tr_b16 v[%d:%d], v%d offset:%d" % (r, r + 1, base, off))
                out.append("ds_read_b64_tr_b16 v[%d:%d], v%d offset:%d" % (r + 2, r + 3, base, off + 512))
            return out
        for r in areads(0, 0): a(r)
        for n in range(24):
            buf = n & 1
            vq.wait(("h", n))
            a("s_waitcnt lgkmcnt(0)")
            rd = areads(n + 1, buf ^ 1) if n < 23 else []
            for tp in range(2):
                D = tp * 16
                Ar = FA + buf * 8 + tp * 4
                Br = 32 + 4 * n
                cc = "0" if n == 0 else "a[%d:%d]" % (D, D + 15)
                a("v_mfma_f32_32x32x16_bf16 a[%d:%d], v[%d:%d], a[%d:%d], %s" % (D, D + 15, Ar, Ar + 3, Br, Br + 3, cc))
                for r in rd[2 * tp:2 * tp + 2]: a(r)
        self.stamp(14)
        a("s_lshl_b32 s3, s%d, 13" % S_W)
        a("v_add_u32 v58, s3, v%d" % L16)
        for tp in range(2):
            for q in range(4):
                a("ds_write_b128 v58, a[%d:%d] offset:%d" % (16 * tp + 4 * q, 16 * tp + 4 * q + 3, tp * 4096 + q * 1024))
        a("s_waitcnt lgkmcnt(0)")
        a("s_barrier")

    def final_pre(self):
        a = self.a
        a("s_lshr_b32 s%d, s%d, 1" % (S_T0, S_HW))
        a("s_lshl_b32 s3, s%d, 6" % S_J)
        a("s_lshl_b32 s%d, s%d, 5" % (S_T2, S_T0))
        a("s_add_u32 s%d, s3, s%d" % (S_T2, S_T2))
        a("v_add_u32 v5, s%d, v%d" % (S_T2, V_LANE))
        a("v_sub_u32 v6, 512, v5")
        a("v_cmp_lt_u32 vcc, 256, v5")
        a("v_cndmask_b32 v6, v5, v6, vcc")
        a("v_and_b32 v6, 255, v6")
        a("v_lshlrev_b32 v43, 7, v6")
        a("v_add_u32 v43, 0x%x, v43" % (WS_FLAG + 3 * 256 * 128))
        a("s_and_b32 s%d, s%d, 1" % (S_T1, S_HW))
        a("s_lshl_b32 s3, s%d, 6" % S_MB)
        a("s_lshl_b32 s%d, s%d, 5" % (S_T3, S_T1))
        a("s_add_u32 s3, s3, s%d" % S_T3)
        a("v_add_u32 v41, s3, v%d" % V_SIG)
        a("v_lshlrev_b32 v42, 10, v41")
        a("v_lshl_add_u32 v42, v%d, 4, v42" % V_H)
        a("s_lshl_b32 s3, s%d, 1" % S_T2)
        a("v_add_u32 v42, s3, v42")
        XR = 44
        a("buffer_load_dwordx4 v[%d:%d], v42, s[%d:%d], 0 offen" % (XR, XR + 3, SRD_X, SRD_X + 3))
        a("buffer_load_dwordx4 v[%d:%d], v42, s[%d:%d], 0 offen offset:32" % (XR + 4, XR + 7, SRD_X, SRD_X + 3))
        a("v_lshlrev_b32 v5, 2, v41")
        a("v_sub_u32 v6, 2048, v41")
        a("v_and_b32 v6, 2047, v6")
        a("v_lshlrev_b32 v6, 2, v6")
        a("v_lshlrev_b32 v7, 3, v%d" % V_H)
        a("v_add_u32 v7, s%d, v7" % S_T2)
        a("v_lshl_add_u32 v8, v7, 13, v5")
        a("v_sub_u32 v9, %d, v7" % (512 - 23))
        a("v_lshl_add_u32 v9, v9, 13, v6")
        a("s_cmp_ge_u32 s%d, 256" % S_T2)
        a("s_cselect_b64 vcc, -1, 0")
        a("s_cselect_b32 s%d, 1, 0" % S_T3)
        a("v_cndmask_b32 v56, v8, v9, vcc")
        a("s_cselect_b32 s3, %d, 0" % (23 * 8192))
        a("v_add_u32 v8, s3, v56")
        a("v_mov_b32 v9, 0x%x" % OOB)
        a("v_cmp_eq_u32 vcc, 0, v7")
        a("v_cndmask_b32 v8, v8, v9, vcc")
        a("v_cmp_eq_u32 vcc, 256, v7")
        a("v_cndmask_b32 v57, v8, v5, vcc")
        self.poll_flags_n(43, 32, 2, 60)
        Y = 64
        for rho in range(16):
            k = 16 * (rho >> 3) + (rho & 7)
            if rho == 0:
                a("s_mov_b32 s3, 0x%x" % WS_YT)
                a("buffer_load_dword v%d, v57, s[%d:%d], s3 offen sc1" % (Y, SRD_WS, SRD_WS + 3))
            else:
                a("s_cmp_eq_u32 s%d, 1" % S_T3)
                a("s_cselect_b32 s3, %d, %d" % (23 - k, k))
                a("s_lshl_b32 s3, s3, 13")
                a("s_add_u32 s3, s3, 0x%x" % WS_YT)
                a("buffer_load_dword v%d, v56, s[%d:%d], s3 offen sc1" % (Y + rho, SRD_WS, SRD_WS + 3))

    def final_h(self):
        a = self.a
        XR, Y, O = 44, 64, 80
        a("v_lshlrev_b32 v10, 4, v%d" % V_LANE)
        a("s_lshl_b32 s3, s%d, 13" % S_HW)
        a("v_add_u32 v11, s3, v10")
        a("s_xor_b32 s3, s%d, 2" % S_HW)
        a("s_lshl_b32 s3, s3, 13")
        a("s_add_u32 s3, s3, 4096")
        a("v_add_u32 v12, s3, v10")
        for q in range(4):
            a("ds_read_b128 v[%d:%d], v11 offset:%d" % (O + 4 * q, O + 4 * q + 3, q * 1024))
        for q in range(4):
            a("ds_read_b128 v[%d:%d], v12 offset:%d" % (96 + 4 * q, 96 + 4 * q + 3, q * 1024))
        nl2e = f2u(-math.log2(math.e))
        a("s_mov_b32 s%d, 0x%x" % (S_K2, nl2e))
        a("s_mov_b32 s%d, 0x%x" % (S_K2 + 1, nl2e))
        a("s_and_b32 s%d, s%d, 1" % (S_T1, S_HW))
        a("s_lshl_b32 s3, s%d, 5" % S_T1)
        a("v_add_u32 v13, s3, v%d" % V_SIG)
        a("v_and_b32 v14, 7, v13")
        a("s_lshr_b32 s%d, s%d, 1" % (S_T0, S_HW))
        a("s_lshl_b32 s3, s%d, 2" % S_T0)
        a("v_add_u32 v15, s3, v%d" % V_H)
        a("v_xor_b32 v14, v14, v15")
        a("v_lshlrev_b32 v14, 4, v14")
        a("v_lshl_add_u32 v14, v13, 7, v14")
        a("v_add_u32 v14, 32768, v14")
        a("s_waitcnt lgkmcnt(0)")
        for p in range(8):
            a("v_pk_add_f32 v[%d:%d], v[%d:%d], v[%d:%d]" % (O + 2 * p, O + 2 * p + 1, O + 2 * p, O + 2 * p + 1, 96 + 2 * p, 96 + 2 * p + 1))
        for p in range(8):
            o = O + 2 * p; t = 96 + 2 * p
            a("v_pk_mul_f32 v[%d:%d], v[%d:%d], s[%d:%d]" % (t, t + 1, o, o + 1, S_K2, S_K2 + 1))
            a("v_exp_f32 v%d, v%d" % (t, t))
            a("v_exp_f32 v%d, v%d" % (t + 1, t + 1))
            a("v_pk_add_f32 v[%d:%d], v[%d:%d], 1.0 op_sel_hi:[1,0]" % (t, t + 1, t, t + 1))
            a("v_rcp_f32 v%d, v%d" % (t, t))
            a("v_rcp_f32 v%d, v%d" % (t + 1, t + 1))
            a("v_pk_mul_f32 v[%d:%d], v[%d:%d], v[%d:%d]" % (o, o + 1, o, o + 1, t, t + 1))
        a("s_waitcnt vmcnt(0)")
        for p in range(8):
            o = O + 2 * p; t = 96 + 2 * p; y = Y + 2 * p; xr = XR + p
            a("v_lshlrev_b32 v%d, 16, v%d" % (t, xr))
            a("v_and_b32 v%d, 0xffff0000, v%d" % (t + 1, xr))
            a("v_pk_fma_f32 v[%d:%d], v[%d:%d], v[%d:%d], v[%d:%d]" % (t, t + 1, y, y + 1, o, o + 1, t, t + 1))
            a("v_cvt_pk_bf16_f32 v%d, v%d, v%d" % (112 + p, t, t + 1))
        a("ds_write_b128 v14, v[112:115]")
        a("v_xor_b32 v14, 32, v14")
        a("ds_write_b128 v14, v[116:119]")
        a("s_waitcnt lgkmcnt(0)")
        a("s_barrier")
        a("v_lshrrev_b32 v5, 3, v%d" % V_LANE)
        a("v_and_b32 v6, 7, v%d" % V_LANE)
        a("v_xor_b32 v7, v5, v6")
        a("v_lshlrev_b32 v7, 4, v7")
        a("v_lshl_add_u32 v7, v5, 7, v7")
        a("s_lshl_b32 s3, s%d, 11" % S_HW)
        a("s_add_u32 s3, s3, 32768")
        a("v_add_u32 v7, s3, v7")
        a("ds_read_b128 v[16:19], v7")
        a("ds_read_b128 v[20:23], v7 offset:1024")
        a("v_lshlrev_b32 v8, 10, v5")
        a("v_lshl_add_u32 v8, v6, 4, v8")
        a("s_lshl_b32 s%d, s%d, 6" % (S_T0, S_MB))
        a("s_lshl_b32 s3, s%d, 4" % S_HW)
        a("s_add_u32 s%d, s%d, s3" % (S_T0, S_T0))
        a("s_lshl_b32 s%d, s%d, 10" % (S_T0, S_T0))
        a("s_lshl_b32 s3, s%d, 7" % S_J)
        a("s_add_u32 s%d, s%d, s3" % (S_T0, S_T0))
        a("s_waitcnt lgkmcnt(0)")
        fl = "" if "outplain" in self.exp else "sc1"
        a("buffer_store_dwordx4 v[16:19], v8, s[%d:%d], s%d offen %s" % (SRD_OUT, SRD_OUT + 3, S_T0, fl))
        a("s_add_u32 s%d, s%d, 8192" % (S_T0, S_T0))
        a("buffer_store_dwordx4 v[20:23], v8, s[%d:%d], s%d offen %s" % (SRD_OUT, SRD_OUT + 3, S_T0, fl))
        self.stamp(15)
        self.stamp(25)

    def build(self):
        a = self.a
        self.prologue()
        self.xstage()
        a("s_cmp_ge_u32 s%d, 4" % S_W)
        a("s_cbranch_scc1 L_helper")
        self.p1_compute()
        self.g_compute()
        self.phase_o()
        a("s_branch L_end")
        a.label("L_helper")
        self.p1_helper()
        self.g_helper()
        a.label("L_end")
        a("s_endpgm")
        a.finalize()
        hdr = open("cdna_kernels/%s.s.ref" % NAME).read().split("\n")
        head = []
        for line in hdr:
            if line.startswith("; @launch"):
                head.append("; @launch grid=(256,1,1) block=(512,1,1) lds=%d" % LDS_TOTAL)
            elif line.startswith(";"): head.append(line)
            else: break
        txt = "\n".join(head) + "\n"
        txt += '.amdgcn_target "amdgcn-amd-amdhsa--gfx950"\n.text\n.globl %s_kernel\n.p2align 8\n.type %s_kernel,@function\n%s_kernel:\n' % (NAME, NAME, NAME)
        txt += a.text()
        txt += '.section .rodata,"a"\n.p2align 6\n.amdhsa_kernel %s_kernel\n' % NAME
        txt += "  .amdhsa_next_free_vgpr 256\n  .amdhsa_next_free_sgpr 102\n  .amdhsa_accum_offset 128\n"
        txt += "  .amdhsa_group_segment_fixed_size 0\n  .amdhsa_kernarg_size 104\n  .amdhsa_user_sgpr_count 2\n"
        txt += "  .amdhsa_user_sgpr_kernarg_segment_ptr 1\n  .amdhsa_system_sgpr_workgroup_id_x 1\n"
        txt += "  .amdhsa_float_denorm_mode_32 3\n"
        txt += ".end_amdhsa_kernel\n"
        return txt

if __name__ == "__main__":
    import argparse
    ap = argparse.ArgumentParser()
    ap.add_argument("--stamps", action="store_true")
    ap.add_argument("--exp", default="")
    ap.add_argument("-o", default="cdna_kernels/%s.s" % NAME)
    args = ap.parse_args()
    g = Gen(stamps=args.stamps, exp=[e for e in args.exp.split(',') if e])
    txt = g.build()
    open(args.o, "w").write(txt)
    print("wrote", args.o, len(txt), "bytes;", len([i for i in g.a.ins if i.kind not in ("label", "dir")]), "instrs")
```

```python
import sys, math, struct
sys.path.insert(0, "gen")
from asmlib import *

NAME = "recurrent_scan__spectral_fnet__mixer_gmlp__prompt"

WS_FLAG = 0x000000
WS_STATS = 0x020000
WS_Z2N = 0x100000
WS_AB = 0x400000
WS_H = 0x600000
WS_YT = 0x900000
WS_STAMP = 0xF00000
WS_SIZE = 0x4000000
OOB = 0x80000000

LDS_WR = 65536
SLOT = 16384
NSLOT = 5
LDS_T4 = 147456
LDS_T5 = LDS_T4 + 1536
LDS_SY = LDS_T5 + 512
LDS_AT = 151552
LDS_FX = 131072
LDS_WO = 73728
LDS_TOTAL = 163840

SRD_X, SRD_WIN, SRD_DFT, SRD_WSP, SRD_WOUT, SRD_WS, SRD_OUT, SRD_BSP, SRD_DBG = 4, 8, 12, 20, 24, 28, 32, 36, 40
S_IMLO, S_IMHI = 16, 17
S_MB, S_J, S_W, S_F0, S_WID, S_NONCE, S_L = 44, 45, 46, 47, 48, 49, 50
S_C, S_SLOT, S_XD = 51, 52, 53
S_CN, S_KC128, S_WSOFF, S_SLOTN = 54, 55, 56, 57
S_HW = 58
S_DL0, S_WL0, S_W2 = 60, 61, 62
S_T0, S_T1, S_T2, S_T3 = 63, 90, 91, 92
S_PASS = 93
S_EX = 94
S_K2 = 96
S_SPIN = 98
S_B0 = 99
S_ST0 = 100
S_ROT1 = 59
S_RHO = 51

V_LANE, V_JL, V_H, V_SIG = 1, 2, 3, 4

def f2u(x): return struct.unpack("<I", struct.pack("<f", x))[0]

class Gen:
    def __init__(self, stop_after=None, stamps=False, exp=()):
        self.a = Asm()
        self.stop_after = stop_after
        self.stamps = stamps
        self.exp = set(exp)

    def stamp(self, idx):
        if "dbgst" in self.exp:
            m = {0: 1, 1: 2, 2: 3, 3: 4, 4: 5, 5: 6, 7: 7, 8: 8, 10: 9, 11: 10, 12: 11, 13: 12, 14: 13, 15: 14}
            if idx in m:
                a = self.a
                lab = a.newlabel("ds")
                a("s_cmp_lg_u32 s%d, %d" % (S_L, 0 * 256 + 37))
                a("s_cbranch_scc1 %s" % lab)
                a("s_cmp_lg_u32 s%d, 0" % S_W)
                a("s_cbranch_scc1 %s" % lab)
                a("s_memrealtime s[%d:%d]" % (S_ST0, S_ST0 + 1))
                a("s_waitcnt lgkmcnt(0)")
                a("v_mov_b32 v9, s%d" % S_ST0)
                a("v_mov_b32 v8, %d" % (4 * m[idx]))
                a("s_mov_b64 exec, 1")
                a("buffer_store_dword v9, v8, s[%d:%d], 0 offen sc1" % (SRD_DBG, SRD_DBG + 3))
                a("s_mov_b64 exec, -1")
                a.label(lab)
            return
        if not self.stamps: return
        a = self.a
        a(("s_memtime s[%d:%d]" if idx >= 24 else "s_memrealtime s[%d:%d]") % (S_ST0, S_ST0 + 1))
        a("s_waitcnt lgkmcnt(0)")
        a("v_mov_b32 v9, s%d" % S_ST0)
        a("s_lshl_b32 s%d, s%d, 3" % (S_ST0, S_L))
        a("s_add_u32 s%d, s%d, s%d" % (S_ST0, S_ST0, S_W))
        a("s_lshl_b32 s%d, s%d, 7" % (S_ST0, S_ST0))
        a("s_add_u32 s%d, s%d, 0x%x" % (S_ST0, S_ST0, WS_STAMP + idx * 4))
        a("v_mov_b32 v8, 0")
        a("s_mov_b64 s[%d:%d], exec" % (S_EX, S_EX + 1))
        a("s_mov_b64 exec, 1")
        a("buffer_store_dword v9, v8, s[%d:%d], s%d offen" % (SRD_WS, SRD_WS + 3, S_ST0))
        a("s_mov_b64 exec, s[%d:%d]" % (S_EX, S_EX + 1))

    def srd(self, base, plo, size):
        a = self.a
        a("s_mov_b32 s%d, s%d" % (base, plo))
        a("s_and_b32 s%d, s%d, 0xffff" % (base + 1, plo + 1))
        a("s_mov_b32 s%d, 0x%x" % (base + 2, size))
        a("s_mov_b32 s%d, 0x20000" % (base + 3))

    def flag_store(self, kind, dw=0, dw_sreg=None):
        a = self.a
        a("s_lshl_b32 s%d, s%d, 7" % (S_T0, S_L))
        a("s_add_u32 s%d, s%d, 0x%x" % (S_T0, S_T0, WS_FLAG + kind * 256 * 128 + dw * 4))
        if dw_sreg is not None:
            a("s_lshl_b32 s3, s%d, 2" % dw_sreg)
            a("s_add_u32 s%d, s%d, s3" % (S_T0, S_T0))
        a("v_mov_b32 v5, s%d" % S_NONCE)
        a("v_mov_b32 v6, 0")
        a("s_mov_b64 exec, 1")
        a("buffer_store_dword v5, v6, s[%d:%d], s%d offen sc1" % (SRD_WS, SRD_WS + 3, S_T0))
        a("s_mov_b64 exec, -1")

    def poll_flags_n(self, vaddr, nlanes, ndw, vt):
        a = self.a
        lab = a.newlabel("poll")
        a("s_mov_b32 s%d, 0" % S_SPIN)
        mask = (1 << nlanes) - 1
        a("s_mov_b32 exec_lo, 0x%x" % (mask & 0xffffffff))
        a("s_mov_b32 exec_hi, 0x%x" % (mask >> 32))
        a.label(lab)
        if ndw == 1: a("buffer_load_dword v%d, v%d, s[%d:%d], 0 offen sc1" % (vt, vaddr, SRD_WS, SRD_WS + 3))
        elif ndw == 2: a("buffer_load_dwordx2 v[%d:%d], v%d, s[%d:%d], 0 offen sc1" % (vt, vt + 1, vaddr, SRD_WS, SRD_WS + 3))
        else: a("buffer_load_dwordx4 v[%d:%d], v%d, s[%d:%d], 0 offen sc1" % (vt, vt + 3, vaddr, SRD_WS, SRD_WS + 3))
        a("s_waitcnt vmcnt(0)")
        a("v_cmp_ne_u32 vcc, s%d, v%d" % (S_NONCE, vt))
        for i in range(1, ndw):
            a("v_cmp_ne_u32 s[%d:%d], s%d, v%d" % (S_EX, S_EX + 1, S_NONCE, vt + i))
            a("s_or_b64 vcc, vcc, s[%d:%d]" % (S_EX, S_EX + 1))
        a("s_add_u32 s%d, s%d, 1" % (S_SPIN, S_SPIN))
        a("s_cmp_gt_u32 s%d, 0x8000" % S_SPIN)
        a("s_cbranch_scc1 %s_x" % lab)
        a("s_cbranch_vccnz %s" % lab)
        a.label(lab + "_x")
        a("s_mov_b64 exec, -1")

    def get_nonce(self):
        a = self.a
        lab = a.newlabel("nonce")
        a("v_mov_b32 v6, 0")
        a("s_mov_b32 s%d, 0" % S_SPIN)
        a.label(lab)
        a("buffer_load_dword v5, v6, s[%d:%d], 0 offen sc1" % (SRD_DBG, SRD_DBG + 3))
        a("s_waitcnt vmcnt(0)")
        a("v_readfirstlane_b32 s%d, v5" % S_NONCE)
        a("s_add_u32 s%d, s%d, 1" % (S_SPIN, S_SPIN))
        a("s_cmp_gt_u32 s%d, 0x8000" % S_SPIN)
        a("s_cbranch_scc1 %s_x" % lab)
        a("s_cmp_eq_u32 s%d, 0" % S_NONCE)
        a("s_cbranch_scc1 %s" % lab)
        a.label(lab + "_x")

    def nonce_from(self, vreg):
        a = self.a
        lab = a.newlabel("hn")
        a("v_readfirstlane_b32 s%d, v%d" % (S_NONCE, vreg))
        a("s_cmp_lg_u32 s%d, 0" % S_NONCE)
        a("s_cbranch_scc1 %s" % lab)
        self.get_nonce()
        a.label(lab)

    def poll_flags(self, vaddr, nlanes):
        a = self.a
        lab = a.newlabel("poll")
        a("s_mov_b32 s%d, 0" % S_SPIN)
        mask = (1 << nlanes) - 1
        a("s_mov_b32 exec_lo, 0x%x" % (mask & 0xffffffff))
        a("s_mov_b32 exec_hi, 0x%x" % (mask >> 32))
        a.label(lab)
        a("buffer_load_dword v5, v%d, s[%d:%d], 0 offen sc1" % (vaddr, SRD_WS, SRD_WS + 3))
        a("s_waitcnt vmcnt(0)")
        a("v_cmp_ne_u32 vcc, s%d, v5" % S_NONCE)
        a("s_add_u32 s%d, s%d, 1" % (S_SPIN, S_SPIN))
        a("s_cmp_gt_u32 s%d, 0x8000" % S_SPIN)
        a("s_cbranch_scc1 %s_x" % lab)
        a("s_cbranch_vccnz %s" % lab)
        a.label(lab + "_x")
        a("s_mov_b64 exec, -1")

    def lds_wait_ge(self, addr, val, vt=5):
        a = self.a
        lab = a.newlabel("lw")
        a("s_mov_b32 s%d, 0" % S_SPIN)
        a("v_mov_b32 v%d, %d" % (vt + 1, addr))
        a.label(lab)
        a("ds_read_b32 v%d, v%d" % (vt, vt + 1))
        a("s_waitcnt lgkmcnt(0)")
        a("v_readfirstlane_b32 s%d, v%d" % (S_T0, vt))
        a("s_add_u32 s%d, s%d, 1" % (S_SPIN, S_SPIN))
        a("s_cmp_gt_u32 s%d, 0x100000" % S_SPIN)
        a("s_cbranch_scc1 %s_x" % lab)
        a("s_cmp_lt_u32 s%d, %d" % (S_T0, val))
        a("s_cbranch_scc1 %s" % lab)
        a.label(lab + "_x")

    def hsum(self, regs, tmp):
        a = self.a
        for i, r in enumerate(regs): a("v_mov_b32 v%d, v%d" % (tmp + i, r))
        for i, r in enumerate(regs): a("v_permlane32_swap_b32 v%d, v%d" % (r, tmp + i))
        for i, r in enumerate(regs): a("v_add_f32 v%d, v%d, v%d" % (r, r, tmp + i))

    def mean_rstd(self, vsum, vsq, n, dst_r, dst_nm, t):
        a = self.a
        a("v_mul_f32 v%d, 0x%x, v%d" % (t, f2u(1.0 / n), vsum))
        a("v_mul_f32 v%d, 0x%x, v%d" % (t + 1, f2u(1.0 / n), vsq))
        a("v_fma_f32 v%d, -v%d, v%d, v%d" % (t + 1, t, t, t + 1))
        a("v_max_f32 v%d, 0, v%d" % (t + 1, t + 1))
        a("v_add_f32 v%d, 0x%x, v%d" % (t + 1, f2u(1e-5), t + 1))
        a("v_rsq_f32 v%d, v%d" % (dst_r, t + 1))
        a("v_mul_f32 v%d, v%d, v%d" % (dst_nm, t, dst_r))
        a("v_sub_f32 v%d, 0, v%d" % (dst_nm, dst_nm))

    V_OD, V_OW = 10, 11
    V_NON = 14
    def prologue(self):
        a = self.a
        a("s_cmp_ge_u32 s2, 256")
        a("s_cbranch_scc1 L_end")
        a("s_load_dwordx16 s[64:79], s[0:1], 0")
        a("s_load_dwordx8 s[80:87], s[0:1], 64")
        a("s_load_dwordx2 s[88:89], s[0:1], 96")
        if "map42" in self.exp:
            a("s_bfe_u32 s%d, s2, 0x20001" % S_MB)
            a("s_lshl_b32 s%d, s%d, 3" % (S_MB, S_MB))
            a("s_bfe_u32 s3, s2, 0x30003")
            a("s_add_u32 s%d, s%d, s3" % (S_MB, S_MB))
            a("s_and_b32 s%d, s2, 1" % S_J)
            a("s_lshl_b32 s%d, s%d, 2" % (S_J, S_J))
            a("s_lshr_b32 s3, s2, 6")
            a("s_add_u32 s%d, s%d, s3" % (S_J, S_J))
        else:
            a("s_and_b32 s%d, s2, 7" % S_MB)
            a("s_lshl_b32 s%d, s%d, 2" % (S_MB, S_MB))
            a("s_bfe_u32 s3, s2, 0x20003")
            a("s_add_u32 s%d, s%d, s3" % (S_MB, S_MB))
            a("s_lshr_b32 s%d, s2, 5" % S_J)
        a("s_lshl_b32 s%d, s%d, 5" % (S_L, S_J))
        a("s_add_u32 s%d, s%d, s%d" % (S_L, S_L, S_MB))
        a("v_lshrrev_b32 v5, 6, v0")
        a("v_and_b32 v%d, 63, v0" % V_LANE)
        a("v_readfirstlane_b32 s%d, v5" % S_W)
        a("v_lshrrev_b32 v20, 3, v0")
        a("v_and_b32 v21, 7, v0")
        a("v_lshlrev_b32 v22, 10, v20")
        a("v_lshl_add_u32 v22, v21, 4, v22")
        a("s_lshl_b32 s%d, s%d, 16" % (S_T1, S_MB))
        a("s_and_b32 s%d, s%d, 3" % (S_HW, S_W))
        a("v_and_b32 v%d, 31, v0" % V_JL)
        a("v_bfe_u32 v%d, v0, 5, 1" % V_H)
        a("v_and_b32 v5, 0x13, v%d" % V_JL)
        a("v_and_b32 v6, 4, v%d" % V_JL)
        a("v_lshl_or_b32 v5, v6, 1, v5")
        a("v_and_b32 v6, 8, v%d" % V_JL)
        a("v_lshrrev_b32 v6, 1, v6")
        a("v_or_b32 v%d, v5, v6" % V_SIG)
        a("s_mul_i32 s%d, s%d, 88" % (S_F0, S_J))
        a("s_cmp_eq_u32 s%d, 7" % S_J)
        a("s_cselect_b32 s3, 8, 0")
        a("s_sub_u32 s%d, s%d, s3" % (S_F0, S_F0))
        a("s_cmp_ge_u32 s%d, 6" % S_J)
        a("s_cselect_b32 s3, 8, 0")
        a("s_sub_u32 s%d, 88, s3" % S_WID)
        for i in range(10, 14): a("v_mov_b32 v%d, 0" % i)
        if "codepf" in self.exp:
            a("s_getpc_b64 s[92:93]")
            a.label("L_pc_here")
            a("s_lshr_b32 s3, s2, 3")
            a("s_lshl_b32 s3, s3, 3")
            a("s_add_u32 s3, s3, s%d" % S_W)
            a("s_mul_i32 s3, s3, 192")
            a("v_lshlrev_b32 v5, 4, v%d" % V_LANE)
            a("v_add_u32 v5, s3, v5")
            a("v_min_u32 v5, CODE_LEN, v5")
            a("s_mov_b64 exec, 0xfff")
            a("global_load_dwordx4 a[20:23], v5, s[92:93]")
            a("s_mov_b64 exec, -1")
        a("s_waitcnt lgkmcnt(0)")
        self.srd(SRD_X, 64, 2048 * 1024)
        a("s_and_b32 s%d, s%d, 3" % (S_ROT1, S_MB))
        a("s_lshl_b32 s%d, s%d, 1" % (S_ROT1, S_ROT1))
        a("s_add_u32 s%d, s%d, s%d" % (S_ROT1, S_ROT1, S_J))
        a("s_and_b32 s%d, s%d, 7" % (S_ROT1, S_ROT1))
        if "norot" in self.exp: a("s_mov_b32 s%d, 0" % S_ROT1)
        for i in range(8):
            a("s_add_u32 s3, s%d, %d" % (S_ROT1, i))
            a("s_and_b32 s3, s3, 7")
            a("s_lshl_b32 s3, s3, 7")
            a("s_add_u32 s3, s3, s%d" % S_T1)
            a("buffer_load_dwordx4 v[%d:%d], v22, s[%d:%d], s3 offen" % (32 + 4 * i, 35 + 4 * i, SRD_X, SRD_X + 3))
        self.srd(SRD_WIN, 76, 512 * 2752)
        self.srd(SRD_DFT, 70, 512 * 1024)
        self.srd(S_IMLO, 72, 512 * 1024)
        self.srd(SRD_WS, 88, WS_SIZE)
        self.srd(SRD_DBG, 86, 256)
        self.srd(SRD_WSP, 78, 2048 * 4096)
        self.srd(SRD_WOUT, 82, 688 * 1024)
        self.srd(SRD_OUT, 84, 2048 * 1024)
        self.srd(SRD_BSP, 80, 4096)
        a("s_cmp_lt_u32 s%d, 4" % S_W)
        a("s_cbranch_scc0 L_pro_h")
        self.npf = self.prefetch_start() if "nopf" not in self.exp else 0
        a("s_branch L_pro_c")
        a.label("L_pro_h")
        L = V_LANE
        a("v_lshrrev_b32 v5, 3, v%d" % L)
        a("v_and_b32 v6, 7, v%d" % L)
        a("v_lshrrev_b32 v7, 4, v%d" % L)
        a("v_xor_b32 v8, v6, v7")
        a("v_lshlrev_b32 v8, 4, v8")
        a("s_lshl_b32 s3, s%d, 5" % S_J)
        a("s_lshl_b32 s%d, s%d, 3" % (S_T0, S_HW))
        a("s_add_u32 s3, s3, s%d" % S_T0)
        a("v_add_u32 v9, s3, v5")
        a("v_cmp_eq_u32 vcc, 0, v9")
        a("v_mov_b32 v6, 256")
        a("v_cndmask_b32 v9, v9, v6, vcc")
        a("s_and_b32 s%d, s%d, 1" % (S_T0, S_HW))
        a("s_lshl_b32 s%d, s%d, 6" % (S_T0, S_T0))
        a("v_xor_b32 v8, s%d, v8" % S_T0)
        a("v_lshl_add_u32 v%d, v9, 10, v8" % self.V_OD)
        for p in range(3):
            a("v_add_u32 v5, %d, v%d" % (64 * p, L))
            a("v_mul_u32_u24 v6, 171, v5")
            a("v_lshrrev_b32 v6, 11, v6")
            a("v_mul_u32_u24 v7, 12, v6")
            a("v_sub_u32 v7, v5, v7")
            a("v_mul_u32_u24 v6, 2752, v6")
            a("v_lshl_add_u32 v6, v7, 4, v6")
            a("v_lshlrev_b32 v7, 3, v7")
            a("v_cmp_gt_u32 vcc, s%d, v7" % S_WID)
            a("v_mov_b32 v8, 0x%x" % OOB)
            a("v_cndmask_b32 v%d, v8, v6, vcc" % (self.V_OW + p))
        a("s_lshl_b32 s%d, s%d, 10" % (S_DL0, S_HW))
        a("s_mul_i32 s%d, s%d, 3072" % (S_WL0, S_HW))
        a("s_mul_i32 s%d, s%d, %d" % (S_W2, S_HW, 16 * 2752))
        a("s_lshl_b32 s3, s%d, 1" % S_F0)
        a("s_add_u32 s%d, s%d, s3" % (S_W2, S_W2))
        a("s_add_u32 s%d, s%d, %d" % (S_WSOFF, S_W2, 688 * 2))
        for k in range(4): self.dma_chunk(k)
        a("s_cmp_lg_u32 s2, 0")
        a("s_cbranch_scc1 L_nononce")
        a("s_cmp_lg_u32 s%d, 4" % S_W)
        a("s_cbranch_scc1 L_nononce")
        a("s_memrealtime s[%d:%d]" % (S_ST0, S_ST0 + 1))
        a("s_waitcnt lgkmcnt(0)")
        a("s_or_b32 s3, s%d, 1" % S_ST0)
        a("v_mov_b32 v5, s3")
        a("v_mov_b32 v6, 0")
        a("s_mov_b64 exec, 1")
        a("buffer_store_dword v5, v6, s[%d:%d], 0 offen sc1" % (SRD_DBG, SRD_DBG + 3))
        a("s_mov_b64 exec, -1")
        a.label("L_nononce")
        a("v_lshlrev_b32 v5, 2, v%d" % V_LANE)
        a("v_add_u32 v5, %d, v5" % LDS_SY)
        a("v_mov_b32 v6, 0")
        a("s_mov_b64 exec, 0xffff")
        a("ds_write_b32 v5, v6")
        a("s_mov_b64 exec, -1")
        a.label("L_pro_c")
        self.stamp(0)
        self.stamp(24)

    def pf_wrows(self, colbyte_sreg, row0_sreg, nrows16, dst):
        a = self.a
        a("v_lshrrev_b32 v5, 2, v%d" % V_LANE)
        a("v_add_u32 v5, s%d, v5" % row0_sreg)
        a("v_mul_u32_u24 v5, 2752, v5")
        a("v_and_b32 v6, 3, v%d" % V_LANE)
        a("v_lshlrev_b32 v6, 6, v6")
        a("v_min_u32 v6, 172, v6")
        a("v_add_u32 v5, v5, v6")
        for i in range(nrows16):
            a("s_add_u32 s3, s%d, %d" % (colbyte_sreg, i * 16 * 2752))
            a("buffer_load_dword a%d, v5, s[%d:%d], s3 offen" % (dst, SRD_WIN, SRD_WIN + 3))
        return nrows16

    def prefetch_start(self):
        a = self.a
        a("s_and_b32 s%d, s%d, 3" % (S_T0, S_MB))
        a("s_lshl_b32 s%d, s%d, 6" % (S_T0, S_T0))
        a("s_lshl_b32 s3, s%d, 4" % S_W)
        a("s_add_u32 s%d, s%d, s3" % (S_T0, S_T0))
        a("s_add_u32 s%d, s%d, 256" % (S_T0, S_T0))
        a("s_add_u32 s%d, s%d, 688" % (S_T1, S_F0))
        a("s_lshl_b32 s%d, s%d, 1" % (S_T1, S_T1))
        return self.pf_wrows(S_T1, S_T0, 1, 16)

    def prefetch_b(self):
        a = self.a
        a("s_and_b32 s%d, s%d, 3" % (S_T0, S_MB))
        a("s_lshl_b32 s%d, s%d, 7" % (S_T0, S_T0))
        a("s_lshl_b32 s3, s%d, 5" % S_W)
        a("s_add_u32 s%d, s%d, s3" % (S_T0, S_T0))
        a("s_lshl_b32 s%d, s%d, 1" % (S_T1, S_F0))
        self.pf_wrows(S_T1, S_T0, 2, 16)
        a("s_lshl_b32 s%d, s%d, 5" % (S_T0, S_J))
        a("s_and_b32 s3, s%d, 3" % S_MB)
        a("s_lshl_b32 s3, s3, 3")
        a("s_add_u32 s%d, s%d, s3" % (S_T0, S_T0))
        a("s_lshl_b32 s3, s%d, 1" % S_W)
        a("s_add_u32 s%d, s%d, s3" % (S_T0, S_T0))
        a("s_lshl_b32 s%d, s%d, 10" % (S_T0, S_T0))
        a("v_lshlrev_b32 v5, 4, v%d" % V_LANE)
        for i in range(2):
            a("buffer_load_dwordx4 a[16:19], v5, s[%d:%d], s%d offen offset:%d" % (S_IMLO, S_IMLO + 3, S_T0, i * 1024))

    def prefetch_wsp(self):
        a = self.a
        a("s_lshl_b32 s%d, s%d, 6" % (S_T0, S_MB))
        a("s_lshl_b32 s3, s%d, 3" % S_J)
        a("s_add_u32 s%d, s%d, s3" % (S_T0, S_T0))
        a("s_lshl_b32 s3, s%d, 1" % S_W)
        a("s_add_u32 s%d, s%d, s3" % (S_T0, S_T0))
        a("s_lshl_b32 s%d, s%d, 12" % (S_T0, S_T0))
        a("v_lshlrev_b32 v5, 4, v%d" % V_LANE)
        for i in range(8):
            a("buffer_load_dwordx4 a[16:19], v5, s[%d:%d], s%d offen" % (SRD_WSP, SRD_WSP + 3, S_T0))
            if i < 7: a("s_add_u32 s%d, s%d, 1024" % (S_T0, S_T0))

    def prefetch_wout(self):
        a = self.a
        a("s_and_b32 s3, s%d, 3" % S_MB)
        a("s_lshl_b32 s3, s3, 2")
        a("s_add_u32 s3, s3, s%d" % S_W)
        a("s_mul_i32 s%d, s3, 43" % S_T0)
        a("v_lshrrev_b32 v5, 1, v%d" % V_LANE)
        a("v_add_u32 v5, s%d, v5" % S_T0)
        a("v_lshlrev_b32 v5, 10, v5")
        a("v_and_b32 v6, 1, v%d" % V_LANE)
        a("v_lshl_add_u32 v5, v6, 6, v5")
        a("s_lshl_b32 s%d, s%d, 7" % (S_T0, S_J))
        a("buffer_load_dword a16, v5, s[%d:%d], s%d offen" % (SRD_WOUT, SRD_WOUT + 3, S_T0))
        a("s_add_u32 s%d, s%d, %d" % (S_T0, S_T0, 32 * 1024))
        a("buffer_load_dword a16, v5, s[%d:%d], s%d offen" % (SRD_WOUT, SRD_WOUT + 3, S_T0))

    def dma_chunk(self, k):
        a = self.a
        slot = LDS_WR + (k % NSLOT) * SLOT
        srd = SRD_DFT if k < 8 else S_IMLO
        a("s_add_u32 s%d, s%d, %d" % (S_T1, S_ROT1, k & 7))
        a("s_and_b32 s%d, s%d, 7" % (S_T1, S_T1))
        a("s_add_u32 m0, s%d, %d" % (S_DL0, slot + 12288))
        a("s_lshl_b32 s%d, s%d, 7" % (S_T0, S_T1))
        a("buffer_load_dwordx4 v%d, s[%d:%d], s%d offen lds" % (self.V_OD, srd, srd + 3, S_T0))
        a("s_mul_i32 s%d, s%d, %d" % (S_T1, S_T1, 64 * 2752))
        a("s_add_u32 m0, s%d, %d" % (S_WL0, slot))
        a("s_add_u32 s%d, s%d, s%d" % (S_T0, S_WSOFF if k < 8 else S_W2, S_T1))
        for p in range(3):
            a("buffer_load_dwordx4 v%d, s[%d:%d], s%d offen lds" % (self.V_OW + p, SRD_WIN, SRD_WIN + 3, S_T0))
            if p < 2:
                a("s_add_u32 m0, m0, 1024")
                a("s_nop 0")

    def xstage(self):
        a = self.a
        X = 32
        a("v_mov_b32 v23, 0x3f803f80")
        for i in range(4): a("v_mov_b32 v%d, 0" % (24 + i))
        a("v_bfe_u32 v5, v20, 1, 3")
        a("v_xor_b32 v5, v5, v21")
        a("v_lshlrev_b32 v5, 4, v5")
        a("v_lshl_add_u32 v28, v20, 7, v5")
        a("s_cmp_lt_u32 s%d, 4" % S_W)
        a("s_cbranch_scc1 L_xw_c")
        for path, younger in (("h", 16), ("c", self.npf)):
            if path == "c": a.label("L_xw_c")
            for i in range(8):
                a("s_waitcnt vmcnt(%d)" % (younger + 7 - i))
                for r in range(4):
                    k = 4 * i + r
                    a("v_dot2c_f32_bf16 v%d, v%d, v23" % (24 + (k & 1), X + k))
                    a("v_dot2c_f32_bf16 v%d, v%d, v%d" % (26 + (k & 1), X + k, X + k))
            if path == "h": a("s_branch L_xw_d")
        a.label("L_xw_d")
        a("v_add_f32 v24, v24, v25")
        a("v_add_f32 v26, v26, v27")
        for dpp in ("quad_perm:[1,0,3,2]", "quad_perm:[2,3,0,1]", "row_half_mirror"):
            a("v_add_f32_dpp v25, v24, v24 %s row_mask:0xf bank_mask:0xf" % dpp)
            a("v_add_f32_dpp v27, v26, v26 %s row_mask:0xf bank_mask:0xf" % dpp)
            a("v_mov_b32 v24, v25")
            a("v_mov_b32 v26, v27")
        self.mean_rstd(24, 26, 512, 30, 31, 6)
        U = 64
        for i in range(8):
            for r in range(4):
                src = X + 4 * i + r
                t = U + 2 * ((4 * i + r) % 8)
                a("v_lshlrev_b32 v%d, 16, v%d" % (t, src))
                a("v_and_b32 v%d, 0xffff0000, v%d" % (t + 1, src))
                a("v_pk_fma_f32 v[%d:%d], v[%d:%d], v[30:31], v[30:31] op_sel:[0,0,1] op_sel_hi:[1,0,1]" % (t, t + 1, t, t + 1))
                a("v_cvt_pk_bf16_f32 v%d, v%d, v%d" % (src, t, t + 1))
            a("ds_write_b128 v28, v[%d:%d] offset:%d" % (X + 4 * i, X + 4 * i + 3, i * 8192))

    C_XA, C_AC, C_AN = 10, 14, 15
    C_FA, C_FB = 16, 32
    C_ACC = 64
    C_Z2P, C_Z1P = 96, 112
    C_GC1 = 6

    def c_setup(self, w3):
        a = self.a
        a("v_bfe_u32 v5, v%d, 1, 3" % V_SIG)
        a("v_lshlrev_b32 v6, 7, v%d" % V_SIG)
        for ks in range(4):
            a("v_add_u32 v8, %d, v%d" % (2 * ks, V_H))
            a("v_xor_b32 v8, v8, v5")
            a("v_lshl_add_u32 v%d, v8, 4, v6" % (self.C_XA + ks))
        if w3:
            for ks in range(4):
                a("v_add_u32 v%d, %d, v%d" % (116 + ks, LDS_WR + 12288, self.C_XA + ks))
        else:
            a("v_bfe_u32 v7, v%d, 2, 2" % V_LANE)
            a("v_lshl_add_u32 v7, v%d, 3, v7" % V_H)
            a("v_mul_u32_u24 v7, 192, v7")
            a("v_bfe_u32 v8, v%d, 4, 1" % V_LANE)
            a("v_lshlrev_b32 v8, 5, v8")
            a("v_and_b32 v9, 1, v%d" % V_LANE)
            a("v_lshl_add_u32 v8, v9, 4, v8")
            a("v_bfe_u32 v9, v%d, 1, 1" % V_LANE)
            a("v_lshl_add_u32 v8, v9, 3, v8")
            a("v_add_u32 v7, v7, v8")
            a("s_lshl_b32 s3, s%d, 6" % S_W)
            a("s_add_u32 s3, s3, %d" % LDS_WR)
            a("v_add_u32 v%d, s3, v7" % self.C_AC)
            a("v_add_u32 v%d, %d, v%d" % (self.C_AN, SLOT, self.C_AC))
            for Q in range(2):
                a("v_lshlrev_b32 v5, 3, v%d" % V_H)
                a("v_sub_u32 v5, v%d, v5" % V_SIG)
                if Q: a("v_subrev_u32 v5, 16, v5")
                a("v_and_b32 v6, 1, v5")
                a("v_lshlrev_b32 v6, 4, v6")
                a("v_mov_b32 v7, 0x3f80")
                a("v_lshlrev_b32 v6, v6, v7")
                a("v_lshrrev_b32 v5, 1, v5")
                for r in range(4):
                    a("v_cmp_eq_u32 vcc, %d, v5" % r)
                    a("v_cndmask_b32 v7, 0, v6, vcc")
                    a("v_accvgpr_write_b32 a%d, v7" % (4 * Q + r))

    def c_reads(self, w3, c, ks, nxt):
        A = self.C_FA + 4 * ks; B = self.C_FB + 8 * ks
        out = []
        xo = (c & 7) * 8192
        if w3:
            base = 124 + ks if nxt else 120 + ks
            out.append("ds_read_b128 v[%d:%d], v%d" % (A, A + 3, base))
        else:
            base = self.C_AN if nxt else self.C_AC
            out.append("ds_read_b64_tr_b16 v[%d:%d], v%d offset:%d" % (A, A + 1, base, ks * 3072))
            out.append("ds_read_b64_tr_b16 v[%d:%d], v%d offset:%d" % (A + 2, A + 3, base, ks * 3072 + 768))
        out.append("ds_read_b128 v[%d:%d], v%d offset:%d" % (B, B + 3, self.C_XA + ks, xo))
        out.append("ds_read_b128 v[%d:%d], v%d offset:%d" % (B + 4, B + 7, self.C_XA + ks, xo + 4096))
        return out

    def c_loop(self, w3):
        a = self.a
        nr = 3 if w3 else 4
        ACC = self.C_ACC
        def mfs(ks, first):
            A = self.C_FA + 4 * ks; B = self.C_FB + 8 * ks
            out = []
            for st in range(2):
                D = ACC + 16 * st
                cc = "0" if first else "v[%d:%d]" % (D, D + 15)
                if w3: out.append("v_mfma_f32_32x32x16_bf16 v[%d:%d], v[%d:%d], v[%d:%d], %s" % (D, D + 15, B + 4 * st, B + 4 * st + 3, A, A + 3, cc))
                else: out.append("v_mfma_f32_32x32x16_bf16 v[%d:%d], v[%d:%d], v[%d:%d], %s" % (D, D + 15, A, A + 3, B + 4 * st, B + 4 * st + 3, cc))
            return out
        a("s_mov_b32 s64, %d" % SLOT)
        if w3:
            for ks in range(4): a("v_add_u32 v%d, s%d, v%d" % (120 + ks, S_SLOT, 116 + ks))
        for r in self.c_reads(w3, 0, 0, False): a(r)
        for r in self.c_reads(w3, 0, 1, False): a(r)
        for c in range(8):
            a("s_barrier")
            extra = []
            if w3:
                extra += ["s_add_u32 s%d, s%d, %d" % (S_T1, S_SLOT, SLOT), "s_cmp_eq_u32 s%d, %d" % (S_T1, NSLOT * SLOT), "s_cselect_b32 s%d, 0, s%d" % (S_T1, S_T1),
                          "v_add_u32 v124, s%d, v116" % S_T1, "v_add_u32 v125, s%d, v117" % S_T1]
            for ks in range(4):
                if ks < 2: rd = self.c_reads(w3, c, ks + 2, False)
                else: rd = self.c_reads(w3, c + 1, ks - 2, True)
                if "cnoread" in self.exp: rd = []
                m = mfs(ks, c == 0 and ks == 0)
                if "cnomfma" in self.exp: m = []
                a("s_waitcnt lgkmcnt(%d)" % nr)
                half = (len(rd) + 1) // 2
                if m: a(m[0])
                if ks == 0:
                    for e in extra: a(e)
                for r in rd[:half]: a(r)
                if m: a(m[1])
                for r in rd[half:]: a(r)
                if ks == 3:
                    if w3:
                        a("s_mov_b32 s%d, s%d" % (S_SLOT, S_T1))
                        for k2 in range(4): a("v_add_u32 v%d, s%d, v%d" % (120 + k2, S_SLOT, 116 + k2))
                    else:
                        a("v_mov_b32 v%d, v%d" % (self.C_AC, self.C_AN))
                        a("s_add_u32 s%d, s%d, %d" % (S_SLOT, S_SLOT, SLOT))
                        a("s_cmp_eq_u32 s%d, %d" % (S_SLOT, NSLOT * SLOT))
                        a("s_cselect_b32 s%d, 0x%x, s64" % (S_T1, (-(NSLOT - 1) * SLOT) & 0xffffffff))
                        a("s_cselect_b32 s%d, 0, s%d" % (S_SLOT, S_SLOT))
                        a("v_add_u32 v%d, s%d, v%d" % (self.C_AN, S_T1, self.C_AN))
        a("s_waitcnt lgkmcnt(0)")

    def gelu_epilogue(self, dst):
        a = self.a
        E = 16
        c1 = -2.0 * math.sqrt(2.0 / math.pi) * math.log2(math.e)
        c2 = c1 * 0.044715
        a("v_mov_b32 v6, 0x%x" % f2u(c1))
        a("s_mov_b32 s%d, 0x%x" % (S_K2, f2u(c2)))
        a("s_mov_b32 s%d, 0x%x" % (S_K2 + 1, f2u(c2)))
        for pp in range(0, 16, 2):
            seq = [[], []]
            for u in range(2):
                pre = self.C_ACC + 2 * (pp + u)
                p2, e = E + u * 4, E + u * 4 + 2
                s = seq[u]
                s.append("v_pk_mul_f32 v[%d:%d], v[%d:%d], v[%d:%d]" % (p2, p2 + 1, pre, pre + 1, pre, pre + 1))
                s.append("v_pk_fma_f32 v[%d:%d], v[%d:%d], s[%d:%d], v[6:7] op_sel_hi:[1,1,0]" % (p2, p2 + 1, p2, p2 + 1, S_K2, S_K2 + 1))
                s.append("v_pk_mul_f32 v[%d:%d], v[%d:%d], v[%d:%d]" % (p2, p2 + 1, p2, p2 + 1, pre, pre + 1))
                s.append("v_exp_f32 v%d, v%d" % (e, p2))
                s.append("v_exp_f32 v%d, v%d" % (e + 1, p2 + 1))
                s.append("v_pk_add_f32 v[%d:%d], v[%d:%d], 1.0 op_sel_hi:[1,0]" % (e, e + 1, e, e + 1))
                s.append("v_rcp_f32 v%d, v%d" % (e, e))
                s.append("v_rcp_f32 v%d, v%d" % (e + 1, e + 1))
                s.append("v_pk_mul_f32 v[%d:%d], v[%d:%d], v[%d:%d]" % (e, e + 1, pre, pre + 1, e, e + 1))
                s.append("v_cvt_pk_bf16_f32 v%d, v%d, v%d" % (dst + pp + u, e, e + 1))
            for i in range(len(seq[0])):
                a(seq[0][i]); a(seq[1][i])

    def stats2_partial(self, src):
        a = self.a
        E = 16
        a("v_mov_b32 v24, 0x3f803f80")
        for i in range(4): a("v_mov_b32 v%d, 0" % (E + i))
        for r in range(8):
            for st in range(2):
                a("v_dot2c_f32_bf16 v%d, v%d, v24" % (E + 2 * st, src + 8 * st + r))
                a("v_dot2c_f32_bf16 v%d, v%d, v%d" % (E + 2 * st + 1, src + 8 * st + r, src + 8 * st + r))
        self.hsum([E, E + 1, E + 2, E + 3], E + 4)
        a("s_lshl_b32 s3, s%d, 9" % S_W)
        a("s_add_u32 s3, s3, %d" % LDS_T4)
        a("v_lshlrev_b32 v8, 3, v%d" % V_JL)
        a("v_add_u32 v8, s3, v8")
        a("ds_write_b64 v8, v[%d:%d]" % (E, E + 1))
        a("ds_write_b64 v8, v[%d:%d] offset:256" % (E + 2, E + 3))
        a("s_waitcnt lgkmcnt(0)")

    def dft_store(self, part):
        a = self.a
        a("v_and_b32 v5, 7, v%d" % V_SIG)
        a("v_xor_b32 v5, v5, v%d" % V_H)
        a("v_lshlrev_b32 v5, 4, v5")
        a("v_lshl_add_u32 v5, v%d, 7, v5" % V_SIG)
        a("v_add_u32 v5, %d, v5" % LDS_AT)
        for st in range(2):
            for Q in range(2):
                o = 16 + (st * 2 + Q) * 4
                for p in range(4):
                    acc = self.C_ACC + 16 * st + 8 * Q + 2 * p
                    a("v_cvt_pk_bf16_f32 v%d, v%d, v%d" % (o + p, acc, acc + 1))
                a("v_xor_b32 v6, %d, v5" % ((4 * st + 2 * Q) * 16))
                a("ds_write_b128 v6, v[%d:%d]" % (o, o + 3))
        a("v_lshrrev_b32 v7, 3, v%d" % V_LANE)
        a("v_and_b32 v8, 7, v%d" % V_LANE)
        a("v_xor_b32 v6, v7, v8")
        a("v_lshlrev_b32 v6, 4, v6")
        a("v_lshl_add_u32 v6, v7, 7, v6")
        a("v_add_u32 v6, %d, v6" % LDS_AT)
        a("s_waitcnt lgkmcnt(0)")
        for i in range(4):
            a("ds_read_b128 v[%d:%d], v6 offset:%d" % (32 + 4 * i, 35 + 4 * i, i * 1024))
        a("v_lshlrev_b32 v7, 13, v7")
        a("v_lshl_add_u32 v7, v8, 4, v7")
        a("s_lshl_b32 s%d, s%d, 18" % (S_T0, S_J))
        a("s_lshl_b32 s3, s%d, 7" % S_MB)
        a("s_add_u32 s%d, s%d, s3" % (S_T0, S_T0))
        a("s_add_u32 s%d, s%d, 0x%x" % (S_T0, S_T0, WS_AB + part * 4096))
        a("s_waitcnt lgkmcnt(0)")
        for i in range(4):
            a("buffer_store_dwordx4 v[%d:%d], v7, s[%d:%d], s%d offen sc1" % (32 + 4 * i, 35 + 4 * i, SRD_WS, SRD_WS + 3, S_T0))
            if i < 3: a("s_add_u32 s%d, s%d, %d" % (S_T0, S_T0, 8 * 8192))

    def z2n_publish(self):
        a = self.a
        a("v_lshlrev_b32 v8, 3, v%d" % V_JL)
        a("v_add_u32 v8, %d, v8" % LDS_T5)
        a("ds_read_b64 v[16:17], v8")
        a("ds_read_b64 v[18:19], v8 offset:256")
        a("s_waitcnt lgkmcnt(0)")
        N = 32
        for st in range(2):
            r2 = 16 + 2 * st
            for r in range(8):
                src = self.C_Z2P + 8 * st + r
                t = 20 + 2 * (r % 4)
                a("v_lshlrev_b32 v%d, 16, v%d" % (t, src))
                a("v_and_b32 v%d, 0xffff0000, v%d" % (t + 1, src))
                a("v_pk_fma_f32 v[%d:%d], v[%d:%d], v[%d:%d], v[%d:%d] op_sel:[0,0,1] op_sel_hi:[1,0,1]" % (t, t + 1, t, t + 1, r2, r2 + 1, r2, r2 + 1))
                a("v_cvt_pk_bf16_f32 v%d, v%d, v%d" % (N + 8 * st + r, t, t + 1))
        for st in range(2):
            D = self.C_ACC + 16 * st
            a("v_mfma_f32_32x32x16_bf16 v[%d:%d], v[%d:%d], a[0:3], 0" % (D, D + 15, N + 8 * st, N + 8 * st + 3))
        for st in range(2):
            D = self.C_ACC + 16 * st
            a("v_mfma_f32_32x32x16_bf16 v[%d:%d], v[%d:%d], a[4:7], v[%d:%d]" % (D, D + 15, N + 8 * st + 4, N + 8 * st + 7, D, D + 15))
        a("s_lshl_b32 s%d, s%d, 7" % (S_T0, S_J))
        a("s_lshl_b32 s%d, s%d, 2" % (S_T1, S_MB))
        a("s_add_u32 s%d, s%d, s%d" % (S_T0, S_T0, S_T1))
        a("s_mul_i32 s%d, s%d, 3" % (S_T0, S_T0))
        a("s_add_u32 s%d, s%d, s%d" % (S_T0, S_T0, S_W))
        a("s_lshl_b32 s%d, s%d, 10" % (S_T0, S_T0))
        a("s_add_u32 s%d, s%d, 0x%x" % (S_T0, S_T0, WS_Z2N))
        a("v_lshlrev_b32 v8, 4, v%d" % V_LANE)
        for st in range(2):
            for Q in range(2):
                D = self.C_ACC + 16 * st + 8 * Q
                o = 48 + (st * 2 + Q) * 4
                for p in range(4):
                    a("v_cvt_pk_bf16_f32 v%d, v%d, v%d" % (o + p, D + 2 * p, D + 2 * p + 1))
                a("s_add_u32 s%d, s%d, %d" % (S_T1, S_T0, (2 * st + Q) * 3072))
                a("buffer_store_dwordx4 v[%d:%d], v8, s[%d:%d], s%d offen sc1" % (o, o + 3, SRD_WS, SRD_WS + 3, S_T1))

    def zero_acc(self):
        for i in range(32): self.a("v_mov_b32 v%d, 0" % (self.C_ACC + i))

    def p1_compute(self):
        a = self.a
        a("s_cmp_eq_u32 s%d, 3" % S_W)
        a("s_cbranch_scc1 L_c3")
        self.c_setup(False)
        a("s_mov_b32 s%d, 0" % S_C)
        a("s_mov_b32 s%d, %d" % (S_SLOT, SLOT))
        a("s_mov_b32 s%d, 0" % S_PASS)
        a("s_waitcnt lgkmcnt(0)")
        a("s_barrier")
        if "nopf" not in self.exp: self.prefetch_b()
        self.stamp(1)
        a.label("L_pass")
        self.c_loop(False)
        a("s_cmp_lg_u32 s%d, 0" % S_PASS)
        a("s_cbranch_scc1 L_passB_done")
        self.stamp(2)
        if "nopf" not in self.exp: self.prefetch_wsp()
        self.gelu_epilogue(self.C_Z2P)
        self.stats2_partial(self.C_Z2P)
        a("s_barrier")
        a("v_mov_b32 v6, 0")
        a("buffer_load_dword a8, v6, s[%d:%d], 0 offen sc1" % (SRD_DBG, SRD_DBG + 3))
        if "nopf" not in self.exp: self.prefetch_wout()
        self.stamp(3)
        a("s_mov_b32 s%d, 1" % S_PASS)
        a("s_branch L_pass")
        a.label("L_passB_done")
        self.stamp(4)
        self.gelu_epilogue(self.C_Z1P)
        a("s_barrier")
        self.stamp(5)
        self.z2n_publish()
        a("s_branch L_c_join")
        a.label("L_c3")
        self.c_setup(True)
        a("s_mov_b32 s%d, 0" % S_C)
        a("s_mov_b32 s%d, 0" % S_SLOT)
        a("s_mov_b32 s%d, 0" % S_PASS)
        a("s_waitcnt lgkmcnt(0)")
        a("s_barrier")
        if "nopf" not in self.exp: self.prefetch_b()
        a.label("L_pass3")
        self.c_loop(True)
        a("s_cmp_lg_u32 s%d, 0" % S_PASS)
        a("s_cbranch_scc1 L_passB3_done")
        if "nopf" not in self.exp: self.prefetch_wsp()
        self.dft_store(0)
        a("s_barrier")
        a("v_mov_b32 v6, 0")
        a("buffer_load_dword a8, v6, s[%d:%d], 0 offen sc1" % (SRD_DBG, SRD_DBG + 3))
        if "nopf" not in self.exp: self.prefetch_wout()
        a("s_mov_b32 s%d, 1" % S_PASS)
        a("s_branch L_pass3")
        a.label("L_passB3_done")
        self.dft_store(1)
        a("s_waitcnt vmcnt(0)")
        a("v_accvgpr_read_b32 v39, a8")
        self.nonce_from(39)
        self.flag_store(1, 3)
        a("s_barrier")
        a.label("L_c_join")

    def fix_x_after_pass(self):
        a = self.a
        a("v_subrev_u32 v%d, 8192, v%d" % (self.C_XA, self.C_XA))
        a("v_subrev_u32 v%d, 8192, v%d" % (self.C_XA + 1, self.C_XA + 1))

    def capture(self, fn):
        save = self.a
        tmp = Asm(); tmp.uid = save.uid + 1000
        self.a = tmp
        fn()
        self.a = save
        save.uid = tmp.uid
        return [i.text for i in tmp.ins]

    def h_loop(self, k0):
        a = self.a
        consts = self.capture(self.fft_consts) if (k0 == 8 and "nofft" not in self.exp) else []
        per = (len(consts) + 7) // 8
        st = self.stage_loads() if k0 == 8 else []
        nst = 0
        for k in range(k0, k0 + 8):
            if k + 1 <= 15 and "hnowait" not in self.exp:
                younger = 4 * (min(k + 3, 15) - (k + 1))
                if nst:
                    lab = a.newlabel("hw")
                    a("s_cmp_ge_u32 s%d, 2" % S_HW)
                    a("s_cbranch_scc1 %s_b" % lab)
                    a("s_waitcnt vmcnt(%d)" % (younger + nst))
                    a("s_branch %s_d" % lab)
                    a.label(lab + "_b")
                    a("s_waitcnt vmcnt(%d)" % younger)
                    a.label(lab + "_d")
                else:
                    a("s_waitcnt vmcnt(%d)" % younger)
            a("s_barrier")
            if k + 4 <= 15: self.dma_chunk(k + 4)
            if k == 9:
                a("s_cmp_lg_u32 s%d, 0" % S_HW)
                a("s_cbranch_scc1 L_h_nf0")
                a("s_waitcnt vmcnt(8)")
                self.flag_store(0)
                a.label("L_h_nf0")
            if k == 11:
                self.wsp_voffsets(96)
                a("s_lshl_b32 s%d, s%d, 18" % (S_T1, S_MB))
                a("s_lshl_b32 s3, s%d, 10" % S_HW)
                a("s_add_u32 s%d, s%d, s3" % (S_T1, S_T1))
                a("s_add_u32 s67, s%d, %d" % (S_T1, 2 * 256))
                a("s_add_u32 s68, s%d, %d" % (S_T1, 3 * 256))
                a("s_add_u32 s69, s%d, %d" % (S_T1, 2 * 1024 + 2 * 256))
            if k0 == 0: continue
            lab = a.newlabel("role")
            a("s_cmp_lt_u32 s%d, 2" % S_HW)
            a("s_cbranch_scc1 %s_s" % lab)
            if consts:
                for t in consts[(k - k0) * per:(k - k0 + 1) * per]: a(t)
            a("s_branch %s_d" % lab)
            a.label(lab + "_s")
            if st and k >= 12:
                n = 12
                for t in st[2 * nst:2 * (nst + n)]: a(t)
                nst += n
            a.label(lab + "_d")

    def stats2_publish(self):
        a = self.a
        E = 16
        a("v_lshlrev_b32 v8, 3, v%d" % V_JL)
        a("v_add_u32 v8, %d, v8" % LDS_T4)
        for w in range(3):
            for st in range(2):
                d = E + w * 4 + st * 2
                a("ds_read_b64 v[%d:%d], v8 offset:%d" % (d, d + 1, w * 512 + st * 256))
        a("s_waitcnt lgkmcnt(0)")
        for w in range(1, 3):
            for st in range(2):
                a("v_pk_add_f32 v[%d:%d], v[%d:%d], v[%d:%d]" % (E + st * 2, E + st * 2 + 1, E + st * 2, E + st * 2 + 1, E + w * 4 + st * 2, E + w * 4 + st * 2 + 1))
        a("s_lshl_b32 s%d, s%d, 3" % (S_T0, S_MB))
        a("s_add_u32 s%d, s%d, s%d" % (S_T0, S_T0, S_J))
        a("s_lshl_b32 s%d, s%d, 9" % (S_T0, S_T0))
        a("s_add_u32 s%d, s%d, 0x%x" % (S_T0, S_T0, WS_STATS))
        a("v_lshlrev_b32 v8, 4, v%d" % V_JL)
        a("s_mov_b32 exec_hi, 0")
        a("buffer_store_dwordx4 v[%d:%d], v8, s[%d:%d], s%d offen sc1" % (E, E + 3, SRD_WS, SRD_WS + 3, S_T0))
        a("s_mov_b64 exec, -1")

    def stats2_consume(self):
        a = self.a
        E = 16
        a("v_lshlrev_b32 v8, 5, v%d" % V_LANE)
        a("v_add_u32 v8, s%d, v8" % S_MB)
        a("v_lshlrev_b32 v8, 7, v8")
        self.poll_flags(8, 8)
        a("s_lshl_b32 s%d, s%d, 12" % (S_T0, S_MB))
        a("s_add_u32 s%d, s%d, 0x%x" % (S_T0, S_T0, WS_STATS))
        a("v_lshlrev_b32 v8, 4, v%d" % V_JL)
        for jj in range(8):
            a("buffer_load_dwordx4 v[%d:%d], v8, s[%d:%d], s%d offen offset:%d sc1" % (E + 4 * jj, E + 3 + 4 * jj, SRD_WS, SRD_WS + 3, S_T0, jj * 512))
        a("s_waitcnt vmcnt(0)")
        for jj in range(1, 8):
            for q in range(2):
                a("v_pk_add_f32 v[%d:%d], v[%d:%d], v[%d:%d]" % (E + 2 * q, E + 1 + 2 * q, E + 2 * q, E + 1 + 2 * q, E + 4 * jj + 2 * q, E + 1 + 4 * jj + 2 * q))
        for st in range(2):
            self.mean_rstd(E + 2 * st, E + 1 + 2 * st, 688, E + 4 + 2 * st, E + 5 + 2 * st, E + 10)
        a("v_lshlrev_b32 v8, 3, v%d" % V_JL)
        a("v_add_u32 v8, %d, v8" % LDS_T5)
        a("ds_write_b64 v8, v[%d:%d]" % (E + 4, E + 5))
        a("ds_write_b64 v8, v[%d:%d] offset:256" % (E + 6, E + 7))
        a("s_waitcnt lgkmcnt(0)")

    def angles(self, n_list, tq, base, dst):
        a = self.a
        for idx, n in enumerate(n_list):
            if n == 0: a("v_mov_b32 v%d, v%d" % (dst + idx, base))
            else: a("v_fmamk_f32 v%d, v%d, 0x%x, v%d" % (dst + idx, tq, f2u(float(n)), base))

    H_T1F, H_8H = 46, 47
    def fft_consts(self):
        a = self.a
        T = 16
        a("v_bfe_u32 v%d, v%d, 2, 1" % (T, V_JL))
        a("v_lshlrev_b32 v%d, 4, v%d" % (T, T))
        a("v_bfe_u32 v%d, v%d, 3, 2" % (T + 1, V_JL))
        a("v_lshl_or_b32 v%d, v%d, 2, v%d" % (T, T + 1, T))
        a("v_and_b32 v%d, 3, v%d" % (T + 1, V_JL))
        a("v_or_b32 v%d, v%d, v%d" % (T, T, T + 1))
        a("v_cvt_f32_u32 v%d, v%d" % (self.H_T1F, T))
        a("v_cvt_f32_u32 v%d, v%d" % (self.H_8H, V_H))
        a("v_mul_f32 v%d, 0x%x, v%d" % (self.H_8H, f2u(8.0), self.H_8H))
        a("v_mul_f32 v%d, 0x%x, v%d" % (T + 2, f2u(1.0 / 32), self.H_T1F))
        a("v_mul_f32 v%d, v%d, v%d" % (T + 3, T + 2, self.H_8H))
        A = T + 4; C = T + 12; S = T + 20
        for ks in range(2):
            self.angles([16 * ks + i for i in range(8)], T + 2, T + 3, A)
            for i in range(8): a("v_fract_f32 v%d, v%d" % (A + i, A + i))
            for i in range(8):
                a("v_cos_f32 v%d, v%d" % (C + i, A + i))
                a("v_sin_f32 v%d, v%d" % (S + i, A + i))
            for p in range(4):
                a("v_cvt_pk_bf16_f32 v%d, v%d, v%d" % (A + 0, C + 2 * p, C + 2 * p + 1))
                a("v_cvt_pk_bf16_f32 v%d, -v%d, -v%d" % (A + 1, S + 2 * p, S + 2 * p + 1))
                a("v_cvt_pk_bf16_f32 v%d, v%d, v%d" % (A + 2, S + 2 * p, S + 2 * p + 1))
                a("v_accvgpr_write_b32 a%d, v%d" % (4 * ks + p, A + 0))
                a("v_accvgpr_write_b32 a%d, v%d" % (8 + 4 * ks + p, A + 1))
                a("v_accvgpr_write_b32 a%d, v%d" % (16 + 4 * ks + p, A + 2))
        a("v_accvgpr_write_b32 a60, v%d" % self.H_T1F)
        a("v_accvgpr_write_b32 a61, v%d" % self.H_8H)
        a("s_sub_u32 s3, s%d, 2" % S_HW)
        a("s_lshl_b32 s3, s3, 5")
        a("v_add_u32 v%d, s3, v%d" % (T + 2, V_JL))
        a("v_cvt_f32_u32 v%d, v%d" % (T + 2, T + 2))
        a("v_mul_f32 v%d, 0x%x, v%d" % (T + 2, f2u(1.0 / 64), T + 2))
        a("v_mul_f32 v%d, v%d, v%d" % (T + 3, T + 2, self.H_8H))
        for kt in range(2):
            for kp in range(2):
                self.angles([32 * kt + 16 * kp + i for i in range(8)], T + 2, T + 3, A)
                for i in range(8): a("v_fract_f32 v%d, v%d" % (A + i, A + i))
                for i in range(8):
                    a("v_cos_f32 v%d, v%d" % (C + i, A + i))
                    a("v_sin_f32 v%d, v%d" % (S + i, A + i))
                for p in range(4):
                    a("v_cvt_pk_bf16_f32 v%d, v%d, v%d" % (A + 0, C + 2 * p, C + 2 * p + 1))
                    a("v_cvt_pk_bf16_f32 v%d, v%d, v%d" % (A + 1, S + 2 * p, S + 2 * p + 1))
                    a("v_accvgpr_write_b32 a%d, v%d" % (24 + 16 * kt + 4 * kp + p, A + 0))
                    a("v_accvgpr_write_b32 a%d, v%d" % (24 + 16 * kt + 8 + 4 * kp + p, A + 1))

    def p1_helper(self):
        a = self.a
        a("s_mov_b32 s%d, 0" % S_C)
        a("v_mov_b32 v6, 0")
        a("buffer_load_dword v%d, v6, s[%d:%d], 0 offen sc1" % (self.V_NON, SRD_DBG, SRD_DBG + 3))
        a("s_waitcnt vmcnt(13) lgkmcnt(0)")
        a("s_barrier")
        self.h_loop(0)
        self.nonce_from(self.V_NON)
        a("s_barrier")
        a("s_cmp_lg_u32 s%d, 0" % S_HW)
        a("s_cbranch_scc1 L_h_nopub")
        self.stats2_publish()
        a.label("L_h_nopub")
        self.h_loop(8)
        a("s_cmp_lg_u32 s%d, 2" % S_HW)
        a("s_cbranch_scc1 L_h_nocons")
        self.stats2_consume()
        a.label("L_h_nocons")
        a("s_barrier")

    G_B = 16
    G_VB = 10
    G_VZ = 32
    G_L16 = 35
    G_BS = 36
    G_RV = 40
    def ring_reg(self, f):
        if f < 8: return "a[%d:%d]" % (96 + 4 * f, 96 + 4 * f + 3)
        r = self.G_RV + 4 * (f - 8)
        return "v[%d:%d]" % (r, r + 3)

    def g_compute(self):
        a = self.a
        a("v_lshlrev_b32 v%d, 4, v%d" % (self.G_L16, V_LANE))
        a("v_and_b32 v5, 15, v%d" % V_SIG)
        a("v_xor_b32 v5, v5, v%d" % V_H)
        a("v_lshlrev_b32 v5, 4, v5")
        a("v_lshl_add_u32 v5, v%d, 8, v5" % V_SIG)
        a("s_lshl_b32 s3, s%d, 15" % S_W)
        a("v_add_u32 v104, s3, v5")
        for k in range(1, 8): a("v_xor_b32 v%d, %d, v104" % (104 + k, k * 32))
        a("s_sub_u32 s%d, s%d, 64" % (S_T2, S_WID))
        for tau in range(3):
            a("s_add_u32 s%d, s%d, %d" % (S_T0, S_W, tau))
            a("s_cmp_ge_u32 s%d, 3" % S_T0)
            a("s_cselect_b32 s%d, 3, 0" % S_T1)
            a("s_sub_u32 s%d, s%d, s%d" % (S_T0, S_T0, S_T1))
            a("s_lshl_b32 s%d, s%d, 10" % (S_T1, S_T0))
            a("v_add_u32 v5, s%d, v%d" % (S_T1, self.G_L16))
            a("v_mov_b32 v6, 0x%x" % OOB)
            a("v_cmp_le_u32 vcc, s%d, v%d" % (S_T2, V_SIG))
            a("s_cmp_eq_u32 s%d, 2" % S_T0)
            a("s_cselect_b64 s[%d:%d], vcc, 0" % (S_EX, S_EX + 1))
            a("v_cndmask_b32 v%d, v5, v6, s[%d:%d]" % (self.G_VZ + tau, S_EX, S_EX + 1))
        a("s_lshl_b32 s%d, s%d, 7" % (S_T0, S_MB))
        a("v_lshlrev_b32 v5, 1, v%d" % V_SIG)
        a("buffer_load_ushort v%d, v5, s[%d:%d], s%d offen" % (self.G_BS, SRD_BSP, SRD_BSP + 3, S_T0))
        a("buffer_load_ushort v%d, v5, s[%d:%d], s%d offen offset:64" % (self.G_BS + 1, SRD_BSP, SRD_BSP + 3, S_T0))
        a("s_lshl_b32 s3, s%d, 5" % S_J)
        a("s_lshl_b32 s%d, s%d, 3" % (S_T0, S_W))
        a("s_add_u32 s3, s3, s%d" % S_T0)
        a("v_add_u32 v38, s3, v%d" % V_LANE)
        a("v_lshlrev_b32 v38, 7, v38")
        a("v_add_u32 v38, 0x%x, v38" % (WS_FLAG + 256 * 128))
        a("s_lshl_b32 s%d, s%d, 7" % (S_B0, S_J))
        a("s_lshl_b32 s3, s%d, 5" % S_W)
        a("s_add_u32 s%d, s%d, s3" % (S_B0, S_B0))
        a("s_mov_b32 s%d, 0" % S_RHO)
        for cc in range(4):
            a("s_add_u32 s3, s%d, %d" % (S_RHO, cc))
            a("s_and_b32 s3, s3, 3")
            a("s_lshl_b32 s3, s3, 3")
            a("s_add_u32 s3, s3, s%d" % S_B0)
            a("s_mul_i32 s3, s3, 3072")
            a("s_add_u32 s%d, s3, 0x%x" % (67 + cc, WS_Z2N))
        a("s_waitcnt vmcnt(0)")
        a("s_cmp_eq_u32 s%d, 3" % S_W)
        a("s_cbranch_scc1 L_g_nf")
        a("v_accvgpr_read_b32 v39, a8")
        self.nonce_from(39)
        self.flag_store(1, 0, S_W)
        a.label("L_g_nf")
        self.stamp(7)
        self.poll_flags_n(38, 8, 3, 16)
        self.stamp(8)
        self.stamp(26)
        vq = VQ(a)
        def zload(n):
            a("s_add_u32 s%d, s%d, %d" % (S_T0, 67 + n // 8, (n % 8) * 3072))
            for tau in range(3):
                f = (n % 8) * 3 + tau
                a("buffer_load_dwordx4 %s, v%d, s[%d:%d], s%d offen %s" % (self.ring_reg(f), self.G_VZ + tau, SRD_WS, SRD_WS + 3, S_T0, "" if "gplain" in self.exp else "sc1"))
                vq.issue(("z", n))
        for n in range(8): zload(n)
        B = self.G_B
        SY_FREE = LDS_SY + 0
        SY_LAND = LDS_SY + 16
        a("s_lshl_b32 s3, s%d, 2" % S_W)
        a("s_add_u32 s3, s3, %d" % LDS_SY)
        a("v_mov_b32 v14, s3")
        def land_check(cnt):
            lab = a.newlabel("ld")
            a("s_mov_b32 s%d, 0" % S_SPIN)
            a.label(lab)
            a("ds_read_b32 v15, v14 offset:16")
            a("s_waitcnt lgkmcnt(0)")
            a("v_readfirstlane_b32 s%d, v15" % S_T1)
            a("s_add_u32 s%d, s%d, 1" % (S_SPIN, S_SPIN))
            a("s_cmp_gt_u32 s%d, 0x100000" % S_SPIN)
            a("s_cbranch_scc1 %s_x" % lab)
            a("s_cmp_lt_u32 s%d, %d" % (S_T1, cnt))
            a("s_cbranch_scc1 %s" % lab)
            a.label(lab + "_x")
        def bread(n, st):
            cc, k = divmod(n, 8)
            r = B + (n & 1) * 8 + st * 4
            return "ds_read_b128 v[%d:%d], v%d offset:%d" % (r, r + 3, 104 + k, (cc & 1) * 16384 + st * 8192)
        land_check(2)
        a(bread(0, 0)); a(bread(0, 1))
        for n in range(32):
            cc, k = divmod(n, 8)
            buf = n & 1
            vq.wait(("z", n))
            nxt = n + 1 < 32
            if nxt and (n + 1) % 8 == 0 and (n + 1) // 8 >= 2 and "gnoland" not in self.exp:
                a("s_waitcnt lgkmcnt(0)")
                land_check((n + 1) // 8 + 1)
            else:
                a("s_waitcnt lgkmcnt(0)")
            fill = []
            if nxt: fill += [bread(n + 1, 0), bread(n + 1, 1)]
            zl = []
            if n + 8 < 32:
                zl.append("s_add_u32 s%d, s%d, %d" % (S_T0, 67 + (n + 8) // 8, ((n + 8) % 8) * 3072))
            mi = 0
            for tau in range(3):
                for st in range(2):
                    D = (tau * 2 + st) * 16
                    Br = B + buf * 8 + st * 4
                    cc_ = "0" if n == 0 else "a[%d:%d]" % (D, D + 15)
                    a("v_mfma_f32_32x32x16_bf16 a[%d:%d], %s, v[%d:%d], %s" % (D, D + 15, self.ring_reg((n % 8) * 3 + tau), Br, Br + 3, cc_))
                    if mi == 0:
                        for f in fill: a(f)
                        for f in zl: a(f)
                    if st == 1 and n + 8 < 32 and "gnoz" not in self.exp:
                        f = (n % 8) * 3 + tau
                        a("buffer_load_dwordx4 %s, v%d, s[%d:%d], s%d offen %s" % (self.ring_reg(f), self.G_VZ + tau, SRD_WS, SRD_WS + 3, S_T0, "" if "gplain" in self.exp else "sc1"))
                        vq.issue(("z", n + 8))
                    mi += 1
            if k == 7 and cc < 2:
                a("v_mov_b32 v15, %d" % (cc + 1))
                a("ds_write_b32 v14, v15")
        self.stamp(27)
        self.stamp(10)
        self.g_reduce()

    def wsp_dma16(self, cc, sbase, slds):
        a = self.a
        for q in range(16):
            a("s_add_u32 s%d, s%d, %d" % (S_T0, 67 + cc, q * 4 * 4096))
            a("s_add_u32 m0, s%d, %d" % (slds, (cc & 1) * 16384 + q * 1024))
            a("buffer_load_dwordx4 v%d, s[%d:%d], s%d offen lds" % (16 + (q & 3), SRD_WSP, SRD_WSP + 3, S_T0))

    def wsp_voffsets(self, base):
        a = self.a
        L = V_LANE
        a("v_lshrrev_b32 v5, 4, v%d" % L)
        a("v_and_b32 v6, 15, v%d" % L)
        for qq in range(4):
            a("v_add_u32 v7, %d, v5" % (4 * qq))
            a("v_xor_b32 v7, v7, v6")
            a("v_lshlrev_b32 v7, 4, v7")
            a("v_lshl_add_u32 v%d, v5, 12, v7" % (base + qq))

    def stage_reg(self, unit, q):
        if unit < 2:
            r = unit * 64 + 4 * q
            return "a[%d:%d]" % (r, r + 3)
        r = 32 + 4 * q
        return "v[%d:%d]" % (r, r + 3)

    def stage_loads(self):
        out = []
        for unit in range(3):
            for q in range(16):
                out.append("s_add_u32 s%d, s%d, %d" % (S_T0, 67 + unit, q * 4 * 4096))
                out.append("buffer_load_dwordx4 %s, v%d, s[%d:%d], s%d offen" % (self.stage_reg(unit, q), 96 + (q & 3), SRD_WSP, SRD_WSP + 3, S_T0))
        return out

    def g_helper(self):
        a = self.a
        L = V_LANE
        self.wsp_voffsets(16)
        a("s_lshl_b32 s%d, s%d, 18" % (S_B0, S_MB))
        a("s_lshl_b32 s3, s%d, 10" % S_HW)
        a("s_add_u32 s%d, s%d, s3" % (S_B0, S_B0))
        a("s_mov_b32 s70, s%d" % S_B0)
        a("s_add_u32 s71, s%d, 256" % S_B0)
        a("s_lshl_b32 s%d, s%d, 15" % (S_T3, S_HW))
        for cc in range(2):
            for q in range(16):
                a("s_add_u32 s%d, s%d, %d" % (S_T0, 70 + cc, q * 4 * 4096))
                a("s_add_u32 m0, s%d, %d" % (S_T3, cc * 16384 + q * 1024))
                a("buffer_load_dwordx4 v%d, s[%d:%d], s%d offen lds" % (16 + (q & 3), SRD_WSP, SRD_WSP + 3, S_T0))
        a("s_lshl_b32 s3, s%d, 2" % S_HW)
        a("s_add_u32 s3, s3, %d" % LDS_SY)
        a("v_mov_b32 v12, s3")
        def wait_free(off, cnt):
            lab = a.newlabel("fr")
            a("s_mov_b32 s%d, 0" % S_SPIN)
            a.label(lab)
            a("ds_read_b32 v5, v12 offset:%d" % off)
            a("s_waitcnt lgkmcnt(0)")
            a("v_readfirstlane_b32 s%d, v5" % S_T0)
            a("s_add_u32 s%d, s%d, 1" % (S_SPIN, S_SPIN))
            a("s_cmp_gt_u32 s%d, 0x100000" % S_SPIN)
            a("s_cbranch_scc1 %s_x" % lab)
            a("s_cmp_lt_u32 s%d, %d" % (S_T0, cnt))
            a("s_cbranch_scc0 %s_x" % lab)
            a("s_sleep 1")
            a("s_branch %s" % lab)
            a.label(lab + "_x")
        a("s_cmp_ge_u32 s%d, 2" % S_HW)
        a("s_cbranch_scc1 L_gh_fft")
        a("s_waitcnt vmcnt(0)")
        a("v_mov_b32 v6, 2")
        a("ds_write_b32 v12, v6 offset:16")
        a("v_lshlrev_b32 v13, 4, v%d" % L)
        a("s_lshl_b32 s3, s%d, 15" % S_HW)
        a("v_add_u32 v13, s3, v13")
        a("v_add_u32 v14, 65536, v13")
        def put(unit, vaddr, slot, landoff, cnt):
            for q in range(16 if "noput" not in self.exp else 0):
                a("ds_write_b128 v%d, %s offset:%d" % (vaddr, self.stage_reg(unit, q), slot * 16384 + q * 1024))
            a("v_mov_b32 v6, %d" % cnt)
            a("s_waitcnt lgkmcnt(0)")
            a("ds_write_b32 v12, v6 offset:%d" % landoff)
        wait_free(0, 1); put(0, 13, 0, 16, 3)
        for q in range(16):
            a("s_add_u32 s%d, s69, %d" % (S_T0, 256 + q * 4 * 4096))
            a("buffer_load_dwordx4 a[%d:%d], v%d, s[%d:%d], s%d offen" % (4 * q, 4 * q + 3, 96 + (q & 3), SRD_WSP, SRD_WSP + 3, S_T0))
        wait_free(8, 1); put(2, 14, 0, 24, 3)
        wait_free(0, 2); put(1, 13, 1, 16, 4)
        wait_free(8, 2)
        a("s_waitcnt vmcnt(0)")
        put(0, 14, 1, 24, 4)
        a("s_branch L_gh_done")
        a.label("L_gh_fft")
        a("s_waitcnt vmcnt(0)")
        a("v_mov_b32 v6, 2")
        a("ds_write_b32 v12, v6 offset:16")
        if "nofft" not in self.exp:
            a("s_setprio 3")
            self.fft()
            a("s_setprio 0")
        a("s_waitcnt vmcnt(0)")
        a("s_sub_u32 s%d, s%d, 2" % (S_T1, S_HW))
        self.flag_store(3, 0, S_T1)
        self.stamp(19)
        a.label("L_gh_done")
        self.stamp(9)
        a("s_barrier")
        a("v_lshrrev_b32 v5, 3, v%d" % L)
        a("v_and_b32 v6, 7, v%d" % L)
        a("v_bfe_u32 v7, v%d, 4, 1" % L)
        a("v_lshlrev_b32 v7, 2, v7")
        a("v_xor_b32 v6, v6, v7")
        a("v_lshlrev_b32 v6, 4, v6")
        a("v_lshl_add_u32 v9, v5, 10, v6")
        a("s_lshl_b32 s3, s%d, 7" % S_J)
        a("v_add_u32 v9, s3, v9")
        a("s_add_u32 s3, s%d, s%d" % (S_HW, S_MB))
        a("s_and_b32 s3, s3, 3")
        a("s_mul_i32 s%d, s3, %d" % (S_T1, 22 * 8192))
        a("s_mul_i32 s%d, s3, %d" % (S_T2, 22 * 1024))
        for q in range(22):
            if q == 8: a("s_barrier")
            a("s_add_u32 m0, s%d, %d" % (S_T2, LDS_WO + q * 1024))
            a("s_add_u32 s%d, s%d, %d" % (S_T0, S_T1, q * 8192))
            a("buffer_load_dwordx4 v9, s[%d:%d], s%d offen lds" % (SRD_WOUT, SRD_WOUT + 3, S_T0))
        self.final_pre()
        a("s_waitcnt vmcnt(18)")
        a("s_barrier")
        a("s_barrier")
        self.final_h()

    def fft(self):
        a = self.a
        a("v_accvgpr_read_b32 v10, a60")
        a("v_accvgpr_read_b32 v11, a61")
        a("s_lshl_b32 s3, s%d, 5" % S_J)
        a("v_add_u32 v12, s3, v%d" % V_LANE)
        a("v_lshlrev_b32 v12, 7, v12")
        a("v_add_u32 v12, 0x%x, v12" % (WS_FLAG + 256 * 128 + 12))
        self.stamp(16)
        self.poll_flags_n(12, 32, 1, 16)
        self.stamp(17)
        a("v_lshlrev_b32 v13, 4, v%d" % V_LANE)
        a("s_lshl_b32 s3, s%d, 13" % S_L)
        a("s_add_u32 s3, s3, 0x%x" % WS_AB)
        X = 32
        for i in range(8):
            a("buffer_load_dwordx4 v[%d:%d], v13, s[%d:%d], s3 offen sc1" % (X + 4 * i, X + 4 * i + 3, SRD_WS, SRD_WS + 3))
            if i < 7: a("s_add_u32 s3, s3, 1024")
        a("s_sub_u32 s%d, s%d, 2" % (S_T1, S_HW))
        a("s_lshl_b32 s%d, s%d, 13" % (S_T2, S_T1))
        a("s_add_u32 s%d, s%d, %d" % (S_T2, S_T2, LDS_FX))
        a("v_add_u32 v14, s%d, v13" % S_T2)
        a("v_bfe_u32 v7, v%d, 2, 2" % V_LANE)
        a("v_lshl_add_u32 v7, v%d, 3, v7" % V_H)
        a("v_lshlrev_b32 v7, 7, v7")
        a("v_bfe_u32 v8, v%d, 4, 1" % V_LANE)
        a("v_lshlrev_b32 v8, 5, v8")
        a("v_and_b32 v9, 1, v%d" % V_LANE)
        a("v_lshl_add_u32 v8, v9, 4, v8")
        a("v_bfe_u32 v9, v%d, 1, 1" % V_LANE)
        a("v_lshl_add_u32 v8, v9, 3, v8")
        a("v_add_u32 v7, v7, v8")
        a("v_add_u32 v15, s%d, v7" % S_T2)
        a("s_waitcnt vmcnt(0)")
        self.stamp(18)
        for i in range(8):
            a("ds_write_b128 v14, v[%d:%d] offset:%d" % (X + 4 * i, X + 4 * i + 3, i * 1024))
        URE, UIM, A1, TC, TS, A2 = 32, 48, 16, 64, 80, 104
        D2 = 64
        def mm(D, A, B, first, dfile="v", afile="v", bfile="a"):
            a("v_mfma_f32_32x32x16_bf16 %s[%d:%d], %s[%d:%d], %s[%d:%d], %s" % (dfile, D, D + 15, afile, A, A + 3, bfile, B, B + 3, "0" if first else "%s[%d:%d]" % (dfile, D, D + 15)))
        for kt in range(2):
            a("v_mul_f32 v12, 0x%x, v10" % (f2u(1.0 / 2048)))
            a("v_mul_f32 v13, v12, v11")
            if kt == 0: a("s_waitcnt lgkmcnt(0)")
            for ks in range(4):
                for q in range(2):
                    r = A1 + 4 * ks + 2 * q
                    a("ds_read_b64_tr_b16 v[%d:%d], v15 offset:%d" % (r, r + 1, (ks >> 1) * 4096 + (ks & 1) * 2048 + q * 512 + kt * 64))
            for half in range(2):
                self.angles([32 * kt + 16 * half + i for i in range(8)], 12, 13, 120)
                for i in range(8):
                    a("v_cos_f32 v%d, v%d" % (TC + 8 * half + i, 120 + i))
                    a("v_sin_f32 v%d, v%d" % (TS + 8 * half + i, 120 + i))
            a("s_waitcnt lgkmcnt(0)")
            FRE, FIM, NFIM = 0, 8, 16
            mm(URE, A1, FRE, True); mm(UIM, A1, FIM, True)
            mm(URE, A1 + 4, FRE + 4, False); mm(UIM, A1 + 4, FIM + 4, False)
            mm(URE, A1 + 8, NFIM, False); mm(UIM, A1 + 8, FRE, False)
            mm(URE, A1 + 12, NFIM + 4, False); mm(UIM, A1 + 12, FRE + 4, False)
            for p in range(8):
                t0 = 96 + (p % 2) * 4
                for e in range(2):
                    re, im, c, s_ = URE + 2 * p + e, UIM + 2 * p + e, TC + 2 * p + e, TS + 2 * p + e
                    a("v_mul_f32 v%d, v%d, v%d" % (t0 + e, im, s_))
                    a("v_mul_f32 v%d, v%d, v%d" % (t0 + 2 + e, re, s_))
                    a("v_fmac_f32 v%d, v%d, v%d" % (t0 + e, re, c))
                    a("v_fma_f32 v%d, v%d, v%d, -v%d" % (t0 + 2 + e, im, c, t0 + 2 + e))
                a("v_cvt_pk_bf16_f32 v%d, v%d, v%d" % (A2 + p, t0, t0 + 1))
                a("v_cvt_pk_bf16_f32 v%d, v%d, v%d" % (A2 + 8 + p, t0 + 2, t0 + 3))
            G = 24 + 16 * kt
            mm(D2, A2, G, kt == 0, dfile="a"); mm(D2, A2 + 4, G + 4, False, dfile="a")
            mm(D2, A2 + 8, G + 8, False, dfile="a"); mm(D2, A2 + 12, G + 12, False, dfile="a")
        a("v_lshlrev_b32 v6, 7, v%d" % V_JL)
        a("v_lshl_add_u32 v6, v%d, 6, v6" % V_H)
        a("v_add_u32 v6, s%d, v6" % S_T2)
        for q in range(4):
            a("ds_write_b128 v6, a[%d:%d] offset:%d" % (D2 + 4 * q, D2 + 4 * q + 3, q * 16))
        a("s_waitcnt lgkmcnt(0)")
        for q in range(4):
            a("ds_read_b128 v[%d:%d], v14 offset:%d" % (32 + 4 * q, 35 + 4 * q, q * 1024))
        a("s_lshl_b32 s3, s%d, 12" % S_T1)
        a("s_lshl_b32 s%d, s%d, 13" % (S_T0, S_L))
        a("s_add_u32 s3, s3, s%d" % S_T0)
        a("s_add_u32 s3, s3, 0x%x" % WS_YT)
        a("v_lshlrev_b32 v6, 4, v%d" % V_LANE)
        a("s_waitcnt lgkmcnt(0)")
        for q in range(4):
            a("buffer_store_dwordx4 v[%d:%d], v6, s[%d:%d], s3 offen offset:%d sc1" % (32 + 4 * q, 35 + 4 * q, SRD_WS, SRD_WS + 3, q * 1024))

    def g_reduce(self):
        a = self.a
        L16 = self.G_L16
        a("s_barrier")
        for tau in (1, 2, 0):
            if tau == 0:
                a("s_cmp_lg_u32 s%d, 3" % S_W)
                a("s_cbranch_scc1 L_exp_done")
            a("s_add_u32 s%d, s%d, %d" % (S_T0, S_W, tau))
            a("s_cmp_ge_u32 s%d, 3" % S_T0)
            a("s_cselect_b32 s%d, 3, 0" % S_T1)
            a("s_sub_u32 s%d, s%d, s%d" % (S_T0, S_T0, S_T1))
            a("s_sub_u32 s%d, s%d, s%d" % (S_T1, S_W, S_T0))
            a("s_sub_u32 s%d, s%d, 1" % (S_T1, S_T1))
            a("s_and_b32 s%d, s%d, 3" % (S_T1, S_T1))
            a("s_mul_i32 s%d, s%d, 3" % (S_T0, S_T0))
            a("s_add_u32 s%d, s%d, s%d" % (S_T0, S_T0, S_T1))
            a("s_lshl_b32 s%d, s%d, 13" % (S_T0, S_T0))
            a("v_add_u32 v5, s%d, v%d" % (S_T0, L16))
            for st in range(2):
                for q in range(4):
                    r = (tau * 2 + st) * 16 + 4 * q
                    a("ds_write_b128 v5, a[%d:%d] offset:%d" % (r, r + 3, st * 4096 + q * 1024))
        a.label("L_exp_done")
        a("s_waitcnt lgkmcnt(0)")
        a("s_barrier")
        self.stamp(11)
        a("s_cmp_eq_u32 s%d, 3" % S_W)
        a("s_cbranch_scc1 L_h_done")
        G = 40
        I = 72
        a("s_mul_i32 s%d, s%d, %d" % (S_T0, S_W, 3 * 8192))
        a("v_add_u32 v5, s%d, v%d" % (S_T0, L16))
        for st in range(2):
            for q in range(4):
                r = G + st * 16 + 4 * q
                a("ds_read_b128 v[%d:%d], v5 offset:%d" % (r, r + 3, 0 * 8192 + st * 4096 + q * 1024))
        for st in range(2):
            for q in range(4):
                r = I + st * 16 + 4 * q
                a("ds_read_b128 v[%d:%d], v5 offset:%d" % (r, r + 3, 1 * 8192 + st * 4096 + q * 1024))
        a("s_waitcnt lgkmcnt(0)")
        for p in range(16): a("v_pk_add_f32 v[%d:%d], v[%d:%d], v[%d:%d]" % (G + 2 * p, G + 2 * p + 1, G + 2 * p, G + 2 * p + 1, I + 2 * p, I + 2 * p + 1))
        for st in range(2):
            for q in range(4):
                r = I + st * 16 + 4 * q
                a("ds_read_b128 v[%d:%d], v5 offset:%d" % (r, r + 3, 2 * 8192 + st * 4096 + q * 1024))
        for i in range(0, 32, 8):
            for k in range(8): a("v_accvgpr_read_b32 v%d, a%d" % (16 + k, i + k))
            for p in range(4): a("v_pk_add_f32 v[%d:%d], v[%d:%d], v[%d:%d]" % (G + i + 2 * p, G + i + 2 * p + 1, G + i + 2 * p, G + i + 2 * p + 1, 16 + 2 * p, 16 + 2 * p + 1))
        a("s_waitcnt lgkmcnt(0)")
        for p in range(16): a("v_pk_add_f32 v[%d:%d], v[%d:%d], v[%d:%d]" % (G + 2 * p, G + 2 * p + 1, G + 2 * p, G + 2 * p + 1, I + 2 * p, I + 2 * p + 1))
        for st in range(2): a("v_lshlrev_b32 v%d, 16, v%d" % (self.G_BS + st, self.G_BS + st))
        for st in range(2):
            for r in range(8):
                src = self.C_Z1P + 8 * st + r
                g = G + 16 * st + 2 * r
                t = 16 + 2 * (r % 4)
                a("v_lshlrev_b32 v%d, 16, v%d" % (t, src))
                a("v_and_b32 v%d, 0xffff0000, v%d" % (t + 1, src))
                sel = "op_sel:[0,%d] op_sel_hi:[1,%d]" % (st, st)
                a("v_pk_add_f32 v[%d:%d], v[%d:%d], v[%d:%d] %s" % (g, g + 1, g, g + 1, self.G_BS, self.G_BS + 1, sel))
                a("v_pk_mul_f32 v[%d:%d], v[%d:%d], v[%d:%d]" % (g, g + 1, g, g + 1, t, t + 1))
                a("v_cvt_pk_bf16_f32 v%d, v%d, v%d" % (I + 8 * st + r, g, g + 1))
        a("s_mul_i32 s%d, s%d, 96" % (S_T0, S_MB))
        a("s_mul_i32 s%d, s%d, 6" % (S_T1, S_J))
        a("s_add_u32 s%d, s%d, s%d" % (S_T0, S_T0, S_T1))
        a("s_lshl_b32 s%d, s%d, 1" % (S_T1, S_W))
        a("s_add_u32 s%d, s%d, s%d" % (S_T0, S_T0, S_T1))
        a("s_lshl_b32 s%d, s%d, 10" % (S_T0, S_T0))
        a("s_add_u32 s%d, s%d, 0x%x" % (S_T0, S_T0, WS_H))
        for st in range(2):
            for Q in range(2):
                r = I + 8 * st + 4 * Q
                a("s_add_u32 s%d, s%d, %d" % (S_T1, S_T0, (st * 48 + Q) * 1024))
                a("buffer_store_dwordx4 v[%d:%d], v%d, s[%d:%d], s%d offen sc1" % (r, r + 3, L16, SRD_WS, SRD_WS + 3, S_T1))
        a("s_waitcnt vmcnt(0)")
        self.flag_store(2, 0, S_W)
        a.label("L_h_done")
        self.o_pre()
        a("s_barrier")
        self.stamp(12)

    def o_pre(self):
        a = self.a
        a("s_lshr_b32 s%d, s%d, 1" % (S_T0, S_W))
        a("s_lshl_b32 s3, s%d, 2" % S_T0)
        a("v_add_u32 v40, s3, v%d" % V_LANE)
        a("v_lshlrev_b32 v40, 5, v40")
        a("v_add_u32 v40, s%d, v40" % S_MB)
        a("v_lshlrev_b32 v40, 7, v40")
        a("v_add_u32 v40, 0x%x, v40" % (WS_FLAG + 2 * 256 * 128))
        a("v_bfe_u32 v5, v%d, 2, 2" % V_LANE)
        a("v_lshl_add_u32 v5, v%d, 3, v5" % V_H)
        a("v_lshlrev_b32 v5, 7, v5")
        a("v_bfe_u32 v6, v%d, 4, 1" % V_LANE)
        a("v_lshlrev_b32 v6, 1, v6")
        a("v_and_b32 v7, 1, v%d" % V_LANE)
        a("v_or_b32 v6, v6, v7")
        a("v_bfe_u32 v7, v%d, 3, 1" % V_LANE)
        a("v_lshlrev_b32 v7, 2, v7")
        a("v_xor_b32 v6, v6, v7")
        a("s_lshl_b32 s3, s%d, 2" % S_T0)
        a("v_xor_b32 v6, s3, v6")
        a("v_bfe_u32 v7, v%d, 1, 1" % V_LANE)
        a("v_lshlrev_b32 v7, 3, v7")
        a("v_add_u32 v5, v5, v7")
        a("s_mul_i32 s3, s%d, %d" % (S_T0, 352 * 128))
        a("s_add_u32 s3, s3, %d" % LDS_WO)
        a("v_add_u32 v5, s3, v5")
        WA = 52
        a("v_lshl_add_u32 v%d, v6, 4, v5" % WA)
        a("v_xor_b32 v6, 4, v6")
        a("v_lshl_add_u32 v%d, v6, 4, v5" % (WA + 1))
        a("s_cmp_eq_u32 s%d, 0" % S_T0)
        a("s_cselect_b32 s3, 8, 0")
        a("s_add_u32 s3, s3, 256")
        a("s_lshl_b32 s3, s3, 7")
        a("v_add_u32 v%d, s3, v%d" % (WA + 2, WA))
        a("v_add_u32 v%d, s3, v%d" % (WA + 3, WA + 1))
        a("s_and_b32 s%d, s%d, 1" % (S_T1, S_W))
        a("s_lshl_b32 s3, s%d, 1" % S_MB)
        a("s_add_u32 s3, s3, s%d" % S_T1)
        a("s_mul_i32 s3, s3, 48")
        a("s_mul_i32 s%d, s%d, 24" % (S_B0, S_T0))
        a("s_add_u32 s%d, s%d, s3" % (S_B0, S_B0))
        a("s_lshl_b32 s%d, s%d, 10" % (S_B0, S_B0))
        a("s_add_u32 s%d, s%d, 0x%x" % (S_B0, S_B0, WS_H))

    def phase_o(self):
        a = self.a
        L16 = self.G_L16
        WA = 52
        self.poll_flags_n(40, 4, 3, 60)
        self.stamp(13)
        vq = VQ(a)
        for n in range(24):
            r = 32 + 4 * n
            a("buffer_load_dwordx4 a[%d:%d], v%d, s[%d:%d], s%d offen sc1" % (r, r + 3, L16, SRD_WS, SRD_WS + 3, S_B0)); vq.issue(("h", n))
            if n < 23: a("s_add_u32 s%d, s%d, 1024" % (S_B0, S_B0))
        FA = 16
        def areads(n, buf):
            jj, rem = divmod(n, 6); ft, Q = divmod(rem, 2)
            out = []
            for tp in range(2):
                base = WA + tp if jj < 3 else WA + 2 + tp
                off = ((88 * jj if jj < 3 else 0) + 32 * ft + 16 * Q) * 128
                r = FA + buf * 8 + tp * 4
                out.append("ds_read_b64_tr_b16 v[%d:%d], v%d offset:%d" % (r, r + 1, base, off))
                out.append("ds_read_b64_tr_b16 v[%d:%d], v%d offset:%d" % (r + 2, r + 3, base, off + 512))
            return out
        for r in areads(0, 0): a(r)
        for n in range(24):
            buf = n & 1
            vq.wait(("h", n))
            a("s_waitcnt lgkmcnt(0)")
            rd = areads(n + 1, buf ^ 1) if n < 23 else []
            for tp in range(2):
                D = tp * 16
                Ar = FA + buf * 8 + tp * 4
                Br = 32 + 4 * n
                cc = "0" if n == 0 else "a[%d:%d]" % (D, D + 15)
                a("v_mfma_f32_32x32x16_bf16 a[%d:%d], v[%d:%d], a[%d:%d], %s" % (D, D + 15, Ar, Ar + 3, Br, Br + 3, cc))
                for r in rd[2 * tp:2 * tp + 2]: a(r)
        self.stamp(14)
        a("s_lshl_b32 s3, s%d, 13" % S_W)
        a("v_add_u32 v58, s3, v%d" % L16)
        for tp in range(2):
            for q in range(4):
                a("ds_write_b128 v58, a[%d:%d] offset:%d" % (16 * tp + 4 * q, 16 * tp + 4 * q + 3, tp * 4096 + q * 1024))
        a("s_waitcnt lgkmcnt(0)")
        a("s_barrier")

    def final_pre(self):
        a = self.a
        a("s_lshr_b32 s%d, s%d, 1" % (S_T0, S_HW))
        a("s_lshl_b32 s3, s%d, 6" % S_J)
        a("s_lshl_b32 s%d, s%d, 5" % (S_T2, S_T0))
        a("s_add_u32 s%d, s3, s%d" % (S_T2, S_T2))
        a("v_add_u32 v5, s%d, v%d" % (S_T2, V_LANE))
        a("v_sub_u32 v6, 512, v5")
        a("v_cmp_lt_u32 vcc, 256, v5")
        a("v_cndmask_b32 v6, v5, v6, vcc")
        a("v_and_b32 v6, 255, v6")
        a("v_lshlrev_b32 v43, 7, v6")
        a("v_add_u32 v43, 0x%x, v43" % (WS_FLAG + 3 * 256 * 128))
        a("s_and_b32 s%d, s%d, 1" % (S_T1, S_HW))
        a("s_lshl_b32 s3, s%d, 6" % S_MB)
        a("s_lshl_b32 s%d, s%d, 5" % (S_T3, S_T1))
        a("s_add_u32 s3, s3, s%d" % S_T3)
        a("v_add_u32 v41, s3, v%d" % V_SIG)
        a("v_lshlrev_b32 v42, 10, v41")
        a("v_lshl_add_u32 v42, v%d, 4, v42" % V_H)
        a("s_lshl_b32 s3, s%d, 1" % S_T2)
        a("v_add_u32 v42, s3, v42")
        XR = 44
        a("buffer_load_dwordx4 v[%d:%d], v42, s[%d:%d], 0 offen" % (XR, XR + 3, SRD_X, SRD_X + 3))
        a("buffer_load_dwordx4 v[%d:%d], v42, s[%d:%d], 0 offen offset:32" % (XR + 4, XR + 7, SRD_X, SRD_X + 3))
        a("v_lshlrev_b32 v5, 2, v41")
        a("v_sub_u32 v6, 2048, v41")
        a("v_and_b32 v6, 2047, v6")
        a("v_lshlrev_b32 v6, 2, v6")
        a("v_lshlrev_b32 v7, 3, v%d" % V_H)
        a("v_add_u32 v7, s%d, v7" % S_T2)
        a("v_lshl_add_u32 v8, v7, 13, v5")
        a("v_sub_u32 v9, %d, v7" % (512 - 23))
        a("v_lshl_add_u32 v9, v9, 13, v6")
        a("s_cmp_ge_u32 s%d, 256" % S_T2)
        a("s_cselect_b64 vcc, -1, 0")
        a("s_cselect_b32 s%d, 1, 0" % S_T3)
        a("v_cndmask_b32 v56, v8, v9, vcc")
        a("s_cselect_b32 s3, %d, 0" % (23 * 8192))
        a("v_add_u32 v8, s3, v56")
        a("v_mov_b32 v9, 0x%x" % OOB)
        a("v_cmp_eq_u32 vcc, 0, v7")
        a("v_cndmask_b32 v8, v8, v9, vcc")
        a("v_cmp_eq_u32 vcc, 256, v7")
        a("v_cndmask_b32 v57, v8, v5, vcc")
        self.poll_flags_n(43, 32, 2, 60)
        Y = 64
        for rho in range(16):
            k = 16 * (rho >> 3) + (rho & 7)
            if rho == 0:
                a("s_mov_b32 s3, 0x%x" % WS_YT)
                a("buffer_load_dword v%d, v57, s[%d:%d], s3 offen sc1" % (Y, SRD_WS, SRD_WS + 3))
            else:
                a("s_cmp_eq_u32 s%d, 1" % S_T3)
                a("s_cselect_b32 s3, %d, %d" % (23 - k, k))
                a("s_lshl_b32 s3, s3, 13")
                a("s_add_u32 s3, s3, 0x%x" % WS_YT)
                a("buffer_load_dword v%d, v56, s[%d:%d], s3 offen sc1" % (Y + rho, SRD_WS, SRD_WS + 3))

    def final_h(self):
        a = self.a
        XR, Y, O = 44, 64, 80
        a("v_lshlrev_b32 v10, 4, v%d" % V_LANE)
        a("s_lshl_b32 s3, s%d, 13" % S_HW)
        a("v_add_u32 v11, s3, v10")
        a("s_xor_b32 s3, s%d, 2" % S_HW)
        a("s_lshl_b32 s3, s3, 13")
        a("s_add_u32 s3, s3, 4096")
        a("v_add_u32 v12, s3, v10")
        for q in range(4):
            a("ds_read_b128 v[%d:%d], v11 offset:%d" % (O + 4 * q, O + 4 * q + 3, q * 1024))
        for q in range(4):
            a("ds_read_b128 v[%d:%d], v12 offset:%d" % (96 + 4 * q, 96 + 4 * q + 3, q * 1024))
        nl2e = f2u(-math.log2(math.e))
        a("s_mov_b32 s%d, 0x%x" % (S_K2, nl2e))
        a("s_mov_b32 s%d, 0x%x" % (S_K2 + 1, nl2e))
        a("s_and_b32 s%d, s%d, 1" % (S_T1, S_HW))
        a("s_lshl_b32 s3, s%d, 5" % S_T1)
        a("v_add_u32 v13, s3, v%d" % V_SIG)
        a("v_and_b32 v14, 7, v13")
        a("s_lshr_b32 s%d, s%d, 1" % (S_T0, S_HW))
        a("s_lshl_b32 s3, s%d, 2" % S_T0)
        a("v_add_u32 v15, s3, v%d" % V_H)
        a("v_xor_b32 v14, v14, v15")
        a("v_lshlrev_b32 v14, 4, v14")
        a("v_lshl_add_u32 v14, v13, 7, v14")
        a("v_add_u32 v14, 32768, v14")
        a("s_waitcnt lgkmcnt(0)")
        for p in range(8):
            a("v_pk_add_f32 v[%d:%d], v[%d:%d], v[%d:%d]" % (O + 2 * p, O + 2 * p + 1, O + 2 * p, O + 2 * p + 1, 96 + 2 * p, 96 + 2 * p + 1))
        for p in range(8):
            o = O + 2 * p; t = 96 + 2 * p
            a("v_pk_mul_f32 v[%d:%d], v[%d:%d], s[%d:%d]" % (t, t + 1, o, o + 1, S_K2, S_K2 + 1))
            a("v_exp_f32 v%d, v%d" % (t, t))
            a("v_exp_f32 v%d, v%d" % (t + 1, t + 1))
            a("v_pk_add_f32 v[%d:%d], v[%d:%d], 1.0 op_sel_hi:[1,0]" % (t, t + 1, t, t + 1))
            a("v_rcp_f32 v%d, v%d" % (t, t))
            a("v_rcp_f32 v%d, v%d" % (t + 1, t + 1))
            a("v_pk_mul_f32 v[%d:%d], v[%d:%d], v[%d:%d]" % (o, o + 1, o, o + 1, t, t + 1))
        a("s_waitcnt vmcnt(0)")
        for p in range(8):
            o = O + 2 * p; t = 96 + 2 * p; y = Y + 2 * p; xr = XR + p
            a("v_lshlrev_b32 v%d, 16, v%d" % (t, xr))
            a("v_and_b32 v%d, 0xffff0000, v%d" % (t + 1, xr))
            a("v_pk_fma_f32 v[%d:%d], v[%d:%d], v[%d:%d], v[%d:%d]" % (t, t + 1, y, y + 1, o, o + 1, t, t + 1))
            a("v_cvt_pk_bf16_f32 v%d, v%d, v%d" % (112 + p, t, t + 1))
        a("ds_write_b128 v14, v[112:115]")
        a("v_xor_b32 v14, 32, v14")
        a("ds_write_b128 v14, v[116:119]")
        a("s_waitcnt lgkmcnt(0)")
        a("s_barrier")
        a("v_lshrrev_b32 v5, 3, v%d" % V_LANE)
        a("v_and_b32 v6, 7, v%d" % V_LANE)
        a("v_xor_b32 v7, v5, v6")
        a("v_lshlrev_b32 v7, 4, v7")
        a("v_lshl_add_u32 v7, v5, 7, v7")
        a("s_lshl_b32 s3, s%d, 11" % S_HW)
        a("s_add_u32 s3, s3, 32768")
        a("v_add_u32 v7, s3, v7")
        a("ds_read_b128 v[16:19], v7")
        a("ds_read_b128 v[20:23], v7 offset:1024")
        a("v_lshlrev_b32 v8, 10, v5")
        a("v_lshl_add_u32 v8, v6, 4, v8")
        a("s_lshl_b32 s%d, s%d, 6" % (S_T0, S_MB))
        a("s_lshl_b32 s3, s%d, 4" % S_HW)
        a("s_add_u32 s%d, s%d, s3" % (S_T0, S_T0))
        a("s_lshl_b32 s%d, s%d, 10" % (S_T0, S_T0))
        a("s_lshl_b32 s3, s%d, 7" % S_J)
        a("s_add_u32 s%d, s%d, s3" % (S_T0, S_T0))
        a("s_waitcnt lgkmcnt(0)")
        fl = "" if "outplain" in self.exp else "sc1"
        a("buffer_store_dwordx4 v[16:19], v8, s[%d:%d], s%d offen %s" % (SRD_OUT, SRD_OUT + 3, S_T0, fl))
        a("s_add_u32 s%d, s%d, 8192" % (S_T0, S_T0))
        a("buffer_store_dwordx4 v[20:23], v8, s[%d:%d], s%d offen %s" % (SRD_OUT, SRD_OUT + 3, S_T0, fl))
        self.stamp(15)
        self.stamp(25)

    def build(self):
        a = self.a
        self.prologue()
        self.xstage()
        a("s_cmp_ge_u32 s%d, 4" % S_W)
        a("s_cbranch_scc1 L_helper")
        self.p1_compute()
        self.g_compute()
        self.phase_o()
        a("s_branch L_end")
        a.label("L_helper")
        self.p1_helper()
        self.g_helper()
        a.label("L_end")
        a("s_endpgm")
        a.finalize()
        hdr = open("cdna_kernels/%s.s.ref" % NAME).read().split("\n")
        head = []
        for line in hdr:
            if line.startswith("; @launch"):
                head.append("; @launch grid=(256,1,1) block=(512,1,1) lds=%d" % LDS_TOTAL)
            elif line.startswith(";"): head.append(line)
            else: break
        txt = "\n".join(head) + "\n"
        txt += '.amdgcn_target "amdgcn-amd-amdhsa--gfx950"\n.text\n.globl %s_kernel\n.p2align 8\n.type %s_kernel,@function\n%s_kernel:\n' % (NAME, NAME, NAME)
        body = a.text()
        if "codepf" in self.exp:
            body = body.replace("CODE_LEN", "(L_end - L_pc_here - 16)")
        txt += body
        txt += '.section .rodata,"a"\n.p2align 6\n.amdhsa_kernel %s_kernel\n' % NAME
        txt += "  .amdhsa_next_free_vgpr 256\n  .amdhsa_next_free_sgpr 102\n  .amdhsa_accum_offset 128\n"
        txt += "  .amdhsa_group_segment_fixed_size 0\n  .amdhsa_kernarg_size 104\n  .amdhsa_user_sgpr_count 2\n"
        txt += "  .amdhsa_user_sgpr_kernarg_segment_ptr 1\n  .amdhsa_system_sgpr_workgroup_id_x 1\n"
        txt += "  .amdhsa_float_denorm_mode_32 3\n"
        txt += ".end_amdhsa_kernel\n"
        return txt

if __name__ == "__main__":
    import argparse
    ap = argparse.ArgumentParser()
    ap.add_argument("--stamps", action="store_true")
    ap.add_argument("--exp", default="")
    ap.add_argument("-o", default="cdna_kernels/%s.s" % NAME)
    args = ap.parse_args()
    g = Gen(stamps=args.stamps, exp=[e for e in args.exp.split(',') if e])
    txt = g.build()
    open(args.o, "w").write(txt)
    print("wrote", args.o, len(txt), "bytes;", len([i for i in g.a.ins if i.kind not in ("label", "dir")]), "instrs")
```

```python
import sys, math, struct
sys.path.insert(0, "gen")
from asmlib import *

NAME = "recurrent_scan__spectral_fnet__mixer_gmlp__prompt"

WS_FLAG = 0x000000
WS_STATS = 0x020000
WS_Z2N = 0x100000
WS_AB = 0x400000
WS_H = 0x600000
WS_YT = 0x900000
WS_STAMP = 0xF00000
WS_SIZE = 0x4000000
OOB = 0x80000000

LDS_WR = 65536
SLOT = 16384
NSLOT = 5
LDS_T4 = 147456
LDS_T5 = LDS_T4 + 1536
LDS_SY = LDS_T5 + 512
LDS_AT = 151552
LDS_FX = 131072
LDS_WO = 73728
LDS_TOTAL = 163840

SRD_X, SRD_WIN, SRD_DFT, SRD_WSP, SRD_WOUT, SRD_WS, SRD_OUT, SRD_BSP, SRD_DBG = 4, 8, 12, 20, 24, 28, 32, 36, 40
S_IMLO, S_IMHI = 16, 17
S_MB, S_J, S_W, S_F0, S_WID, S_NONCE, S_L = 44, 45, 46, 47, 48, 49, 50
S_C, S_SLOT, S_XD = 51, 52, 53
S_CN, S_KC128, S_WSOFF, S_SLOTN = 54, 55, 56, 57
S_HW = 58
S_DL0, S_WL0, S_W2 = 60, 61, 62
S_T0, S_T1, S_T2, S_T3 = 63, 90, 91, 92
S_PASS = 93
S_EX = 94
S_K2 = 96
S_SPIN = 98
S_B0 = 99
S_ST0 = 100
S_ROT1 = 59
S_RHO = 51

V_LANE, V_JL, V_H, V_SIG = 1, 2, 3, 4

def f2u(x): return struct.unpack("<I", struct.pack("<f", x))[0]

class Gen:
    def __init__(self, stop_after=None, stamps=False, exp=()):
        self.a = Asm()
        self.stop_after = stop_after
        self.stamps = stamps
        self.exp = set(exp)

    def stamp(self, idx):
        if "dbgst" in self.exp:
            m = {0: 1, 1: 2, 2: 3, 3: 4, 4: 5, 5: 6, 7: 7, 8: 8, 10: 9, 11: 10, 12: 11, 13: 12, 14: 13, 15: 14}
            if idx in m:
                a = self.a
                lab = a.newlabel("ds")
                a("s_cmp_lg_u32 s%d, %d" % (S_L, 0 * 256 + 37))
                a("s_cbranch_scc1 %s" % lab)
                a("s_cmp_lg_u32 s%d, 0" % S_W)
                a("s_cbranch_scc1 %s" % lab)
                a("s_memrealtime s[%d:%d]" % (S_ST0, S_ST0 + 1))
                a("s_waitcnt lgkmcnt(0)")
                a("v_mov_b32 v9, s%d" % S_ST0)
                a("v_mov_b32 v8, %d" % (4 * m[idx]))
                a("s_mov_b64 exec, 1")
                a("buffer_store_dword v9, v8, s[%d:%d], 0 offen sc1" % (SRD_DBG, SRD_DBG + 3))
                a("s_mov_b64 exec, -1")
                a.label(lab)
            return
        if not self.stamps: return
        a = self.a
        a(("s_memtime s[%d:%d]" if idx >= 24 else "s_memrealtime s[%d:%d]") % (S_ST0, S_ST0 + 1))
        a("s_waitcnt lgkmcnt(0)")
        a("v_mov_b32 v9, s%d" % S_ST0)
        a("s_lshl_b32 s%d, s%d, 3" % (S_ST0, S_L))
        a("s_add_u32 s%d, s%d, s%d" % (S_ST0, S_ST0, S_W))
        a("s_lshl_b32 s%d, s%d, 7" % (S_ST0, S_ST0))
        a("s_add_u32 s%d, s%d, 0x%x" % (S_ST0, S_ST0, WS_STAMP + idx * 4))
        a("v_mov_b32 v8, 0")
        a("s_mov_b64 s[%d:%d], exec" % (S_EX, S_EX + 1))
        a("s_mov_b64 exec, 1")
        a("buffer_store_dword v9, v8, s[%d:%d], s%d offen" % (SRD_WS, SRD_WS + 3, S_ST0))
        a("s_mov_b64 exec, s[%d:%d]" % (S_EX, S_EX + 1))

    def srd(self, base, plo, size):
        a = self.a
        a("s_mov_b32 s%d, s%d" % (base, plo))
        a("s_and_b32 s%d, s%d, 0xffff" % (base + 1, plo + 1))
        a("s_mov_b32 s%d, 0x%x" % (base + 2, size))
        a("s_mov_b32 s%d, 0x20000" % (base + 3))

    def flag_store(self, kind, dw=0, dw_sreg=None):
        a = self.a
        a("s_lshl_b32 s%d, s%d, 7" % (S_T0, S_L))
        a("s_add_u32 s%d, s%d, 0x%x" % (S_T0, S_T0, WS_FLAG + kind * 256 * 128 + dw * 4))
        if dw_sreg is not None:
            a("s_lshl_b32 s3, s%d, 2" % dw_sreg)
            a("s_add_u32 s%d, s%d, s3" % (S_T0, S_T0))
        a("v_mov_b32 v5, s%d" % S_NONCE)
        a("v_mov_b32 v6, 0")
        a("s_mov_b64 exec, 1")
        a("buffer_store_dword v5, v6, s[%d:%d], s%d offen sc1" % (SRD_WS, SRD_WS + 3, S_T0))
        a("s_mov_b64 exec, -1")

    def poll_flags_n(self, vaddr, nlanes, ndw, vt):
        a = self.a
        lab = a.newlabel("poll")
        a("s_mov_b32 s%d, 0" % S_SPIN)
        mask = (1 << nlanes) - 1
        a("s_mov_b32 exec_lo, 0x%x" % (mask & 0xffffffff))
        a("s_mov_b32 exec_hi, 0x%x" % (mask >> 32))
        a.label(lab)
        if ndw == 1: a("buffer_load_dword v%d, v%d, s[%d:%d], 0 offen sc1" % (vt, vaddr, SRD_WS, SRD_WS + 3))
        elif ndw == 2: a("buffer_load_dwordx2 v[%d:%d], v%d, s[%d:%d], 0 offen sc1" % (vt, vt + 1, vaddr, SRD_WS, SRD_WS + 3))
        else: a("buffer_load_dwordx4 v[%d:%d], v%d, s[%d:%d], 0 offen sc1" % (vt, vt + 3, vaddr, SRD_WS, SRD_WS + 3))
        a("s_waitcnt vmcnt(0)")
        a("v_cmp_ne_u32 vcc, s%d, v%d" % (S_NONCE, vt))
        for i in range(1, ndw):
            a("v_cmp_ne_u32 s[%d:%d], s%d, v%d" % (S_EX, S_EX + 1, S_NONCE, vt + i))
            a("s_or_b64 vcc, vcc, s[%d:%d]" % (S_EX, S_EX + 1))
        a("s_add_u32 s%d, s%d, 1" % (S_SPIN, S_SPIN))
        a("s_cmp_gt_u32 s%d, 0x8000" % S_SPIN)
        a("s_cbranch_scc1 %s_x" % lab)
        a("s_cbranch_vccnz %s" % lab)
        a.label(lab + "_x")
        a("s_mov_b64 exec, -1")

    def get_nonce(self):
        a = self.a
        lab = a.newlabel("nonce")
        a("v_mov_b32 v6, 0")
        a("s_mov_b32 s%d, 0" % S_SPIN)
        a.label(lab)
        a("buffer_load_dword v5, v6, s[%d:%d], 0 offen sc1" % (SRD_DBG, SRD_DBG + 3))
        a("s_waitcnt vmcnt(0)")
        a("v_readfirstlane_b32 s%d, v5" % S_NONCE)
        a("s_add_u32 s%d, s%d, 1" % (S_SPIN, S_SPIN))
        a("s_cmp_gt_u32 s%d, 0x8000" % S_SPIN)
        a("s_cbranch_scc1 %s_x" % lab)
        a("s_cmp_eq_u32 s%d, 0" % S_NONCE)
        a("s_cbranch_scc1 %s" % lab)
        a.label(lab + "_x")

    def nonce_from(self, vreg):
        a = self.a
        lab = a.newlabel("hn")
        a("v_readfirstlane_b32 s%d, v%d" % (S_NONCE, vreg))
        a("s_cmp_lg_u32 s%d, 0" % S_NONCE)
        a("s_cbranch_scc1 %s" % lab)
        self.get_nonce()
        a.label(lab)

    def poll_flags(self, vaddr, nlanes):
        a = self.a
        lab = a.newlabel("poll")
        a("s_mov_b32 s%d, 0" % S_SPIN)
        mask = (1 << nlanes) - 1
        a("s_mov_b32 exec_lo, 0x%x" % (mask & 0xffffffff))
        a("s_mov_b32 exec_hi, 0x%x" % (mask >> 32))
        a.label(lab)
        a("buffer_load_dword v5, v%d, s[%d:%d], 0 offen sc1" % (vaddr, SRD_WS, SRD_WS + 3))
        a("s_waitcnt vmcnt(0)")
        a("v_cmp_ne_u32 vcc, s%d, v5" % S_NONCE)
        a("s_add_u32 s%d, s%d, 1" % (S_SPIN, S_SPIN))
        a("s_cmp_gt_u32 s%d, 0x8000" % S_SPIN)
        a("s_cbranch_scc1 %s_x" % lab)
        a("s_cbranch_vccnz %s" % lab)
        a.label(lab + "_x")
        a("s_mov_b64 exec, -1")

    def lds_wait_ge(self, addr, val, vt=5):
        a = self.a
        lab = a.newlabel("lw")
        a("s_mov_b32 s%d, 0" % S_SPIN)
        a("v_mov_b32 v%d, %d" % (vt + 1, addr))
        a.label(lab)
        a("ds_read_b32 v%d, v%d" % (vt, vt + 1))
        a("s_waitcnt lgkmcnt(0)")
        a("v_readfirstlane_b32 s%d, v%d" % (S_T0, vt))
        a("s_add_u32 s%d, s%d, 1" % (S_SPIN, S_SPIN))
        a("s_cmp_gt_u32 s%d, 0x100000" % S_SPIN)
        a("s_cbranch_scc1 %s_x" % lab)
        a("s_cmp_lt_u32 s%d, %d" % (S_T0, val))
        a("s_cbranch_scc1 %s" % lab)
        a.label(lab + "_x")

    def hsum(self, regs, tmp):
        a = self.a
        for i, r in enumerate(regs): a("v_mov_b32 v%d, v%d" % (tmp + i, r))
        for i, r in enumerate(regs): a("v_permlane32_swap_b32 v%d, v%d" % (r, tmp + i))
        for i, r in enumerate(regs): a("v_add_f32 v%d, v%d, v%d" % (r, r, tmp + i))

    def mean_rstd(self, vsum, vsq, n, dst_r, dst_nm, t):
        a = self.a
        a("v_mul_f32 v%d, 0x%x, v%d" % (t, f2u(1.0 / n), vsum))
        a("v_mul_f32 v%d, 0x%x, v%d" % (t + 1, f2u(1.0 / n), vsq))
        a("v_fma_f32 v%d, -v%d, v%d, v%d" % (t + 1, t, t, t + 1))
        a("v_max_f32 v%d, 0, v%d" % (t + 1, t + 1))
        a("v_add_f32 v%d, 0x%x, v%d" % (t + 1, f2u(1e-5), t + 1))
        a("v_rsq_f32 v%d, v%d" % (dst_r, t + 1))
        a("v_mul_f32 v%d, v%d, v%d" % (dst_nm, t, dst_r))
        a("v_sub_f32 v%d, 0, v%d" % (dst_nm, dst_nm))

    V_OD, V_OW = 10, 11
    V_NON = 14
    def prologue(self):
        a = self.a
        a("s_cmp_ge_u32 s2, 256")
        a("s_cbranch_scc1 L_end")
        a("s_load_dwordx16 s[64:79], s[0:1], 0")
        a("s_load_dwordx8 s[80:87], s[0:1], 64")
        a("s_load_dwordx2 s[88:89], s[0:1], 96")
        if "map42" in self.exp:
            a("s_bfe_u32 s%d, s2, 0x20001" % S_MB)
            a("s_lshl_b32 s%d, s%d, 3" % (S_MB, S_MB))
            a("s_bfe_u32 s3, s2, 0x30003")
            a("s_add_u32 s%d, s%d, s3" % (S_MB, S_MB))
            a("s_and_b32 s%d, s2, 1" % S_J)
            a("s_lshl_b32 s%d, s%d, 2" % (S_J, S_J))
            a("s_lshr_b32 s3, s2, 6")
            a("s_add_u32 s%d, s%d, s3" % (S_J, S_J))
        else:
            a("s_and_b32 s%d, s2, 7" % S_MB)
            a("s_lshl_b32 s%d, s%d, 2" % (S_MB, S_MB))
            a("s_bfe_u32 s3, s2, 0x20003")
            a("s_add_u32 s%d, s%d, s3" % (S_MB, S_MB))
            a("s_lshr_b32 s%d, s2, 5" % S_J)
        a("s_lshl_b32 s%d, s%d, 5" % (S_L, S_J))
        a("s_add_u32 s%d, s%d, s%d" % (S_L, S_L, S_MB))
        a("v_lshrrev_b32 v5, 6, v0")
        a("v_and_b32 v%d, 63, v0" % V_LANE)
        a("v_readfirstlane_b32 s%d, v5" % S_W)
        a("v_lshrrev_b32 v20, 3, v0")
        a("v_and_b32 v21, 7, v0")
        a("v_lshlrev_b32 v22, 10, v20")
        a("v_lshl_add_u32 v22, v21, 4, v22")
        a("s_lshl_b32 s%d, s%d, 16" % (S_T1, S_MB))
        a("s_and_b32 s%d, s%d, 3" % (S_HW, S_W))
        a("v_and_b32 v%d, 31, v0" % V_JL)
        a("v_bfe_u32 v%d, v0, 5, 1" % V_H)
        a("v_and_b32 v5, 0x13, v%d" % V_JL)
        a("v_and_b32 v6, 4, v%d" % V_JL)
        a("v_lshl_or_b32 v5, v6, 1, v5")
        a("v_and_b32 v6, 8, v%d" % V_JL)
        a("v_lshrrev_b32 v6, 1, v6")
        a("v_or_b32 v%d, v5, v6" % V_SIG)
        a("s_mul_i32 s%d, s%d, 88" % (S_F0, S_J))
        a("s_cmp_eq_u32 s%d, 7" % S_J)
        a("s_cselect_b32 s3, 8, 0")
        a("s_sub_u32 s%d, s%d, s3" % (S_F0, S_F0))
        a("s_cmp_ge_u32 s%d, 6" % S_J)
        a("s_cselect_b32 s3, 8, 0")
        a("s_sub_u32 s%d, 88, s3" % S_WID)
        for i in range(10, 14): a("v_mov_b32 v%d, 0" % i)
        if "codepf" in self.exp:
            a("s_getpc_b64 s[92:93]")
            a.label("L_pc_here")
            a("s_lshr_b32 s3, s2, 3")
            a("s_lshl_b32 s3, s3, 3")
            a("s_add_u32 s3, s3, s%d" % S_W)
            a("s_mul_i32 s3, s3, 192")
            a("v_lshlrev_b32 v5, 4, v%d" % V_LANE)
            a("v_add_u32 v5, s3, v5")
            a("v_min_u32 v5, CODE_LEN, v5")
            a("s_mov_b64 exec, 0xfff")
            a("global_load_dwordx4 a[20:23], v5, s[92:93]")
            a("s_mov_b64 exec, -1")
        a("s_waitcnt lgkmcnt(0)")
        self.srd(SRD_X, 64, 2048 * 1024)
        a("s_and_b32 s%d, s%d, 3" % (S_ROT1, S_MB))
        a("s_lshl_b32 s%d, s%d, 1" % (S_ROT1, S_ROT1))
        a("s_add_u32 s%d, s%d, s%d" % (S_ROT1, S_ROT1, S_J))
        a("s_and_b32 s%d, s%d, 7" % (S_ROT1, S_ROT1))
        if "norot" in self.exp: a("s_mov_b32 s%d, 0" % S_ROT1)
        for i in range(8):
            a("s_add_u32 s3, s%d, %d" % (S_ROT1, i))
            a("s_and_b32 s3, s3, 7")
            a("s_lshl_b32 s3, s3, 7")
            a("s_add_u32 s3, s3, s%d" % S_T1)
            a("buffer_load_dwordx4 v[%d:%d], v22, s[%d:%d], s3 offen" % (32 + 4 * i, 35 + 4 * i, SRD_X, SRD_X + 3))
        self.srd(SRD_WIN, 76, 512 * 2752)
        self.srd(SRD_DFT, 70, 512 * 1024)
        self.srd(S_IMLO, 72, 512 * 1024)
        self.srd(SRD_WS, 88, WS_SIZE)
        self.srd(SRD_DBG, 86, 256)
        self.srd(SRD_WSP, 78, 2048 * 4096)
        self.srd(SRD_WOUT, 82, 688 * 1024)
        self.srd(SRD_OUT, 84, 2048 * 1024)
        self.srd(SRD_BSP, 80, 4096)
        if "tlbwarm" in self.exp:
            a("v_lshlrev_b32 v5, 20, v%d" % V_LANE)
            a("v_add_u32 v5, 0x7f000, v5")
            a("s_mov_b64 exec, 0xfff")
            a("buffer_load_dword a24, v5, s[%d:%d], 0 offen sc1" % (SRD_WS, SRD_WS + 3))
            a("s_mov_b64 exec, 1")
            a("s_lshl_b32 s3, s%d, 16" % S_MB)
            a("v_mov_b32 v5, s3")
            a("buffer_load_dword a25, v5, s[%d:%d], 0 offen" % (SRD_OUT, SRD_OUT + 3))
            a("s_lshl_b32 s3, s%d, 18" % S_MB)
            a("v_mov_b32 v5, s3")
            a("buffer_load_dword a26, v5, s[%d:%d], 0 offen" % (SRD_WSP, SRD_WSP + 3))
            a("v_mov_b32 v5, 0")
            a("buffer_load_dword a27, v5, s[%d:%d], 0 offen" % (SRD_WOUT, SRD_WOUT + 3))
            a("buffer_load_dword a28, v5, s[%d:%d], 0 offen" % (SRD_BSP, SRD_BSP + 3))
            a("s_mov_b64 exec, -1")
        a("s_cmp_lt_u32 s%d, 4" % S_W)
        a("s_cbranch_scc0 L_pro_h")
        self.npf = (self.prefetch_start() if "nopf" not in self.exp else 0) + (5 if "tlbwarm" in self.exp else 0)
        a("s_branch L_pro_c")
        a.label("L_pro_h")
        L = V_LANE
        a("v_lshrrev_b32 v5, 3, v%d" % L)
        a("v_and_b32 v6, 7, v%d" % L)
        a("v_lshrrev_b32 v7, 4, v%d" % L)
        a("v_xor_b32 v8, v6, v7")
        a("v_lshlrev_b32 v8, 4, v8")
        a("s_lshl_b32 s3, s%d, 5" % S_J)
        a("s_lshl_b32 s%d, s%d, 3" % (S_T0, S_HW))
        a("s_add_u32 s3, s3, s%d" % S_T0)
        a("v_add_u32 v9, s3, v5")
        a("v_cmp_eq_u32 vcc, 0, v9")
        a("v_mov_b32 v6, 256")
        a("v_cndmask_b32 v9, v9, v6, vcc")
        a("s_and_b32 s%d, s%d, 1" % (S_T0, S_HW))
        a("s_lshl_b32 s%d, s%d, 6" % (S_T0, S_T0))
        a("v_xor_b32 v8, s%d, v8" % S_T0)
        a("v_lshl_add_u32 v%d, v9, 10, v8" % self.V_OD)
        for p in range(3):
            a("v_add_u32 v5, %d, v%d" % (64 * p, L))
            a("v_mul_u32_u24 v6, 171, v5")
            a("v_lshrrev_b32 v6, 11, v6")
            a("v_mul_u32_u24 v7, 12, v6")
            a("v_sub_u32 v7, v5, v7")
            a("v_mul_u32_u24 v6, 2752, v6")
            a("v_lshl_add_u32 v6, v7, 4, v6")
            a("v_lshlrev_b32 v7, 3, v7")
            a("v_cmp_gt_u32 vcc, s%d, v7" % S_WID)
            a("v_mov_b32 v8, 0x%x" % OOB)
            a("v_cndmask_b32 v%d, v8, v6, vcc" % (self.V_OW + p))
        a("s_lshl_b32 s%d, s%d, 10" % (S_DL0, S_HW))
        a("s_mul_i32 s%d, s%d, 3072" % (S_WL0, S_HW))
        a("s_mul_i32 s%d, s%d, %d" % (S_W2, S_HW, 16 * 2752))
        a("s_lshl_b32 s3, s%d, 1" % S_F0)
        a("s_add_u32 s%d, s%d, s3" % (S_W2, S_W2))
        a("s_add_u32 s%d, s%d, %d" % (S_WSOFF, S_W2, 688 * 2))
        for k in range(4): self.dma_chunk(k)
        a("s_cmp_lg_u32 s2, 0")
        a("s_cbranch_scc1 L_nononce")
        a("s_cmp_lg_u32 s%d, 4" % S_W)
        a("s_cbranch_scc1 L_nononce")
        a("s_memrealtime s[%d:%d]" % (S_ST0, S_ST0 + 1))
        a("s_waitcnt lgkmcnt(0)")
        a("s_or_b32 s3, s%d, 1" % S_ST0)
        a("v_mov_b32 v5, s3")
        a("v_mov_b32 v6, 0")
        a("s_mov_b64 exec, 1")
        a("buffer_store_dword v5, v6, s[%d:%d], 0 offen sc1" % (SRD_DBG, SRD_DBG + 3))
        a("s_mov_b64 exec, -1")
        a.label("L_nononce")
        a("v_lshlrev_b32 v5, 2, v%d" % V_LANE)
        a("v_add_u32 v5, %d, v5" % LDS_SY)
        a("v_mov_b32 v6, 0")
        a("s_mov_b64 exec, 0xffff")
        a("ds_write_b32 v5, v6")
        a("s_mov_b64 exec, -1")
        a.label("L_pro_c")
        self.stamp(0)
        self.stamp(24)

    def pf_wrows(self, colbyte_sreg, row0_sreg, nrows16, dst):
        a = self.a
        a("v_lshrrev_b32 v5, 2, v%d" % V_LANE)
        a("v_add_u32 v5, s%d, v5" % row0_sreg)
        a("v_mul_u32_u24 v5, 2752, v5")
        a("v_and_b32 v6, 3, v%d" % V_LANE)
        a("v_lshlrev_b32 v6, 6, v6")
        a("v_min_u32 v6, 172, v6")
        a("v_add_u32 v5, v5, v6")
        for i in range(nrows16):
            a("s_add_u32 s3, s%d, %d" % (colbyte_sreg, i * 16 * 2752))
            a("buffer_load_dword a%d, v5, s[%d:%d], s3 offen" % (dst, SRD_WIN, SRD_WIN + 3))
        return nrows16

    def prefetch_start(self):
        a = self.a
        a("s_and_b32 s%d, s%d, 3" % (S_T0, S_MB))
        a("s_lshl_b32 s%d, s%d, 6" % (S_T0, S_T0))
        a("s_lshl_b32 s3, s%d, 4" % S_W)
        a("s_add_u32 s%d, s%d, s3" % (S_T0, S_T0))
        a("s_add_u32 s%d, s%d, 256" % (S_T0, S_T0))
        a("s_add_u32 s%d, s%d, 688" % (S_T1, S_F0))
        a("s_lshl_b32 s%d, s%d, 1" % (S_T1, S_T1))
        return self.pf_wrows(S_T1, S_T0, 1, 16)

    def prefetch_b(self):
        a = self.a
        a("s_and_b32 s%d, s%d, 3" % (S_T0, S_MB))
        a("s_lshl_b32 s%d, s%d, 7" % (S_T0, S_T0))
        a("s_lshl_b32 s3, s%d, 5" % S_W)
        a("s_add_u32 s%d, s%d, s3" % (S_T0, S_T0))
        a("s_lshl_b32 s%d, s%d, 1" % (S_T1, S_F0))
        self.pf_wrows(S_T1, S_T0, 2, 16)
        a("s_lshl_b32 s%d, s%d, 5" % (S_T0, S_J))
        a("s_and_b32 s3, s%d, 3" % S_MB)
        a("s_lshl_b32 s3, s3, 3")
        a("s_add_u32 s%d, s%d, s3" % (S_T0, S_T0))
        a("s_lshl_b32 s3, s%d, 1" % S_W)
        a("s_add_u32 s%d, s%d, s3" % (S_T0, S_T0))
        a("s_lshl_b32 s%d, s%d, 10" % (S_T0, S_T0))
        a("v_lshlrev_b32 v5, 4, v%d" % V_LANE)
        for i in range(2):
            a("buffer_load_dwordx4 a[16:19], v5, s[%d:%d], s%d offen offset:%d" % (S_IMLO, S_IMLO + 3, S_T0, i * 1024))

    def prefetch_wsp(self):
        a = self.a
        a("s_lshl_b32 s%d, s%d, 6" % (S_T0, S_MB))
        a("s_lshl_b32 s3, s%d, 3" % S_J)
        a("s_add_u32 s%d, s%d, s3" % (S_T0, S_T0))
        a("s_lshl_b32 s3, s%d, 1" % S_W)
        a("s_add_u32 s%d, s%d, s3" % (S_T0, S_T0))
        a("s_lshl_b32 s%d, s%d, 12" % (S_T0, S_T0))
        a("v_lshlrev_b32 v5, 4, v%d" % V_LANE)
        for i in range(8):
            a("buffer_load_dwordx4 a[16:19], v5, s[%d:%d], s%d offen" % (SRD_WSP, SRD_WSP + 3, S_T0))
            if i < 7: a("s_add_u32 s%d, s%d, 1024" % (S_T0, S_T0))

    def prefetch_wout(self):
        a = self.a
        a("s_and_b32 s3, s%d, 3" % S_MB)
        a("s_lshl_b32 s3, s3, 2")
        a("s_add_u32 s3, s3, s%d" % S_W)
        a("s_mul_i32 s%d, s3, 43" % S_T0)
        a("v_lshrrev_b32 v5, 1, v%d" % V_LANE)
        a("v_add_u32 v5, s%d, v5" % S_T0)
        a("v_lshlrev_b32 v5, 10, v5")
        a("v_and_b32 v6, 1, v%d" % V_LANE)
        a("v_lshl_add_u32 v5, v6, 6, v5")
        a("s_lshl_b32 s%d, s%d, 7" % (S_T0, S_J))
        a("buffer_load_dword a16, v5, s[%d:%d], s%d offen" % (SRD_WOUT, SRD_WOUT + 3, S_T0))
        a("s_add_u32 s%d, s%d, %d" % (S_T0, S_T0, 32 * 1024))
        a("buffer_load_dword a16, v5, s[%d:%d], s%d offen" % (SRD_WOUT, SRD_WOUT + 3, S_T0))

    def dma_chunk(self, k):
        a = self.a
        slot = LDS_WR + (k % NSLOT) * SLOT
        srd = SRD_DFT if k < 8 else S_IMLO
        a("s_add_u32 s%d, s%d, %d" % (S_T1, S_ROT1, k & 7))
        a("s_and_b32 s%d, s%d, 7" % (S_T1, S_T1))
        a("s_add_u32 m0, s%d, %d" % (S_DL0, slot + 12288))
        a("s_lshl_b32 s%d, s%d, 7" % (S_T0, S_T1))
        a("buffer_load_dwordx4 v%d, s[%d:%d], s%d offen lds" % (self.V_OD, srd, srd + 3, S_T0))
        a("s_mul_i32 s%d, s%d, %d" % (S_T1, S_T1, 64 * 2752))
        a("s_add_u32 m0, s%d, %d" % (S_WL0, slot))
        a("s_add_u32 s%d, s%d, s%d" % (S_T0, S_WSOFF if k < 8 else S_W2, S_T1))
        for p in range(3):
            a("buffer_load_dwordx4 v%d, s[%d:%d], s%d offen lds" % (self.V_OW + p, SRD_WIN, SRD_WIN + 3, S_T0))
            if p < 2:
                a("s_add_u32 m0, m0, 1024")
                a("s_nop 0")

    def xstage(self):
        a = self.a
        X = 32
        a("v_mov_b32 v23, 0x3f803f80")
        for i in range(4): a("v_mov_b32 v%d, 0" % (24 + i))
        a("v_bfe_u32 v5, v20, 1, 3")
        a("v_xor_b32 v5, v5, v21")
        a("v_lshlrev_b32 v5, 4, v5")
        a("v_lshl_add_u32 v28, v20, 7, v5")
        a("s_cmp_lt_u32 s%d, 4" % S_W)
        a("s_cbranch_scc1 L_xw_c")
        for path, younger in (("h", 16 + (5 if "tlbwarm" in self.exp else 0)), ("c", self.npf)):
            if path == "c": a.label("L_xw_c")
            for i in range(8):
                a("s_waitcnt vmcnt(%d)" % (younger + 7 - i))
                for r in range(4):
                    k = 4 * i + r
                    a("v_dot2c_f32_bf16 v%d, v%d, v23" % (24 + (k & 1), X + k))
                    a("v_dot2c_f32_bf16 v%d, v%d, v%d" % (26 + (k & 1), X + k, X + k))
            if path == "h": a("s_branch L_xw_d")
        a.label("L_xw_d")
        a("v_add_f32 v24, v24, v25")
        a("v_add_f32 v26, v26, v27")
        for dpp in ("quad_perm:[1,0,3,2]", "quad_perm:[2,3,0,1]", "row_half_mirror"):
            a("v_add_f32_dpp v25, v24, v24 %s row_mask:0xf bank_mask:0xf" % dpp)
            a("v_add_f32_dpp v27, v26, v26 %s row_mask:0xf bank_mask:0xf" % dpp)
            a("v_mov_b32 v24, v25")
            a("v_mov_b32 v26, v27")
        self.mean_rstd(24, 26, 512, 30, 31, 6)
        U = 64
        for i in range(8):
            for r in range(4):
                src = X + 4 * i + r
                t = U + 2 * ((4 * i + r) % 8)
                a("v_lshlrev_b32 v%d, 16, v%d" % (t, src))
                a("v_and_b32 v%d, 0xffff0000, v%d" % (t + 1, src))
                a("v_pk_fma_f32 v[%d:%d], v[%d:%d], v[30:31], v[30:31] op_sel:[0,0,1] op_sel_hi:[1,0,1]" % (t, t + 1, t, t + 1))
                a("v_cvt_pk_bf16_f32 v%d, v%d, v%d" % (src, t, t + 1))
            a("ds_write_b128 v28, v[%d:%d] offset:%d" % (X + 4 * i, X + 4 * i + 3, i * 8192))

    C_XA, C_AC, C_AN = 10, 14, 15
    C_FA, C_FB = 16, 32
    C_ACC = 64
    C_Z2P, C_Z1P = 96, 112
    C_GC1 = 6

    def c_setup(self, w3):
        a = self.a
        a("v_bfe_u32 v5, v%d, 1, 3" % V_SIG)
        a("v_lshlrev_b32 v6, 7, v%d" % V_SIG)
        for ks in range(4):
            a("v_add_u32 v8, %d, v%d" % (2 * ks, V_H))
            a("v_xor_b32 v8, v8, v5")
            a("v_lshl_add_u32 v%d, v8, 4, v6" % (self.C_XA + ks))
        if w3:
            for ks in range(4):
                a("v_add_u32 v%d, %d, v%d" % (116 + ks, LDS_WR + 12288, self.C_XA + ks))
        else:
            a("v_bfe_u32 v7, v%d, 2, 2" % V_LANE)
            a("v_lshl_add_u32 v7, v%d, 3, v7" % V_H)
            a("v_mul_u32_u24 v7, 192, v7")
            a("v_bfe_u32 v8, v%d, 4, 1" % V_LANE)
            a("v_lshlrev_b32 v8, 5, v8")
            a("v_and_b32 v9, 1, v%d" % V_LANE)
            a("v_lshl_add_u32 v8, v9, 4, v8")
            a("v_bfe_u32 v9, v%d, 1, 1" % V_LANE)
            a("v_lshl_add_u32 v8, v9, 3, v8")
            a("v_add_u32 v7, v7, v8")
            a("s_lshl_b32 s3, s%d, 6" % S_W)
            a("s_add_u32 s3, s3, %d" % LDS_WR)
            a("v_add_u32 v%d, s3, v7" % self.C_AC)
            a("v_add_u32 v%d, %d, v%d" % (self.C_AN, SLOT, self.C_AC))
            for Q in range(2):
                a("v_lshlrev_b32 v5, 3, v%d" % V_H)
                a("v_sub_u32 v5, v%d, v5" % V_SIG)
                if Q: a("v_subrev_u32 v5, 16, v5")
                a("v_and_b32 v6, 1, v5")
                a("v_lshlrev_b32 v6, 4, v6")
                a("v_mov_b32 v7, 0x3f80")
                a("v_lshlrev_b32 v6, v6, v7")
                a("v_lshrrev_b32 v5, 1, v5")
                for r in range(4):
                    a("v_cmp_eq_u32 vcc, %d, v5" % r)
                    a("v_cndmask_b32 v7, 0, v6, vcc")
                    a("v_accvgpr_write_b32 a%d, v7" % (4 * Q + r))

    def c_reads(self, w3, c, ks, nxt):
        A = self.C_FA + 4 * ks; B = self.C_FB + 8 * ks
        out = []
        xo = (c & 7) * 8192
        if w3:
            base = 124 + ks if nxt else 120 + ks
            out.append("ds_read_b128 v[%d:%d], v%d" % (A, A + 3, base))
        else:
            base = self.C_AN if nxt else self.C_AC
            out.append("ds_read_b64_tr_b16 v[%d:%d], v%d offset:%d" % (A, A + 1, base, ks * 3072))
            out.append("ds_read_b64_tr_b16 v[%d:%d], v%d offset:%d" % (A + 2, A + 3, base, ks * 3072 + 768))
        out.append("ds_read_b128 v[%d:%d], v%d offset:%d" % (B, B + 3, self.C_XA + ks, xo))
        out.append("ds_read_b128 v[%d:%d], v%d offset:%d" % (B + 4, B + 7, self.C_XA + ks, xo + 4096))
        return out

    def c_loop(self, w3):
        a = self.a
        nr = 3 if w3 else 4
        ACC = self.C_ACC
        def mfs(ks, first):
            A = self.C_FA + 4 * ks; B = self.C_FB + 8 * ks
            out = []
            for st in range(2):
                D = ACC + 16 * st
                cc = "0" if first else "v[%d:%d]" % (D, D + 15)
                if w3: out.append("v_mfma_f32_32x32x16_bf16 v[%d:%d], v[%d:%d], v[%d:%d], %s" % (D, D + 15, B + 4 * st, B + 4 * st + 3, A, A + 3, cc))
                else: out.append("v_mfma_f32_32x32x16_bf16 v[%d:%d], v[%d:%d], v[%d:%d], %s" % (D, D + 15, A, A + 3, B + 4 * st, B + 4 * st + 3, cc))
            return out
        a("s_mov_b32 s64, %d" % SLOT)
        if w3:
            for ks in range(4): a("v_add_u32 v%d, s%d, v%d" % (120 + ks, S_SLOT, 116 + ks))
        for r in self.c_reads(w3, 0, 0, False): a(r)
        for r in self.c_reads(w3, 0, 1, False): a(r)
        for c in range(8):
            a("s_barrier")
            extra = []
            if w3:
                extra += ["s_add_u32 s%d, s%d, %d" % (S_T1, S_SLOT, SLOT), "s_cmp_eq_u32 s%d, %d" % (S_T1, NSLOT * SLOT), "s_cselect_b32 s%d, 0, s%d" % (S_T1, S_T1),
                          "v_add_u32 v124, s%d, v116" % S_T1, "v_add_u32 v125, s%d, v117" % S_T1]
            for ks in range(4):
                if ks < 2: rd = self.c_reads(w3, c, ks + 2, False)
                else: rd = self.c_reads(w3, c + 1, ks - 2, True)
                if "cnoread" in self.exp: rd = []
                m = mfs(ks, c == 0 and ks == 0)
                if "cnomfma" in self.exp: m = []
                a("s_waitcnt lgkmcnt(%d)" % nr)
                half = (len(rd) + 1) // 2
                if m: a(m[0])
                if ks == 0:
                    for e in extra: a(e)
                for r in rd[:half]: a(r)
                if m: a(m[1])
                for r in rd[half:]: a(r)
                if ks == 3:
                    if w3:
                        a("s_mov_b32 s%d, s%d" % (S_SLOT, S_T1))
                        for k2 in range(4): a("v_add_u32 v%d, s%d, v%d" % (120 + k2, S_SLOT, 116 + k2))
                    else:
                        a("v_mov_b32 v%d, v%d" % (self.C_AC, self.C_AN))
                        a("s_add_u32 s%d, s%d, %d" % (S_SLOT, S_SLOT, SLOT))
                        a("s_cmp_eq_u32 s%d, %d" % (S_SLOT, NSLOT * SLOT))
                        a("s_cselect_b32 s%d, 0x%x, s64" % (S_T1, (-(NSLOT - 1) * SLOT) & 0xffffffff))
                        a("s_cselect_b32 s%d, 0, s%d" % (S_SLOT, S_SLOT))
                        a("v_add_u32 v%d, s%d, v%d" % (self.C_AN, S_T1, self.C_AN))
        a("s_waitcnt lgkmcnt(0)")

    def gelu_epilogue(self, dst):
        a = self.a
        E = 16
        c1 = -2.0 * math.sqrt(2.0 / math.pi) * math.log2(math.e)
        c2 = c1 * 0.044715
        a("v_mov_b32 v6, 0x%x" % f2u(c1))
        a("s_mov_b32 s%d, 0x%x" % (S_K2, f2u(c2)))
        a("s_mov_b32 s%d, 0x%x" % (S_K2 + 1, f2u(c2)))
        for pp in range(0, 16, 2):
            seq = [[], []]
            for u in range(2):
                pre = self.C_ACC + 2 * (pp + u)
                p2, e = E + u * 4, E + u * 4 + 2
                s = seq[u]
                s.append("v_pk_mul_f32 v[%d:%d], v[%d:%d], v[%d:%d]" % (p2, p2 + 1, pre, pre + 1, pre, pre + 1))
                s.append("v_pk_fma_f32 v[%d:%d], v[%d:%d], s[%d:%d], v[6:7] op_sel_hi:[1,1,0]" % (p2, p2 + 1, p2, p2 + 1, S_K2, S_K2 + 1))
                s.append("v_pk_mul_f32 v[%d:%d], v[%d:%d], v[%d:%d]" % (p2, p2 + 1, p2, p2 + 1, pre, pre + 1))
                s.append("v_exp_f32 v%d, v%d" % (e, p2))
                s.append("v_exp_f32 v%d, v%d" % (e + 1, p2 + 1))
                s.append("v_pk_add_f32 v[%d:%d], v[%d:%d], 1.0 op_sel_hi:[1,0]" % (e, e + 1, e, e + 1))
                s.append("v_rcp_f32 v%d, v%d" % (e, e))
                s.append("v_rcp_f32 v%d, v%d" % (e + 1, e + 1))
                s.append("v_pk_mul_f32 v[%d:%d], v[%d:%d], v[%d:%d]" % (e, e + 1, pre, pre + 1, e, e + 1))
                s.append("v_cvt_pk_bf16_f32 v%d, v%d, v%d" % (dst + pp + u, e, e + 1))
            for i in range(len(seq[0])):
                a(seq[0][i]); a(seq[1][i])

    def stats2_partial(self, src):
        a = self.a
        E = 16
        a("v_mov_b32 v24, 0x3f803f80")
        for i in range(4): a("v_mov_b32 v%d, 0" % (E + i))
        for r in range(8):
            for st in range(2):
                a("v_dot2c_f32_bf16 v%d, v%d, v24" % (E + 2 * st, src + 8 * st + r))
                a("v_dot2c_f32_bf16 v%d, v%d, v%d" % (E + 2 * st + 1, src + 8 * st + r, src + 8 * st + r))
        self.hsum([E, E + 1, E + 2, E + 3], E + 4)
        a("s_lshl_b32 s3, s%d, 9" % S_W)
        a("s_add_u32 s3, s3, %d" % LDS_T4)
        a("v_lshlrev_b32 v8, 3, v%d" % V_JL)
        a("v_add_u32 v8, s3, v8")
        a("ds_write_b64 v8, v[%d:%d]" % (E, E + 1))
        a("ds_write_b64 v8, v[%d:%d] offset:256" % (E + 2, E + 3))
        a("s_waitcnt lgkmcnt(0)")

    def dft_store(self, part):
        a = self.a
        a("v_and_b32 v5, 7, v%d" % V_SIG)
        a("v_xor_b32 v5, v5, v%d" % V_H)
        a("v_lshlrev_b32 v5, 4, v5")
        a("v_lshl_add_u32 v5, v%d, 7, v5" % V_SIG)
        a("v_add_u32 v5, %d, v5" % LDS_AT)
        for st in range(2):
            for Q in range(2):
                o = 16 + (st * 2 + Q) * 4
                for p in range(4):
                    acc = self.C_ACC + 16 * st + 8 * Q + 2 * p
                    a("v_cvt_pk_bf16_f32 v%d, v%d, v%d" % (o + p, acc, acc + 1))
                a("v_xor_b32 v6, %d, v5" % ((4 * st + 2 * Q) * 16))
                a("ds_write_b128 v6, v[%d:%d]" % (o, o + 3))
        a("v_lshrrev_b32 v7, 3, v%d" % V_LANE)
        a("v_and_b32 v8, 7, v%d" % V_LANE)
        a("v_xor_b32 v6, v7, v8")
        a("v_lshlrev_b32 v6, 4, v6")
        a("v_lshl_add_u32 v6, v7, 7, v6")
        a("v_add_u32 v6, %d, v6" % LDS_AT)
        a("s_waitcnt lgkmcnt(0)")
        for i in range(4):
            a("ds_read_b128 v[%d:%d], v6 offset:%d" % (32 + 4 * i, 35 + 4 * i, i * 1024))
        a("v_lshlrev_b32 v7, 13, v7")
        a("v_lshl_add_u32 v7, v8, 4, v7")
        a("s_lshl_b32 s%d, s%d, 18" % (S_T0, S_J))
        a("s_lshl_b32 s3, s%d, 7" % S_MB)
        a("s_add_u32 s%d, s%d, s3" % (S_T0, S_T0))
        a("s_add_u32 s%d, s%d, 0x%x" % (S_T0, S_T0, WS_AB + part * 4096))
        a("s_waitcnt lgkmcnt(0)")
        for i in range(4):
            a("buffer_store_dwordx4 v[%d:%d], v7, s[%d:%d], s%d offen sc1" % (32 + 4 * i, 35 + 4 * i, SRD_WS, SRD_WS + 3, S_T0))
            if i < 3: a("s_add_u32 s%d, s%d, %d" % (S_T0, S_T0, 8 * 8192))

    def z2n_publish(self):
        a = self.a
        a("v_lshlrev_b32 v8, 3, v%d" % V_JL)
        a("v_add_u32 v8, %d, v8" % LDS_T5)
        a("ds_read_b64 v[16:17], v8")
        a("ds_read_b64 v[18:19], v8 offset:256")
        a("s_waitcnt lgkmcnt(0)")
        N = 32
        for st in range(2):
            r2 = 16 + 2 * st
            for r in range(8):
                src = self.C_Z2P + 8 * st + r
                t = 20 + 2 * (r % 4)
                a("v_lshlrev_b32 v%d, 16, v%d" % (t, src))
                a("v_and_b32 v%d, 0xffff0000, v%d" % (t + 1, src))
                a("v_pk_fma_f32 v[%d:%d], v[%d:%d], v[%d:%d], v[%d:%d] op_sel:[0,0,1] op_sel_hi:[1,0,1]" % (t, t + 1, t, t + 1, r2, r2 + 1, r2, r2 + 1))
                a("v_cvt_pk_bf16_f32 v%d, v%d, v%d" % (N + 8 * st + r, t, t + 1))
        for st in range(2):
            D = self.C_ACC + 16 * st
            a("v_mfma_f32_32x32x16_bf16 v[%d:%d], v[%d:%d], a[0:3], 0" % (D, D + 15, N + 8 * st, N + 8 * st + 3))
        for st in range(2):
            D = self.C_ACC + 16 * st
            a("v_mfma_f32_32x32x16_bf16 v[%d:%d], v[%d:%d], a[4:7], v[%d:%d]" % (D, D + 15, N + 8 * st + 4, N + 8 * st + 7, D, D + 15))
        a("s_lshl_b32 s%d, s%d, 7" % (S_T0, S_J))
        a("s_lshl_b32 s%d, s%d, 2" % (S_T1, S_MB))
        a("s_add_u32 s%d, s%d, s%d" % (S_T0, S_T0, S_T1))
        a("s_mul_i32 s%d, s%d, 3" % (S_T0, S_T0))
        a("s_add_u32 s%d, s%d, s%d" % (S_T0, S_T0, S_W))
        a("s_lshl_b32 s%d, s%d, 10" % (S_T0, S_T0))
        a("s_add_u32 s%d, s%d, 0x%x" % (S_T0, S_T0, WS_Z2N))
        a("v_lshlrev_b32 v8, 4, v%d" % V_LANE)
        for st in range(2):
            for Q in range(2):
                D = self.C_ACC + 16 * st + 8 * Q
                o = 48 + (st * 2 + Q) * 4
                for p in range(4):
                    a("v_cvt_pk_bf16_f32 v%d, v%d, v%d" % (o + p, D + 2 * p, D + 2 * p + 1))
                a("s_add_u32 s%d, s%d, %d" % (S_T1, S_T0, (2 * st + Q) * 3072))
                a("buffer_store_dwordx4 v[%d:%d], v8, s[%d:%d], s%d offen sc1" % (o, o + 3, SRD_WS, SRD_WS + 3, S_T1))

    def zero_acc(self):
        for i in range(32): self.a("v_mov_b32 v%d, 0" % (self.C_ACC + i))

    def p1_compute(self):
        a = self.a
        a("s_cmp_eq_u32 s%d, 3" % S_W)
        a("s_cbranch_scc1 L_c3")
        self.c_setup(False)
        a("s_mov_b32 s%d, 0" % S_C)
        a("s_mov_b32 s%d, %d" % (S_SLOT, SLOT))
        a("s_mov_b32 s%d, 0" % S_PASS)
        a("s_waitcnt lgkmcnt(0)")
        a("s_barrier")
        if "nopf" not in self.exp: self.prefetch_b()
        self.stamp(1)
        a.label("L_pass")
        self.c_loop(False)
        a("s_cmp_lg_u32 s%d, 0" % S_PASS)
        a("s_cbranch_scc1 L_passB_done")
        self.stamp(2)
        if "nopf" not in self.exp: self.prefetch_wsp()
        self.gelu_epilogue(self.C_Z2P)
        self.stats2_partial(self.C_Z2P)
        a("s_barrier")
        a("v_mov_b32 v6, 0")
        a("buffer_load_dword a8, v6, s[%d:%d], 0 offen sc1" % (SRD_DBG, SRD_DBG + 3))
        a("s_lshl_b32 s%d, s%d, 7" % (S_T0, S_MB))
        a("v_lshlrev_b32 v5, 1, v%d" % V_SIG)
        a("buffer_load_ushort a9, v5, s[%d:%d], s%d offen" % (SRD_BSP, SRD_BSP + 3, S_T0))
        a("buffer_load_ushort a10, v5, s[%d:%d], s%d offen offset:64" % (SRD_BSP, SRD_BSP + 3, S_T0))
        if "nopf" not in self.exp: self.prefetch_wout()
        self.stamp(3)
        a("s_mov_b32 s%d, 1" % S_PASS)
        a("s_branch L_pass")
        a.label("L_passB_done")
        self.stamp(4)
        self.gelu_epilogue(self.C_Z1P)
        a("s_barrier")
        self.stamp(5)
        self.z2n_publish()
        a("s_branch L_c_join")
        a.label("L_c3")
        self.c_setup(True)
        a("s_mov_b32 s%d, 0" % S_C)
        a("s_mov_b32 s%d, 0" % S_SLOT)
        a("s_mov_b32 s%d, 0" % S_PASS)
        a("s_waitcnt lgkmcnt(0)")
        a("s_barrier")
        if "nopf" not in self.exp: self.prefetch_b()
        a.label("L_pass3")
        self.c_loop(True)
        a("s_cmp_lg_u32 s%d, 0" % S_PASS)
        a("s_cbranch_scc1 L_passB3_done")
        if "nopf" not in self.exp: self.prefetch_wsp()
        self.dft_store(0)
        a("s_barrier")
        a("v_mov_b32 v6, 0")
        a("buffer_load_dword a8, v6, s[%d:%d], 0 offen sc1" % (SRD_DBG, SRD_DBG + 3))
        if "nopf" not in self.exp: self.prefetch_wout()
        a("s_mov_b32 s%d, 1" % S_PASS)
        a("s_branch L_pass3")
        a.label("L_passB3_done")
        self.dft_store(1)
        a("s_waitcnt vmcnt(0)")
        a("v_accvgpr_read_b32 v39, a8")
        self.nonce_from(39)
        self.flag_store(1, 3)
        a("s_barrier")
        a.label("L_c_join")

    def fix_x_after_pass(self):
        a = self.a
        a("v_subrev_u32 v%d, 8192, v%d" % (self.C_XA, self.C_XA))
        a("v_subrev_u32 v%d, 8192, v%d" % (self.C_XA + 1, self.C_XA + 1))

    def capture(self, fn):
        save = self.a
        tmp = Asm(); tmp.uid = save.uid + 1000
        self.a = tmp
        fn()
        self.a = save
        save.uid = tmp.uid
        return [i.text for i in tmp.ins]

    def h_loop(self, k0):
        a = self.a
        consts = self.capture(self.fft_consts) if (k0 == 8 and "nofft" not in self.exp) else []
        per = (len(consts) + 7) // 8
        st = self.stage_loads() if k0 == 8 else []
        nst = 0
        for k in range(k0, k0 + 8):
            if k + 1 <= 15 and "hnowait" not in self.exp:
                younger = 4 * (min(k + 3, 15) - (k + 1))
                if nst:
                    lab = a.newlabel("hw")
                    a("s_cmp_ge_u32 s%d, 2" % S_HW)
                    a("s_cbranch_scc1 %s_b" % lab)
                    a("s_waitcnt vmcnt(%d)" % (younger + nst))
                    a("s_branch %s_d" % lab)
                    a.label(lab + "_b")
                    a("s_waitcnt vmcnt(%d)" % younger)
                    a.label(lab + "_d")
                else:
                    a("s_waitcnt vmcnt(%d)" % younger)
            a("s_barrier")
            if k + 4 <= 15: self.dma_chunk(k + 4)
            if k == 9:
                a("s_cmp_lg_u32 s%d, 0" % S_HW)
                a("s_cbranch_scc1 L_h_nf0")
                a("s_waitcnt vmcnt(8)")
                self.flag_store(0)
                a.label("L_h_nf0")
            if k == 11:
                self.wsp_voffsets(96)
                a("s_lshl_b32 s%d, s%d, 18" % (S_T1, S_MB))
                a("s_lshl_b32 s3, s%d, 10" % S_HW)
                a("s_add_u32 s%d, s%d, s3" % (S_T1, S_T1))
                a("s_add_u32 s67, s%d, %d" % (S_T1, 2 * 256))
                a("s_add_u32 s68, s%d, %d" % (S_T1, 3 * 256))
                a("s_add_u32 s69, s%d, %d" % (S_T1, 2 * 1024 + 2 * 256))
            if k0 == 0: continue
            lab = a.newlabel("role")
            a("s_cmp_lt_u32 s%d, 2" % S_HW)
            a("s_cbranch_scc1 %s_s" % lab)
            if consts:
                for t in consts[(k - k0) * per:(k - k0 + 1) * per]: a(t)
            a("s_branch %s_d" % lab)
            a.label(lab + "_s")
            if st and k >= 12:
                n = 12
                for t in st[2 * nst:2 * (nst + n)]: a(t)
                nst += n
            a.label(lab + "_d")

    def stats2_publish(self):
        a = self.a
        E = 16
        a("v_lshlrev_b32 v8, 3, v%d" % V_JL)
        a("v_add_u32 v8, %d, v8" % LDS_T4)
        for w in range(3):
            for st in range(2):
                d = E + w * 4 + st * 2
                a("ds_read_b64 v[%d:%d], v8 offset:%d" % (d, d + 1, w * 512 + st * 256))
        a("s_waitcnt lgkmcnt(0)")
        for w in range(1, 3):
            for st in range(2):
                a("v_pk_add_f32 v[%d:%d], v[%d:%d], v[%d:%d]" % (E + st * 2, E + st * 2 + 1, E + st * 2, E + st * 2 + 1, E + w * 4 + st * 2, E + w * 4 + st * 2 + 1))
        a("s_lshl_b32 s%d, s%d, 3" % (S_T0, S_MB))
        a("s_add_u32 s%d, s%d, s%d" % (S_T0, S_T0, S_J))
        a("s_lshl_b32 s%d, s%d, 9" % (S_T0, S_T0))
        a("s_add_u32 s%d, s%d, 0x%x" % (S_T0, S_T0, WS_STATS))
        a("v_lshlrev_b32 v8, 4, v%d" % V_JL)
        a("s_mov_b32 exec_hi, 0")
        a("buffer_store_dwordx4 v[%d:%d], v8, s[%d:%d], s%d offen sc1" % (E, E + 3, SRD_WS, SRD_WS + 3, S_T0))
        a("s_mov_b64 exec, -1")

    def stats2_consume(self):
        a = self.a
        E = 16
        a("v_lshlrev_b32 v8, 5, v%d" % V_LANE)
        a("v_add_u32 v8, s%d, v8" % S_MB)
        a("v_lshlrev_b32 v8, 7, v8")
        self.poll_flags(8, 8)
        a("s_lshl_b32 s%d, s%d, 12" % (S_T0, S_MB))
        a("s_add_u32 s%d, s%d, 0x%x" % (S_T0, S_T0, WS_STATS))
        a("v_lshlrev_b32 v8, 4, v%d" % V_JL)
        for jj in range(8):
            a("buffer_load_dwordx4 v[%d:%d], v8, s[%d:%d], s%d offen offset:%d sc1" % (E + 4 * jj, E + 3 + 4 * jj, SRD_WS, SRD_WS + 3, S_T0, jj * 512))
        a("s_waitcnt vmcnt(0)")
        for jj in range(1, 8):
            for q in range(2):
                a("v_pk_add_f32 v[%d:%d], v[%d:%d], v[%d:%d]" % (E + 2 * q, E + 1 + 2 * q, E + 2 * q, E + 1 + 2 * q, E + 4 * jj + 2 * q, E + 1 + 4 * jj + 2 * q))
        for st in range(2):
            self.mean_rstd(E + 2 * st, E + 1 + 2 * st, 688, E + 4 + 2 * st, E + 5 + 2 * st, E + 10)
        a("v_lshlrev_b32 v8, 3, v%d" % V_JL)
        a("v_add_u32 v8, %d, v8" % LDS_T5)
        a("ds_write_b64 v8, v[%d:%d]" % (E + 4, E + 5))
        a("ds_write_b64 v8, v[%d:%d] offset:256" % (E + 6, E + 7))
        a("s_waitcnt lgkmcnt(0)")

    def angles(self, n_list, tq, base, dst):
        a = self.a
        for idx, n in enumerate(n_list):
            if n == 0: a("v_mov_b32 v%d, v%d" % (dst + idx, base))
            else: a("v_fmamk_f32 v%d, v%d, 0x%x, v%d" % (dst + idx, tq, f2u(float(n)), base))

    H_T1F, H_8H = 46, 47
    def fft_consts(self):
        a = self.a
        T = 16
        a("v_bfe_u32 v%d, v%d, 2, 1" % (T, V_JL))
        a("v_lshlrev_b32 v%d, 4, v%d" % (T, T))
        a("v_bfe_u32 v%d, v%d, 3, 2" % (T + 1, V_JL))
        a("v_lshl_or_b32 v%d, v%d, 2, v%d" % (T, T + 1, T))
        a("v_and_b32 v%d, 3, v%d" % (T + 1, V_JL))
        a("v_or_b32 v%d, v%d, v%d" % (T, T, T + 1))
        a("v_cvt_f32_u32 v%d, v%d" % (self.H_T1F, T))
        a("v_cvt_f32_u32 v%d, v%d" % (self.H_8H, V_H))
        a("v_mul_f32 v%d, 0x%x, v%d" % (self.H_8H, f2u(8.0), self.H_8H))
        a("v_mul_f32 v%d, 0x%x, v%d" % (T + 2, f2u(1.0 / 32), self.H_T1F))
        a("v_mul_f32 v%d, v%d, v%d" % (T + 3, T + 2, self.H_8H))
        A = T + 4; C = T + 12; S = T + 20
        for ks in range(2):
            self.angles([16 * ks + i for i in range(8)], T + 2, T + 3, A)
            for i in range(8): a("v_fract_f32 v%d, v%d" % (A + i, A + i))
            for i in range(8):
                a("v_cos_f32 v%d, v%d" % (C + i, A + i))
                a("v_sin_f32 v%d, v%d" % (S + i, A + i))
            for p in range(4):
                a("v_cvt_pk_bf16_f32 v%d, v%d, v%d" % (A + 0, C + 2 * p, C + 2 * p + 1))
                a("v_cvt_pk_bf16_f32 v%d, -v%d, -v%d" % (A + 1, S + 2 * p, S + 2 * p + 1))
                a("v_cvt_pk_bf16_f32 v%d, v%d, v%d" % (A + 2, S + 2 * p, S + 2 * p + 1))
                a("v_accvgpr_write_b32 a%d, v%d" % (4 * ks + p, A + 0))
                a("v_accvgpr_write_b32 a%d, v%d" % (8 + 4 * ks + p, A + 1))
                a("v_accvgpr_write_b32 a%d, v%d" % (16 + 4 * ks + p, A + 2))
        a("v_accvgpr_write_b32 a60, v%d" % self.H_T1F)
        a("v_accvgpr_write_b32 a61, v%d" % self.H_8H)
        a("s_sub_u32 s3, s%d, 2" % S_HW)
        a("s_lshl_b32 s3, s3, 5")
        a("v_add_u32 v%d, s3, v%d" % (T + 2, V_JL))
        a("v_cvt_f32_u32 v%d, v%d" % (T + 2, T + 2))
        a("v_mul_f32 v%d, 0x%x, v%d" % (T + 2, f2u(1.0 / 64), T + 2))
        a("v_mul_f32 v%d, v%d, v%d" % (T + 3, T + 2, self.H_8H))
        for kt in range(2):
            for kp in range(2):
                self.angles([32 * kt + 16 * kp + i for i in range(8)], T + 2, T + 3, A)
                for i in range(8): a("v_fract_f32 v%d, v%d" % (A + i, A + i))
                for i in range(8):
                    a("v_cos_f32 v%d, v%d" % (C + i, A + i))
                    a("v_sin_f32 v%d, v%d" % (S + i, A + i))
                for p in range(4):
                    a("v_cvt_pk_bf16_f32 v%d, v%d, v%d" % (A + 0, C + 2 * p, C + 2 * p + 1))
                    a("v_cvt_pk_bf16_f32 v%d, v%d, v%d" % (A + 1, S + 2 * p, S + 2 * p + 1))
                    a("v_accvgpr_write_b32 a%d, v%d" % (24 + 16 * kt + 4 * kp + p, A + 0))
                    a("v_accvgpr_write_b32 a%d, v%d" % (24 + 16 * kt + 8 + 4 * kp + p, A + 1))

    def p1_helper(self):
        a = self.a
        a("s_mov_b32 s%d, 0" % S_C)
        a("v_mov_b32 v6, 0")
        a("buffer_load_dword v%d, v6, s[%d:%d], 0 offen sc1" % (self.V_NON, SRD_DBG, SRD_DBG + 3))
        a("s_waitcnt vmcnt(13) lgkmcnt(0)")
        a("s_barrier")
        self.h_loop(0)
        self.nonce_from(self.V_NON)
        a("s_barrier")
        a("s_cmp_lg_u32 s%d, 0" % S_HW)
        a("s_cbranch_scc1 L_h_nopub")
        self.stats2_publish()
        a.label("L_h_nopub")
        self.h_loop(8)
        a("s_cmp_lg_u32 s%d, 2" % S_HW)
        a("s_cbranch_scc1 L_h_nocons")
        self.stats2_consume()
        a.label("L_h_nocons")
        a("s_barrier")

    G_B = 16
    G_VB = 10
    G_VZ = 32
    G_L16 = 35
    G_BS = 36
    G_RV = 40
    def ring_reg(self, f):
        if f < 8: return "a[%d:%d]" % (96 + 4 * f, 96 + 4 * f + 3)
        r = self.G_RV + 4 * (f - 8)
        return "v[%d:%d]" % (r, r + 3)

    def g_compute(self):
        a = self.a
        a("v_lshlrev_b32 v%d, 4, v%d" % (self.G_L16, V_LANE))
        a("v_and_b32 v5, 15, v%d" % V_SIG)
        a("v_xor_b32 v5, v5, v%d" % V_H)
        a("v_lshlrev_b32 v5, 4, v5")
        a("v_lshl_add_u32 v5, v%d, 8, v5" % V_SIG)
        a("s_lshl_b32 s3, s%d, 15" % S_W)
        a("v_add_u32 v104, s3, v5")
        for k in range(1, 8): a("v_xor_b32 v%d, %d, v104" % (104 + k, k * 32))
        a("s_sub_u32 s%d, s%d, 64" % (S_T2, S_WID))
        for tau in range(3):
            a("s_add_u32 s%d, s%d, %d" % (S_T0, S_W, tau))
            a("s_cmp_ge_u32 s%d, 3" % S_T0)
            a("s_cselect_b32 s%d, 3, 0" % S_T1)
            a("s_sub_u32 s%d, s%d, s%d" % (S_T0, S_T0, S_T1))
            a("s_lshl_b32 s%d, s%d, 10" % (S_T1, S_T0))
            a("v_add_u32 v5, s%d, v%d" % (S_T1, self.G_L16))
            a("v_mov_b32 v6, 0x%x" % OOB)
            a("v_cmp_le_u32 vcc, s%d, v%d" % (S_T2, V_SIG))
            a("s_cmp_eq_u32 s%d, 2" % S_T0)
            a("s_cselect_b64 s[%d:%d], vcc, 0" % (S_EX, S_EX + 1))
            a("v_cndmask_b32 v%d, v5, v6, s[%d:%d]" % (self.G_VZ + tau, S_EX, S_EX + 1))
        a("s_lshl_b32 s3, s%d, 5" % S_J)
        a("s_lshl_b32 s%d, s%d, 3" % (S_T0, S_W))
        a("s_add_u32 s3, s3, s%d" % S_T0)
        a("v_add_u32 v38, s3, v%d" % V_LANE)
        a("v_lshlrev_b32 v38, 7, v38")
        a("v_add_u32 v38, 0x%x, v38" % (WS_FLAG + 256 * 128))
        a("s_lshl_b32 s%d, s%d, 7" % (S_B0, S_J))
        a("s_lshl_b32 s3, s%d, 5" % S_W)
        a("s_add_u32 s%d, s%d, s3" % (S_B0, S_B0))
        a("s_mov_b32 s%d, 0" % S_RHO)
        for cc in range(4):
            a("s_add_u32 s3, s%d, %d" % (S_RHO, cc))
            a("s_and_b32 s3, s3, 3")
            a("s_lshl_b32 s3, s3, 3")
            a("s_add_u32 s3, s3, s%d" % S_B0)
            a("s_mul_i32 s3, s3, 3072")
            a("s_add_u32 s%d, s3, 0x%x" % (67 + cc, WS_Z2N))
        a("s_waitcnt vmcnt(0)")
        a("s_cmp_eq_u32 s%d, 3" % S_W)
        a("s_cbranch_scc1 L_g_nf")
        a("v_accvgpr_read_b32 v39, a8")
        self.nonce_from(39)
        self.flag_store(1, 0, S_W)
        a.label("L_g_nf")
        a("v_accvgpr_read_b32 v%d, a9" % self.G_BS)
        a("v_accvgpr_read_b32 v%d, a10" % (self.G_BS + 1))
        self.stamp(7)
        self.poll_flags_n(38, 8, 3, 16)
        self.stamp(8)
        self.stamp(26)
        vq = VQ(a)
        def zload(n):
            a("s_add_u32 s%d, s%d, %d" % (S_T0, 67 + n // 8, (n % 8) * 3072))
            for tau in range(3):
                f = (n % 8) * 3 + tau
                a("buffer_load_dwordx4 %s, v%d, s[%d:%d], s%d offen %s" % (self.ring_reg(f), self.G_VZ + tau, SRD_WS, SRD_WS + 3, S_T0, "" if "gplain" in self.exp else "sc1"))
                vq.issue(("z", n))
        for n in range(8): zload(n)
        B = self.G_B
        SY_FREE = LDS_SY + 0
        SY_LAND = LDS_SY + 16
        a("s_lshl_b32 s3, s%d, 2" % S_W)
        a("s_add_u32 s3, s3, %d" % LDS_SY)
        a("v_mov_b32 v14, s3")
        def land_check(cnt):
            lab = a.newlabel("ld")
            a("s_mov_b32 s%d, 0" % S_SPIN)
            a.label(lab)
            a("ds_read_b32 v15, v14 offset:16")
            a("s_waitcnt lgkmcnt(0)")
            a("v_readfirstlane_b32 s%d, v15" % S_T1)
            a("s_add_u32 s%d, s%d, 1" % (S_SPIN, S_SPIN))
            a("s_cmp_gt_u32 s%d, 0x100000" % S_SPIN)
            a("s_cbranch_scc1 %s_x" % lab)
            a("s_cmp_lt_u32 s%d, %d" % (S_T1, cnt))
            a("s_cbranch_scc1 %s" % lab)
            a.label(lab + "_x")
        def bread(n, st):
            cc, k = divmod(n, 8)
            r = B + (n & 1) * 8 + st * 4
            return "ds_read_b128 v[%d:%d], v%d offset:%d" % (r, r + 3, 104 + k, (cc & 1) * 16384 + st * 8192)
        land_check(2)
        a(bread(0, 0)); a(bread(0, 1))
        for n in range(32):
            cc, k = divmod(n, 8)
            buf = n & 1
            vq.wait(("z", n))
            nxt = n + 1 < 32
            if nxt and (n + 1) % 8 == 0 and (n + 1) // 8 >= 2 and "gnoland" not in self.exp:
                a("s_waitcnt lgkmcnt(0)")
                land_check((n + 1) // 8 + 1)
            else:
                a("s_waitcnt lgkmcnt(0)")
            fill = []
            if nxt: fill += [bread(n + 1, 0), bread(n + 1, 1)]
            zl = []
            if n + 8 < 32:
                zl.append("s_add_u32 s%d, s%d, %d" % (S_T0, 67 + (n + 8) // 8, ((n + 8) % 8) * 3072))
            mi = 0
            for tau in range(3):
                for st in range(2):
                    D = (tau * 2 + st) * 16
                    Br = B + buf * 8 + st * 4
                    cc_ = "0" if n == 0 else "a[%d:%d]" % (D, D + 15)
                    a("v_mfma_f32_32x32x16_bf16 a[%d:%d], %s, v[%d:%d], %s" % (D, D + 15, self.ring_reg((n % 8) * 3 + tau), Br, Br + 3, cc_))
                    if mi == 0:
                        for f in fill: a(f)
                        for f in zl: a(f)
                    if st == 1 and n + 8 < 32 and "gnoz" not in self.exp:
                        f = (n % 8) * 3 + tau
                        a("buffer_load_dwordx4 %s, v%d, s[%d:%d], s%d offen %s" % (self.ring_reg(f), self.G_VZ + tau, SRD_WS, SRD_WS + 3, S_T0, "" if "gplain" in self.exp else "sc1"))
                        vq.issue(("z", n + 8))
                    mi += 1
            if k == 7 and cc < 2:
                a("v_mov_b32 v15, %d" % (cc + 1))
                a("ds_write_b32 v14, v15")
        self.stamp(27)
        self.stamp(10)
        self.g_reduce()

    def wsp_dma16(self, cc, sbase, slds):
        a = self.a
        for q in range(16):
            a("s_add_u32 s%d, s%d, %d" % (S_T0, 67 + cc, q * 4 * 4096))
            a("s_add_u32 m0, s%d, %d" % (slds, (cc & 1) * 16384 + q * 1024))
            a("buffer_load_dwordx4 v%d, s[%d:%d], s%d offen lds" % (16 + (q & 3), SRD_WSP, SRD_WSP + 3, S_T0))

    def wsp_voffsets(self, base):
        a = self.a
        L = V_LANE
        a("v_lshrrev_b32 v5, 4, v%d" % L)
        a("v_and_b32 v6, 15, v%d" % L)
        for qq in range(4):
            a("v_add_u32 v7, %d, v5" % (4 * qq))
            a("v_xor_b32 v7, v7, v6")
            a("v_lshlrev_b32 v7, 4, v7")
            a("v_lshl_add_u32 v%d, v5, 12, v7" % (base + qq))

    def stage_reg(self, unit, q):
        if unit < 2:
            r = unit * 64 + 4 * q
            return "a[%d:%d]" % (r, r + 3)
        r = 32 + 4 * q
        return "v[%d:%d]" % (r, r + 3)

    def stage_loads(self):
        out = []
        for unit in range(3):
            for q in range(16):
                out.append("s_add_u32 s%d, s%d, %d" % (S_T0, 67 + unit, q * 4 * 4096))
                out.append("buffer_load_dwordx4 %s, v%d, s[%d:%d], s%d offen" % (self.stage_reg(unit, q), 96 + (q & 3), SRD_WSP, SRD_WSP + 3, S_T0))
        return out

    def g_helper(self):
        a = self.a
        L = V_LANE
        self.wsp_voffsets(16)
        a("s_lshl_b32 s%d, s%d, 18" % (S_B0, S_MB))
        a("s_lshl_b32 s3, s%d, 10" % S_HW)
        a("s_add_u32 s%d, s%d, s3" % (S_B0, S_B0))
        a("s_mov_b32 s70, s%d" % S_B0)
        a("s_add_u32 s71, s%d, 256" % S_B0)
        a("s_lshl_b32 s%d, s%d, 15" % (S_T3, S_HW))
        for cc in range(2):
            for q in range(16):
                a("s_add_u32 s%d, s%d, %d" % (S_T0, 70 + cc, q * 4 * 4096))
                a("s_add_u32 m0, s%d, %d" % (S_T3, cc * 16384 + q * 1024))
                a("buffer_load_dwordx4 v%d, s[%d:%d], s%d offen lds" % (16 + (q & 3), SRD_WSP, SRD_WSP + 3, S_T0))
        a("s_lshl_b32 s3, s%d, 2" % S_HW)
        a("s_add_u32 s3, s3, %d" % LDS_SY)
        a("v_mov_b32 v12, s3")
        def wait_free(off, cnt):
            lab = a.newlabel("fr")
            a("s_mov_b32 s%d, 0" % S_SPIN)
            a.label(lab)
            a("ds_read_b32 v5, v12 offset:%d" % off)
            a("s_waitcnt lgkmcnt(0)")
            a("v_readfirstlane_b32 s%d, v5" % S_T0)
            a("s_add_u32 s%d, s%d, 1" % (S_SPIN, S_SPIN))
            a("s_cmp_gt_u32 s%d, 0x100000" % S_SPIN)
            a("s_cbranch_scc1 %s_x" % lab)
            a("s_cmp_lt_u32 s%d, %d" % (S_T0, cnt))
            a("s_cbranch_scc0 %s_x" % lab)
            a("s_sleep 1")
            a("s_branch %s" % lab)
            a.label(lab + "_x")
        a("s_cmp_ge_u32 s%d, 2" % S_HW)
        a("s_cbranch_scc1 L_gh_fft")
        a("s_waitcnt vmcnt(0)")
        a("v_mov_b32 v6, 2")
        a("ds_write_b32 v12, v6 offset:16")
        a("v_lshlrev_b32 v13, 4, v%d" % L)
        a("s_lshl_b32 s3, s%d, 15" % S_HW)
        a("v_add_u32 v13, s3, v13")
        a("v_add_u32 v14, 65536, v13")
        def put(unit, vaddr, slot, landoff, cnt):
            for q in range(16 if "noput" not in self.exp else 0):
                a("ds_write_b128 v%d, %s offset:%d" % (vaddr, self.stage_reg(unit, q), slot * 16384 + q * 1024))
            a("v_mov_b32 v6, %d" % cnt)
            a("s_waitcnt lgkmcnt(0)")
            a("ds_write_b32 v12, v6 offset:%d" % landoff)
        wait_free(0, 1); put(0, 13, 0, 16, 3)
        for q in range(16):
            a("s_add_u32 s%d, s69, %d" % (S_T0, 256 + q * 4 * 4096))
            a("buffer_load_dwordx4 a[%d:%d], v%d, s[%d:%d], s%d offen" % (4 * q, 4 * q + 3, 96 + (q & 3), SRD_WSP, SRD_WSP + 3, S_T0))
        wait_free(8, 1); put(2, 14, 0, 24, 3)
        wait_free(0, 2); put(1, 13, 1, 16, 4)
        wait_free(8, 2)
        a("s_waitcnt vmcnt(0)")
        put(0, 14, 1, 24, 4)
        a("s_branch L_gh_done")
        a.label("L_gh_fft")
        a("s_waitcnt vmcnt(0)")
        a("v_mov_b32 v6, 2")
        a("ds_write_b32 v12, v6 offset:16")
        if "nofft" not in self.exp:
            a("s_setprio 3")
            self.fft()
            a("s_setprio 0")
        a("s_waitcnt vmcnt(0)")
        a("s_sub_u32 s%d, s%d, 2" % (S_T1, S_HW))
        self.flag_store(3, 0, S_T1)
        self.stamp(19)
        a.label("L_gh_done")
        self.stamp(9)
        a("s_barrier")
        a("v_lshrrev_b32 v5, 3, v%d" % L)
        a("v_and_b32 v6, 7, v%d" % L)
        a("v_bfe_u32 v7, v%d, 4, 1" % L)
        a("v_lshlrev_b32 v7, 2, v7")
        a("v_xor_b32 v6, v6, v7")
        a("v_lshlrev_b32 v6, 4, v6")
        a("v_lshl_add_u32 v9, v5, 10, v6")
        a("s_lshl_b32 s3, s%d, 7" % S_J)
        a("v_add_u32 v9, s3, v9")
        a("s_add_u32 s3, s%d, s%d" % (S_HW, S_MB))
        a("s_and_b32 s3, s3, 3")
        a("s_mul_i32 s%d, s3, %d" % (S_T1, 22 * 8192))
        a("s_mul_i32 s%d, s3, %d" % (S_T2, 22 * 1024))
        for q in range(22):
            if q == 8: a("s_barrier")
            a("s_add_u32 m0, s%d, %d" % (S_T2, LDS_WO + q * 1024))
            a("s_add_u32 s%d, s%d, %d" % (S_T0, S_T1, q * 8192))
            a("buffer_load_dwordx4 v9, s[%d:%d], s%d offen lds" % (SRD_WOUT, SRD_WOUT + 3, S_T0))
        self.final_pre()
        a("s_waitcnt vmcnt(18)")
        a("s_barrier")
        a("s_barrier")
        self.final_h()

    def fft(self):
        a = self.a
        a("v_accvgpr_read_b32 v10, a60")
        a("v_accvgpr_read_b32 v11, a61")
        a("s_lshl_b32 s3, s%d, 5" % S_J)
        a("v_add_u32 v12, s3, v%d" % V_LANE)
        a("v_lshlrev_b32 v12, 7, v12")
        a("v_add_u32 v12, 0x%x, v12" % (WS_FLAG + 256 * 128 + 12))
        self.stamp(16)
        self.poll_flags_n(12, 32, 1, 16)
        self.stamp(17)
        a("v_lshlrev_b32 v13, 4, v%d" % V_LANE)
        a("s_lshl_b32 s3, s%d, 13" % S_L)
        a("s_add_u32 s3, s3, 0x%x" % WS_AB)
        X = 32
        for i in range(8):
            a("buffer_load_dwordx4 v[%d:%d], v13, s[%d:%d], s3 offen sc1" % (X + 4 * i, X + 4 * i + 3, SRD_WS, SRD_WS + 3))
            if i < 7: a("s_add_u32 s3, s3, 1024")
        a("s_sub_u32 s%d, s%d, 2" % (S_T1, S_HW))
        a("s_lshl_b32 s%d, s%d, 13" % (S_T2, S_T1))
        a("s_add_u32 s%d, s%d, %d" % (S_T2, S_T2, LDS_FX))
        a("v_add_u32 v14, s%d, v13" % S_T2)
        a("v_bfe_u32 v7, v%d, 2, 2" % V_LANE)
        a("v_lshl_add_u32 v7, v%d, 3, v7" % V_H)
        a("v_lshlrev_b32 v7, 7, v7")
        a("v_bfe_u32 v8, v%d, 4, 1" % V_LANE)
        a("v_lshlrev_b32 v8, 5, v8")
        a("v_and_b32 v9, 1, v%d" % V_LANE)
        a("v_lshl_add_u32 v8, v9, 4, v8")
        a("v_bfe_u32 v9, v%d, 1, 1" % V_LANE)
        a("v_lshl_add_u32 v8, v9, 3, v8")
        a("v_add_u32 v7, v7, v8")
        a("v_add_u32 v15, s%d, v7" % S_T2)
        a("s_waitcnt vmcnt(0)")
        self.stamp(18)
        for i in range(8):
            a("ds_write_b128 v14, v[%d:%d] offset:%d" % (X + 4 * i, X + 4 * i + 3, i * 1024))
        URE, UIM, A1, TC, TS, A2 = 32, 48, 16, 64, 80, 104
        D2 = 64
        def mm(D, A, B, first, dfile="v", afile="v", bfile="a"):
            a("v_mfma_f32_32x32x16_bf16 %s[%d:%d], %s[%d:%d], %s[%d:%d], %s" % (dfile, D, D + 15, afile, A, A + 3, bfile, B, B + 3, "0" if first else "%s[%d:%d]" % (dfile, D, D + 15)))
        for kt in range(2):
            a("v_mul_f32 v12, 0x%x, v10" % (f2u(1.0 / 2048)))
            a("v_mul_f32 v13, v12, v11")
            if kt == 0: a("s_waitcnt lgkmcnt(0)")
            for ks in range(4):
                for q in range(2):
                    r = A1 + 4 * ks + 2 * q
                    a("ds_read_b64_tr_b16 v[%d:%d], v15 offset:%d" % (r, r + 1, (ks >> 1) * 4096 + (ks & 1) * 2048 + q * 512 + kt * 64))
            for half in range(2):
                self.angles([32 * kt + 16 * half + i for i in range(8)], 12, 13, 120)
                for i in range(8):
                    a("v_cos_f32 v%d, v%d" % (TC + 8 * half + i, 120 + i))
                    a("v_sin_f32 v%d, v%d" % (TS + 8 * half + i, 120 + i))
            a("s_waitcnt lgkmcnt(0)")
            FRE, FIM, NFIM = 0, 8, 16
            mm(URE, A1, FRE, True); mm(UIM, A1, FIM, True)
            mm(URE, A1 + 4, FRE + 4, False); mm(UIM, A1 + 4, FIM + 4, False)
            mm(URE, A1 + 8, NFIM, False); mm(UIM, A1 + 8, FRE, False)
            mm(URE, A1 + 12, NFIM + 4, False); mm(UIM, A1 + 12, FRE + 4, False)
            for p in range(8):
                t0 = 96 + (p % 2) * 4
                for e in range(2):
                    re, im, c, s_ = URE + 2 * p + e, UIM + 2 * p + e, TC + 2 * p + e, TS + 2 * p + e
                    a("v_mul_f32 v%d, v%d, v%d" % (t0 + e, im, s_))
                    a("v_mul_f32 v%d, v%d, v%d" % (t0 + 2 + e, re, s_))
                    a("v_fmac_f32 v%d, v%d, v%d" % (t0 + e, re, c))
                    a("v_fma_f32 v%d, v%d, v%d, -v%d" % (t0 + 2 + e, im, c, t0 + 2 + e))
                a("v_cvt_pk_bf16_f32 v%d, v%d, v%d" % (A2 + p, t0, t0 + 1))
                a("v_cvt_pk_bf16_f32 v%d, v%d, v%d" % (A2 + 8 + p, t0 + 2, t0 + 3))
            G = 24 + 16 * kt
            mm(D2, A2, G, kt == 0, dfile="a"); mm(D2, A2 + 4, G + 4, False, dfile="a")
            mm(D2, A2 + 8, G + 8, False, dfile="a"); mm(D2, A2 + 12, G + 12, False, dfile="a")
        a("v_lshlrev_b32 v6, 7, v%d" % V_JL)
        a("v_lshl_add_u32 v6, v%d, 6, v6" % V_H)
        a("v_add_u32 v6, s%d, v6" % S_T2)
        for q in range(4):
            a("ds_write_b128 v6, a[%d:%d] offset:%d" % (D2 + 4 * q, D2 + 4 * q + 3, q * 16))
        a("s_waitcnt lgkmcnt(0)")
        for q in range(4):
            a("ds_read_b128 v[%d:%d], v14 offset:%d" % (32 + 4 * q, 35 + 4 * q, q * 1024))
        a("s_lshl_b32 s3, s%d, 12" % S_T1)
        a("s_lshl_b32 s%d, s%d, 13" % (S_T0, S_L))
        a("s_add_u32 s3, s3, s%d" % S_T0)
        a("s_add_u32 s3, s3, 0x%x" % WS_YT)
        a("v_lshlrev_b32 v6, 4, v%d" % V_LANE)
        a("s_waitcnt lgkmcnt(0)")
        for q in range(4):
            a("buffer_store_dwordx4 v[%d:%d], v6, s[%d:%d], s3 offen offset:%d sc1" % (32 + 4 * q, 35 + 4 * q, SRD_WS, SRD_WS + 3, q * 1024))

    def g_reduce(self):
        a = self.a
        L16 = self.G_L16
        a("s_barrier")
        for tau in (1, 2, 0):
            if tau == 0:
                a("s_cmp_lg_u32 s%d, 3" % S_W)
                a("s_cbranch_scc1 L_exp_done")
            a("s_add_u32 s%d, s%d, %d" % (S_T0, S_W, tau))
            a("s_cmp_ge_u32 s%d, 3" % S_T0)
            a("s_cselect_b32 s%d, 3, 0" % S_T1)
            a("s_sub_u32 s%d, s%d, s%d" % (S_T0, S_T0, S_T1))
            a("s_sub_u32 s%d, s%d, s%d" % (S_T1, S_W, S_T0))
            a("s_sub_u32 s%d, s%d, 1" % (S_T1, S_T1))
            a("s_and_b32 s%d, s%d, 3" % (S_T1, S_T1))
            a("s_mul_i32 s%d, s%d, 3" % (S_T0, S_T0))
            a("s_add_u32 s%d, s%d, s%d" % (S_T0, S_T0, S_T1))
            a("s_lshl_b32 s%d, s%d, 13" % (S_T0, S_T0))
            a("v_add_u32 v5, s%d, v%d" % (S_T0, L16))
            for st in range(2):
                for q in range(4):
                    r = (tau * 2 + st) * 16 + 4 * q
                    a("ds_write_b128 v5, a[%d:%d] offset:%d" % (r, r + 3, st * 4096 + q * 1024))
        a.label("L_exp_done")
        a("s_waitcnt lgkmcnt(0)")
        a("s_barrier")
        self.stamp(11)
        a("s_cmp_eq_u32 s%d, 3" % S_W)
        a("s_cbranch_scc1 L_h_done")
        G = 40
        I = 72
        a("s_mul_i32 s%d, s%d, %d" % (S_T0, S_W, 3 * 8192))
        a("v_add_u32 v5, s%d, v%d" % (S_T0, L16))
        for st in range(2):
            for q in range(4):
                r = G + st * 16 + 4 * q
                a("ds_read_b128 v[%d:%d], v5 offset:%d" % (r, r + 3, 0 * 8192 + st * 4096 + q * 1024))
        for st in range(2):
            for q in range(4):
                r = I + st * 16 + 4 * q
                a("ds_read_b128 v[%d:%d], v5 offset:%d" % (r, r + 3, 1 * 8192 + st * 4096 + q * 1024))
        a("s_waitcnt lgkmcnt(0)")
        for p in range(16): a("v_pk_add_f32 v[%d:%d], v[%d:%d], v[%d:%d]" % (G + 2 * p, G + 2 * p + 1, G + 2 * p, G + 2 * p + 1, I + 2 * p, I + 2 * p + 1))
        for st in range(2):
            for q in range(4):
                r = I + st * 16 + 4 * q
                a("ds_read_b128 v[%d:%d], v5 offset:%d" % (r, r + 3, 2 * 8192 + st * 4096 + q * 1024))
        for i in range(0, 32, 8):
            for k in range(8): a("v_accvgpr_read_b32 v%d, a%d" % (16 + k, i + k))
            for p in range(4): a("v_pk_add_f32 v[%d:%d], v[%d:%d], v[%d:%d]" % (G + i + 2 * p, G + i + 2 * p + 1, G + i + 2 * p, G + i + 2 * p + 1, 16 + 2 * p, 16 + 2 * p + 1))
        a("s_waitcnt lgkmcnt(0)")
        for p in range(16): a("v_pk_add_f32 v[%d:%d], v[%d:%d], v[%d:%d]" % (G + 2 * p, G + 2 * p + 1, G + 2 * p, G + 2 * p + 1, I + 2 * p, I + 2 * p + 1))
        for st in range(2): a("v_lshlrev_b32 v%d, 16, v%d" % (self.G_BS + st, self.G_BS + st))
        for st in range(2):
            for r in range(8):
                src = self.C_Z1P + 8 * st + r
                g = G + 16 * st + 2 * r
                t = 16 + 2 * (r % 4)
                a("v_lshlrev_b32 v%d, 16, v%d" % (t, src))
                a("v_and_b32 v%d, 0xffff0000, v%d" % (t + 1, src))
                sel = "op_sel:[0,%d] op_sel_hi:[1,%d]" % (st, st)
                a("v_pk_add_f32 v[%d:%d], v[%d:%d], v[%d:%d] %s" % (g, g + 1, g, g + 1, self.G_BS, self.G_BS + 1, sel))
                a("v_pk_mul_f32 v[%d:%d], v[%d:%d], v[%d:%d]" % (g, g + 1, g, g + 1, t, t + 1))
                a("v_cvt_pk_bf16_f32 v%d, v%d, v%d" % (I + 8 * st + r, g, g + 1))
        a("s_mul_i32 s%d, s%d, 96" % (S_T0, S_MB))
        a("s_mul_i32 s%d, s%d, 6" % (S_T1, S_J))
        a("s_add_u32 s%d, s%d, s%d" % (S_T0, S_T0, S_T1))
        a("s_lshl_b32 s%d, s%d, 1" % (S_T1, S_W))
        a("s_add_u32 s%d, s%d, s%d" % (S_T0, S_T0, S_T1))
        a("s_lshl_b32 s%d, s%d, 10" % (S_T0, S_T0))
        a("s_add_u32 s%d, s%d, 0x%x" % (S_T0, S_T0, WS_H))
        for st in range(2):
            for Q in range(2):
                r = I + 8 * st + 4 * Q
                a("s_add_u32 s%d, s%d, %d" % (S_T1, S_T0, (st * 48 + Q) * 1024))
                a("buffer_store_dwordx4 v[%d:%d], v%d, s[%d:%d], s%d offen sc1" % (r, r + 3, L16, SRD_WS, SRD_WS + 3, S_T1))
        a("s_waitcnt vmcnt(0)")
        self.flag_store(2, 0, S_W)
        a.label("L_h_done")
        self.o_pre()
        a("s_barrier")
        self.stamp(12)

    def o_pre(self):
        a = self.a
        a("s_lshr_b32 s%d, s%d, 1" % (S_T0, S_W))
        a("s_lshl_b32 s3, s%d, 2" % S_T0)
        a("v_add_u32 v40, s3, v%d" % V_LANE)
        a("v_lshlrev_b32 v40, 5, v40")
        a("v_add_u32 v40, s%d, v40" % S_MB)
        a("v_lshlrev_b32 v40, 7, v40")
        a("v_add_u32 v40, 0x%x, v40" % (WS_FLAG + 2 * 256 * 128))
        a("v_bfe_u32 v5, v%d, 2, 2" % V_LANE)
        a("v_lshl_add_u32 v5, v%d, 3, v5" % V_H)
        a("v_lshlrev_b32 v5, 7, v5")
        a("v_bfe_u32 v6, v%d, 4, 1" % V_LANE)
        a("v_lshlrev_b32 v6, 1, v6")
        a("v_and_b32 v7, 1, v%d" % V_LANE)
        a("v_or_b32 v6, v6, v7")
        a("v_bfe_u32 v7, v%d, 3, 1" % V_LANE)
        a("v_lshlrev_b32 v7, 2, v7")
        a("v_xor_b32 v6, v6, v7")
        a("s_lshl_b32 s3, s%d, 2" % S_T0)
        a("v_xor_b32 v6, s3, v6")
        a("v_bfe_u32 v7, v%d, 1, 1" % V_LANE)
        a("v_lshlrev_b32 v7, 3, v7")
        a("v_add_u32 v5, v5, v7")
        a("s_mul_i32 s3, s%d, %d" % (S_T0, 352 * 128))
        a("s_add_u32 s3, s3, %d" % LDS_WO)
        a("v_add_u32 v5, s3, v5")
        WA = 52
        a("v_lshl_add_u32 v%d, v6, 4, v5" % WA)
        a("v_xor_b32 v6, 4, v6")
        a("v_lshl_add_u32 v%d, v6, 4, v5" % (WA + 1))
        a("s_cmp_eq_u32 s%d, 0" % S_T0)
        a("s_cselect_b32 s3, 8, 0")
        a("s_add_u32 s3, s3, 256")
        a("s_lshl_b32 s3, s3, 7")
        a("v_add_u32 v%d, s3, v%d" % (WA + 2, WA))
        a("v_add_u32 v%d, s3, v%d" % (WA + 3, WA + 1))
        a("s_and_b32 s%d, s%d, 1" % (S_T1, S_W))
        a("s_lshl_b32 s3, s%d, 1" % S_MB)
        a("s_add_u32 s3, s3, s%d" % S_T1)
        a("s_mul_i32 s3, s3, 48")
        a("s_mul_i32 s%d, s%d, 24" % (S_B0, S_T0))
        a("s_add_u32 s%d, s%d, s3" % (S_B0, S_B0))
        a("s_lshl_b32 s%d, s%d, 10" % (S_B0, S_B0))
        a("s_add_u32 s%d, s%d, 0x%x" % (S_B0, S_B0, WS_H))

    def phase_o(self):
        a = self.a
        L16 = self.G_L16
        WA = 52
        self.poll_flags_n(40, 4, 3, 60)
        self.stamp(13)
        vq = VQ(a)
        for n in range(24):
            r = 32 + 4 * n
            a("buffer_load_dwordx4 a[%d:%d], v%d, s[%d:%d], s%d offen sc1" % (r, r + 3, L16, SRD_WS, SRD_WS + 3, S_B0)); vq.issue(("h", n))
            if n < 23: a("s_add_u32 s%d, s%d, 1024" % (S_B0, S_B0))
        FA = 16
        def areads(n, buf):
            jj, rem = divmod(n, 6); ft, Q = divmod(rem, 2)
            out = []
            for tp in range(2):
                base = WA + tp if jj < 3 else WA + 2 + tp
                off = ((88 * jj if jj < 3 else 0) + 32 * ft + 16 * Q) * 128
                r = FA + buf * 8 + tp * 4
                out.append("ds_read_b64_tr_b16 v[%d:%d], v%d offset:%d" % (r, r + 1, base, off))
                out.append("ds_read_b64_tr_b16 v[%d:%d], v%d offset:%d" % (r + 2, r + 3, base, off + 512))
            return out
        for r in areads(0, 0): a(r)
        for n in range(24):
            buf = n & 1
            vq.wait(("h", n))
            a("s_waitcnt lgkmcnt(0)")
            rd = areads(n + 1, buf ^ 1) if n < 23 else []
            for tp in range(2):
                D = tp * 16
                Ar = FA + buf * 8 + tp * 4
                Br = 32 + 4 * n
                cc = "0" if n == 0 else "a[%d:%d]" % (D, D + 15)
                a("v_mfma_f32_32x32x16_bf16 a[%d:%d], v[%d:%d], a[%d:%d], %s" % (D, D + 15, Ar, Ar + 3, Br, Br + 3, cc))
                for r in rd[2 * tp:2 * tp + 2]: a(r)
        self.stamp(14)
        a("s_lshl_b32 s3, s%d, 13" % S_W)
        a("v_add_u32 v58, s3, v%d" % L16)
        for tp in range(2):
            for q in range(4):
                a("ds_write_b128 v58, a[%d:%d] offset:%d" % (16 * tp + 4 * q, 16 * tp + 4 * q + 3, tp * 4096 + q * 1024))
        a("s_waitcnt lgkmcnt(0)")
        a("s_barrier")

    def final_pre(self):
        a = self.a
        a("s_lshr_b32 s%d, s%d, 1" % (S_T0, S_HW))
        a("s_lshl_b32 s3, s%d, 6" % S_J)
        a("s_lshl_b32 s%d, s%d, 5" % (S_T2, S_T0))
        a("s_add_u32 s%d, s3, s%d" % (S_T2, S_T2))
        a("v_add_u32 v5, s%d, v%d" % (S_T2, V_LANE))
        a("v_sub_u32 v6, 512, v5")
        a("v_cmp_lt_u32 vcc, 256, v5")
        a("v_cndmask_b32 v6, v5, v6, vcc")
        a("v_and_b32 v6, 255, v6")
        a("v_lshlrev_b32 v43, 7, v6")
        a("v_add_u32 v43, 0x%x, v43" % (WS_FLAG + 3 * 256 * 128))
        a("s_and_b32 s%d, s%d, 1" % (S_T1, S_HW))
        a("s_lshl_b32 s3, s%d, 6" % S_MB)
        a("s_lshl_b32 s%d, s%d, 5" % (S_T3, S_T1))
        a("s_add_u32 s3, s3, s%d" % S_T3)
        a("v_add_u32 v41, s3, v%d" % V_SIG)
        a("v_lshlrev_b32 v42, 10, v41")
        a("v_lshl_add_u32 v42, v%d, 4, v42" % V_H)
        a("s_lshl_b32 s3, s%d, 1" % S_T2)
        a("v_add_u32 v42, s3, v42")
        XR = 44
        a("buffer_load_dwordx4 v[%d:%d], v42, s[%d:%d], 0 offen" % (XR, XR + 3, SRD_X, SRD_X + 3))
        a("buffer_load_dwordx4 v[%d:%d], v42, s[%d:%d], 0 offen offset:32" % (XR + 4, XR + 7, SRD_X, SRD_X + 3))
        a("v_lshlrev_b32 v5, 2, v41")
        a("v_sub_u32 v6, 2048, v41")
        a("v_and_b32 v6, 2047, v6")
        a("v_lshlrev_b32 v6, 2, v6")
        a("v_lshlrev_b32 v7, 3, v%d" % V_H)
        a("v_add_u32 v7, s%d, v7" % S_T2)
        a("v_lshl_add_u32 v8, v7, 13, v5")
        a("v_sub_u32 v9, %d, v7" % (512 - 23))
        a("v_lshl_add_u32 v9, v9, 13, v6")
        a("s_cmp_ge_u32 s%d, 256" % S_T2)
        a("s_cselect_b64 vcc, -1, 0")
        a("s_cselect_b32 s%d, 1, 0" % S_T3)
        a("v_cndmask_b32 v56, v8, v9, vcc")
        a("s_cselect_b32 s3, %d, 0" % (23 * 8192))
        a("v_add_u32 v8, s3, v56")
        a("v_mov_b32 v9, 0x%x" % OOB)
        a("v_cmp_eq_u32 vcc, 0, v7")
        a("v_cndmask_b32 v8, v8, v9, vcc")
        a("v_cmp_eq_u32 vcc, 256, v7")
        a("v_cndmask_b32 v57, v8, v5, vcc")
        self.poll_flags_n(43, 32, 2, 60)
        Y = 64
        for rho in range(16):
            k = 16 * (rho >> 3) + (rho & 7)
            if rho == 0:
                a("s_mov_b32 s3, 0x%x" % WS_YT)
                a("buffer_load_dword v%d, v57, s[%d:%d], s3 offen sc1" % (Y, SRD_WS, SRD_WS + 3))
            else:
                a("s_cmp_eq_u32 s%d, 1" % S_T3)
                a("s_cselect_b32 s3, %d, %d" % (23 - k, k))
                a("s_lshl_b32 s3, s3, 13")
                a("s_add_u32 s3, s3, 0x%x" % WS_YT)
                a("buffer_load_dword v%d, v56, s[%d:%d], s3 offen sc1" % (Y + rho, SRD_WS, SRD_WS + 3))

    def final_h(self):
        a = self.a
        XR, Y, O = 44, 64, 80
        a("v_lshlrev_b32 v10, 4, v%d" % V_LANE)
        a("s_lshl_b32 s3, s%d, 13" % S_HW)
        a("v_add_u32 v11, s3, v10")
        a("s_xor_b32 s3, s%d, 2" % S_HW)
        a("s_lshl_b32 s3, s3, 13")
        a("s_add_u32 s3, s3, 4096")
        a("v_add_u32 v12, s3, v10")
        for q in range(4):
            a("ds_read_b128 v[%d:%d], v11 offset:%d" % (O + 4 * q, O + 4 * q + 3, q * 1024))
        for q in range(4):
            a("ds_read_b128 v[%d:%d], v12 offset:%d" % (96 + 4 * q, 96 + 4 * q + 3, q * 1024))
        nl2e = f2u(-math.log2(math.e))
        a("s_mov_b32 s%d, 0x%x" % (S_K2, nl2e))
        a("s_mov_b32 s%d, 0x%x" % (S_K2 + 1, nl2e))
        a("s_and_b32 s%d, s%d, 1" % (S_T1, S_HW))
        a("s_lshl_b32 s3, s%d, 5" % S_T1)
        a("v_add_u32 v13, s3, v%d" % V_SIG)
        a("v_and_b32 v14, 7, v13")
        a("s_lshr_b32 s%d, s%d, 1" % (S_T0, S_HW))
        a("s_lshl_b32 s3, s%d, 2" % S_T0)
        a("v_add_u32 v15, s3, v%d" % V_H)
        a("v_xor_b32 v14, v14, v15")
        a("v_lshlrev_b32 v14, 4, v14")
        a("v_lshl_add_u32 v14, v13, 7, v14")
        a("v_add_u32 v14, 32768, v14")
        a("s_waitcnt lgkmcnt(0)")
        for p in range(8):
            a("v_pk_add_f32 v[%d:%d], v[%d:%d], v[%d:%d]" % (O + 2 * p, O + 2 * p + 1, O + 2 * p, O + 2 * p + 1, 96 + 2 * p, 96 + 2 * p + 1))
        for p in range(8):
            o = O + 2 * p; t = 96 + 2 * p
            a("v_pk_mul_f32 v[%d:%d], v[%d:%d], s[%d:%d]" % (t, t + 1, o, o + 1, S_K2, S_K2 + 1))
            a("v_exp_f32 v%d, v%d" % (t, t))
            a("v_exp_f32 v%d, v%d" % (t + 1, t + 1))
            a("v_pk_add_f32 v[%d:%d], v[%d:%d], 1.0 op_sel_hi:[1,0]" % (t, t + 1, t, t + 1))
            a("v_rcp_f32 v%d, v%d" % (t, t))
            a("v_rcp_f32 v%d, v%d" % (t + 1, t + 1))
            a("v_pk_mul_f32 v[%d:%d], v[%d:%d], v[%d:%d]" % (o, o + 1, o, o + 1, t, t + 1))
        a("s_waitcnt vmcnt(0)")
        for p in range(8):
            o = O + 2 * p; t = 96 + 2 * p; y = Y + 2 * p; xr = XR + p
            a("v_lshlrev_b32 v%d, 16, v%d" % (t, xr))
            a("v_and_b32 v%d, 0xffff0000, v%d" % (t + 1, xr))
            a("v_pk_fma_f32 v[%d:%d], v[%d:%d], v[%d:%d], v[%d:%d]" % (t, t + 1, y, y + 1, o, o + 1, t, t + 1))
            a("v_cvt_pk_bf16_f32 v%d, v%d, v%d" % (112 + p, t, t + 1))
        a("ds_write_b128 v14, v[112:115]")
        a("v_xor_b32 v14, 32, v14")
        a("ds_write_b128 v14, v[116:119]")
        a("s_waitcnt lgkmcnt(0)")
        a("s_barrier")
        a("v_lshrrev_b32 v5, 3, v%d" % V_LANE)
        a("v_and_b32 v6, 7, v%d" % V_LANE)
        a("v_xor_b32 v7, v5, v6")
        a("v_lshlrev_b32 v7, 4, v7")
        a("v_lshl_add_u32 v7, v5, 7, v7")
        a("s_lshl_b32 s3, s%d, 11" % S_HW)
        a("s_add_u32 s3, s3, 32768")
        a("v_add_u32 v7, s3, v7")
        a("ds_read_b128 v[16:19], v7")
        a("ds_read_b128 v[20:23], v7 offset:1024")
        a("v_lshlrev_b32 v8, 10, v5")
        a("v_lshl_add_u32 v8, v6, 4, v8")
        a("s_lshl_b32 s%d, s%d, 6" % (S_T0, S_MB))
        a("s_lshl_b32 s3, s%d, 4" % S_HW)
        a("s_add_u32 s%d, s%d, s3" % (S_T0, S_T0))
        a("s_lshl_b32 s%d, s%d, 10" % (S_T0, S_T0))
        a("s_lshl_b32 s3, s%d, 7" % S_J)
        a("s_add_u32 s%d, s%d, s3" % (S_T0, S_T0))
        a("s_waitcnt lgkmcnt(0)")
        fl = "" if "outplain" in self.exp else "sc1"
        a("buffer_store_dwordx4 v[16:19], v8, s[%d:%d], s%d offen %s" % (SRD_OUT, SRD_OUT + 3, S_T0, fl))
        a("s_add_u32 s%d, s%d, 8192" % (S_T0, S_T0))
        a("buffer_store_dwordx4 v[20:23], v8, s[%d:%d], s%d offen %s" % (SRD_OUT, SRD_OUT + 3, S_T0, fl))
        self.stamp(15)
        self.stamp(25)

    def build(self):
        a = self.a
        self.prologue()
        self.xstage()
        a("s_cmp_ge_u32 s%d, 4" % S_W)
        a("s_cbranch_scc1 L_helper")
        self.p1_compute()
        self.g_compute()
        self.phase_o()
        a("s_branch L_end")
        a.label("L_helper")
        self.p1_helper()
        self.g_helper()
        a.label("L_end")
        a("s_endpgm")
        a.finalize()
        hdr = open("cdna_kernels/%s.s.ref" % NAME).read().split("\n")
        head = []
        for line in hdr:
            if line.startswith("; @launch"):
                head.append("; @launch grid=(256,1,1) block=(512,1,1) lds=%d" % LDS_TOTAL)
            elif line.startswith(";"): head.append(line)
            else: break
        txt = "\n".join(head) + "\n"
        txt += '.amdgcn_target "amdgcn-amd-amdhsa--gfx950"\n.text\n.globl %s_kernel\n.p2align 8\n.type %s_kernel,@function\n%s_kernel:\n' % (NAME, NAME, NAME)
        body = a.text()
        if "codepf" in self.exp:
            body = body.replace("CODE_LEN", "(L_end - L_pc_here - 16)")
        txt += body
        txt += '.section .rodata,"a"\n.p2align 6\n.amdhsa_kernel %s_kernel\n' % NAME
        txt += "  .amdhsa_next_free_vgpr 256\n  .amdhsa_next_free_sgpr 102\n  .amdhsa_accum_offset 128\n"
        txt += "  .amdhsa_group_segment_fixed_size 0\n  .amdhsa_kernarg_size 104\n  .amdhsa_user_sgpr_count 2\n"
        txt += "  .amdhsa_user_sgpr_kernarg_segment_ptr 1\n  .amdhsa_system_sgpr_workgroup_id_x 1\n"
        txt += "  .amdhsa_float_denorm_mode_32 3\n"
        txt += ".end_amdhsa_kernel\n"
        return txt

if __name__ == "__main__":
    import argparse
    ap = argparse.ArgumentParser()
    ap.add_argument("--stamps", action="store_true")
    ap.add_argument("--exp", default="")
    ap.add_argument("-o", default="cdna_kernels/%s.s" % NAME)
    args = ap.parse_args()
    g = Gen(stamps=args.stamps, exp=[e for e in args.exp.split(',') if e])
    txt = g.build()
    open(args.o, "w").write(txt)
    print("wrote", args.o, len(txt), "bytes;", len([i for i in g.a.ins if i.kind not in ("label", "dir")]), "instrs")
```

```python
import sys, math, struct
sys.path.insert(0, "gen")
from asmlib import *

NAME = "recurrent_scan__spectral_fnet__mixer_gmlp__prompt"

WS_FLAG = 0x000000
WS_STATS = 0x020000
WS_Z2N = 0x100000
WS_AB = 0x400000
WS_H = 0x600000
WS_YT = 0x900000
WS_STAMP = 0xF00000
WS_SIZE = 0x4000000
OOB = 0x80000000

LDS_WR = 65536
SLOT = 16384
NSLOT = 5
LDS_T4 = 147456
LDS_T5 = LDS_T4 + 1536
LDS_SY = LDS_T5 + 512
LDS_AT = 151552
LDS_YS = 40960
LDS_FX = 131072
LDS_WO = 73728
LDS_TOTAL = 163840

SRD_X, SRD_WIN, SRD_DFT, SRD_WSP, SRD_WOUT, SRD_WS, SRD_OUT, SRD_BSP, SRD_DBG = 4, 8, 12, 20, 24, 28, 32, 36, 40
S_IMLO, S_IMHI = 16, 17
S_MB, S_J, S_W, S_F0, S_WID, S_NONCE, S_L = 44, 45, 46, 47, 48, 49, 50
S_C, S_SLOT, S_XD = 51, 52, 53
S_CN, S_KC128, S_WSOFF, S_SLOTN = 54, 55, 56, 57
S_HW = 58
S_DL0, S_WL0, S_W2 = 60, 61, 62
S_T0, S_T1, S_T2, S_T3 = 63, 90, 91, 92
S_PASS = 93
S_EX = 94
S_K2 = 96
S_SPIN = 98
S_B0 = 99
S_ST0 = 100
S_ROT1 = 59
S_RHO = 51

V_LANE, V_JL, V_H, V_SIG = 1, 2, 3, 4

def f2u(x): return struct.unpack("<I", struct.pack("<f", x))[0]

class Gen:
    def __init__(self, stop_after=None, stamps=False, exp=()):
        self.a = Asm()
        self.stop_after = stop_after
        self.stamps = stamps
        self.exp = set(exp)

    def stamp(self, idx):
        if "dbgst" in self.exp:
            m = {0: 1, 1: 2, 2: 3, 3: 4, 4: 5, 5: 6, 7: 7, 8: 8, 10: 9, 11: 10, 12: 11, 13: 12, 14: 13, 15: 14}
            if idx in m:
                a = self.a
                lab = a.newlabel("ds")
                a("s_cmp_lg_u32 s%d, %d" % (S_L, 0 * 256 + 37))
                a("s_cbranch_scc1 %s" % lab)
                a("s_cmp_lg_u32 s%d, 0" % S_W)
                a("s_cbranch_scc1 %s" % lab)
                a("s_memrealtime s[%d:%d]" % (S_ST0, S_ST0 + 1))
                a("s_waitcnt lgkmcnt(0)")
                a("v_mov_b32 v9, s%d" % S_ST0)
                a("v_mov_b32 v8, %d" % (4 * m[idx]))
                a("s_mov_b64 exec, 1")
                a("buffer_store_dword v9, v8, s[%d:%d], 0 offen sc1" % (SRD_DBG, SRD_DBG + 3))
                a("s_mov_b64 exec, -1")
                a.label(lab)
            return
        if not self.stamps: return
        a = self.a
        a(("s_memtime s[%d:%d]" if idx >= 24 else "s_memrealtime s[%d:%d]") % (S_ST0, S_ST0 + 1))
        a("s_waitcnt lgkmcnt(0)")
        a("v_mov_b32 v9, s%d" % S_ST0)
        a("s_lshl_b32 s%d, s%d, 3" % (S_ST0, S_L))
        a("s_add_u32 s%d, s%d, s%d" % (S_ST0, S_ST0, S_W))
        a("s_lshl_b32 s%d, s%d, 7" % (S_ST0, S_ST0))
        a("s_add_u32 s%d, s%d, 0x%x" % (S_ST0, S_ST0, WS_STAMP + idx * 4))
        a("v_mov_b32 v8, 0")
        a("s_mov_b64 s[%d:%d], exec" % (S_EX, S_EX + 1))
        a("s_mov_b64 exec, 1")
        a("buffer_store_dword v9, v8, s[%d:%d], s%d offen" % (SRD_WS, SRD_WS + 3, S_ST0))
        a("s_mov_b64 exec, s[%d:%d]" % (S_EX, S_EX + 1))

    def srd(self, base, plo, size):
        a = self.a
        a("s_mov_b32 s%d, s%d" % (base, plo))
        a("s_and_b32 s%d, s%d, 0xffff" % (base + 1, plo + 1))
        a("s_mov_b32 s%d, 0x%x" % (base + 2, size))
        a("s_mov_b32 s%d, 0x20000" % (base + 3))

    def flag_store(self, kind, dw=0, dw_sreg=None):
        a = self.a
        a("s_lshl_b32 s%d, s%d, 7" % (S_T0, S_L))
        a("s_add_u32 s%d, s%d, 0x%x" % (S_T0, S_T0, WS_FLAG + kind * 256 * 128 + dw * 4))
        if dw_sreg is not None:
            a("s_lshl_b32 s3, s%d, 2" % dw_sreg)
            a("s_add_u32 s%d, s%d, s3" % (S_T0, S_T0))
        a("v_mov_b32 v5, s%d" % S_NONCE)
        a("v_mov_b32 v6, 0")
        a("s_mov_b64 exec, 1")
        a("buffer_store_dword v5, v6, s[%d:%d], s%d offen sc1" % (SRD_WS, SRD_WS + 3, S_T0))
        a("s_mov_b64 exec, -1")

    def poll_flags_n(self, vaddr, nlanes, ndw, vt):
        a = self.a
        lab = a.newlabel("poll")
        a("s_mov_b32 s%d, 0" % S_SPIN)
        mask = (1 << nlanes) - 1
        a("s_mov_b32 exec_lo, 0x%x" % (mask & 0xffffffff))
        a("s_mov_b32 exec_hi, 0x%x" % (mask >> 32))
        a.label(lab)
        if ndw == 1: a("buffer_load_dword v%d, v%d, s[%d:%d], 0 offen sc1" % (vt, vaddr, SRD_WS, SRD_WS + 3))
        elif ndw == 2: a("buffer_load_dwordx2 v[%d:%d], v%d, s[%d:%d], 0 offen sc1" % (vt, vt + 1, vaddr, SRD_WS, SRD_WS + 3))
        else: a("buffer_load_dwordx4 v[%d:%d], v%d, s[%d:%d], 0 offen sc1" % (vt, vt + 3, vaddr, SRD_WS, SRD_WS + 3))
        a("s_waitcnt vmcnt(0)")
        a("v_cmp_ne_u32 vcc, s%d, v%d" % (S_NONCE, vt))
        for i in range(1, ndw):
            a("v_cmp_ne_u32 s[%d:%d], s%d, v%d" % (S_EX, S_EX + 1, S_NONCE, vt + i))
            a("s_or_b64 vcc, vcc, s[%d:%d]" % (S_EX, S_EX + 1))
        a("s_add_u32 s%d, s%d, 1" % (S_SPIN, S_SPIN))
        a("s_cmp_gt_u32 s%d, 0x8000" % S_SPIN)
        a("s_cbranch_scc1 %s_x" % lab)
        a("s_cbranch_vccnz %s" % lab)
        a.label(lab + "_x")
        a("s_mov_b64 exec, -1")

    def get_nonce(self):
        a = self.a
        lab = a.newlabel("nonce")
        a("v_mov_b32 v6, 0")
        a("s_mov_b32 s%d, 0" % S_SPIN)
        a.label(lab)
        a("buffer_load_dword v5, v6, s[%d:%d], 0 offen sc1" % (SRD_DBG, SRD_DBG + 3))
        a("s_waitcnt vmcnt(0)")
        a("v_readfirstlane_b32 s%d, v5" % S_NONCE)
        a("s_add_u32 s%d, s%d, 1" % (S_SPIN, S_SPIN))
        a("s_cmp_gt_u32 s%d, 0x8000" % S_SPIN)
        a("s_cbranch_scc1 %s_x" % lab)
        a("s_cmp_eq_u32 s%d, 0" % S_NONCE)
        a("s_cbranch_scc1 %s" % lab)
        a.label(lab + "_x")

    def nonce_from(self, vreg):
        a = self.a
        lab = a.newlabel("hn")
        a("v_readfirstlane_b32 s%d, v%d" % (S_NONCE, vreg))
        a("s_cmp_lg_u32 s%d, 0" % S_NONCE)
        a("s_cbranch_scc1 %s" % lab)
        self.get_nonce()
        a.label(lab)

    def poll_flags(self, vaddr, nlanes):
        a = self.a
        lab = a.newlabel("poll")
        a("s_mov_b32 s%d, 0" % S_SPIN)
        mask = (1 << nlanes) - 1
        a("s_mov_b32 exec_lo, 0x%x" % (mask & 0xffffffff))
        a("s_mov_b32 exec_hi, 0x%x" % (mask >> 32))
        a.label(lab)
        a("buffer_load_dword v5, v%d, s[%d:%d], 0 offen sc1" % (vaddr, SRD_WS, SRD_WS + 3))
        a("s_waitcnt vmcnt(0)")
        a("v_cmp_ne_u32 vcc, s%d, v5" % S_NONCE)
        a("s_add_u32 s%d, s%d, 1" % (S_SPIN, S_SPIN))
        a("s_cmp_gt_u32 s%d, 0x8000" % S_SPIN)
        a("s_cbranch_scc1 %s_x" % lab)
        a("s_cbranch_vccnz %s" % lab)
        a.label(lab + "_x")
        a("s_mov_b64 exec, -1")

    def lds_wait_ge(self, addr, val, vt=5):
        a = self.a
        lab = a.newlabel("lw")
        a("s_mov_b32 s%d, 0" % S_SPIN)
        a("v_mov_b32 v%d, %d" % (vt + 1, addr))
        a.label(lab)
        a("ds_read_b32 v%d, v%d" % (vt, vt + 1))
        a("s_waitcnt lgkmcnt(0)")
        a("v_readfirstlane_b32 s%d, v%d" % (S_T0, vt))
        a("s_add_u32 s%d, s%d, 1" % (S_SPIN, S_SPIN))
        a("s_cmp_gt_u32 s%d, 0x100000" % S_SPIN)
        a("s_cbranch_scc1 %s_x" % lab)
        a("s_cmp_lt_u32 s%d, %d" % (S_T0, val))
        a("s_cbranch_scc1 %s" % lab)
        a.label(lab + "_x")

    def hsum(self, regs, tmp):
        a = self.a
        for i, r in enumerate(regs): a("v_mov_b32 v%d, v%d" % (tmp + i, r))
        for i, r in enumerate(regs): a("v_permlane32_swap_b32 v%d, v%d" % (r, tmp + i))
        for i, r in enumerate(regs): a("v_add_f32 v%d, v%d, v%d" % (r, r, tmp + i))

    def mean_rstd(self, vsum, vsq, n, dst_r, dst_nm, t):
        a = self.a
        a("v_mul_f32 v%d, 0x%x, v%d" % (t, f2u(1.0 / n), vsum))
        a("v_mul_f32 v%d, 0x%x, v%d" % (t + 1, f2u(1.0 / n), vsq))
        a("v_fma_f32 v%d, -v%d, v%d, v%d" % (t + 1, t, t, t + 1))
        a("v_max_f32 v%d, 0, v%d" % (t + 1, t + 1))
        a("v_add_f32 v%d, 0x%x, v%d" % (t + 1, f2u(1e-5), t + 1))
        a("v_rsq_f32 v%d, v%d" % (dst_r, t + 1))
        a("v_mul_f32 v%d, v%d, v%d" % (dst_nm, t, dst_r))
        a("v_sub_f32 v%d, 0, v%d" % (dst_nm, dst_nm))

    V_OD, V_OW = 10, 11
    V_NON = 14
    def prologue(self):
        a = self.a
        a("s_cmp_ge_u32 s2, 256")
        a("s_cbranch_scc1 L_end")
        a("s_load_dwordx16 s[64:79], s[0:1], 0")
        a("s_load_dwordx8 s[80:87], s[0:1], 64")
        a("s_load_dwordx2 s[88:89], s[0:1], 96")
        if "map42" in self.exp:
            a("s_bfe_u32 s%d, s2, 0x20001" % S_MB)
            a("s_lshl_b32 s%d, s%d, 3" % (S_MB, S_MB))
            a("s_bfe_u32 s3, s2, 0x30003")
            a("s_add_u32 s%d, s%d, s3" % (S_MB, S_MB))
            a("s_and_b32 s%d, s2, 1" % S_J)
            a("s_lshl_b32 s%d, s%d, 2" % (S_J, S_J))
            a("s_lshr_b32 s3, s2, 6")
            a("s_add_u32 s%d, s%d, s3" % (S_J, S_J))
        else:
            a("s_and_b32 s%d, s2, 7" % S_MB)
            a("s_lshl_b32 s%d, s%d, 2" % (S_MB, S_MB))
            a("s_bfe_u32 s3, s2, 0x20003")
            a("s_add_u32 s%d, s%d, s3" % (S_MB, S_MB))
            a("s_lshr_b32 s%d, s2, 5" % S_J)
        a("s_lshl_b32 s%d, s%d, 5" % (S_L, S_J))
        a("s_add_u32 s%d, s%d, s%d" % (S_L, S_L, S_MB))
        a("v_lshrrev_b32 v5, 6, v0")
        a("v_and_b32 v%d, 63, v0" % V_LANE)
        a("v_readfirstlane_b32 s%d, v5" % S_W)
        a("v_lshrrev_b32 v20, 3, v0")
        a("v_and_b32 v21, 7, v0")
        a("v_lshlrev_b32 v22, 10, v20")
        a("v_lshl_add_u32 v22, v21, 4, v22")
        a("s_lshl_b32 s%d, s%d, 16" % (S_T1, S_MB))
        a("s_and_b32 s%d, s%d, 3" % (S_HW, S_W))
        a("v_and_b32 v%d, 31, v0" % V_JL)
        a("v_bfe_u32 v%d, v0, 5, 1" % V_H)
        a("v_and_b32 v5, 0x13, v%d" % V_JL)
        a("v_and_b32 v6, 4, v%d" % V_JL)
        a("v_lshl_or_b32 v5, v6, 1, v5")
        a("v_and_b32 v6, 8, v%d" % V_JL)
        a("v_lshrrev_b32 v6, 1, v6")
        a("v_or_b32 v%d, v5, v6" % V_SIG)
        a("s_mul_i32 s%d, s%d, 88" % (S_F0, S_J))
        a("s_cmp_eq_u32 s%d, 7" % S_J)
        a("s_cselect_b32 s3, 8, 0")
        a("s_sub_u32 s%d, s%d, s3" % (S_F0, S_F0))
        a("s_cmp_ge_u32 s%d, 6" % S_J)
        a("s_cselect_b32 s3, 8, 0")
        a("s_sub_u32 s%d, 88, s3" % S_WID)
        for i in range(10, 14): a("v_mov_b32 v%d, 0" % i)
        if "codepf" in self.exp:
            a("s_getpc_b64 s[92:93]")
            a.label("L_pc_here")
            a("s_lshr_b32 s3, s2, 3")
            a("s_lshl_b32 s3, s3, 3")
            a("s_add_u32 s3, s3, s%d" % S_W)
            a("s_mul_i32 s3, s3, 192")
            a("v_lshlrev_b32 v5, 4, v%d" % V_LANE)
            a("v_add_u32 v5, s3, v5")
            a("v_min_u32 v5, CODE_LEN, v5")
            a("s_mov_b64 exec, 0xfff")
            a("global_load_dwordx4 a[20:23], v5, s[92:93]")
            a("s_mov_b64 exec, -1")
        a("s_waitcnt lgkmcnt(0)")
        self.srd(SRD_X, 64, 2048 * 1024)
        a("s_and_b32 s%d, s%d, 3" % (S_ROT1, S_MB))
        a("s_lshl_b32 s%d, s%d, 1" % (S_ROT1, S_ROT1))
        a("s_add_u32 s%d, s%d, s%d" % (S_ROT1, S_ROT1, S_J))
        a("s_and_b32 s%d, s%d, 7" % (S_ROT1, S_ROT1))
        if "norot" in self.exp: a("s_mov_b32 s%d, 0" % S_ROT1)
        for i in range(8):
            a("s_add_u32 s3, s%d, %d" % (S_ROT1, i))
            a("s_and_b32 s3, s3, 7")
            a("s_lshl_b32 s3, s3, 7")
            a("s_add_u32 s3, s3, s%d" % S_T1)
            a("buffer_load_dwordx4 v[%d:%d], v22, s[%d:%d], s3 offen" % (32 + 4 * i, 35 + 4 * i, SRD_X, SRD_X + 3))
        self.srd(SRD_WIN, 76, 512 * 2752)
        self.srd(SRD_DFT, 70, 512 * 1024)
        self.srd(S_IMLO, 72, 512 * 1024)
        self.srd(SRD_WS, 88, WS_SIZE)
        self.srd(SRD_DBG, 86, 256)
        self.srd(SRD_WSP, 78, 2048 * 4096)
        self.srd(SRD_WOUT, 82, 688 * 1024)
        self.srd(SRD_OUT, 84, 2048 * 1024)
        self.srd(SRD_BSP, 80, 4096)
        if "tlbwarm" in self.exp:
            a("v_lshlrev_b32 v5, 20, v%d" % V_LANE)
            a("v_add_u32 v5, 0x7f000, v5")
            a("s_mov_b64 exec, 0xfff")
            a("buffer_load_dword a24, v5, s[%d:%d], 0 offen sc1" % (SRD_WS, SRD_WS + 3))
            a("s_mov_b64 exec, 1")
            a("s_lshl_b32 s3, s%d, 16" % S_MB)
            a("v_mov_b32 v5, s3")
            a("buffer_load_dword a25, v5, s[%d:%d], 0 offen" % (SRD_OUT, SRD_OUT + 3))
            a("s_lshl_b32 s3, s%d, 18" % S_MB)
            a("v_mov_b32 v5, s3")
            a("buffer_load_dword a26, v5, s[%d:%d], 0 offen" % (SRD_WSP, SRD_WSP + 3))
            a("v_mov_b32 v5, 0")
            a("buffer_load_dword a27, v5, s[%d:%d], 0 offen" % (SRD_WOUT, SRD_WOUT + 3))
            a("buffer_load_dword a28, v5, s[%d:%d], 0 offen" % (SRD_BSP, SRD_BSP + 3))
            a("s_mov_b64 exec, -1")
        a("s_cmp_lt_u32 s%d, 4" % S_W)
        a("s_cbranch_scc0 L_pro_h")
        self.npf = (self.prefetch_start() if "nopf" not in self.exp else 0) + (5 if "tlbwarm" in self.exp else 0)
        a("s_branch L_pro_c")
        a.label("L_pro_h")
        L = V_LANE
        a("v_lshrrev_b32 v5, 3, v%d" % L)
        a("v_and_b32 v6, 7, v%d" % L)
        a("v_lshrrev_b32 v7, 4, v%d" % L)
        a("v_xor_b32 v8, v6, v7")
        a("v_lshlrev_b32 v8, 4, v8")
        a("s_lshl_b32 s3, s%d, 5" % S_J)
        a("s_lshl_b32 s%d, s%d, 3" % (S_T0, S_HW))
        a("s_add_u32 s3, s3, s%d" % S_T0)
        a("v_add_u32 v9, s3, v5")
        a("v_cmp_eq_u32 vcc, 0, v9")
        a("v_mov_b32 v6, 256")
        a("v_cndmask_b32 v9, v9, v6, vcc")
        a("s_and_b32 s%d, s%d, 1" % (S_T0, S_HW))
        a("s_lshl_b32 s%d, s%d, 6" % (S_T0, S_T0))
        a("v_xor_b32 v8, s%d, v8" % S_T0)
        a("v_lshl_add_u32 v%d, v9, 10, v8" % self.V_OD)
        for p in range(3):
            a("v_add_u32 v5, %d, v%d" % (64 * p, L))
            a("v_mul_u32_u24 v6, 171, v5")
            a("v_lshrrev_b32 v6, 11, v6")
            a("v_mul_u32_u24 v7, 12, v6")
            a("v_sub_u32 v7, v5, v7")
            a("v_mul_u32_u24 v6, 2752, v6")
            a("v_lshl_add_u32 v6, v7, 4, v6")
            a("v_lshlrev_b32 v7, 3, v7")
            a("v_cmp_gt_u32 vcc, s%d, v7" % S_WID)
            a("v_mov_b32 v8, 0x%x" % OOB)
            a("v_cndmask_b32 v%d, v8, v6, vcc" % (self.V_OW + p))
        a("s_lshl_b32 s%d, s%d, 10" % (S_DL0, S_HW))
        a("s_mul_i32 s%d, s%d, 3072" % (S_WL0, S_HW))
        a("s_mul_i32 s%d, s%d, %d" % (S_W2, S_HW, 16 * 2752))
        a("s_lshl_b32 s3, s%d, 1" % S_F0)
        a("s_add_u32 s%d, s%d, s3" % (S_W2, S_W2))
        a("s_add_u32 s%d, s%d, %d" % (S_WSOFF, S_W2, 688 * 2))
        for k in range(4): self.dma_chunk(k)
        a("s_cmp_lg_u32 s2, 0")
        a("s_cbranch_scc1 L_nononce")
        a("s_cmp_lg_u32 s%d, 4" % S_W)
        a("s_cbranch_scc1 L_nononce")
        a("s_memrealtime s[%d:%d]" % (S_ST0, S_ST0 + 1))
        a("s_waitcnt lgkmcnt(0)")
        a("s_or_b32 s3, s%d, 1" % S_ST0)
        a("v_mov_b32 v5, s3")
        a("v_mov_b32 v6, 0")
        a("s_mov_b64 exec, 1")
        a("buffer_store_dword v5, v6, s[%d:%d], 0 offen sc1" % (SRD_DBG, SRD_DBG + 3))
        a("s_mov_b64 exec, -1")
        a.label("L_nononce")
        a("v_lshlrev_b32 v5, 2, v%d" % V_LANE)
        a("v_add_u32 v5, %d, v5" % LDS_SY)
        a("v_mov_b32 v6, 0")
        a("s_mov_b64 exec, 0xffff")
        a("ds_write_b32 v5, v6")
        a("s_mov_b64 exec, -1")
        a.label("L_pro_c")
        self.stamp(0)
        self.stamp(24)

    def pf_wrows(self, colbyte_sreg, row0_sreg, nrows16, dst):
        a = self.a
        a("v_lshrrev_b32 v5, 2, v%d" % V_LANE)
        a("v_add_u32 v5, s%d, v5" % row0_sreg)
        a("v_mul_u32_u24 v5, 2752, v5")
        a("v_and_b32 v6, 3, v%d" % V_LANE)
        a("v_lshlrev_b32 v6, 6, v6")
        a("v_min_u32 v6, 172, v6")
        a("v_add_u32 v5, v5, v6")
        for i in range(nrows16):
            a("s_add_u32 s3, s%d, %d" % (colbyte_sreg, i * 16 * 2752))
            a("buffer_load_dword a%d, v5, s[%d:%d], s3 offen" % (dst, SRD_WIN, SRD_WIN + 3))
        return nrows16

    def prefetch_start(self):
        a = self.a
        a("s_and_b32 s%d, s%d, 3" % (S_T0, S_MB))
        a("s_lshl_b32 s%d, s%d, 6" % (S_T0, S_T0))
        a("s_lshl_b32 s3, s%d, 4" % S_W)
        a("s_add_u32 s%d, s%d, s3" % (S_T0, S_T0))
        a("s_add_u32 s%d, s%d, 256" % (S_T0, S_T0))
        a("s_add_u32 s%d, s%d, 688" % (S_T1, S_F0))
        a("s_lshl_b32 s%d, s%d, 1" % (S_T1, S_T1))
        return self.pf_wrows(S_T1, S_T0, 1, 16)

    def prefetch_b(self):
        a = self.a
        a("s_and_b32 s%d, s%d, 3" % (S_T0, S_MB))
        a("s_lshl_b32 s%d, s%d, 7" % (S_T0, S_T0))
        a("s_lshl_b32 s3, s%d, 5" % S_W)
        a("s_add_u32 s%d, s%d, s3" % (S_T0, S_T0))
        a("s_lshl_b32 s%d, s%d, 1" % (S_T1, S_F0))
        self.pf_wrows(S_T1, S_T0, 2, 16)
        a("s_lshl_b32 s%d, s%d, 5" % (S_T0, S_J))
        a("s_and_b32 s3, s%d, 3" % S_MB)
        a("s_lshl_b32 s3, s3, 3")
        a("s_add_u32 s%d, s%d, s3" % (S_T0, S_T0))
        a("s_lshl_b32 s3, s%d, 1" % S_W)
        a("s_add_u32 s%d, s%d, s3" % (S_T0, S_T0))
        a("s_lshl_b32 s%d, s%d, 10" % (S_T0, S_T0))
        a("v_lshlrev_b32 v5, 4, v%d" % V_LANE)
        for i in range(2):
            a("buffer_load_dwordx4 a[16:19], v5, s[%d:%d], s%d offen offset:%d" % (S_IMLO, S_IMLO + 3, S_T0, i * 1024))

    def prefetch_wsp(self):
        a = self.a
        a("s_lshl_b32 s%d, s%d, 6" % (S_T0, S_MB))
        a("s_lshl_b32 s3, s%d, 3" % S_J)
        a("s_add_u32 s%d, s%d, s3" % (S_T0, S_T0))
        a("s_lshl_b32 s3, s%d, 1" % S_W)
        a("s_add_u32 s%d, s%d, s3" % (S_T0, S_T0))
        a("s_lshl_b32 s%d, s%d, 12" % (S_T0, S_T0))
        a("v_lshlrev_b32 v5, 4, v%d" % V_LANE)
        for i in range(8):
            a("buffer_load_dwordx4 a[16:19], v5, s[%d:%d], s%d offen" % (SRD_WSP, SRD_WSP + 3, S_T0))
            if i < 7: a("s_add_u32 s%d, s%d, 1024" % (S_T0, S_T0))

    def prefetch_wout(self):
        a = self.a
        a("s_and_b32 s3, s%d, 3" % S_MB)
        a("s_lshl_b32 s3, s3, 2")
        a("s_add_u32 s3, s3, s%d" % S_W)
        a("s_mul_i32 s%d, s3, 43" % S_T0)
        a("v_lshrrev_b32 v5, 1, v%d" % V_LANE)
        a("v_add_u32 v5, s%d, v5" % S_T0)
        a("v_lshlrev_b32 v5, 10, v5")
        a("v_and_b32 v6, 1, v%d" % V_LANE)
        a("v_lshl_add_u32 v5, v6, 6, v5")
        a("s_lshl_b32 s%d, s%d, 7" % (S_T0, S_J))
        a("buffer_load_dword a16, v5, s[%d:%d], s%d offen" % (SRD_WOUT, SRD_WOUT + 3, S_T0))
        a("s_add_u32 s%d, s%d, %d" % (S_T0, S_T0, 32 * 1024))
        a("buffer_load_dword a16, v5, s[%d:%d], s%d offen" % (SRD_WOUT, SRD_WOUT + 3, S_T0))

    def dma_chunk(self, k):
        a = self.a
        slot = LDS_WR + (k % NSLOT) * SLOT
        srd = SRD_DFT if k < 8 else S_IMLO
        a("s_add_u32 s%d, s%d, %d" % (S_T1, S_ROT1, k & 7))
        a("s_and_b32 s%d, s%d, 7" % (S_T1, S_T1))
        a("s_add_u32 m0, s%d, %d" % (S_DL0, slot + 12288))
        a("s_lshl_b32 s%d, s%d, 7" % (S_T0, S_T1))
        a("buffer_load_dwordx4 v%d, s[%d:%d], s%d offen lds" % (self.V_OD, srd, srd + 3, S_T0))
        a("s_mul_i32 s%d, s%d, %d" % (S_T1, S_T1, 64 * 2752))
        a("s_add_u32 m0, s%d, %d" % (S_WL0, slot))
        a("s_add_u32 s%d, s%d, s%d" % (S_T0, S_WSOFF if k < 8 else S_W2, S_T1))
        for p in range(3):
            a("buffer_load_dwordx4 v%d, s[%d:%d], s%d offen lds" % (self.V_OW + p, SRD_WIN, SRD_WIN + 3, S_T0))
            if p < 2:
                a("s_add_u32 m0, m0, 1024")
                a("s_nop 0")

    def xstage(self):
        a = self.a
        X = 32
        a("v_mov_b32 v23, 0x3f803f80")
        for i in range(4): a("v_mov_b32 v%d, 0" % (24 + i))
        a("v_bfe_u32 v5, v20, 1, 3")
        a("v_xor_b32 v5, v5, v21")
        a("v_lshlrev_b32 v5, 4, v5")
        a("v_lshl_add_u32 v28, v20, 7, v5")
        a("s_cmp_lt_u32 s%d, 4" % S_W)
        a("s_cbranch_scc1 L_xw_c")
        for path, younger in (("h", 16 + (5 if "tlbwarm" in self.exp else 0)), ("c", self.npf)):
            if path == "c": a.label("L_xw_c")
            for i in range(8):
                a("s_waitcnt vmcnt(%d)" % (younger + 7 - i))
                for r in range(4):
                    k = 4 * i + r
                    a("v_dot2c_f32_bf16 v%d, v%d, v23" % (24 + (k & 1), X + k))
                    a("v_dot2c_f32_bf16 v%d, v%d, v%d" % (26 + (k & 1), X + k, X + k))
            if path == "h": a("s_branch L_xw_d")
        a.label("L_xw_d")
        a("v_add_f32 v24, v24, v25")
        a("v_add_f32 v26, v26, v27")
        for dpp in ("quad_perm:[1,0,3,2]", "quad_perm:[2,3,0,1]", "row_half_mirror"):
            a("v_add_f32_dpp v25, v24, v24 %s row_mask:0xf bank_mask:0xf" % dpp)
            a("v_add_f32_dpp v27, v26, v26 %s row_mask:0xf bank_mask:0xf" % dpp)
            a("v_mov_b32 v24, v25")
            a("v_mov_b32 v26, v27")
        self.mean_rstd(24, 26, 512, 30, 31, 6)
        U = 64
        for i in range(8):
            for r in range(4):
                src = X + 4 * i + r
                t = U + 2 * ((4 * i + r) % 8)
                a("v_lshlrev_b32 v%d, 16, v%d" % (t, src))
                a("v_and_b32 v%d, 0xffff0000, v%d" % (t + 1, src))
                a("v_pk_fma_f32 v[%d:%d], v[%d:%d], v[30:31], v[30:31] op_sel:[0,0,1] op_sel_hi:[1,0,1]" % (t, t + 1, t, t + 1))
                a("v_cvt_pk_bf16_f32 v%d, v%d, v%d" % (src, t, t + 1))
            a("ds_write_b128 v28, v[%d:%d] offset:%d" % (X + 4 * i, X + 4 * i + 3, i * 8192))

    C_XA, C_AC, C_AN = 10, 14, 15
    C_FA, C_FB = 16, 32
    C_ACC = 64
    C_Z2P, C_Z1P = 96, 112
    C_GC1 = 6

    def c_setup(self, w3):
        a = self.a
        a("v_bfe_u32 v5, v%d, 1, 3" % V_SIG)
        a("v_lshlrev_b32 v6, 7, v%d" % V_SIG)
        for ks in range(4):
            a("v_add_u32 v8, %d, v%d" % (2 * ks, V_H))
            a("v_xor_b32 v8, v8, v5")
            a("v_lshl_add_u32 v%d, v8, 4, v6" % (self.C_XA + ks))
        if w3:
            for ks in range(4):
                a("v_add_u32 v%d, %d, v%d" % (116 + ks, LDS_WR + 12288, self.C_XA + ks))
        else:
            a("v_bfe_u32 v7, v%d, 2, 2" % V_LANE)
            a("v_lshl_add_u32 v7, v%d, 3, v7" % V_H)
            a("v_mul_u32_u24 v7, 192, v7")
            a("v_bfe_u32 v8, v%d, 4, 1" % V_LANE)
            a("v_lshlrev_b32 v8, 5, v8")
            a("v_and_b32 v9, 1, v%d" % V_LANE)
            a("v_lshl_add_u32 v8, v9, 4, v8")
            a("v_bfe_u32 v9, v%d, 1, 1" % V_LANE)
            a("v_lshl_add_u32 v8, v9, 3, v8")
            a("v_add_u32 v7, v7, v8")
            a("s_lshl_b32 s3, s%d, 6" % S_W)
            a("s_add_u32 s3, s3, %d" % LDS_WR)
            a("v_add_u32 v%d, s3, v7" % self.C_AC)
            a("v_add_u32 v%d, %d, v%d" % (self.C_AN, SLOT, self.C_AC))
            for Q in range(2):
                a("v_lshlrev_b32 v5, 3, v%d" % V_H)
                a("v_sub_u32 v5, v%d, v5" % V_SIG)
                if Q: a("v_subrev_u32 v5, 16, v5")
                a("v_and_b32 v6, 1, v5")
                a("v_lshlrev_b32 v6, 4, v6")
                a("v_mov_b32 v7, 0x3f80")
                a("v_lshlrev_b32 v6, v6, v7")
                a("v_lshrrev_b32 v5, 1, v5")
                for r in range(4):
                    a("v_cmp_eq_u32 vcc, %d, v5" % r)
                    a("v_cndmask_b32 v7, 0, v6, vcc")
                    a("v_accvgpr_write_b32 a%d, v7" % (4 * Q + r))

    def c_reads(self, w3, c, ks, nxt):
        A = self.C_FA + 4 * ks; B = self.C_FB + 8 * ks
        out = []
        xo = (c & 7) * 8192
        if w3:
            base = 124 + ks if nxt else 120 + ks
            out.append("ds_read_b128 v[%d:%d], v%d" % (A, A + 3, base))
        else:
            base = self.C_AN if nxt else self.C_AC
            out.append("ds_read_b64_tr_b16 v[%d:%d], v%d offset:%d" % (A, A + 1, base, ks * 3072))
            out.append("ds_read_b64_tr_b16 v[%d:%d], v%d offset:%d" % (A + 2, A + 3, base, ks * 3072 + 768))
        out.append("ds_read_b128 v[%d:%d], v%d offset:%d" % (B, B + 3, self.C_XA + ks, xo))
        out.append("ds_read_b128 v[%d:%d], v%d offset:%d" % (B + 4, B + 7, self.C_XA + ks, xo + 4096))
        return out

    def c_loop(self, w3):
        a = self.a
        nr = 3 if w3 else 4
        ACC = self.C_ACC
        def mfs(ks, first):
            A = self.C_FA + 4 * ks; B = self.C_FB + 8 * ks
            out = []
            for st in range(2):
                D = ACC + 16 * st
                cc = "0" if first else "v[%d:%d]" % (D, D + 15)
                if w3: out.append("v_mfma_f32_32x32x16_bf16 v[%d:%d], v[%d:%d], v[%d:%d], %s" % (D, D + 15, B + 4 * st, B + 4 * st + 3, A, A + 3, cc))
                else: out.append("v_mfma_f32_32x32x16_bf16 v[%d:%d], v[%d:%d], v[%d:%d], %s" % (D, D + 15, A, A + 3, B + 4 * st, B + 4 * st + 3, cc))
            return out
        a("s_mov_b32 s64, %d" % SLOT)
        if w3:
            for ks in range(4): a("v_add_u32 v%d, s%d, v%d" % (120 + ks, S_SLOT, 116 + ks))
        for r in self.c_reads(w3, 0, 0, False): a(r)
        for r in self.c_reads(w3, 0, 1, False): a(r)
        for c in range(8):
            a("s_barrier")
            extra = []
            if w3:
                extra += ["s_add_u32 s%d, s%d, %d" % (S_T1, S_SLOT, SLOT), "s_cmp_eq_u32 s%d, %d" % (S_T1, NSLOT * SLOT), "s_cselect_b32 s%d, 0, s%d" % (S_T1, S_T1),
                          "v_add_u32 v124, s%d, v116" % S_T1, "v_add_u32 v125, s%d, v117" % S_T1]
            for ks in range(4):
                if ks < 2: rd = self.c_reads(w3, c, ks + 2, False)
                else: rd = self.c_reads(w3, c + 1, ks - 2, True)
                if "cnoread" in self.exp: rd = []
                m = mfs(ks, c == 0 and ks == 0)
                if "cnomfma" in self.exp: m = []
                a("s_waitcnt lgkmcnt(%d)" % nr)
                half = (len(rd) + 1) // 2
                if m: a(m[0])
                if ks == 0:
                    for e in extra: a(e)
                for r in rd[:half]: a(r)
                if m: a(m[1])
                for r in rd[half:]: a(r)
                if ks == 3:
                    if w3:
                        a("s_mov_b32 s%d, s%d" % (S_SLOT, S_T1))
                        for k2 in range(4): a("v_add_u32 v%d, s%d, v%d" % (120 + k2, S_SLOT, 116 + k2))
                    else:
                        a("v_mov_b32 v%d, v%d" % (self.C_AC, self.C_AN))
                        a("s_add_u32 s%d, s%d, %d" % (S_SLOT, S_SLOT, SLOT))
                        a("s_cmp_eq_u32 s%d, %d" % (S_SLOT, NSLOT * SLOT))
                        a("s_cselect_b32 s%d, 0x%x, s64" % (S_T1, (-(NSLOT - 1) * SLOT) & 0xffffffff))
                        a("s_cselect_b32 s%d, 0, s%d" % (S_SLOT, S_SLOT))
                        a("v_add_u32 v%d, s%d, v%d" % (self.C_AN, S_T1, self.C_AN))
        a("s_waitcnt lgkmcnt(0)")

    def gelu_epilogue(self, dst):
        a = self.a
        E = 16
        c1 = -2.0 * math.sqrt(2.0 / math.pi) * math.log2(math.e)
        c2 = c1 * 0.044715
        a("v_mov_b32 v6, 0x%x" % f2u(c1))
        a("s_mov_b32 s%d, 0x%x" % (S_K2, f2u(c2)))
        a("s_mov_b32 s%d, 0x%x" % (S_K2 + 1, f2u(c2)))
        for pp in range(0, 16, 2):
            seq = [[], []]
            for u in range(2):
                pre = self.C_ACC + 2 * (pp + u)
                p2, e = E + u * 4, E + u * 4 + 2
                s = seq[u]
                s.append("v_pk_mul_f32 v[%d:%d], v[%d:%d], v[%d:%d]" % (p2, p2 + 1, pre, pre + 1, pre, pre + 1))
                s.append("v_pk_fma_f32 v[%d:%d], v[%d:%d], s[%d:%d], v[6:7] op_sel_hi:[1,1,0]" % (p2, p2 + 1, p2, p2 + 1, S_K2, S_K2 + 1))
                s.append("v_pk_mul_f32 v[%d:%d], v[%d:%d], v[%d:%d]" % (p2, p2 + 1, p2, p2 + 1, pre, pre + 1))
                s.append("v_exp_f32 v%d, v%d" % (e, p2))
                s.append("v_exp_f32 v%d, v%d" % (e + 1, p2 + 1))
                s.append("v_pk_add_f32 v[%d:%d], v[%d:%d], 1.0 op_sel_hi:[1,0]" % (e, e + 1, e, e + 1))
                s.append("v_rcp_f32 v%d, v%d" % (e, e))
                s.append("v_rcp_f32 v%d, v%d" % (e + 1, e + 1))
                s.append("v_pk_mul_f32 v[%d:%d], v[%d:%d], v[%d:%d]" % (e, e + 1, pre, pre + 1, e, e + 1))
                s.append("v_cvt_pk_bf16_f32 v%d, v%d, v%d" % (dst + pp + u, e, e + 1))
            for i in range(len(seq[0])):
                a(seq[0][i]); a(seq[1][i])

    def stats2_partial(self, src):
        a = self.a
        E = 16
        a("v_mov_b32 v24, 0x3f803f80")
        for i in range(4): a("v_mov_b32 v%d, 0" % (E + i))
        for r in range(8):
            for st in range(2):
                a("v_dot2c_f32_bf16 v%d, v%d, v24" % (E + 2 * st, src + 8 * st + r))
                a("v_dot2c_f32_bf16 v%d, v%d, v%d" % (E + 2 * st + 1, src + 8 * st + r, src + 8 * st + r))
        self.hsum([E, E + 1, E + 2, E + 3], E + 4)
        a("s_lshl_b32 s3, s%d, 9" % S_W)
        a("s_add_u32 s3, s3, %d" % LDS_T4)
        a("v_lshlrev_b32 v8, 3, v%d" % V_JL)
        a("v_add_u32 v8, s3, v8")
        a("ds_write_b64 v8, v[%d:%d]" % (E, E + 1))
        a("ds_write_b64 v8, v[%d:%d] offset:256" % (E + 2, E + 3))
        a("s_waitcnt lgkmcnt(0)")

    def dft_store(self, part):
        a = self.a
        a("v_and_b32 v5, 7, v%d" % V_SIG)
        a("v_xor_b32 v5, v5, v%d" % V_H)
        a("v_lshlrev_b32 v5, 4, v5")
        a("v_lshl_add_u32 v5, v%d, 7, v5" % V_SIG)
        a("v_add_u32 v5, %d, v5" % LDS_AT)
        for st in range(2):
            for Q in range(2):
                o = 16 + (st * 2 + Q) * 4
                for p in range(4):
                    acc = self.C_ACC + 16 * st + 8 * Q + 2 * p
                    a("v_cvt_pk_bf16_f32 v%d, v%d, v%d" % (o + p, acc, acc + 1))
                a("v_xor_b32 v6, %d, v5" % ((4 * st + 2 * Q) * 16))
                a("ds_write_b128 v6, v[%d:%d]" % (o, o + 3))
        a("v_lshrrev_b32 v7, 3, v%d" % V_LANE)
        a("v_and_b32 v8, 7, v%d" % V_LANE)
        a("v_xor_b32 v6, v7, v8")
        a("v_lshlrev_b32 v6, 4, v6")
        a("v_lshl_add_u32 v6, v7, 7, v6")
        a("v_add_u32 v6, %d, v6" % LDS_AT)
        a("s_waitcnt lgkmcnt(0)")
        for i in range(4):
            a("ds_read_b128 v[%d:%d], v6 offset:%d" % (32 + 4 * i, 35 + 4 * i, i * 1024))
        a("v_lshlrev_b32 v7, 13, v7")
        a("v_lshl_add_u32 v7, v8, 4, v7")
        a("s_lshl_b32 s%d, s%d, 18" % (S_T0, S_J))
        a("s_lshl_b32 s3, s%d, 7" % S_MB)
        a("s_add_u32 s%d, s%d, s3" % (S_T0, S_T0))
        a("s_add_u32 s%d, s%d, 0x%x" % (S_T0, S_T0, WS_AB + part * 4096))
        a("s_waitcnt lgkmcnt(0)")
        for i in range(4):
            a("buffer_store_dwordx4 v[%d:%d], v7, s[%d:%d], s%d offen sc1" % (32 + 4 * i, 35 + 4 * i, SRD_WS, SRD_WS + 3, S_T0))
            if i < 3: a("s_add_u32 s%d, s%d, %d" % (S_T0, S_T0, 8 * 8192))

    def z2n_publish(self):
        a = self.a
        a("v_lshlrev_b32 v8, 3, v%d" % V_JL)
        a("v_add_u32 v8, %d, v8" % LDS_T5)
        a("ds_read_b64 v[16:17], v8")
        a("ds_read_b64 v[18:19], v8 offset:256")
        a("s_waitcnt lgkmcnt(0)")
        N = 32
        for st in range(2):
            r2 = 16 + 2 * st
            for r in range(8):
                src = self.C_Z2P + 8 * st + r
                t = 20 + 2 * (r % 4)
                a("v_lshlrev_b32 v%d, 16, v%d" % (t, src))
                a("v_and_b32 v%d, 0xffff0000, v%d" % (t + 1, src))
                a("v_pk_fma_f32 v[%d:%d], v[%d:%d], v[%d:%d], v[%d:%d] op_sel:[0,0,1] op_sel_hi:[1,0,1]" % (t, t + 1, t, t + 1, r2, r2 + 1, r2, r2 + 1))
                a("v_cvt_pk_bf16_f32 v%d, v%d, v%d" % (N + 8 * st + r, t, t + 1))
        for st in range(2):
            D = self.C_ACC + 16 * st
            a("v_mfma_f32_32x32x16_bf16 v[%d:%d], v[%d:%d], a[0:3], 0" % (D, D + 15, N + 8 * st, N + 8 * st + 3))
        for st in range(2):
            D = self.C_ACC + 16 * st
            a("v_mfma_f32_32x32x16_bf16 v[%d:%d], v[%d:%d], a[4:7], v[%d:%d]" % (D, D + 15, N + 8 * st + 4, N + 8 * st + 7, D, D + 15))
        a("s_lshl_b32 s%d, s%d, 7" % (S_T0, S_J))
        a("s_lshl_b32 s%d, s%d, 2" % (S_T1, S_MB))
        a("s_add_u32 s%d, s%d, s%d" % (S_T0, S_T0, S_T1))
        a("s_mul_i32 s%d, s%d, 3" % (S_T0, S_T0))
        a("s_add_u32 s%d, s%d, s%d" % (S_T0, S_T0, S_W))
        a("s_lshl_b32 s%d, s%d, 10" % (S_T0, S_T0))
        a("s_add_u32 s%d, s%d, 0x%x" % (S_T0, S_T0, WS_Z2N))
        a("v_lshlrev_b32 v8, 4, v%d" % V_LANE)
        for st in range(2):
            for Q in range(2):
                D = self.C_ACC + 16 * st + 8 * Q
                o = 48 + (st * 2 + Q) * 4
                for p in range(4):
                    a("v_cvt_pk_bf16_f32 v%d, v%d, v%d" % (o + p, D + 2 * p, D + 2 * p + 1))
                a("s_add_u32 s%d, s%d, %d" % (S_T1, S_T0, (2 * st + Q) * 3072))
                if "nozstore" not in self.exp: a("buffer_store_dwordx4 v[%d:%d], v8, s[%d:%d], s%d offen sc1" % (o, o + 3, SRD_WS, SRD_WS + 3, S_T1))

    def zero_acc(self):
        for i in range(32): self.a("v_mov_b32 v%d, 0" % (self.C_ACC + i))

    def p1_compute(self):
        a = self.a
        a("s_cmp_eq_u32 s%d, 3" % S_W)
        a("s_cbranch_scc1 L_c3")
        self.c_setup(False)
        a("s_mov_b32 s%d, 0" % S_C)
        a("s_mov_b32 s%d, %d" % (S_SLOT, SLOT))
        a("s_mov_b32 s%d, 0" % S_PASS)
        a("s_waitcnt lgkmcnt(0)")
        a("s_barrier")
        if "nopf" not in self.exp: self.prefetch_b()
        self.stamp(1)
        a.label("L_pass")
        self.c_loop(False)
        a("s_cmp_lg_u32 s%d, 0" % S_PASS)
        a("s_cbranch_scc1 L_passB_done")
        self.stamp(2)
        if "nopf" not in self.exp: self.prefetch_wsp()
        self.gelu_epilogue(self.C_Z2P)
        self.stats2_partial(self.C_Z2P)
        a("s_barrier")
        a("v_mov_b32 v6, 0")
        a("buffer_load_dword a8, v6, s[%d:%d], 0 offen sc1" % (SRD_DBG, SRD_DBG + 3))
        a("s_lshl_b32 s%d, s%d, 7" % (S_T0, S_MB))
        a("v_lshlrev_b32 v5, 1, v%d" % V_SIG)
        a("buffer_load_ushort a9, v5, s[%d:%d], s%d offen" % (SRD_BSP, SRD_BSP + 3, S_T0))
        a("buffer_load_ushort a10, v5, s[%d:%d], s%d offen offset:64" % (SRD_BSP, SRD_BSP + 3, S_T0))
        if "nopf" not in self.exp: self.prefetch_wout()
        self.stamp(3)
        a("s_mov_b32 s%d, 1" % S_PASS)
        a("s_branch L_pass")
        a.label("L_passB_done")
        self.stamp(4)
        self.gelu_epilogue(self.C_Z1P)
        a("s_barrier")
        self.stamp(5)
        self.z2n_publish()
        a("s_branch L_c_join")
        a.label("L_c3")
        self.c_setup(True)
        a("s_mov_b32 s%d, 0" % S_C)
        a("s_mov_b32 s%d, 0" % S_SLOT)
        a("s_mov_b32 s%d, 0" % S_PASS)
        a("s_waitcnt lgkmcnt(0)")
        a("s_barrier")
        if "nopf" not in self.exp: self.prefetch_b()
        a.label("L_pass3")
        self.c_loop(True)
        a("s_cmp_lg_u32 s%d, 0" % S_PASS)
        a("s_cbranch_scc1 L_passB3_done")
        if "nopf" not in self.exp: self.prefetch_wsp()
        self.dft_store(0)
        a("s_barrier")
        a("v_mov_b32 v6, 0")
        a("buffer_load_dword a8, v6, s[%d:%d], 0 offen sc1" % (SRD_DBG, SRD_DBG + 3))
        if "nopf" not in self.exp: self.prefetch_wout()
        a("s_mov_b32 s%d, 1" % S_PASS)
        a("s_branch L_pass3")
        a.label("L_passB3_done")
        self.dft_store(1)
        a("s_waitcnt vmcnt(0)")
        a("v_accvgpr_read_b32 v39, a8")
        self.nonce_from(39)
        self.flag_store(1, 3)
        a("s_barrier")
        a.label("L_c_join")

    def fix_x_after_pass(self):
        a = self.a
        a("v_subrev_u32 v%d, 8192, v%d" % (self.C_XA, self.C_XA))
        a("v_subrev_u32 v%d, 8192, v%d" % (self.C_XA + 1, self.C_XA + 1))

    def capture(self, fn):
        save = self.a
        tmp = Asm(); tmp.uid = save.uid + 1000
        self.a = tmp
        fn()
        self.a = save
        save.uid = tmp.uid
        return [i.text for i in tmp.ins]

    def h_loop(self, k0):
        a = self.a
        consts = self.capture(self.fft_consts) if (k0 == 8 and "nofft" not in self.exp) else []
        per = (len(consts) + 7) // 8
        st = self.stage_loads() if k0 == 8 else []
        nst = 0
        for k in range(k0, k0 + 8):
            if k + 1 <= 15 and "hnowait" not in self.exp:
                younger = 4 * (min(k + 3, 15) - (k + 1))
                if nst:
                    lab = a.newlabel("hw")
                    a("s_cmp_ge_u32 s%d, 2" % S_HW)
                    a("s_cbranch_scc1 %s_b" % lab)
                    a("s_waitcnt vmcnt(%d)" % (younger + nst))
                    a("s_branch %s_d" % lab)
                    a.label(lab + "_b")
                    a("s_waitcnt vmcnt(%d)" % younger)
                    a.label(lab + "_d")
                else:
                    a("s_waitcnt vmcnt(%d)" % younger)
            a("s_barrier")
            if k + 4 <= 15: self.dma_chunk(k + 4)
            if k == 9:
                a("s_cmp_lg_u32 s%d, 0" % S_HW)
                a("s_cbranch_scc1 L_h_nf0")
                a("s_waitcnt vmcnt(8)")
                self.flag_store(0)
                a.label("L_h_nf0")
            if k == 11:
                self.wsp_voffsets(96)
                a("s_lshl_b32 s%d, s%d, 18" % (S_T1, S_MB))
                a("s_lshl_b32 s3, s%d, 10" % S_HW)
                a("s_add_u32 s%d, s%d, s3" % (S_T1, S_T1))
                a("s_add_u32 s67, s%d, %d" % (S_T1, 2 * 256))
                a("s_add_u32 s68, s%d, %d" % (S_T1, 3 * 256))
                a("s_add_u32 s69, s%d, %d" % (S_T1, 2 * 1024 + 2 * 256))
            if k0 == 0: continue
            lab = a.newlabel("role")
            a("s_cmp_lt_u32 s%d, 2" % S_HW)
            a("s_cbranch_scc1 %s_s" % lab)
            if consts:
                for t in consts[(k - k0) * per:(k - k0 + 1) * per]: a(t)
            a("s_branch %s_d" % lab)
            a.label(lab + "_s")
            if st and k >= 12:
                n = 12
                for t in st[2 * nst:2 * (nst + n)]: a(t)
                nst += n
            a.label(lab + "_d")

    def stats2_publish(self):
        a = self.a
        E = 16
        a("v_lshlrev_b32 v8, 3, v%d" % V_JL)
        a("v_add_u32 v8, %d, v8" % LDS_T4)
        for w in range(3):
            for st in range(2):
                d = E + w * 4 + st * 2
                a("ds_read_b64 v[%d:%d], v8 offset:%d" % (d, d + 1, w * 512 + st * 256))
        a("s_waitcnt lgkmcnt(0)")
        for w in range(1, 3):
            for st in range(2):
                a("v_pk_add_f32 v[%d:%d], v[%d:%d], v[%d:%d]" % (E + st * 2, E + st * 2 + 1, E + st * 2, E + st * 2 + 1, E + w * 4 + st * 2, E + w * 4 + st * 2 + 1))
        a("s_lshl_b32 s%d, s%d, 3" % (S_T0, S_MB))
        a("s_add_u32 s%d, s%d, s%d" % (S_T0, S_T0, S_J))
        a("s_lshl_b32 s%d, s%d, 9" % (S_T0, S_T0))
        a("s_add_u32 s%d, s%d, 0x%x" % (S_T0, S_T0, WS_STATS))
        a("v_lshlrev_b32 v8, 4, v%d" % V_JL)
        a("s_mov_b32 exec_hi, 0")
        a("buffer_store_dwordx4 v[%d:%d], v8, s[%d:%d], s%d offen sc1" % (E, E + 3, SRD_WS, SRD_WS + 3, S_T0))
        a("s_mov_b64 exec, -1")

    def stats2_consume(self):
        a = self.a
        E = 16
        a("v_lshlrev_b32 v8, 5, v%d" % V_LANE)
        a("v_add_u32 v8, s%d, v8" % S_MB)
        a("v_lshlrev_b32 v8, 7, v8")
        self.poll_flags(8, 8)
        a("s_lshl_b32 s%d, s%d, 12" % (S_T0, S_MB))
        a("s_add_u32 s%d, s%d, 0x%x" % (S_T0, S_T0, WS_STATS))
        a("v_lshlrev_b32 v8, 4, v%d" % V_JL)
        for jj in range(8):
            a("buffer_load_dwordx4 v[%d:%d], v8, s[%d:%d], s%d offen offset:%d sc1" % (E + 4 * jj, E + 3 + 4 * jj, SRD_WS, SRD_WS + 3, S_T0, jj * 512))
        a("s_waitcnt vmcnt(0)")
        for jj in range(1, 8):
            for q in range(2):
                a("v_pk_add_f32 v[%d:%d], v[%d:%d], v[%d:%d]" % (E + 2 * q, E + 1 + 2 * q, E + 2 * q, E + 1 + 2 * q, E + 4 * jj + 2 * q, E + 1 + 4 * jj + 2 * q))
        for st in range(2):
            self.mean_rstd(E + 2 * st, E + 1 + 2 * st, 688, E + 4 + 2 * st, E + 5 + 2 * st, E + 10)
        a("v_lshlrev_b32 v8, 3, v%d" % V_JL)
        a("v_add_u32 v8, %d, v8" % LDS_T5)
        a("ds_write_b64 v8, v[%d:%d]" % (E + 4, E + 5))
        a("ds_write_b64 v8, v[%d:%d] offset:256" % (E + 6, E + 7))
        a("s_waitcnt lgkmcnt(0)")

    def angles(self, n_list, tq, base, dst):
        a = self.a
        for idx, n in enumerate(n_list):
            if n == 0: a("v_mov_b32 v%d, v%d" % (dst + idx, base))
            else: a("v_fmamk_f32 v%d, v%d, 0x%x, v%d" % (dst + idx, tq, f2u(float(n)), base))

    H_T1F, H_8H = 46, 47
    def fft_consts(self):
        a = self.a
        T = 16
        a("v_bfe_u32 v%d, v%d, 2, 1" % (T, V_JL))
        a("v_lshlrev_b32 v%d, 4, v%d" % (T, T))
        a("v_bfe_u32 v%d, v%d, 3, 2" % (T + 1, V_JL))
        a("v_lshl_or_b32 v%d, v%d, 2, v%d" % (T, T + 1, T))
        a("v_and_b32 v%d, 3, v%d" % (T + 1, V_JL))
        a("v_or_b32 v%d, v%d, v%d" % (T, T, T + 1))
        a("v_cvt_f32_u32 v%d, v%d" % (self.H_T1F, T))
        a("v_cvt_f32_u32 v%d, v%d" % (self.H_8H, V_H))
        a("v_mul_f32 v%d, 0x%x, v%d" % (self.H_8H, f2u(8.0), self.H_8H))
        a("v_mul_f32 v%d, 0x%x, v%d" % (T + 2, f2u(1.0 / 32), self.H_T1F))
        a("v_mul_f32 v%d, v%d, v%d" % (T + 3, T + 2, self.H_8H))
        A = T + 4; C = T + 12; S = T + 20
        for ks in range(2):
            self.angles([16 * ks + i for i in range(8)], T + 2, T + 3, A)
            for i in range(8): a("v_fract_f32 v%d, v%d" % (A + i, A + i))
            for i in range(8):
                a("v_cos_f32 v%d, v%d" % (C + i, A + i))
                a("v_sin_f32 v%d, v%d" % (S + i, A + i))
            for p in range(4):
                a("v_cvt_pk_bf16_f32 v%d, v%d, v%d" % (A + 0, C + 2 * p, C + 2 * p + 1))
                a("v_cvt_pk_bf16_f32 v%d, -v%d, -v%d" % (A + 1, S + 2 * p, S + 2 * p + 1))
                a("v_cvt_pk_bf16_f32 v%d, v%d, v%d" % (A + 2, S + 2 * p, S + 2 * p + 1))
                a("v_accvgpr_write_b32 a%d, v%d" % (4 * ks + p, A + 0))
                a("v_accvgpr_write_b32 a%d, v%d" % (8 + 4 * ks + p, A + 1))
                a("v_accvgpr_write_b32 a%d, v%d" % (16 + 4 * ks + p, A + 2))
        a("v_accvgpr_write_b32 a60, v%d" % self.H_T1F)
        a("v_accvgpr_write_b32 a61, v%d" % self.H_8H)
        a("s_sub_u32 s3, s%d, 2" % S_HW)
        a("s_lshl_b32 s3, s3, 5")
        a("v_add_u32 v%d, s3, v%d" % (T + 2, V_JL))
        a("v_cvt_f32_u32 v%d, v%d" % (T + 2, T + 2))
        a("v_mul_f32 v%d, 0x%x, v%d" % (T + 2, f2u(1.0 / 64), T + 2))
        a("v_mul_f32 v%d, v%d, v%d" % (T + 3, T + 2, self.H_8H))
        for kt in range(2):
            for kp in range(2):
                self.angles([32 * kt + 16 * kp + i for i in range(8)], T + 2, T + 3, A)
                for i in range(8): a("v_fract_f32 v%d, v%d" % (A + i, A + i))
                for i in range(8):
                    a("v_cos_f32 v%d, v%d" % (C + i, A + i))
                    a("v_sin_f32 v%d, v%d" % (S + i, A + i))
                for p in range(4):
                    a("v_cvt_pk_bf16_f32 v%d, v%d, v%d" % (A + 0, C + 2 * p, C + 2 * p + 1))
                    a("v_cvt_pk_bf16_f32 v%d, v%d, v%d" % (A + 1, S + 2 * p, S + 2 * p + 1))
                    a("v_accvgpr_write_b32 a%d, v%d" % (24 + 16 * kt + 4 * kp + p, A + 0))
                    a("v_accvgpr_write_b32 a%d, v%d" % (24 + 16 * kt + 8 + 4 * kp + p, A + 1))

    def p1_helper(self):
        a = self.a
        a("s_mov_b32 s%d, 0" % S_C)
        a("v_mov_b32 v6, 0")
        a("buffer_load_dword v%d, v6, s[%d:%d], 0 offen sc1" % (self.V_NON, SRD_DBG, SRD_DBG + 3))
        a("s_waitcnt vmcnt(13) lgkmcnt(0)")
        a("s_barrier")
        self.h_loop(0)
        self.nonce_from(self.V_NON)
        a("s_barrier")
        a("s_cmp_lg_u32 s%d, 0" % S_HW)
        a("s_cbranch_scc1 L_h_nopub")
        self.stats2_publish()
        a.label("L_h_nopub")
        self.h_loop(8)
        a("s_cmp_lg_u32 s%d, 2" % S_HW)
        a("s_cbranch_scc1 L_h_nocons")
        self.stats2_consume()
        a.label("L_h_nocons")
        a("s_barrier")

    G_B = 16
    G_VB = 10
    G_VZ = 32
    G_L16 = 35
    G_BS = 36
    G_RV = 40
    def ring_reg(self, f):
        if f < 8: return "a[%d:%d]" % (96 + 4 * f, 96 + 4 * f + 3)
        r = self.G_RV + 4 * (f - 8)
        return "v[%d:%d]" % (r, r + 3)

    def g_compute(self):
        a = self.a
        a("v_lshlrev_b32 v%d, 4, v%d" % (self.G_L16, V_LANE))
        a("v_and_b32 v5, 15, v%d" % V_SIG)
        a("v_xor_b32 v5, v5, v%d" % V_H)
        a("v_lshlrev_b32 v5, 4, v5")
        a("v_lshl_add_u32 v5, v%d, 8, v5" % V_SIG)
        a("s_lshl_b32 s3, s%d, 15" % S_W)
        a("v_add_u32 v104, s3, v5")
        for k in range(1, 8): a("v_xor_b32 v%d, %d, v104" % (104 + k, k * 32))
        a("s_sub_u32 s%d, s%d, 64" % (S_T2, S_WID))
        for tau in range(3):
            a("s_add_u32 s%d, s%d, %d" % (S_T0, S_W, tau))
            a("s_cmp_ge_u32 s%d, 3" % S_T0)
            a("s_cselect_b32 s%d, 3, 0" % S_T1)
            a("s_sub_u32 s%d, s%d, s%d" % (S_T0, S_T0, S_T1))
            a("s_lshl_b32 s%d, s%d, 10" % (S_T1, S_T0))
            a("v_add_u32 v5, s%d, v%d" % (S_T1, self.G_L16))
            a("v_mov_b32 v6, 0x%x" % OOB)
            a("v_cmp_le_u32 vcc, s%d, v%d" % (S_T2, V_SIG))
            a("s_cmp_eq_u32 s%d, 2" % S_T0)
            a("s_cselect_b64 s[%d:%d], vcc, 0" % (S_EX, S_EX + 1))
            a("v_cndmask_b32 v%d, v5, v6, s[%d:%d]" % (self.G_VZ + tau, S_EX, S_EX + 1))
        a("s_lshl_b32 s3, s%d, 5" % S_J)
        a("s_lshl_b32 s%d, s%d, 3" % (S_T0, S_W))
        a("s_add_u32 s3, s3, s%d" % S_T0)
        a("v_add_u32 v38, s3, v%d" % V_LANE)
        a("v_lshlrev_b32 v38, 7, v38")
        a("v_add_u32 v38, 0x%x, v38" % (WS_FLAG + 256 * 128))
        a("s_lshl_b32 s%d, s%d, 7" % (S_B0, S_J))
        a("s_lshl_b32 s3, s%d, 5" % S_W)
        a("s_add_u32 s%d, s%d, s3" % (S_B0, S_B0))
        a("s_mov_b32 s%d, 0" % S_RHO)
        for cc in range(4):
            a("s_add_u32 s3, s%d, %d" % (S_RHO, cc))
            a("s_and_b32 s3, s3, 3")
            a("s_lshl_b32 s3, s3, 3")
            a("s_add_u32 s3, s3, s%d" % S_B0)
            a("s_mul_i32 s3, s3, 3072")
            a("s_add_u32 s%d, s3, 0x%x" % (67 + cc, WS_Z2N))
        a("s_waitcnt vmcnt(0)")
        a("s_cmp_eq_u32 s%d, 3" % S_W)
        a("s_cbranch_scc1 L_g_nf")
        a("v_accvgpr_read_b32 v39, a8")
        self.nonce_from(39)
        self.flag_store(1, 0, S_W)
        a.label("L_g_nf")
        a("v_accvgpr_read_b32 v%d, a9" % self.G_BS)
        a("v_accvgpr_read_b32 v%d, a10" % (self.G_BS + 1))
        self.stamp(7)
        self.poll_flags_n(38, 8, 3, 16)
        self.stamp(8)
        self.stamp(26)
        vq = VQ(a)
        def zload(n):
            a("s_add_u32 s%d, s%d, %d" % (S_T0, 67 + n // 8, (n % 8) * 3072))
            for tau in range(3):
                f = (n % 8) * 3 + tau
                a("buffer_load_dwordx4 %s, v%d, s[%d:%d], s%d offen %s" % (self.ring_reg(f), self.G_VZ + tau, SRD_WS, SRD_WS + 3, S_T0, "" if "gplain" in self.exp else "sc1"))
                vq.issue(("z", n))
        for n in range(8): zload(n)
        B = self.G_B
        SY_FREE = LDS_SY + 0
        SY_LAND = LDS_SY + 16
        a("s_lshl_b32 s3, s%d, 2" % S_W)
        a("s_add_u32 s3, s3, %d" % LDS_SY)
        a("v_mov_b32 v14, s3")
        def land_check(cnt):
            lab = a.newlabel("ld")
            a("s_mov_b32 s%d, 0" % S_SPIN)
            a.label(lab)
            a("ds_read_b32 v15, v14 offset:16")
            a("s_waitcnt lgkmcnt(0)")
            a("v_readfirstlane_b32 s%d, v15" % S_T1)
            a("s_add_u32 s%d, s%d, 1" % (S_SPIN, S_SPIN))
            a("s_cmp_gt_u32 s%d, 0x100000" % S_SPIN)
            a("s_cbranch_scc1 %s_x" % lab)
            a("s_cmp_lt_u32 s%d, %d" % (S_T1, cnt))
            a("s_cbranch_scc1 %s" % lab)
            a.label(lab + "_x")
        def bread(n, st):
            cc, k = divmod(n, 8)
            r = B + (n & 1) * 8 + st * 4
            return "ds_read_b128 v[%d:%d], v%d offset:%d" % (r, r + 3, 104 + k, (cc & 1) * 16384 + st * 8192)
        land_check(2)
        a(bread(0, 0)); a(bread(0, 1))
        for n in range(32):
            cc, k = divmod(n, 8)
            buf = n & 1
            vq.wait(("z", n))
            nxt = n + 1 < 32
            if nxt and (n + 1) % 8 == 0 and (n + 1) // 8 >= 2 and "gnoland" not in self.exp:
                a("s_waitcnt lgkmcnt(0)")
                land_check((n + 1) // 8 + 1)
            else:
                a("s_waitcnt lgkmcnt(0)")
            fill = []
            if nxt: fill += [bread(n + 1, 0), bread(n + 1, 1)]
            zl = []
            if n + 8 < 32:
                zl.append("s_add_u32 s%d, s%d, %d" % (S_T0, 67 + (n + 8) // 8, ((n + 8) % 8) * 3072))
            mi = 0
            for tau in range(3):
                for st in range(2):
                    D = (tau * 2 + st) * 16
                    Br = B + buf * 8 + st * 4
                    cc_ = "0" if n == 0 else "a[%d:%d]" % (D, D + 15)
                    a("v_mfma_f32_32x32x16_bf16 a[%d:%d], %s, v[%d:%d], %s" % (D, D + 15, self.ring_reg((n % 8) * 3 + tau), Br, Br + 3, cc_))
                    if mi == 0:
                        for f in fill: a(f)
                        for f in zl: a(f)
                    if st == 1 and n + 8 < 32 and "gnoz" not in self.exp:
                        f = (n % 8) * 3 + tau
                        a("buffer_load_dwordx4 %s, v%d, s[%d:%d], s%d offen %s" % (self.ring_reg(f), self.G_VZ + tau, SRD_WS, SRD_WS + 3, S_T0, "" if "gplain" in self.exp else "sc1"))
                        vq.issue(("z", n + 8))
                    mi += 1
            if k == 7 and cc < 2:
                a("v_mov_b32 v15, %d" % (cc + 1))
                a("ds_write_b32 v14, v15")
        self.stamp(27)
        self.stamp(10)
        self.g_reduce()

    def wsp_dma16(self, cc, sbase, slds):
        a = self.a
        for q in range(16):
            a("s_add_u32 s%d, s%d, %d" % (S_T0, 67 + cc, q * 4 * 4096))
            a("s_add_u32 m0, s%d, %d" % (slds, (cc & 1) * 16384 + q * 1024))
            a("buffer_load_dwordx4 v%d, s[%d:%d], s%d offen lds" % (16 + (q & 3), SRD_WSP, SRD_WSP + 3, S_T0))

    def wsp_voffsets(self, base):
        a = self.a
        L = V_LANE
        a("v_lshrrev_b32 v5, 4, v%d" % L)
        a("v_and_b32 v6, 15, v%d" % L)
        for qq in range(4):
            a("v_add_u32 v7, %d, v5" % (4 * qq))
            a("v_xor_b32 v7, v7, v6")
            a("v_lshlrev_b32 v7, 4, v7")
            a("v_lshl_add_u32 v%d, v5, 12, v7" % (base + qq))

    def stage_reg(self, unit, q):
        if unit < 2:
            r = unit * 64 + 4 * q
            return "a[%d:%d]" % (r, r + 3)
        r = 32 + 4 * q
        return "v[%d:%d]" % (r, r + 3)

    def stage_loads(self):
        out = []
        for unit in range(3):
            for q in range(16):
                out.append("s_add_u32 s%d, s%d, %d" % (S_T0, 67 + unit, q * 4 * 4096))
                out.append("buffer_load_dwordx4 %s, v%d, s[%d:%d], s%d offen" % (self.stage_reg(unit, q), 96 + (q & 3), SRD_WSP, SRD_WSP + 3, S_T0))
        return out

    def g_helper(self):
        a = self.a
        L = V_LANE
        self.wsp_voffsets(16)
        a("s_lshl_b32 s%d, s%d, 18" % (S_B0, S_MB))
        a("s_lshl_b32 s3, s%d, 10" % S_HW)
        a("s_add_u32 s%d, s%d, s3" % (S_B0, S_B0))
        a("s_mov_b32 s70, s%d" % S_B0)
        a("s_add_u32 s71, s%d, 256" % S_B0)
        a("s_lshl_b32 s%d, s%d, 15" % (S_T3, S_HW))
        for cc in range(2):
            for q in range(16):
                a("s_add_u32 s%d, s%d, %d" % (S_T0, 70 + cc, q * 4 * 4096))
                a("s_add_u32 m0, s%d, %d" % (S_T3, cc * 16384 + q * 1024))
                a("buffer_load_dwordx4 v%d, s[%d:%d], s%d offen lds" % (16 + (q & 3), SRD_WSP, SRD_WSP + 3, S_T0))
        a("s_lshl_b32 s3, s%d, 2" % S_HW)
        a("s_add_u32 s3, s3, %d" % LDS_SY)
        a("v_mov_b32 v12, s3")
        def wait_free(off, cnt):
            lab = a.newlabel("fr")
            a("s_mov_b32 s%d, 0" % S_SPIN)
            a.label(lab)
            a("ds_read_b32 v5, v12 offset:%d" % off)
            a("s_waitcnt lgkmcnt(0)")
            a("v_readfirstlane_b32 s%d, v5" % S_T0)
            a("s_add_u32 s%d, s%d, 1" % (S_SPIN, S_SPIN))
            a("s_cmp_gt_u32 s%d, 0x100000" % S_SPIN)
            a("s_cbranch_scc1 %s_x" % lab)
            a("s_cmp_lt_u32 s%d, %d" % (S_T0, cnt))
            a("s_cbranch_scc0 %s_x" % lab)
            a("s_sleep 1")
            a("s_branch %s" % lab)
            a.label(lab + "_x")
        a("s_cmp_ge_u32 s%d, 2" % S_HW)
        a("s_cbranch_scc1 L_gh_fft")
        a("s_waitcnt vmcnt(0)")
        a("v_mov_b32 v6, 2")
        a("ds_write_b32 v12, v6 offset:16")
        a("v_lshlrev_b32 v13, 4, v%d" % L)
        a("s_lshl_b32 s3, s%d, 15" % S_HW)
        a("v_add_u32 v13, s3, v13")
        a("v_add_u32 v14, 65536, v13")
        def put(unit, vaddr, slot, landoff, cnt):
            for q in range(16 if "noput" not in self.exp else 0):
                a("ds_write_b128 v%d, %s offset:%d" % (vaddr, self.stage_reg(unit, q), slot * 16384 + q * 1024))
            a("v_mov_b32 v6, %d" % cnt)
            a("s_waitcnt lgkmcnt(0)")
            a("ds_write_b32 v12, v6 offset:%d" % landoff)
        wait_free(0, 1); put(0, 13, 0, 16, 3)
        for q in range(16):
            a("s_add_u32 s%d, s69, %d" % (S_T0, 256 + q * 4 * 4096))
            a("buffer_load_dwordx4 a[%d:%d], v%d, s[%d:%d], s%d offen" % (4 * q, 4 * q + 3, 96 + (q & 3), SRD_WSP, SRD_WSP + 3, S_T0))
        wait_free(8, 1); put(2, 14, 0, 24, 3)
        wait_free(0, 2); put(1, 13, 1, 16, 4)
        wait_free(8, 2)
        a("s_waitcnt vmcnt(0)")
        put(0, 14, 1, 24, 4)
        a("s_branch L_gh_done")
        a.label("L_gh_fft")
        a("s_waitcnt vmcnt(0)")
        a("v_mov_b32 v6, 2")
        a("ds_write_b32 v12, v6 offset:16")
        if "nofft" not in self.exp:
            a("s_setprio 3")
            self.fft()
            a("s_setprio 0")
        a("s_waitcnt vmcnt(0)")
        a("s_sub_u32 s%d, s%d, 2" % (S_T1, S_HW))
        self.flag_store(3, 0, S_T1)
        self.stamp(19)
        a.label("L_gh_done")
        self.stamp(9)
        a("v_lshrrev_b32 v5, 3, v%d" % L)
        a("v_and_b32 v6, 7, v%d" % L)
        a("v_bfe_u32 v7, v%d, 4, 1" % L)
        a("v_lshlrev_b32 v7, 2, v7")
        a("v_xor_b32 v6, v6, v7")
        a("v_lshlrev_b32 v6, 4, v6")
        a("v_lshl_add_u32 v9, v5, 10, v6")
        a("s_lshl_b32 s3, s%d, 7" % S_J)
        a("v_add_u32 v9, s3, v9")
        def wo(g):
            a("s_mov_b32 m0, %d" % (LDS_WO + g * 1024))
            a("s_mov_b32 s%d, %d" % (S_T0, g * 8192))
            a("buffer_load_dwordx4 v9, s[%d:%d], s%d offen lds" % (SRD_WOUT, SRD_WOUT + 3, S_T0))
        early = {2: list(range(56, 64)) + list(range(75, 81)), 3: list(range(64, 72)) + list(range(81, 88))}
        done = set(early[2]) | set(early[3])
        rest = [g for g in range(88) if g not in done]
        assert LDS_SY + 64 <= LDS_WO + 75 * 1024 and LDS_AT >= LDS_WO + 75 * 1024
        for hw in (2, 3):
            lab = a.newlabel("wo")
            a("s_cmp_lg_u32 s%d, %d" % (S_HW, hw))
            a("s_cbranch_scc1 %s" % lab)
            for g in early[hw]: wo(g)
            a.label(lab)
        a("s_barrier")
        n = len(rest)
        per = (n + 3) // 4
        for hw in range(4):
            mine = rest[hw * per:(hw + 1) * per]
            lab = a.newlabel("wo")
            a("s_cmp_lg_u32 s%d, %d" % (S_HW, hw))
            a("s_cbranch_scc1 %s" % lab)
            for g in mine: wo(g)
            a.label(lab)
        a("s_barrier")
        self.final_pre()
        a("s_waitcnt vmcnt(0)")
        self.stamp(23)
        a("s_barrier")
        self.y_to_lds()
        a("s_barrier")
        self.stamp(6)
        self.final_h()

    def fft(self):
        a = self.a
        a("v_accvgpr_read_b32 v10, a60")
        a("v_accvgpr_read_b32 v11, a61")
        a("s_lshl_b32 s3, s%d, 5" % S_J)
        a("v_add_u32 v12, s3, v%d" % V_LANE)
        a("v_lshlrev_b32 v12, 7, v12")
        a("v_add_u32 v12, 0x%x, v12" % (WS_FLAG + 256 * 128 + 12))
        self.poll_flags_n(12, 32, 1, 16)
        a("v_lshlrev_b32 v13, 4, v%d" % V_LANE)
        a("s_lshl_b32 s3, s%d, 13" % S_L)
        a("s_add_u32 s3, s3, 0x%x" % WS_AB)
        X = 32
        for i in range(8):
            a("buffer_load_dwordx4 v[%d:%d], v13, s[%d:%d], s3 offen sc1" % (X + 4 * i, X + 4 * i + 3, SRD_WS, SRD_WS + 3))
            if i < 7: a("s_add_u32 s3, s3, 1024")
        a("s_sub_u32 s%d, s%d, 2" % (S_T1, S_HW))
        a("s_lshl_b32 s%d, s%d, 13" % (S_T2, S_T1))
        a("s_add_u32 s%d, s%d, %d" % (S_T2, S_T2, LDS_FX))
        a("v_add_u32 v14, s%d, v13" % S_T2)
        a("v_bfe_u32 v7, v%d, 2, 2" % V_LANE)
        a("v_lshl_add_u32 v7, v%d, 3, v7" % V_H)
        a("v_lshlrev_b32 v7, 7, v7")
        a("v_bfe_u32 v8, v%d, 4, 1" % V_LANE)
        a("v_lshlrev_b32 v8, 5, v8")
        a("v_and_b32 v9, 1, v%d" % V_LANE)
        a("v_lshl_add_u32 v8, v9, 4, v8")
        a("v_bfe_u32 v9, v%d, 1, 1" % V_LANE)
        a("v_lshl_add_u32 v8, v9, 3, v8")
        a("v_add_u32 v7, v7, v8")
        a("v_add_u32 v15, s%d, v7" % S_T2)
        a("s_waitcnt vmcnt(0)")
        for i in range(8):
            a("ds_write_b128 v14, v[%d:%d] offset:%d" % (X + 4 * i, X + 4 * i + 3, i * 1024))
        URE, UIM, A1, TC, TS, A2 = 32, 48, 16, 64, 80, 104
        D2 = 64
        def mm(D, A, B, first, dfile="v", afile="v", bfile="a"):
            a("v_mfma_f32_32x32x16_bf16 %s[%d:%d], %s[%d:%d], %s[%d:%d], %s" % (dfile, D, D + 15, afile, A, A + 3, bfile, B, B + 3, "0" if first else "%s[%d:%d]" % (dfile, D, D + 15)))
        for kt in range(2):
            a("v_mul_f32 v12, 0x%x, v10" % (f2u(1.0 / 2048)))
            a("v_mul_f32 v13, v12, v11")
            if kt == 0: a("s_waitcnt lgkmcnt(0)")
            for ks in range(4):
                for q in range(2):
                    r = A1 + 4 * ks + 2 * q
                    a("ds_read_b64_tr_b16 v[%d:%d], v15 offset:%d" % (r, r + 1, (ks >> 1) * 4096 + (ks & 1) * 2048 + q * 512 + kt * 64))
            for half in range(2):
                self.angles([32 * kt + 16 * half + i for i in range(8)], 12, 13, 120)
                for i in range(8):
                    a("v_cos_f32 v%d, v%d" % (TC + 8 * half + i, 120 + i))
                    a("v_sin_f32 v%d, v%d" % (TS + 8 * half + i, 120 + i))
            a("s_waitcnt lgkmcnt(0)")
            FRE, FIM, NFIM = 0, 8, 16
            mm(URE, A1, FRE, True); mm(UIM, A1, FIM, True)
            mm(URE, A1 + 4, FRE + 4, False); mm(UIM, A1 + 4, FIM + 4, False)
            mm(URE, A1 + 8, NFIM, False); mm(UIM, A1 + 8, FRE, False)
            mm(URE, A1 + 12, NFIM + 4, False); mm(UIM, A1 + 12, FRE + 4, False)
            for p in range(8):
                t0 = 96 + (p % 2) * 4
                for e in range(2):
                    re, im, c, s_ = URE + 2 * p + e, UIM + 2 * p + e, TC + 2 * p + e, TS + 2 * p + e
                    a("v_mul_f32 v%d, v%d, v%d" % (t0 + e, im, s_))
                    a("v_mul_f32 v%d, v%d, v%d" % (t0 + 2 + e, re, s_))
                    a("v_fmac_f32 v%d, v%d, v%d" % (t0 + e, re, c))
                    a("v_fma_f32 v%d, v%d, v%d, -v%d" % (t0 + 2 + e, im, c, t0 + 2 + e))
                a("v_cvt_pk_bf16_f32 v%d, v%d, v%d" % (A2 + p, t0, t0 + 1))
                a("v_cvt_pk_bf16_f32 v%d, v%d, v%d" % (A2 + 8 + p, t0 + 2, t0 + 3))
            G = 24 + 16 * kt
            mm(D2, A2, G, kt == 0, dfile="a"); mm(D2, A2 + 4, G + 4, False, dfile="a")
            mm(D2, A2 + 8, G + 8, False, dfile="a"); mm(D2, A2 + 12, G + 12, False, dfile="a")
        a("v_lshlrev_b32 v6, 7, v%d" % V_JL)
        a("v_lshl_add_u32 v6, v%d, 6, v6" % V_H)
        a("v_add_u32 v6, s%d, v6" % S_T2)
        for q in range(4):
            a("ds_write_b128 v6, a[%d:%d] offset:%d" % (D2 + 4 * q, D2 + 4 * q + 3, q * 16))
        a("s_waitcnt lgkmcnt(0)")
        for q in range(4):
            a("ds_read_b128 v[%d:%d], v14 offset:%d" % (32 + 4 * q, 35 + 4 * q, q * 1024))
        a("s_cmp_eq_u32 s%d, 0" % S_L)
        a("s_cselect_b32 s%d, 256, s%d" % (S_T0, S_L))
        a("s_lshl_b32 s%d, s%d, 13" % (S_T0, S_T0))
        a("s_lshl_b32 s3, s%d, 12" % S_T1)
        a("s_add_u32 s3, s3, s%d" % S_T0)
        a("s_add_u32 s3, s3, 0x%x" % WS_YT)
        a("v_lshlrev_b32 v6, 4, v%d" % V_LANE)
        a("v_lshlrev_b32 v7, 4, v%d" % V_LANE)
        a("v_sub_u32 v7, %d, v7" % (4096 - 12))
        a("v_add_u32 v7, s%d, v7" % S_T2)
        for i in range(4):
            for e in range(4):
                off = 12 - 4 * e - 1024 * i
                if off >= 0: a("ds_read_b32 v%d, v7 offset:%d" % (48 + 4 * i + e, off))
                else: a("ds_read_b32 v%d, v%d offset:%d" % (48 + 4 * i + e, 8, off + 3072))
            if i == 0: a("v_subrev_u32 v8, 3072, v7")
        a("s_waitcnt lgkmcnt(15)")
        a("s_waitcnt lgkmcnt(0)")
        for q in range(4):
            a("buffer_store_dwordx4 v[%d:%d], v6, s[%d:%d], s3 offen offset:%d sc1" % (32 + 4 * q, 35 + 4 * q, SRD_WS, SRD_WS + 3, q * 1024))
        a("s_cmp_eq_u32 s%d, 0" % S_L)
        a("s_cbranch_scc1 L_fft_nomir")
        a("s_sub_u32 s%d, 512, s%d" % (S_T0, S_L))
        a("s_lshl_b32 s%d, s%d, 13" % (S_T0, S_T0))
        a("s_xor_b32 s3, s%d, 1" % S_T1)
        a("s_lshl_b32 s3, s3, 12")
        a("s_add_u32 s3, s3, s%d" % S_T0)
        a("s_add_u32 s3, s3, 0x%x" % WS_YT)
        a("s_mov_b64 exec, 0xfffffffffffffffe" if False else "s_mov_b64 exec, -2")
        a("buffer_store_dwordx4 v[48:51], v6, s[%d:%d], s3 offen sc1" % (SRD_WS, SRD_WS + 3))
        a("s_mov_b64 exec, 1")
        a("buffer_store_dword v49, v6, s[%d:%d], s3 offen offset:4 sc1" % (SRD_WS, SRD_WS + 3))
        a("buffer_store_dwordx2 v[50:51], v6, s[%d:%d], s3 offen offset:8 sc1" % (SRD_WS, SRD_WS + 3))
        a("s_mov_b64 exec, -1")
        for q in range(1, 4):
            a("buffer_store_dwordx4 v[%d:%d], v6, s[%d:%d], s3 offen offset:%d sc1" % (48 + 4 * q, 51 + 4 * q, SRD_WS, SRD_WS + 3, q * 1024))
        a("s_lshl_b32 s3, s%d, 12" % S_T1)
        a("s_add_u32 s3, s3, s%d" % S_T0)
        a("s_add_u32 s3, s3, 0x%x" % WS_YT)
        a("s_mov_b64 exec, 1")
        a("buffer_store_dword v32, v6, s[%d:%d], s3 offen sc1" % (SRD_WS, SRD_WS + 3))
        a("s_mov_b64 exec, -1")
        a.label("L_fft_nomir")

    def g_reduce(self):
        a = self.a
        L16 = self.G_L16
        a("s_barrier")
        self.stamp(16)
        for tau in (1, 2, 0):
            if tau == 0:
                a("s_cmp_lg_u32 s%d, 3" % S_W)
                a("s_cbranch_scc1 L_exp_done")
            a("s_add_u32 s%d, s%d, %d" % (S_T0, S_W, tau))
            a("s_cmp_ge_u32 s%d, 3" % S_T0)
            a("s_cselect_b32 s%d, 3, 0" % S_T1)
            a("s_sub_u32 s%d, s%d, s%d" % (S_T0, S_T0, S_T1))
            a("s_sub_u32 s%d, s%d, s%d" % (S_T1, S_W, S_T0))
            a("s_sub_u32 s%d, s%d, 1" % (S_T1, S_T1))
            a("s_and_b32 s%d, s%d, 3" % (S_T1, S_T1))
            a("s_mul_i32 s%d, s%d, 3" % (S_T0, S_T0))
            a("s_add_u32 s%d, s%d, s%d" % (S_T0, S_T0, S_T1))
            a("s_lshl_b32 s%d, s%d, 13" % (S_T0, S_T0))
            a("v_add_u32 v5, s%d, v%d" % (S_T0, L16))
            for st in range(2):
                for q in range(4):
                    r = (tau * 2 + st) * 16 + 4 * q
                    a("ds_write_b128 v5, a[%d:%d] offset:%d" % (r, r + 3, st * 4096 + q * 1024))
        a.label("L_exp_done")
        a("s_waitcnt lgkmcnt(0)")
        self.stamp(17)
        a("s_barrier")
        self.stamp(11)
        a("s_cmp_eq_u32 s%d, 3" % S_W)
        a("s_cbranch_scc1 L_h_done")
        G = 40
        I = 72
        a("s_mul_i32 s%d, s%d, %d" % (S_T0, S_W, 3 * 8192))
        a("v_add_u32 v5, s%d, v%d" % (S_T0, L16))
        for st in range(2):
            for q in range(4):
                r = G + st * 16 + 4 * q
                a("ds_read_b128 v[%d:%d], v5 offset:%d" % (r, r + 3, 0 * 8192 + st * 4096 + q * 1024))
        for st in range(2):
            for q in range(4):
                r = I + st * 16 + 4 * q
                a("ds_read_b128 v[%d:%d], v5 offset:%d" % (r, r + 3, 1 * 8192 + st * 4096 + q * 1024))
        a("s_waitcnt lgkmcnt(0)")
        for p in range(16): a("v_pk_add_f32 v[%d:%d], v[%d:%d], v[%d:%d]" % (G + 2 * p, G + 2 * p + 1, G + 2 * p, G + 2 * p + 1, I + 2 * p, I + 2 * p + 1))
        for st in range(2):
            for q in range(4):
                r = I + st * 16 + 4 * q
                a("ds_read_b128 v[%d:%d], v5 offset:%d" % (r, r + 3, 2 * 8192 + st * 4096 + q * 1024))
        for i in range(0, 32, 8):
            for k in range(8): a("v_accvgpr_read_b32 v%d, a%d" % (16 + k, i + k))
            for p in range(4): a("v_pk_add_f32 v[%d:%d], v[%d:%d], v[%d:%d]" % (G + i + 2 * p, G + i + 2 * p + 1, G + i + 2 * p, G + i + 2 * p + 1, 16 + 2 * p, 16 + 2 * p + 1))
        a("s_waitcnt lgkmcnt(0)")
        for p in range(16): a("v_pk_add_f32 v[%d:%d], v[%d:%d], v[%d:%d]" % (G + 2 * p, G + 2 * p + 1, G + 2 * p, G + 2 * p + 1, I + 2 * p, I + 2 * p + 1))
        self.stamp(18)
        for st in range(2): a("v_lshlrev_b32 v%d, 16, v%d" % (self.G_BS + st, self.G_BS + st))
        for st in range(2):
            for r in range(8):
                src = self.C_Z1P + 8 * st + r
                g = G + 16 * st + 2 * r
                t = 16 + 2 * (r % 4)
                a("v_lshlrev_b32 v%d, 16, v%d" % (t, src))
                a("v_and_b32 v%d, 0xffff0000, v%d" % (t + 1, src))
                sel = "op_sel:[0,%d] op_sel_hi:[1,%d]" % (st, st)
                a("v_pk_add_f32 v[%d:%d], v[%d:%d], v[%d:%d] %s" % (g, g + 1, g, g + 1, self.G_BS, self.G_BS + 1, sel))
                a("v_pk_mul_f32 v[%d:%d], v[%d:%d], v[%d:%d]" % (g, g + 1, g, g + 1, t, t + 1))
                a("v_cvt_pk_bf16_f32 v%d, v%d, v%d" % (I + 8 * st + r, g, g + 1))
        a("s_mul_i32 s%d, s%d, 96" % (S_T0, S_MB))
        a("s_mul_i32 s%d, s%d, 6" % (S_T1, S_J))
        a("s_add_u32 s%d, s%d, s%d" % (S_T0, S_T0, S_T1))
        a("s_lshl_b32 s%d, s%d, 1" % (S_T1, S_W))
        a("s_add_u32 s%d, s%d, s%d" % (S_T0, S_T0, S_T1))
        a("s_lshl_b32 s%d, s%d, 10" % (S_T0, S_T0))
        a("s_add_u32 s%d, s%d, 0x%x" % (S_T0, S_T0, WS_H))
        for st in range(2):
            for Q in range(2):
                r = I + 8 * st + 4 * Q
                a("s_add_u32 s%d, s%d, %d" % (S_T1, S_T0, (st * 48 + Q) * 1024))
                if "nohstore" not in self.exp: a("buffer_store_dwordx4 v[%d:%d], v%d, s[%d:%d], s%d offen sc1" % (r, r + 3, L16, SRD_WS, SRD_WS + 3, S_T1))
                if "hdouble" in self.exp: a("buffer_store_dwordx4 v[%d:%d], v%d, s[%d:%d], s%d offen" % (r, r + 3, L16, SRD_WS, SRD_WS + 3, S_T1))
        self.stamp(20)
        a("s_waitcnt vmcnt(0)")
        self.stamp(21)
        self.flag_store(2, 0, S_W)
        a.label("L_h_done")
        self.o_pre()
        self.stamp(12)

    def o_pre(self):
        a = self.a
        a("s_lshr_b32 s%d, s%d, 1" % (S_T0, S_W))
        a("s_lshl_b32 s3, s%d, 2" % S_T0)
        a("v_add_u32 v40, s3, v%d" % V_LANE)
        a("v_lshlrev_b32 v40, 5, v40")
        a("v_add_u32 v40, s%d, v40" % S_MB)
        a("v_lshlrev_b32 v40, 7, v40")
        a("v_add_u32 v40, 0x%x, v40" % (WS_FLAG + 2 * 256 * 128))
        a("v_bfe_u32 v5, v%d, 2, 2" % V_LANE)
        a("v_lshl_add_u32 v5, v%d, 3, v5" % V_H)
        a("v_lshlrev_b32 v5, 7, v5")
        a("v_bfe_u32 v6, v%d, 4, 1" % V_LANE)
        a("v_lshlrev_b32 v6, 1, v6")
        a("v_and_b32 v7, 1, v%d" % V_LANE)
        a("v_or_b32 v6, v6, v7")
        a("v_bfe_u32 v7, v%d, 3, 1" % V_LANE)
        a("v_lshlrev_b32 v7, 2, v7")
        a("v_xor_b32 v6, v6, v7")
        a("s_lshl_b32 s3, s%d, 2" % S_T0)
        a("v_xor_b32 v6, s3, v6")
        a("v_bfe_u32 v7, v%d, 1, 1" % V_LANE)
        a("v_lshlrev_b32 v7, 3, v7")
        a("v_add_u32 v5, v5, v7")
        a("s_mul_i32 s3, s%d, %d" % (S_T0, 352 * 128))
        a("s_add_u32 s3, s3, %d" % LDS_WO)
        a("v_add_u32 v5, s3, v5")
        WA = 52
        a("v_lshl_add_u32 v%d, v6, 4, v5" % WA)
        a("v_xor_b32 v6, 4, v6")
        a("v_lshl_add_u32 v%d, v6, 4, v5" % (WA + 1))
        a("s_cmp_eq_u32 s%d, 0" % S_T0)
        a("s_cselect_b32 s3, 8, 0")
        a("s_add_u32 s3, s3, 256")
        a("s_lshl_b32 s3, s3, 7")
        a("v_add_u32 v%d, s3, v%d" % (WA + 2, WA))
        a("v_add_u32 v%d, s3, v%d" % (WA + 3, WA + 1))
        a("s_and_b32 s%d, s%d, 1" % (S_T1, S_W))
        a("s_lshl_b32 s3, s%d, 1" % S_MB)
        a("s_add_u32 s3, s3, s%d" % S_T1)
        a("s_mul_i32 s3, s3, 48")
        a("s_mul_i32 s%d, s%d, 24" % (S_B0, S_T0))
        a("s_add_u32 s%d, s%d, s3" % (S_B0, S_B0))
        a("s_lshl_b32 s%d, s%d, 10" % (S_B0, S_B0))
        a("s_add_u32 s%d, s%d, 0x%x" % (S_B0, S_B0, WS_H))

    def phase_o(self):
        a = self.a
        L16 = self.G_L16
        WA = 52
        self.poll_flags_n(40, 4, 3, 60)
        self.stamp(13)
        vq = VQ(a)
        NUP = 8
        def hload(n):
            r = 32 + 4 * n
            a("s_add_u32 s%d, s%d, %d" % (S_T0, S_B0, n * 1024))
            a("buffer_load_dwordx4 a[%d:%d], v%d, s[%d:%d], s%d offen sc1" % (r, r + 3, L16, SRD_WS, SRD_WS + 3, S_T0)); vq.issue(("h", n))
        for n in range(NUP): hload(n)
        a("s_barrier")
        SETS = [16, 24, 60, 68]
        def areads(n):
            jj, rem = divmod(n, 6); ft, Q = divmod(rem, 2)
            out = []
            for tp in range(2):
                base = WA + tp if jj < 3 else WA + 2 + tp
                off = ((88 * jj if jj < 3 else 0) + 32 * ft + 16 * Q) * 128
                r = SETS[n % 4] + tp * 4
                out.append("ds_read_b64_tr_b16 v[%d:%d], v%d offset:%d" % (r, r + 1, base, off))
                out.append("ds_read_b64_tr_b16 v[%d:%d], v%d offset:%d" % (r + 2, r + 3, base, off + 512))
            return out
        for n in range(3):
            for r in areads(n): a(r)
        for n in range(24):
            vq.wait(("h", n))
            later = min(2, 23 - n)
            a("s_waitcnt lgkmcnt(%d)" % (4 * later))
            rd = areads(n + 3) if n + 3 < 24 else []
            for tp in range(2):
                D = tp * 16
                Ar = SETS[n % 4] + tp * 4
                Br = 32 + 4 * n
                cc = "0" if n == 0 else "a[%d:%d]" % (D, D + 15)
                a("v_mfma_f32_32x32x16_bf16 a[%d:%d], v[%d:%d], a[%d:%d], %s" % (D, D + 15, Ar, Ar + 3, Br, Br + 3, cc))
                for r in rd[2 * tp:2 * tp + 2]: a(r)
                if tp == 0 and n + NUP < 24: hload(n + NUP)
        self.stamp(14)
        a("s_lshl_b32 s3, s%d, 13" % S_W)
        a("v_add_u32 v58, s3, v%d" % L16)
        for tp in range(2):
            for q in range(4):
                a("ds_write_b128 v58, a[%d:%d] offset:%d" % (16 * tp + 4 * q, 16 * tp + 4 * q + 3, tp * 4096 + q * 1024))
        a("s_waitcnt lgkmcnt(0)")
        a("s_barrier")

    def final_pre(self):
        a = self.a
        a("s_lshr_b32 s%d, s%d, 1" % (S_T0, S_HW))
        a("s_lshl_b32 s3, s%d, 6" % S_J)
        a("s_lshl_b32 s%d, s%d, 5" % (S_T2, S_T0))
        a("s_add_u32 s%d, s3, s%d" % (S_T2, S_T2))
        a("s_and_b32 s%d, s%d, 1" % (S_T1, S_HW))
        a("s_lshl_b32 s3, s%d, 6" % S_MB)
        a("s_lshl_b32 s%d, s%d, 5" % (S_T3, S_T1))
        a("s_add_u32 s3, s3, s%d" % S_T3)
        a("v_add_u32 v41, s3, v%d" % V_SIG)
        a("v_lshlrev_b32 v42, 10, v41")
        a("v_lshl_add_u32 v42, v%d, 4, v42" % V_H)
        a("s_lshl_b32 s3, s%d, 1" % S_T2)
        a("v_add_u32 v42, s3, v42")
        XR = 44
        a("buffer_load_dwordx4 v[%d:%d], v42, s[%d:%d], 0 offen" % (XR, XR + 3, SRD_X, SRD_X + 3))
        a("buffer_load_dwordx4 v[%d:%d], v42, s[%d:%d], 0 offen offset:32" % (XR + 4, XR + 7, SRD_X, SRD_X + 3))
        a("s_lshl_b32 s3, s%d, 6" % S_J)
        a("s_lshl_b32 s%d, s%d, 4" % (S_T0, S_HW))
        a("s_add_u32 s%d, s3, s%d" % (S_T0, S_T0))
        a("v_add_u32 v5, s%d, v%d" % (S_T0, V_LANE))
        a("v_sub_u32 v6, 512, v5")
        a("v_cmp_lt_u32 vcc, 256, v5")
        a("v_cndmask_b32 v6, v5, v6, vcc")
        a("v_and_b32 v6, 255, v6")
        a("v_lshlrev_b32 v43, 7, v6")
        a("v_add_u32 v43, 0x%x, v43" % (WS_FLAG + 3 * 256 * 128))
        a("v_lshrrev_b32 v5, 4, v%d" % V_LANE)
        a("v_add_u32 v5, s%d, v5" % S_T0)
        a("v_and_b32 v6, 15, v%d" % V_LANE)
        a("v_lshlrev_b32 v6, 4, v6")
        a("v_lshl_add_u32 v56, v5, 13, v6")
        a("v_mov_b32 v7, 0x%x" % OOB)
        a("v_cmp_eq_u32 vcc, 0, v5")
        a("v_cndmask_b32 v57, v56, v7, vcc")
        a("s_lshl_b32 s%d, s%d, 8" % (S_T3, S_MB))
        a("s_add_u32 s%d, s%d, 0x%x" % (S_T3, S_T3, WS_YT))
        self.poll_flags_n(43, 16, 2, 60)
        for i in range(4):
            a("buffer_load_dwordx4 v[%d:%d], v%d, s[%d:%d], s%d offen sc1" % (64 + 4 * i, 67 + 4 * i, 57 if i == 0 else 56, SRD_WS, SRD_WS + 3, S_T3))
            if i < 3: a("s_add_u32 s%d, s%d, %d" % (S_T3, S_T3, 4 * 8192))

    def y_to_lds(self):
        a = self.a
        a("v_lshrrev_b32 v5, 4, v%d" % V_LANE)
        a("v_and_b32 v6, 15, v%d" % V_LANE)
        a("v_lshlrev_b32 v6, 4, v6")
        a("v_lshl_add_u32 v5, v5, 8, v6")
        a("s_lshl_b32 s3, s%d, 12" % S_HW)
        a("s_add_u32 s3, s3, %d" % LDS_YS)
        a("v_add_u32 v5, s3, v5")
        a("s_waitcnt vmcnt(0)")
        for i in range(4):
            a("ds_write_b128 v5, v[%d:%d] offset:%d" % (64 + 4 * i, 67 + 4 * i, i * 1024))
        a("s_waitcnt lgkmcnt(0)")

    def final_h(self):
        a = self.a
        XR, Y, O = 44, 64, 80
        a("v_lshlrev_b32 v10, 4, v%d" % V_LANE)
        a("s_lshl_b32 s3, s%d, 13" % S_HW)
        a("v_add_u32 v11, s3, v10")
        a("s_xor_b32 s3, s%d, 2" % S_HW)
        a("s_lshl_b32 s3, s3, 13")
        a("s_add_u32 s3, s3, 4096")
        a("v_add_u32 v12, s3, v10")
        for q in range(4):
            a("ds_read_b128 v[%d:%d], v11 offset:%d" % (O + 4 * q, O + 4 * q + 3, q * 1024))
        for q in range(4):
            a("ds_read_b128 v[%d:%d], v12 offset:%d" % (96 + 4 * q, 96 + 4 * q + 3, q * 1024))
        a("s_lshr_b32 s%d, s%d, 1" % (S_T0, S_HW))
        a("s_lshl_b32 s3, s%d, 13" % S_T0)
        a("s_and_b32 s%d, s%d, 1" % (S_T1, S_HW))
        a("s_lshl_b32 s%d, s%d, 7" % (S_T1, S_T1))
        a("s_add_u32 s3, s3, s%d" % S_T1)
        a("s_add_u32 s3, s3, %d" % LDS_YS)
        a("v_lshlrev_b32 v5, 11, v%d" % V_H)
        a("v_lshl_add_u32 v5, v%d, 2, v5" % V_SIG)
        a("v_add_u32 v5, s3, v5")
        for rho in range(16):
            k = 16 * (rho >> 3) + (rho & 7)
            a("ds_read_b32 v%d, v5 offset:%d" % (Y + rho, k * 256))
        nl2e = f2u(-math.log2(math.e))
        a("s_mov_b32 s%d, 0x%x" % (S_K2, nl2e))
        a("s_mov_b32 s%d, 0x%x" % (S_K2 + 1, nl2e))
        a("s_and_b32 s%d, s%d, 1" % (S_T1, S_HW))
        a("s_lshl_b32 s3, s%d, 5" % S_T1)
        a("v_add_u32 v13, s3, v%d" % V_SIG)
        a("v_and_b32 v14, 7, v13")
        a("s_lshr_b32 s%d, s%d, 1" % (S_T0, S_HW))
        a("s_lshl_b32 s3, s%d, 2" % S_T0)
        a("v_add_u32 v15, s3, v%d" % V_H)
        a("v_xor_b32 v14, v14, v15")
        a("v_lshlrev_b32 v14, 4, v14")
        a("v_lshl_add_u32 v14, v13, 7, v14")
        a("v_add_u32 v14, 32768, v14")
        a("s_waitcnt lgkmcnt(0)")
        for p in range(8):
            a("v_pk_add_f32 v[%d:%d], v[%d:%d], v[%d:%d]" % (O + 2 * p, O + 2 * p + 1, O + 2 * p, O + 2 * p + 1, 96 + 2 * p, 96 + 2 * p + 1))
        for p in range(8):
            o = O + 2 * p; t = 96 + 2 * p
            a("v_pk_mul_f32 v[%d:%d], v[%d:%d], s[%d:%d]" % (t, t + 1, o, o + 1, S_K2, S_K2 + 1))
            a("v_exp_f32 v%d, v%d" % (t, t))
            a("v_exp_f32 v%d, v%d" % (t + 1, t + 1))
            a("v_pk_add_f32 v[%d:%d], v[%d:%d], 1.0 op_sel_hi:[1,0]" % (t, t + 1, t, t + 1))
            a("v_rcp_f32 v%d, v%d" % (t, t))
            a("v_rcp_f32 v%d, v%d" % (t + 1, t + 1))
            a("v_pk_mul_f32 v[%d:%d], v[%d:%d], v[%d:%d]" % (o, o + 1, o, o + 1, t, t + 1))
        for p in range(8):
            o = O + 2 * p; t = 96 + 2 * p; y = Y + 2 * p; xr = XR + p
            a("v_lshlrev_b32 v%d, 16, v%d" % (t, xr))
            a("v_and_b32 v%d, 0xffff0000, v%d" % (t + 1, xr))
            a("v_pk_fma_f32 v[%d:%d], v[%d:%d], v[%d:%d], v[%d:%d]" % (t, t + 1, y, y + 1, o, o + 1, t, t + 1))
            a("v_cvt_pk_bf16_f32 v%d, v%d, v%d" % (112 + p, t, t + 1))
        a("ds_write_b128 v14, v[112:115]")
        a("v_xor_b32 v14, 32, v14")
        a("ds_write_b128 v14, v[116:119]")
        a("s_waitcnt lgkmcnt(0)")
        a("s_barrier")
        a("v_lshrrev_b32 v5, 3, v%d" % V_LANE)
        a("v_and_b32 v6, 7, v%d" % V_LANE)
        a("v_xor_b32 v7, v5, v6")
        a("v_lshlrev_b32 v7, 4, v7")
        a("v_lshl_add_u32 v7, v5, 7, v7")
        a("s_lshl_b32 s3, s%d, 11" % S_HW)
        a("s_add_u32 s3, s3, 32768")
        a("v_add_u32 v7, s3, v7")
        a("ds_read_b128 v[16:19], v7")
        a("ds_read_b128 v[20:23], v7 offset:1024")
        a("v_lshlrev_b32 v8, 10, v5")
        a("v_lshl_add_u32 v8, v6, 4, v8")
        a("s_lshl_b32 s%d, s%d, 6" % (S_T0, S_MB))
        a("s_lshl_b32 s3, s%d, 4" % S_HW)
        a("s_add_u32 s%d, s%d, s3" % (S_T0, S_T0))
        a("s_lshl_b32 s%d, s%d, 10" % (S_T0, S_T0))
        a("s_lshl_b32 s3, s%d, 7" % S_J)
        a("s_add_u32 s%d, s%d, s3" % (S_T0, S_T0))
        a("s_waitcnt lgkmcnt(0)")
        fl = "" if "outplain" in self.exp else "sc1"
        a("buffer_store_dwordx4 v[16:19], v8, s[%d:%d], s%d offen %s" % (SRD_OUT, SRD_OUT + 3, S_T0, fl))
        a("s_add_u32 s%d, s%d, 8192" % (S_T0, S_T0))
        a("buffer_store_dwordx4 v[20:23], v8, s[%d:%d], s%d offen %s" % (SRD_OUT, SRD_OUT + 3, S_T0, fl))
        self.stamp(15)
        self.stamp(25)

    def build(self):
        a = self.a
        self.prologue()
        self.xstage()
        a("s_cmp_ge_u32 s%d, 4" % S_W)
        a("s_cbranch_scc1 L_helper")
        self.p1_compute()
        self.g_compute()
        self.phase_o()
        a("s_branch L_end")
        a.label("L_helper")
        self.p1_helper()
        self.g_helper()
        a.label("L_end")
        a("s_endpgm")
        a.finalize()
        hdr = open("cdna_kernels/%s.s.ref" % NAME).read().split("\n")
        head = []
        for line in hdr:
            if line.startswith("; @launch"):
                head.append("; @launch grid=(256,1,1) block=(512,1,1) lds=%d" % LDS_TOTAL)
            elif line.startswith(";"): head.append(line)
            else: break
        txt = "\n".join(head) + "\n"
        txt += '.amdgcn_target "amdgcn-amd-amdhsa--gfx950"\n.text\n.globl %s_kernel\n.p2align 8\n.type %s_kernel,@function\n%s_kernel:\n' % (NAME, NAME, NAME)
        body = a.text()
        if "codepf" in self.exp:
            body = body.replace("CODE_LEN", "(L_end - L_pc_here - 16)")
        txt += body
        txt += '.section .rodata,"a"\n.p2align 6\n.amdhsa_kernel %s_kernel\n' % NAME
        txt += "  .amdhsa_next_free_vgpr 256\n  .amdhsa_next_free_sgpr 102\n  .amdhsa_accum_offset 128\n"
        txt += "  .amdhsa_group_segment_fixed_size 0\n  .amdhsa_kernarg_size 104\n  .amdhsa_user_sgpr_count 2\n"
        txt += "  .amdhsa_user_sgpr_kernarg_segment_ptr 1\n  .amdhsa_system_sgpr_workgroup_id_x 1\n"
        txt += "  .amdhsa_float_denorm_mode_32 3\n"
        txt += ".end_amdhsa_kernel\n"
        return txt

if __name__ == "__main__":
    import argparse
    ap = argparse.ArgumentParser()
    ap.add_argument("--stamps", action="store_true")
    ap.add_argument("--exp", default="")
    ap.add_argument("-o", default="cdna_kernels/%s.s" % NAME)
    args = ap.parse_args()
    g = Gen(stamps=args.stamps, exp=[e for e in args.exp.split(',') if e])
    txt = g.build()
    open(args.o, "w").write(txt)
    print("wrote", args.o, len(txt), "bytes;", len([i for i in g.a.ins if i.kind not in ("label", "dir")]), "instrs")
```

```python
import sys, math, struct
sys.path.insert(0, "gen")
from asmlib import *

NAME = "recurrent_scan__spectral_fnet__mixer_gmlp__prompt"

WS_FLAG = 0x000000
WS_STATS = 0x020000
WS_Z2N = 0x100000
WS_AB = 0x400000
WS_H = 0x600000
WS_YT = 0x900000
WS_STAMP = 0xF00000
WS_SIZE = 0x4000000
OOB = 0x80000000

LDS_WR = 65536
SLOT = 16384
NSLOT = 5
LDS_T4 = 147456
LDS_T5 = LDS_T4 + 1536
LDS_SY = LDS_T5 + 512
LDS_AT = 151552
LDS_YS = 40960
LDS_FX = 131072
LDS_WO = 73728
LDS_TOTAL = 163840

SRD_X, SRD_WIN, SRD_DFT, SRD_WSP, SRD_WOUT, SRD_WS, SRD_OUT, SRD_BSP, SRD_DBG = 4, 8, 12, 20, 24, 28, 32, 36, 40
S_IMLO, S_IMHI = 16, 17
S_MB, S_J, S_W, S_F0, S_WID, S_NONCE, S_L = 44, 45, 46, 47, 48, 49, 50
S_C, S_SLOT, S_XD = 51, 52, 53
S_CN, S_KC128, S_WSOFF, S_SLOTN = 54, 55, 56, 57
S_HW = 58
S_DL0, S_WL0, S_W2 = 60, 61, 62
S_T0, S_T1, S_T2, S_T3 = 63, 90, 91, 92
S_PASS = 93
S_EX = 94
S_K2 = 96
S_SPIN = 98
S_B0 = 99
S_ST0 = 100
S_ROT1 = 59
S_RHO = 51

V_LANE, V_JL, V_H, V_SIG = 1, 2, 3, 4

def f2u(x): return struct.unpack("<I", struct.pack("<f", x))[0]

class Gen:
    def __init__(self, stop_after=None, stamps=False, exp=()):
        self.a = Asm()
        self.stop_after = stop_after
        self.stamps = stamps
        self.exp = set(exp)

    def stamp(self, idx):
        if "dbgst" in self.exp:
            mm_ = {0: (1, 0), 1: (2, 0), 2: (3, 0), 3: (4, 0), 4: (5, 0), 5: (6, 0), 7: (7, 0), 8: (8, 0), 10: (9, 0), 16: (10, 0), 11: (11, 0), 21: (12, 0), 13: (13, 0), 14: (14, 0), 15: (15, 4)}
            m = {k: v[0] for k, v in mm_.items()}
            if idx in m:
                a = self.a
                lab = a.newlabel("ds")
                a("s_cmp_lg_u32 s%d, %d" % (S_L, 37))
                a("s_cbranch_scc1 %s" % lab)
                a("s_cmp_lg_u32 s%d, %d" % (S_W, mm_[idx][1]))
                a("s_cbranch_scc1 %s" % lab)
                a("s_memrealtime s[%d:%d]" % (S_ST0, S_ST0 + 1))
                a("s_waitcnt lgkmcnt(0)")
                a("v_mov_b32 v9, s%d" % S_ST0)
                a("v_mov_b32 v8, %d" % (4 * m[idx]))
                a("s_mov_b64 exec, 1")
                a("buffer_store_dword v9, v8, s[%d:%d], 0 offen sc1" % (SRD_DBG, SRD_DBG + 3))
                a("s_mov_b64 exec, -1")
                a.label(lab)
            return
        if not self.stamps: return
        a = self.a
        a(("s_memtime s[%d:%d]" if idx >= 24 else "s_memrealtime s[%d:%d]") % (S_ST0, S_ST0 + 1))
        a("s_waitcnt lgkmcnt(0)")
        a("v_mov_b32 v9, s%d" % S_ST0)
        a("s_lshl_b32 s%d, s%d, 3" % (S_ST0, S_L))
        a("s_add_u32 s%d, s%d, s%d" % (S_ST0, S_ST0, S_W))
        a("s_lshl_b32 s%d, s%d, 7" % (S_ST0, S_ST0))
        a("s_add_u32 s%d, s%d, 0x%x" % (S_ST0, S_ST0, WS_STAMP + idx * 4))
        a("v_mov_b32 v8, 0")
        a("s_mov_b64 s[%d:%d], exec" % (S_EX, S_EX + 1))
        a("s_mov_b64 exec, 1")
        a("buffer_store_dword v9, v8, s[%d:%d], s%d offen" % (SRD_WS, SRD_WS + 3, S_ST0))
        a("s_mov_b64 exec, s[%d:%d]" % (S_EX, S_EX + 1))

    def srd(self, base, plo, size):
        a = self.a
        a("s_mov_b32 s%d, s%d" % (base, plo))
        a("s_and_b32 s%d, s%d, 0xffff" % (base + 1, plo + 1))
        a("s_mov_b32 s%d, 0x%x" % (base + 2, size))
        a("s_mov_b32 s%d, 0x20000" % (base + 3))

    def flag_store(self, kind, dw=0, dw_sreg=None):
        a = self.a
        a("s_lshl_b32 s%d, s%d, 7" % (S_T0, S_L))
        a("s_add_u32 s%d, s%d, 0x%x" % (S_T0, S_T0, WS_FLAG + kind * 256 * 128 + dw * 4))
        if dw_sreg is not None:
            a("s_lshl_b32 s3, s%d, 2" % dw_sreg)
            a("s_add_u32 s%d, s%d, s3" % (S_T0, S_T0))
        a("v_mov_b32 v5, s%d" % S_NONCE)
        a("v_mov_b32 v6, 0")
        a("s_mov_b64 exec, 1")
        a("buffer_store_dword v5, v6, s[%d:%d], s%d offen sc1" % (SRD_WS, SRD_WS + 3, S_T0))
        a("s_mov_b64 exec, -1")

    def poll_flags_n(self, vaddr, nlanes, ndw, vt):
        a = self.a
        lab = a.newlabel("poll")
        a("s_mov_b32 s%d, 0" % S_SPIN)
        mask = (1 << nlanes) - 1
        a("s_mov_b32 exec_lo, 0x%x" % (mask & 0xffffffff))
        a("s_mov_b32 exec_hi, 0x%x" % (mask >> 32))
        a.label(lab)
        if ndw == 1: a("buffer_load_dword v%d, v%d, s[%d:%d], 0 offen sc1" % (vt, vaddr, SRD_WS, SRD_WS + 3))
        elif ndw == 2: a("buffer_load_dwordx2 v[%d:%d], v%d, s[%d:%d], 0 offen sc1" % (vt, vt + 1, vaddr, SRD_WS, SRD_WS + 3))
        else: a("buffer_load_dwordx4 v[%d:%d], v%d, s[%d:%d], 0 offen sc1" % (vt, vt + 3, vaddr, SRD_WS, SRD_WS + 3))
        a("s_waitcnt vmcnt(0)")
        a("v_cmp_ne_u32 vcc, s%d, v%d" % (S_NONCE, vt))
        for i in range(1, ndw):
            a("v_cmp_ne_u32 s[%d:%d], s%d, v%d" % (S_EX, S_EX + 1, S_NONCE, vt + i))
            a("s_or_b64 vcc, vcc, s[%d:%d]" % (S_EX, S_EX + 1))
        a("s_add_u32 s%d, s%d, 1" % (S_SPIN, S_SPIN))
        a("s_cmp_gt_u32 s%d, 0x8000" % S_SPIN)
        a("s_cbranch_scc1 %s_x" % lab)
        a("s_cbranch_vccnz %s" % lab)
        a.label(lab + "_x")
        a("s_mov_b64 exec, -1")

    def get_nonce(self):
        a = self.a
        lab = a.newlabel("nonce")
        a("v_mov_b32 v6, 0")
        a("s_mov_b32 s%d, 0" % S_SPIN)
        a.label(lab)
        a("buffer_load_dword v5, v6, s[%d:%d], 0 offen sc1" % (SRD_DBG, SRD_DBG + 3))
        a("s_waitcnt vmcnt(0)")
        a("v_readfirstlane_b32 s%d, v5" % S_NONCE)
        a("s_add_u32 s%d, s%d, 1" % (S_SPIN, S_SPIN))
        a("s_cmp_gt_u32 s%d, 0x8000" % S_SPIN)
        a("s_cbranch_scc1 %s_x" % lab)
        a("s_cmp_eq_u32 s%d, 0" % S_NONCE)
        a("s_cbranch_scc1 %s" % lab)
        a.label(lab + "_x")

    def nonce_from(self, vreg):
        a = self.a
        lab = a.newlabel("hn")
        a("v_readfirstlane_b32 s%d, v%d" % (S_NONCE, vreg))
        a("s_cmp_lg_u32 s%d, 0" % S_NONCE)
        a("s_cbranch_scc1 %s" % lab)
        self.get_nonce()
        a.label(lab)

    def poll_flags(self, vaddr, nlanes):
        a = self.a
        lab = a.newlabel("poll")
        a("s_mov_b32 s%d, 0" % S_SPIN)
        mask = (1 << nlanes) - 1
        a("s_mov_b32 exec_lo, 0x%x" % (mask & 0xffffffff))
        a("s_mov_b32 exec_hi, 0x%x" % (mask >> 32))
        a.label(lab)
        a("buffer_load_dword v5, v%d, s[%d:%d], 0 offen sc1" % (vaddr, SRD_WS, SRD_WS + 3))
        a("s_waitcnt vmcnt(0)")
        a("v_cmp_ne_u32 vcc, s%d, v5" % S_NONCE)
        a("s_add_u32 s%d, s%d, 1" % (S_SPIN, S_SPIN))
        a("s_cmp_gt_u32 s%d, 0x8000" % S_SPIN)
        a("s_cbranch_scc1 %s_x" % lab)
        a("s_cbranch_vccnz %s" % lab)
        a.label(lab + "_x")
        a("s_mov_b64 exec, -1")

    def lds_wait_ge(self, addr, val, vt=5):
        a = self.a
        lab = a.newlabel("lw")
        a("s_mov_b32 s%d, 0" % S_SPIN)
        a("v_mov_b32 v%d, %d" % (vt + 1, addr))
        a.label(lab)
        a("ds_read_b32 v%d, v%d" % (vt, vt + 1))
        a("s_waitcnt lgkmcnt(0)")
        a("v_readfirstlane_b32 s%d, v%d" % (S_T0, vt))
        a("s_add_u32 s%d, s%d, 1" % (S_SPIN, S_SPIN))
        a("s_cmp_gt_u32 s%d, 0x100000" % S_SPIN)
        a("s_cbranch_scc1 %s_x" % lab)
        a("s_cmp_lt_u32 s%d, %d" % (S_T0, val))
        a("s_cbranch_scc1 %s" % lab)
        a.label(lab + "_x")

    def hsum(self, regs, tmp):
        a = self.a
        for i, r in enumerate(regs): a("v_mov_b32 v%d, v%d" % (tmp + i, r))
        for i, r in enumerate(regs): a("v_permlane32_swap_b32 v%d, v%d" % (r, tmp + i))
        for i, r in enumerate(regs): a("v_add_f32 v%d, v%d, v%d" % (r, r, tmp + i))

    def mean_rstd(self, vsum, vsq, n, dst_r, dst_nm, t):
        a = self.a
        a("v_mul_f32 v%d, 0x%x, v%d" % (t, f2u(1.0 / n), vsum))
        a("v_mul_f32 v%d, 0x%x, v%d" % (t + 1, f2u(1.0 / n), vsq))
        a("v_fma_f32 v%d, -v%d, v%d, v%d" % (t + 1, t, t, t + 1))
        a("v_max_f32 v%d, 0, v%d" % (t + 1, t + 1))
        a("v_add_f32 v%d, 0x%x, v%d" % (t + 1, f2u(1e-5), t + 1))
        a("v_rsq_f32 v%d, v%d" % (dst_r, t + 1))
        a("v_mul_f32 v%d, v%d, v%d" % (dst_nm, t, dst_r))
        a("v_sub_f32 v%d, 0, v%d" % (dst_nm, dst_nm))

    V_OD, V_OW = 10, 11
    V_NON = 14
    def prologue(self):
        a = self.a
        a("s_cmp_ge_u32 s2, 256")
        a("s_cbranch_scc1 L_end")
        a("s_load_dwordx16 s[64:79], s[0:1], 0")
        a("s_load_dwordx8 s[80:87], s[0:1], 64")
        a("s_load_dwordx2 s[88:89], s[0:1], 96")
        if "map42" in self.exp:
            a("s_bfe_u32 s%d, s2, 0x20001" % S_MB)
            a("s_lshl_b32 s%d, s%d, 3" % (S_MB, S_MB))
            a("s_bfe_u32 s3, s2, 0x30003")
            a("s_add_u32 s%d, s%d, s3" % (S_MB, S_MB))
            a("s_and_b32 s%d, s2, 1" % S_J)
            a("s_lshl_b32 s%d, s%d, 2" % (S_J, S_J))
            a("s_lshr_b32 s3, s2, 6")
            a("s_add_u32 s%d, s%d, s3" % (S_J, S_J))
        else:
            a("s_and_b32 s%d, s2, 7" % S_MB)
            a("s_lshl_b32 s%d, s%d, 2" % (S_MB, S_MB))
            a("s_bfe_u32 s3, s2, 0x20003")
            a("s_add_u32 s%d, s%d, s3" % (S_MB, S_MB))
            a("s_lshr_b32 s%d, s2, 5" % S_J)
        a("s_lshl_b32 s%d, s%d, 5" % (S_L, S_J))
        a("s_add_u32 s%d, s%d, s%d" % (S_L, S_L, S_MB))
        a("v_lshrrev_b32 v5, 6, v0")
        a("v_and_b32 v%d, 63, v0" % V_LANE)
        a("v_readfirstlane_b32 s%d, v5" % S_W)
        a("v_lshrrev_b32 v20, 3, v0")
        a("v_and_b32 v21, 7, v0")
        a("v_lshlrev_b32 v22, 10, v20")
        a("v_lshl_add_u32 v22, v21, 4, v22")
        a("s_lshl_b32 s%d, s%d, 16" % (S_T1, S_MB))
        a("s_and_b32 s%d, s%d, 3" % (S_HW, S_W))
        a("v_and_b32 v%d, 31, v0" % V_JL)
        a("v_bfe_u32 v%d, v0, 5, 1" % V_H)
        a("v_and_b32 v5, 0x13, v%d" % V_JL)
        a("v_and_b32 v6, 4, v%d" % V_JL)
        a("v_lshl_or_b32 v5, v6, 1, v5")
        a("v_and_b32 v6, 8, v%d" % V_JL)
        a("v_lshrrev_b32 v6, 1, v6")
        a("v_or_b32 v%d, v5, v6" % V_SIG)
        a("s_mul_i32 s%d, s%d, 88" % (S_F0, S_J))
        a("s_cmp_eq_u32 s%d, 7" % S_J)
        a("s_cselect_b32 s3, 8, 0")
        a("s_sub_u32 s%d, s%d, s3" % (S_F0, S_F0))
        a("s_cmp_ge_u32 s%d, 6" % S_J)
        a("s_cselect_b32 s3, 8, 0")
        a("s_sub_u32 s%d, 88, s3" % S_WID)
        for i in range(10, 14): a("v_mov_b32 v%d, 0" % i)
        if "codepf" in self.exp:
            a("s_getpc_b64 s[92:93]")
            a.label("L_pc_here")
            a("s_lshr_b32 s3, s2, 3")
            a("s_lshl_b32 s3, s3, 3")
            a("s_add_u32 s3, s3, s%d" % S_W)
            a("s_mul_i32 s3, s3, 192")
            a("v_lshlrev_b32 v5, 4, v%d" % V_LANE)
            a("v_add_u32 v5, s3, v5")
            a("v_min_u32 v5, CODE_LEN, v5")
            a("s_mov_b64 exec, 0xfff")
            a("global_load_dwordx4 a[20:23], v5, s[92:93]")
            a("s_mov_b64 exec, -1")
        a("s_waitcnt lgkmcnt(0)")
        self.srd(SRD_X, 64, 2048 * 1024)
        a("s_and_b32 s%d, s%d, 3" % (S_ROT1, S_MB))
        a("s_lshl_b32 s%d, s%d, 1" % (S_ROT1, S_ROT1))
        a("s_add_u32 s%d, s%d, s%d" % (S_ROT1, S_ROT1, S_J))
        a("s_and_b32 s%d, s%d, 7" % (S_ROT1, S_ROT1))
        if "norot" in self.exp: a("s_mov_b32 s%d, 0" % S_ROT1)
        for i in range(8):
            a("s_add_u32 s3, s%d, %d" % (S_ROT1, i))
            a("s_and_b32 s3, s3, 7")
            a("s_lshl_b32 s3, s3, 7")
            a("s_add_u32 s3, s3, s%d" % S_T1)
            a("buffer_load_dwordx4 v[%d:%d], v22, s[%d:%d], s3 offen" % (32 + 4 * i, 35 + 4 * i, SRD_X, SRD_X + 3))
        self.srd(SRD_WIN, 76, 512 * 2752)
        self.srd(SRD_DFT, 70, 512 * 1024)
        self.srd(S_IMLO, 72, 512 * 1024)
        self.srd(SRD_WS, 88, WS_SIZE)
        self.srd(SRD_DBG, 86, 256)
        self.srd(SRD_WSP, 78, 2048 * 4096)
        self.srd(SRD_WOUT, 82, 688 * 1024)
        self.srd(SRD_OUT, 84, 2048 * 1024)
        self.srd(SRD_BSP, 80, 4096)
        if "tlbwarm" in self.exp:
            a("v_lshlrev_b32 v5, 20, v%d" % V_LANE)
            a("v_add_u32 v5, 0x7f000, v5")
            a("s_mov_b64 exec, 0xfff")
            a("buffer_load_dword a24, v5, s[%d:%d], 0 offen sc1" % (SRD_WS, SRD_WS + 3))
            a("s_mov_b64 exec, 1")
            a("s_lshl_b32 s3, s%d, 16" % S_MB)
            a("v_mov_b32 v5, s3")
            a("buffer_load_dword a25, v5, s[%d:%d], 0 offen" % (SRD_OUT, SRD_OUT + 3))
            a("s_lshl_b32 s3, s%d, 18" % S_MB)
            a("v_mov_b32 v5, s3")
            a("buffer_load_dword a26, v5, s[%d:%d], 0 offen" % (SRD_WSP, SRD_WSP + 3))
            a("v_mov_b32 v5, 0")
            a("buffer_load_dword a27, v5, s[%d:%d], 0 offen" % (SRD_WOUT, SRD_WOUT + 3))
            a("buffer_load_dword a28, v5, s[%d:%d], 0 offen" % (SRD_BSP, SRD_BSP + 3))
            a("s_mov_b64 exec, -1")
        a("s_cmp_lt_u32 s%d, 4" % S_W)
        a("s_cbranch_scc0 L_pro_h")
        self.npf = (self.prefetch_start() if "nopf" not in self.exp else 0) + (5 if "tlbwarm" in self.exp else 0)
        a("s_branch L_pro_c")
        a.label("L_pro_h")
        L = V_LANE
        a("v_lshrrev_b32 v5, 3, v%d" % L)
        a("v_and_b32 v6, 7, v%d" % L)
        a("v_lshrrev_b32 v7, 4, v%d" % L)
        a("v_xor_b32 v8, v6, v7")
        a("v_lshlrev_b32 v8, 4, v8")
        a("s_lshl_b32 s3, s%d, 5" % S_J)
        a("s_lshl_b32 s%d, s%d, 3" % (S_T0, S_HW))
        a("s_add_u32 s3, s3, s%d" % S_T0)
        a("v_add_u32 v9, s3, v5")
        a("v_cmp_eq_u32 vcc, 0, v9")
        a("v_mov_b32 v6, 256")
        a("v_cndmask_b32 v9, v9, v6, vcc")
        a("s_and_b32 s%d, s%d, 1" % (S_T0, S_HW))
        a("s_lshl_b32 s%d, s%d, 6" % (S_T0, S_T0))
        a("v_xor_b32 v8, s%d, v8" % S_T0)
        a("v_lshl_add_u32 v%d, v9, 10, v8" % self.V_OD)
        for p in range(3):
            a("v_add_u32 v5, %d, v%d" % (64 * p, L))
            a("v_mul_u32_u24 v6, 171, v5")
            a("v_lshrrev_b32 v6, 11, v6")
            a("v_mul_u32_u24 v7, 12, v6")
            a("v_sub_u32 v7, v5, v7")
            a("v_mul_u32_u24 v6, 2752, v6")
            a("v_lshl_add_u32 v6, v7, 4, v6")
            a("v_lshlrev_b32 v7, 3, v7")
            a("v_cmp_gt_u32 vcc, s%d, v7" % S_WID)
            a("v_mov_b32 v8, 0x%x" % OOB)
            a("v_cndmask_b32 v%d, v8, v6, vcc" % (self.V_OW + p))
        a("s_lshl_b32 s%d, s%d, 10" % (S_DL0, S_HW))
        a("s_mul_i32 s%d, s%d, 3072" % (S_WL0, S_HW))
        a("s_mul_i32 s%d, s%d, %d" % (S_W2, S_HW, 16 * 2752))
        a("s_lshl_b32 s3, s%d, 1" % S_F0)
        a("s_add_u32 s%d, s%d, s3" % (S_W2, S_W2))
        a("s_add_u32 s%d, s%d, %d" % (S_WSOFF, S_W2, 688 * 2))
        for k in range(4): self.dma_chunk(k)
        a("s_cmp_lg_u32 s2, 0")
        a("s_cbranch_scc1 L_nononce")
        a("s_cmp_lg_u32 s%d, 4" % S_W)
        a("s_cbranch_scc1 L_nononce")
        a("s_memrealtime s[%d:%d]" % (S_ST0, S_ST0 + 1))
        a("s_waitcnt lgkmcnt(0)")
        a("s_or_b32 s3, s%d, 1" % S_ST0)
        a("v_mov_b32 v5, s3")
        a("v_mov_b32 v6, 0")
        a("s_mov_b64 exec, 1")
        a("buffer_store_dword v5, v6, s[%d:%d], 0 offen sc1" % (SRD_DBG, SRD_DBG + 3))
        a("s_mov_b64 exec, -1")
        a.label("L_nononce")
        a("v_lshlrev_b32 v5, 2, v%d" % V_LANE)
        a("v_add_u32 v5, %d, v5" % LDS_SY)
        a("v_mov_b32 v6, 0")
        a("s_mov_b64 exec, 0xffff")
        a("ds_write_b32 v5, v6")
        a("s_mov_b64 exec, -1")
        a.label("L_pro_c")
        self.stamp(0)
        self.stamp(24)

    def pf_wrows(self, colbyte_sreg, row0_sreg, nrows16, dst):
        a = self.a
        a("v_lshrrev_b32 v5, 2, v%d" % V_LANE)
        a("v_add_u32 v5, s%d, v5" % row0_sreg)
        a("v_mul_u32_u24 v5, 2752, v5")
        a("v_and_b32 v6, 3, v%d" % V_LANE)
        a("v_lshlrev_b32 v6, 6, v6")
        a("v_min_u32 v6, 172, v6")
        a("v_add_u32 v5, v5, v6")
        for i in range(nrows16):
            a("s_add_u32 s3, s%d, %d" % (colbyte_sreg, i * 16 * 2752))
            a("buffer_load_dword a%d, v5, s[%d:%d], s3 offen" % (dst, SRD_WIN, SRD_WIN + 3))
        return nrows16

    def prefetch_start(self):
        a = self.a
        a("s_and_b32 s%d, s%d, 3" % (S_T0, S_MB))
        a("s_lshl_b32 s%d, s%d, 6" % (S_T0, S_T0))
        a("s_lshl_b32 s3, s%d, 4" % S_W)
        a("s_add_u32 s%d, s%d, s3" % (S_T0, S_T0))
        a("s_add_u32 s%d, s%d, 256" % (S_T0, S_T0))
        a("s_add_u32 s%d, s%d, 688" % (S_T1, S_F0))
        a("s_lshl_b32 s%d, s%d, 1" % (S_T1, S_T1))
        return self.pf_wrows(S_T1, S_T0, 1, 16)

    def prefetch_b(self):
        a = self.a
        a("s_and_b32 s%d, s%d, 3" % (S_T0, S_MB))
        a("s_lshl_b32 s%d, s%d, 7" % (S_T0, S_T0))
        a("s_lshl_b32 s3, s%d, 5" % S_W)
        a("s_add_u32 s%d, s%d, s3" % (S_T0, S_T0))
        a("s_lshl_b32 s%d, s%d, 1" % (S_T1, S_F0))
        self.pf_wrows(S_T1, S_T0, 2, 16)
        a("s_lshl_b32 s%d, s%d, 5" % (S_T0, S_J))
        a("s_and_b32 s3, s%d, 3" % S_MB)
        a("s_lshl_b32 s3, s3, 3")
        a("s_add_u32 s%d, s%d, s3" % (S_T0, S_T0))
        a("s_lshl_b32 s3, s%d, 1" % S_W)
        a("s_add_u32 s%d, s%d, s3" % (S_T0, S_T0))
        a("s_lshl_b32 s%d, s%d, 10" % (S_T0, S_T0))
        a("v_lshlrev_b32 v5, 4, v%d" % V_LANE)
        for i in range(2):
            a("buffer_load_dwordx4 a[16:19], v5, s[%d:%d], s%d offen offset:%d" % (S_IMLO, S_IMLO + 3, S_T0, i * 1024))

    def prefetch_wsp(self):
        a = self.a
        a("s_lshl_b32 s%d, s%d, 6" % (S_T0, S_MB))
        a("s_lshl_b32 s3, s%d, 3" % S_J)
        a("s_add_u32 s%d, s%d, s3" % (S_T0, S_T0))
        a("s_lshl_b32 s3, s%d, 1" % S_W)
        a("s_add_u32 s%d, s%d, s3" % (S_T0, S_T0))
        a("s_lshl_b32 s%d, s%d, 12" % (S_T0, S_T0))
        a("v_lshlrev_b32 v5, 4, v%d" % V_LANE)
        for i in range(8):
            a("buffer_load_dwordx4 a[16:19], v5, s[%d:%d], s%d offen" % (SRD_WSP, SRD_WSP + 3, S_T0))
            if i < 7: a("s_add_u32 s%d, s%d, 1024" % (S_T0, S_T0))

    def prefetch_wout(self):
        a = self.a
        a("s_and_b32 s3, s%d, 3" % S_MB)
        a("s_lshl_b32 s3, s3, 2")
        a("s_add_u32 s3, s3, s%d" % S_W)
        a("s_mul_i32 s%d, s3, 43" % S_T0)
        a("v_lshrrev_b32 v5, 1, v%d" % V_LANE)
        a("v_add_u32 v5, s%d, v5" % S_T0)
        a("v_lshlrev_b32 v5, 10, v5")
        a("v_and_b32 v6, 1, v%d" % V_LANE)
        a("v_lshl_add_u32 v5, v6, 6, v5")
        a("s_lshl_b32 s%d, s%d, 7" % (S_T0, S_J))
        a("buffer_load_dword a16, v5, s[%d:%d], s%d offen" % (SRD_WOUT, SRD_WOUT + 3, S_T0))
        a("s_add_u32 s%d, s%d, %d" % (S_T0, S_T0, 32 * 1024))
        a("buffer_load_dword a16, v5, s[%d:%d], s%d offen" % (SRD_WOUT, SRD_WOUT + 3, S_T0))

    def dma_chunk(self, k):
        a = self.a
        slot = LDS_WR + (k % NSLOT) * SLOT
        srd = SRD_DFT if k < 8 else S_IMLO
        a("s_add_u32 s%d, s%d, %d" % (S_T1, S_ROT1, k & 7))
        a("s_and_b32 s%d, s%d, 7" % (S_T1, S_T1))
        a("s_add_u32 m0, s%d, %d" % (S_DL0, slot + 12288))
        a("s_lshl_b32 s%d, s%d, 7" % (S_T0, S_T1))
        a("buffer_load_dwordx4 v%d, s[%d:%d], s%d offen lds" % (self.V_OD, srd, srd + 3, S_T0))
        a("s_mul_i32 s%d, s%d, %d" % (S_T1, S_T1, 64 * 2752))
        a("s_add_u32 m0, s%d, %d" % (S_WL0, slot))
        a("s_add_u32 s%d, s%d, s%d" % (S_T0, S_WSOFF if k < 8 else S_W2, S_T1))
        for p in range(3):
            a("buffer_load_dwordx4 v%d, s[%d:%d], s%d offen lds" % (self.V_OW + p, SRD_WIN, SRD_WIN + 3, S_T0))
            if p < 2:
                a("s_add_u32 m0, m0, 1024")
                a("s_nop 0")

    def xstage(self):
        a = self.a
        X = 32
        a("v_mov_b32 v23, 0x3f803f80")
        for i in range(4): a("v_mov_b32 v%d, 0" % (24 + i))
        a("v_bfe_u32 v5, v20, 1, 3")
        a("v_xor_b32 v5, v5, v21")
        a("v_lshlrev_b32 v5, 4, v5")
        a("v_lshl_add_u32 v28, v20, 7, v5")
        a("s_cmp_lt_u32 s%d, 4" % S_W)
        a("s_cbranch_scc1 L_xw_c")
        for path, younger in (("h", 16 + (5 if "tlbwarm" in self.exp else 0)), ("c", self.npf)):
            if path == "c": a.label("L_xw_c")
            for i in range(8):
                a("s_waitcnt vmcnt(%d)" % (younger + 7 - i))
                for r in range(4):
                    k = 4 * i + r
                    a("v_dot2c_f32_bf16 v%d, v%d, v23" % (24 + (k & 1), X + k))
                    a("v_dot2c_f32_bf16 v%d, v%d, v%d" % (26 + (k & 1), X + k, X + k))
            if path == "h": a("s_branch L_xw_d")
        a.label("L_xw_d")
        a("v_add_f32 v24, v24, v25")
        a("v_add_f32 v26, v26, v27")
        for dpp in ("quad_perm:[1,0,3,2]", "quad_perm:[2,3,0,1]", "row_half_mirror"):
            a("v_add_f32_dpp v25, v24, v24 %s row_mask:0xf bank_mask:0xf" % dpp)
            a("v_add_f32_dpp v27, v26, v26 %s row_mask:0xf bank_mask:0xf" % dpp)
            a("v_mov_b32 v24, v25")
            a("v_mov_b32 v26, v27")
        self.mean_rstd(24, 26, 512, 30, 31, 6)
        U = 64
        for i in range(8):
            for r in range(4):
                src = X + 4 * i + r
                t = U + 2 * ((4 * i + r) % 8)
                a("v_lshlrev_b32 v%d, 16, v%d" % (t, src))
                a("v_and_b32 v%d, 0xffff0000, v%d" % (t + 1, src))
                a("v_pk_fma_f32 v[%d:%d], v[%d:%d], v[30:31], v[30:31] op_sel:[0,0,1] op_sel_hi:[1,0,1]" % (t, t + 1, t, t + 1))
                a("v_cvt_pk_bf16_f32 v%d, v%d, v%d" % (src, t, t + 1))
            a("ds_write_b128 v28, v[%d:%d] offset:%d" % (X + 4 * i, X + 4 * i + 3, i * 8192))

    C_XA, C_AC, C_AN = 10, 14, 15
    C_FA, C_FB = 16, 32
    C_ACC = 64
    C_Z2P, C_Z1P = 96, 112
    C_GC1 = 6

    def c_setup(self, w3):
        a = self.a
        a("v_bfe_u32 v5, v%d, 1, 3" % V_SIG)
        a("v_lshlrev_b32 v6, 7, v%d" % V_SIG)
        for ks in range(4):
            a("v_add_u32 v8, %d, v%d" % (2 * ks, V_H))
            a("v_xor_b32 v8, v8, v5")
            a("v_lshl_add_u32 v%d, v8, 4, v6" % (self.C_XA + ks))
        if w3:
            for ks in range(4):
                a("v_add_u32 v%d, %d, v%d" % (116 + ks, LDS_WR + 12288, self.C_XA + ks))
        else:
            a("v_bfe_u32 v7, v%d, 2, 2" % V_LANE)
            a("v_lshl_add_u32 v7, v%d, 3, v7" % V_H)
            a("v_mul_u32_u24 v7, 192, v7")
            a("v_bfe_u32 v8, v%d, 4, 1" % V_LANE)
            a("v_lshlrev_b32 v8, 5, v8")
            a("v_and_b32 v9, 1, v%d" % V_LANE)
            a("v_lshl_add_u32 v8, v9, 4, v8")
            a("v_bfe_u32 v9, v%d, 1, 1" % V_LANE)
            a("v_lshl_add_u32 v8, v9, 3, v8")
            a("v_add_u32 v7, v7, v8")
            a("s_lshl_b32 s3, s%d, 6" % S_W)
            a("s_add_u32 s3, s3, %d" % LDS_WR)
            a("v_add_u32 v%d, s3, v7" % self.C_AC)
            a("v_add_u32 v%d, %d, v%d" % (self.C_AN, SLOT, self.C_AC))
            for Q in range(2):
                a("v_lshlrev_b32 v5, 3, v%d" % V_H)
                a("v_sub_u32 v5, v%d, v5" % V_SIG)
                if Q: a("v_subrev_u32 v5, 16, v5")
                a("v_and_b32 v6, 1, v5")
                a("v_lshlrev_b32 v6, 4, v6")
                a("v_mov_b32 v7, 0x3f80")
                a("v_lshlrev_b32 v6, v6, v7")
                a("v_lshrrev_b32 v5, 1, v5")
                for r in range(4):
                    a("v_cmp_eq_u32 vcc, %d, v5" % r)
                    a("v_cndmask_b32 v7, 0, v6, vcc")
                    a("v_accvgpr_write_b32 a%d, v7" % (4 * Q + r))

    def c_reads(self, w3, c, ks, nxt):
        A = self.C_FA + 4 * ks; B = self.C_FB + 8 * ks
        out = []
        xo = (c & 7) * 8192
        if w3:
            base = 124 + ks if nxt else 120 + ks
            out.append("ds_read_b128 v[%d:%d], v%d" % (A, A + 3, base))
        else:
            base = self.C_AN if nxt else self.C_AC
            out.append("ds_read_b64_tr_b16 v[%d:%d], v%d offset:%d" % (A, A + 1, base, ks * 3072))
            out.append("ds_read_b64_tr_b16 v[%d:%d], v%d offset:%d" % (A + 2, A + 3, base, ks * 3072 + 768))
        out.append("ds_read_b128 v[%d:%d], v%d offset:%d" % (B, B + 3, self.C_XA + ks, xo))
        out.append("ds_read_b128 v[%d:%d], v%d offset:%d" % (B + 4, B + 7, self.C_XA + ks, xo + 4096))
        return out

    def c_loop(self, w3):
        a = self.a
        nr = 3 if w3 else 4
        ACC = self.C_ACC
        def mfs(ks, first):
            A = self.C_FA + 4 * ks; B = self.C_FB + 8 * ks
            out = []
            for st in range(2):
                D = ACC + 16 * st
                cc = "0" if first else "v[%d:%d]" % (D, D + 15)
                if w3: out.append("v_mfma_f32_32x32x16_bf16 v[%d:%d], v[%d:%d], v[%d:%d], %s" % (D, D + 15, B + 4 * st, B + 4 * st + 3, A, A + 3, cc))
                else: out.append("v_mfma_f32_32x32x16_bf16 v[%d:%d], v[%d:%d], v[%d:%d], %s" % (D, D + 15, A, A + 3, B + 4 * st, B + 4 * st + 3, cc))
            return out
        a("s_mov_b32 s64, %d" % SLOT)
        if w3:
            for ks in range(4): a("v_add_u32 v%d, s%d, v%d" % (120 + ks, S_SLOT, 116 + ks))
        for r in self.c_reads(w3, 0, 0, False): a(r)
        for r in self.c_reads(w3, 0, 1, False): a(r)
        for c in range(8):
            a("s_barrier")
            extra = []
            if w3:
                extra += ["s_add_u32 s%d, s%d, %d" % (S_T1, S_SLOT, SLOT), "s_cmp_eq_u32 s%d, %d" % (S_T1, NSLOT * SLOT), "s_cselect_b32 s%d, 0, s%d" % (S_T1, S_T1),
                          "v_add_u32 v124, s%d, v116" % S_T1, "v_add_u32 v125, s%d, v117" % S_T1]
            for ks in range(4):
                if ks < 2: rd = self.c_reads(w3, c, ks + 2, False)
                else: rd = self.c_reads(w3, c + 1, ks - 2, True)
                if "cnoread" in self.exp: rd = []
                m = mfs(ks, c == 0 and ks == 0)
                if "cnomfma" in self.exp: m = []
                a("s_waitcnt lgkmcnt(%d)" % nr)
                half = (len(rd) + 1) // 2
                if m: a(m[0])
                if ks == 0:
                    for e in extra: a(e)
                for r in rd[:half]: a(r)
                if m: a(m[1])
                for r in rd[half:]: a(r)
                if ks == 3:
                    if w3:
                        a("s_mov_b32 s%d, s%d" % (S_SLOT, S_T1))
                        for k2 in range(4): a("v_add_u32 v%d, s%d, v%d" % (120 + k2, S_SLOT, 116 + k2))
                    else:
                        a("v_mov_b32 v%d, v%d" % (self.C_AC, self.C_AN))
                        a("s_add_u32 s%d, s%d, %d" % (S_SLOT, S_SLOT, SLOT))
                        a("s_cmp_eq_u32 s%d, %d" % (S_SLOT, NSLOT * SLOT))
                        a("s_cselect_b32 s%d, 0x%x, s64" % (S_T1, (-(NSLOT - 1) * SLOT) & 0xffffffff))
                        a("s_cselect_b32 s%d, 0, s%d" % (S_SLOT, S_SLOT))
                        a("v_add_u32 v%d, s%d, v%d" % (self.C_AN, S_T1, self.C_AN))
        a("s_waitcnt lgkmcnt(0)")

    def gelu_epilogue(self, dst):
        a = self.a
        E = 16
        c1 = -2.0 * math.sqrt(2.0 / math.pi) * math.log2(math.e)
        c2 = c1 * 0.044715
        a("v_mov_b32 v6, 0x%x" % f2u(c1))
        a("s_mov_b32 s%d, 0x%x" % (S_K2, f2u(c2)))
        a("s_mov_b32 s%d, 0x%x" % (S_K2 + 1, f2u(c2)))
        for pp in range(0, 16, 2):
            seq = [[], []]
            for u in range(2):
                pre = self.C_ACC + 2 * (pp + u)
                p2, e = E + u * 4, E + u * 4 + 2
                s = seq[u]
                s.append("v_pk_mul_f32 v[%d:%d], v[%d:%d], v[%d:%d]" % (p2, p2 + 1, pre, pre + 1, pre, pre + 1))
                s.append("v_pk_fma_f32 v[%d:%d], v[%d:%d], s[%d:%d], v[6:7] op_sel_hi:[1,1,0]" % (p2, p2 + 1, p2, p2 + 1, S_K2, S_K2 + 1))
                s.append("v_pk_mul_f32 v[%d:%d], v[%d:%d], v[%d:%d]" % (p2, p2 + 1, p2, p2 + 1, pre, pre + 1))
                s.append("v_exp_f32 v%d, v%d" % (e, p2))
                s.append("v_exp_f32 v%d, v%d" % (e + 1, p2 + 1))
                s.append("v_pk_add_f32 v[%d:%d], v[%d:%d], 1.0 op_sel_hi:[1,0]" % (e, e + 1, e, e + 1))
                s.append("v_rcp_f32 v%d, v%d" % (e, e))
                s.append("v_rcp_f32 v%d, v%d" % (e + 1, e + 1))
                s.append("v_pk_mul_f32 v[%d:%d], v[%d:%d], v[%d:%d]" % (e, e + 1, pre, pre + 1, e, e + 1))
                s.append("v_cvt_pk_bf16_f32 v%d, v%d, v%d" % (dst + pp + u, e, e + 1))
            for i in range(len(seq[0])):
                a(seq[0][i]); a(seq[1][i])

    def stats2_partial(self, src):
        a = self.a
        E = 16
        a("v_mov_b32 v24, 0x3f803f80")
        for i in range(4): a("v_mov_b32 v%d, 0" % (E + i))
        for r in range(8):
            for st in range(2):
                a("v_dot2c_f32_bf16 v%d, v%d, v24" % (E + 2 * st, src + 8 * st + r))
                a("v_dot2c_f32_bf16 v%d, v%d, v%d" % (E + 2 * st + 1, src + 8 * st + r, src + 8 * st + r))
        self.hsum([E, E + 1, E + 2, E + 3], E + 4)
        a("s_lshl_b32 s3, s%d, 9" % S_W)
        a("s_add_u32 s3, s3, %d" % LDS_T4)
        a("v_lshlrev_b32 v8, 3, v%d" % V_JL)
        a("v_add_u32 v8, s3, v8")
        a("ds_write_b64 v8, v[%d:%d]" % (E, E + 1))
        a("ds_write_b64 v8, v[%d:%d] offset:256" % (E + 2, E + 3))
        a("s_waitcnt lgkmcnt(0)")

    def dft_store(self, part):
        a = self.a
        a("v_and_b32 v5, 7, v%d" % V_SIG)
        a("v_xor_b32 v5, v5, v%d" % V_H)
        a("v_lshlrev_b32 v5, 4, v5")
        a("v_lshl_add_u32 v5, v%d, 7, v5" % V_SIG)
        a("v_add_u32 v5, %d, v5" % LDS_AT)
        for st in range(2):
            for Q in range(2):
                o = 16 + (st * 2 + Q) * 4
                for p in range(4):
                    acc = self.C_ACC + 16 * st + 8 * Q + 2 * p
                    a("v_cvt_pk_bf16_f32 v%d, v%d, v%d" % (o + p, acc, acc + 1))
                a("v_xor_b32 v6, %d, v5" % ((4 * st + 2 * Q) * 16))
                a("ds_write_b128 v6, v[%d:%d]" % (o, o + 3))
        a("v_lshrrev_b32 v7, 3, v%d" % V_LANE)
        a("v_and_b32 v8, 7, v%d" % V_LANE)
        a("v_xor_b32 v6, v7, v8")
        a("v_lshlrev_b32 v6, 4, v6")
        a("v_lshl_add_u32 v6, v7, 7, v6")
        a("v_add_u32 v6, %d, v6" % LDS_AT)
        a("s_waitcnt lgkmcnt(0)")
        for i in range(4):
            a("ds_read_b128 v[%d:%d], v6 offset:%d" % (32 + 4 * i, 35 + 4 * i, i * 1024))
        a("v_lshlrev_b32 v7, 13, v7")
        a("v_lshl_add_u32 v7, v8, 4, v7")
        a("s_lshl_b32 s%d, s%d, 18" % (S_T0, S_J))
        a("s_lshl_b32 s3, s%d, 7" % S_MB)
        a("s_add_u32 s%d, s%d, s3" % (S_T0, S_T0))
        a("s_add_u32 s%d, s%d, 0x%x" % (S_T0, S_T0, WS_AB + part * 4096))
        a("s_waitcnt lgkmcnt(0)")
        for i in range(4):
            a("buffer_store_dwordx4 v[%d:%d], v7, s[%d:%d], s%d offen sc1" % (32 + 4 * i, 35 + 4 * i, SRD_WS, SRD_WS + 3, S_T0))
            if i < 3: a("s_add_u32 s%d, s%d, %d" % (S_T0, S_T0, 8 * 8192))

    def z2n_publish(self):
        a = self.a
        a("v_lshlrev_b32 v8, 3, v%d" % V_JL)
        a("v_add_u32 v8, %d, v8" % LDS_T5)
        a("ds_read_b64 v[16:17], v8")
        a("ds_read_b64 v[18:19], v8 offset:256")
        a("s_waitcnt lgkmcnt(0)")
        N = 32
        for st in range(2):
            r2 = 16 + 2 * st
            for r in range(8):
                src = self.C_Z2P + 8 * st + r
                t = 20 + 2 * (r % 4)
                a("v_lshlrev_b32 v%d, 16, v%d" % (t, src))
                a("v_and_b32 v%d, 0xffff0000, v%d" % (t + 1, src))
                a("v_pk_fma_f32 v[%d:%d], v[%d:%d], v[%d:%d], v[%d:%d] op_sel:[0,0,1] op_sel_hi:[1,0,1]" % (t, t + 1, t, t + 1, r2, r2 + 1, r2, r2 + 1))
                a("v_cvt_pk_bf16_f32 v%d, v%d, v%d" % (N + 8 * st + r, t, t + 1))
        for st in range(2):
            D = self.C_ACC + 16 * st
            a("v_mfma_f32_32x32x16_bf16 v[%d:%d], v[%d:%d], a[0:3], 0" % (D, D + 15, N + 8 * st, N + 8 * st + 3))
        for st in range(2):
            D = self.C_ACC + 16 * st
            a("v_mfma_f32_32x32x16_bf16 v[%d:%d], v[%d:%d], a[4:7], v[%d:%d]" % (D, D + 15, N + 8 * st + 4, N + 8 * st + 7, D, D + 15))
        a("s_lshl_b32 s%d, s%d, 7" % (S_T0, S_J))
        a("s_lshl_b32 s%d, s%d, 2" % (S_T1, S_MB))
        a("s_add_u32 s%d, s%d, s%d" % (S_T0, S_T0, S_T1))
        a("s_mul_i32 s%d, s%d, 3" % (S_T0, S_T0))
        a("s_add_u32 s%d, s%d, s%d" % (S_T0, S_T0, S_W))
        a("s_lshl_b32 s%d, s%d, 10" % (S_T0, S_T0))
        a("s_add_u32 s%d, s%d, 0x%x" % (S_T0, S_T0, WS_Z2N))
        a("v_lshlrev_b32 v8, 4, v%d" % V_LANE)
        for st in range(2):
            for Q in range(2):
                D = self.C_ACC + 16 * st + 8 * Q
                o = 48 + (st * 2 + Q) * 4
                for p in range(4):
                    a("v_cvt_pk_bf16_f32 v%d, v%d, v%d" % (o + p, D + 2 * p, D + 2 * p + 1))
                a("s_add_u32 s%d, s%d, %d" % (S_T1, S_T0, (2 * st + Q) * 3072))
                if "nozstore" not in self.exp: a("buffer_store_dwordx4 v[%d:%d], v8, s[%d:%d], s%d offen sc1" % (o, o + 3, SRD_WS, SRD_WS + 3, S_T1))

    def zero_acc(self):
        for i in range(32): self.a("v_mov_b32 v%d, 0" % (self.C_ACC + i))

    def p1_compute(self):
        a = self.a
        a("s_cmp_eq_u32 s%d, 3" % S_W)
        a("s_cbranch_scc1 L_c3")
        self.c_setup(False)
        a("s_mov_b32 s%d, 0" % S_C)
        a("s_mov_b32 s%d, %d" % (S_SLOT, SLOT))
        a("s_mov_b32 s%d, 0" % S_PASS)
        a("s_waitcnt lgkmcnt(0)")
        a("s_barrier")
        if "nopf" not in self.exp: self.prefetch_b()
        self.stamp(1)
        a.label("L_pass")
        self.c_loop(False)
        a("s_cmp_lg_u32 s%d, 0" % S_PASS)
        a("s_cbranch_scc1 L_passB_done")
        self.stamp(2)
        if "nopf" not in self.exp: self.prefetch_wsp()
        self.gelu_epilogue(self.C_Z2P)
        self.stats2_partial(self.C_Z2P)
        a("s_barrier")
        a("v_mov_b32 v6, 0")
        a("buffer_load_dword a8, v6, s[%d:%d], 0 offen sc1" % (SRD_DBG, SRD_DBG + 3))
        a("s_lshl_b32 s%d, s%d, 7" % (S_T0, S_MB))
        a("v_lshlrev_b32 v5, 1, v%d" % V_SIG)
        a("buffer_load_ushort a9, v5, s[%d:%d], s%d offen" % (SRD_BSP, SRD_BSP + 3, S_T0))
        a("buffer_load_ushort a10, v5, s[%d:%d], s%d offen offset:64" % (SRD_BSP, SRD_BSP + 3, S_T0))
        if "nopf" not in self.exp: self.prefetch_wout()
        self.stamp(3)
        a("s_mov_b32 s%d, 1" % S_PASS)
        a("s_branch L_pass")
        a.label("L_passB_done")
        self.stamp(4)
        self.gelu_epilogue(self.C_Z1P)
        a("s_barrier")
        self.stamp(5)
        self.z2n_publish()
        a("s_branch L_c_join")
        a.label("L_c3")
        self.c_setup(True)
        a("s_mov_b32 s%d, 0" % S_C)
        a("s_mov_b32 s%d, 0" % S_SLOT)
        a("s_mov_b32 s%d, 0" % S_PASS)
        a("s_waitcnt lgkmcnt(0)")
        a("s_barrier")
        if "nopf" not in self.exp: self.prefetch_b()
        a.label("L_pass3")
        self.c_loop(True)
        a("s_cmp_lg_u32 s%d, 0" % S_PASS)
        a("s_cbranch_scc1 L_passB3_done")
        if "nopf" not in self.exp: self.prefetch_wsp()
        self.dft_store(0)
        a("s_barrier")
        a("v_mov_b32 v6, 0")
        a("buffer_load_dword a8, v6, s[%d:%d], 0 offen sc1" % (SRD_DBG, SRD_DBG + 3))
        if "nopf" not in self.exp: self.prefetch_wout()
        a("s_mov_b32 s%d, 1" % S_PASS)
        a("s_branch L_pass3")
        a.label("L_passB3_done")
        self.dft_store(1)
        a("s_waitcnt vmcnt(0)")
        a("v_accvgpr_read_b32 v39, a8")
        self.nonce_from(39)
        self.flag_store(1, 3)
        a("s_barrier")
        a.label("L_c_join")

    def fix_x_after_pass(self):
        a = self.a
        a("v_subrev_u32 v%d, 8192, v%d" % (self.C_XA, self.C_XA))
        a("v_subrev_u32 v%d, 8192, v%d" % (self.C_XA + 1, self.C_XA + 1))

    def capture(self, fn):
        save = self.a
        tmp = Asm(); tmp.uid = save.uid + 1000
        self.a = tmp
        fn()
        self.a = save
        save.uid = tmp.uid
        return [i.text for i in tmp.ins]

    def h_loop(self, k0):
        a = self.a
        consts = self.capture(self.fft_consts) if (k0 == 8 and "nofft" not in self.exp) else []
        per = (len(consts) + 7) // 8
        st = self.stage_loads() if k0 == 8 else []
        nst = 0
        for k in range(k0, k0 + 8):
            if k + 1 <= 15 and "hnowait" not in self.exp:
                younger = 4 * (min(k + 3, 15) - (k + 1))
                if nst:
                    lab = a.newlabel("hw")
                    a("s_cmp_ge_u32 s%d, 2" % S_HW)
                    a("s_cbranch_scc1 %s_b" % lab)
                    a("s_waitcnt vmcnt(%d)" % (younger + nst))
                    a("s_branch %s_d" % lab)
                    a.label(lab + "_b")
                    a("s_waitcnt vmcnt(%d)" % younger)
                    a.label(lab + "_d")
                else:
                    a("s_waitcnt vmcnt(%d)" % younger)
            a("s_barrier")
            if k + 4 <= 15: self.dma_chunk(k + 4)
            if k == 9:
                a("s_cmp_lg_u32 s%d, 0" % S_HW)
                a("s_cbranch_scc1 L_h_nf0")
                a("s_waitcnt vmcnt(8)")
                self.flag_store(0)
                a.label("L_h_nf0")
            if k == 11:
                self.wsp_voffsets(96)
                a("s_lshl_b32 s%d, s%d, 18" % (S_T1, S_MB))
                a("s_lshl_b32 s3, s%d, 10" % S_HW)
                a("s_add_u32 s%d, s%d, s3" % (S_T1, S_T1))
                a("s_add_u32 s67, s%d, %d" % (S_T1, 2 * 256))
                a("s_add_u32 s68, s%d, %d" % (S_T1, 3 * 256))
                a("s_add_u32 s69, s%d, %d" % (S_T1, 2 * 1024 + 2 * 256))
            if k0 == 0: continue
            lab = a.newlabel("role")
            a("s_cmp_lt_u32 s%d, 2" % S_HW)
            a("s_cbranch_scc1 %s_s" % lab)
            if consts:
                for t in consts[(k - k0) * per:(k - k0 + 1) * per]: a(t)
            a("s_branch %s_d" % lab)
            a.label(lab + "_s")
            if st and k >= 12:
                n = 12
                for t in st[2 * nst:2 * (nst + n)]: a(t)
                nst += n
            a.label(lab + "_d")

    def stats2_publish(self):
        a = self.a
        E = 16
        a("v_lshlrev_b32 v8, 3, v%d" % V_JL)
        a("v_add_u32 v8, %d, v8" % LDS_T4)
        for w in range(3):
            for st in range(2):
                d = E + w * 4 + st * 2
                a("ds_read_b64 v[%d:%d], v8 offset:%d" % (d, d + 1, w * 512 + st * 256))
        a("s_waitcnt lgkmcnt(0)")
        for w in range(1, 3):
            for st in range(2):
                a("v_pk_add_f32 v[%d:%d], v[%d:%d], v[%d:%d]" % (E + st * 2, E + st * 2 + 1, E + st * 2, E + st * 2 + 1, E + w * 4 + st * 2, E + w * 4 + st * 2 + 1))
        a("s_lshl_b32 s%d, s%d, 3" % (S_T0, S_MB))
        a("s_add_u32 s%d, s%d, s%d" % (S_T0, S_T0, S_J))
        a("s_lshl_b32 s%d, s%d, 9" % (S_T0, S_T0))
        a("s_add_u32 s%d, s%d, 0x%x" % (S_T0, S_T0, WS_STATS))
        a("v_lshlrev_b32 v8, 4, v%d" % V_JL)
        a("s_mov_b32 exec_hi, 0")
        a("buffer_store_dwordx4 v[%d:%d], v8, s[%d:%d], s%d offen sc1" % (E, E + 3, SRD_WS, SRD_WS + 3, S_T0))
        a("s_mov_b64 exec, -1")

    def stats2_consume(self):
        a = self.a
        E = 16
        a("v_lshlrev_b32 v8, 5, v%d" % V_LANE)
        a("v_add_u32 v8, s%d, v8" % S_MB)
        a("v_lshlrev_b32 v8, 7, v8")
        self.poll_flags(8, 8)
        a("s_lshl_b32 s%d, s%d, 12" % (S_T0, S_MB))
        a("s_add_u32 s%d, s%d, 0x%x" % (S_T0, S_T0, WS_STATS))
        a("v_lshlrev_b32 v8, 4, v%d" % V_JL)
        for jj in range(8):
            a("buffer_load_dwordx4 v[%d:%d], v8, s[%d:%d], s%d offen offset:%d sc1" % (E + 4 * jj, E + 3 + 4 * jj, SRD_WS, SRD_WS + 3, S_T0, jj * 512))
        a("s_waitcnt vmcnt(0)")
        for jj in range(1, 8):
            for q in range(2):
                a("v_pk_add_f32 v[%d:%d], v[%d:%d], v[%d:%d]" % (E + 2 * q, E + 1 + 2 * q, E + 2 * q, E + 1 + 2 * q, E + 4 * jj + 2 * q, E + 1 + 4 * jj + 2 * q))
        for st in range(2):
            self.mean_rstd(E + 2 * st, E + 1 + 2 * st, 688, E + 4 + 2 * st, E + 5 + 2 * st, E + 10)
        a("v_lshlrev_b32 v8, 3, v%d" % V_JL)
        a("v_add_u32 v8, %d, v8" % LDS_T5)
        a("ds_write_b64 v8, v[%d:%d]" % (E + 4, E + 5))
        a("ds_write_b64 v8, v[%d:%d] offset:256" % (E + 6, E + 7))
        a("s_waitcnt lgkmcnt(0)")

    def angles(self, n_list, tq, base, dst):
        a = self.a
        for idx, n in enumerate(n_list):
            if n == 0: a("v_mov_b32 v%d, v%d" % (dst + idx, base))
            else: a("v_fmamk_f32 v%d, v%d, 0x%x, v%d" % (dst + idx, tq, f2u(float(n)), base))

    H_T1F, H_8H = 46, 47
    def fft_consts(self):
        a = self.a
        T = 16
        a("v_bfe_u32 v%d, v%d, 2, 1" % (T, V_JL))
        a("v_lshlrev_b32 v%d, 4, v%d" % (T, T))
        a("v_bfe_u32 v%d, v%d, 3, 2" % (T + 1, V_JL))
        a("v_lshl_or_b32 v%d, v%d, 2, v%d" % (T, T + 1, T))
        a("v_and_b32 v%d, 3, v%d" % (T + 1, V_JL))
        a("v_or_b32 v%d, v%d, v%d" % (T, T, T + 1))
        a("v_cvt_f32_u32 v%d, v%d" % (self.H_T1F, T))
        a("v_cvt_f32_u32 v%d, v%d" % (self.H_8H, V_H))
        a("v_mul_f32 v%d, 0x%x, v%d" % (self.H_8H, f2u(8.0), self.H_8H))
        a("v_mul_f32 v%d, 0x%x, v%d" % (T + 2, f2u(1.0 / 32), self.H_T1F))
        a("v_mul_f32 v%d, v%d, v%d" % (T + 3, T + 2, self.H_8H))
        A = T + 4; C = T + 12; S = T + 20
        for ks in range(2):
            self.angles([16 * ks + i for i in range(8)], T + 2, T + 3, A)
            for i in range(8): a("v_fract_f32 v%d, v%d" % (A + i, A + i))
            for i in range(8):
                a("v_cos_f32 v%d, v%d" % (C + i, A + i))
                a("v_sin_f32 v%d, v%d" % (S + i, A + i))
            for p in range(4):
                a("v_cvt_pk_bf16_f32 v%d, v%d, v%d" % (A + 0, C + 2 * p, C + 2 * p + 1))
                a("v_cvt_pk_bf16_f32 v%d, -v%d, -v%d" % (A + 1, S + 2 * p, S + 2 * p + 1))
                a("v_cvt_pk_bf16_f32 v%d, v%d, v%d" % (A + 2, S + 2 * p, S + 2 * p + 1))
                a("v_accvgpr_write_b32 a%d, v%d" % (4 * ks + p, A + 0))
                a("v_accvgpr_write_b32 a%d, v%d" % (8 + 4 * ks + p, A + 1))
                a("v_accvgpr_write_b32 a%d, v%d" % (16 + 4 * ks + p, A + 2))
        a("v_accvgpr_write_b32 a60, v%d" % self.H_T1F)
        a("v_accvgpr_write_b32 a61, v%d" % self.H_8H)
        a("s_sub_u32 s3, s%d, 2" % S_HW)
        a("s_lshl_b32 s3, s3, 5")
        a("v_add_u32 v%d, s3, v%d" % (T + 2, V_JL))
        a("v_cvt_f32_u32 v%d, v%d" % (T + 2, T + 2))
        a("v_mul_f32 v%d, 0x%x, v%d" % (T + 2, f2u(1.0 / 64), T + 2))
        a("v_mul_f32 v%d, v%d, v%d" % (T + 3, T + 2, self.H_8H))
        for kt in range(2):
            for kp in range(2):
                self.angles([32 * kt + 16 * kp + i for i in range(8)], T + 2, T + 3, A)
                for i in range(8): a("v_fract_f32 v%d, v%d" % (A + i, A + i))
                for i in range(8):
                    a("v_cos_f32 v%d, v%d" % (C + i, A + i))
                    a("v_sin_f32 v%d, v%d" % (S + i, A + i))
                for p in range(4):
                    a("v_cvt_pk_bf16_f32 v%d, v%d, v%d" % (A + 0, C + 2 * p, C + 2 * p + 1))
                    a("v_cvt_pk_bf16_f32 v%d, v%d, v%d" % (A + 1, S + 2 * p, S + 2 * p + 1))
                    a("v_accvgpr_write_b32 a%d, v%d" % (24 + 16 * kt + 4 * kp + p, A + 0))
                    a("v_accvgpr_write_b32 a%d, v%d" % (24 + 16 * kt + 8 + 4 * kp + p, A + 1))

    def p1_helper(self):
        a = self.a
        a("s_mov_b32 s%d, 0" % S_C)
        a("v_mov_b32 v6, 0")
        a("buffer_load_dword v%d, v6, s[%d:%d], 0 offen sc1" % (self.V_NON, SRD_DBG, SRD_DBG + 3))
        a("s_waitcnt vmcnt(13) lgkmcnt(0)")
        a("s_barrier")
        self.h_loop(0)
        self.nonce_from(self.V_NON)
        a("s_barrier")
        a("s_cmp_lg_u32 s%d, 0" % S_HW)
        a("s_cbranch_scc1 L_h_nopub")
        self.stats2_publish()
        a.label("L_h_nopub")
        self.h_loop(8)
        a("s_cmp_lg_u32 s%d, 2" % S_HW)
        a("s_cbranch_scc1 L_h_nocons")
        self.stats2_consume()
        a.label("L_h_nocons")
        a("s_barrier")

    G_B = 16
    G_VB = 10
    G_VZ = 32
    G_L16 = 35
    G_BS = 36
    G_RV = 40
    def ring_reg(self, f):
        if f < 8: return "a[%d:%d]" % (96 + 4 * f, 96 + 4 * f + 3)
        r = self.G_RV + 4 * (f - 8)
        return "v[%d:%d]" % (r, r + 3)

    def g_compute(self):
        a = self.a
        a("v_lshlrev_b32 v%d, 4, v%d" % (self.G_L16, V_LANE))
        a("v_and_b32 v5, 15, v%d" % V_SIG)
        a("v_xor_b32 v5, v5, v%d" % V_H)
        a("v_lshlrev_b32 v5, 4, v5")
        a("v_lshl_add_u32 v5, v%d, 8, v5" % V_SIG)
        a("s_lshl_b32 s3, s%d, 15" % S_W)
        a("v_add_u32 v104, s3, v5")
        for k in range(1, 8): a("v_xor_b32 v%d, %d, v104" % (104 + k, k * 32))
        a("s_sub_u32 s%d, s%d, 64" % (S_T2, S_WID))
        for tau in range(3):
            a("s_add_u32 s%d, s%d, %d" % (S_T0, S_W, tau))
            a("s_cmp_ge_u32 s%d, 3" % S_T0)
            a("s_cselect_b32 s%d, 3, 0" % S_T1)
            a("s_sub_u32 s%d, s%d, s%d" % (S_T0, S_T0, S_T1))
            a("s_lshl_b32 s%d, s%d, 10" % (S_T1, S_T0))
            a("v_add_u32 v5, s%d, v%d" % (S_T1, self.G_L16))
            a("v_mov_b32 v6, 0x%x" % OOB)
            a("v_cmp_le_u32 vcc, s%d, v%d" % (S_T2, V_SIG))
            a("s_cmp_eq_u32 s%d, 2" % S_T0)
            a("s_cselect_b64 s[%d:%d], vcc, 0" % (S_EX, S_EX + 1))
            a("v_cndmask_b32 v%d, v5, v6, s[%d:%d]" % (self.G_VZ + tau, S_EX, S_EX + 1))
        a("s_lshl_b32 s3, s%d, 5" % S_J)
        a("s_lshl_b32 s%d, s%d, 3" % (S_T0, S_W))
        a("s_add_u32 s3, s3, s%d" % S_T0)
        a("v_add_u32 v38, s3, v%d" % V_LANE)
        a("v_lshlrev_b32 v38, 7, v38")
        a("v_add_u32 v38, 0x%x, v38" % (WS_FLAG + 256 * 128))
        a("s_lshl_b32 s%d, s%d, 7" % (S_B0, S_J))
        a("s_lshl_b32 s3, s%d, 5" % S_W)
        a("s_add_u32 s%d, s%d, s3" % (S_B0, S_B0))
        a("s_mov_b32 s%d, 0" % S_RHO)
        for cc in range(4):
            a("s_add_u32 s3, s%d, %d" % (S_RHO, cc))
            a("s_and_b32 s3, s3, 3")
            a("s_lshl_b32 s3, s3, 3")
            a("s_add_u32 s3, s3, s%d" % S_B0)
            a("s_mul_i32 s3, s3, 3072")
            a("s_add_u32 s%d, s3, 0x%x" % (67 + cc, WS_Z2N))
        a("s_waitcnt vmcnt(0)")
        a("s_cmp_eq_u32 s%d, 3" % S_W)
        a("s_cbranch_scc1 L_g_nf")
        a("v_accvgpr_read_b32 v39, a8")
        self.nonce_from(39)
        self.flag_store(1, 0, S_W)
        a.label("L_g_nf")
        a("v_accvgpr_read_b32 v%d, a9" % self.G_BS)
        a("v_accvgpr_read_b32 v%d, a10" % (self.G_BS + 1))
        self.stamp(7)
        self.poll_flags_n(38, 8, 3, 16)
        self.stamp(8)
        self.stamp(26)
        vq = VQ(a)
        def zload(n):
            a("s_add_u32 s%d, s%d, %d" % (S_T0, 67 + n // 8, (n % 8) * 3072))
            for tau in range(3):
                f = (n % 8) * 3 + tau
                a("buffer_load_dwordx4 %s, v%d, s[%d:%d], s%d offen %s" % (self.ring_reg(f), self.G_VZ + tau, SRD_WS, SRD_WS + 3, S_T0, "" if "gplain" in self.exp else "sc1"))
                vq.issue(("z", n))
        for n in range(8): zload(n)
        B = self.G_B
        SY_FREE = LDS_SY + 0
        SY_LAND = LDS_SY + 16
        a("s_lshl_b32 s3, s%d, 2" % S_W)
        a("s_add_u32 s3, s3, %d" % LDS_SY)
        a("v_mov_b32 v14, s3")
        def land_check(cnt):
            lab = a.newlabel("ld")
            a("s_mov_b32 s%d, 0" % S_SPIN)
            a.label(lab)
            a("ds_read_b32 v15, v14 offset:16")
            a("s_waitcnt lgkmcnt(0)")
            a("v_readfirstlane_b32 s%d, v15" % S_T1)
            a("s_add_u32 s%d, s%d, 1" % (S_SPIN, S_SPIN))
            a("s_cmp_gt_u32 s%d, 0x100000" % S_SPIN)
            a("s_cbranch_scc1 %s_x" % lab)
            a("s_cmp_lt_u32 s%d, %d" % (S_T1, cnt))
            a("s_cbranch_scc1 %s" % lab)
            a.label(lab + "_x")
        def bread(n, st):
            cc, k = divmod(n, 8)
            r = B + (n & 1) * 8 + st * 4
            return "ds_read_b128 v[%d:%d], v%d offset:%d" % (r, r + 3, 104 + k, (cc & 1) * 16384 + st * 8192)
        land_check(2)
        a(bread(0, 0)); a(bread(0, 1))
        for n in range(32):
            cc, k = divmod(n, 8)
            buf = n & 1
            vq.wait(("z", n))
            nxt = n + 1 < 32
            if nxt and (n + 1) % 8 == 0 and (n + 1) // 8 >= 2 and "gnoland" not in self.exp:
                a("s_waitcnt lgkmcnt(0)")
                land_check((n + 1) // 8 + 1)
            else:
                a("s_waitcnt lgkmcnt(0)")
            fill = []
            if nxt: fill += [bread(n + 1, 0), bread(n + 1, 1)]
            zl = []
            if n + 8 < 32:
                zl.append("s_add_u32 s%d, s%d, %d" % (S_T0, 67 + (n + 8) // 8, ((n + 8) % 8) * 3072))
            mi = 0
            for tau in range(3):
                for st in range(2):
                    D = (tau * 2 + st) * 16
                    Br = B + buf * 8 + st * 4
                    cc_ = "0" if n == 0 else "a[%d:%d]" % (D, D + 15)
                    a("v_mfma_f32_32x32x16_bf16 a[%d:%d], %s, v[%d:%d], %s" % (D, D + 15, self.ring_reg((n % 8) * 3 + tau), Br, Br + 3, cc_))
                    if mi == 0:
                        for f in fill: a(f)
                        for f in zl: a(f)
                    if st == 1 and n + 8 < 32 and "gnoz" not in self.exp:
                        f = (n % 8) * 3 + tau
                        a("buffer_load_dwordx4 %s, v%d, s[%d:%d], s%d offen %s" % (self.ring_reg(f), self.G_VZ + tau, SRD_WS, SRD_WS + 3, S_T0, "" if "gplain" in self.exp else "sc1"))
                        vq.issue(("z", n + 8))
                    mi += 1
            if k == 7 and cc < 2:
                a("v_mov_b32 v15, %d" % (cc + 1))
                a("ds_write_b32 v14, v15")
        self.stamp(27)
        self.stamp(10)
        self.g_reduce()

    def wsp_dma16(self, cc, sbase, slds):
        a = self.a
        for q in range(16):
            a("s_add_u32 s%d, s%d, %d" % (S_T0, 67 + cc, q * 4 * 4096))
            a("s_add_u32 m0, s%d, %d" % (slds, (cc & 1) * 16384 + q * 1024))
            a("buffer_load_dwordx4 v%d, s[%d:%d], s%d offen lds" % (16 + (q & 3), SRD_WSP, SRD_WSP + 3, S_T0))

    def wsp_voffsets(self, base):
        a = self.a
        L = V_LANE
        a("v_lshrrev_b32 v5, 4, v%d" % L)
        a("v_and_b32 v6, 15, v%d" % L)
        for qq in range(4):
            a("v_add_u32 v7, %d, v5" % (4 * qq))
            a("v_xor_b32 v7, v7, v6")
            a("v_lshlrev_b32 v7, 4, v7")
            a("v_lshl_add_u32 v%d, v5, 12, v7" % (base + qq))

    def stage_reg(self, unit, q):
        if unit < 2:
            r = unit * 64 + 4 * q
            return "a[%d:%d]" % (r, r + 3)
        r = 32 + 4 * q
        return "v[%d:%d]" % (r, r + 3)

    def stage_loads(self):
        out = []
        for unit in range(3):
            for q in range(16):
                out.append("s_add_u32 s%d, s%d, %d" % (S_T0, 67 + unit, q * 4 * 4096))
                out.append("buffer_load_dwordx4 %s, v%d, s[%d:%d], s%d offen" % (self.stage_reg(unit, q), 96 + (q & 3), SRD_WSP, SRD_WSP + 3, S_T0))
        return out

    def g_helper(self):
        a = self.a
        L = V_LANE
        self.wsp_voffsets(16)
        a("s_lshl_b32 s%d, s%d, 18" % (S_B0, S_MB))
        a("s_lshl_b32 s3, s%d, 10" % S_HW)
        a("s_add_u32 s%d, s%d, s3" % (S_B0, S_B0))
        a("s_mov_b32 s70, s%d" % S_B0)
        a("s_add_u32 s71, s%d, 256" % S_B0)
        a("s_lshl_b32 s%d, s%d, 15" % (S_T3, S_HW))
        for cc in range(2):
            for q in range(16):
                a("s_add_u32 s%d, s%d, %d" % (S_T0, 70 + cc, q * 4 * 4096))
                a("s_add_u32 m0, s%d, %d" % (S_T3, cc * 16384 + q * 1024))
                a("buffer_load_dwordx4 v%d, s[%d:%d], s%d offen lds" % (16 + (q & 3), SRD_WSP, SRD_WSP + 3, S_T0))
        a("s_lshl_b32 s3, s%d, 2" % S_HW)
        a("s_add_u32 s3, s3, %d" % LDS_SY)
        a("v_mov_b32 v12, s3")
        def wait_free(off, cnt):
            lab = a.newlabel("fr")
            a("s_mov_b32 s%d, 0" % S_SPIN)
            a.label(lab)
            a("ds_read_b32 v5, v12 offset:%d" % off)
            a("s_waitcnt lgkmcnt(0)")
            a("v_readfirstlane_b32 s%d, v5" % S_T0)
            a("s_add_u32 s%d, s%d, 1" % (S_SPIN, S_SPIN))
            a("s_cmp_gt_u32 s%d, 0x100000" % S_SPIN)
            a("s_cbranch_scc1 %s_x" % lab)
            a("s_cmp_lt_u32 s%d, %d" % (S_T0, cnt))
            a("s_cbranch_scc0 %s_x" % lab)
            a("s_sleep 1")
            a("s_branch %s" % lab)
            a.label(lab + "_x")
        a("s_cmp_ge_u32 s%d, 2" % S_HW)
        a("s_cbranch_scc1 L_gh_fft")
        a("s_waitcnt vmcnt(0)")
        a("v_mov_b32 v6, 2")
        a("ds_write_b32 v12, v6 offset:16")
        a("v_lshlrev_b32 v13, 4, v%d" % L)
        a("s_lshl_b32 s3, s%d, 15" % S_HW)
        a("v_add_u32 v13, s3, v13")
        a("v_add_u32 v14, 65536, v13")
        def put(unit, vaddr, slot, landoff, cnt):
            for q in range(16 if "noput" not in self.exp else 0):
                a("ds_write_b128 v%d, %s offset:%d" % (vaddr, self.stage_reg(unit, q), slot * 16384 + q * 1024))
            a("v_mov_b32 v6, %d" % cnt)
            a("s_waitcnt lgkmcnt(0)")
            a("ds_write_b32 v12, v6 offset:%d" % landoff)
        wait_free(0, 1); put(0, 13, 0, 16, 3)
        for q in range(16):
            a("s_add_u32 s%d, s69, %d" % (S_T0, 256 + q * 4 * 4096))
            a("buffer_load_dwordx4 a[%d:%d], v%d, s[%d:%d], s%d offen" % (4 * q, 4 * q + 3, 96 + (q & 3), SRD_WSP, SRD_WSP + 3, S_T0))
        wait_free(8, 1); put(2, 14, 0, 24, 3)
        wait_free(0, 2); put(1, 13, 1, 16, 4)
        wait_free(8, 2)
        a("s_waitcnt vmcnt(0)")
        put(0, 14, 1, 24, 4)
        a("s_branch L_gh_done")
        a.label("L_gh_fft")
        a("s_waitcnt vmcnt(0)")
        a("v_mov_b32 v6, 2")
        a("ds_write_b32 v12, v6 offset:16")
        if "nofft" not in self.exp:
            a("s_setprio 3")
            self.fft()
            a("s_setprio 0")
        a("s_waitcnt vmcnt(0)")
        a("s_sub_u32 s%d, s%d, 2" % (S_T1, S_HW))
        self.flag_store(3, 0, S_T1)
        self.stamp(19)
        a.label("L_gh_done")
        self.stamp(9)
        a("v_lshrrev_b32 v5, 3, v%d" % L)
        a("v_and_b32 v6, 7, v%d" % L)
        a("v_bfe_u32 v7, v%d, 4, 1" % L)
        a("v_lshlrev_b32 v7, 2, v7")
        a("v_xor_b32 v6, v6, v7")
        a("v_lshlrev_b32 v6, 4, v6")
        a("v_lshl_add_u32 v9, v5, 10, v6")
        a("s_lshl_b32 s3, s%d, 7" % S_J)
        a("v_add_u32 v9, s3, v9")
        def wo(g):
            a("s_mov_b32 m0, %d" % (LDS_WO + g * 1024))
            a("s_mov_b32 s%d, %d" % (S_T0, g * 8192))
            a("buffer_load_dwordx4 v9, s[%d:%d], s%d offen lds" % (SRD_WOUT, SRD_WOUT + 3, S_T0))
        early = {2: list(range(56, 64)) + list(range(75, 81)), 3: list(range(64, 72)) + list(range(81, 88))}
        done = set(early[2]) | set(early[3])
        rest = [g for g in range(88) if g not in done]
        assert LDS_SY + 64 <= LDS_WO + 75 * 1024 and LDS_AT >= LDS_WO + 75 * 1024
        for hw in (2, 3):
            lab = a.newlabel("wo")
            a("s_cmp_lg_u32 s%d, %d" % (S_HW, hw))
            a("s_cbranch_scc1 %s" % lab)
            for g in early[hw]: wo(g)
            a.label(lab)
        a("s_barrier")
        n = len(rest)
        per = (n + 3) // 4
        for hw in range(4):
            mine = rest[hw * per:(hw + 1) * per]
            lab = a.newlabel("wo")
            a("s_cmp_lg_u32 s%d, %d" % (S_HW, hw))
            a("s_cbranch_scc1 %s" % lab)
            for g in mine: wo(g)
            a.label(lab)
        a("s_barrier")
        self.final_pre()
        a("s_waitcnt vmcnt(0)")
        self.stamp(23)
        a("s_barrier")
        self.y_to_lds()
        a("s_barrier")
        self.stamp(6)
        self.final_h()

    def fft(self):
        a = self.a
        a("v_accvgpr_read_b32 v10, a60")
        a("v_accvgpr_read_b32 v11, a61")
        a("s_lshl_b32 s3, s%d, 5" % S_J)
        a("v_add_u32 v12, s3, v%d" % V_LANE)
        a("v_lshlrev_b32 v12, 7, v12")
        a("v_add_u32 v12, 0x%x, v12" % (WS_FLAG + 256 * 128 + 12))
        self.poll_flags_n(12, 32, 1, 16)
        a("v_lshlrev_b32 v13, 4, v%d" % V_LANE)
        a("s_lshl_b32 s3, s%d, 13" % S_L)
        a("s_add_u32 s3, s3, 0x%x" % WS_AB)
        X = 32
        for i in range(8):
            a("buffer_load_dwordx4 v[%d:%d], v13, s[%d:%d], s3 offen sc1" % (X + 4 * i, X + 4 * i + 3, SRD_WS, SRD_WS + 3))
            if i < 7: a("s_add_u32 s3, s3, 1024")
        a("s_sub_u32 s%d, s%d, 2" % (S_T1, S_HW))
        a("s_lshl_b32 s%d, s%d, 13" % (S_T2, S_T1))
        a("s_add_u32 s%d, s%d, %d" % (S_T2, S_T2, LDS_FX))
        a("v_add_u32 v14, s%d, v13" % S_T2)
        a("v_bfe_u32 v7, v%d, 2, 2" % V_LANE)
        a("v_lshl_add_u32 v7, v%d, 3, v7" % V_H)
        a("v_lshlrev_b32 v7, 7, v7")
        a("v_bfe_u32 v8, v%d, 4, 1" % V_LANE)
        a("v_lshlrev_b32 v8, 5, v8")
        a("v_and_b32 v9, 1, v%d" % V_LANE)
        a("v_lshl_add_u32 v8, v9, 4, v8")
        a("v_bfe_u32 v9, v%d, 1, 1" % V_LANE)
        a("v_lshl_add_u32 v8, v9, 3, v8")
        a("v_add_u32 v7, v7, v8")
        a("v_add_u32 v15, s%d, v7" % S_T2)
        a("s_waitcnt vmcnt(0)")
        for i in range(8):
            a("ds_write_b128 v14, v[%d:%d] offset:%d" % (X + 4 * i, X + 4 * i + 3, i * 1024))
        URE, UIM, A1, TC, TS, A2 = 32, 48, 16, 64, 80, 104
        D2 = 64
        def mm(D, A, B, first, dfile="v", afile="v", bfile="a"):
            a("v_mfma_f32_32x32x16_bf16 %s[%d:%d], %s[%d:%d], %s[%d:%d], %s" % (dfile, D, D + 15, afile, A, A + 3, bfile, B, B + 3, "0" if first else "%s[%d:%d]" % (dfile, D, D + 15)))
        for kt in range(2):
            a("v_mul_f32 v12, 0x%x, v10" % (f2u(1.0 / 2048)))
            a("v_mul_f32 v13, v12, v11")
            if kt == 0: a("s_waitcnt lgkmcnt(0)")
            for ks in range(4):
                for q in range(2):
                    r = A1 + 4 * ks + 2 * q
                    a("ds_read_b64_tr_b16 v[%d:%d], v15 offset:%d" % (r, r + 1, (ks >> 1) * 4096 + (ks & 1) * 2048 + q * 512 + kt * 64))
            for half in range(2):
                self.angles([32 * kt + 16 * half + i for i in range(8)], 12, 13, 120)
                for i in range(8):
                    a("v_cos_f32 v%d, v%d" % (TC + 8 * half + i, 120 + i))
                    a("v_sin_f32 v%d, v%d" % (TS + 8 * half + i, 120 + i))
            a("s_waitcnt lgkmcnt(0)")
            FRE, FIM, NFIM = 0, 8, 16
            mm(URE, A1, FRE, True); mm(UIM, A1, FIM, True)
            mm(URE, A1 + 4, FRE + 4, False); mm(UIM, A1 + 4, FIM + 4, False)
            mm(URE, A1 + 8, NFIM, False); mm(UIM, A1 + 8, FRE, False)
            mm(URE, A1 + 12, NFIM + 4, False); mm(UIM, A1 + 12, FRE + 4, False)
            for p in range(8):
                t0 = 96 + (p % 2) * 4
                for e in range(2):
                    re, im, c, s_ = URE + 2 * p + e, UIM + 2 * p + e, TC + 2 * p + e, TS + 2 * p + e
                    a("v_mul_f32 v%d, v%d, v%d" % (t0 + e, im, s_))
                    a("v_mul_f32 v%d, v%d, v%d" % (t0 + 2 + e, re, s_))
                    a("v_fmac_f32 v%d, v%d, v%d" % (t0 + e, re, c))
                    a("v_fma_f32 v%d, v%d, v%d, -v%d" % (t0 + 2 + e, im, c, t0 + 2 + e))
                a("v_cvt_pk_bf16_f32 v%d, v%d, v%d" % (A2 + p, t0, t0 + 1))
                a("v_cvt_pk_bf16_f32 v%d, v%d, v%d" % (A2 + 8 + p, t0 + 2, t0 + 3))
            G = 24 + 16 * kt
            mm(D2, A2, G, kt == 0, dfile="a"); mm(D2, A2 + 4, G + 4, False, dfile="a")
            mm(D2, A2 + 8, G + 8, False, dfile="a"); mm(D2, A2 + 12, G + 12, False, dfile="a")
        a("v_lshlrev_b32 v6, 7, v%d" % V_JL)
        a("v_lshl_add_u32 v6, v%d, 6, v6" % V_H)
        a("v_add_u32 v6, s%d, v6" % S_T2)
        for q in range(4):
            a("ds_write_b128 v6, a[%d:%d] offset:%d" % (D2 + 4 * q, D2 + 4 * q + 3, q * 16))
        a("s_waitcnt lgkmcnt(0)")
        for q in range(4):
            a("ds_read_b128 v[%d:%d], v14 offset:%d" % (32 + 4 * q, 35 + 4 * q, q * 1024))
        a("s_cmp_eq_u32 s%d, 0" % S_L)
        a("s_cselect_b32 s%d, 256, s%d" % (S_T0, S_L))
        a("s_lshl_b32 s%d, s%d, 13" % (S_T0, S_T0))
        a("s_lshl_b32 s3, s%d, 12" % S_T1)
        a("s_add_u32 s3, s3, s%d" % S_T0)
        a("s_add_u32 s3, s3, 0x%x" % WS_YT)
        a("v_lshlrev_b32 v6, 4, v%d" % V_LANE)
        a("v_lshlrev_b32 v7, 4, v%d" % V_LANE)
        a("v_sub_u32 v7, %d, v7" % (4096 - 12))
        a("v_add_u32 v7, s%d, v7" % S_T2)
        for i in range(4):
            for e in range(4):
                off = 12 - 4 * e - 1024 * i
                if off >= 0: a("ds_read_b32 v%d, v7 offset:%d" % (48 + 4 * i + e, off))
                else: a("ds_read_b32 v%d, v%d offset:%d" % (48 + 4 * i + e, 8, off + 3072))
            if i == 0: a("v_subrev_u32 v8, 3072, v7")
        a("s_waitcnt lgkmcnt(15)")
        a("s_waitcnt lgkmcnt(0)")
        for q in range(4):
            a("buffer_store_dwordx4 v[%d:%d], v6, s[%d:%d], s3 offen offset:%d sc1" % (32 + 4 * q, 35 + 4 * q, SRD_WS, SRD_WS + 3, q * 1024))
        a("s_cmp_eq_u32 s%d, 0" % S_L)
        a("s_cbranch_scc1 L_fft_nomir")
        a("s_sub_u32 s%d, 512, s%d" % (S_T0, S_L))
        a("s_lshl_b32 s%d, s%d, 13" % (S_T0, S_T0))
        a("s_xor_b32 s3, s%d, 1" % S_T1)
        a("s_lshl_b32 s3, s3, 12")
        a("s_add_u32 s3, s3, s%d" % S_T0)
        a("s_add_u32 s3, s3, 0x%x" % WS_YT)
        a("s_mov_b64 exec, 0xfffffffffffffffe" if False else "s_mov_b64 exec, -2")
        a("buffer_store_dwordx4 v[48:51], v6, s[%d:%d], s3 offen sc1" % (SRD_WS, SRD_WS + 3))
        a("s_mov_b64 exec, 1")
        a("buffer_store_dword v49, v6, s[%d:%d], s3 offen offset:4 sc1" % (SRD_WS, SRD_WS + 3))
        a("buffer_store_dwordx2 v[50:51], v6, s[%d:%d], s3 offen offset:8 sc1" % (SRD_WS, SRD_WS + 3))
        a("s_mov_b64 exec, -1")
        for q in range(1, 4):
            a("buffer_store_dwordx4 v[%d:%d], v6, s[%d:%d], s3 offen offset:%d sc1" % (48 + 4 * q, 51 + 4 * q, SRD_WS, SRD_WS + 3, q * 1024))
        a("s_lshl_b32 s3, s%d, 12" % S_T1)
        a("s_add_u32 s3, s3, s%d" % S_T0)
        a("s_add_u32 s3, s3, 0x%x" % WS_YT)
        a("s_mov_b64 exec, 1")
        a("buffer_store_dword v32, v6, s[%d:%d], s3 offen sc1" % (SRD_WS, SRD_WS + 3))
        a("s_mov_b64 exec, -1")
        a.label("L_fft_nomir")

    def g_reduce(self):
        a = self.a
        L16 = self.G_L16
        a("s_barrier")
        self.stamp(16)
        for tau in (1, 2, 0):
            if tau == 0:
                a("s_cmp_lg_u32 s%d, 3" % S_W)
                a("s_cbranch_scc1 L_exp_done")
            a("s_add_u32 s%d, s%d, %d" % (S_T0, S_W, tau))
            a("s_cmp_ge_u32 s%d, 3" % S_T0)
            a("s_cselect_b32 s%d, 3, 0" % S_T1)
            a("s_sub_u32 s%d, s%d, s%d" % (S_T0, S_T0, S_T1))
            a("s_sub_u32 s%d, s%d, s%d" % (S_T1, S_W, S_T0))
            a("s_sub_u32 s%d, s%d, 1" % (S_T1, S_T1))
            a("s_and_b32 s%d, s%d, 3" % (S_T1, S_T1))
            a("s_mul_i32 s%d, s%d, 3" % (S_T0, S_T0))
            a("s_add_u32 s%d, s%d, s%d" % (S_T0, S_T0, S_T1))
            a("s_lshl_b32 s%d, s%d, 13" % (S_T0, S_T0))
            a("v_add_u32 v5, s%d, v%d" % (S_T0, L16))
            for st in range(2):
                for q in range(4):
                    r = (tau * 2 + st) * 16 + 4 * q
                    a("ds_write_b128 v5, a[%d:%d] offset:%d" % (r, r + 3, st * 4096 + q * 1024))
        a.label("L_exp_done")
        a("s_waitcnt lgkmcnt(0)")
        self.stamp(17)
        a("s_barrier")
        self.stamp(11)
        a("s_cmp_eq_u32 s%d, 3" % S_W)
        a("s_cbranch_scc1 L_h_done")
        G = 40
        I = 72
        a("s_mul_i32 s%d, s%d, %d" % (S_T0, S_W, 3 * 8192))
        a("v_add_u32 v5, s%d, v%d" % (S_T0, L16))
        for st in range(2):
            for q in range(4):
                r = G + st * 16 + 4 * q
                a("ds_read_b128 v[%d:%d], v5 offset:%d" % (r, r + 3, 0 * 8192 + st * 4096 + q * 1024))
        for st in range(2):
            for q in range(4):
                r = I + st * 16 + 4 * q
                a("ds_read_b128 v[%d:%d], v5 offset:%d" % (r, r + 3, 1 * 8192 + st * 4096 + q * 1024))
        a("s_waitcnt lgkmcnt(0)")
        for p in range(16): a("v_pk_add_f32 v[%d:%d], v[%d:%d], v[%d:%d]" % (G + 2 * p, G + 2 * p + 1, G + 2 * p, G + 2 * p + 1, I + 2 * p, I + 2 * p + 1))
        for st in range(2):
            for q in range(4):
                r = I + st * 16 + 4 * q
                a("ds_read_b128 v[%d:%d], v5 offset:%d" % (r, r + 3, 2 * 8192 + st * 4096 + q * 1024))
        for i in range(0, 32, 8):
            for k in range(8): a("v_accvgpr_read_b32 v%d, a%d" % (16 + k, i + k))
            for p in range(4): a("v_pk_add_f32 v[%d:%d], v[%d:%d], v[%d:%d]" % (G + i + 2 * p, G + i + 2 * p + 1, G + i + 2 * p, G + i + 2 * p + 1, 16 + 2 * p, 16 + 2 * p + 1))
        a("s_waitcnt lgkmcnt(0)")
        for p in range(16): a("v_pk_add_f32 v[%d:%d], v[%d:%d], v[%d:%d]" % (G + 2 * p, G + 2 * p + 1, G + 2 * p, G + 2 * p + 1, I + 2 * p, I + 2 * p + 1))
        self.stamp(18)
        for st in range(2): a("v_lshlrev_b32 v%d, 16, v%d" % (self.G_BS + st, self.G_BS + st))
        for st in range(2):
            for r in range(8):
                src = self.C_Z1P + 8 * st + r
                g = G + 16 * st + 2 * r
                t = 16 + 2 * (r % 4)
                a("v_lshlrev_b32 v%d, 16, v%d" % (t, src))
                a("v_and_b32 v%d, 0xffff0000, v%d" % (t + 1, src))
                sel = "op_sel:[0,%d] op_sel_hi:[1,%d]" % (st, st)
                a("v_pk_add_f32 v[%d:%d], v[%d:%d], v[%d:%d] %s" % (g, g + 1, g, g + 1, self.G_BS, self.G_BS + 1, sel))
                a("v_pk_mul_f32 v[%d:%d], v[%d:%d], v[%d:%d]" % (g, g + 1, g, g + 1, t, t + 1))
                a("v_cvt_pk_bf16_f32 v%d, v%d, v%d" % (I + 8 * st + r, g, g + 1))
        a("s_mul_i32 s%d, s%d, 96" % (S_T0, S_MB))
        a("s_mul_i32 s%d, s%d, 6" % (S_T1, S_J))
        a("s_add_u32 s%d, s%d, s%d" % (S_T0, S_T0, S_T1))
        a("s_lshl_b32 s%d, s%d, 1" % (S_T1, S_W))
        a("s_add_u32 s%d, s%d, s%d" % (S_T0, S_T0, S_T1))
        a("s_lshl_b32 s%d, s%d, 10" % (S_T0, S_T0))
        a("s_add_u32 s%d, s%d, 0x%x" % (S_T0, S_T0, WS_H))
        for st in range(2):
            for Q in range(2):
                r = I + 8 * st + 4 * Q
                a("s_add_u32 s%d, s%d, %d" % (S_T1, S_T0, (st * 48 + Q) * 1024))
                if "nohstore" not in self.exp: a("buffer_store_dwordx4 v[%d:%d], v%d, s[%d:%d], s%d offen sc1" % (r, r + 3, L16, SRD_WS, SRD_WS + 3, S_T1))
                if "hdouble" in self.exp: a("buffer_store_dwordx4 v[%d:%d], v%d, s[%d:%d], s%d offen" % (r, r + 3, L16, SRD_WS, SRD_WS + 3, S_T1))
        self.stamp(20)
        a("s_waitcnt vmcnt(0)")
        self.stamp(21)
        self.flag_store(2, 0, S_W)
        a.label("L_h_done")
        self.o_pre()
        self.stamp(12)

    def o_pre(self):
        a = self.a
        a("s_lshr_b32 s%d, s%d, 1" % (S_T0, S_W))
        a("s_lshl_b32 s3, s%d, 2" % S_T0)
        a("v_add_u32 v40, s3, v%d" % V_LANE)
        a("v_lshlrev_b32 v40, 5, v40")
        a("v_add_u32 v40, s%d, v40" % S_MB)
        a("v_lshlrev_b32 v40, 7, v40")
        a("v_add_u32 v40, 0x%x, v40" % (WS_FLAG + 2 * 256 * 128))
        a("v_bfe_u32 v5, v%d, 2, 2" % V_LANE)
        a("v_lshl_add_u32 v5, v%d, 3, v5" % V_H)
        a("v_lshlrev_b32 v5, 7, v5")
        a("v_bfe_u32 v6, v%d, 4, 1" % V_LANE)
        a("v_lshlrev_b32 v6, 1, v6")
        a("v_and_b32 v7, 1, v%d" % V_LANE)
        a("v_or_b32 v6, v6, v7")
        a("v_bfe_u32 v7, v%d, 3, 1" % V_LANE)
        a("v_lshlrev_b32 v7, 2, v7")
        a("v_xor_b32 v6, v6, v7")
        a("s_lshl_b32 s3, s%d, 2" % S_T0)
        a("v_xor_b32 v6, s3, v6")
        a("v_bfe_u32 v7, v%d, 1, 1" % V_LANE)
        a("v_lshlrev_b32 v7, 3, v7")
        a("v_add_u32 v5, v5, v7")
        a("s_mul_i32 s3, s%d, %d" % (S_T0, 352 * 128))
        a("s_add_u32 s3, s3, %d" % LDS_WO)
        a("v_add_u32 v5, s3, v5")
        WA = 52
        a("v_lshl_add_u32 v%d, v6, 4, v5" % WA)
        a("v_xor_b32 v6, 4, v6")
        a("v_lshl_add_u32 v%d, v6, 4, v5" % (WA + 1))
        a("s_cmp_eq_u32 s%d, 0" % S_T0)
        a("s_cselect_b32 s3, 8, 0")
        a("s_add_u32 s3, s3, 256")
        a("s_lshl_b32 s3, s3, 7")
        a("v_add_u32 v%d, s3, v%d" % (WA + 2, WA))
        a("v_add_u32 v%d, s3, v%d" % (WA + 3, WA + 1))
        a("s_and_b32 s%d, s%d, 1" % (S_T1, S_W))
        a("s_lshl_b32 s3, s%d, 1" % S_MB)
        a("s_add_u32 s3, s3, s%d" % S_T1)
        a("s_mul_i32 s3, s3, 48")
        a("s_mul_i32 s%d, s%d, 24" % (S_B0, S_T0))
        a("s_add_u32 s%d, s%d, s3" % (S_B0, S_B0))
        a("s_lshl_b32 s%d, s%d, 10" % (S_B0, S_B0))
        a("s_add_u32 s%d, s%d, 0x%x" % (S_B0, S_B0, WS_H))

    def phase_o(self):
        a = self.a
        L16 = self.G_L16
        WA = 52
        self.poll_flags_n(40, 4, 3, 60)
        self.stamp(13)
        vq = VQ(a)
        NUP = 8
        def hload(n):
            r = 32 + 4 * n
            a("s_add_u32 s%d, s%d, %d" % (S_T0, S_B0, n * 1024))
            a("buffer_load_dwordx4 a[%d:%d], v%d, s[%d:%d], s%d offen sc1" % (r, r + 3, L16, SRD_WS, SRD_WS + 3, S_T0)); vq.issue(("h", n))
        for n in range(NUP): hload(n)
        a("s_barrier")
        SETS = [16, 24, 60, 68]
        def areads(n):
            jj, rem = divmod(n, 6); ft, Q = divmod(rem, 2)
            out = []
            for tp in range(2):
                base = WA + tp if jj < 3 else WA + 2 + tp
                off = ((88 * jj if jj < 3 else 0) + 32 * ft + 16 * Q) * 128
                r = SETS[n % 4] + tp * 4
                out.append("ds_read_b64_tr_b16 v[%d:%d], v%d offset:%d" % (r, r + 1, base, off))
                out.append("ds_read_b64_tr_b16 v[%d:%d], v%d offset:%d" % (r + 2, r + 3, base, off + 512))
            return out
        for n in range(3):
            for r in areads(n): a(r)
        for n in range(24):
            vq.wait(("h", n))
            later = min(2, 23 - n)
            a("s_waitcnt lgkmcnt(%d)" % (4 * later))
            rd = areads(n + 3) if n + 3 < 24 else []
            for tp in range(2):
                D = tp * 16
                Ar = SETS[n % 4] + tp * 4
                Br = 32 + 4 * n
                cc = "0" if n == 0 else "a[%d:%d]" % (D, D + 15)
                a("v_mfma_f32_32x32x16_bf16 a[%d:%d], v[%d:%d], a[%d:%d], %s" % (D, D + 15, Ar, Ar + 3, Br, Br + 3, cc))
                for r in rd[2 * tp:2 * tp + 2]: a(r)
                if tp == 0 and n + NUP < 24: hload(n + NUP)
        self.stamp(14)
        a("s_lshl_b32 s3, s%d, 13" % S_W)
        a("v_add_u32 v58, s3, v%d" % L16)
        for tp in range(2):
            for q in range(4):
                a("ds_write_b128 v58, a[%d:%d] offset:%d" % (16 * tp + 4 * q, 16 * tp + 4 * q + 3, tp * 4096 + q * 1024))
        a("s_waitcnt lgkmcnt(0)")
        a("s_barrier")

    def final_pre(self):
        a = self.a
        a("s_lshr_b32 s%d, s%d, 1" % (S_T0, S_HW))
        a("s_lshl_b32 s3, s%d, 6" % S_J)
        a("s_lshl_b32 s%d, s%d, 5" % (S_T2, S_T0))
        a("s_add_u32 s%d, s3, s%d" % (S_T2, S_T2))
        a("s_and_b32 s%d, s%d, 1" % (S_T1, S_HW))
        a("s_lshl_b32 s3, s%d, 6" % S_MB)
        a("s_lshl_b32 s%d, s%d, 5" % (S_T3, S_T1))
        a("s_add_u32 s3, s3, s%d" % S_T3)
        a("v_add_u32 v41, s3, v%d" % V_SIG)
        a("v_lshlrev_b32 v42, 10, v41")
        a("v_lshl_add_u32 v42, v%d, 4, v42" % V_H)
        a("s_lshl_b32 s3, s%d, 1" % S_T2)
        a("v_add_u32 v42, s3, v42")
        XR = 44
        a("buffer_load_dwordx4 v[%d:%d], v42, s[%d:%d], 0 offen" % (XR, XR + 3, SRD_X, SRD_X + 3))
        a("buffer_load_dwordx4 v[%d:%d], v42, s[%d:%d], 0 offen offset:32" % (XR + 4, XR + 7, SRD_X, SRD_X + 3))
        a("s_lshl_b32 s3, s%d, 6" % S_J)
        a("s_lshl_b32 s%d, s%d, 4" % (S_T0, S_HW))
        a("s_add_u32 s%d, s3, s%d" % (S_T0, S_T0))
        a("v_add_u32 v5, s%d, v%d" % (S_T0, V_LANE))
        a("v_sub_u32 v6, 512, v5")
        a("v_cmp_lt_u32 vcc, 256, v5")
        a("v_cndmask_b32 v6, v5, v6, vcc")
        a("v_and_b32 v6, 255, v6")
        a("v_lshlrev_b32 v43, 7, v6")
        a("v_add_u32 v43, 0x%x, v43" % (WS_FLAG + 3 * 256 * 128))
        a("v_lshrrev_b32 v5, 4, v%d" % V_LANE)
        a("v_add_u32 v5, s%d, v5" % S_T0)
        a("v_and_b32 v6, 15, v%d" % V_LANE)
        a("v_lshlrev_b32 v6, 4, v6")
        a("v_lshl_add_u32 v56, v5, 13, v6")
        a("v_mov_b32 v7, 0x%x" % OOB)
        a("v_cmp_eq_u32 vcc, 0, v5")
        a("v_cndmask_b32 v57, v56, v7, vcc")
        a("s_lshl_b32 s%d, s%d, 8" % (S_T3, S_MB))
        a("s_add_u32 s%d, s%d, 0x%x" % (S_T3, S_T3, WS_YT))
        self.poll_flags_n(43, 16, 2, 60)
        for i in range(4):
            a("buffer_load_dwordx4 v[%d:%d], v%d, s[%d:%d], s%d offen sc1" % (64 + 4 * i, 67 + 4 * i, 57 if i == 0 else 56, SRD_WS, SRD_WS + 3, S_T3))
            if i < 3: a("s_add_u32 s%d, s%d, %d" % (S_T3, S_T3, 4 * 8192))

    def y_to_lds(self):
        a = self.a
        a("v_lshrrev_b32 v5, 4, v%d" % V_LANE)
        a("v_and_b32 v6, 15, v%d" % V_LANE)
        a("v_lshlrev_b32 v6, 4, v6")
        a("v_lshl_add_u32 v5, v5, 8, v6")
        a("s_lshl_b32 s3, s%d, 12" % S_HW)
        a("s_add_u32 s3, s3, %d" % LDS_YS)
        a("v_add_u32 v5, s3, v5")
        a("s_waitcnt vmcnt(0)")
        for i in range(4):
            a("ds_write_b128 v5, v[%d:%d] offset:%d" % (64 + 4 * i, 67 + 4 * i, i * 1024))
        a("s_waitcnt lgkmcnt(0)")

    def final_h(self):
        a = self.a
        XR, Y, O = 44, 64, 80
        a("v_lshlrev_b32 v10, 4, v%d" % V_LANE)
        a("s_lshl_b32 s3, s%d, 13" % S_HW)
        a("v_add_u32 v11, s3, v10")
        a("s_xor_b32 s3, s%d, 2" % S_HW)
        a("s_lshl_b32 s3, s3, 13")
        a("s_add_u32 s3, s3, 4096")
        a("v_add_u32 v12, s3, v10")
        for q in range(4):
            a("ds_read_b128 v[%d:%d], v11 offset:%d" % (O + 4 * q, O + 4 * q + 3, q * 1024))
        for q in range(4):
            a("ds_read_b128 v[%d:%d], v12 offset:%d" % (96 + 4 * q, 96 + 4 * q + 3, q * 1024))
        a("s_lshr_b32 s%d, s%d, 1" % (S_T0, S_HW))
        a("s_lshl_b32 s3, s%d, 13" % S_T0)
        a("s_and_b32 s%d, s%d, 1" % (S_T1, S_HW))
        a("s_lshl_b32 s%d, s%d, 7" % (S_T1, S_T1))
        a("s_add_u32 s3, s3, s%d" % S_T1)
        a("s_add_u32 s3, s3, %d" % LDS_YS)
        a("v_lshlrev_b32 v5, 11, v%d" % V_H)
        a("v_lshl_add_u32 v5, v%d, 2, v5" % V_SIG)
        a("v_add_u32 v5, s3, v5")
        for rho in range(16):
            k = 16 * (rho >> 3) + (rho & 7)
            a("ds_read_b32 v%d, v5 offset:%d" % (Y + rho, k * 256))
        nl2e = f2u(-math.log2(math.e))
        a("s_mov_b32 s%d, 0x%x" % (S_K2, nl2e))
        a("s_mov_b32 s%d, 0x%x" % (S_K2 + 1, nl2e))
        a("s_and_b32 s%d, s%d, 1" % (S_T1, S_HW))
        a("s_lshl_b32 s3, s%d, 5" % S_T1)
        a("v_add_u32 v13, s3, v%d" % V_SIG)
        a("v_and_b32 v14, 7, v13")
        a("s_lshr_b32 s%d, s%d, 1" % (S_T0, S_HW))
        a("s_lshl_b32 s3, s%d, 2" % S_T0)
        a("v_add_u32 v15, s3, v%d" % V_H)
        a("v_xor_b32 v14, v14, v15")
        a("v_lshlrev_b32 v14, 4, v14")
        a("v_lshl_add_u32 v14, v13, 7, v14")
        a("v_add_u32 v14, 32768, v14")
        a("s_waitcnt lgkmcnt(0)")
        for p in range(8):
            a("v_pk_add_f32 v[%d:%d], v[%d:%d], v[%d:%d]" % (O + 2 * p, O + 2 * p + 1, O + 2 * p, O + 2 * p + 1, 96 + 2 * p, 96 + 2 * p + 1))
        for p in range(8):
            o = O + 2 * p; t = 96 + 2 * p
            a("v_pk_mul_f32 v[%d:%d], v[%d:%d], s[%d:%d]" % (t, t + 1, o, o + 1, S_K2, S_K2 + 1))
            a("v_exp_f32 v%d, v%d" % (t, t))
            a("v_exp_f32 v%d, v%d" % (t + 1, t + 1))
            a("v_pk_add_f32 v[%d:%d], v[%d:%d], 1.0 op_sel_hi:[1,0]" % (t, t + 1, t, t + 1))
            a("v_rcp_f32 v%d, v%d" % (t, t))
            a("v_rcp_f32 v%d, v%d" % (t + 1, t + 1))
            a("v_pk_mul_f32 v[%d:%d], v[%d:%d], v[%d:%d]" % (o, o + 1, o, o + 1, t, t + 1))
        for p in range(8):
            o = O + 2 * p; t = 96 + 2 * p; y = Y + 2 * p; xr = XR + p
            a("v_lshlrev_b32 v%d, 16, v%d" % (t, xr))
            a("v_and_b32 v%d, 0xffff0000, v%d" % (t + 1, xr))
            a("v_pk_fma_f32 v[%d:%d], v[%d:%d], v[%d:%d], v[%d:%d]" % (t, t + 1, y, y + 1, o, o + 1, t, t + 1))
            a("v_cvt_pk_bf16_f32 v%d, v%d, v%d" % (112 + p, t, t + 1))
        a("ds_write_b128 v14, v[112:115]")
        a("v_xor_b32 v14, 32, v14")
        a("ds_write_b128 v14, v[116:119]")
        a("s_waitcnt lgkmcnt(0)")
        a("s_barrier")
        a("v_lshrrev_b32 v5, 3, v%d" % V_LANE)
        a("v_and_b32 v6, 7, v%d" % V_LANE)
        a("v_xor_b32 v7, v5, v6")
        a("v_lshlrev_b32 v7, 4, v7")
        a("v_lshl_add_u32 v7, v5, 7, v7")
        a("s_lshl_b32 s3, s%d, 11" % S_HW)
        a("s_add_u32 s3, s3, 32768")
        a("v_add_u32 v7, s3, v7")
        a("ds_read_b128 v[16:19], v7")
        a("ds_read_b128 v[20:23], v7 offset:1024")
        a("v_lshlrev_b32 v8, 10, v5")
        a("v_lshl_add_u32 v8, v6, 4, v8")
        a("s_lshl_b32 s%d, s%d, 6" % (S_T0, S_MB))
        a("s_lshl_b32 s3, s%d, 4" % S_HW)
        a("s_add_u32 s%d, s%d, s3" % (S_T0, S_T0))
        a("s_lshl_b32 s%d, s%d, 10" % (S_T0, S_T0))
        a("s_lshl_b32 s3, s%d, 7" % S_J)
        a("s_add_u32 s%d, s%d, s3" % (S_T0, S_T0))
        a("s_waitcnt lgkmcnt(0)")
        fl = "" if "outplain" in self.exp else "sc1"
        a("buffer_store_dwordx4 v[16:19], v8, s[%d:%d], s%d offen %s" % (SRD_OUT, SRD_OUT + 3, S_T0, fl))
        a("s_add_u32 s%d, s%d, 8192" % (S_T0, S_T0))
        a("buffer_store_dwordx4 v[20:23], v8, s[%d:%d], s%d offen %s" % (SRD_OUT, SRD_OUT + 3, S_T0, fl))
        self.stamp(15)
        self.stamp(25)

    def build(self):
        a = self.a
        self.prologue()
        self.xstage()
        a("s_cmp_ge_u32 s%d, 4" % S_W)
        a("s_cbranch_scc1 L_helper")
        self.p1_compute()
        self.g_compute()
        self.phase_o()
        a("s_branch L_end")
        a.label("L_helper")
        self.p1_helper()
        self.g_helper()
        a.label("L_end")
        a("s_endpgm")
        a.finalize()
        hdr = open("cdna_kernels/%s.s.ref" % NAME).read().split("\n")
        head = []
        for line in hdr:
            if line.startswith("; @launch"):
                head.append("; @launch grid=(256,1,1) block=(512,1,1) lds=%d" % LDS_TOTAL)
            elif line.startswith(";"): head.append(line)
            else: break
        txt = "\n".join(head) + "\n"
        txt += '.amdgcn_target "amdgcn-amd-amdhsa--gfx950"\n.text\n.globl %s_kernel\n.p2align 8\n.type %s_kernel,@function\n%s_kernel:\n' % (NAME, NAME, NAME)
        body = a.text()
        if "codepf" in self.exp:
            body = body.replace("CODE_LEN", "(L_end - L_pc_here - 16)")
        txt += body
        txt += '.section .rodata,"a"\n.p2align 6\n.amdhsa_kernel %s_kernel\n' % NAME
        txt += "  .amdhsa_next_free_vgpr 256\n  .amdhsa_next_free_sgpr 102\n  .amdhsa_accum_offset 128\n"
        txt += "  .amdhsa_group_segment_fixed_size 0\n  .amdhsa_kernarg_size 104\n  .amdhsa_user_sgpr_count 2\n"
        txt += "  .amdhsa_user_sgpr_kernarg_segment_ptr 1\n  .amdhsa_system_sgpr_workgroup_id_x 1\n"
        txt += "  .amdhsa_float_denorm_mode_32 3\n"
        txt += ".end_amdhsa_kernel\n"
        return txt

if __name__ == "__main__":
    import argparse
    ap = argparse.ArgumentParser()
    ap.add_argument("--stamps", action="store_true")
    ap.add_argument("--exp", default="")
    ap.add_argument("-o", default="cdna_kernels/%s.s" % NAME)
    args = ap.parse_args()
    g = Gen(stamps=args.stamps, exp=[e for e in args.exp.split(',') if e])
    txt = g.build()
    open(args.o, "w").write(txt)
    print("wrote", args.o, len(txt), "bytes;", len([i for i in g.a.ins if i.kind not in ("label", "dir")]), "instrs")
```

```python
import sys, math, struct
sys.path.insert(0, "gen")
from asmlib import *

NAME = "recurrent_scan__spectral_fnet__mixer_gmlp__prompt"

WS_FLAG = 0x000000
WS_STATS = 0x020000
WS_Z2N = 0x100000
WS_AB = 0x400000
WS_H = 0x600000
WS_YT = 0x900000
WS_STAMP = 0xF00000
WS_SIZE = 0x4000000
OOB = 0x80000000

LDS_WR = 65536
SLOT = 16384
NSLOT = 5
LDS_T4 = 147456
LDS_T5 = LDS_T4 + 1536
LDS_SY = LDS_T5 + 512
LDS_AT = 151552
LDS_YS = 40960
LDS_FX = 131072
LDS_WO = 73728
LDS_TOTAL = 163840

SRD_X, SRD_WIN, SRD_DFT, SRD_WSP, SRD_WOUT, SRD_WS, SRD_OUT, SRD_BSP, SRD_DBG = 4, 8, 12, 20, 24, 28, 32, 36, 40
S_IMLO, S_IMHI = 16, 17
S_MB, S_J, S_W, S_F0, S_WID, S_NONCE, S_L = 44, 45, 46, 47, 48, 49, 50
S_C, S_SLOT, S_XD = 51, 52, 53
S_CN, S_KC128, S_WSOFF, S_SLOTN = 54, 55, 56, 57
S_HW = 58
S_DL0, S_WL0, S_W2 = 60, 61, 62
S_T0, S_T1, S_T2, S_T3 = 63, 90, 91, 92
S_PASS = 93
S_EX = 94
S_K2 = 96
S_SPIN = 98
S_B0 = 99
S_ST0 = 100
S_ROT1 = 59
S_RHO = 51

V_LANE, V_JL, V_H, V_SIG = 1, 2, 3, 4

def f2u(x): return struct.unpack("<I", struct.pack("<f", x))[0]

class Gen:
    def __init__(self, stop_after=None, stamps=False, exp=()):
        self.a = Asm()
        self.stop_after = stop_after
        self.stamps = stamps
        self.exp = set(exp)

    def stamp(self, idx):
        if "dbgst" in self.exp:
            mm_ = {0: (1, 0), 1: (2, 0), 2: (3, 0), 3: (4, 0), 4: (5, 0), 5: (6, 0), 7: (7, 0), 8: (8, 0), 10: (9, 0), 16: (10, 0), 11: (11, 0), 21: (12, 0), 13: (13, 0), 14: (14, 0), 15: (15, 4)}
            m = {k: v[0] for k, v in mm_.items()}
            if idx in m:
                a = self.a
                lab = a.newlabel("ds")
                a("s_cmp_lg_u32 s%d, %d" % (S_L, 37))
                a("s_cbranch_scc1 %s" % lab)
                a("s_cmp_lg_u32 s%d, %d" % (S_W, mm_[idx][1]))
                a("s_cbranch_scc1 %s" % lab)
                a("s_memrealtime s[%d:%d]" % (S_ST0, S_ST0 + 1))
                a("s_waitcnt lgkmcnt(0)")
                a("v_mov_b32 v9, s%d" % S_ST0)
                a("v_mov_b32 v8, %d" % (4 * m[idx]))
                a("s_mov_b64 exec, 1")
                a("buffer_store_dword v9, v8, s[%d:%d], 0 offen sc1" % (SRD_DBG, SRD_DBG + 3))
                a("s_mov_b64 exec, -1")
                a.label(lab)
            return
        if not self.stamps: return
        a = self.a
        a(("s_memtime s[%d:%d]" if idx >= 24 else "s_memrealtime s[%d:%d]") % (S_ST0, S_ST0 + 1))
        a("s_waitcnt lgkmcnt(0)")
        a("v_mov_b32 v9, s%d" % S_ST0)
        a("s_lshl_b32 s%d, s%d, 3" % (S_ST0, S_L))
        a("s_add_u32 s%d, s%d, s%d" % (S_ST0, S_ST0, S_W))
        a("s_lshl_b32 s%d, s%d, 7" % (S_ST0, S_ST0))
        a("s_add_u32 s%d, s%d, 0x%x" % (S_ST0, S_ST0, WS_STAMP + idx * 4))
        a("v_mov_b32 v8, 0")
        a("s_mov_b64 s[%d:%d], exec" % (S_EX, S_EX + 1))
        a("s_mov_b64 exec, 1")
        a("buffer_store_dword v9, v8, s[%d:%d], s%d offen" % (SRD_WS, SRD_WS + 3, S_ST0))
        a("s_mov_b64 exec, s[%d:%d]" % (S_EX, S_EX + 1))

    def srd(self, base, plo, size):
        a = self.a
        a("s_mov_b32 s%d, s%d" % (base, plo))
        a("s_and_b32 s%d, s%d, 0xffff" % (base + 1, plo + 1))
        a("s_mov_b32 s%d, 0x%x" % (base + 2, size))
        a("s_mov_b32 s%d, 0x20000" % (base + 3))

    def flag_store(self, kind, dw=0, dw_sreg=None, vt=(5, 6)):
        a = self.a
        a("s_lshl_b32 s%d, s%d, 7" % (S_T0, S_L))
        a("s_add_u32 s%d, s%d, 0x%x" % (S_T0, S_T0, WS_FLAG + kind * 256 * 128 + dw * 4))
        if dw_sreg is not None:
            a("s_lshl_b32 s3, s%d, 2" % dw_sreg)
            a("s_add_u32 s%d, s%d, s3" % (S_T0, S_T0))
        a("v_mov_b32 v%d, s%d" % (vt[0], S_NONCE))
        a("v_mov_b32 v%d, 0" % vt[1])
        a("s_mov_b64 exec, 1")
        a("buffer_store_dword v%d, v%d, s[%d:%d], s%d offen sc1" % (vt[0], vt[1], SRD_WS, SRD_WS + 3, S_T0))
        a("s_mov_b64 exec, -1")

    def poll_flags_n(self, vaddr, nlanes, ndw, vt):
        a = self.a
        lab = a.newlabel("poll")
        a("s_mov_b32 s%d, 0" % S_SPIN)
        mask = (1 << nlanes) - 1
        a("s_mov_b32 exec_lo, 0x%x" % (mask & 0xffffffff))
        a("s_mov_b32 exec_hi, 0x%x" % (mask >> 32))
        a.label(lab)
        if ndw == 1: a("buffer_load_dword v%d, v%d, s[%d:%d], 0 offen sc1" % (vt, vaddr, SRD_WS, SRD_WS + 3))
        elif ndw == 2: a("buffer_load_dwordx2 v[%d:%d], v%d, s[%d:%d], 0 offen sc1" % (vt, vt + 1, vaddr, SRD_WS, SRD_WS + 3))
        else: a("buffer_load_dwordx4 v[%d:%d], v%d, s[%d:%d], 0 offen sc1" % (vt, vt + 3, vaddr, SRD_WS, SRD_WS + 3))
        a("s_waitcnt vmcnt(0)")
        a("v_cmp_ne_u32 vcc, s%d, v%d" % (S_NONCE, vt))
        for i in range(1, ndw):
            a("v_cmp_ne_u32 s[%d:%d], s%d, v%d" % (S_EX, S_EX + 1, S_NONCE, vt + i))
            a("s_or_b64 vcc, vcc, s[%d:%d]" % (S_EX, S_EX + 1))
        a("s_add_u32 s%d, s%d, 1" % (S_SPIN, S_SPIN))
        a("s_cmp_gt_u32 s%d, 0x8000" % S_SPIN)
        a("s_cbranch_scc1 %s_x" % lab)
        a("s_cbranch_vccnz %s" % lab)
        a.label(lab + "_x")
        a("s_mov_b64 exec, -1")

    def get_nonce(self):
        a = self.a
        lab = a.newlabel("nonce")
        a("v_mov_b32 v6, 0")
        a("s_mov_b32 s%d, 0" % S_SPIN)
        a.label(lab)
        a("buffer_load_dword v5, v6, s[%d:%d], 0 offen sc1" % (SRD_DBG, SRD_DBG + 3))
        a("s_waitcnt vmcnt(0)")
        a("v_readfirstlane_b32 s%d, v5" % S_NONCE)
        a("s_add_u32 s%d, s%d, 1" % (S_SPIN, S_SPIN))
        a("s_cmp_gt_u32 s%d, 0x8000" % S_SPIN)
        a("s_cbranch_scc1 %s_x" % lab)
        a("s_cmp_eq_u32 s%d, 0" % S_NONCE)
        a("s_cbranch_scc1 %s" % lab)
        a.label(lab + "_x")

    def nonce_from(self, vreg):
        a = self.a
        lab = a.newlabel("hn")
        a("v_readfirstlane_b32 s%d, v%d" % (S_NONCE, vreg))
        a("s_cmp_lg_u32 s%d, 0" % S_NONCE)
        a("s_cbranch_scc1 %s" % lab)
        self.get_nonce()
        a.label(lab)

    def poll_flags(self, vaddr, nlanes):
        a = self.a
        lab = a.newlabel("poll")
        a("s_mov_b32 s%d, 0" % S_SPIN)
        mask = (1 << nlanes) - 1
        a("s_mov_b32 exec_lo, 0x%x" % (mask & 0xffffffff))
        a("s_mov_b32 exec_hi, 0x%x" % (mask >> 32))
        a.label(lab)
        a("buffer_load_dword v5, v%d, s[%d:%d], 0 offen sc1" % (vaddr, SRD_WS, SRD_WS + 3))
        a("s_waitcnt vmcnt(0)")
        a("v_cmp_ne_u32 vcc, s%d, v5" % S_NONCE)
        a("s_add_u32 s%d, s%d, 1" % (S_SPIN, S_SPIN))
        a("s_cmp_gt_u32 s%d, 0x8000" % S_SPIN)
        a("s_cbranch_scc1 %s_x" % lab)
        a("s_cbranch_vccnz %s" % lab)
        a.label(lab + "_x")
        a("s_mov_b64 exec, -1")

    def lds_wait_ge(self, addr, val, vt=5):
        a = self.a
        lab = a.newlabel("lw")
        a("s_mov_b32 s%d, 0" % S_SPIN)
        a("v_mov_b32 v%d, %d" % (vt + 1, addr))
        a.label(lab)
        a("ds_read_b32 v%d, v%d" % (vt, vt + 1))
        a("s_waitcnt lgkmcnt(0)")
        a("v_readfirstlane_b32 s%d, v%d" % (S_T0, vt))
        a("s_add_u32 s%d, s%d, 1" % (S_SPIN, S_SPIN))
        a("s_cmp_gt_u32 s%d, 0x100000" % S_SPIN)
        a("s_cbranch_scc1 %s_x" % lab)
        a("s_cmp_lt_u32 s%d, %d" % (S_T0, val))
        a("s_cbranch_scc1 %s" % lab)
        a.label(lab + "_x")

    def hsum(self, regs, tmp):
        a = self.a
        for i, r in enumerate(regs): a("v_mov_b32 v%d, v%d" % (tmp + i, r))
        for i, r in enumerate(regs): a("v_permlane32_swap_b32 v%d, v%d" % (r, tmp + i))
        for i, r in enumerate(regs): a("v_add_f32 v%d, v%d, v%d" % (r, r, tmp + i))

    def mean_rstd(self, vsum, vsq, n, dst_r, dst_nm, t):
        a = self.a
        a("v_mul_f32 v%d, 0x%x, v%d" % (t, f2u(1.0 / n), vsum))
        a("v_mul_f32 v%d, 0x%x, v%d" % (t + 1, f2u(1.0 / n), vsq))
        a("v_fma_f32 v%d, -v%d, v%d, v%d" % (t + 1, t, t, t + 1))
        a("v_max_f32 v%d, 0, v%d" % (t + 1, t + 1))
        a("v_add_f32 v%d, 0x%x, v%d" % (t + 1, f2u(1e-5), t + 1))
        a("v_rsq_f32 v%d, v%d" % (dst_r, t + 1))
        a("v_mul_f32 v%d, v%d, v%d" % (dst_nm, t, dst_r))
        a("v_sub_f32 v%d, 0, v%d" % (dst_nm, dst_nm))

    V_OD, V_OW = 10, 11
    V_NON = 14
    def prologue(self):
        a = self.a
        a("s_cmp_ge_u32 s2, 256")
        a("s_cbranch_scc1 L_end")
        a("s_load_dwordx16 s[64:79], s[0:1], 0")
        a("s_load_dwordx8 s[80:87], s[0:1], 64")
        a("s_load_dwordx2 s[88:89], s[0:1], 96")
        if "map42" in self.exp:
            a("s_bfe_u32 s%d, s2, 0x20001" % S_MB)
            a("s_lshl_b32 s%d, s%d, 3" % (S_MB, S_MB))
            a("s_bfe_u32 s3, s2, 0x30003")
            a("s_add_u32 s%d, s%d, s3" % (S_MB, S_MB))
            a("s_and_b32 s%d, s2, 1" % S_J)
            a("s_lshl_b32 s%d, s%d, 2" % (S_J, S_J))
            a("s_lshr_b32 s3, s2, 6")
            a("s_add_u32 s%d, s%d, s3" % (S_J, S_J))
        else:
            a("s_and_b32 s%d, s2, 7" % S_MB)
            a("s_lshl_b32 s%d, s%d, 2" % (S_MB, S_MB))
            a("s_bfe_u32 s3, s2, 0x20003")
            a("s_add_u32 s%d, s%d, s3" % (S_MB, S_MB))
            a("s_lshr_b32 s%d, s2, 5" % S_J)
        a("s_lshl_b32 s%d, s%d, 5" % (S_L, S_J))
        a("s_add_u32 s%d, s%d, s%d" % (S_L, S_L, S_MB))
        a("v_lshrrev_b32 v5, 6, v0")
        a("v_and_b32 v%d, 63, v0" % V_LANE)
        a("v_readfirstlane_b32 s%d, v5" % S_W)
        a("v_lshrrev_b32 v20, 3, v0")
        a("v_and_b32 v21, 7, v0")
        a("v_lshlrev_b32 v22, 10, v20")
        a("v_lshl_add_u32 v22, v21, 4, v22")
        a("s_lshl_b32 s%d, s%d, 16" % (S_T1, S_MB))
        a("s_and_b32 s%d, s%d, 3" % (S_HW, S_W))
        a("v_and_b32 v%d, 31, v0" % V_JL)
        a("v_bfe_u32 v%d, v0, 5, 1" % V_H)
        a("v_and_b32 v5, 0x13, v%d" % V_JL)
        a("v_and_b32 v6, 4, v%d" % V_JL)
        a("v_lshl_or_b32 v5, v6, 1, v5")
        a("v_and_b32 v6, 8, v%d" % V_JL)
        a("v_lshrrev_b32 v6, 1, v6")
        a("v_or_b32 v%d, v5, v6" % V_SIG)
        a("s_mul_i32 s%d, s%d, 88" % (S_F0, S_J))
        a("s_cmp_eq_u32 s%d, 7" % S_J)
        a("s_cselect_b32 s3, 8, 0")
        a("s_sub_u32 s%d, s%d, s3" % (S_F0, S_F0))
        a("s_cmp_ge_u32 s%d, 6" % S_J)
        a("s_cselect_b32 s3, 8, 0")
        a("s_sub_u32 s%d, 88, s3" % S_WID)
        for i in range(10, 14): a("v_mov_b32 v%d, 0" % i)
        if "codepf" in self.exp:
            a("s_getpc_b64 s[92:93]")
            a.label("L_pc_here")
            a("s_lshr_b32 s3, s2, 3")
            a("s_lshl_b32 s3, s3, 3")
            a("s_add_u32 s3, s3, s%d" % S_W)
            a("s_mul_i32 s3, s3, 192")
            a("v_lshlrev_b32 v5, 4, v%d" % V_LANE)
            a("v_add_u32 v5, s3, v5")
            a("v_min_u32 v5, CODE_LEN, v5")
            a("s_mov_b64 exec, 0xfff")
            a("global_load_dwordx4 a[20:23], v5, s[92:93]")
            a("s_mov_b64 exec, -1")
        a("s_waitcnt lgkmcnt(0)")
        self.srd(SRD_X, 64, 2048 * 1024)
        a("s_and_b32 s%d, s%d, 3" % (S_ROT1, S_MB))
        a("s_lshl_b32 s%d, s%d, 1" % (S_ROT1, S_ROT1))
        a("s_add_u32 s%d, s%d, s%d" % (S_ROT1, S_ROT1, S_J))
        a("s_and_b32 s%d, s%d, 7" % (S_ROT1, S_ROT1))
        if "norot" in self.exp: a("s_mov_b32 s%d, 0" % S_ROT1)
        for i in range(8):
            a("s_add_u32 s3, s%d, %d" % (S_ROT1, i))
            a("s_and_b32 s3, s3, 7")
            a("s_lshl_b32 s3, s3, 7")
            a("s_add_u32 s3, s3, s%d" % S_T1)
            a("buffer_load_dwordx4 v[%d:%d], v22, s[%d:%d], s3 offen" % (32 + 4 * i, 35 + 4 * i, SRD_X, SRD_X + 3))
        self.srd(SRD_WIN, 76, 512 * 2752)
        self.srd(SRD_DFT, 70, 512 * 1024)
        self.srd(S_IMLO, 72, 512 * 1024)
        self.srd(SRD_WS, 88, WS_SIZE)
        self.srd(SRD_DBG, 86, 256)
        self.srd(SRD_WSP, 78, 2048 * 4096)
        self.srd(SRD_WOUT, 82, 688 * 1024)
        self.srd(SRD_OUT, 84, 2048 * 1024)
        self.srd(SRD_BSP, 80, 4096)
        if "tlbwarm" in self.exp:
            a("v_lshlrev_b32 v5, 20, v%d" % V_LANE)
            a("v_add_u32 v5, 0x7f000, v5")
            a("s_mov_b64 exec, 0xfff")
            a("buffer_load_dword a24, v5, s[%d:%d], 0 offen sc1" % (SRD_WS, SRD_WS + 3))
            a("s_mov_b64 exec, 1")
            a("s_lshl_b32 s3, s%d, 16" % S_MB)
            a("v_mov_b32 v5, s3")
            a("buffer_load_dword a25, v5, s[%d:%d], 0 offen" % (SRD_OUT, SRD_OUT + 3))
            a("s_lshl_b32 s3, s%d, 18" % S_MB)
            a("v_mov_b32 v5, s3")
            a("buffer_load_dword a26, v5, s[%d:%d], 0 offen" % (SRD_WSP, SRD_WSP + 3))
            a("v_mov_b32 v5, 0")
            a("buffer_load_dword a27, v5, s[%d:%d], 0 offen" % (SRD_WOUT, SRD_WOUT + 3))
            a("buffer_load_dword a28, v5, s[%d:%d], 0 offen" % (SRD_BSP, SRD_BSP + 3))
            a("s_mov_b64 exec, -1")
        self.npf3 = 0
        if "pf3" in self.exp:
            a("s_lshr_b32 s3, s2, 3")
            a("s_lshl_b32 s3, s3, 3")
            a("s_add_u32 s3, s3, s%d" % S_W)
            a("s_mul_i32 s%d, s3, 5504" % S_T0)
            a("v_lshlrev_b32 v5, 4, v%d" % V_LANE)
            for i in range(6):
                a("buffer_load_dwordx4 a[16:19], v5, s[%d:%d], s%d offen" % (SRD_WIN, SRD_WIN + 3, S_T0))
                a("s_add_u32 s%d, s%d, 1024" % (S_T0, S_T0))
            a("s_lshl_b32 s%d, s3, 10" % S_T0)
            a("s_add_u32 s%d, s%d, 1024" % (S_T0, S_T0))
            a("buffer_load_dwordx4 a[16:19], v5, s[%d:%d], s%d offen" % (SRD_DFT, SRD_DFT + 3, S_T0))
            a("buffer_load_dwordx4 a[16:19], v5, s[%d:%d], s%d offen" % (S_IMLO, S_IMLO + 3, S_T0))
            self.npf3 = 8
        a("s_cmp_lt_u32 s%d, 4" % S_W)
        a("s_cbranch_scc0 L_pro_h")
        self.npf = (self.prefetch_start() if "nopf" not in self.exp else 0) + (5 if "tlbwarm" in self.exp else 0) + self.npf3
        a("s_branch L_pro_c")
        a.label("L_pro_h")
        L = V_LANE
        a("v_lshrrev_b32 v5, 3, v%d" % L)
        a("v_and_b32 v6, 7, v%d" % L)
        a("v_lshrrev_b32 v7, 4, v%d" % L)
        a("v_xor_b32 v8, v6, v7")
        a("v_lshlrev_b32 v8, 4, v8")
        a("s_lshl_b32 s3, s%d, 5" % S_J)
        a("s_lshl_b32 s%d, s%d, 3" % (S_T0, S_HW))
        a("s_add_u32 s3, s3, s%d" % S_T0)
        a("v_add_u32 v9, s3, v5")
        a("v_cmp_eq_u32 vcc, 0, v9")
        a("v_mov_b32 v6, 256")
        a("v_cndmask_b32 v9, v9, v6, vcc")
        a("s_and_b32 s%d, s%d, 1" % (S_T0, S_HW))
        a("s_lshl_b32 s%d, s%d, 6" % (S_T0, S_T0))
        a("v_xor_b32 v8, s%d, v8" % S_T0)
        a("v_lshl_add_u32 v%d, v9, 10, v8" % self.V_OD)
        for p in range(3):
            a("v_add_u32 v5, %d, v%d" % (64 * p, L))
            a("v_mul_u32_u24 v6, 171, v5")
            a("v_lshrrev_b32 v6, 11, v6")
            a("v_mul_u32_u24 v7, 12, v6")
            a("v_sub_u32 v7, v5, v7")
            a("v_mul_u32_u24 v6, 2752, v6")
            a("v_lshl_add_u32 v6, v7, 4, v6")
            a("v_lshlrev_b32 v7, 3, v7")
            a("v_cmp_gt_u32 vcc, s%d, v7" % S_WID)
            a("v_mov_b32 v8, 0x%x" % OOB)
            a("v_cndmask_b32 v%d, v8, v6, vcc" % (self.V_OW + p))
        a("s_lshl_b32 s%d, s%d, 10" % (S_DL0, S_HW))
        a("s_mul_i32 s%d, s%d, 3072" % (S_WL0, S_HW))
        a("s_mul_i32 s%d, s%d, %d" % (S_W2, S_HW, 16 * 2752))
        a("s_lshl_b32 s3, s%d, 1" % S_F0)
        a("s_add_u32 s%d, s%d, s3" % (S_W2, S_W2))
        a("s_add_u32 s%d, s%d, %d" % (S_WSOFF, S_W2, 688 * 2))
        for k in range(4): self.dma_chunk(k)
        a("s_cmp_lg_u32 s2, 0")
        a("s_cbranch_scc1 L_nononce")
        a("s_cmp_lg_u32 s%d, 4" % S_W)
        a("s_cbranch_scc1 L_nononce")
        a("s_memrealtime s[%d:%d]" % (S_ST0, S_ST0 + 1))
        a("s_waitcnt lgkmcnt(0)")
        a("s_or_b32 s3, s%d, 1" % S_ST0)
        a("v_mov_b32 v5, s3")
        a("v_mov_b32 v6, 0")
        a("s_mov_b64 exec, 1")
        a("buffer_store_dword v5, v6, s[%d:%d], 0 offen sc1" % (SRD_DBG, SRD_DBG + 3))
        a("s_mov_b64 exec, -1")
        a.label("L_nononce")
        a("v_lshlrev_b32 v5, 2, v%d" % V_LANE)
        a("v_add_u32 v5, %d, v5" % LDS_SY)
        a("v_mov_b32 v6, 0")
        a("s_mov_b64 exec, 0xffff")
        a("ds_write_b32 v5, v6")
        a("s_mov_b64 exec, -1")
        a.label("L_pro_c")
        self.stamp(0)
        self.stamp(24)

    def pf_wrows(self, colbyte_sreg, row0_sreg, nrows16, dst):
        a = self.a
        a("v_lshrrev_b32 v5, 2, v%d" % V_LANE)
        a("v_add_u32 v5, s%d, v5" % row0_sreg)
        a("v_mul_u32_u24 v5, 2752, v5")
        a("v_and_b32 v6, 3, v%d" % V_LANE)
        a("v_lshlrev_b32 v6, 6, v6")
        a("v_min_u32 v6, 172, v6")
        a("v_add_u32 v5, v5, v6")
        for i in range(nrows16):
            a("s_add_u32 s3, s%d, %d" % (colbyte_sreg, i * 16 * 2752))
            a("buffer_load_dword a%d, v5, s[%d:%d], s3 offen" % (dst, SRD_WIN, SRD_WIN + 3))
        return nrows16

    def prefetch_start(self):
        a = self.a
        a("s_and_b32 s%d, s%d, 3" % (S_T0, S_MB))
        a("s_lshl_b32 s%d, s%d, 6" % (S_T0, S_T0))
        a("s_lshl_b32 s3, s%d, 4" % S_W)
        a("s_add_u32 s%d, s%d, s3" % (S_T0, S_T0))
        a("s_add_u32 s%d, s%d, 256" % (S_T0, S_T0))
        a("s_add_u32 s%d, s%d, 688" % (S_T1, S_F0))
        a("s_lshl_b32 s%d, s%d, 1" % (S_T1, S_T1))
        return self.pf_wrows(S_T1, S_T0, 1, 16)

    def prefetch_b(self):
        a = self.a
        a("s_and_b32 s%d, s%d, 3" % (S_T0, S_MB))
        a("s_lshl_b32 s%d, s%d, 7" % (S_T0, S_T0))
        a("s_lshl_b32 s3, s%d, 5" % S_W)
        a("s_add_u32 s%d, s%d, s3" % (S_T0, S_T0))
        a("s_lshl_b32 s%d, s%d, 1" % (S_T1, S_F0))
        self.pf_wrows(S_T1, S_T0, 2, 16)
        a("s_lshl_b32 s%d, s%d, 5" % (S_T0, S_J))
        a("s_and_b32 s3, s%d, 3" % S_MB)
        a("s_lshl_b32 s3, s3, 3")
        a("s_add_u32 s%d, s%d, s3" % (S_T0, S_T0))
        a("s_lshl_b32 s3, s%d, 1" % S_W)
        a("s_add_u32 s%d, s%d, s3" % (S_T0, S_T0))
        a("s_lshl_b32 s%d, s%d, 10" % (S_T0, S_T0))
        a("v_lshlrev_b32 v5, 4, v%d" % V_LANE)
        for i in range(2):
            a("buffer_load_dwordx4 a[16:19], v5, s[%d:%d], s%d offen offset:%d" % (S_IMLO, S_IMLO + 3, S_T0, i * 1024))

    def prefetch_wsp(self):
        a = self.a
        a("s_lshl_b32 s%d, s%d, 6" % (S_T0, S_MB))
        a("s_lshl_b32 s3, s%d, 3" % S_J)
        a("s_add_u32 s%d, s%d, s3" % (S_T0, S_T0))
        a("s_lshl_b32 s3, s%d, 1" % S_W)
        a("s_add_u32 s%d, s%d, s3" % (S_T0, S_T0))
        a("s_lshl_b32 s%d, s%d, 12" % (S_T0, S_T0))
        a("v_lshlrev_b32 v5, 4, v%d" % V_LANE)
        for i in range(8):
            a("buffer_load_dwordx4 a[16:19], v5, s[%d:%d], s%d offen" % (SRD_WSP, SRD_WSP + 3, S_T0))
            if i < 7: a("s_add_u32 s%d, s%d, 1024" % (S_T0, S_T0))

    def prefetch_wout(self):
        a = self.a
        a("s_and_b32 s3, s%d, 3" % S_MB)
        a("s_lshl_b32 s3, s3, 2")
        a("s_add_u32 s3, s3, s%d" % S_W)
        a("s_mul_i32 s%d, s3, 43" % S_T0)
        a("v_lshrrev_b32 v5, 1, v%d" % V_LANE)
        a("v_add_u32 v5, s%d, v5" % S_T0)
        a("v_lshlrev_b32 v5, 10, v5")
        a("v_and_b32 v6, 1, v%d" % V_LANE)
        a("v_lshl_add_u32 v5, v6, 6, v5")
        a("s_lshl_b32 s%d, s%d, 7" % (S_T0, S_J))
        a("buffer_load_dword a16, v5, s[%d:%d], s%d offen" % (SRD_WOUT, SRD_WOUT + 3, S_T0))
        a("s_add_u32 s%d, s%d, %d" % (S_T0, S_T0, 32 * 1024))
        a("buffer_load_dword a16, v5, s[%d:%d], s%d offen" % (SRD_WOUT, SRD_WOUT + 3, S_T0))

    def dma_chunk(self, k):
        a = self.a
        slot = LDS_WR + (k % NSLOT) * SLOT
        srd = SRD_DFT if k < 8 else S_IMLO
        a("s_add_u32 s%d, s%d, %d" % (S_T1, S_ROT1, k & 7))
        a("s_and_b32 s%d, s%d, 7" % (S_T1, S_T1))
        a("s_add_u32 m0, s%d, %d" % (S_DL0, slot + 12288))
        a("s_lshl_b32 s%d, s%d, 7" % (S_T0, S_T1))
        a("buffer_load_dwordx4 v%d, s[%d:%d], s%d offen lds" % (self.V_OD, srd, srd + 3, S_T0))
        a("s_mul_i32 s%d, s%d, %d" % (S_T1, S_T1, 64 * 2752))
        a("s_add_u32 m0, s%d, %d" % (S_WL0, slot))
        a("s_add_u32 s%d, s%d, s%d" % (S_T0, S_WSOFF if k < 8 else S_W2, S_T1))
        for p in range(3):
            a("buffer_load_dwordx4 v%d, s[%d:%d], s%d offen lds" % (self.V_OW + p, SRD_WIN, SRD_WIN + 3, S_T0))
            if p < 2:
                a("s_add_u32 m0, m0, 1024")
                a("s_nop 0")

    def xstage(self):
        a = self.a
        X = 32
        a("v_mov_b32 v23, 0x3f803f80")
        for i in range(4): a("v_mov_b32 v%d, 0" % (24 + i))
        a("v_bfe_u32 v5, v20, 1, 3")
        a("v_xor_b32 v5, v5, v21")
        a("v_lshlrev_b32 v5, 4, v5")
        a("v_lshl_add_u32 v28, v20, 7, v5")
        a("s_cmp_lt_u32 s%d, 4" % S_W)
        a("s_cbranch_scc1 L_xw_c")
        for path, younger in (("h", 16 + (5 if "tlbwarm" in self.exp else 0) + self.npf3), ("c", self.npf)):
            if path == "c": a.label("L_xw_c")
            for i in range(8):
                a("s_waitcnt vmcnt(%d)" % (younger + 7 - i))
                for r in range(4):
                    k = 4 * i + r
                    a("v_dot2c_f32_bf16 v%d, v%d, v23" % (24 + (k & 1), X + k))
                    a("v_dot2c_f32_bf16 v%d, v%d, v%d" % (26 + (k & 1), X + k, X + k))
            if path == "h": a("s_branch L_xw_d")
        a.label("L_xw_d")
        a("v_add_f32 v24, v24, v25")
        a("v_add_f32 v26, v26, v27")
        for dpp in ("quad_perm:[1,0,3,2]", "quad_perm:[2,3,0,1]", "row_half_mirror"):
            a("v_add_f32_dpp v25, v24, v24 %s row_mask:0xf bank_mask:0xf" % dpp)
            a("v_add_f32_dpp v27, v26, v26 %s row_mask:0xf bank_mask:0xf" % dpp)
            a("v_mov_b32 v24, v25")
            a("v_mov_b32 v26, v27")
        self.mean_rstd(24, 26, 512, 30, 31, 6)
        U = 64
        for i in range(8):
            for r in range(4):
                src = X + 4 * i + r
                t = U + 2 * ((4 * i + r) % 8)
                a("v_lshlrev_b32 v%d, 16, v%d" % (t, src))
                a("v_and_b32 v%d, 0xffff0000, v%d" % (t + 1, src))
                a("v_pk_fma_f32 v[%d:%d], v[%d:%d], v[30:31], v[30:31] op_sel:[0,0,1] op_sel_hi:[1,0,1]" % (t, t + 1, t, t + 1))
                a("v_cvt_pk_bf16_f32 v%d, v%d, v%d" % (src, t, t + 1))
            a("ds_write_b128 v28, v[%d:%d] offset:%d" % (X + 4 * i, X + 4 * i + 3, i * 8192))

    C_XA, C_AC, C_AN = 10, 14, 15
    C_FA, C_FB = 16, 32
    C_ACC = 64
    C_Z2P, C_Z1P = 96, 112
    C_GC1 = 6

    def c_setup(self, w3):
        a = self.a
        a("v_bfe_u32 v5, v%d, 1, 3" % V_SIG)
        a("v_lshlrev_b32 v6, 7, v%d" % V_SIG)
        for ks in range(4):
            a("v_add_u32 v8, %d, v%d" % (2 * ks, V_H))
            a("v_xor_b32 v8, v8, v5")
            a("v_lshl_add_u32 v%d, v8, 4, v6" % (self.C_XA + ks))
        if w3:
            for ks in range(4):
                a("v_add_u32 v%d, %d, v%d" % (116 + ks, LDS_WR + 12288, self.C_XA + ks))
        else:
            a("v_bfe_u32 v7, v%d, 2, 2" % V_LANE)
            a("v_lshl_add_u32 v7, v%d, 3, v7" % V_H)
            a("v_mul_u32_u24 v7, 192, v7")
            a("v_bfe_u32 v8, v%d, 4, 1" % V_LANE)
            a("v_lshlrev_b32 v8, 5, v8")
            a("v_and_b32 v9, 1, v%d" % V_LANE)
            a("v_lshl_add_u32 v8, v9, 4, v8")
            a("v_bfe_u32 v9, v%d, 1, 1" % V_LANE)
            a("v_lshl_add_u32 v8, v9, 3, v8")
            a("v_add_u32 v7, v7, v8")
            a("s_lshl_b32 s3, s%d, 6" % S_W)
            a("s_add_u32 s3, s3, %d" % LDS_WR)
            a("v_add_u32 v%d, s3, v7" % self.C_AC)
            a("v_add_u32 v%d, %d, v%d" % (self.C_AN, SLOT, self.C_AC))
            for Q in range(2):
                a("v_lshlrev_b32 v5, 3, v%d" % V_H)
                a("v_sub_u32 v5, v%d, v5" % V_SIG)
                if Q: a("v_subrev_u32 v5, 16, v5")
                a("v_and_b32 v6, 1, v5")
                a("v_lshlrev_b32 v6, 4, v6")
                a("v_mov_b32 v7, 0x3f80")
                a("v_lshlrev_b32 v6, v6, v7")
                a("v_lshrrev_b32 v5, 1, v5")
                for r in range(4):
                    a("v_cmp_eq_u32 vcc, %d, v5" % r)
                    a("v_cndmask_b32 v7, 0, v6, vcc")
                    a("v_accvgpr_write_b32 a%d, v7" % (4 * Q + r))

    def c_reads(self, w3, c, ks, nxt):
        A = self.C_FA + 4 * ks; B = self.C_FB + 8 * ks
        out = []
        xo = (c & 7) * 8192
        if w3:
            base = 124 + ks if nxt else 120 + ks
            out.append("ds_read_b128 v[%d:%d], v%d" % (A, A + 3, base))
        else:
            base = self.C_AN if nxt else self.C_AC
            out.append("ds_read_b64_tr_b16 v[%d:%d], v%d offset:%d" % (A, A + 1, base, ks * 3072))
            out.append("ds_read_b64_tr_b16 v[%d:%d], v%d offset:%d" % (A + 2, A + 3, base, ks * 3072 + 768))
        out.append("ds_read_b128 v[%d:%d], v%d offset:%d" % (B, B + 3, self.C_XA + ks, xo))
        out.append("ds_read_b128 v[%d:%d], v%d offset:%d" % (B + 4, B + 7, self.C_XA + ks, xo + 4096))
        return out

    def c_loop(self, w3):
        a = self.a
        nr = 3 if w3 else 4
        ACC = self.C_ACC
        def mfs(ks, first):
            A = self.C_FA + 4 * ks; B = self.C_FB + 8 * ks
            out = []
            for st in range(2):
                D = ACC + 16 * st
                cc = "0" if first else "v[%d:%d]" % (D, D + 15)
                if w3: out.append("v_mfma_f32_32x32x16_bf16 v[%d:%d], v[%d:%d], v[%d:%d], %s" % (D, D + 15, B + 4 * st, B + 4 * st + 3, A, A + 3, cc))
                else: out.append("v_mfma_f32_32x32x16_bf16 v[%d:%d], v[%d:%d], v[%d:%d], %s" % (D, D + 15, A, A + 3, B + 4 * st, B + 4 * st + 3, cc))
            return out
        a("s_mov_b32 s64, %d" % SLOT)
        if "pf2" in self.exp:
            a("v_lshlrev_b32 v9, 4, v%d" % V_LANE)
            lab = a.newlabel("pf2")
            a("s_cmp_lg_u32 s%d, 0" % S_PASS)
            a("s_cbranch_scc1 %s_b" % lab)
            for i in range(4): a("s_mov_b32 s%d, s%d" % (72 + i, SRD_WSP + i) if i < 3 else "s_mov_b32 s75, 0x20000")
            a("s_lshl_b32 s76, s%d, 6" % S_MB)
            a("s_lshl_b32 s3, s%d, 3" % S_J)
            a("s_add_u32 s76, s76, s3")
            a("s_lshl_b32 s3, s%d, 1" % S_W)
            a("s_add_u32 s76, s76, s3")
            a("s_lshl_b32 s76, s76, 12")
            a("s_branch %s_d" % lab)
            a.label(lab + "_b")
            for i in range(4): a("s_mov_b32 s%d, s%d" % (72 + i, SRD_WOUT + i) if i < 3 else "s_mov_b32 s75, 0x20000")
            a("s_and_b32 s76, s%d, 3" % S_MB)
            a("s_lshl_b32 s76, s76, 3")
            a("s_add_u32 s76, s76, s%d" % S_J)
            a("s_lshl_b32 s76, s76, 2")
            a("s_add_u32 s76, s76, s%d" % S_W)
            a("s_mul_i32 s76, s76, 43")
            a("s_lshr_b32 s76, s76, 3")
            a("s_lshl_b32 s76, s76, 10")
            a.label(lab + "_d")
        if w3:
            for ks in range(4): a("v_add_u32 v%d, s%d, v%d" % (120 + ks, S_SLOT, 116 + ks))
        for r in self.c_reads(w3, 0, 0, False): a(r)
        for r in self.c_reads(w3, 0, 1, False): a(r)
        for c in range(8):
            a("s_barrier")
            extra = []
            if w3:
                extra += ["s_add_u32 s%d, s%d, %d" % (S_T1, S_SLOT, SLOT), "s_cmp_eq_u32 s%d, %d" % (S_T1, NSLOT * SLOT), "s_cselect_b32 s%d, 0, s%d" % (S_T1, S_T1),
                          "v_add_u32 v124, s%d, v116" % S_T1, "v_add_u32 v125, s%d, v117" % S_T1]
            for ks in range(4):
                if ks < 2: rd = self.c_reads(w3, c, ks + 2, False)
                else: rd = self.c_reads(w3, c + 1, ks - 2, True)
                if "cnoread" in self.exp: rd = []
                m = mfs(ks, c == 0 and ks == 0)
                if "cnomfma" in self.exp: m = []
                a("s_waitcnt lgkmcnt(%d)" % nr)
                half = (len(rd) + 1) // 2
                if m: a(m[0])
                if ks == 0:
                    for e in extra: a(e)
                    if "pf2" in self.exp:
                        a("buffer_load_dwordx4 a[16:19], v9, s[72:75], s76 offen")
                        a("s_add_u32 s76, s76, 1024")
                for r in rd[:half]: a(r)
                if m: a(m[1])
                for r in rd[half:]: a(r)
                if ks == 3:
                    if w3:
                        a("s_mov_b32 s%d, s%d" % (S_SLOT, S_T1))
                        for k2 in range(4): a("v_add_u32 v%d, s%d, v%d" % (120 + k2, S_SLOT, 116 + k2))
                    else:
                        a("v_mov_b32 v%d, v%d" % (self.C_AC, self.C_AN))
                        a("s_add_u32 s%d, s%d, %d" % (S_SLOT, S_SLOT, SLOT))
                        a("s_cmp_eq_u32 s%d, %d" % (S_SLOT, NSLOT * SLOT))
                        a("s_cselect_b32 s%d, 0x%x, s64" % (S_T1, (-(NSLOT - 1) * SLOT) & 0xffffffff))
                        a("s_cselect_b32 s%d, 0, s%d" % (S_SLOT, S_SLOT))
                        a("v_add_u32 v%d, s%d, v%d" % (self.C_AN, S_T1, self.C_AN))
        a("s_waitcnt lgkmcnt(0)")

    def gelu_epilogue(self, dst, hook=None, hook_at=8):
        a = self.a
        E = 16
        c1 = -2.0 * math.sqrt(2.0 / math.pi) * math.log2(math.e)
        c2 = c1 * 0.044715
        a("v_mov_b32 v6, 0x%x" % f2u(c1))
        a("s_mov_b32 s%d, 0x%x" % (S_K2, f2u(c2)))
        a("s_mov_b32 s%d, 0x%x" % (S_K2 + 1, f2u(c2)))
        for pp in range(0, 16, 2):
            if hook is not None and pp == hook_at: hook()
            seq = [[], []]
            for u in range(2):
                pre = self.C_ACC + 2 * (pp + u)
                p2, e = E + u * 4, E + u * 4 + 2
                s = seq[u]
                s.append("v_pk_mul_f32 v[%d:%d], v[%d:%d], v[%d:%d]" % (p2, p2 + 1, pre, pre + 1, pre, pre + 1))
                s.append("v_pk_fma_f32 v[%d:%d], v[%d:%d], s[%d:%d], v[6:7] op_sel_hi:[1,1,0]" % (p2, p2 + 1, p2, p2 + 1, S_K2, S_K2 + 1))
                s.append("v_pk_mul_f32 v[%d:%d], v[%d:%d], v[%d:%d]" % (p2, p2 + 1, p2, p2 + 1, pre, pre + 1))
                s.append("v_exp_f32 v%d, v%d" % (e, p2))
                s.append("v_exp_f32 v%d, v%d" % (e + 1, p2 + 1))
                s.append("v_pk_add_f32 v[%d:%d], v[%d:%d], 1.0 op_sel_hi:[1,0]" % (e, e + 1, e, e + 1))
                s.append("v_rcp_f32 v%d, v%d" % (e, e))
                s.append("v_rcp_f32 v%d, v%d" % (e + 1, e + 1))
                s.append("v_pk_mul_f32 v[%d:%d], v[%d:%d], v[%d:%d]" % (e, e + 1, pre, pre + 1, e, e + 1))
                s.append("v_cvt_pk_bf16_f32 v%d, v%d, v%d" % (dst + pp + u, e, e + 1))
            for i in range(len(seq[0])):
                a(seq[0][i]); a(seq[1][i])

    def stats2_partial(self, src):
        a = self.a
        E = 16
        a("v_mov_b32 v24, 0x3f803f80")
        for i in range(4): a("v_mov_b32 v%d, 0" % (E + i))
        for r in range(8):
            for st in range(2):
                a("v_dot2c_f32_bf16 v%d, v%d, v24" % (E + 2 * st, src + 8 * st + r))
                a("v_dot2c_f32_bf16 v%d, v%d, v%d" % (E + 2 * st + 1, src + 8 * st + r, src + 8 * st + r))
        self.hsum([E, E + 1, E + 2, E + 3], E + 4)
        a("s_lshl_b32 s3, s%d, 9" % S_W)
        a("s_add_u32 s3, s3, %d" % LDS_T4)
        a("v_lshlrev_b32 v8, 3, v%d" % V_JL)
        a("v_add_u32 v8, s3, v8")
        a("ds_write_b64 v8, v[%d:%d]" % (E, E + 1))
        a("ds_write_b64 v8, v[%d:%d] offset:256" % (E + 2, E + 3))
        a("s_waitcnt lgkmcnt(0)")

    def dft_store(self, part):
        a = self.a
        a("v_and_b32 v5, 7, v%d" % V_SIG)
        a("v_xor_b32 v5, v5, v%d" % V_H)
        a("v_lshlrev_b32 v5, 4, v5")
        a("v_lshl_add_u32 v5, v%d, 7, v5" % V_SIG)
        a("v_add_u32 v5, %d, v5" % LDS_AT)
        for st in range(2):
            for Q in range(2):
                o = 16 + (st * 2 + Q) * 4
                for p in range(4):
                    acc = self.C_ACC + 16 * st + 8 * Q + 2 * p
                    a("v_cvt_pk_bf16_f32 v%d, v%d, v%d" % (o + p, acc, acc + 1))
                a("v_xor_b32 v6, %d, v5" % ((4 * st + 2 * Q) * 16))
                a("ds_write_b128 v6, v[%d:%d]" % (o, o + 3))
        a("v_lshrrev_b32 v7, 3, v%d" % V_LANE)
        a("v_and_b32 v8, 7, v%d" % V_LANE)
        a("v_xor_b32 v6, v7, v8")
        a("v_lshlrev_b32 v6, 4, v6")
        a("v_lshl_add_u32 v6, v7, 7, v6")
        a("v_add_u32 v6, %d, v6" % LDS_AT)
        a("s_waitcnt lgkmcnt(0)")
        for i in range(4):
            a("ds_read_b128 v[%d:%d], v6 offset:%d" % (32 + 4 * i, 35 + 4 * i, i * 1024))
        a("v_lshlrev_b32 v7, 13, v7")
        a("v_lshl_add_u32 v7, v8, 4, v7")
        a("s_lshl_b32 s%d, s%d, 18" % (S_T0, S_J))
        a("s_lshl_b32 s3, s%d, 7" % S_MB)
        a("s_add_u32 s%d, s%d, s3" % (S_T0, S_T0))
        a("s_add_u32 s%d, s%d, 0x%x" % (S_T0, S_T0, WS_AB + part * 4096))
        a("s_waitcnt lgkmcnt(0)")
        for i in range(4):
            a("buffer_store_dwordx4 v[%d:%d], v7, s[%d:%d], s%d offen sc1" % (32 + 4 * i, 35 + 4 * i, SRD_WS, SRD_WS + 3, S_T0))
            if i < 3: a("s_add_u32 s%d, s%d, %d" % (S_T0, S_T0, 8 * 8192))

    def z2n_publish(self):
        a = self.a
        a("v_lshlrev_b32 v5, 3, v%d" % V_JL)
        a("v_add_u32 v5, %d, v5" % LDS_T5)
        a("ds_read_b64 v[6:7], v5")
        a("ds_read_b64 v[8:9], v5 offset:256")
        a("s_waitcnt lgkmcnt(0)")
        N = 48
        for st in range(2):
            r2 = 6 + 2 * st
            for r in range(8):
                src = self.C_Z2P + 8 * st + r
                t = 16 + 2 * (r % 4)
                a("v_lshlrev_b32 v%d, 16, v%d" % (t, src))
                a("v_and_b32 v%d, 0xffff0000, v%d" % (t + 1, src))
                a("v_pk_fma_f32 v[%d:%d], v[%d:%d], v[%d:%d], v[%d:%d] op_sel:[0,0,1] op_sel_hi:[1,0,1]" % (t, t + 1, t, t + 1, r2, r2 + 1, r2, r2 + 1))
                a("v_cvt_pk_bf16_f32 v%d, v%d, v%d" % (N + 8 * st + r, t, t + 1))
        DT = 16
        for st in range(2):
            D = DT + 16 * st
            a("v_mfma_f32_32x32x16_bf16 v[%d:%d], v[%d:%d], a[0:3], 0" % (D, D + 15, N + 8 * st, N + 8 * st + 3))
        for st in range(2):
            D = DT + 16 * st
            a("v_mfma_f32_32x32x16_bf16 v[%d:%d], v[%d:%d], a[4:7], v[%d:%d]" % (D, D + 15, N + 8 * st + 4, N + 8 * st + 7, D, D + 15))
        a("s_lshl_b32 s%d, s%d, 7" % (S_T0, S_J))
        a("s_lshl_b32 s%d, s%d, 2" % (S_T1, S_MB))
        a("s_add_u32 s%d, s%d, s%d" % (S_T0, S_T0, S_T1))
        a("s_mul_i32 s%d, s%d, 3" % (S_T0, S_T0))
        a("s_add_u32 s%d, s%d, s%d" % (S_T0, S_T0, S_W))
        a("s_lshl_b32 s%d, s%d, 10" % (S_T0, S_T0))
        a("s_add_u32 s%d, s%d, 0x%x" % (S_T0, S_T0, WS_Z2N))
        a("v_lshlrev_b32 v5, 4, v%d" % V_LANE)
        for st in range(2):
            for Q in range(2):
                D = DT + 16 * st + 8 * Q
                o = 48 + (st * 2 + Q) * 4
                for p in range(4):
                    a("v_cvt_pk_bf16_f32 v%d, v%d, v%d" % (o + p, D + 2 * p, D + 2 * p + 1))
                a("s_add_u32 s%d, s%d, %d" % (S_T1, S_T0, (2 * st + Q) * 3072))
                if "nozstore" not in self.exp: a("buffer_store_dwordx4 v[%d:%d], v5, s[%d:%d], s%d offen sc1" % (o, o + 3, SRD_WS, SRD_WS + 3, S_T1))

    def zero_acc(self):
        for i in range(32): self.a("v_mov_b32 v%d, 0" % (self.C_ACC + i))

    def p1_compute(self):
        a = self.a
        a("s_cmp_eq_u32 s%d, 3" % S_W)
        a("s_cbranch_scc1 L_c3")
        self.c_setup(False)
        a("s_mov_b32 s%d, 0" % S_C)
        a("s_mov_b32 s%d, %d" % (S_SLOT, SLOT))
        a("s_mov_b32 s%d, 0" % S_PASS)
        a("s_waitcnt lgkmcnt(0)")
        a("s_barrier")
        if "nopf" not in self.exp: self.prefetch_b()
        self.stamp(1)
        self.stamp(28)
        a.label("L_pass")
        self.c_loop(False)
        a("s_cmp_lg_u32 s%d, 0" % S_PASS)
        a("s_cbranch_scc1 L_passB_done")
        self.stamp(29)
        self.stamp(2)
        if "nopf" not in self.exp: self.prefetch_wsp()
        self.gelu_epilogue(self.C_Z2P)
        self.stats2_partial(self.C_Z2P)
        a("s_barrier")
        a("v_mov_b32 v6, 0")
        a("buffer_load_dword a8, v6, s[%d:%d], 0 offen sc1" % (SRD_DBG, SRD_DBG + 3))
        a("s_lshl_b32 s%d, s%d, 7" % (S_T0, S_MB))
        a("v_lshlrev_b32 v5, 1, v%d" % V_SIG)
        a("buffer_load_ushort a9, v5, s[%d:%d], s%d offen" % (SRD_BSP, SRD_BSP + 3, S_T0))
        a("buffer_load_ushort a10, v5, s[%d:%d], s%d offen offset:64" % (SRD_BSP, SRD_BSP + 3, S_T0))
        if "nopf" not in self.exp: self.prefetch_wout()
        self.stamp(3)
        a("s_mov_b32 s%d, 1" % S_PASS)
        a("s_branch L_pass")
        a.label("L_passB_done")
        self.stamp(4)
        a("s_waitcnt vmcnt(0)")
        a("v_accvgpr_read_b32 v39, a8")
        self.nonce_from(39)
        self.stamp(22)
        a("s_barrier")
        self.stamp(5)
        self.z2n_publish()
        def hook():
            a("s_waitcnt vmcnt(0)")
            self.flag_store(1, 0, S_W, vt=(8, 9))
            self.stamp(7)
        self.gelu_epilogue(self.C_Z1P, hook, 8)
        a("s_branch L_c_join")
        a.label("L_c3")
        self.c_setup(True)
        a("s_mov_b32 s%d, 0" % S_C)
        a("s_mov_b32 s%d, 0" % S_SLOT)
        a("s_mov_b32 s%d, 0" % S_PASS)
        a("s_waitcnt lgkmcnt(0)")
        a("s_barrier")
        if "nopf" not in self.exp: self.prefetch_b()
        a.label("L_pass3")
        self.c_loop(True)
        a("s_cmp_lg_u32 s%d, 0" % S_PASS)
        a("s_cbranch_scc1 L_passB3_done")
        if "nopf" not in self.exp: self.prefetch_wsp()
        self.dft_store(0)
        a("s_barrier")
        a("v_mov_b32 v6, 0")
        a("buffer_load_dword a8, v6, s[%d:%d], 0 offen sc1" % (SRD_DBG, SRD_DBG + 3))
        if "nopf" not in self.exp: self.prefetch_wout()
        a("s_mov_b32 s%d, 1" % S_PASS)
        a("s_branch L_pass3")
        a.label("L_passB3_done")
        self.dft_store(1)
        a("s_waitcnt vmcnt(0)")
        a("v_accvgpr_read_b32 v39, a8")
        self.nonce_from(39)
        self.flag_store(1, 3)
        a("s_barrier")
        a.label("L_c_join")

    def fix_x_after_pass(self):
        a = self.a
        a("v_subrev_u32 v%d, 8192, v%d" % (self.C_XA, self.C_XA))
        a("v_subrev_u32 v%d, 8192, v%d" % (self.C_XA + 1, self.C_XA + 1))

    def capture(self, fn):
        save = self.a
        tmp = Asm(); tmp.uid = save.uid + 1000
        self.a = tmp
        fn()
        self.a = save
        save.uid = tmp.uid
        return [i.text for i in tmp.ins]

    def h_loop(self, k0):
        a = self.a
        consts = self.capture(self.fft_consts) if (k0 == 8 and "nofft" not in self.exp) else []
        per = (len(consts) + 7) // 8
        st = self.stage_loads() if k0 == 8 else []
        nst = 0
        for k in range(k0, k0 + 8):
            if k + 1 <= 15 and "hnowait" not in self.exp:
                younger = 4 * (min(k + 3, 15) - (k + 1))
                if k >= 12:
                    lab = a.newlabel("hw")
                    a("s_cmp_ge_u32 s%d, 2" % S_HW)
                    a("s_cbranch_scc1 %s_b" % lab)
                    a("s_waitcnt vmcnt(%d)" % (younger + nst))
                    a("s_branch %s_d" % lab)
                    a.label(lab + "_b")
                    a("s_cmp_eq_u32 s%d, 2" % S_HW)
                    a("s_cbranch_scc1 %s_c" % lab)
                    a("s_waitcnt vmcnt(%d)" % younger)
                    a("s_branch %s_d" % lab)
                    a.label(lab + "_c")
                    a("s_waitcnt vmcnt(%d)" % (younger + (16 if k >= 14 else 0)))
                    a.label(lab + "_d")
                else:
                    a("s_waitcnt vmcnt(%d)" % younger)
            a("s_barrier")
            if k + 4 <= 15: self.dma_chunk(k + 4)
            if k == 13:
                lab = a.newlabel("si")
                a("s_cmp_lg_u32 s%d, 2" % S_HW)
                a("s_cbranch_scc1 %s" % lab)
                self.stats2_issue()
                a.label(lab)
            if k == 15:
                lab = a.newlabel("si")
                a("s_cmp_lg_u32 s%d, 2" % S_HW)
                a("s_cbranch_scc1 %s" % lab)
                self.stats2_consume()
                a.label(lab)
            if k == 11:
                self.wsp_voffsets(120)
                a("s_lshl_b32 s%d, s%d, 18" % (S_T1, S_MB))
                a("s_lshl_b32 s3, s%d, 10" % S_HW)
                a("s_add_u32 s%d, s%d, s3" % (S_T1, S_T1))
                a("s_add_u32 s67, s%d, %d" % (S_T1, 2 * 256))
                a("s_add_u32 s68, s%d, %d" % (S_T1, 3 * 256))
                a("s_add_u32 s69, s%d, %d" % (S_T1, 2 * 1024 + 2 * 256))
            if k0 == 0: continue
            lab = a.newlabel("role")
            a("s_cmp_lt_u32 s%d, 2" % S_HW)
            a("s_cbranch_scc1 %s_s" % lab)
            if consts:
                for t in consts[(k - k0) * per:(k - k0 + 1) * per]: a(t)
            a("s_branch %s_d" % lab)
            a.label(lab + "_s")
            if st and k >= 12:
                n = 12
                for t in st[2 * nst:2 * (nst + n)]: a(t)
                nst += n
            a.label(lab + "_d")

    def stats2_publish(self):
        a = self.a
        E = 16
        a("v_lshlrev_b32 v8, 3, v%d" % V_JL)
        a("v_add_u32 v8, %d, v8" % LDS_T4)
        for w in range(3):
            for st in range(2):
                d = E + w * 4 + st * 2
                a("ds_read_b64 v[%d:%d], v8 offset:%d" % (d, d + 1, w * 512 + st * 256))
        a("s_waitcnt lgkmcnt(0)")
        for w in range(1, 3):
            for st in range(2):
                a("v_pk_add_f32 v[%d:%d], v[%d:%d], v[%d:%d]" % (E + st * 2, E + st * 2 + 1, E + st * 2, E + st * 2 + 1, E + w * 4 + st * 2, E + w * 4 + st * 2 + 1))
        for st in range(2):
            o = 32 + 4 * st
            a("v_mov_b32 v%d, v%d" % (o, E + 2 * st))
            a("v_mov_b32 v%d, s%d" % (o + 1, S_NONCE))
            a("v_mov_b32 v%d, v%d" % (o + 2, E + 2 * st + 1))
            a("v_mov_b32 v%d, s%d" % (o + 3, S_NONCE))
        a("s_lshl_b32 s%d, s%d, 3" % (S_T0, S_MB))
        a("s_add_u32 s%d, s%d, s%d" % (S_T0, S_T0, S_J))
        a("s_lshl_b32 s%d, s%d, 10" % (S_T0, S_T0))
        a("s_add_u32 s%d, s%d, 0x%x" % (S_T0, S_T0, WS_STATS))
        a("v_lshlrev_b32 v8, 4, v%d" % V_JL)
        a("s_mov_b32 exec_hi, 0")
        a("buffer_store_dwordx4 v[32:35], v8, s[%d:%d], s%d offen sc1" % (SRD_WS, SRD_WS + 3, S_T0))
        a("buffer_store_dwordx4 v[36:39], v8, s[%d:%d], s%d offen offset:512 sc1" % (SRD_WS, SRD_WS + 3, S_T0))
        a("s_mov_b64 exec, -1")

    ST = 48
    def stats2_issue(self):
        a = self.a
        a("s_lshl_b32 s%d, s%d, 13" % (S_T0, S_MB))
        a("s_add_u32 s%d, s%d, 0x%x" % (S_T0, S_T0, WS_STATS))
        a("v_lshlrev_b32 v8, 4, v%d" % V_JL)
        for jj in range(8):
            for st in range(2):
                r = self.ST + (jj * 2 + st) * 4
                a("buffer_load_dwordx4 v[%d:%d], v8, s[%d:%d], s%d offen offset:%d sc1" % (r, r + 3, SRD_WS, SRD_WS + 3, S_T0, st * 512))
            if jj < 7: a("s_add_u32 s%d, s%d, 1024" % (S_T0, S_T0))

    def stats2_consume(self):
        a = self.a
        lab = a.newlabel("sc")
        a("s_mov_b32 s%d, 0" % S_SPIN)
        a.label(lab)
        a("s_waitcnt vmcnt(0)")
        a("s_mov_b64 s[%d:%d], 0" % (S_EX, S_EX + 1))
        for g in range(16):
            r = self.ST + 4 * g
            a("v_cmp_ne_u32 vcc, s%d, v%d" % (S_NONCE, r + 1))
            a("s_or_b64 s[%d:%d], s[%d:%d], vcc" % (S_EX, S_EX + 1, S_EX, S_EX + 1))
            a("v_cmp_ne_u32 vcc, s%d, v%d" % (S_NONCE, r + 3))
            a("s_or_b64 s[%d:%d], s[%d:%d], vcc" % (S_EX, S_EX + 1, S_EX, S_EX + 1))
        a("s_cmp_eq_u64 s[%d:%d], 0" % (S_EX, S_EX + 1))
        a("s_cbranch_scc1 %s_ok" % lab)
        a("s_add_u32 s%d, s%d, 1" % (S_SPIN, S_SPIN))
        a("s_cmp_gt_u32 s%d, 0x8000" % S_SPIN)
        a("s_cbranch_scc1 %s_ok" % lab)
        self.stats2_issue()
        a("s_branch %s" % lab)
        a.label(lab + "_ok")
        for st in range(2):
            b = self.ST + 4 * st
            for jj in range(1, 8):
                r = self.ST + (jj * 2 + st) * 4
                a("v_add_f32 v%d, v%d, v%d" % (b, b, r))
                a("v_add_f32 v%d, v%d, v%d" % (b + 2, b + 2, r + 2))
        for st in range(2):
            b = self.ST + 4 * st
            self.mean_rstd(b, b + 2, 688, 112 + 2 * st, 113 + 2 * st, 116)
        a("v_lshlrev_b32 v8, 3, v%d" % V_JL)
        a("v_add_u32 v8, %d, v8" % LDS_T5)
        a("ds_write_b64 v8, v[112:113]")
        a("ds_write_b64 v8, v[114:115] offset:256")
        a("s_waitcnt lgkmcnt(0)")

    def angles(self, n_list, tq, base, dst):
        a = self.a
        for idx, n in enumerate(n_list):
            if n == 0: a("v_mov_b32 v%d, v%d" % (dst + idx, base))
            else: a("v_fmamk_f32 v%d, v%d, 0x%x, v%d" % (dst + idx, tq, f2u(float(n)), base))

    H_T1F, H_8H = 46, 47
    def fft_consts(self):
        a = self.a
        T = 16
        a("v_bfe_u32 v%d, v%d, 2, 1" % (T, V_JL))
        a("v_lshlrev_b32 v%d, 4, v%d" % (T, T))
        a("v_bfe_u32 v%d, v%d, 3, 2" % (T + 1, V_JL))
        a("v_lshl_or_b32 v%d, v%d, 2, v%d" % (T, T + 1, T))
        a("v_and_b32 v%d, 3, v%d" % (T + 1, V_JL))
        a("v_or_b32 v%d, v%d, v%d" % (T, T, T + 1))
        a("v_cvt_f32_u32 v%d, v%d" % (self.H_T1F, T))
        a("v_cvt_f32_u32 v%d, v%d" % (self.H_8H, V_H))
        a("v_mul_f32 v%d, 0x%x, v%d" % (self.H_8H, f2u(8.0), self.H_8H))
        a("v_mul_f32 v%d, 0x%x, v%d" % (T + 2, f2u(1.0 / 32), self.H_T1F))
        a("v_mul_f32 v%d, v%d, v%d" % (T + 3, T + 2, self.H_8H))
        A = T + 4; C = T + 12; S = T + 20
        for ks in range(2):
            self.angles([16 * ks + i for i in range(8)], T + 2, T + 3, A)
            for i in range(8): a("v_fract_f32 v%d, v%d" % (A + i, A + i))
            for i in range(8):
                a("v_cos_f32 v%d, v%d" % (C + i, A + i))
                a("v_sin_f32 v%d, v%d" % (S + i, A + i))
            for p in range(4):
                a("v_cvt_pk_bf16_f32 v%d, v%d, v%d" % (A + 0, C + 2 * p, C + 2 * p + 1))
                a("v_cvt_pk_bf16_f32 v%d, -v%d, -v%d" % (A + 1, S + 2 * p, S + 2 * p + 1))
                a("v_cvt_pk_bf16_f32 v%d, v%d, v%d" % (A + 2, S + 2 * p, S + 2 * p + 1))
                a("v_accvgpr_write_b32 a%d, v%d" % (4 * ks + p, A + 0))
                a("v_accvgpr_write_b32 a%d, v%d" % (8 + 4 * ks + p, A + 1))
                a("v_accvgpr_write_b32 a%d, v%d" % (16 + 4 * ks + p, A + 2))
        a("v_accvgpr_write_b32 a60, v%d" % self.H_T1F)
        a("v_accvgpr_write_b32 a61, v%d" % self.H_8H)
        a("s_sub_u32 s3, s%d, 2" % S_HW)
        a("s_lshl_b32 s3, s3, 5")
        a("v_add_u32 v%d, s3, v%d" % (T + 2, V_JL))
        a("v_cvt_f32_u32 v%d, v%d" % (T + 2, T + 2))
        a("v_mul_f32 v%d, 0x%x, v%d" % (T + 2, f2u(1.0 / 64), T + 2))
        a("v_mul_f32 v%d, v%d, v%d" % (T + 3, T + 2, self.H_8H))
        for kt in range(2):
            for kp in range(2):
                self.angles([32 * kt + 16 * kp + i for i in range(8)], T + 2, T + 3, A)
                for i in range(8): a("v_fract_f32 v%d, v%d" % (A + i, A + i))
                for i in range(8):
                    a("v_cos_f32 v%d, v%d" % (C + i, A + i))
                    a("v_sin_f32 v%d, v%d" % (S + i, A + i))
                for p in range(4):
                    a("v_cvt_pk_bf16_f32 v%d, v%d, v%d" % (A + 0, C + 2 * p, C + 2 * p + 1))
                    a("v_cvt_pk_bf16_f32 v%d, v%d, v%d" % (A + 1, S + 2 * p, S + 2 * p + 1))
                    a("v_accvgpr_write_b32 a%d, v%d" % (24 + 16 * kt + 4 * kp + p, A + 0))
                    a("v_accvgpr_write_b32 a%d, v%d" % (24 + 16 * kt + 8 + 4 * kp + p, A + 1))

    def p1_helper(self):
        a = self.a
        a("s_mov_b32 s%d, 0" % S_C)
        a("v_mov_b32 v6, 0")
        a("buffer_load_dword v%d, v6, s[%d:%d], 0 offen sc1" % (self.V_NON, SRD_DBG, SRD_DBG + 3))
        a("s_waitcnt vmcnt(13) lgkmcnt(0)")
        a("s_barrier")
        self.h_loop(0)
        self.nonce_from(self.V_NON)
        a("s_barrier")
        a("s_cmp_lg_u32 s%d, 0" % S_HW)
        a("s_cbranch_scc1 L_h_nopub")
        self.stats2_publish()
        a.label("L_h_nopub")
        self.h_loop(8)
        self.stamp(22)
        a("s_barrier")

    G_B = 16
    G_VB = 10
    G_VZ = 32
    G_L16 = 35
    G_BS = 36
    G_RV = 40
    def ring_reg(self, f):
        if f < 8: return "a[%d:%d]" % (96 + 4 * f, 96 + 4 * f + 3)
        r = self.G_RV + 4 * (f - 8)
        return "v[%d:%d]" % (r, r + 3)

    def g_compute(self):
        a = self.a
        a("v_lshlrev_b32 v%d, 4, v%d" % (self.G_L16, V_LANE))
        a("v_and_b32 v5, 15, v%d" % V_SIG)
        a("v_xor_b32 v5, v5, v%d" % V_H)
        a("v_lshlrev_b32 v5, 4, v5")
        a("v_lshl_add_u32 v5, v%d, 8, v5" % V_SIG)
        a("s_lshl_b32 s3, s%d, 15" % S_W)
        a("v_add_u32 v104, s3, v5")
        for k in range(1, 8): a("v_xor_b32 v%d, %d, v104" % (104 + k, k * 32))
        a("s_sub_u32 s%d, s%d, 64" % (S_T2, S_WID))
        for tau in range(3):
            a("s_add_u32 s%d, s%d, %d" % (S_T0, S_W, tau))
            a("s_cmp_ge_u32 s%d, 3" % S_T0)
            a("s_cselect_b32 s%d, 3, 0" % S_T1)
            a("s_sub_u32 s%d, s%d, s%d" % (S_T0, S_T0, S_T1))
            a("s_lshl_b32 s%d, s%d, 10" % (S_T1, S_T0))
            a("v_add_u32 v5, s%d, v%d" % (S_T1, self.G_L16))
            a("v_mov_b32 v6, 0x%x" % OOB)
            a("v_cmp_le_u32 vcc, s%d, v%d" % (S_T2, V_SIG))
            a("s_cmp_eq_u32 s%d, 2" % S_T0)
            a("s_cselect_b64 s[%d:%d], vcc, 0" % (S_EX, S_EX + 1))
            a("v_cndmask_b32 v%d, v5, v6, s[%d:%d]" % (self.G_VZ + tau, S_EX, S_EX + 1))
        a("s_lshl_b32 s3, s%d, 5" % S_J)
        a("s_lshl_b32 s%d, s%d, 3" % (S_T0, S_W))
        a("s_add_u32 s3, s3, s%d" % S_T0)
        a("v_add_u32 v38, s3, v%d" % V_LANE)
        a("v_lshlrev_b32 v38, 7, v38")
        a("v_add_u32 v38, 0x%x, v38" % (WS_FLAG + 256 * 128))
        a("s_lshl_b32 s%d, s%d, 7" % (S_B0, S_J))
        a("s_lshl_b32 s3, s%d, 5" % S_W)
        a("s_add_u32 s%d, s%d, s3" % (S_B0, S_B0))
        a("s_mov_b32 s%d, 0" % S_RHO)
        for cc in range(4):
            a("s_add_u32 s3, s%d, %d" % (S_RHO, cc))
            a("s_and_b32 s3, s3, 3")
            a("s_lshl_b32 s3, s3, 3")
            a("s_add_u32 s3, s3, s%d" % S_B0)
            a("s_mul_i32 s3, s3, 3072")
            a("s_add_u32 s%d, s3, 0x%x" % (67 + cc, WS_Z2N))
        a("v_accvgpr_read_b32 v%d, a9" % self.G_BS)
        a("v_accvgpr_read_b32 v%d, a10" % (self.G_BS + 1))
        self.poll_flags_n(38, 8, 3, 16)
        self.stamp(8)
        self.stamp(26)
        vq = VQ(a)
        def zload(n):
            a("s_add_u32 s%d, s%d, %d" % (S_T0, 67 + n // 8, (n % 8) * 3072))
            for tau in range(3):
                f = (n % 8) * 3 + tau
                a("buffer_load_dwordx4 %s, v%d, s[%d:%d], s%d offen %s" % (self.ring_reg(f), self.G_VZ + tau, SRD_WS, SRD_WS + 3, S_T0, "" if "gplain" in self.exp else "sc1"))
                vq.issue(("z", n))
        for n in range(8): zload(n)
        B = self.G_B
        SY_FREE = LDS_SY + 0
        SY_LAND = LDS_SY + 16
        a("s_lshl_b32 s3, s%d, 2" % S_W)
        a("s_add_u32 s3, s3, %d" % LDS_SY)
        a("v_mov_b32 v14, s3")
        def land_check(cnt):
            lab = a.newlabel("ld")
            a("s_mov_b32 s%d, 0" % S_SPIN)
            a.label(lab)
            a("ds_read_b32 v15, v14 offset:16")
            a("s_waitcnt lgkmcnt(0)")
            a("v_readfirstlane_b32 s%d, v15" % S_T1)
            a("s_add_u32 s%d, s%d, 1" % (S_SPIN, S_SPIN))
            a("s_cmp_gt_u32 s%d, 0x100000" % S_SPIN)
            a("s_cbranch_scc1 %s_x" % lab)
            a("s_cmp_lt_u32 s%d, %d" % (S_T1, cnt))
            a("s_cbranch_scc1 %s" % lab)
            a.label(lab + "_x")
        def bread(n, st):
            cc, k = divmod(n, 8)
            r = B + (n & 1) * 8 + st * 4
            return "ds_read_b128 v[%d:%d], v%d offset:%d" % (r, r + 3, 104 + k, (cc & 1) * 16384 + st * 8192)
        land_check(2)
        a(bread(0, 0)); a(bread(0, 1))
        for n in range(32):
            cc, k = divmod(n, 8)
            buf = n & 1
            vq.wait(("z", n))
            nxt = n + 1 < 32
            if nxt and (n + 1) % 8 == 0 and (n + 1) // 8 >= 2 and "gnoland" not in self.exp:
                a("s_waitcnt lgkmcnt(0)")
                land_check((n + 1) // 8 + 1)
            else:
                a("s_waitcnt lgkmcnt(0)")
            fill = []
            if nxt: fill += [bread(n + 1, 0), bread(n + 1, 1)]
            zl = []
            if n + 8 < 32:
                zl.append("s_add_u32 s%d, s%d, %d" % (S_T0, 67 + (n + 8) // 8, ((n + 8) % 8) * 3072))
            mi = 0
            for tau in range(3):
                for st in range(2):
                    D = (tau * 2 + st) * 16
                    Br = B + buf * 8 + st * 4
                    cc_ = "0" if n == 0 else "a[%d:%d]" % (D, D + 15)
                    a("v_mfma_f32_32x32x16_bf16 a[%d:%d], %s, v[%d:%d], %s" % (D, D + 15, self.ring_reg((n % 8) * 3 + tau), Br, Br + 3, cc_))
                    if mi == 0:
                        for f in fill: a(f)
                        for f in zl: a(f)
                    if st == 1 and n + 8 < 32 and "gnoz" not in self.exp:
                        f = (n % 8) * 3 + tau
                        a("buffer_load_dwordx4 %s, v%d, s[%d:%d], s%d offen %s" % (self.ring_reg(f), self.G_VZ + tau, SRD_WS, SRD_WS + 3, S_T0, "" if "gplain" in self.exp else "sc1"))
                        vq.issue(("z", n + 8))
                    mi += 1
            if k == 7 and cc < 2:
                a("v_mov_b32 v15, %d" % (cc + 1))
                a("ds_write_b32 v14, v15")
        self.stamp(27)
        self.stamp(10)
        self.g_reduce()

    def wsp_dma16(self, cc, sbase, slds):
        a = self.a
        for q in range(16):
            a("s_add_u32 s%d, s%d, %d" % (S_T0, 67 + cc, q * 4 * 4096))
            a("s_add_u32 m0, s%d, %d" % (slds, (cc & 1) * 16384 + q * 1024))
            a("buffer_load_dwordx4 v%d, s[%d:%d], s%d offen lds" % (16 + (q & 3), SRD_WSP, SRD_WSP + 3, S_T0))

    def wsp_voffsets(self, base):
        a = self.a
        L = V_LANE
        a("v_lshrrev_b32 v5, 4, v%d" % L)
        a("v_and_b32 v6, 15, v%d" % L)
        for qq in range(4):
            a("v_add_u32 v7, %d, v5" % (4 * qq))
            a("v_xor_b32 v7, v7, v6")
            a("v_lshlrev_b32 v7, 4, v7")
            a("v_lshl_add_u32 v%d, v5, 12, v7" % (base + qq))

    def stage_reg(self, unit, q):
        if unit < 2:
            r = unit * 64 + 4 * q
            return "a[%d:%d]" % (r, r + 3)
        r = 32 + 4 * q
        return "v[%d:%d]" % (r, r + 3)

    def stage_loads(self):
        out = []
        for unit in range(3):
            for q in range(16):
                out.append("s_add_u32 s%d, s%d, %d" % (S_T0, 67 + unit, q * 4 * 4096))
                out.append("buffer_load_dwordx4 %s, v%d, s[%d:%d], s%d offen" % (self.stage_reg(unit, q), 120 + (q & 3), SRD_WSP, SRD_WSP + 3, S_T0))
        return out

    def g_helper(self):
        a = self.a
        L = V_LANE
        self.wsp_voffsets(16)
        a("s_lshl_b32 s%d, s%d, 18" % (S_B0, S_MB))
        a("s_lshl_b32 s3, s%d, 10" % S_HW)
        a("s_add_u32 s%d, s%d, s3" % (S_B0, S_B0))
        a("s_mov_b32 s70, s%d" % S_B0)
        a("s_add_u32 s71, s%d, 256" % S_B0)
        a("s_lshl_b32 s%d, s%d, 15" % (S_T3, S_HW))
        for cc in range(2):
            for q in range(16):
                a("s_add_u32 s%d, s%d, %d" % (S_T0, 70 + cc, q * 4 * 4096))
                a("s_add_u32 m0, s%d, %d" % (S_T3, cc * 16384 + q * 1024))
                a("buffer_load_dwordx4 v%d, s[%d:%d], s%d offen lds" % (16 + (q & 3), SRD_WSP, SRD_WSP + 3, S_T0))
        a("s_lshl_b32 s3, s%d, 2" % S_HW)
        a("s_add_u32 s3, s3, %d" % LDS_SY)
        a("v_mov_b32 v12, s3")
        def wait_free(off, cnt):
            lab = a.newlabel("fr")
            a("s_mov_b32 s%d, 0" % S_SPIN)
            a.label(lab)
            a("ds_read_b32 v5, v12 offset:%d" % off)
            a("s_waitcnt lgkmcnt(0)")
            a("v_readfirstlane_b32 s%d, v5" % S_T0)
            a("s_add_u32 s%d, s%d, 1" % (S_SPIN, S_SPIN))
            a("s_cmp_gt_u32 s%d, 0x100000" % S_SPIN)
            a("s_cbranch_scc1 %s_x" % lab)
            a("s_cmp_lt_u32 s%d, %d" % (S_T0, cnt))
            a("s_cbranch_scc0 %s_x" % lab)
            a("s_sleep 1")
            a("s_branch %s" % lab)
            a.label(lab + "_x")
        a("s_cmp_ge_u32 s%d, 2" % S_HW)
        a("s_cbranch_scc1 L_gh_fft")
        a("s_waitcnt vmcnt(0)")
        a("v_mov_b32 v6, 2")
        a("ds_write_b32 v12, v6 offset:16")
        a("v_lshlrev_b32 v13, 4, v%d" % L)
        a("s_lshl_b32 s3, s%d, 15" % S_HW)
        a("v_add_u32 v13, s3, v13")
        a("v_add_u32 v14, 65536, v13")
        def put(unit, vaddr, slot, landoff, cnt):
            for q in range(16 if "noput" not in self.exp else 0):
                a("ds_write_b128 v%d, %s offset:%d" % (vaddr, self.stage_reg(unit, q), slot * 16384 + q * 1024))
            a("v_mov_b32 v6, %d" % cnt)
            a("s_waitcnt lgkmcnt(0)")
            a("ds_write_b32 v12, v6 offset:%d" % landoff)
        wait_free(0, 1); put(0, 13, 0, 16, 3)
        for q in range(16):
            a("s_add_u32 s%d, s69, %d" % (S_T0, 256 + q * 4 * 4096))
            a("buffer_load_dwordx4 a[%d:%d], v%d, s[%d:%d], s%d offen" % (4 * q, 4 * q + 3, 120 + (q & 3), SRD_WSP, SRD_WSP + 3, S_T0))
        wait_free(8, 1); put(2, 14, 0, 24, 3)
        wait_free(0, 2); put(1, 13, 1, 16, 4)
        wait_free(8, 2)
        a("s_waitcnt vmcnt(0)")
        put(0, 14, 1, 24, 4)
        a("s_branch L_gh_done")
        a.label("L_gh_fft")
        a("s_waitcnt vmcnt(0)")
        a("v_mov_b32 v6, 2")
        a("ds_write_b32 v12, v6 offset:16")
        if "nofft" not in self.exp:
            a("s_setprio 3")
            self.fft()
            a("s_setprio 0")
        a("s_waitcnt vmcnt(0)")
        a("s_sub_u32 s%d, s%d, 2" % (S_T1, S_HW))
        self.flag_store(3, 0, S_T1)
        self.stamp(19)
        a.label("L_gh_done")
        self.stamp(9)
        a("v_lshrrev_b32 v5, 3, v%d" % L)
        a("v_and_b32 v6, 7, v%d" % L)
        a("v_bfe_u32 v7, v%d, 4, 1" % L)
        a("v_lshlrev_b32 v7, 2, v7")
        a("v_xor_b32 v6, v6, v7")
        a("v_lshlrev_b32 v6, 4, v6")
        a("v_lshl_add_u32 v9, v5, 10, v6")
        a("s_lshl_b32 s3, s%d, 7" % S_J)
        a("v_add_u32 v9, s3, v9")
        def wo(g):
            a("s_mov_b32 m0, %d" % (LDS_WO + g * 1024))
            a("s_mov_b32 s%d, %d" % (S_T0, g * 8192))
            a("buffer_load_dwordx4 v9, s[%d:%d], s%d offen lds" % (SRD_WOUT, SRD_WOUT + 3, S_T0))
        early = {2: list(range(56, 64)) + list(range(75, 81)), 3: list(range(64, 72)) + list(range(81, 88))}
        done = set(early[2]) | set(early[3])
        rest = [g for g in range(88) if g not in done]
        assert LDS_SY + 64 <= LDS_WO + 75 * 1024 and LDS_AT >= LDS_WO + 75 * 1024
        for hw in (2, 3):
            lab = a.newlabel("wo")
            a("s_cmp_lg_u32 s%d, %d" % (S_HW, hw))
            a("s_cbranch_scc1 %s" % lab)
            for g in early[hw]: wo(g)
            a.label(lab)
        a("s_barrier")
        n = len(rest)
        per = (n + 3) // 4
        for hw in range(4):
            mine = rest[hw * per:(hw + 1) * per]
            lab = a.newlabel("wo")
            a("s_cmp_lg_u32 s%d, %d" % (S_HW, hw))
            a("s_cbranch_scc1 %s" % lab)
            for g in mine: wo(g)
            a.label(lab)
        a("s_barrier")
        self.final_pre()
        a("s_waitcnt vmcnt(0)")
        self.stamp(23)
        a("s_barrier")
        self.y_to_lds()
        a("s_barrier")
        self.stamp(6)
        self.final_h()

    def fft(self):
        a = self.a
        a("v_accvgpr_read_b32 v10, a60")
        a("v_accvgpr_read_b32 v11, a61")
        a("s_lshl_b32 s3, s%d, 5" % S_J)
        a("v_add_u32 v12, s3, v%d" % V_LANE)
        a("v_lshlrev_b32 v12, 7, v12")
        a("v_add_u32 v12, 0x%x, v12" % (WS_FLAG + 256 * 128 + 12))
        self.poll_flags_n(12, 32, 1, 16)
        a("v_lshlrev_b32 v13, 4, v%d" % V_LANE)
        a("s_lshl_b32 s3, s%d, 13" % S_L)
        a("s_add_u32 s3, s3, 0x%x" % WS_AB)
        X = 32
        for i in range(8):
            a("buffer_load_dwordx4 v[%d:%d], v13, s[%d:%d], s3 offen sc1" % (X + 4 * i, X + 4 * i + 3, SRD_WS, SRD_WS + 3))
            if i < 7: a("s_add_u32 s3, s3, 1024")
        a("s_sub_u32 s%d, s%d, 2" % (S_T1, S_HW))
        a("s_lshl_b32 s%d, s%d, 13" % (S_T2, S_T1))
        a("s_add_u32 s%d, s%d, %d" % (S_T2, S_T2, LDS_FX))
        a("v_add_u32 v14, s%d, v13" % S_T2)
        a("v_bfe_u32 v7, v%d, 2, 2" % V_LANE)
        a("v_lshl_add_u32 v7, v%d, 3, v7" % V_H)
        a("v_lshlrev_b32 v7, 7, v7")
        a("v_bfe_u32 v8, v%d, 4, 1" % V_LANE)
        a("v_lshlrev_b32 v8, 5, v8")
        a("v_and_b32 v9, 1, v%d" % V_LANE)
        a("v_lshl_add_u32 v8, v9, 4, v8")
        a("v_bfe_u32 v9, v%d, 1, 1" % V_LANE)
        a("v_lshl_add_u32 v8, v9, 3, v8")
        a("v_add_u32 v7, v7, v8")
        a("v_add_u32 v15, s%d, v7" % S_T2)
        a("s_waitcnt vmcnt(0)")
        for i in range(8):
            a("ds_write_b128 v14, v[%d:%d] offset:%d" % (X + 4 * i, X + 4 * i + 3, i * 1024))
        URE, UIM, A1, TC, TS, A2 = 32, 48, 16, 64, 80, 104
        D2 = 64
        def mm(D, A, B, first, dfile="v", afile="v", bfile="a"):
            a("v_mfma_f32_32x32x16_bf16 %s[%d:%d], %s[%d:%d], %s[%d:%d], %s" % (dfile, D, D + 15, afile, A, A + 3, bfile, B, B + 3, "0" if first else "%s[%d:%d]" % (dfile, D, D + 15)))
        for kt in range(2):
            a("v_mul_f32 v12, 0x%x, v10" % (f2u(1.0 / 2048)))
            a("v_mul_f32 v13, v12, v11")
            if kt == 0: a("s_waitcnt lgkmcnt(0)")
            for ks in range(4):
                for q in range(2):
                    r = A1 + 4 * ks + 2 * q
                    a("ds_read_b64_tr_b16 v[%d:%d], v15 offset:%d" % (r, r + 1, (ks >> 1) * 4096 + (ks & 1) * 2048 + q * 512 + kt * 64))
            for half in range(2):
                self.angles([32 * kt + 16 * half + i for i in range(8)], 12, 13, 120)
                for i in range(8):
                    a("v_cos_f32 v%d, v%d" % (TC + 8 * half + i, 120 + i))
                    a("v_sin_f32 v%d, v%d" % (TS + 8 * half + i, 120 + i))
            a("s_waitcnt lgkmcnt(0)")
            FRE, FIM, NFIM = 0, 8, 16
            mm(URE, A1, FRE, True); mm(UIM, A1, FIM, True)
            mm(URE, A1 + 4, FRE + 4, False); mm(UIM, A1 + 4, FIM + 4, False)
            mm(URE, A1 + 8, NFIM, False); mm(UIM, A1 + 8, FRE, False)
            mm(URE, A1 + 12, NFIM + 4, False); mm(UIM, A1 + 12, FRE + 4, False)
            for p in range(8):
                t0 = 96 + (p % 2) * 4
                for e in range(2):
                    re, im, c, s_ = URE + 2 * p + e, UIM + 2 * p + e, TC + 2 * p + e, TS + 2 * p + e
                    a("v_mul_f32 v%d, v%d, v%d" % (t0 + e, im, s_))
                    a("v_mul_f32 v%d, v%d, v%d" % (t0 + 2 + e, re, s_))
                    a("v_fmac_f32 v%d, v%d, v%d" % (t0 + e, re, c))
                    a("v_fma_f32 v%d, v%d, v%d, -v%d" % (t0 + 2 + e, im, c, t0 + 2 + e))
                a("v_cvt_pk_bf16_f32 v%d, v%d, v%d" % (A2 + p, t0, t0 + 1))
                a("v_cvt_pk_bf16_f32 v%d, v%d, v%d" % (A2 + 8 + p, t0 + 2, t0 + 3))
            G = 24 + 16 * kt
            mm(D2, A2, G, kt == 0, dfile="a"); mm(D2, A2 + 4, G + 4, False, dfile="a")
            mm(D2, A2 + 8, G + 8, False, dfile="a"); mm(D2, A2 + 12, G + 12, False, dfile="a")
        a("v_lshlrev_b32 v6, 7, v%d" % V_JL)
        a("v_lshl_add_u32 v6, v%d, 6, v6" % V_H)
        a("v_add_u32 v6, s%d, v6" % S_T2)
        for q in range(4):
            a("ds_write_b128 v6, a[%d:%d] offset:%d" % (D2 + 4 * q, D2 + 4 * q + 3, q * 16))
        a("s_waitcnt lgkmcnt(0)")
        for q in range(4):
            a("ds_read_b128 v[%d:%d], v14 offset:%d" % (32 + 4 * q, 35 + 4 * q, q * 1024))
        a("s_cmp_eq_u32 s%d, 0" % S_L)
        a("s_cselect_b32 s%d, 256, s%d" % (S_T0, S_L))
        a("s_lshl_b32 s%d, s%d, 13" % (S_T0, S_T0))
        a("s_lshl_b32 s3, s%d, 12" % S_T1)
        a("s_add_u32 s3, s3, s%d" % S_T0)
        a("s_add_u32 s3, s3, 0x%x" % WS_YT)
        a("v_lshlrev_b32 v6, 4, v%d" % V_LANE)
        a("v_lshlrev_b32 v7, 4, v%d" % V_LANE)
        a("v_sub_u32 v7, %d, v7" % (4096 - 12))
        a("v_add_u32 v7, s%d, v7" % S_T2)
        for i in range(4):
            for e in range(4):
                off = 12 - 4 * e - 1024 * i
                if off >= 0: a("ds_read_b32 v%d, v7 offset:%d" % (48 + 4 * i + e, off))
                else: a("ds_read_b32 v%d, v%d offset:%d" % (48 + 4 * i + e, 8, off + 3072))
            if i == 0: a("v_subrev_u32 v8, 3072, v7")
        a("s_waitcnt lgkmcnt(15)")
        a("s_waitcnt lgkmcnt(0)")
        for q in range(4):
            a("buffer_store_dwordx4 v[%d:%d], v6, s[%d:%d], s3 offen offset:%d sc1" % (32 + 4 * q, 35 + 4 * q, SRD_WS, SRD_WS + 3, q * 1024))
        a("s_cmp_eq_u32 s%d, 0" % S_L)
        a("s_cbranch_scc1 L_fft_nomir")
        a("s_sub_u32 s%d, 512, s%d" % (S_T0, S_L))
        a("s_lshl_b32 s%d, s%d, 13" % (S_T0, S_T0))
        a("s_xor_b32 s3, s%d, 1" % S_T1)
        a("s_lshl_b32 s3, s3, 12")
        a("s_add_u32 s3, s3, s%d" % S_T0)
        a("s_add_u32 s3, s3, 0x%x" % WS_YT)
        a("s_mov_b64 exec, 0xfffffffffffffffe" if False else "s_mov_b64 exec, -2")
        a("buffer_store_dwordx4 v[48:51], v6, s[%d:%d], s3 offen sc1" % (SRD_WS, SRD_WS + 3))
        a("s_mov_b64 exec, 1")
        a("buffer_store_dword v49, v6, s[%d:%d], s3 offen offset:4 sc1" % (SRD_WS, SRD_WS + 3))
        a("buffer_store_dwordx2 v[50:51], v6, s[%d:%d], s3 offen offset:8 sc1" % (SRD_WS, SRD_WS + 3))
        a("s_mov_b64 exec, -1")
        for q in range(1, 4):
            a("buffer_store_dwordx4 v[%d:%d], v6, s[%d:%d], s3 offen offset:%d sc1" % (48 + 4 * q, 51 + 4 * q, SRD_WS, SRD_WS + 3, q * 1024))
        a("s_lshl_b32 s3, s%d, 12" % S_T1)
        a("s_add_u32 s3, s3, s%d" % S_T0)
        a("s_add_u32 s3, s3, 0x%x" % WS_YT)
        a("s_mov_b64 exec, 1")
        a("buffer_store_dword v32, v6, s[%d:%d], s3 offen sc1" % (SRD_WS, SRD_WS + 3))
        a("s_mov_b64 exec, -1")
        a.label("L_fft_nomir")

    def g_reduce(self):
        a = self.a
        L16 = self.G_L16
        a("s_barrier")
        self.stamp(16)
        for tau in (1, 2, 0):
            if tau == 0:
                a("s_cmp_lg_u32 s%d, 3" % S_W)
                a("s_cbranch_scc1 L_exp_done")
            a("s_add_u32 s%d, s%d, %d" % (S_T0, S_W, tau))
            a("s_cmp_ge_u32 s%d, 3" % S_T0)
            a("s_cselect_b32 s%d, 3, 0" % S_T1)
            a("s_sub_u32 s%d, s%d, s%d" % (S_T0, S_T0, S_T1))
            a("s_sub_u32 s%d, s%d, s%d" % (S_T1, S_W, S_T0))
            a("s_sub_u32 s%d, s%d, 1" % (S_T1, S_T1))
            a("s_and_b32 s%d, s%d, 3" % (S_T1, S_T1))
            a("s_mul_i32 s%d, s%d, 3" % (S_T0, S_T0))
            a("s_add_u32 s%d, s%d, s%d" % (S_T0, S_T0, S_T1))
            a("s_lshl_b32 s%d, s%d, 13" % (S_T0, S_T0))
            a("v_add_u32 v5, s%d, v%d" % (S_T0, L16))
            for st in range(2):
                for q in range(4):
                    r = (tau * 2 + st) * 16 + 4 * q
                    a("ds_write_b128 v5, a[%d:%d] offset:%d" % (r, r + 3, st * 4096 + q * 1024))
        a.label("L_exp_done")
        a("s_waitcnt lgkmcnt(0)")
        self.stamp(17)
        a("s_barrier")
        self.stamp(11)
        a("s_cmp_eq_u32 s%d, 3" % S_W)
        a("s_cbranch_scc1 L_h_done")
        G = 40
        I = 72
        a("s_mul_i32 s%d, s%d, %d" % (S_T0, S_W, 3 * 8192))
        a("v_add_u32 v5, s%d, v%d" % (S_T0, L16))
        for st in range(2):
            for q in range(4):
                r = G + st * 16 + 4 * q
                a("ds_read_b128 v[%d:%d], v5 offset:%d" % (r, r + 3, 0 * 8192 + st * 4096 + q * 1024))
        for st in range(2):
            for q in range(4):
                r = I + st * 16 + 4 * q
                a("ds_read_b128 v[%d:%d], v5 offset:%d" % (r, r + 3, 1 * 8192 + st * 4096 + q * 1024))
        a("s_waitcnt lgkmcnt(0)")
        for p in range(16): a("v_pk_add_f32 v[%d:%d], v[%d:%d], v[%d:%d]" % (G + 2 * p, G + 2 * p + 1, G + 2 * p, G + 2 * p + 1, I + 2 * p, I + 2 * p + 1))
        for st in range(2):
            for q in range(4):
                r = I + st * 16 + 4 * q
                a("ds_read_b128 v[%d:%d], v5 offset:%d" % (r, r + 3, 2 * 8192 + st * 4096 + q * 1024))
        for i in range(0, 32, 8):
            for k in range(8): a("v_accvgpr_read_b32 v%d, a%d" % (16 + k, i + k))
            for p in range(4): a("v_pk_add_f32 v[%d:%d], v[%d:%d], v[%d:%d]" % (G + i + 2 * p, G + i + 2 * p + 1, G + i + 2 * p, G + i + 2 * p + 1, 16 + 2 * p, 16 + 2 * p + 1))
        a("s_waitcnt lgkmcnt(0)")
        for p in range(16): a("v_pk_add_f32 v[%d:%d], v[%d:%d], v[%d:%d]" % (G + 2 * p, G + 2 * p + 1, G + 2 * p, G + 2 * p + 1, I + 2 * p, I + 2 * p + 1))
        self.stamp(18)
        for st in range(2): a("v_lshlrev_b32 v%d, 16, v%d" % (self.G_BS + st, self.G_BS + st))
        for st in range(2):
            for r in range(8):
                src = self.C_Z1P + 8 * st + r
                g = G + 16 * st + 2 * r
                t = 16 + 2 * (r % 4)
                a("v_lshlrev_b32 v%d, 16, v%d" % (t, src))
                a("v_and_b32 v%d, 0xffff0000, v%d" % (t + 1, src))
                sel = "op_sel:[0,%d] op_sel_hi:[1,%d]" % (st, st)
                a("v_pk_add_f32 v[%d:%d], v[%d:%d], v[%d:%d] %s" % (g, g + 1, g, g + 1, self.G_BS, self.G_BS + 1, sel))
                a("v_pk_mul_f32 v[%d:%d], v[%d:%d], v[%d:%d]" % (g, g + 1, g, g + 1, t, t + 1))
                a("v_cvt_pk_bf16_f32 v%d, v%d, v%d" % (I + 8 * st + r, g, g + 1))
        a("s_mul_i32 s%d, s%d, 96" % (S_T0, S_MB))
        a("s_mul_i32 s%d, s%d, 6" % (S_T1, S_J))
        a("s_add_u32 s%d, s%d, s%d" % (S_T0, S_T0, S_T1))
        a("s_lshl_b32 s%d, s%d, 1" % (S_T1, S_W))
        a("s_add_u32 s%d, s%d, s%d" % (S_T0, S_T0, S_T1))
        a("s_lshl_b32 s%d, s%d, 10" % (S_T0, S_T0))
        a("s_add_u32 s%d, s%d, 0x%x" % (S_T0, S_T0, WS_H))
        for st in range(2):
            for Q in range(2):
                r = I + 8 * st + 4 * Q
                a("s_add_u32 s%d, s%d, %d" % (S_T1, S_T0, (st * 48 + Q) * 1024))
                if "nohstore" not in self.exp: a("buffer_store_dwordx4 v[%d:%d], v%d, s[%d:%d], s%d offen sc1" % (r, r + 3, L16, SRD_WS, SRD_WS + 3, S_T1))
                if "hdouble" in self.exp: a("buffer_store_dwordx4 v[%d:%d], v%d, s[%d:%d], s%d offen" % (r, r + 3, L16, SRD_WS, SRD_WS + 3, S_T1))
        self.stamp(20)
        a("s_waitcnt vmcnt(0)")
        self.stamp(21)
        self.flag_store(2, 0, S_W)
        a.label("L_h_done")
        self.o_pre()
        self.stamp(12)

    def o_pre(self):
        a = self.a
        a("s_lshr_b32 s%d, s%d, 1" % (S_T0, S_W))
        a("s_lshl_b32 s3, s%d, 2" % S_T0)
        a("v_add_u32 v40, s3, v%d" % V_LANE)
        a("v_lshlrev_b32 v40, 5, v40")
        a("v_add_u32 v40, s%d, v40" % S_MB)
        a("v_lshlrev_b32 v40, 7, v40")
        a("v_add_u32 v40, 0x%x, v40" % (WS_FLAG + 2 * 256 * 128))
        a("v_bfe_u32 v5, v%d, 2, 2" % V_LANE)
        a("v_lshl_add_u32 v5, v%d, 3, v5" % V_H)
        a("v_lshlrev_b32 v5, 7, v5")
        a("v_bfe_u32 v6, v%d, 4, 1" % V_LANE)
        a("v_lshlrev_b32 v6, 1, v6")
        a("v_and_b32 v7, 1, v%d" % V_LANE)
        a("v_or_b32 v6, v6, v7")
        a("v_bfe_u32 v7, v%d, 3, 1" % V_LANE)
        a("v_lshlrev_b32 v7, 2, v7")
        a("v_xor_b32 v6, v6, v7")
        a("s_lshl_b32 s3, s%d, 2" % S_T0)
        a("v_xor_b32 v6, s3, v6")
        a("v_bfe_u32 v7, v%d, 1, 1" % V_LANE)
        a("v_lshlrev_b32 v7, 3, v7")
        a("v_add_u32 v5, v5, v7")
        a("s_mul_i32 s3, s%d, %d" % (S_T0, 352 * 128))
        a("s_add_u32 s3, s3, %d" % LDS_WO)
        a("v_add_u32 v5, s3, v5")
        WA = 52
        a("v_lshl_add_u32 v%d, v6, 4, v5" % WA)
        a("v_xor_b32 v6, 4, v6")
        a("v_lshl_add_u32 v%d, v6, 4, v5" % (WA + 1))
        a("s_cmp_eq_u32 s%d, 0" % S_T0)
        a("s_cselect_b32 s3, 8, 0")
        a("s_add_u32 s3, s3, 256")
        a("s_lshl_b32 s3, s3, 7")
        a("v_add_u32 v%d, s3, v%d" % (WA + 2, WA))
        a("v_add_u32 v%d, s3, v%d" % (WA + 3, WA + 1))
        a("s_and_b32 s%d, s%d, 1" % (S_T1, S_W))
        a("s_lshl_b32 s3, s%d, 1" % S_MB)
        a("s_add_u32 s3, s3, s%d" % S_T1)
        a("s_mul_i32 s3, s3, 48")
        a("s_mul_i32 s%d, s%d, 24" % (S_B0, S_T0))
        a("s_add_u32 s%d, s%d, s3" % (S_B0, S_B0))
        a("s_lshl_b32 s%d, s%d, 10" % (S_B0, S_B0))
        a("s_add_u32 s%d, s%d, 0x%x" % (S_B0, S_B0, WS_H))

    def phase_o(self):
        a = self.a
        L16 = self.G_L16
        WA = 52
        self.poll_flags_n(40, 4, 3, 60)
        self.stamp(13)
        vq = VQ(a)
        NUP = 8
        def hload(n):
            r = 32 + 4 * n
            a("s_add_u32 s%d, s%d, %d" % (S_T0, S_B0, n * 1024))
            a("buffer_load_dwordx4 a[%d:%d], v%d, s[%d:%d], s%d offen sc1" % (r, r + 3, L16, SRD_WS, SRD_WS + 3, S_T0)); vq.issue(("h", n))
        for n in range(NUP): hload(n)
        a("s_barrier")
        SETS = [16, 24, 60, 68]
        def areads(n):
            jj, rem = divmod(n, 6); ft, Q = divmod(rem, 2)
            out = []
            for tp in range(2):
                base = WA + tp if jj < 3 else WA + 2 + tp
                off = ((88 * jj if jj < 3 else 0) + 32 * ft + 16 * Q) * 128
                r = SETS[n % 4] + tp * 4
                out.append("ds_read_b64_tr_b16 v[%d:%d], v%d offset:%d" % (r, r + 1, base, off))
                out.append("ds_read_b64_tr_b16 v[%d:%d], v%d offset:%d" % (r + 2, r + 3, base, off + 512))
            return out
        for n in range(3):
            for r in areads(n): a(r)
        for n in range(24):
            vq.wait(("h", n))
            later = min(2, 23 - n)
            a("s_waitcnt lgkmcnt(%d)" % (4 * later))
            rd = areads(n + 3) if n + 3 < 24 else []
            for tp in range(2):
                D = tp * 16
                Ar = SETS[n % 4] + tp * 4
                Br = 32 + 4 * n
                cc = "0" if n == 0 else "a[%d:%d]" % (D, D + 15)
                a("v_mfma_f32_32x32x16_bf16 a[%d:%d], v[%d:%d], a[%d:%d], %s" % (D, D + 15, Ar, Ar + 3, Br, Br + 3, cc))
                for r in rd[2 * tp:2 * tp + 2]: a(r)
                if tp == 0 and n + NUP < 24: hload(n + NUP)
        self.stamp(14)
        a("s_lshl_b32 s3, s%d, 13" % S_W)
        a("v_add_u32 v58, s3, v%d" % L16)
        for tp in range(2):
            for q in range(4):
                a("ds_write_b128 v58, a[%d:%d] offset:%d" % (16 * tp + 4 * q, 16 * tp + 4 * q + 3, tp * 4096 + q * 1024))
        a("s_waitcnt lgkmcnt(0)")
        a("s_barrier")

    def final_pre(self):
        a = self.a
        a("s_lshr_b32 s%d, s%d, 1" % (S_T0, S_HW))
        a("s_lshl_b32 s3, s%d, 6" % S_J)
        a("s_lshl_b32 s%d, s%d, 5" % (S_T2, S_T0))
        a("s_add_u32 s%d, s3, s%d" % (S_T2, S_T2))
        a("s_and_b32 s%d, s%d, 1" % (S_T1, S_HW))
        a("s_lshl_b32 s3, s%d, 6" % S_MB)
        a("s_lshl_b32 s%d, s%d, 5" % (S_T3, S_T1))
        a("s_add_u32 s3, s3, s%d" % S_T3)
        a("v_add_u32 v41, s3, v%d" % V_SIG)
        a("v_lshlrev_b32 v42, 10, v41")
        a("v_lshl_add_u32 v42, v%d, 4, v42" % V_H)
        a("s_lshl_b32 s3, s%d, 1" % S_T2)
        a("v_add_u32 v42, s3, v42")
        XR = 44
        a("buffer_load_dwordx4 v[%d:%d], v42, s[%d:%d], 0 offen" % (XR, XR + 3, SRD_X, SRD_X + 3))
        a("buffer_load_dwordx4 v[%d:%d], v42, s[%d:%d], 0 offen offset:32" % (XR + 4, XR + 7, SRD_X, SRD_X + 3))
        a("s_lshl_b32 s3, s%d, 6" % S_J)
        a("s_lshl_b32 s%d, s%d, 4" % (S_T0, S_HW))
        a("s_add_u32 s%d, s3, s%d" % (S_T0, S_T0))
        a("v_add_u32 v5, s%d, v%d" % (S_T0, V_LANE))
        a("v_sub_u32 v6, 512, v5")
        a("v_cmp_lt_u32 vcc, 256, v5")
        a("v_cndmask_b32 v6, v5, v6, vcc")
        a("v_and_b32 v6, 255, v6")
        a("v_lshlrev_b32 v43, 7, v6")
        a("v_add_u32 v43, 0x%x, v43" % (WS_FLAG + 3 * 256 * 128))
        a("v_lshrrev_b32 v5, 4, v%d" % V_LANE)
        a("v_add_u32 v5, s%d, v5" % S_T0)
        a("v_and_b32 v6, 15, v%d" % V_LANE)
        a("v_lshlrev_b32 v6, 4, v6")
        a("v_lshl_add_u32 v56, v5, 13, v6")
        a("v_mov_b32 v7, 0x%x" % OOB)
        a("v_cmp_eq_u32 vcc, 0, v5")
        a("v_cndmask_b32 v57, v56, v7, vcc")
        a("s_lshl_b32 s%d, s%d, 8" % (S_T3, S_MB))
        a("s_add_u32 s%d, s%d, 0x%x" % (S_T3, S_T3, WS_YT))
        self.poll_flags_n(43, 16, 2, 60)
        for i in range(4):
            a("buffer_load_dwordx4 v[%d:%d], v%d, s[%d:%d], s%d offen sc1" % (64 + 4 * i, 67 + 4 * i, 57 if i == 0 else 56, SRD_WS, SRD_WS + 3, S_T3))
            if i < 3: a("s_add_u32 s%d, s%d, %d" % (S_T3, S_T3, 4 * 8192))

    def y_to_lds(self):
        a = self.a
        a("v_lshrrev_b32 v5, 4, v%d" % V_LANE)
        a("v_and_b32 v6, 15, v%d" % V_LANE)
        a("v_lshlrev_b32 v6, 4, v6")
        a("v_lshl_add_u32 v5, v5, 8, v6")
        a("s_lshl_b32 s3, s%d, 12" % S_HW)
        a("s_add_u32 s3, s3, %d" % LDS_YS)
        a("v_add_u32 v5, s3, v5")
        a("s_waitcnt vmcnt(0)")
        for i in range(4):
            a("ds_write_b128 v5, v[%d:%d] offset:%d" % (64 + 4 * i, 67 + 4 * i, i * 1024))
        a("s_waitcnt lgkmcnt(0)")

    def final_h(self):
        a = self.a
        XR, Y, O = 44, 64, 80
        a("v_lshlrev_b32 v10, 4, v%d" % V_LANE)
        a("s_lshl_b32 s3, s%d, 13" % S_HW)
        a("v_add_u32 v11, s3, v10")
        a("s_xor_b32 s3, s%d, 2" % S_HW)
        a("s_lshl_b32 s3, s3, 13")
        a("s_add_u32 s3, s3, 4096")
        a("v_add_u32 v12, s3, v10")
        for q in range(4):
            a("ds_read_b128 v[%d:%d], v11 offset:%d" % (O + 4 * q, O + 4 * q + 3, q * 1024))
        for q in range(4):
            a("ds_read_b128 v[%d:%d], v12 offset:%d" % (96 + 4 * q, 96 + 4 * q + 3, q * 1024))
        a("s_lshr_b32 s%d, s%d, 1" % (S_T0, S_HW))
        a("s_lshl_b32 s3, s%d, 13" % S_T0)
        a("s_and_b32 s%d, s%d, 1" % (S_T1, S_HW))
        a("s_lshl_b32 s%d, s%d, 7" % (S_T1, S_T1))
        a("s_add_u32 s3, s3, s%d" % S_T1)
        a("s_add_u32 s3, s3, %d" % LDS_YS)
        a("v_lshlrev_b32 v5, 11, v%d" % V_H)
        a("v_lshl_add_u32 v5, v%d, 2, v5" % V_SIG)
        a("v_add_u32 v5, s3, v5")
        for rho in range(16):
            k = 16 * (rho >> 3) + (rho & 7)
            a("ds_read_b32 v%d, v5 offset:%d" % (Y + rho, k * 256))
        nl2e = f2u(-math.log2(math.e))
        a("s_mov_b32 s%d, 0x%x" % (S_K2, nl2e))
        a("s_mov_b32 s%d, 0x%x" % (S_K2 + 1, nl2e))
        a("s_and_b32 s%d, s%d, 1" % (S_T1, S_HW))
        a("s_lshl_b32 s3, s%d, 5" % S_T1)
        a("v_add_u32 v13, s3, v%d" % V_SIG)
        a("v_and_b32 v14, 7, v13")
        a("s_lshr_b32 s%d, s%d, 1" % (S_T0, S_HW))
        a("s_lshl_b32 s3, s%d, 2" % S_T0)
        a("v_add_u32 v15, s3, v%d" % V_H)
        a("v_xor_b32 v14, v14, v15")
        a("v_lshlrev_b32 v14, 4, v14")
        a("v_lshl_add_u32 v14, v13, 7, v14")
        a("v_add_u32 v14, 32768, v14")
        a("s_waitcnt lgkmcnt(0)")
        for p in range(8):
            a("v_pk_add_f32 v[%d:%d], v[%d:%d], v[%d:%d]" % (O + 2 * p, O + 2 * p + 1, O + 2 * p, O + 2 * p + 1, 96 + 2 * p, 96 + 2 * p + 1))
        for p in range(8):
            o = O + 2 * p; t = 96 + 2 * p
            a("v_pk_mul_f32 v[%d:%d], v[%d:%d], s[%d:%d]" % (t, t + 1, o, o + 1, S_K2, S_K2 + 1))
            a("v_exp_f32 v%d, v%d" % (t, t))
            a("v_exp_f32 v%d, v%d" % (t + 1, t + 1))
            a("v_pk_add_f32 v[%d:%d], v[%d:%d], 1.0 op_sel_hi:[1,0]" % (t, t + 1, t, t + 1))
            a("v_rcp_f32 v%d, v%d" % (t, t))
            a("v_rcp_f32 v%d, v%d" % (t + 1, t + 1))
            a("v_pk_mul_f32 v[%d:%d], v[%d:%d], v[%d:%d]" % (o, o + 1, o, o + 1, t, t + 1))
        for p in range(8):
            o = O + 2 * p; t = 96 + 2 * p; y = Y + 2 * p; xr = XR + p
            a("v_lshlrev_b32 v%d, 16, v%d" % (t, xr))
            a("v_and_b32 v%d, 0xffff0000, v%d" % (t + 1, xr))
            a("v_pk_fma_f32 v[%d:%d], v[%d:%d], v[%d:%d], v[%d:%d]" % (t, t + 1, y, y + 1, o, o + 1, t, t + 1))
            a("v_cvt_pk_bf16_f32 v%d, v%d, v%d" % (112 + p, t, t + 1))
        a("ds_write_b128 v14, v[112:115]")
        a("v_xor_b32 v14, 32, v14")
        a("ds_write_b128 v14, v[116:119]")
        a("s_waitcnt lgkmcnt(0)")
        a("s_barrier")
        a("v_lshrrev_b32 v5, 3, v%d" % V_LANE)
        a("v_and_b32 v6, 7, v%d" % V_LANE)
        a("v_xor_b32 v7, v5, v6")
        a("v_lshlrev_b32 v7, 4, v7")
        a("v_lshl_add_u32 v7, v5, 7, v7")
        a("s_lshl_b32 s3, s%d, 11" % S_HW)
        a("s_add_u32 s3, s3, 32768")
        a("v_add_u32 v7, s3, v7")
        a("ds_read_b128 v[16:19], v7")
        a("ds_read_b128 v[20:23], v7 offset:1024")
        a("v_lshlrev_b32 v8, 10, v5")
        a("v_lshl_add_u32 v8, v6, 4, v8")
        a("s_lshl_b32 s%d, s%d, 6" % (S_T0, S_MB))
        a("s_lshl_b32 s3, s%d, 4" % S_HW)
        a("s_add_u32 s%d, s%d, s3" % (S_T0, S_T0))
        a("s_lshl_b32 s%d, s%d, 10" % (S_T0, S_T0))
        a("s_lshl_b32 s3, s%d, 7" % S_J)
        a("s_add_u32 s%d, s%d, s3" % (S_T0, S_T0))
        a("s_waitcnt lgkmcnt(0)")
        fl = "" if "outplain" in self.exp else "sc1"
        a("buffer_store_dwordx4 v[16:19], v8, s[%d:%d], s%d offen %s" % (SRD_OUT, SRD_OUT + 3, S_T0, fl))
        a("s_add_u32 s%d, s%d, 8192" % (S_T0, S_T0))
        a("buffer_store_dwordx4 v[20:23], v8, s[%d:%d], s%d offen %s" % (SRD_OUT, SRD_OUT + 3, S_T0, fl))
        self.stamp(15)
        self.stamp(25)

    def build(self):
        a = self.a
        self.prologue()
        self.xstage()
        a("s_cmp_ge_u32 s%d, 4" % S_W)
        a("s_cbranch_scc1 L_helper")
        self.p1_compute()
        self.g_compute()
        self.phase_o()
        a("s_branch L_end")
        a.label("L_helper")
        self.p1_helper()
        self.g_helper()
        a.label("L_end")
        a("s_endpgm")
        a.finalize()
        hdr = open("cdna_kernels/%s.s.ref" % NAME).read().split("\n")
        head = []
        for line in hdr:
            if line.startswith("; @launch"):
                head.append("; @launch grid=(256,1,1) block=(512,1,1) lds=%d" % LDS_TOTAL)
            elif line.startswith(";"): head.append(line)
            else: break
        txt = "\n".join(head) + "\n"
        txt += '.amdgcn_target "amdgcn-amd-amdhsa--gfx950"\n.text\n.globl %s_kernel\n.p2align 8\n.type %s_kernel,@function\n%s_kernel:\n' % (NAME, NAME, NAME)
        body = a.text()
        if "codepf" in self.exp:
            body = body.replace("CODE_LEN", "(L_end - L_pc_here - 16)")
        txt += body
        txt += '.section .rodata,"a"\n.p2align 6\n.amdhsa_kernel %s_kernel\n' % NAME
        txt += "  .amdhsa_next_free_vgpr 256\n  .amdhsa_next_free_sgpr 102\n  .amdhsa_accum_offset 128\n"
        txt += "  .amdhsa_group_segment_fixed_size 0\n  .amdhsa_kernarg_size 104\n  .amdhsa_user_sgpr_count 2\n"
        txt += "  .amdhsa_user_sgpr_kernarg_segment_ptr 1\n  .amdhsa_system_sgpr_workgroup_id_x 1\n"
        txt += "  .amdhsa_float_denorm_mode_32 3\n"
        txt += ".end_amdhsa_kernel\n"
        return txt

if __name__ == "__main__":
    import argparse
    ap = argparse.ArgumentParser()
    ap.add_argument("--stamps", action="store_true")
    ap.add_argument("--exp", default="")
    ap.add_argument("-o", default="cdna_kernels/%s.s" % NAME)
    args = ap.parse_args()
    g = Gen(stamps=args.stamps, exp=[e for e in args.exp.split(',') if e])
    txt = g.build()
    open(args.o, "w").write(txt)
    print("wrote", args.o, len(txt), "bytes;", len([i for i in g.a.ins if i.kind not in ("label", "dir")]), "instrs")
```

```python
import sys, math, struct
sys.path.insert(0, "gen")
from asmlib import *

NAME = "recurrent_scan__spectral_fnet__mixer_gmlp__prompt"

WS_FLAG = 0x000000
WS_STATS = 0x020000
WS_Z2N = 0x100000
WS_AB = 0x400000
WS_H = 0x600000
WS_YT = 0x900000
WS_STAMP = 0xF00000
WS_SIZE = 0x4000000
OOB = 0x80000000

LDS_WR = 65536
SLOT = 16384
NSLOT = 5
LDS_T4 = 147456
LDS_T5 = LDS_T4 + 1536
LDS_SY = LDS_T5 + 512
LDS_AT = 151552
LDS_YS = 40960
LDS_FX = 131072
LDS_WO = 73728
LDS_TOTAL = 163840

SRD_X, SRD_WIN, SRD_DFT, SRD_WSP, SRD_WOUT, SRD_WS, SRD_OUT, SRD_BSP, SRD_DBG = 4, 8, 12, 20, 24, 28, 32, 36, 40
S_IMLO, S_IMHI = 16, 17
S_MB, S_J, S_W, S_F0, S_WID, S_NONCE, S_L = 44, 45, 46, 47, 48, 49, 50
S_C, S_SLOT, S_XD = 51, 52, 53
S_CN, S_KC128, S_WSOFF, S_SLOTN = 54, 55, 56, 57
S_HW = 58
S_DL0, S_WL0, S_W2 = 60, 61, 62
S_T0, S_T1, S_T2, S_T3 = 63, 90, 91, 92
S_PASS = 93
S_EX = 94
S_K2 = 96
S_SPIN = 98
S_B0 = 99
S_ST0 = 100
S_ROT1 = 59
S_RHO = 51

V_LANE, V_JL, V_H, V_SIG = 1, 2, 3, 4

def f2u(x): return struct.unpack("<I", struct.pack("<f", x))[0]

class Gen:
    def __init__(self, stop_after=None, stamps=False, exp=()):
        self.a = Asm()
        self.stop_after = stop_after
        self.stamps = stamps
        self.exp = set(exp)

    def stamp(self, idx):
        if "dbgst" in self.exp:
            mm_ = {0: (1, 0), 1: (2, 0), 2: (3, 0), 3: (4, 0), 4: (5, 0), 5: (6, 0), 7: (7, 0), 8: (8, 0), 10: (9, 0), 16: (10, 0), 11: (11, 0), 21: (12, 0), 13: (13, 0), 14: (14, 0), 15: (15, 4)}
            m = {k: v[0] for k, v in mm_.items()}
            if idx in m:
                a = self.a
                lab = a.newlabel("ds")
                a("s_cmp_lg_u32 s%d, %d" % (S_L, 37))
                a("s_cbranch_scc1 %s" % lab)
                a("s_cmp_lg_u32 s%d, %d" % (S_W, mm_[idx][1]))
                a("s_cbranch_scc1 %s" % lab)
                a("s_memrealtime s[%d:%d]" % (S_ST0, S_ST0 + 1))
                a("s_waitcnt lgkmcnt(0)")
                a("v_mov_b32 v9, s%d" % S_ST0)
                a("v_mov_b32 v8, %d" % (4 * m[idx]))
                a("s_mov_b64 exec, 1")
                a("buffer_store_dword v9, v8, s[%d:%d], 0 offen sc1" % (SRD_DBG, SRD_DBG + 3))
                a("s_mov_b64 exec, -1")
                a.label(lab)
            return
        if not self.stamps: return
        a = self.a
        a(("s_memtime s[%d:%d]" if idx >= 24 else "s_memrealtime s[%d:%d]") % (S_ST0, S_ST0 + 1))
        a("s_waitcnt lgkmcnt(0)")
        a("v_mov_b32 v9, s%d" % S_ST0)
        a("s_lshl_b32 s%d, s%d, 3" % (S_ST0, S_L))
        a("s_add_u32 s%d, s%d, s%d" % (S_ST0, S_ST0, S_W))
        a("s_lshl_b32 s%d, s%d, 7" % (S_ST0, S_ST0))
        a("s_add_u32 s%d, s%d, 0x%x" % (S_ST0, S_ST0, WS_STAMP + idx * 4))
        a("v_mov_b32 v8, 0")
        a("s_mov_b64 s[%d:%d], exec" % (S_EX, S_EX + 1))
        a("s_mov_b64 exec, 1")
        a("buffer_store_dword v9, v8, s[%d:%d], s%d offen" % (SRD_WS, SRD_WS + 3, S_ST0))
        a("s_mov_b64 exec, s[%d:%d]" % (S_EX, S_EX + 1))

    def srd(self, base, plo, size):
        a = self.a
        a("s_mov_b32 s%d, s%d" % (base, plo))
        a("s_and_b32 s%d, s%d, 0xffff" % (base + 1, plo + 1))
        a("s_mov_b32 s%d, 0x%x" % (base + 2, size))
        a("s_mov_b32 s%d, 0x20000" % (base + 3))

    def flag_store(self, kind, dw=0, dw_sreg=None, vt=(5, 6)):
        a = self.a
        a("s_lshl_b32 s%d, s%d, 7" % (S_T0, S_L))
        a("s_add_u32 s%d, s%d, 0x%x" % (S_T0, S_T0, WS_FLAG + kind * 256 * 128 + dw * 4))
        if dw_sreg is not None:
            a("s_lshl_b32 s3, s%d, 2" % dw_sreg)
            a("s_add_u32 s%d, s%d, s3" % (S_T0, S_T0))
        a("v_mov_b32 v%d, s%d" % (vt[0], S_NONCE))
        a("v_mov_b32 v%d, 0" % vt[1])
        a("s_mov_b64 exec, 1")
        a("buffer_store_dword v%d, v%d, s[%d:%d], s%d offen sc1" % (vt[0], vt[1], SRD_WS, SRD_WS + 3, S_T0))
        a("s_mov_b64 exec, -1")

    def poll_flags_n(self, vaddr, nlanes, ndw, vt):
        a = self.a
        lab = a.newlabel("poll")
        a("s_mov_b32 s%d, 0" % S_SPIN)
        mask = (1 << nlanes) - 1
        a("s_mov_b32 exec_lo, 0x%x" % (mask & 0xffffffff))
        a("s_mov_b32 exec_hi, 0x%x" % (mask >> 32))
        a.label(lab)
        if ndw == 1: a("buffer_load_dword v%d, v%d, s[%d:%d], 0 offen sc1" % (vt, vaddr, SRD_WS, SRD_WS + 3))
        elif ndw == 2: a("buffer_load_dwordx2 v[%d:%d], v%d, s[%d:%d], 0 offen sc1" % (vt, vt + 1, vaddr, SRD_WS, SRD_WS + 3))
        else: a("buffer_load_dwordx4 v[%d:%d], v%d, s[%d:%d], 0 offen sc1" % (vt, vt + 3, vaddr, SRD_WS, SRD_WS + 3))
        a("s_waitcnt vmcnt(0)")
        a("v_cmp_ne_u32 vcc, s%d, v%d" % (S_NONCE, vt))
        for i in range(1, ndw):
            a("v_cmp_ne_u32 s[%d:%d], s%d, v%d" % (S_EX, S_EX + 1, S_NONCE, vt + i))
            a("s_or_b64 vcc, vcc, s[%d:%d]" % (S_EX, S_EX + 1))
        a("s_add_u32 s%d, s%d, 1" % (S_SPIN, S_SPIN))
        a("s_cmp_gt_u32 s%d, 0x8000" % S_SPIN)
        a("s_cbranch_scc1 %s_x" % lab)
        a("s_cbranch_vccnz %s" % lab)
        a.label(lab + "_x")
        a("s_mov_b64 exec, -1")

    def get_nonce(self):
        a = self.a
        lab = a.newlabel("nonce")
        a("v_mov_b32 v6, 0")
        a("s_mov_b32 s%d, 0" % S_SPIN)
        a.label(lab)
        a("buffer_load_dword v5, v6, s[%d:%d], 0 offen sc1" % (SRD_DBG, SRD_DBG + 3))
        a("s_waitcnt vmcnt(0)")
        a("v_readfirstlane_b32 s%d, v5" % S_NONCE)
        a("s_add_u32 s%d, s%d, 1" % (S_SPIN, S_SPIN))
        a("s_cmp_gt_u32 s%d, 0x8000" % S_SPIN)
        a("s_cbranch_scc1 %s_x" % lab)
        a("s_cmp_eq_u32 s%d, 0" % S_NONCE)
        a("s_cbranch_scc1 %s" % lab)
        a.label(lab + "_x")

    def nonce_from(self, vreg):
        a = self.a
        lab = a.newlabel("hn")
        a("v_readfirstlane_b32 s%d, v%d" % (S_NONCE, vreg))
        a("s_cmp_lg_u32 s%d, 0" % S_NONCE)
        a("s_cbranch_scc1 %s" % lab)
        self.get_nonce()
        a.label(lab)

    def poll_flags(self, vaddr, nlanes):
        a = self.a
        lab = a.newlabel("poll")
        a("s_mov_b32 s%d, 0" % S_SPIN)
        mask = (1 << nlanes) - 1
        a("s_mov_b32 exec_lo, 0x%x" % (mask & 0xffffffff))
        a("s_mov_b32 exec_hi, 0x%x" % (mask >> 32))
        a.label(lab)
        a("buffer_load_dword v5, v%d, s[%d:%d], 0 offen sc1" % (vaddr, SRD_WS, SRD_WS + 3))
        a("s_waitcnt vmcnt(0)")
        a("v_cmp_ne_u32 vcc, s%d, v5" % S_NONCE)
        a("s_add_u32 s%d, s%d, 1" % (S_SPIN, S_SPIN))
        a("s_cmp_gt_u32 s%d, 0x8000" % S_SPIN)
        a("s_cbranch_scc1 %s_x" % lab)
        a("s_cbranch_vccnz %s" % lab)
        a.label(lab + "_x")
        a("s_mov_b64 exec, -1")

    def lds_wait_ge(self, addr, val, vt=5):
        a = self.a
        lab = a.newlabel("lw")
        a("s_mov_b32 s%d, 0" % S_SPIN)
        a("v_mov_b32 v%d, %d" % (vt + 1, addr))
        a.label(lab)
        a("ds_read_b32 v%d, v%d" % (vt, vt + 1))
        a("s_waitcnt lgkmcnt(0)")
        a("v_readfirstlane_b32 s%d, v%d" % (S_T0, vt))
        a("s_add_u32 s%d, s%d, 1" % (S_SPIN, S_SPIN))
        a("s_cmp_gt_u32 s%d, 0x100000" % S_SPIN)
        a("s_cbranch_scc1 %s_x" % lab)
        a("s_cmp_lt_u32 s%d, %d" % (S_T0, val))
        a("s_cbranch_scc1 %s" % lab)
        a.label(lab + "_x")

    def hsum(self, regs, tmp):
        a = self.a
        for i, r in enumerate(regs): a("v_mov_b32 v%d, v%d" % (tmp + i, r))
        for i, r in enumerate(regs): a("v_permlane32_swap_b32 v%d, v%d" % (r, tmp + i))
        for i, r in enumerate(regs): a("v_add_f32 v%d, v%d, v%d" % (r, r, tmp + i))

    def mean_rstd(self, vsum, vsq, n, dst_r, dst_nm, t):
        a = self.a
        a("v_mul_f32 v%d, 0x%x, v%d" % (t, f2u(1.0 / n), vsum))
        a("v_mul_f32 v%d, 0x%x, v%d" % (t + 1, f2u(1.0 / n), vsq))
        a("v_fma_f32 v%d, -v%d, v%d, v%d" % (t + 1, t, t, t + 1))
        a("v_max_f32 v%d, 0, v%d" % (t + 1, t + 1))
        a("v_add_f32 v%d, 0x%x, v%d" % (t + 1, f2u(1e-5), t + 1))
        a("v_rsq_f32 v%d, v%d" % (dst_r, t + 1))
        a("v_mul_f32 v%d, v%d, v%d" % (dst_nm, t, dst_r))
        a("v_sub_f32 v%d, 0, v%d" % (dst_nm, dst_nm))

    V_OD, V_OW = 10, 11
    V_NON = 14
    def prologue(self):
        a = self.a
        a("s_cmp_ge_u32 s2, 256")
        a("s_cbranch_scc1 L_end")
        a("s_load_dwordx16 s[64:79], s[0:1], 0")
        a("s_load_dwordx8 s[80:87], s[0:1], 64")
        a("s_load_dwordx2 s[88:89], s[0:1], 96")
        if "map42" in self.exp:
            a("s_bfe_u32 s%d, s2, 0x20001" % S_MB)
            a("s_lshl_b32 s%d, s%d, 3" % (S_MB, S_MB))
            a("s_bfe_u32 s3, s2, 0x30003")
            a("s_add_u32 s%d, s%d, s3" % (S_MB, S_MB))
            a("s_and_b32 s%d, s2, 1" % S_J)
            a("s_lshl_b32 s%d, s%d, 2" % (S_J, S_J))
            a("s_lshr_b32 s3, s2, 6")
            a("s_add_u32 s%d, s%d, s3" % (S_J, S_J))
        else:
            a("s_and_b32 s%d, s2, 7" % S_MB)
            a("s_lshl_b32 s%d, s%d, 2" % (S_MB, S_MB))
            a("s_bfe_u32 s3, s2, 0x20003")
            a("s_add_u32 s%d, s%d, s3" % (S_MB, S_MB))
            a("s_lshr_b32 s%d, s2, 5" % S_J)
        a("s_lshl_b32 s%d, s%d, 5" % (S_L, S_J))
        a("s_add_u32 s%d, s%d, s%d" % (S_L, S_L, S_MB))
        a("v_lshrrev_b32 v5, 6, v0")
        a("v_and_b32 v%d, 63, v0" % V_LANE)
        a("v_readfirstlane_b32 s%d, v5" % S_W)
        a("v_lshrrev_b32 v20, 3, v0")
        a("v_and_b32 v21, 7, v0")
        a("v_lshlrev_b32 v22, 10, v20")
        a("v_lshl_add_u32 v22, v21, 4, v22")
        a("s_lshl_b32 s%d, s%d, 16" % (S_T1, S_MB))
        a("s_and_b32 s%d, s%d, 3" % (S_HW, S_W))
        a("v_and_b32 v%d, 31, v0" % V_JL)
        a("v_bfe_u32 v%d, v0, 5, 1" % V_H)
        a("v_and_b32 v5, 0x13, v%d" % V_JL)
        a("v_and_b32 v6, 4, v%d" % V_JL)
        a("v_lshl_or_b32 v5, v6, 1, v5")
        a("v_and_b32 v6, 8, v%d" % V_JL)
        a("v_lshrrev_b32 v6, 1, v6")
        a("v_or_b32 v%d, v5, v6" % V_SIG)
        a("s_mul_i32 s%d, s%d, 88" % (S_F0, S_J))
        a("s_cmp_eq_u32 s%d, 7" % S_J)
        a("s_cselect_b32 s3, 8, 0")
        a("s_sub_u32 s%d, s%d, s3" % (S_F0, S_F0))
        a("s_cmp_ge_u32 s%d, 6" % S_J)
        a("s_cselect_b32 s3, 8, 0")
        a("s_sub_u32 s%d, 88, s3" % S_WID)
        for i in range(10, 14): a("v_mov_b32 v%d, 0" % i)
        if "codepf" in self.exp:
            a("s_getpc_b64 s[92:93]")
            a.label("L_pc_here")
            a("s_lshr_b32 s3, s2, 3")
            a("s_lshl_b32 s3, s3, 3")
            a("s_add_u32 s3, s3, s%d" % S_W)
            a("s_mul_i32 s3, s3, 192")
            a("v_lshlrev_b32 v5, 4, v%d" % V_LANE)
            a("v_add_u32 v5, s3, v5")
            a("v_min_u32 v5, CODE_LEN, v5")
            a("s_mov_b64 exec, 0xfff")
            a("global_load_dwordx4 a[20:23], v5, s[92:93]")
            a("s_mov_b64 exec, -1")
        a("s_waitcnt lgkmcnt(0)")
        self.srd(SRD_X, 64, 2048 * 1024)
        a("s_and_b32 s%d, s%d, 3" % (S_ROT1, S_MB))
        a("s_lshl_b32 s%d, s%d, 1" % (S_ROT1, S_ROT1))
        a("s_add_u32 s%d, s%d, s%d" % (S_ROT1, S_ROT1, S_J))
        a("s_and_b32 s%d, s%d, 7" % (S_ROT1, S_ROT1))
        if "norot" in self.exp: a("s_mov_b32 s%d, 0" % S_ROT1)
        for i in range(8):
            a("s_add_u32 s3, s%d, %d" % (S_ROT1, i))
            a("s_and_b32 s3, s3, 7")
            a("s_lshl_b32 s3, s3, 7")
            a("s_add_u32 s3, s3, s%d" % S_T1)
            a("buffer_load_dwordx4 v[%d:%d], v22, s[%d:%d], s3 offen" % (32 + 4 * i, 35 + 4 * i, SRD_X, SRD_X + 3))
        self.srd(SRD_WIN, 76, 512 * 2752)
        self.srd(SRD_DFT, 70, 512 * 1024)
        self.srd(S_IMLO, 72, 512 * 1024)
        self.srd(SRD_WS, 88, WS_SIZE)
        self.srd(SRD_DBG, 86, 256)
        self.srd(SRD_WSP, 78, 2048 * 4096)
        self.srd(SRD_WOUT, 82, 688 * 1024)
        self.srd(SRD_OUT, 84, 2048 * 1024)
        self.srd(SRD_BSP, 80, 4096)
        if "tlbwarm" in self.exp:
            a("v_lshlrev_b32 v5, 20, v%d" % V_LANE)
            a("v_add_u32 v5, 0x7f000, v5")
            a("s_mov_b64 exec, 0xfff")
            a("buffer_load_dword a24, v5, s[%d:%d], 0 offen sc1" % (SRD_WS, SRD_WS + 3))
            a("s_mov_b64 exec, 1")
            a("s_lshl_b32 s3, s%d, 16" % S_MB)
            a("v_mov_b32 v5, s3")
            a("buffer_load_dword a25, v5, s[%d:%d], 0 offen" % (SRD_OUT, SRD_OUT + 3))
            a("s_lshl_b32 s3, s%d, 18" % S_MB)
            a("v_mov_b32 v5, s3")
            a("buffer_load_dword a26, v5, s[%d:%d], 0 offen" % (SRD_WSP, SRD_WSP + 3))
            a("v_mov_b32 v5, 0")
            a("buffer_load_dword a27, v5, s[%d:%d], 0 offen" % (SRD_WOUT, SRD_WOUT + 3))
            a("buffer_load_dword a28, v5, s[%d:%d], 0 offen" % (SRD_BSP, SRD_BSP + 3))
            a("s_mov_b64 exec, -1")
        self.npf3 = 0
        if "pf3" in self.exp:
            a("s_lshr_b32 s3, s2, 3")
            a("s_lshl_b32 s3, s3, 3")
            a("s_add_u32 s3, s3, s%d" % S_W)
            a("s_mul_i32 s%d, s3, 5504" % S_T0)
            a("v_lshlrev_b32 v5, 4, v%d" % V_LANE)
            for i in range(6):
                a("buffer_load_dwordx4 a[16:19], v5, s[%d:%d], s%d offen" % (SRD_WIN, SRD_WIN + 3, S_T0))
                a("s_add_u32 s%d, s%d, 1024" % (S_T0, S_T0))
            a("s_lshl_b32 s%d, s3, 10" % S_T0)
            a("s_add_u32 s%d, s%d, 1024" % (S_T0, S_T0))
            a("buffer_load_dwordx4 a[16:19], v5, s[%d:%d], s%d offen" % (SRD_DFT, SRD_DFT + 3, S_T0))
            a("buffer_load_dwordx4 a[16:19], v5, s[%d:%d], s%d offen" % (S_IMLO, S_IMLO + 3, S_T0))
            self.npf3 = 8
        a("s_cmp_lt_u32 s%d, 4" % S_W)
        a("s_cbranch_scc0 L_pro_h")
        self.npf = (self.prefetch_start() if "nopf" not in self.exp else 0) + (5 if "tlbwarm" in self.exp else 0) + self.npf3
        a("s_branch L_pro_c")
        a.label("L_pro_h")
        L = V_LANE
        a("v_lshrrev_b32 v5, 3, v%d" % L)
        a("v_and_b32 v6, 7, v%d" % L)
        a("v_lshrrev_b32 v7, 4, v%d" % L)
        a("v_xor_b32 v8, v6, v7")
        a("v_lshlrev_b32 v8, 4, v8")
        a("s_lshl_b32 s3, s%d, 5" % S_J)
        a("s_lshl_b32 s%d, s%d, 3" % (S_T0, S_HW))
        a("s_add_u32 s3, s3, s%d" % S_T0)
        a("v_add_u32 v9, s3, v5")
        a("v_cmp_eq_u32 vcc, 0, v9")
        a("v_mov_b32 v6, 256")
        a("v_cndmask_b32 v9, v9, v6, vcc")
        a("s_and_b32 s%d, s%d, 1" % (S_T0, S_HW))
        a("s_lshl_b32 s%d, s%d, 6" % (S_T0, S_T0))
        a("v_xor_b32 v8, s%d, v8" % S_T0)
        a("v_lshl_add_u32 v%d, v9, 10, v8" % self.V_OD)
        for p in range(3):
            a("v_add_u32 v5, %d, v%d" % (64 * p, L))
            a("v_mul_u32_u24 v6, 171, v5")
            a("v_lshrrev_b32 v6, 11, v6")
            a("v_mul_u32_u24 v7, 12, v6")
            a("v_sub_u32 v7, v5, v7")
            a("v_mul_u32_u24 v6, 2752, v6")
            a("v_lshl_add_u32 v6, v7, 4, v6")
            a("v_lshlrev_b32 v7, 3, v7")
            a("v_cmp_gt_u32 vcc, s%d, v7" % S_WID)
            a("v_mov_b32 v8, 0x%x" % OOB)
            a("v_cndmask_b32 v%d, v8, v6, vcc" % (self.V_OW + p))
        a("s_lshl_b32 s%d, s%d, 10" % (S_DL0, S_HW))
        a("s_mul_i32 s%d, s%d, 3072" % (S_WL0, S_HW))
        a("s_mul_i32 s%d, s%d, %d" % (S_W2, S_HW, 16 * 2752))
        a("s_lshl_b32 s3, s%d, 1" % S_F0)
        a("s_add_u32 s%d, s%d, s3" % (S_W2, S_W2))
        a("s_add_u32 s%d, s%d, %d" % (S_WSOFF, S_W2, 688 * 2))
        for k in range(4): self.dma_chunk(k)
        a("s_cmp_lg_u32 s2, 0")
        a("s_cbranch_scc1 L_nononce")
        a("s_cmp_lg_u32 s%d, 4" % S_W)
        a("s_cbranch_scc1 L_nononce")
        a("s_memrealtime s[%d:%d]" % (S_ST0, S_ST0 + 1))
        a("s_waitcnt lgkmcnt(0)")
        a("s_or_b32 s3, s%d, 1" % S_ST0)
        a("v_mov_b32 v5, s3")
        a("v_mov_b32 v6, 0")
        a("s_mov_b64 exec, 1")
        a("buffer_store_dword v5, v6, s[%d:%d], 0 offen sc1" % (SRD_DBG, SRD_DBG + 3))
        a("s_mov_b64 exec, -1")
        a.label("L_nononce")
        a("v_lshlrev_b32 v5, 2, v%d" % V_LANE)
        a("v_add_u32 v5, %d, v5" % LDS_SY)
        a("v_mov_b32 v6, 0")
        a("s_mov_b64 exec, 0xffff")
        a("ds_write_b32 v5, v6")
        a("s_mov_b64 exec, -1")
        a.label("L_pro_c")
        self.stamp(0)
        self.stamp(24)

    def pf_wrows(self, colbyte_sreg, row0_sreg, nrows16, dst):
        a = self.a
        a("v_lshrrev_b32 v5, 2, v%d" % V_LANE)
        a("v_add_u32 v5, s%d, v5" % row0_sreg)
        a("v_mul_u32_u24 v5, 2752, v5")
        a("v_and_b32 v6, 3, v%d" % V_LANE)
        a("v_lshlrev_b32 v6, 6, v6")
        a("v_min_u32 v6, 172, v6")
        a("v_add_u32 v5, v5, v6")
        for i in range(nrows16):
            a("s_add_u32 s3, s%d, %d" % (colbyte_sreg, i * 16 * 2752))
            a("buffer_load_dword a%d, v5, s[%d:%d], s3 offen" % (dst, SRD_WIN, SRD_WIN + 3))
        return nrows16

    def prefetch_start(self):
        a = self.a
        a("s_and_b32 s%d, s%d, 3" % (S_T0, S_MB))
        a("s_lshl_b32 s%d, s%d, 6" % (S_T0, S_T0))
        a("s_lshl_b32 s3, s%d, 4" % S_W)
        a("s_add_u32 s%d, s%d, s3" % (S_T0, S_T0))
        a("s_add_u32 s%d, s%d, 256" % (S_T0, S_T0))
        a("s_add_u32 s%d, s%d, 688" % (S_T1, S_F0))
        a("s_lshl_b32 s%d, s%d, 1" % (S_T1, S_T1))
        return self.pf_wrows(S_T1, S_T0, 1, 16)

    def prefetch_b(self):
        a = self.a
        a("s_and_b32 s%d, s%d, 3" % (S_T0, S_MB))
        a("s_lshl_b32 s%d, s%d, 7" % (S_T0, S_T0))
        a("s_lshl_b32 s3, s%d, 5" % S_W)
        a("s_add_u32 s%d, s%d, s3" % (S_T0, S_T0))
        a("s_lshl_b32 s%d, s%d, 1" % (S_T1, S_F0))
        self.pf_wrows(S_T1, S_T0, 2, 16)
        a("s_lshl_b32 s%d, s%d, 5" % (S_T0, S_J))
        a("s_and_b32 s3, s%d, 3" % S_MB)
        a("s_lshl_b32 s3, s3, 3")
        a("s_add_u32 s%d, s%d, s3" % (S_T0, S_T0))
        a("s_lshl_b32 s3, s%d, 1" % S_W)
        a("s_add_u32 s%d, s%d, s3" % (S_T0, S_T0))
        a("s_lshl_b32 s%d, s%d, 10" % (S_T0, S_T0))
        a("v_lshlrev_b32 v5, 4, v%d" % V_LANE)
        for i in range(2):
            a("buffer_load_dwordx4 a[16:19], v5, s[%d:%d], s%d offen offset:%d" % (S_IMLO, S_IMLO + 3, S_T0, i * 1024))

    def prefetch_wsp(self):
        a = self.a
        a("s_lshl_b32 s%d, s%d, 6" % (S_T0, S_MB))
        a("s_lshl_b32 s3, s%d, 3" % S_J)
        a("s_add_u32 s%d, s%d, s3" % (S_T0, S_T0))
        a("s_lshl_b32 s3, s%d, 1" % S_W)
        a("s_add_u32 s%d, s%d, s3" % (S_T0, S_T0))
        a("s_lshl_b32 s%d, s%d, 12" % (S_T0, S_T0))
        a("v_lshlrev_b32 v5, 4, v%d" % V_LANE)
        for i in range(8):
            a("buffer_load_dwordx4 a[16:19], v5, s[%d:%d], s%d offen" % (SRD_WSP, SRD_WSP + 3, S_T0))
            if i < 7: a("s_add_u32 s%d, s%d, 1024" % (S_T0, S_T0))

    def prefetch_wout(self):
        a = self.a
        a("s_and_b32 s3, s%d, 3" % S_MB)
        a("s_lshl_b32 s3, s3, 2")
        a("s_add_u32 s3, s3, s%d" % S_W)
        a("s_mul_i32 s%d, s3, 43" % S_T0)
        a("v_lshrrev_b32 v5, 1, v%d" % V_LANE)
        a("v_add_u32 v5, s%d, v5" % S_T0)
        a("v_lshlrev_b32 v5, 10, v5")
        a("v_and_b32 v6, 1, v%d" % V_LANE)
        a("v_lshl_add_u32 v5, v6, 6, v5")
        a("s_lshl_b32 s%d, s%d, 7" % (S_T0, S_J))
        a("buffer_load_dword a16, v5, s[%d:%d], s%d offen" % (SRD_WOUT, SRD_WOUT + 3, S_T0))
        a("s_add_u32 s%d, s%d, %d" % (S_T0, S_T0, 32 * 1024))
        a("buffer_load_dword a16, v5, s[%d:%d], s%d offen" % (SRD_WOUT, SRD_WOUT + 3, S_T0))

    def dma_chunk(self, k):
        a = self.a
        slot = LDS_WR + (k % NSLOT) * SLOT
        srd = SRD_DFT if k < 8 else S_IMLO
        a("s_add_u32 s%d, s%d, %d" % (S_T1, S_ROT1, k & 7))
        a("s_and_b32 s%d, s%d, 7" % (S_T1, S_T1))
        a("s_add_u32 m0, s%d, %d" % (S_DL0, slot + 12288))
        a("s_lshl_b32 s%d, s%d, 7" % (S_T0, S_T1))
        a("buffer_load_dwordx4 v%d, s[%d:%d], s%d offen lds" % (self.V_OD, srd, srd + 3, S_T0))
        a("s_mul_i32 s%d, s%d, %d" % (S_T1, S_T1, 64 * 2752))
        a("s_add_u32 m0, s%d, %d" % (S_WL0, slot))
        a("s_add_u32 s%d, s%d, s%d" % (S_T0, S_WSOFF if k < 8 else S_W2, S_T1))
        for p in range(3):
            a("buffer_load_dwordx4 v%d, s[%d:%d], s%d offen lds" % (self.V_OW + p, SRD_WIN, SRD_WIN + 3, S_T0))
            if p < 2:
                a("s_add_u32 m0, m0, 1024")
                a("s_nop 0")

    def xstage(self):
        a = self.a
        X = 32
        a("v_mov_b32 v23, 0x3f803f80")
        for i in range(4): a("v_mov_b32 v%d, 0" % (24 + i))
        a("v_bfe_u32 v5, v20, 1, 3")
        a("v_xor_b32 v5, v5, v21")
        a("v_lshlrev_b32 v5, 4, v5")
        a("v_lshl_add_u32 v28, v20, 7, v5")
        a("s_cmp_lt_u32 s%d, 4" % S_W)
        a("s_cbranch_scc1 L_xw_c")
        for path, younger in (("h", 16 + (5 if "tlbwarm" in self.exp else 0) + self.npf3), ("c", self.npf)):
            if path == "c": a.label("L_xw_c")
            for i in range(8):
                a("s_waitcnt vmcnt(%d)" % (younger + 7 - i))
                for r in range(4):
                    k = 4 * i + r
                    a("v_dot2c_f32_bf16 v%d, v%d, v23" % (24 + (k & 1), X + k))
                    a("v_dot2c_f32_bf16 v%d, v%d, v%d" % (26 + (k & 1), X + k, X + k))
            if path == "h": a("s_branch L_xw_d")
        a.label("L_xw_d")
        a("v_add_f32 v24, v24, v25")
        a("v_add_f32 v26, v26, v27")
        for dpp in ("quad_perm:[1,0,3,2]", "quad_perm:[2,3,0,1]", "row_half_mirror"):
            a("v_add_f32_dpp v25, v24, v24 %s row_mask:0xf bank_mask:0xf" % dpp)
            a("v_add_f32_dpp v27, v26, v26 %s row_mask:0xf bank_mask:0xf" % dpp)
            a("v_mov_b32 v24, v25")
            a("v_mov_b32 v26, v27")
        self.mean_rstd(24, 26, 512, 30, 31, 6)
        U = 64
        for i in range(8):
            for r in range(4):
                src = X + 4 * i + r
                t = U + 2 * ((4 * i + r) % 8)
                a("v_lshlrev_b32 v%d, 16, v%d" % (t, src))
                a("v_and_b32 v%d, 0xffff0000, v%d" % (t + 1, src))
                a("v_pk_fma_f32 v[%d:%d], v[%d:%d], v[30:31], v[30:31] op_sel:[0,0,1] op_sel_hi:[1,0,1]" % (t, t + 1, t, t + 1))
                a("v_cvt_pk_bf16_f32 v%d, v%d, v%d" % (src, t, t + 1))
            a("ds_write_b128 v28, v[%d:%d] offset:%d" % (X + 4 * i, X + 4 * i + 3, i * 8192))

    C_XA, C_AC, C_AN = 10, 14, 15
    C_FA, C_FB = 16, 32
    C_ACC = 64
    C_Z2P, C_Z1P = 96, 112
    C_GC1 = 6

    def c_setup(self, w3):
        a = self.a
        a("v_bfe_u32 v5, v%d, 1, 3" % V_SIG)
        a("v_lshlrev_b32 v6, 7, v%d" % V_SIG)
        for ks in range(4):
            a("v_add_u32 v8, %d, v%d" % (2 * ks, V_H))
            a("v_xor_b32 v8, v8, v5")
            a("v_lshl_add_u32 v%d, v8, 4, v6" % (self.C_XA + ks))
        if w3:
            for ks in range(4):
                a("v_add_u32 v%d, %d, v%d" % (116 + ks, LDS_WR + 12288, self.C_XA + ks))
        else:
            a("v_bfe_u32 v7, v%d, 2, 2" % V_LANE)
            a("v_lshl_add_u32 v7, v%d, 3, v7" % V_H)
            a("v_mul_u32_u24 v7, 192, v7")
            a("v_bfe_u32 v8, v%d, 4, 1" % V_LANE)
            a("v_lshlrev_b32 v8, 5, v8")
            a("v_and_b32 v9, 1, v%d" % V_LANE)
            a("v_lshl_add_u32 v8, v9, 4, v8")
            a("v_bfe_u32 v9, v%d, 1, 1" % V_LANE)
            a("v_lshl_add_u32 v8, v9, 3, v8")
            a("v_add_u32 v7, v7, v8")
            a("s_lshl_b32 s3, s%d, 6" % S_W)
            a("s_add_u32 s3, s3, %d" % LDS_WR)
            a("v_add_u32 v%d, s3, v7" % self.C_AC)
            a("v_add_u32 v%d, %d, v%d" % (self.C_AN, SLOT, self.C_AC))
            for Q in range(2):
                a("v_lshlrev_b32 v5, 3, v%d" % V_H)
                a("v_sub_u32 v5, v%d, v5" % V_SIG)
                if Q: a("v_subrev_u32 v5, 16, v5")
                a("v_and_b32 v6, 1, v5")
                a("v_lshlrev_b32 v6, 4, v6")
                a("v_mov_b32 v7, 0x3f80")
                a("v_lshlrev_b32 v6, v6, v7")
                a("v_lshrrev_b32 v5, 1, v5")
                for r in range(4):
                    a("v_cmp_eq_u32 vcc, %d, v5" % r)
                    a("v_cndmask_b32 v7, 0, v6, vcc")
                    a("v_accvgpr_write_b32 a%d, v7" % (4 * Q + r))

    def c_reads(self, w3, c, ks, nxt):
        A = self.C_FA + 4 * ks; B = self.C_FB + 8 * ks
        out = []
        xo = (c & 7) * 8192
        if w3:
            base = 124 + ks if nxt else 120 + ks
            out.append("ds_read_b128 v[%d:%d], v%d" % (A, A + 3, base))
        else:
            base = self.C_AN if nxt else self.C_AC
            out.append("ds_read_b64_tr_b16 v[%d:%d], v%d offset:%d" % (A, A + 1, base, ks * 3072))
            out.append("ds_read_b64_tr_b16 v[%d:%d], v%d offset:%d" % (A + 2, A + 3, base, ks * 3072 + 768))
        out.append("ds_read_b128 v[%d:%d], v%d offset:%d" % (B, B + 3, self.C_XA + ks, xo))
        out.append("ds_read_b128 v[%d:%d], v%d offset:%d" % (B + 4, B + 7, self.C_XA + ks, xo + 4096))
        return out

    def c_loop(self, w3):
        a = self.a
        nr = 3 if w3 else 4
        ACC = self.C_ACC
        def mfs(ks, first):
            A = self.C_FA + 4 * ks; B = self.C_FB + 8 * ks
            out = []
            for st in range(2):
                D = ACC + 16 * st
                cc = "0" if first else "v[%d:%d]" % (D, D + 15)
                if w3: out.append("v_mfma_f32_32x32x16_bf16 v[%d:%d], v[%d:%d], v[%d:%d], %s" % (D, D + 15, B + 4 * st, B + 4 * st + 3, A, A + 3, cc))
                else: out.append("v_mfma_f32_32x32x16_bf16 v[%d:%d], v[%d:%d], v[%d:%d], %s" % (D, D + 15, A, A + 3, B + 4 * st, B + 4 * st + 3, cc))
            return out
        a("s_mov_b32 s64, %d" % SLOT)
        if "pf2" in self.exp:
            a("v_lshlrev_b32 v9, 4, v%d" % V_LANE)
            lab = a.newlabel("pf2")
            a("s_cmp_lg_u32 s%d, 0" % S_PASS)
            a("s_cbranch_scc1 %s_b" % lab)
            for i in range(4): a("s_mov_b32 s%d, s%d" % (72 + i, SRD_WSP + i) if i < 3 else "s_mov_b32 s75, 0x20000")
            a("s_lshl_b32 s76, s%d, 6" % S_MB)
            a("s_lshl_b32 s3, s%d, 3" % S_J)
            a("s_add_u32 s76, s76, s3")
            a("s_lshl_b32 s3, s%d, 1" % S_W)
            a("s_add_u32 s76, s76, s3")
            a("s_lshl_b32 s76, s76, 12")
            a("s_branch %s_d" % lab)
            a.label(lab + "_b")
            for i in range(4): a("s_mov_b32 s%d, s%d" % (72 + i, SRD_WOUT + i) if i < 3 else "s_mov_b32 s75, 0x20000")
            a("s_and_b32 s76, s%d, 3" % S_MB)
            a("s_lshl_b32 s76, s76, 3")
            a("s_add_u32 s76, s76, s%d" % S_J)
            a("s_lshl_b32 s76, s76, 2")
            a("s_add_u32 s76, s76, s%d" % S_W)
            a("s_mul_i32 s76, s76, 43")
            a("s_lshr_b32 s76, s76, 3")
            a("s_lshl_b32 s76, s76, 10")
            a.label(lab + "_d")
        if w3:
            for ks in range(4): a("v_add_u32 v%d, s%d, v%d" % (120 + ks, S_SLOT, 116 + ks))
        for r in self.c_reads(w3, 0, 0, False): a(r)
        for r in self.c_reads(w3, 0, 1, False): a(r)
        for c in range(8):
            a("s_barrier")
            extra = []
            if w3:
                extra += ["s_add_u32 s%d, s%d, %d" % (S_T1, S_SLOT, SLOT), "s_cmp_eq_u32 s%d, %d" % (S_T1, NSLOT * SLOT), "s_cselect_b32 s%d, 0, s%d" % (S_T1, S_T1),
                          "v_add_u32 v124, s%d, v116" % S_T1, "v_add_u32 v125, s%d, v117" % S_T1]
            for ks in range(4):
                if ks < 2: rd = self.c_reads(w3, c, ks + 2, False)
                else: rd = self.c_reads(w3, c + 1, ks - 2, True)
                if "cnoread" in self.exp: rd = []
                m = mfs(ks, c == 0 and ks == 0)
                if "cnomfma" in self.exp: m = []
                a("s_waitcnt lgkmcnt(%d)" % nr)
                half = (len(rd) + 1) // 2
                if m: a(m[0])
                if ks == 0:
                    for e in extra: a(e)
                    if "pf2" in self.exp:
                        a("buffer_load_dwordx4 a[16:19], v9, s[72:75], s76 offen")
                        a("s_add_u32 s76, s76, 1024")
                for r in rd[:half]: a(r)
                if m: a(m[1])
                for r in rd[half:]: a(r)
                if ks == 3:
                    if w3:
                        a("s_mov_b32 s%d, s%d" % (S_SLOT, S_T1))
                        for k2 in range(4): a("v_add_u32 v%d, s%d, v%d" % (120 + k2, S_SLOT, 116 + k2))
                    else:
                        a("v_mov_b32 v%d, v%d" % (self.C_AC, self.C_AN))
                        a("s_add_u32 s%d, s%d, %d" % (S_SLOT, S_SLOT, SLOT))
                        a("s_cmp_eq_u32 s%d, %d" % (S_SLOT, NSLOT * SLOT))
                        a("s_cselect_b32 s%d, 0x%x, s64" % (S_T1, (-(NSLOT - 1) * SLOT) & 0xffffffff))
                        a("s_cselect_b32 s%d, 0, s%d" % (S_SLOT, S_SLOT))
                        a("v_add_u32 v%d, s%d, v%d" % (self.C_AN, S_T1, self.C_AN))
        a("s_waitcnt lgkmcnt(0)")

    def gelu_epilogue(self, dst, hook=None, hook_at=8):
        a = self.a
        E = 16
        c1 = -2.0 * math.sqrt(2.0 / math.pi) * math.log2(math.e)
        c2 = c1 * 0.044715
        a("v_mov_b32 v6, 0x%x" % f2u(c1))
        a("s_mov_b32 s%d, 0x%x" % (S_K2, f2u(c2)))
        a("s_mov_b32 s%d, 0x%x" % (S_K2 + 1, f2u(c2)))
        for pp in range(0, 16, 2):
            if hook is not None and pp == hook_at: hook()
            seq = [[], []]
            for u in range(2):
                pre = self.C_ACC + 2 * (pp + u)
                p2, e = E + u * 4, E + u * 4 + 2
                s = seq[u]
                s.append("v_pk_mul_f32 v[%d:%d], v[%d:%d], v[%d:%d]" % (p2, p2 + 1, pre, pre + 1, pre, pre + 1))
                s.append("v_pk_fma_f32 v[%d:%d], v[%d:%d], s[%d:%d], v[6:7] op_sel_hi:[1,1,0]" % (p2, p2 + 1, p2, p2 + 1, S_K2, S_K2 + 1))
                s.append("v_pk_mul_f32 v[%d:%d], v[%d:%d], v[%d:%d]" % (p2, p2 + 1, p2, p2 + 1, pre, pre + 1))
                s.append("v_exp_f32 v%d, v%d" % (e, p2))
                s.append("v_exp_f32 v%d, v%d" % (e + 1, p2 + 1))
                s.append("v_pk_add_f32 v[%d:%d], v[%d:%d], 1.0 op_sel_hi:[1,0]" % (e, e + 1, e, e + 1))
                s.append("v_rcp_f32 v%d, v%d" % (e, e))
                s.append("v_rcp_f32 v%d, v%d" % (e + 1, e + 1))
                s.append("v_pk_mul_f32 v[%d:%d], v[%d:%d], v[%d:%d]" % (e, e + 1, pre, pre + 1, e, e + 1))
                s.append("v_cvt_pk_bf16_f32 v%d, v%d, v%d" % (dst + pp + u, e, e + 1))
            for i in range(len(seq[0])):
                a(seq[0][i]); a(seq[1][i])

    def stats2_partial(self, src):
        a = self.a
        E = 16
        a("v_mov_b32 v24, 0x3f803f80")
        for i in range(4): a("v_mov_b32 v%d, 0" % (E + i))
        for r in range(8):
            for st in range(2):
                a("v_dot2c_f32_bf16 v%d, v%d, v24" % (E + 2 * st, src + 8 * st + r))
                a("v_dot2c_f32_bf16 v%d, v%d, v%d" % (E + 2 * st + 1, src + 8 * st + r, src + 8 * st + r))
        self.hsum([E, E + 1, E + 2, E + 3], E + 4)
        a("s_lshl_b32 s3, s%d, 9" % S_W)
        a("s_add_u32 s3, s3, %d" % LDS_T4)
        a("v_lshlrev_b32 v8, 3, v%d" % V_JL)
        a("v_add_u32 v8, s3, v8")
        a("ds_write_b64 v8, v[%d:%d]" % (E, E + 1))
        a("ds_write_b64 v8, v[%d:%d] offset:256" % (E + 2, E + 3))
        a("s_waitcnt lgkmcnt(0)")

    def dft_store(self, part):
        a = self.a
        a("v_and_b32 v5, 7, v%d" % V_SIG)
        a("v_xor_b32 v5, v5, v%d" % V_H)
        a("v_lshlrev_b32 v5, 4, v5")
        a("v_lshl_add_u32 v5, v%d, 7, v5" % V_SIG)
        a("v_add_u32 v5, %d, v5" % LDS_AT)
        for st in range(2):
            for Q in range(2):
                o = 16 + (st * 2 + Q) * 4
                for p in range(4):
                    acc = self.C_ACC + 16 * st + 8 * Q + 2 * p
                    a("v_cvt_pk_bf16_f32 v%d, v%d, v%d" % (o + p, acc, acc + 1))
                a("v_xor_b32 v6, %d, v5" % ((4 * st + 2 * Q) * 16))
                a("ds_write_b128 v6, v[%d:%d]" % (o, o + 3))
        a("v_lshrrev_b32 v7, 3, v%d" % V_LANE)
        a("v_and_b32 v8, 7, v%d" % V_LANE)
        a("v_xor_b32 v6, v7, v8")
        a("v_lshlrev_b32 v6, 4, v6")
        a("v_lshl_add_u32 v6, v7, 7, v6")
        a("v_add_u32 v6, %d, v6" % LDS_AT)
        a("s_waitcnt lgkmcnt(0)")
        for i in range(4):
            a("ds_read_b128 v[%d:%d], v6 offset:%d" % (32 + 4 * i, 35 + 4 * i, i * 1024))
        a("v_lshlrev_b32 v7, 13, v7")
        a("v_lshl_add_u32 v7, v8, 4, v7")
        a("s_lshl_b32 s%d, s%d, 18" % (S_T0, S_J))
        a("s_lshl_b32 s3, s%d, 7" % S_MB)
        a("s_add_u32 s%d, s%d, s3" % (S_T0, S_T0))
        a("s_add_u32 s%d, s%d, 0x%x" % (S_T0, S_T0, WS_AB + part * 4096))
        a("s_waitcnt lgkmcnt(0)")
        for i in range(4):
            a("buffer_store_dwordx4 v[%d:%d], v7, s[%d:%d], s%d offen sc1" % (32 + 4 * i, 35 + 4 * i, SRD_WS, SRD_WS + 3, S_T0))
            if i < 3: a("s_add_u32 s%d, s%d, %d" % (S_T0, S_T0, 8 * 8192))

    def z2n_publish(self):
        a = self.a
        a("v_lshlrev_b32 v5, 3, v%d" % V_JL)
        a("v_add_u32 v5, %d, v5" % LDS_T5)
        a("ds_read_b64 v[6:7], v5")
        a("ds_read_b64 v[8:9], v5 offset:256")
        a("s_waitcnt lgkmcnt(0)")
        N = 48
        for st in range(2):
            r2 = 6 + 2 * st
            for r in range(8):
                src = self.C_Z2P + 8 * st + r
                t = 16 + 2 * (r % 4)
                a("v_lshlrev_b32 v%d, 16, v%d" % (t, src))
                a("v_and_b32 v%d, 0xffff0000, v%d" % (t + 1, src))
                a("v_pk_fma_f32 v[%d:%d], v[%d:%d], v[%d:%d], v[%d:%d] op_sel:[0,0,1] op_sel_hi:[1,0,1]" % (t, t + 1, t, t + 1, r2, r2 + 1, r2, r2 + 1))
                a("v_cvt_pk_bf16_f32 v%d, v%d, v%d" % (N + 8 * st + r, t, t + 1))
        DT = 16
        for st in range(2):
            D = DT + 16 * st
            a("v_mfma_f32_32x32x16_bf16 v[%d:%d], v[%d:%d], a[0:3], 0" % (D, D + 15, N + 8 * st, N + 8 * st + 3))
        for st in range(2):
            D = DT + 16 * st
            a("v_mfma_f32_32x32x16_bf16 v[%d:%d], v[%d:%d], a[4:7], v[%d:%d]" % (D, D + 15, N + 8 * st + 4, N + 8 * st + 7, D, D + 15))
        a("s_lshl_b32 s%d, s%d, 7" % (S_T0, S_J))
        a("s_lshl_b32 s%d, s%d, 2" % (S_T1, S_MB))
        a("s_add_u32 s%d, s%d, s%d" % (S_T0, S_T0, S_T1))
        a("s_mul_i32 s%d, s%d, 3" % (S_T0, S_T0))
        a("s_add_u32 s%d, s%d, s%d" % (S_T0, S_T0, S_W))
        a("s_lshl_b32 s%d, s%d, 10" % (S_T0, S_T0))
        a("s_add_u32 s%d, s%d, 0x%x" % (S_T0, S_T0, WS_Z2N))
        a("v_lshlrev_b32 v5, 4, v%d" % V_LANE)
        for st in range(2):
            for Q in range(2):
                D = DT + 16 * st + 8 * Q
                o = 48 + (st * 2 + Q) * 4
                for p in range(4):
                    a("v_cvt_pk_bf16_f32 v%d, v%d, v%d" % (o + p, D + 2 * p, D + 2 * p + 1))
                a("s_add_u32 s%d, s%d, %d" % (S_T1, S_T0, (2 * st + Q) * 3072))
                if "nozstore" not in self.exp: a("buffer_store_dwordx4 v[%d:%d], v5, s[%d:%d], s%d offen sc1" % (o, o + 3, SRD_WS, SRD_WS + 3, S_T1))

    def zero_acc(self):
        for i in range(32): self.a("v_mov_b32 v%d, 0" % (self.C_ACC + i))

    def p1_compute(self):
        a = self.a
        a("s_cmp_eq_u32 s%d, 3" % S_W)
        a("s_cbranch_scc1 L_c3")
        self.c_setup(False)
        a("s_mov_b32 s%d, 0" % S_C)
        a("s_mov_b32 s%d, %d" % (S_SLOT, SLOT))
        a("s_mov_b32 s%d, 0" % S_PASS)
        a("s_waitcnt lgkmcnt(0)")
        a("s_barrier")
        if "nopf" not in self.exp: self.prefetch_b()
        self.stamp(1)
        self.stamp(28)
        a.label("L_pass")
        self.c_loop(False)
        a("s_cmp_lg_u32 s%d, 0" % S_PASS)
        a("s_cbranch_scc1 L_passB_done")
        self.stamp(29)
        self.stamp(2)
        if "nopf" not in self.exp: self.prefetch_wsp()
        self.gelu_epilogue(self.C_Z2P)
        self.stats2_partial(self.C_Z2P)
        a("s_barrier")
        a("v_mov_b32 v6, 0")
        a("buffer_load_dword a8, v6, s[%d:%d], 0 offen sc1" % (SRD_DBG, SRD_DBG + 3))
        a("s_lshl_b32 s%d, s%d, 7" % (S_T0, S_MB))
        a("v_lshlrev_b32 v5, 1, v%d" % V_SIG)
        a("buffer_load_ushort a9, v5, s[%d:%d], s%d offen" % (SRD_BSP, SRD_BSP + 3, S_T0))
        a("buffer_load_ushort a10, v5, s[%d:%d], s%d offen offset:64" % (SRD_BSP, SRD_BSP + 3, S_T0))
        if "nopf" not in self.exp: self.prefetch_wout()
        self.stamp(3)
        a("s_mov_b32 s%d, 1" % S_PASS)
        a("s_branch L_pass")
        a.label("L_passB_done")
        self.stamp(4)
        a("s_waitcnt vmcnt(0)")
        a("v_accvgpr_read_b32 v39, a8")
        self.nonce_from(39)
        self.stamp(22)
        a("s_barrier")
        self.stamp(5)
        self.z2n_publish()
        if "b3b" in self.exp: a("s_barrier")
        def hook():
            a("s_waitcnt vmcnt(0)")
            self.flag_store(1, 0, S_W, vt=(8, 9))
            self.stamp(7)
        self.gelu_epilogue(self.C_Z1P, hook, 8)
        a("s_branch L_c_join")
        a.label("L_c3")
        self.c_setup(True)
        a("s_mov_b32 s%d, 0" % S_C)
        a("s_mov_b32 s%d, 0" % S_SLOT)
        a("s_mov_b32 s%d, 0" % S_PASS)
        a("s_waitcnt lgkmcnt(0)")
        a("s_barrier")
        if "nopf" not in self.exp: self.prefetch_b()
        a.label("L_pass3")
        self.c_loop(True)
        a("s_cmp_lg_u32 s%d, 0" % S_PASS)
        a("s_cbranch_scc1 L_passB3_done")
        if "nopf" not in self.exp: self.prefetch_wsp()
        self.dft_store(0)
        a("s_barrier")
        a("v_mov_b32 v6, 0")
        a("buffer_load_dword a8, v6, s[%d:%d], 0 offen sc1" % (SRD_DBG, SRD_DBG + 3))
        if "nopf" not in self.exp: self.prefetch_wout()
        a("s_mov_b32 s%d, 1" % S_PASS)
        a("s_branch L_pass3")
        a.label("L_passB3_done")
        self.dft_store(1)
        a("s_waitcnt vmcnt(0)")
        a("v_accvgpr_read_b32 v39, a8")
        self.nonce_from(39)
        self.flag_store(1, 3)
        a("s_barrier")
        if "b3b" in self.exp: a("s_barrier")
        a.label("L_c_join")

    def fix_x_after_pass(self):
        a = self.a
        a("v_subrev_u32 v%d, 8192, v%d" % (self.C_XA, self.C_XA))
        a("v_subrev_u32 v%d, 8192, v%d" % (self.C_XA + 1, self.C_XA + 1))

    def capture(self, fn):
        save = self.a
        tmp = Asm(); tmp.uid = save.uid + 1000
        self.a = tmp
        fn()
        self.a = save
        save.uid = tmp.uid
        return [i.text for i in tmp.ins]

    def h_loop(self, k0):
        a = self.a
        consts = self.capture(self.fft_consts) if (k0 == 8 and "nofft" not in self.exp) else []
        per = (len(consts) + 7) // 8
        st = self.stage_loads() if k0 == 8 else []
        nst = 0
        for k in range(k0, k0 + 8):
            if k + 1 <= 15 and "hnowait" not in self.exp:
                younger = 4 * (min(k + 3, 15) - (k + 1))
                if k >= 12:
                    lab = a.newlabel("hw")
                    a("s_cmp_ge_u32 s%d, 2" % S_HW)
                    a("s_cbranch_scc1 %s_b" % lab)
                    a("s_waitcnt vmcnt(%d)" % (younger + nst))
                    a("s_branch %s_d" % lab)
                    a.label(lab + "_b")
                    a("s_cmp_eq_u32 s%d, 2" % S_HW)
                    a("s_cbranch_scc1 %s_c" % lab)
                    a("s_waitcnt vmcnt(%d)" % younger)
                    a("s_branch %s_d" % lab)
                    a.label(lab + "_c")
                    a("s_waitcnt vmcnt(%d)" % (younger + (16 if k >= 14 else 0)))
                    a.label(lab + "_d")
                else:
                    a("s_waitcnt vmcnt(%d)" % younger)
            a("s_barrier")
            if k + 4 <= 15: self.dma_chunk(k + 4)
            if k == 13:
                lab = a.newlabel("si")
                a("s_cmp_lg_u32 s%d, 2" % S_HW)
                a("s_cbranch_scc1 %s" % lab)
                self.stats2_issue()
                a.label(lab)
            if k == 15:
                lab = a.newlabel("si")
                a("s_cmp_lg_u32 s%d, 2" % S_HW)
                a("s_cbranch_scc1 %s" % lab)
                self.stats2_consume()
                a.label(lab)
            if k == 11:
                self.wsp_voffsets(120)
                a("s_lshl_b32 s%d, s%d, 18" % (S_T1, S_MB))
                a("s_lshl_b32 s3, s%d, 10" % S_HW)
                a("s_add_u32 s%d, s%d, s3" % (S_T1, S_T1))
                a("s_add_u32 s67, s%d, %d" % (S_T1, 2 * 256))
                a("s_add_u32 s68, s%d, %d" % (S_T1, 3 * 256))
                a("s_add_u32 s69, s%d, %d" % (S_T1, 2 * 1024 + 2 * 256))
            if k0 == 0: continue
            lab = a.newlabel("role")
            a("s_cmp_lt_u32 s%d, 2" % S_HW)
            a("s_cbranch_scc1 %s_s" % lab)
            if consts:
                for t in consts[(k - k0) * per:(k - k0 + 1) * per]: a(t)
            a("s_branch %s_d" % lab)
            a.label(lab + "_s")
            if st and k >= 12:
                n = 12
                for t in st[2 * nst:2 * (nst + n)]: a(t)
                nst += n
            a.label(lab + "_d")

    def stats2_publish(self):
        a = self.a
        E = 16
        a("v_lshlrev_b32 v8, 3, v%d" % V_JL)
        a("v_add_u32 v8, %d, v8" % LDS_T4)
        for w in range(3):
            for st in range(2):
                d = E + w * 4 + st * 2
                a("ds_read_b64 v[%d:%d], v8 offset:%d" % (d, d + 1, w * 512 + st * 256))
        a("s_waitcnt lgkmcnt(0)")
        for w in range(1, 3):
            for st in range(2):
                a("v_pk_add_f32 v[%d:%d], v[%d:%d], v[%d:%d]" % (E + st * 2, E + st * 2 + 1, E + st * 2, E + st * 2 + 1, E + w * 4 + st * 2, E + w * 4 + st * 2 + 1))
        for st in range(2):
            o = 32 + 4 * st
            a("v_mov_b32 v%d, v%d" % (o, E + 2 * st))
            a("v_mov_b32 v%d, s%d" % (o + 1, S_NONCE))
            a("v_mov_b32 v%d, v%d" % (o + 2, E + 2 * st + 1))
            a("v_mov_b32 v%d, s%d" % (o + 3, S_NONCE))
        a("s_lshl_b32 s%d, s%d, 3" % (S_T0, S_MB))
        a("s_add_u32 s%d, s%d, s%d" % (S_T0, S_T0, S_J))
        a("s_lshl_b32 s%d, s%d, 10" % (S_T0, S_T0))
        a("s_add_u32 s%d, s%d, 0x%x" % (S_T0, S_T0, WS_STATS))
        a("v_lshlrev_b32 v8, 4, v%d" % V_JL)
        a("s_mov_b32 exec_hi, 0")
        a("buffer_store_dwordx4 v[32:35], v8, s[%d:%d], s%d offen sc1" % (SRD_WS, SRD_WS + 3, S_T0))
        a("buffer_store_dwordx4 v[36:39], v8, s[%d:%d], s%d offen offset:512 sc1" % (SRD_WS, SRD_WS + 3, S_T0))
        a("s_mov_b64 exec, -1")

    ST = 48
    def stats2_issue(self):
        a = self.a
        a("s_lshl_b32 s%d, s%d, 13" % (S_T0, S_MB))
        a("s_add_u32 s%d, s%d, 0x%x" % (S_T0, S_T0, WS_STATS))
        a("v_lshlrev_b32 v8, 4, v%d" % V_JL)
        for jj in range(8):
            for st in range(2):
                r = self.ST + (jj * 2 + st) * 4
                a("buffer_load_dwordx4 v[%d:%d], v8, s[%d:%d], s%d offen offset:%d sc1" % (r, r + 3, SRD_WS, SRD_WS + 3, S_T0, st * 512))
            if jj < 7: a("s_add_u32 s%d, s%d, 1024" % (S_T0, S_T0))

    def stats2_consume(self):
        a = self.a
        lab = a.newlabel("sc")
        a("s_mov_b32 s%d, 0" % S_SPIN)
        a.label(lab)
        a("s_waitcnt vmcnt(0)")
        a("s_mov_b64 s[%d:%d], 0" % (S_EX, S_EX + 1))
        for g in range(16):
            r = self.ST + 4 * g
            a("v_cmp_ne_u32 vcc, s%d, v%d" % (S_NONCE, r + 1))
            a("s_or_b64 s[%d:%d], s[%d:%d], vcc" % (S_EX, S_EX + 1, S_EX, S_EX + 1))
            a("v_cmp_ne_u32 vcc, s%d, v%d" % (S_NONCE, r + 3))
            a("s_or_b64 s[%d:%d], s[%d:%d], vcc" % (S_EX, S_EX + 1, S_EX, S_EX + 1))
        a("s_cmp_eq_u64 s[%d:%d], 0" % (S_EX, S_EX + 1))
        a("s_cbranch_scc1 %s_ok" % lab)
        a("s_add_u32 s%d, s%d, 1" % (S_SPIN, S_SPIN))
        a("s_cmp_gt_u32 s%d, 0x8000" % S_SPIN)
        a("s_cbranch_scc1 %s_ok" % lab)
        self.stats2_issue()
        a("s_branch %s" % lab)
        a.label(lab + "_ok")
        for st in range(2):
            b = self.ST + 4 * st
            for jj in range(1, 8):
                r = self.ST + (jj * 2 + st) * 4
                a("v_add_f32 v%d, v%d, v%d" % (b, b, r))
                a("v_add_f32 v%d, v%d, v%d" % (b + 2, b + 2, r + 2))
        for st in range(2):
            b = self.ST + 4 * st
            self.mean_rstd(b, b + 2, 688, 112 + 2 * st, 113 + 2 * st, 116)
        a("v_lshlrev_b32 v8, 3, v%d" % V_JL)
        a("v_add_u32 v8, %d, v8" % LDS_T5)
        a("ds_write_b64 v8, v[112:113]")
        a("ds_write_b64 v8, v[114:115] offset:256")
        a("s_waitcnt lgkmcnt(0)")

    def angles(self, n_list, tq, base, dst):
        a = self.a
        for idx, n in enumerate(n_list):
            if n == 0: a("v_mov_b32 v%d, v%d" % (dst + idx, base))
            else: a("v_fmamk_f32 v%d, v%d, 0x%x, v%d" % (dst + idx, tq, f2u(float(n)), base))

    H_T1F, H_8H = 46, 47
    def fft_consts(self):
        a = self.a
        T = 16
        a("v_bfe_u32 v%d, v%d, 2, 1" % (T, V_JL))
        a("v_lshlrev_b32 v%d, 4, v%d" % (T, T))
        a("v_bfe_u32 v%d, v%d, 3, 2" % (T + 1, V_JL))
        a("v_lshl_or_b32 v%d, v%d, 2, v%d" % (T, T + 1, T))
        a("v_and_b32 v%d, 3, v%d" % (T + 1, V_JL))
        a("v_or_b32 v%d, v%d, v%d" % (T, T, T + 1))
        a("v_cvt_f32_u32 v%d, v%d" % (self.H_T1F, T))
        a("v_cvt_f32_u32 v%d, v%d" % (self.H_8H, V_H))
        a("v_mul_f32 v%d, 0x%x, v%d" % (self.H_8H, f2u(8.0), self.H_8H))
        a("v_mul_f32 v%d, 0x%x, v%d" % (T + 2, f2u(1.0 / 32), self.H_T1F))
        a("v_mul_f32 v%d, v%d, v%d" % (T + 3, T + 2, self.H_8H))
        A = T + 4; C = T + 12; S = T + 20
        for ks in range(2):
            self.angles([16 * ks + i for i in range(8)], T + 2, T + 3, A)
            for i in range(8): a("v_fract_f32 v%d, v%d" % (A + i, A + i))
            for i in range(8):
                a("v_cos_f32 v%d, v%d" % (C + i, A + i))
                a("v_sin_f32 v%d, v%d" % (S + i, A + i))
            for p in range(4):
                a("v_cvt_pk_bf16_f32 v%d, v%d, v%d" % (A + 0, C + 2 * p, C + 2 * p + 1))
                a("v_cvt_pk_bf16_f32 v%d, -v%d, -v%d" % (A + 1, S + 2 * p, S + 2 * p + 1))
                a("v_cvt_pk_bf16_f32 v%d, v%d, v%d" % (A + 2, S + 2 * p, S + 2 * p + 1))
                a("v_accvgpr_write_b32 a%d, v%d" % (4 * ks + p, A + 0))
                a("v_accvgpr_write_b32 a%d, v%d" % (8 + 4 * ks + p, A + 1))
                a("v_accvgpr_write_b32 a%d, v%d" % (16 + 4 * ks + p, A + 2))
        a("v_accvgpr_write_b32 a60, v%d" % self.H_T1F)
        a("v_accvgpr_write_b32 a61, v%d" % self.H_8H)
        a("s_sub_u32 s3, s%d, 2" % S_HW)
        a("s_lshl_b32 s3, s3, 5")
        a("v_add_u32 v%d, s3, v%d" % (T + 2, V_JL))
        a("v_cvt_f32_u32 v%d, v%d" % (T + 2, T + 2))
        a("v_mul_f32 v%d, 0x%x, v%d" % (T + 2, f2u(1.0 / 64), T + 2))
        a("v_mul_f32 v%d, v%d, v%d" % (T + 3, T + 2, self.H_8H))
        for kt in range(2):
            for kp in range(2):
                self.angles([32 * kt + 16 * kp + i for i in range(8)], T + 2, T + 3, A)
                for i in range(8): a("v_fract_f32 v%d, v%d" % (A + i, A + i))
                for i in range(8):
                    a("v_cos_f32 v%d, v%d" % (C + i, A + i))
                    a("v_sin_f32 v%d, v%d" % (S + i, A + i))
                for p in range(4):
                    a("v_cvt_pk_bf16_f32 v%d, v%d, v%d" % (A + 0, C + 2 * p, C + 2 * p + 1))
                    a("v_cvt_pk_bf16_f32 v%d, v%d, v%d" % (A + 1, S + 2 * p, S + 2 * p + 1))
                    a("v_accvgpr_write_b32 a%d, v%d" % (24 + 16 * kt + 4 * kp + p, A + 0))
                    a("v_accvgpr_write_b32 a%d, v%d" % (24 + 16 * kt + 8 + 4 * kp + p, A + 1))

    def p1_helper(self):
        a = self.a
        a("s_mov_b32 s%d, 0" % S_C)
        a("v_mov_b32 v6, 0")
        a("buffer_load_dword v%d, v6, s[%d:%d], 0 offen sc1" % (self.V_NON, SRD_DBG, SRD_DBG + 3))
        a("s_waitcnt vmcnt(13) lgkmcnt(0)")
        a("s_barrier")
        self.h_loop(0)
        self.nonce_from(self.V_NON)
        a("s_barrier")
        a("s_cmp_lg_u32 s%d, 0" % S_HW)
        a("s_cbranch_scc1 L_h_nopub")
        self.stats2_publish()
        a.label("L_h_nopub")
        self.h_loop(8)
        self.stamp(22)
        a("s_barrier")
        if "b3b" in self.exp: a("s_barrier")

    G_B = 16
    G_VB = 10
    G_VZ = 32
    G_L16 = 35
    G_BS = 36
    G_RV = 40
    def ring_reg(self, f):
        if f < 8: return "a[%d:%d]" % (96 + 4 * f, 96 + 4 * f + 3)
        r = self.G_RV + 4 * (f - 8)
        return "v[%d:%d]" % (r, r + 3)

    def g_compute(self):
        a = self.a
        a("v_lshlrev_b32 v%d, 4, v%d" % (self.G_L16, V_LANE))
        a("v_and_b32 v5, 15, v%d" % V_SIG)
        a("v_xor_b32 v5, v5, v%d" % V_H)
        a("v_lshlrev_b32 v5, 4, v5")
        a("v_lshl_add_u32 v5, v%d, 8, v5" % V_SIG)
        a("s_lshl_b32 s3, s%d, 15" % S_W)
        a("v_add_u32 v104, s3, v5")
        for k in range(1, 8): a("v_xor_b32 v%d, %d, v104" % (104 + k, k * 32))
        a("s_sub_u32 s%d, s%d, 64" % (S_T2, S_WID))
        for tau in range(3):
            a("s_add_u32 s%d, s%d, %d" % (S_T0, S_W, tau))
            a("s_cmp_ge_u32 s%d, 3" % S_T0)
            a("s_cselect_b32 s%d, 3, 0" % S_T1)
            a("s_sub_u32 s%d, s%d, s%d" % (S_T0, S_T0, S_T1))
            a("s_lshl_b32 s%d, s%d, 10" % (S_T1, S_T0))
            a("v_add_u32 v5, s%d, v%d" % (S_T1, self.G_L16))
            a("v_mov_b32 v6, 0x%x" % OOB)
            a("v_cmp_le_u32 vcc, s%d, v%d" % (S_T2, V_SIG))
            a("s_cmp_eq_u32 s%d, 2" % S_T0)
            a("s_cselect_b64 s[%d:%d], vcc, 0" % (S_EX, S_EX + 1))
            a("v_cndmask_b32 v%d, v5, v6, s[%d:%d]" % (self.G_VZ + tau, S_EX, S_EX + 1))
        a("s_lshl_b32 s3, s%d, 5" % S_J)
        a("s_lshl_b32 s%d, s%d, 3" % (S_T0, S_W))
        a("s_add_u32 s3, s3, s%d" % S_T0)
        a("v_add_u32 v38, s3, v%d" % V_LANE)
        a("v_lshlrev_b32 v38, 7, v38")
        a("v_add_u32 v38, 0x%x, v38" % (WS_FLAG + 256 * 128))
        a("s_lshl_b32 s%d, s%d, 7" % (S_B0, S_J))
        a("s_lshl_b32 s3, s%d, 5" % S_W)
        a("s_add_u32 s%d, s%d, s3" % (S_B0, S_B0))
        a("s_mov_b32 s%d, 0" % S_RHO)
        for cc in range(4):
            a("s_add_u32 s3, s%d, %d" % (S_RHO, cc))
            a("s_and_b32 s3, s3, 3")
            a("s_lshl_b32 s3, s3, 3")
            a("s_add_u32 s3, s3, s%d" % S_B0)
            a("s_mul_i32 s3, s3, 3072")
            a("s_add_u32 s%d, s3, 0x%x" % (67 + cc, WS_Z2N))
        a("v_accvgpr_read_b32 v%d, a9" % self.G_BS)
        a("v_accvgpr_read_b32 v%d, a10" % (self.G_BS + 1))
        self.poll_flags_n(38, 8, 3, 16)
        self.stamp(8)
        self.stamp(26)
        vq = VQ(a)
        def zload(n):
            a("s_add_u32 s%d, s%d, %d" % (S_T0, 67 + n // 8, (n % 8) * 3072))
            for tau in range(3):
                f = (n % 8) * 3 + tau
                a("buffer_load_dwordx4 %s, v%d, s[%d:%d], s%d offen %s" % (self.ring_reg(f), self.G_VZ + tau, SRD_WS, SRD_WS + 3, S_T0, "" if "gplain" in self.exp else "sc1"))
                vq.issue(("z", n))
        for n in range(8): zload(n)
        B = self.G_B
        SY_FREE = LDS_SY + 0
        SY_LAND = LDS_SY + 16
        a("s_lshl_b32 s3, s%d, 2" % S_W)
        a("s_add_u32 s3, s3, %d" % LDS_SY)
        a("v_mov_b32 v14, s3")
        def land_check(cnt):
            lab = a.newlabel("ld")
            a("s_mov_b32 s%d, 0" % S_SPIN)
            a.label(lab)
            a("ds_read_b32 v15, v14 offset:16")
            a("s_waitcnt lgkmcnt(0)")
            a("v_readfirstlane_b32 s%d, v15" % S_T1)
            a("s_add_u32 s%d, s%d, 1" % (S_SPIN, S_SPIN))
            a("s_cmp_gt_u32 s%d, 0x100000" % S_SPIN)
            a("s_cbranch_scc1 %s_x" % lab)
            a("s_cmp_lt_u32 s%d, %d" % (S_T1, cnt))
            a("s_cbranch_scc1 %s" % lab)
            a.label(lab + "_x")
        def bread(n, st):
            cc, k = divmod(n, 8)
            r = B + (n & 1) * 8 + st * 4
            return "ds_read_b128 v[%d:%d], v%d offset:%d" % (r, r + 3, 104 + k, (cc & 1) * 16384 + st * 8192)
        if "cprio" in self.exp: a("s_setprio 1")
        land_check(1)
        a(bread(0, 0)); a(bread(0, 1))
        for n in range(32):
            cc, k = divmod(n, 8)
            buf = n & 1
            vq.wait(("z", n))
            nxt = n + 1 < 32
            if nxt and (n + 1) % 8 == 0 and (n + 1) // 8 >= 1 and "gnoland" not in self.exp:
                a("s_waitcnt lgkmcnt(0)")
                land_check((n + 1) // 8 + 1)
            else:
                a("s_waitcnt lgkmcnt(0)")
            fill = []
            if nxt: fill += [bread(n + 1, 0), bread(n + 1, 1)]
            zl = []
            if n + 8 < 32:
                zl.append("s_add_u32 s%d, s%d, %d" % (S_T0, 67 + (n + 8) // 8, ((n + 8) % 8) * 3072))
            mi = 0
            for tau in range(3):
                for st in range(2):
                    D = (tau * 2 + st) * 16
                    Br = B + buf * 8 + st * 4
                    cc_ = "0" if n == 0 else "a[%d:%d]" % (D, D + 15)
                    a("v_mfma_f32_32x32x16_bf16 a[%d:%d], %s, v[%d:%d], %s" % (D, D + 15, self.ring_reg((n % 8) * 3 + tau), Br, Br + 3, cc_))
                    if mi == 0:
                        for f in fill: a(f)
                        for f in zl: a(f)
                    if st == 1 and n + 8 < 32 and "gnoz" not in self.exp:
                        f = (n % 8) * 3 + tau
                        a("buffer_load_dwordx4 %s, v%d, s[%d:%d], s%d offen %s" % (self.ring_reg(f), self.G_VZ + tau, SRD_WS, SRD_WS + 3, S_T0, "" if "gplain" in self.exp else "sc1"))
                        vq.issue(("z", n + 8))
                    mi += 1
            if k == 7 and cc < 2:
                a("v_mov_b32 v15, %d" % (cc + 1))
                a("ds_write_b32 v14, v15")
        if "cprio" in self.exp: a("s_setprio 0")
        self.stamp(27)
        self.stamp(10)
        self.g_reduce()

    def wsp_dma16(self, cc, sbase, slds):
        a = self.a
        for q in range(16):
            a("s_add_u32 s%d, s%d, %d" % (S_T0, 67 + cc, q * 4 * 4096))
            a("s_add_u32 m0, s%d, %d" % (slds, (cc & 1) * 16384 + q * 1024))
            a("buffer_load_dwordx4 v%d, s[%d:%d], s%d offen lds" % (16 + (q & 3), SRD_WSP, SRD_WSP + 3, S_T0))

    def wsp_voffsets(self, base):
        a = self.a
        L = V_LANE
        a("v_lshrrev_b32 v5, 4, v%d" % L)
        a("v_and_b32 v6, 15, v%d" % L)
        for qq in range(4):
            a("v_add_u32 v7, %d, v5" % (4 * qq))
            a("v_xor_b32 v7, v7, v6")
            a("v_lshlrev_b32 v7, 4, v7")
            a("v_lshl_add_u32 v%d, v5, 12, v7" % (base + qq))

    def stage_reg(self, unit, q):
        if unit < 2:
            r = unit * 64 + 4 * q
            return "a[%d:%d]" % (r, r + 3)
        r = 32 + 4 * q
        return "v[%d:%d]" % (r, r + 3)

    def stage_loads(self):
        out = []
        for unit in range(3):
            for q in range(16):
                out.append("s_add_u32 s%d, s%d, %d" % (S_T0, 67 + unit, q * 4 * 4096))
                out.append("buffer_load_dwordx4 %s, v%d, s[%d:%d], s%d offen" % (self.stage_reg(unit, q), 120 + (q & 3), SRD_WSP, SRD_WSP + 3, S_T0))
        return out

    def g_helper(self):
        a = self.a
        L = V_LANE
        self.wsp_voffsets(16)
        a("s_lshl_b32 s%d, s%d, 18" % (S_B0, S_MB))
        a("s_lshl_b32 s3, s%d, 10" % S_HW)
        a("s_add_u32 s%d, s%d, s3" % (S_B0, S_B0))
        a("s_mov_b32 s70, s%d" % S_B0)
        a("s_add_u32 s71, s%d, 256" % S_B0)
        a("s_lshl_b32 s%d, s%d, 15" % (S_T3, S_HW))
        for cc in range(2):
            for q in range(16):
                a("s_add_u32 s%d, s%d, %d" % (S_T0, 70 + cc, q * 4 * 4096))
                a("s_add_u32 m0, s%d, %d" % (S_T3, cc * 16384 + q * 1024))
                a("buffer_load_dwordx4 v%d, s[%d:%d], s%d offen lds" % (16 + (q & 3), SRD_WSP, SRD_WSP + 3, S_T0))
        a("s_lshl_b32 s3, s%d, 2" % S_HW)
        a("s_add_u32 s3, s3, %d" % LDS_SY)
        a("v_mov_b32 v12, s3")
        def wait_free(off, cnt):
            lab = a.newlabel("fr")
            a("s_mov_b32 s%d, 0" % S_SPIN)
            a.label(lab)
            a("ds_read_b32 v5, v12 offset:%d" % off)
            a("s_waitcnt lgkmcnt(0)")
            a("v_readfirstlane_b32 s%d, v5" % S_T0)
            a("s_add_u32 s%d, s%d, 1" % (S_SPIN, S_SPIN))
            a("s_cmp_gt_u32 s%d, 0x100000" % S_SPIN)
            a("s_cbranch_scc1 %s_x" % lab)
            a("s_cmp_lt_u32 s%d, %d" % (S_T0, cnt))
            a("s_cbranch_scc0 %s_x" % lab)
            a("s_sleep 1")
            a("s_branch %s" % lab)
            a.label(lab + "_x")
        a("s_cmp_ge_u32 s%d, 2" % S_HW)
        a("s_cbranch_scc1 L_gh_fft")
        for (n, val) in ((16, 1), (0, 2)):
            a("s_waitcnt vmcnt(%d)" % n)
            a("v_mov_b32 v6, %d" % val)
            a("ds_write_b32 v12, v6 offset:16")
        a("v_lshlrev_b32 v13, 4, v%d" % L)
        a("s_lshl_b32 s3, s%d, 15" % S_HW)
        a("v_add_u32 v13, s3, v13")
        a("v_add_u32 v14, 65536, v13")
        def put(unit, vaddr, slot, landoff, cnt):
            for q in range(16 if "noput" not in self.exp else 0):
                a("ds_write_b128 v%d, %s offset:%d" % (vaddr, self.stage_reg(unit, q), slot * 16384 + q * 1024))
            a("v_mov_b32 v6, %d" % cnt)
            a("s_waitcnt lgkmcnt(0)")
            a("ds_write_b32 v12, v6 offset:%d" % landoff)
        wait_free(0, 1); put(0, 13, 0, 16, 3)
        for q in range(16):
            a("s_add_u32 s%d, s69, %d" % (S_T0, 256 + q * 4 * 4096))
            a("buffer_load_dwordx4 a[%d:%d], v%d, s[%d:%d], s%d offen" % (4 * q, 4 * q + 3, 120 + (q & 3), SRD_WSP, SRD_WSP + 3, S_T0))
        wait_free(8, 1); put(2, 14, 0, 24, 3)
        wait_free(0, 2); put(1, 13, 1, 16, 4)
        wait_free(8, 2)
        a("s_waitcnt vmcnt(0)")
        put(0, 14, 1, 24, 4)
        a("s_branch L_gh_done")
        a.label("L_gh_fft")
        for (n, val) in ((16, 1), (0, 2)):
            a("s_waitcnt vmcnt(%d)" % n)
            a("v_mov_b32 v6, %d" % val)
            a("ds_write_b32 v12, v6 offset:16")
        if "nofft" not in self.exp:
            if "fftprio0" not in self.exp: a("s_setprio 3")
            self.fft()
            a("s_setprio 0")
        a("s_waitcnt vmcnt(0)")
        a("s_sub_u32 s%d, s%d, 2" % (S_T1, S_HW))
        self.flag_store(3, 0, S_T1)
        self.stamp(19)
        a.label("L_gh_done")
        self.stamp(9)
        a("v_lshrrev_b32 v5, 3, v%d" % L)
        a("v_and_b32 v6, 7, v%d" % L)
        a("v_bfe_u32 v7, v%d, 4, 1" % L)
        a("v_lshlrev_b32 v7, 2, v7")
        a("v_xor_b32 v6, v6, v7")
        a("v_lshlrev_b32 v6, 4, v6")
        a("v_lshl_add_u32 v9, v5, 10, v6")
        a("s_lshl_b32 s3, s%d, 7" % S_J)
        a("v_add_u32 v9, s3, v9")
        def wo(g):
            a("s_mov_b32 m0, %d" % (LDS_WO + g * 1024))
            a("s_mov_b32 s%d, %d" % (S_T0, g * 8192))
            a("buffer_load_dwordx4 v9, s[%d:%d], s%d offen lds" % (SRD_WOUT, SRD_WOUT + 3, S_T0))
        early = {2: list(range(56, 64)) + list(range(75, 81)), 3: list(range(64, 72)) + list(range(81, 88))}
        done = set(early[2]) | set(early[3])
        rest = [g for g in range(88) if g not in done]
        assert LDS_SY + 64 <= LDS_WO + 75 * 1024 and LDS_AT >= LDS_WO + 75 * 1024
        for hw in (2, 3):
            lab = a.newlabel("wo")
            a("s_cmp_lg_u32 s%d, %d" % (S_HW, hw))
            a("s_cbranch_scc1 %s" % lab)
            for g in early[hw]: wo(g)
            a.label(lab)
        a("s_barrier")
        n = len(rest)
        per = (n + 3) // 4
        for hw in range(4):
            mine = rest[hw * per:(hw + 1) * per]
            lab = a.newlabel("wo")
            a("s_cmp_lg_u32 s%d, %d" % (S_HW, hw))
            a("s_cbranch_scc1 %s" % lab)
            for g in mine: wo(g)
            a.label(lab)
        a("s_barrier")
        self.final_pre()
        a("s_waitcnt vmcnt(0)")
        self.stamp(23)
        a("s_barrier")
        self.y_to_lds()
        a("s_barrier")
        self.stamp(6)
        self.final_h()

    def fft(self):
        a = self.a
        a("v_accvgpr_read_b32 v10, a60")
        a("v_accvgpr_read_b32 v11, a61")
        a("s_lshl_b32 s3, s%d, 5" % S_J)
        a("v_add_u32 v12, s3, v%d" % V_LANE)
        a("v_lshlrev_b32 v12, 7, v12")
        a("v_add_u32 v12, 0x%x, v12" % (WS_FLAG + 256 * 128 + 12))
        self.poll_flags_n(12, 32, 1, 16)
        a("v_lshlrev_b32 v13, 4, v%d" % V_LANE)
        a("s_lshl_b32 s3, s%d, 13" % S_L)
        a("s_add_u32 s3, s3, 0x%x" % WS_AB)
        X = 32
        for i in range(8):
            a("buffer_load_dwordx4 v[%d:%d], v13, s[%d:%d], s3 offen sc1" % (X + 4 * i, X + 4 * i + 3, SRD_WS, SRD_WS + 3))
            if i < 7: a("s_add_u32 s3, s3, 1024")
        a("s_sub_u32 s%d, s%d, 2" % (S_T1, S_HW))
        a("s_lshl_b32 s%d, s%d, 13" % (S_T2, S_T1))
        a("s_add_u32 s%d, s%d, %d" % (S_T2, S_T2, LDS_FX))
        a("v_add_u32 v14, s%d, v13" % S_T2)
        a("v_bfe_u32 v7, v%d, 2, 2" % V_LANE)
        a("v_lshl_add_u32 v7, v%d, 3, v7" % V_H)
        a("v_lshlrev_b32 v7, 7, v7")
        a("v_bfe_u32 v8, v%d, 4, 1" % V_LANE)
        a("v_lshlrev_b32 v8, 5, v8")
        a("v_and_b32 v9, 1, v%d" % V_LANE)
        a("v_lshl_add_u32 v8, v9, 4, v8")
        a("v_bfe_u32 v9, v%d, 1, 1" % V_LANE)
        a("v_lshl_add_u32 v8, v9, 3, v8")
        a("v_add_u32 v7, v7, v8")
        a("v_add_u32 v15, s%d, v7" % S_T2)
        a("s_waitcnt vmcnt(0)")
        for i in range(8):
            a("ds_write_b128 v14, v[%d:%d] offset:%d" % (X + 4 * i, X + 4 * i + 3, i * 1024))
        URE, UIM, A1, TC, TS, A2 = 32, 48, 16, 64, 80, 104
        D2 = 64
        def mm(D, A, B, first, dfile="v", afile="v", bfile="a"):
            a("v_mfma_f32_32x32x16_bf16 %s[%d:%d], %s[%d:%d], %s[%d:%d], %s" % (dfile, D, D + 15, afile, A, A + 3, bfile, B, B + 3, "0" if first else "%s[%d:%d]" % (dfile, D, D + 15)))
        for kt in range(2):
            a("v_mul_f32 v12, 0x%x, v10" % (f2u(1.0 / 2048)))
            a("v_mul_f32 v13, v12, v11")
            if kt == 0: a("s_waitcnt lgkmcnt(0)")
            for ks in range(4):
                for q in range(2):
                    r = A1 + 4 * ks + 2 * q
                    a("ds_read_b64_tr_b16 v[%d:%d], v15 offset:%d" % (r, r + 1, (ks >> 1) * 4096 + (ks & 1) * 2048 + q * 512 + kt * 64))
            for half in range(2):
                self.angles([32 * kt + 16 * half + i for i in range(8)], 12, 13, 120)
                for i in range(8):
                    a("v_cos_f32 v%d, v%d" % (TC + 8 * half + i, 120 + i))
                    a("v_sin_f32 v%d, v%d" % (TS + 8 * half + i, 120 + i))
            a("s_waitcnt lgkmcnt(0)")
            FRE, FIM, NFIM = 0, 8, 16
            mm(URE, A1, FRE, True); mm(UIM, A1, FIM, True)
            mm(URE, A1 + 4, FRE + 4, False); mm(UIM, A1 + 4, FIM + 4, False)
            mm(URE, A1 + 8, NFIM, False); mm(UIM, A1 + 8, FRE, False)
            mm(URE, A1 + 12, NFIM + 4, False); mm(UIM, A1 + 12, FRE + 4, False)
            for p in range(8):
                t0 = 96 + (p % 2) * 4
                for e in range(2):
                    re, im, c, s_ = URE + 2 * p + e, UIM + 2 * p + e, TC + 2 * p + e, TS + 2 * p + e
                    a("v_mul_f32 v%d, v%d, v%d" % (t0 + e, im, s_))
                    a("v_mul_f32 v%d, v%d, v%d" % (t0 + 2 + e, re, s_))
                    a("v_fmac_f32 v%d, v%d, v%d" % (t0 + e, re, c))
                    a("v_fma_f32 v%d, v%d, v%d, -v%d" % (t0 + 2 + e, im, c, t0 + 2 + e))
                a("v_cvt_pk_bf16_f32 v%d, v%d, v%d" % (A2 + p, t0, t0 + 1))
                a("v_cvt_pk_bf16_f32 v%d, v%d, v%d" % (A2 + 8 + p, t0 + 2, t0 + 3))
            G = 24 + 16 * kt
            mm(D2, A2, G, kt == 0, dfile="a"); mm(D2, A2 + 4, G + 4, False, dfile="a")
            mm(D2, A2 + 8, G + 8, False, dfile="a"); mm(D2, A2 + 12, G + 12, False, dfile="a")
        a("v_lshlrev_b32 v6, 7, v%d" % V_JL)
        a("v_lshl_add_u32 v6, v%d, 6, v6" % V_H)
        a("v_add_u32 v6, s%d, v6" % S_T2)
        for q in range(4):
            a("ds_write_b128 v6, a[%d:%d] offset:%d" % (D2 + 4 * q, D2 + 4 * q + 3, q * 16))
        a("s_waitcnt lgkmcnt(0)")
        for q in range(4):
            a("ds_read_b128 v[%d:%d], v14 offset:%d" % (32 + 4 * q, 35 + 4 * q, q * 1024))
        a("s_cmp_eq_u32 s%d, 0" % S_L)
        a("s_cselect_b32 s%d, 256, s%d" % (S_T0, S_L))
        a("s_lshl_b32 s%d, s%d, 13" % (S_T0, S_T0))
        a("s_lshl_b32 s3, s%d, 12" % S_T1)
        a("s_add_u32 s3, s3, s%d" % S_T0)
        a("s_add_u32 s3, s3, 0x%x" % WS_YT)
        a("v_lshlrev_b32 v6, 4, v%d" % V_LANE)
        a("v_lshlrev_b32 v7, 4, v%d" % V_LANE)
        a("v_sub_u32 v7, %d, v7" % (4096 - 12))
        a("v_add_u32 v7, s%d, v7" % S_T2)
        for i in range(4):
            for e in range(4):
                off = 12 - 4 * e - 1024 * i
                if off >= 0: a("ds_read_b32 v%d, v7 offset:%d" % (48 + 4 * i + e, off))
                else: a("ds_read_b32 v%d, v%d offset:%d" % (48 + 4 * i + e, 8, off + 3072))
            if i == 0: a("v_subrev_u32 v8, 3072, v7")
        a("s_waitcnt lgkmcnt(15)")
        a("s_waitcnt lgkmcnt(0)")
        for q in range(4):
            a("buffer_store_dwordx4 v[%d:%d], v6, s[%d:%d], s3 offen offset:%d sc1" % (32 + 4 * q, 35 + 4 * q, SRD_WS, SRD_WS + 3, q * 1024))
        a("s_cmp_eq_u32 s%d, 0" % S_L)
        a("s_cbranch_scc1 L_fft_nomir")
        a("s_sub_u32 s%d, 512, s%d" % (S_T0, S_L))
        a("s_lshl_b32 s%d, s%d, 13" % (S_T0, S_T0))
        a("s_xor_b32 s3, s%d, 1" % S_T1)
        a("s_lshl_b32 s3, s3, 12")
        a("s_add_u32 s3, s3, s%d" % S_T0)
        a("s_add_u32 s3, s3, 0x%x" % WS_YT)
        a("s_mov_b64 exec, 0xfffffffffffffffe" if False else "s_mov_b64 exec, -2")
        a("buffer_store_dwordx4 v[48:51], v6, s[%d:%d], s3 offen sc1" % (SRD_WS, SRD_WS + 3))
        a("s_mov_b64 exec, 1")
        a("buffer_store_dword v49, v6, s[%d:%d], s3 offen offset:4 sc1" % (SRD_WS, SRD_WS + 3))
        a("buffer_store_dwordx2 v[50:51], v6, s[%d:%d], s3 offen offset:8 sc1" % (SRD_WS, SRD_WS + 3))
        a("s_mov_b64 exec, -1")
        for q in range(1, 4):
            a("buffer_store_dwordx4 v[%d:%d], v6, s[%d:%d], s3 offen offset:%d sc1" % (48 + 4 * q, 51 + 4 * q, SRD_WS, SRD_WS + 3, q * 1024))
        a("s_lshl_b32 s3, s%d, 12" % S_T1)
        a("s_add_u32 s3, s3, s%d" % S_T0)
        a("s_add_u32 s3, s3, 0x%x" % WS_YT)
        a("s_mov_b64 exec, 1")
        a("buffer_store_dword v32, v6, s[%d:%d], s3 offen sc1" % (SRD_WS, SRD_WS + 3))
        a("s_mov_b64 exec, -1")
        a.label("L_fft_nomir")

    def g_reduce(self):
        a = self.a
        L16 = self.G_L16
        a("s_barrier")
        self.stamp(16)
        for tau in (1, 2, 0):
            if tau == 0:
                a("s_cmp_lg_u32 s%d, 3" % S_W)
                a("s_cbranch_scc1 L_exp_done")
            a("s_add_u32 s%d, s%d, %d" % (S_T0, S_W, tau))
            a("s_cmp_ge_u32 s%d, 3" % S_T0)
            a("s_cselect_b32 s%d, 3, 0" % S_T1)
            a("s_sub_u32 s%d, s%d, s%d" % (S_T0, S_T0, S_T1))
            a("s_sub_u32 s%d, s%d, s%d" % (S_T1, S_W, S_T0))
            a("s_sub_u32 s%d, s%d, 1" % (S_T1, S_T1))
            a("s_and_b32 s%d, s%d, 3" % (S_T1, S_T1))
            a("s_mul_i32 s%d, s%d, 3" % (S_T0, S_T0))
            a("s_add_u32 s%d, s%d, s%d" % (S_T0, S_T0, S_T1))
            a("s_lshl_b32 s%d, s%d, 13" % (S_T0, S_T0))
            a("v_add_u32 v5, s%d, v%d" % (S_T0, L16))
            for st in range(2):
                for q in range(4):
                    r = (tau * 2 + st) * 16 + 4 * q
                    a("ds_write_b128 v5, a[%d:%d] offset:%d" % (r, r + 3, st * 4096 + q * 1024))
        a.label("L_exp_done")
        a("s_waitcnt lgkmcnt(0)")
        self.stamp(17)
        a("s_barrier")
        self.stamp(11)
        a("s_cmp_eq_u32 s%d, 3" % S_W)
        a("s_cbranch_scc1 L_h_done")
        G = 40
        I = 72
        a("s_mul_i32 s%d, s%d, %d" % (S_T0, S_W, 3 * 8192))
        a("v_add_u32 v5, s%d, v%d" % (S_T0, L16))
        for st in range(2):
            for q in range(4):
                r = G + st * 16 + 4 * q
                a("ds_read_b128 v[%d:%d], v5 offset:%d" % (r, r + 3, 0 * 8192 + st * 4096 + q * 1024))
        for st in range(2):
            for q in range(4):
                r = I + st * 16 + 4 * q
                a("ds_read_b128 v[%d:%d], v5 offset:%d" % (r, r + 3, 1 * 8192 + st * 4096 + q * 1024))
        a("s_waitcnt lgkmcnt(0)")
        for p in range(16): a("v_pk_add_f32 v[%d:%d], v[%d:%d], v[%d:%d]" % (G + 2 * p, G + 2 * p + 1, G + 2 * p, G + 2 * p + 1, I + 2 * p, I + 2 * p + 1))
        for st in range(2):
            for q in range(4):
                r = I + st * 16 + 4 * q
                a("ds_read_b128 v[%d:%d], v5 offset:%d" % (r, r + 3, 2 * 8192 + st * 4096 + q * 1024))
        for i in range(0, 32, 8):
            for k in range(8): a("v_accvgpr_read_b32 v%d, a%d" % (16 + k, i + k))
            for p in range(4): a("v_pk_add_f32 v[%d:%d], v[%d:%d], v[%d:%d]" % (G + i + 2 * p, G + i + 2 * p + 1, G + i + 2 * p, G + i + 2 * p + 1, 16 + 2 * p, 16 + 2 * p + 1))
        a("s_waitcnt lgkmcnt(0)")
        for p in range(16): a("v_pk_add_f32 v[%d:%d], v[%d:%d], v[%d:%d]" % (G + 2 * p, G + 2 * p + 1, G + 2 * p, G + 2 * p + 1, I + 2 * p, I + 2 * p + 1))
        self.stamp(18)
        for st in range(2): a("v_lshlrev_b32 v%d, 16, v%d" % (self.G_BS + st, self.G_BS + st))
        for st in range(2):
            for r in range(8):
                src = self.C_Z1P + 8 * st + r
                g = G + 16 * st + 2 * r
                t = 16 + 2 * (r % 4)
                a("v_lshlrev_b32 v%d, 16, v%d" % (t, src))
                a("v_and_b32 v%d, 0xffff0000, v%d" % (t + 1, src))
                sel = "op_sel:[0,%d] op_sel_hi:[1,%d]" % (st, st)
                a("v_pk_add_f32 v[%d:%d], v[%d:%d], v[%d:%d] %s" % (g, g + 1, g, g + 1, self.G_BS, self.G_BS + 1, sel))
                a("v_pk_mul_f32 v[%d:%d], v[%d:%d], v[%d:%d]" % (g, g + 1, g, g + 1, t, t + 1))
                a("v_cvt_pk_bf16_f32 v%d, v%d, v%d" % (I + 8 * st + r, g, g + 1))
        a("s_mul_i32 s%d, s%d, 96" % (S_T0, S_MB))
        a("s_mul_i32 s%d, s%d, 6" % (S_T1, S_J))
        a("s_add_u32 s%d, s%d, s%d" % (S_T0, S_T0, S_T1))
        a("s_lshl_b32 s%d, s%d, 1" % (S_T1, S_W))
        a("s_add_u32 s%d, s%d, s%d" % (S_T0, S_T0, S_T1))
        a("s_lshl_b32 s%d, s%d, 10" % (S_T0, S_T0))
        a("s_add_u32 s%d, s%d, 0x%x" % (S_T0, S_T0, WS_H))
        for st in range(2):
            for Q in range(2):
                r = I + 8 * st + 4 * Q
                a("s_add_u32 s%d, s%d, %d" % (S_T1, S_T0, (st * 48 + Q) * 1024))
                if "nohstore" not in self.exp: a("buffer_store_dwordx4 v[%d:%d], v%d, s[%d:%d], s%d offen sc1" % (r, r + 3, L16, SRD_WS, SRD_WS + 3, S_T1))
                if "hdouble" in self.exp: a("buffer_store_dwordx4 v[%d:%d], v%d, s[%d:%d], s%d offen" % (r, r + 3, L16, SRD_WS, SRD_WS + 3, S_T1))
        self.stamp(20)
        a("s_waitcnt vmcnt(0)")
        self.stamp(21)
        self.flag_store(2, 0, S_W)
        a.label("L_h_done")
        self.o_pre()
        self.stamp(12)

    def o_pre(self):
        a = self.a
        a("s_lshr_b32 s%d, s%d, 1" % (S_T0, S_W))
        a("s_lshl_b32 s3, s%d, 2" % S_T0)
        a("v_add_u32 v40, s3, v%d" % V_LANE)
        a("v_lshlrev_b32 v40, 5, v40")
        a("v_add_u32 v40, s%d, v40" % S_MB)
        a("v_lshlrev_b32 v40, 7, v40")
        a("v_add_u32 v40, 0x%x, v40" % (WS_FLAG + 2 * 256 * 128))
        a("v_bfe_u32 v5, v%d, 2, 2" % V_LANE)
        a("v_lshl_add_u32 v5, v%d, 3, v5" % V_H)
        a("v_lshlrev_b32 v5, 7, v5")
        a("v_bfe_u32 v6, v%d, 4, 1" % V_LANE)
        a("v_lshlrev_b32 v6, 1, v6")
        a("v_and_b32 v7, 1, v%d" % V_LANE)
        a("v_or_b32 v6, v6, v7")
        a("v_bfe_u32 v7, v%d, 3, 1" % V_LANE)
        a("v_lshlrev_b32 v7, 2, v7")
        a("v_xor_b32 v6, v6, v7")
        a("s_lshl_b32 s3, s%d, 2" % S_T0)
        a("v_xor_b32 v6, s3, v6")
        a("v_bfe_u32 v7, v%d, 1, 1" % V_LANE)
        a("v_lshlrev_b32 v7, 3, v7")
        a("v_add_u32 v5, v5, v7")
        a("s_mul_i32 s3, s%d, %d" % (S_T0, 352 * 128))
        a("s_add_u32 s3, s3, %d" % LDS_WO)
        a("v_add_u32 v5, s3, v5")
        WA = 52
        a("v_lshl_add_u32 v%d, v6, 4, v5" % WA)
        a("v_xor_b32 v6, 4, v6")
        a("v_lshl_add_u32 v%d, v6, 4, v5" % (WA + 1))
        a("s_cmp_eq_u32 s%d, 0" % S_T0)
        a("s_cselect_b32 s3, 8, 0")
        a("s_add_u32 s3, s3, 256")
        a("s_lshl_b32 s3, s3, 7")
        a("v_add_u32 v%d, s3, v%d" % (WA + 2, WA))
        a("v_add_u32 v%d, s3, v%d" % (WA + 3, WA + 1))
        a("s_and_b32 s%d, s%d, 1" % (S_T1, S_W))
        a("s_lshl_b32 s3, s%d, 1" % S_MB)
        a("s_add_u32 s3, s3, s%d" % S_T1)
        a("s_mul_i32 s3, s3, 48")
        a("s_mul_i32 s%d, s%d, 24" % (S_B0, S_T0))
        a("s_add_u32 s%d, s%d, s3" % (S_B0, S_B0))
        a("s_lshl_b32 s%d, s%d, 10" % (S_B0, S_B0))
        a("s_add_u32 s%d, s%d, 0x%x" % (S_B0, S_B0, WS_H))

    def phase_o(self):
        a = self.a
        L16 = self.G_L16
        WA = 52
        self.poll_flags_n(40, 4, 3, 60)
        self.stamp(13)
        vq = VQ(a)
        NUP = 8
        def hload(n):
            r = 32 + 4 * n
            a("s_add_u32 s%d, s%d, %d" % (S_T0, S_B0, n * 1024))
            a("buffer_load_dwordx4 a[%d:%d], v%d, s[%d:%d], s%d offen sc1" % (r, r + 3, L16, SRD_WS, SRD_WS + 3, S_T0)); vq.issue(("h", n))
        for n in range(NUP): hload(n)
        a("s_barrier")
        SETS = [16, 24, 60, 68]
        def areads(n):
            jj, rem = divmod(n, 6); ft, Q = divmod(rem, 2)
            out = []
            for tp in range(2):
                base = WA + tp if jj < 3 else WA + 2 + tp
                off = ((88 * jj if jj < 3 else 0) + 32 * ft + 16 * Q) * 128
                r = SETS[n % 4] + tp * 4
                out.append("ds_read_b64_tr_b16 v[%d:%d], v%d offset:%d" % (r, r + 1, base, off))
                out.append("ds_read_b64_tr_b16 v[%d:%d], v%d offset:%d" % (r + 2, r + 3, base, off + 512))
            return out
        for n in range(3):
            for r in areads(n): a(r)
        for n in range(24):
            vq.wait(("h", n))
            later = min(2, 23 - n)
            a("s_waitcnt lgkmcnt(%d)" % (4 * later))
            rd = areads(n + 3) if n + 3 < 24 else []
            for tp in range(2):
                D = tp * 16
                Ar = SETS[n % 4] + tp * 4
                Br = 32 + 4 * n
                cc = "0" if n == 0 else "a[%d:%d]" % (D, D + 15)
                a("v_mfma_f32_32x32x16_bf16 a[%d:%d], v[%d:%d], a[%d:%d], %s" % (D, D + 15, Ar, Ar + 3, Br, Br + 3, cc))
                for r in rd[2 * tp:2 * tp + 2]: a(r)
                if tp == 0 and n + NUP < 24: hload(n + NUP)
        self.stamp(14)
        a("s_lshl_b32 s3, s%d, 13" % S_W)
        a("v_add_u32 v58, s3, v%d" % L16)
        for tp in range(2):
            for q in range(4):
                a("ds_write_b128 v58, a[%d:%d] offset:%d" % (16 * tp + 4 * q, 16 * tp + 4 * q + 3, tp * 4096 + q * 1024))
        a("s_waitcnt lgkmcnt(0)")
        a("s_barrier")

    def final_pre(self):
        a = self.a
        a("s_lshr_b32 s%d, s%d, 1" % (S_T0, S_HW))
        a("s_lshl_b32 s3, s%d, 6" % S_J)
        a("s_lshl_b32 s%d, s%d, 5" % (S_T2, S_T0))
        a("s_add_u32 s%d, s3, s%d" % (S_T2, S_T2))
        a("s_and_b32 s%d, s%d, 1" % (S_T1, S_HW))
        a("s_lshl_b32 s3, s%d, 6" % S_MB)
        a("s_lshl_b32 s%d, s%d, 5" % (S_T3, S_T1))
        a("s_add_u32 s3, s3, s%d" % S_T3)
        a("v_add_u32 v41, s3, v%d" % V_SIG)
        a("v_lshlrev_b32 v42, 10, v41")
        a("v_lshl_add_u32 v42, v%d, 4, v42" % V_H)
        a("s_lshl_b32 s3, s%d, 1" % S_T2)
        a("v_add_u32 v42, s3, v42")
        XR = 44
        a("buffer_load_dwordx4 v[%d:%d], v42, s[%d:%d], 0 offen" % (XR, XR + 3, SRD_X, SRD_X + 3))
        a("buffer_load_dwordx4 v[%d:%d], v42, s[%d:%d], 0 offen offset:32" % (XR + 4, XR + 7, SRD_X, SRD_X + 3))
        a("s_lshl_b32 s3, s%d, 6" % S_J)
        a("s_lshl_b32 s%d, s%d, 4" % (S_T0, S_HW))
        a("s_add_u32 s%d, s3, s%d" % (S_T0, S_T0))
        a("v_add_u32 v5, s%d, v%d" % (S_T0, V_LANE))
        a("v_sub_u32 v6, 512, v5")
        a("v_cmp_lt_u32 vcc, 256, v5")
        a("v_cndmask_b32 v6, v5, v6, vcc")
        a("v_and_b32 v6, 255, v6")
        a("v_lshlrev_b32 v43, 7, v6")
        a("v_add_u32 v43, 0x%x, v43" % (WS_FLAG + 3 * 256 * 128))
        a("v_lshrrev_b32 v5, 4, v%d" % V_LANE)
        a("v_add_u32 v5, s%d, v5" % S_T0)
        a("v_and_b32 v6, 15, v%d" % V_LANE)
        a("v_lshlrev_b32 v6, 4, v6")
        a("v_lshl_add_u32 v56, v5, 13, v6")
        a("v_mov_b32 v7, 0x%x" % OOB)
        a("v_cmp_eq_u32 vcc, 0, v5")
        a("v_cndmask_b32 v57, v56, v7, vcc")
        a("s_lshl_b32 s%d, s%d, 8" % (S_T3, S_MB))
        a("s_add_u32 s%d, s%d, 0x%x" % (S_T3, S_T3, WS_YT))
        self.poll_flags_n(43, 16, 2, 60)
        for i in range(4):
            a("buffer_load_dwordx4 v[%d:%d], v%d, s[%d:%d], s%d offen sc1" % (64 + 4 * i, 67 + 4 * i, 57 if i == 0 else 56, SRD_WS, SRD_WS + 3, S_T3))
            if i < 3: a("s_add_u32 s%d, s%d, %d" % (S_T3, S_T3, 4 * 8192))

    def y_to_lds(self):
        a = self.a
        a("v_lshrrev_b32 v5, 4, v%d" % V_LANE)
        a("v_and_b32 v6, 15, v%d" % V_LANE)
        a("v_lshlrev_b32 v6, 4, v6")
        a("v_lshl_add_u32 v5, v5, 8, v6")
        a("s_lshl_b32 s3, s%d, 12" % S_HW)
        a("s_add_u32 s3, s3, %d" % LDS_YS)
        a("v_add_u32 v5, s3, v5")
        a("s_waitcnt vmcnt(0)")
        for i in range(4):
            a("ds_write_b128 v5, v[%d:%d] offset:%d" % (64 + 4 * i, 67 + 4 * i, i * 1024))
        a("s_waitcnt lgkmcnt(0)")

    def final_h(self):
        a = self.a
        XR, Y, O = 44, 64, 80
        a("v_lshlrev_b32 v10, 4, v%d" % V_LANE)
        a("s_lshl_b32 s3, s%d, 13" % S_HW)
        a("v_add_u32 v11, s3, v10")
        a("s_xor_b32 s3, s%d, 2" % S_HW)
        a("s_lshl_b32 s3, s3, 13")
        a("s_add_u32 s3, s3, 4096")
        a("v_add_u32 v12, s3, v10")
        for q in range(4):
            a("ds_read_b128 v[%d:%d], v11 offset:%d" % (O + 4 * q, O + 4 * q + 3, q * 1024))
        for q in range(4):
            a("ds_read_b128 v[%d:%d], v12 offset:%d" % (96 + 4 * q, 96 + 4 * q + 3, q * 1024))
        a("s_lshr_b32 s%d, s%d, 1" % (S_T0, S_HW))
        a("s_lshl_b32 s3, s%d, 13" % S_T0)
        a("s_and_b32 s%d, s%d, 1" % (S_T1, S_HW))
        a("s_lshl_b32 s%d, s%d, 7" % (S_T1, S_T1))
        a("s_add_u32 s3, s3, s%d" % S_T1)
        a("s_add_u32 s3, s3, %d" % LDS_YS)
        a("v_lshlrev_b32 v5, 11, v%d" % V_H)
        a("v_lshl_add_u32 v5, v%d, 2, v5" % V_SIG)
        a("v_add_u32 v5, s3, v5")
        for rho in range(16):
            k = 16 * (rho >> 3) + (rho & 7)
            a("ds_read_b32 v%d, v5 offset:%d" % (Y + rho, k * 256))
        nl2e = f2u(-math.log2(math.e))
        a("s_mov_b32 s%d, 0x%x" % (S_K2, nl2e))
        a("s_mov_b32 s%d, 0x%x" % (S_K2 + 1, nl2e))
        a("s_and_b32 s%d, s%d, 1" % (S_T1, S_HW))
        a("s_lshl_b32 s3, s%d, 5" % S_T1)
        a("v_add_u32 v13, s3, v%d" % V_SIG)
        a("v_and_b32 v14, 7, v13")
        a("s_lshr_b32 s%d, s%d, 1" % (S_T0, S_HW))
        a("s_lshl_b32 s3, s%d, 2" % S_T0)
        a("v_add_u32 v15, s3, v%d" % V_H)
        a("v_xor_b32 v14, v14, v15")
        a("v_lshlrev_b32 v14, 4, v14")
        a("v_lshl_add_u32 v14, v13, 7, v14")
        a("v_add_u32 v14, 32768, v14")
        a("s_waitcnt lgkmcnt(0)")
        for p in range(8):
            a("v_pk_add_f32 v[%d:%d], v[%d:%d], v[%d:%d]" % (O + 2 * p, O + 2 * p + 1, O + 2 * p, O + 2 * p + 1, 96 + 2 * p, 96 + 2 * p + 1))
        for p in range(8):
            o = O + 2 * p; t = 96 + 2 * p
            a("v_pk_mul_f32 v[%d:%d], v[%d:%d], s[%d:%d]" % (t, t + 1, o, o + 1, S_K2, S_K2 + 1))
            a("v_exp_f32 v%d, v%d" % (t, t))
            a("v_exp_f32 v%d, v%d" % (t + 1, t + 1))
            a("v_pk_add_f32 v[%d:%d], v[%d:%d], 1.0 op_sel_hi:[1,0]" % (t, t + 1, t, t + 1))
            a("v_rcp_f32 v%d, v%d" % (t, t))
            a("v_rcp_f32 v%d, v%d" % (t + 1, t + 1))
            a("v_pk_mul_f32 v[%d:%d], v[%d:%d], v[%d:%d]" % (o, o + 1, o, o + 1, t, t + 1))
        for p in range(8):
            o = O + 2 * p; t = 96 + 2 * p; y = Y + 2 * p; xr = XR + p
            a("v_lshlrev_b32 v%d, 16, v%d" % (t, xr))
            a("v_and_b32 v%d, 0xffff0000, v%d" % (t + 1, xr))
            a("v_pk_fma_f32 v[%d:%d], v[%d:%d], v[%d:%d], v[%d:%d]" % (t, t + 1, y, y + 1, o, o + 1, t, t + 1))
            a("v_cvt_pk_bf16_f32 v%d, v%d, v%d" % (112 + p, t, t + 1))
        a("ds_write_b128 v14, v[112:115]")
        a("v_xor_b32 v14, 32, v14")
        a("ds_write_b128 v14, v[116:119]")
        a("s_waitcnt lgkmcnt(0)")
        a("s_barrier")
        a("v_lshrrev_b32 v5, 3, v%d" % V_LANE)
        a("v_and_b32 v6, 7, v%d" % V_LANE)
        a("v_xor_b32 v7, v5, v6")
        a("v_lshlrev_b32 v7, 4, v7")
        a("v_lshl_add_u32 v7, v5, 7, v7")
        a("s_lshl_b32 s3, s%d, 11" % S_HW)
        a("s_add_u32 s3, s3, 32768")
        a("v_add_u32 v7, s3, v7")
        a("ds_read_b128 v[16:19], v7")
        a("ds_read_b128 v[20:23], v7 offset:1024")
        a("v_lshlrev_b32 v8, 10, v5")
        a("v_lshl_add_u32 v8, v6, 4, v8")
        a("s_lshl_b32 s%d, s%d, 6" % (S_T0, S_MB))
        a("s_lshl_b32 s3, s%d, 4" % S_HW)
        a("s_add_u32 s%d, s%d, s3" % (S_T0, S_T0))
        a("s_lshl_b32 s%d, s%d, 10" % (S_T0, S_T0))
        a("s_lshl_b32 s3, s%d, 7" % S_J)
        a("s_add_u32 s%d, s%d, s3" % (S_T0, S_T0))
        a("s_waitcnt lgkmcnt(0)")
        fl = "" if "outplain" in self.exp else "sc1"
        a("buffer_store_dwordx4 v[16:19], v8, s[%d:%d], s%d offen %s" % (SRD_OUT, SRD_OUT + 3, S_T0, fl))
        a("s_add_u32 s%d, s%d, 8192" % (S_T0, S_T0))
        a("buffer_store_dwordx4 v[20:23], v8, s[%d:%d], s%d offen %s" % (SRD_OUT, SRD_OUT + 3, S_T0, fl))
        self.stamp(15)
        self.stamp(25)

    def build(self):
        a = self.a
        self.prologue()
        self.xstage()
        a("s_cmp_ge_u32 s%d, 4" % S_W)
        a("s_cbranch_scc1 L_helper")
        self.p1_compute()
        self.g_compute()
        self.phase_o()
        a("s_branch L_end")
        a.label("L_helper")
        self.p1_helper()
        self.g_helper()
        a.label("L_end")
        a("s_endpgm")
        a.finalize()
        hdr = open("cdna_kernels/%s.s.ref" % NAME).read().split("\n")
        head = []
        for line in hdr:
            if line.startswith("; @launch"):
                head.append("; @launch grid=(256,1,1) block=(512,1,1) lds=%d" % LDS_TOTAL)
            elif line.startswith(";"): head.append(line)
            else: break
        txt = "\n".join(head) + "\n"
        txt += '.amdgcn_target "amdgcn-amd-amdhsa--gfx950"\n.text\n.globl %s_kernel\n.p2align 8\n.type %s_kernel,@function\n%s_kernel:\n' % (NAME, NAME, NAME)
        body = a.text()
        if "codepf" in self.exp:
            body = body.replace("CODE_LEN", "(L_end - L_pc_here - 16)")
        txt += body
        txt += '.section .rodata,"a"\n.p2align 6\n.amdhsa_kernel %s_kernel\n' % NAME
        txt += "  .amdhsa_next_free_vgpr 256\n  .amdhsa_next_free_sgpr 102\n  .amdhsa_accum_offset 128\n"
        txt += "  .amdhsa_group_segment_fixed_size 0\n  .amdhsa_kernarg_size 104\n  .amdhsa_user_sgpr_count 2\n"
        txt += "  .amdhsa_user_sgpr_kernarg_segment_ptr 1\n  .amdhsa_system_sgpr_workgroup_id_x 1\n"
        txt += "  .amdhsa_float_denorm_mode_32 3\n"
        txt += ".end_amdhsa_kernel\n"
        return txt

if __name__ == "__main__":
    import argparse
    ap = argparse.ArgumentParser()
    ap.add_argument("--stamps", action="store_true")
    ap.add_argument("--exp", default="")
    ap.add_argument("-o", default="cdna_kernels/%s.s" % NAME)
    args = ap.parse_args()
    g = Gen(stamps=args.stamps, exp=[e for e in args.exp.split(',') if e])
    txt = g.build()
    open(args.o, "w").write(txt)
    print("wrote", args.o, len(txt), "bytes;", len([i for i in g.a.ins if i.kind not in ("label", "dir")]), "instrs")
```

```python
import sys, math, struct
sys.path.insert(0, "gen")
from asmlib import *

NAME = "recurrent_scan__spectral_fnet__mixer_gmlp__prompt"

WS_FLAG = 0x000000
WS_STATS = 0x020000
WS_Z2N = 0x100000
WS_AB = 0x400000
WS_H = 0x600000
WS_YT = 0x900000
WS_STAMP = 0xF00000
WS_SIZE = 0x4000000
OOB = 0x80000000

LDS_WR = 65536
SLOT = 16384
NSLOT = 5
LDS_T4 = 147456
LDS_T5 = LDS_T4 + 1536
LDS_SY = LDS_T5 + 512
LDS_AT = 151552
LDS_YS = 40960
LDS_FX = 131072
LDS_WO = 73728
LDS_TOTAL = 163840

SRD_X, SRD_WIN, SRD_DFT, SRD_WSP, SRD_WOUT, SRD_WS, SRD_OUT, SRD_BSP, SRD_DBG = 4, 8, 12, 20, 24, 28, 32, 36, 40
S_IMLO, S_IMHI = 16, 17
S_MB, S_J, S_W, S_F0, S_WID, S_NONCE, S_L = 44, 45, 46, 47, 48, 49, 50
S_C, S_SLOT, S_XD = 51, 52, 53
S_CN, S_KC128, S_WSOFF, S_SLOTN = 54, 55, 56, 57
S_HW = 58
S_DL0, S_WL0, S_W2 = 60, 61, 62
S_T0, S_T1, S_T2, S_T3 = 63, 90, 91, 92
S_PASS = 93
S_EX = 94
S_K2 = 96
S_SPIN = 98
S_B0 = 99
S_ST0 = 100
S_ROT1 = 59
S_RHO = 51

V_LANE, V_JL, V_H, V_SIG = 1, 2, 3, 4

def f2u(x): return struct.unpack("<I", struct.pack("<f", x))[0]

class Gen:
    def __init__(self, stop_after=None, stamps=False, exp=()):
        self.a = Asm()
        self.stop_after = stop_after
        self.stamps = stamps
        self.exp = set(exp)

    def stamp(self, idx):
        if "dbgst" in self.exp:
            mm_ = {0: (1, 0), 1: (2, 0), 2: (3, 0), 3: (4, 0), 4: (5, 0), 5: (6, 0), 7: (7, 0), 8: (8, 0), 10: (9, 0), 16: (10, 0), 11: (11, 0), 21: (12, 0), 13: (13, 0), 14: (14, 0), 15: (15, 4)}
            m = {k: v[0] for k, v in mm_.items()}
            if idx in m:
                a = self.a
                lab = a.newlabel("ds")
                a("s_cmp_lg_u32 s%d, %d" % (S_L, 37))
                a("s_cbranch_scc1 %s" % lab)
                a("s_cmp_lg_u32 s%d, %d" % (S_W, mm_[idx][1]))
                a("s_cbranch_scc1 %s" % lab)
                a("s_memrealtime s[%d:%d]" % (S_ST0, S_ST0 + 1))
                a("s_waitcnt lgkmcnt(0)")
                a("v_mov_b32 v9, s%d" % S_ST0)
                a("v_mov_b32 v8, %d" % (4 * m[idx]))
                a("s_mov_b64 exec, 1")
                a("buffer_store_dword v9, v8, s[%d:%d], 0 offen sc1" % (SRD_DBG, SRD_DBG + 3))
                a("s_mov_b64 exec, -1")
                a.label(lab)
            return
        if not self.stamps: return
        a = self.a
        a(("s_memtime s[%d:%d]" if idx >= 24 else "s_memrealtime s[%d:%d]") % (S_ST0, S_ST0 + 1))
        a("s_waitcnt lgkmcnt(0)")
        a("v_mov_b32 v9, s%d" % S_ST0)
        a("s_lshl_b32 s%d, s%d, 3" % (S_ST0, S_L))
        a("s_add_u32 s%d, s%d, s%d" % (S_ST0, S_ST0, S_W))
        a("s_lshl_b32 s%d, s%d, 7" % (S_ST0, S_ST0))
        a("s_add_u32 s%d, s%d, 0x%x" % (S_ST0, S_ST0, WS_STAMP + idx * 4))
        a("v_mov_b32 v8, 0")
        a("s_mov_b64 s[%d:%d], exec" % (S_EX, S_EX + 1))
        a("s_mov_b64 exec, 1")
        a("buffer_store_dword v9, v8, s[%d:%d], s%d offen" % (SRD_WS, SRD_WS + 3, S_ST0))
        a("s_mov_b64 exec, s[%d:%d]" % (S_EX, S_EX + 1))

    def srd(self, base, plo, size):
        a = self.a
        a("s_mov_b32 s%d, s%d" % (base, plo))
        a("s_and_b32 s%d, s%d, 0xffff" % (base + 1, plo + 1))
        a("s_mov_b32 s%d, 0x%x" % (base + 2, size))
        a("s_mov_b32 s%d, 0x20000" % (base + 3))

    def flag_store(self, kind, dw=0, dw_sreg=None, vt=(5, 6)):
        a = self.a
        a("s_lshl_b32 s%d, s%d, 7" % (S_T0, S_L))
        a("s_add_u32 s%d, s%d, 0x%x" % (S_T0, S_T0, WS_FLAG + kind * 256 * 128 + dw * 4))
        if dw_sreg is not None:
            a("s_lshl_b32 s3, s%d, 2" % dw_sreg)
            a("s_add_u32 s%d, s%d, s3" % (S_T0, S_T0))
        a("v_mov_b32 v%d, s%d" % (vt[0], S_NONCE))
        a("v_mov_b32 v%d, 0" % vt[1])
        a("s_mov_b64 exec, 1")
        a("buffer_store_dword v%d, v%d, s[%d:%d], s%d offen sc1" % (vt[0], vt[1], SRD_WS, SRD_WS + 3, S_T0))
        a("s_mov_b64 exec, -1")

    def poll_flags_n(self, vaddr, nlanes, ndw, vt):
        a = self.a
        lab = a.newlabel("poll")
        a("s_mov_b32 s%d, 0" % S_SPIN)
        mask = (1 << nlanes) - 1
        a("s_mov_b32 exec_lo, 0x%x" % (mask & 0xffffffff))
        a("s_mov_b32 exec_hi, 0x%x" % (mask >> 32))
        a.label(lab)
        if ndw == 1: a("buffer_load_dword v%d, v%d, s[%d:%d], 0 offen sc1" % (vt, vaddr, SRD_WS, SRD_WS + 3))
        elif ndw == 2: a("buffer_load_dwordx2 v[%d:%d], v%d, s[%d:%d], 0 offen sc1" % (vt, vt + 1, vaddr, SRD_WS, SRD_WS + 3))
        else: a("buffer_load_dwordx4 v[%d:%d], v%d, s[%d:%d], 0 offen sc1" % (vt, vt + 3, vaddr, SRD_WS, SRD_WS + 3))
        a("s_waitcnt vmcnt(0)")
        a("v_cmp_ne_u32 vcc, s%d, v%d" % (S_NONCE, vt))
        for i in range(1, ndw):
            a("v_cmp_ne_u32 s[%d:%d], s%d, v%d" % (S_EX, S_EX + 1, S_NONCE, vt + i))
            a("s_or_b64 vcc, vcc, s[%d:%d]" % (S_EX, S_EX + 1))
        a("s_add_u32 s%d, s%d, 1" % (S_SPIN, S_SPIN))
        a("s_cmp_gt_u32 s%d, 0x8000" % S_SPIN)
        a("s_cbranch_scc1 %s_x" % lab)
        if "pollsleep" in self.exp:
            a("s_cbranch_vccz %s_x" % lab)
            a("s_sleep 2")
            a("s_branch %s" % lab)
        else:
            a("s_cbranch_vccnz %s" % lab)
        a.label(lab + "_x")
        a("s_mov_b64 exec, -1")

    def get_nonce(self):
        a = self.a
        lab = a.newlabel("nonce")
        a("v_mov_b32 v6, 0")
        a("s_mov_b32 s%d, 0" % S_SPIN)
        a.label(lab)
        a("buffer_load_dword v5, v6, s[%d:%d], 0 offen sc1" % (SRD_DBG, SRD_DBG + 3))
        a("s_waitcnt vmcnt(0)")
        a("v_readfirstlane_b32 s%d, v5" % S_NONCE)
        a("s_add_u32 s%d, s%d, 1" % (S_SPIN, S_SPIN))
        a("s_cmp_gt_u32 s%d, 0x8000" % S_SPIN)
        a("s_cbranch_scc1 %s_x" % lab)
        a("s_cmp_eq_u32 s%d, 0" % S_NONCE)
        a("s_cbranch_scc1 %s" % lab)
        a.label(lab + "_x")

    def nonce_from(self, vreg):
        a = self.a
        lab = a.newlabel("hn")
        a("v_readfirstlane_b32 s%d, v%d" % (S_NONCE, vreg))
        a("s_cmp_lg_u32 s%d, 0" % S_NONCE)
        a("s_cbranch_scc1 %s" % lab)
        self.get_nonce()
        a.label(lab)

    def poll_flags(self, vaddr, nlanes):
        a = self.a
        lab = a.newlabel("poll")
        a("s_mov_b32 s%d, 0" % S_SPIN)
        mask = (1 << nlanes) - 1
        a("s_mov_b32 exec_lo, 0x%x" % (mask & 0xffffffff))
        a("s_mov_b32 exec_hi, 0x%x" % (mask >> 32))
        a.label(lab)
        a("buffer_load_dword v5, v%d, s[%d:%d], 0 offen sc1" % (vaddr, SRD_WS, SRD_WS + 3))
        a("s_waitcnt vmcnt(0)")
        a("v_cmp_ne_u32 vcc, s%d, v5" % S_NONCE)
        a("s_add_u32 s%d, s%d, 1" % (S_SPIN, S_SPIN))
        a("s_cmp_gt_u32 s%d, 0x8000" % S_SPIN)
        a("s_cbranch_scc1 %s_x" % lab)
        if "pollsleep" in self.exp:
            a("s_cbranch_vccz %s_x" % lab)
            a("s_sleep 2")
            a("s_branch %s" % lab)
        else:
            a("s_cbranch_vccnz %s" % lab)
        a.label(lab + "_x")
        a("s_mov_b64 exec, -1")

    def lds_wait_ge(self, addr, val, vt=5):
        a = self.a
        lab = a.newlabel("lw")
        a("s_mov_b32 s%d, 0" % S_SPIN)
        a("v_mov_b32 v%d, %d" % (vt + 1, addr))
        a.label(lab)
        a("ds_read_b32 v%d, v%d" % (vt, vt + 1))
        a("s_waitcnt lgkmcnt(0)")
        a("v_readfirstlane_b32 s%d, v%d" % (S_T0, vt))
        a("s_add_u32 s%d, s%d, 1" % (S_SPIN, S_SPIN))
        a("s_cmp_gt_u32 s%d, 0x100000" % S_SPIN)
        a("s_cbranch_scc1 %s_x" % lab)
        a("s_cmp_lt_u32 s%d, %d" % (S_T0, val))
        a("s_cbranch_scc1 %s" % lab)
        a.label(lab + "_x")

    def hsum(self, regs, tmp):
        a = self.a
        for i, r in enumerate(regs): a("v_mov_b32 v%d, v%d" % (tmp + i, r))
        for i, r in enumerate(regs): a("v_permlane32_swap_b32 v%d, v%d" % (r, tmp + i))
        for i, r in enumerate(regs): a("v_add_f32 v%d, v%d, v%d" % (r, r, tmp + i))

    def mean_rstd(self, vsum, vsq, n, dst_r, dst_nm, t):
        a = self.a
        a("v_mul_f32 v%d, 0x%x, v%d" % (t, f2u(1.0 / n), vsum))
        a("v_mul_f32 v%d, 0x%x, v%d" % (t + 1, f2u(1.0 / n), vsq))
        a("v_fma_f32 v%d, -v%d, v%d, v%d" % (t + 1, t, t, t + 1))
        a("v_max_f32 v%d, 0, v%d" % (t + 1, t + 1))
        a("v_add_f32 v%d, 0x%x, v%d" % (t + 1, f2u(1e-5), t + 1))
        a("v_rsq_f32 v%d, v%d" % (dst_r, t + 1))
        a("v_mul_f32 v%d, v%d, v%d" % (dst_nm, t, dst_r))
        a("v_sub_f32 v%d, 0, v%d" % (dst_nm, dst_nm))

    V_OD, V_OW = 10, 11
    V_NON = 14
    def prologue(self):
        a = self.a
        a("s_cmp_ge_u32 s2, 256")
        a("s_cbranch_scc1 L_end")
        a("s_load_dwordx16 s[64:79], s[0:1], 0")
        a("s_load_dwordx8 s[80:87], s[0:1], 64")
        a("s_load_dwordx2 s[88:89], s[0:1], 96")
        if "map42" in self.exp:
            a("s_bfe_u32 s%d, s2, 0x20001" % S_MB)
            a("s_lshl_b32 s%d, s%d, 3" % (S_MB, S_MB))
            a("s_bfe_u32 s3, s2, 0x30003")
            a("s_add_u32 s%d, s%d, s3" % (S_MB, S_MB))
            a("s_and_b32 s%d, s2, 1" % S_J)
            a("s_lshl_b32 s%d, s%d, 2" % (S_J, S_J))
            a("s_lshr_b32 s3, s2, 6")
            a("s_add_u32 s%d, s%d, s3" % (S_J, S_J))
        else:
            a("s_and_b32 s%d, s2, 7" % S_MB)
            a("s_lshl_b32 s%d, s%d, 2" % (S_MB, S_MB))
            a("s_bfe_u32 s3, s2, 0x20003")
            a("s_add_u32 s%d, s%d, s3" % (S_MB, S_MB))
            a("s_lshr_b32 s%d, s2, 5" % S_J)
        a("s_lshl_b32 s%d, s%d, 5" % (S_L, S_J))
        a("s_add_u32 s%d, s%d, s%d" % (S_L, S_L, S_MB))
        a("v_lshrrev_b32 v5, 6, v0")
        a("v_and_b32 v%d, 63, v0" % V_LANE)
        a("v_readfirstlane_b32 s%d, v5" % S_W)
        a("v_lshrrev_b32 v20, 3, v0")
        a("v_and_b32 v21, 7, v0")
        a("v_lshlrev_b32 v22, 10, v20")
        a("v_lshl_add_u32 v22, v21, 4, v22")
        a("s_lshl_b32 s%d, s%d, 16" % (S_T1, S_MB))
        a("s_and_b32 s%d, s%d, 3" % (S_HW, S_W))
        a("v_and_b32 v%d, 31, v0" % V_JL)
        a("v_bfe_u32 v%d, v0, 5, 1" % V_H)
        a("v_and_b32 v5, 0x13, v%d" % V_JL)
        a("v_and_b32 v6, 4, v%d" % V_JL)
        a("v_lshl_or_b32 v5, v6, 1, v5")
        a("v_and_b32 v6, 8, v%d" % V_JL)
        a("v_lshrrev_b32 v6, 1, v6")
        a("v_or_b32 v%d, v5, v6" % V_SIG)
        a("s_mul_i32 s%d, s%d, 88" % (S_F0, S_J))
        a("s_cmp_eq_u32 s%d, 7" % S_J)
        a("s_cselect_b32 s3, 8, 0")
        a("s_sub_u32 s%d, s%d, s3" % (S_F0, S_F0))
        a("s_cmp_ge_u32 s%d, 6" % S_J)
        a("s_cselect_b32 s3, 8, 0")
        a("s_sub_u32 s%d, 88, s3" % S_WID)
        for i in range(10, 14): a("v_mov_b32 v%d, 0" % i)
        if "codepf" in self.exp:
            a("s_getpc_b64 s[92:93]")
            a.label("L_pc_here")
            a("s_lshr_b32 s3, s2, 3")
            a("s_lshl_b32 s3, s3, 3")
            a("s_add_u32 s3, s3, s%d" % S_W)
            a("s_mul_i32 s3, s3, 192")
            a("v_lshlrev_b32 v5, 4, v%d" % V_LANE)
            a("v_add_u32 v5, s3, v5")
            a("v_min_u32 v5, CODE_LEN, v5")
            a("s_mov_b64 exec, 0xfff")
            a("global_load_dwordx4 a[20:23], v5, s[92:93]")
            a("s_mov_b64 exec, -1")
        a("s_waitcnt lgkmcnt(0)")
        self.srd(SRD_X, 64, 2048 * 1024)
        a("s_and_b32 s%d, s%d, 3" % (S_ROT1, S_MB))
        a("s_lshl_b32 s%d, s%d, 1" % (S_ROT1, S_ROT1))
        a("s_add_u32 s%d, s%d, s%d" % (S_ROT1, S_ROT1, S_J))
        a("s_and_b32 s%d, s%d, 7" % (S_ROT1, S_ROT1))
        if "norot" in self.exp: a("s_mov_b32 s%d, 0" % S_ROT1)
        for i in range(8):
            a("s_add_u32 s3, s%d, %d" % (S_ROT1, i))
            a("s_and_b32 s3, s3, 7")
            a("s_lshl_b32 s3, s3, 7")
            a("s_add_u32 s3, s3, s%d" % S_T1)
            a("buffer_load_dwordx4 v[%d:%d], v22, s[%d:%d], s3 offen" % (32 + 4 * i, 35 + 4 * i, SRD_X, SRD_X + 3))
        self.srd(SRD_WIN, 76, 512 * 2752)
        self.srd(SRD_DFT, 70, 512 * 1024)
        self.srd(S_IMLO, 72, 512 * 1024)
        self.srd(SRD_WS, 88, WS_SIZE)
        self.srd(SRD_DBG, 86, 256)
        self.srd(SRD_WSP, 78, 2048 * 4096)
        self.srd(SRD_WOUT, 82, 688 * 1024)
        self.srd(SRD_OUT, 84, 2048 * 1024)
        self.srd(SRD_BSP, 80, 4096)
        if "tlbwarm" in self.exp:
            a("v_lshlrev_b32 v5, 20, v%d" % V_LANE)
            a("v_add_u32 v5, 0x7f000, v5")
            a("s_mov_b64 exec, 0xfff")
            a("buffer_load_dword a24, v5, s[%d:%d], 0 offen sc1" % (SRD_WS, SRD_WS + 3))
            a("s_mov_b64 exec, 1")
            a("s_lshl_b32 s3, s%d, 16" % S_MB)
            a("v_mov_b32 v5, s3")
            a("buffer_load_dword a25, v5, s[%d:%d], 0 offen" % (SRD_OUT, SRD_OUT + 3))
            a("s_lshl_b32 s3, s%d, 18" % S_MB)
            a("v_mov_b32 v5, s3")
            a("buffer_load_dword a26, v5, s[%d:%d], 0 offen" % (SRD_WSP, SRD_WSP + 3))
            a("v_mov_b32 v5, 0")
            a("buffer_load_dword a27, v5, s[%d:%d], 0 offen" % (SRD_WOUT, SRD_WOUT + 3))
            a("buffer_load_dword a28, v5, s[%d:%d], 0 offen" % (SRD_BSP, SRD_BSP + 3))
            a("s_mov_b64 exec, -1")
        self.npf3 = 0
        if "pf3" in self.exp:
            a("s_lshr_b32 s3, s2, 3")
            a("s_lshl_b32 s3, s3, 3")
            a("s_add_u32 s3, s3, s%d" % S_W)
            a("s_mul_i32 s%d, s3, 5504" % S_T0)
            a("v_lshlrev_b32 v5, 4, v%d" % V_LANE)
            for i in range(6):
                a("buffer_load_dwordx4 a[16:19], v5, s[%d:%d], s%d offen" % (SRD_WIN, SRD_WIN + 3, S_T0))
                a("s_add_u32 s%d, s%d, 1024" % (S_T0, S_T0))
            a("s_lshl_b32 s%d, s3, 10" % S_T0)
            a("s_add_u32 s%d, s%d, 1024" % (S_T0, S_T0))
            a("buffer_load_dwordx4 a[16:19], v5, s[%d:%d], s%d offen" % (SRD_DFT, SRD_DFT + 3, S_T0))
            a("buffer_load_dwordx4 a[16:19], v5, s[%d:%d], s%d offen" % (S_IMLO, S_IMLO + 3, S_T0))
            self.npf3 = 8
        a("s_cmp_lt_u32 s%d, 4" % S_W)
        a("s_cbranch_scc0 L_pro_h")
        self.npf = (self.prefetch_start() if "nopf" not in self.exp else 0) + (5 if "tlbwarm" in self.exp else 0) + self.npf3
        a("s_branch L_pro_c")
        a.label("L_pro_h")
        L = V_LANE
        a("v_lshrrev_b32 v5, 3, v%d" % L)
        a("v_and_b32 v6, 7, v%d" % L)
        a("v_lshrrev_b32 v7, 4, v%d" % L)
        a("v_xor_b32 v8, v6, v7")
        a("v_lshlrev_b32 v8, 4, v8")
        a("s_lshl_b32 s3, s%d, 5" % S_J)
        a("s_lshl_b32 s%d, s%d, 3" % (S_T0, S_HW))
        a("s_add_u32 s3, s3, s%d" % S_T0)
        a("v_add_u32 v9, s3, v5")
        a("v_cmp_eq_u32 vcc, 0, v9")
        a("v_mov_b32 v6, 256")
        a("v_cndmask_b32 v9, v9, v6, vcc")
        a("s_and_b32 s%d, s%d, 1" % (S_T0, S_HW))
        a("s_lshl_b32 s%d, s%d, 6" % (S_T0, S_T0))
        a("v_xor_b32 v8, s%d, v8" % S_T0)
        a("v_lshl_add_u32 v%d, v9, 10, v8" % self.V_OD)
        for p in range(3):
            a("v_add_u32 v5, %d, v%d" % (64 * p, L))
            a("v_mul_u32_u24 v6, 171, v5")
            a("v_lshrrev_b32 v6, 11, v6")
            a("v_mul_u32_u24 v7, 12, v6")
            a("v_sub_u32 v7, v5, v7")
            a("v_mul_u32_u24 v6, 2752, v6")
            a("v_lshl_add_u32 v6, v7, 4, v6")
            a("v_lshlrev_b32 v7, 3, v7")
            a("v_cmp_gt_u32 vcc, s%d, v7" % S_WID)
            a("v_mov_b32 v8, 0x%x" % OOB)
            a("v_cndmask_b32 v%d, v8, v6, vcc" % (self.V_OW + p))
        a("s_lshl_b32 s%d, s%d, 10" % (S_DL0, S_HW))
        a("s_mul_i32 s%d, s%d, 3072" % (S_WL0, S_HW))
        a("s_mul_i32 s%d, s%d, %d" % (S_W2, S_HW, 16 * 2752))
        a("s_lshl_b32 s3, s%d, 1" % S_F0)
        a("s_add_u32 s%d, s%d, s3" % (S_W2, S_W2))
        a("s_add_u32 s%d, s%d, %d" % (S_WSOFF, S_W2, 688 * 2))
        for k in range(4): self.dma_chunk(k)
        a("s_cmp_lg_u32 s2, 0")
        a("s_cbranch_scc1 L_nononce")
        a("s_cmp_lg_u32 s%d, 4" % S_W)
        a("s_cbranch_scc1 L_nononce")
        a("s_memrealtime s[%d:%d]" % (S_ST0, S_ST0 + 1))
        a("s_waitcnt lgkmcnt(0)")
        a("s_or_b32 s3, s%d, 1" % S_ST0)
        a("v_mov_b32 v5, s3")
        a("v_mov_b32 v6, 0")
        a("s_mov_b64 exec, 1")
        a("buffer_store_dword v5, v6, s[%d:%d], 0 offen sc1" % (SRD_DBG, SRD_DBG + 3))
        a("s_mov_b64 exec, -1")
        a.label("L_nononce")
        a("v_lshlrev_b32 v5, 2, v%d" % V_LANE)
        a("v_add_u32 v5, %d, v5" % LDS_SY)
        a("v_mov_b32 v6, 0")
        a("s_mov_b64 exec, 0xffff")
        a("ds_write_b32 v5, v6")
        a("s_mov_b64 exec, -1")
        a.label("L_pro_c")
        self.stamp(0)
        self.stamp(24)

    def pf_wrows(self, colbyte_sreg, row0_sreg, nrows16, dst):
        a = self.a
        a("v_lshrrev_b32 v5, 2, v%d" % V_LANE)
        a("v_add_u32 v5, s%d, v5" % row0_sreg)
        a("v_mul_u32_u24 v5, 2752, v5")
        a("v_and_b32 v6, 3, v%d" % V_LANE)
        a("v_lshlrev_b32 v6, 6, v6")
        a("v_min_u32 v6, 172, v6")
        a("v_add_u32 v5, v5, v6")
        for i in range(nrows16):
            a("s_add_u32 s3, s%d, %d" % (colbyte_sreg, i * 16 * 2752))
            a("buffer_load_dword a%d, v5, s[%d:%d], s3 offen" % (dst, SRD_WIN, SRD_WIN + 3))
        return nrows16

    def prefetch_start(self):
        a = self.a
        a("s_and_b32 s%d, s%d, 3" % (S_T0, S_MB))
        a("s_lshl_b32 s%d, s%d, 6" % (S_T0, S_T0))
        a("s_lshl_b32 s3, s%d, 4" % S_W)
        a("s_add_u32 s%d, s%d, s3" % (S_T0, S_T0))
        a("s_add_u32 s%d, s%d, 256" % (S_T0, S_T0))
        a("s_add_u32 s%d, s%d, 688" % (S_T1, S_F0))
        a("s_lshl_b32 s%d, s%d, 1" % (S_T1, S_T1))
        return self.pf_wrows(S_T1, S_T0, 1, 16)

    def prefetch_b(self):
        a = self.a
        a("s_and_b32 s%d, s%d, 3" % (S_T0, S_MB))
        a("s_lshl_b32 s%d, s%d, 7" % (S_T0, S_T0))
        a("s_lshl_b32 s3, s%d, 5" % S_W)
        a("s_add_u32 s%d, s%d, s3" % (S_T0, S_T0))
        a("s_lshl_b32 s%d, s%d, 1" % (S_T1, S_F0))
        self.pf_wrows(S_T1, S_T0, 2, 16)
        a("s_lshl_b32 s%d, s%d, 5" % (S_T0, S_J))
        a("s_and_b32 s3, s%d, 3" % S_MB)
        a("s_lshl_b32 s3, s3, 3")
        a("s_add_u32 s%d, s%d, s3" % (S_T0, S_T0))
        a("s_lshl_b32 s3, s%d, 1" % S_W)
        a("s_add_u32 s%d, s%d, s3" % (S_T0, S_T0))
        a("s_lshl_b32 s%d, s%d, 10" % (S_T0, S_T0))
        a("v_lshlrev_b32 v5, 4, v%d" % V_LANE)
        for i in range(2):
            a("buffer_load_dwordx4 a[16:19], v5, s[%d:%d], s%d offen offset:%d" % (S_IMLO, S_IMLO + 3, S_T0, i * 1024))

    def prefetch_wsp(self):
        a = self.a
        a("s_lshl_b32 s%d, s%d, 6" % (S_T0, S_MB))
        a("s_lshl_b32 s3, s%d, 3" % S_J)
        a("s_add_u32 s%d, s%d, s3" % (S_T0, S_T0))
        a("s_lshl_b32 s3, s%d, 1" % S_W)
        a("s_add_u32 s%d, s%d, s3" % (S_T0, S_T0))
        a("s_lshl_b32 s%d, s%d, 12" % (S_T0, S_T0))
        a("v_lshlrev_b32 v5, 4, v%d" % V_LANE)
        for i in range(8):
            a("buffer_load_dwordx4 a[16:19], v5, s[%d:%d], s%d offen" % (SRD_WSP, SRD_WSP + 3, S_T0))
            if i < 7: a("s_add_u32 s%d, s%d, 1024" % (S_T0, S_T0))

    def prefetch_wout(self):
        a = self.a
        a("s_and_b32 s3, s%d, 3" % S_MB)
        a("s_lshl_b32 s3, s3, 2")
        a("s_add_u32 s3, s3, s%d" % S_W)
        a("s_mul_i32 s%d, s3, 43" % S_T0)
        a("v_lshrrev_b32 v5, 1, v%d" % V_LANE)
        a("v_add_u32 v5, s%d, v5" % S_T0)
        a("v_lshlrev_b32 v5, 10, v5")
        a("v_and_b32 v6, 1, v%d" % V_LANE)
        a("v_lshl_add_u32 v5, v6, 6, v5")
        a("s_lshl_b32 s%d, s%d, 7" % (S_T0, S_J))
        a("buffer_load_dword a16, v5, s[%d:%d], s%d offen" % (SRD_WOUT, SRD_WOUT + 3, S_T0))
        a("s_add_u32 s%d, s%d, %d" % (S_T0, S_T0, 32 * 1024))
        a("buffer_load_dword a16, v5, s[%d:%d], s%d offen" % (SRD_WOUT, SRD_WOUT + 3, S_T0))

    def dma_chunk(self, k):
        a = self.a
        slot = LDS_WR + (k % NSLOT) * SLOT
        srd = SRD_DFT if k < 8 else S_IMLO
        a("s_add_u32 s%d, s%d, %d" % (S_T1, S_ROT1, k & 7))
        a("s_and_b32 s%d, s%d, 7" % (S_T1, S_T1))
        a("s_add_u32 m0, s%d, %d" % (S_DL0, slot + 12288))
        a("s_lshl_b32 s%d, s%d, 7" % (S_T0, S_T1))
        a("buffer_load_dwordx4 v%d, s[%d:%d], s%d offen lds" % (self.V_OD, srd, srd + 3, S_T0))
        a("s_mul_i32 s%d, s%d, %d" % (S_T1, S_T1, 64 * 2752))
        a("s_add_u32 m0, s%d, %d" % (S_WL0, slot))
        a("s_add_u32 s%d, s%d, s%d" % (S_T0, S_WSOFF if k < 8 else S_W2, S_T1))
        for p in range(3):
            a("buffer_load_dwordx4 v%d, s[%d:%d], s%d offen lds" % (self.V_OW + p, SRD_WIN, SRD_WIN + 3, S_T0))
            if p < 2:
                a("s_add_u32 m0, m0, 1024")
                a("s_nop 0")

    def xstage(self):
        a = self.a
        X = 32
        a("v_mov_b32 v23, 0x3f803f80")
        for i in range(4): a("v_mov_b32 v%d, 0" % (24 + i))
        a("v_bfe_u32 v5, v20, 1, 3")
        a("v_xor_b32 v5, v5, v21")
        a("v_lshlrev_b32 v5, 4, v5")
        a("v_lshl_add_u32 v28, v20, 7, v5")
        a("s_cmp_lt_u32 s%d, 4" % S_W)
        a("s_cbranch_scc1 L_xw_c")
        for path, younger in (("h", 16 + (5 if "tlbwarm" in self.exp else 0) + self.npf3), ("c", self.npf)):
            if path == "c": a.label("L_xw_c")
            for i in range(8):
                a("s_waitcnt vmcnt(%d)" % (younger + 7 - i))
                for r in range(4):
                    k = 4 * i + r
                    a("v_dot2c_f32_bf16 v%d, v%d, v23" % (24 + (k & 1), X + k))
                    a("v_dot2c_f32_bf16 v%d, v%d, v%d" % (26 + (k & 1), X + k, X + k))
            if path == "h": a("s_branch L_xw_d")
        a.label("L_xw_d")
        a("v_add_f32 v24, v24, v25")
        a("v_add_f32 v26, v26, v27")
        for dpp in ("quad_perm:[1,0,3,2]", "quad_perm:[2,3,0,1]", "row_half_mirror"):
            a("v_add_f32_dpp v25, v24, v24 %s row_mask:0xf bank_mask:0xf" % dpp)
            a("v_add_f32_dpp v27, v26, v26 %s row_mask:0xf bank_mask:0xf" % dpp)
            a("v_mov_b32 v24, v25")
            a("v_mov_b32 v26, v27")
        self.mean_rstd(24, 26, 512, 30, 31, 6)
        U = 64
        for i in range(8):
            for r in range(4):
                src = X + 4 * i + r
                t = U + 2 * ((4 * i + r) % 8)
                a("v_lshlrev_b32 v%d, 16, v%d" % (t, src))
                a("v_and_b32 v%d, 0xffff0000, v%d" % (t + 1, src))
                a("v_pk_fma_f32 v[%d:%d], v[%d:%d], v[30:31], v[30:31] op_sel:[0,0,1] op_sel_hi:[1,0,1]" % (t, t + 1, t, t + 1))
                a("v_cvt_pk_bf16_f32 v%d, v%d, v%d" % (src, t, t + 1))
            a("ds_write_b128 v28, v[%d:%d] offset:%d" % (X + 4 * i, X + 4 * i + 3, i * 8192))

    C_XA, C_AC, C_AN = 10, 14, 15
    C_FA, C_FB = 16, 32
    C_ACC = 64
    C_Z2P, C_Z1P = 96, 112
    C_GC1 = 6

    def c_setup(self, w3):
        a = self.a
        a("v_bfe_u32 v5, v%d, 1, 3" % V_SIG)
        a("v_lshlrev_b32 v6, 7, v%d" % V_SIG)
        for ks in range(4):
            a("v_add_u32 v8, %d, v%d" % (2 * ks, V_H))
            a("v_xor_b32 v8, v8, v5")
            a("v_lshl_add_u32 v%d, v8, 4, v6" % (self.C_XA + ks))
        if w3:
            for ks in range(4):
                a("v_add_u32 v%d, %d, v%d" % (116 + ks, LDS_WR + 12288, self.C_XA + ks))
        else:
            a("v_bfe_u32 v7, v%d, 2, 2" % V_LANE)
            a("v_lshl_add_u32 v7, v%d, 3, v7" % V_H)
            a("v_mul_u32_u24 v7, 192, v7")
            a("v_bfe_u32 v8, v%d, 4, 1" % V_LANE)
            a("v_lshlrev_b32 v8, 5, v8")
            a("v_and_b32 v9, 1, v%d" % V_LANE)
            a("v_lshl_add_u32 v8, v9, 4, v8")
            a("v_bfe_u32 v9, v%d, 1, 1" % V_LANE)
            a("v_lshl_add_u32 v8, v9, 3, v8")
            a("v_add_u32 v7, v7, v8")
            a("s_lshl_b32 s3, s%d, 6" % S_W)
            a("s_add_u32 s3, s3, %d" % LDS_WR)
            a("v_add_u32 v%d, s3, v7" % self.C_AC)
            a("v_add_u32 v%d, %d, v%d" % (self.C_AN, SLOT, self.C_AC))
            for Q in range(2):
                a("v_lshlrev_b32 v5, 3, v%d" % V_H)
                a("v_sub_u32 v5, v%d, v5" % V_SIG)
                if Q: a("v_subrev_u32 v5, 16, v5")
                a("v_and_b32 v6, 1, v5")
                a("v_lshlrev_b32 v6, 4, v6")
                a("v_mov_b32 v7, 0x3f80")
                a("v_lshlrev_b32 v6, v6, v7")
                a("v_lshrrev_b32 v5, 1, v5")
                for r in range(4):
                    a("v_cmp_eq_u32 vcc, %d, v5" % r)
                    a("v_cndmask_b32 v7, 0, v6, vcc")
                    a("v_accvgpr_write_b32 a%d, v7" % (4 * Q + r))

    def c_reads(self, w3, c, ks, nxt):
        A = self.C_FA + 4 * ks; B = self.C_FB + 8 * ks
        out = []
        xo = (c & 7) * 8192
        if w3:
            base = 124 + ks if nxt else 120 + ks
            out.append("ds_read_b128 v[%d:%d], v%d" % (A, A + 3, base))
        else:
            base = self.C_AN if nxt else self.C_AC
            out.append("ds_read_b64_tr_b16 v[%d:%d], v%d offset:%d" % (A, A + 1, base, ks * 3072))
            out.append("ds_read_b64_tr_b16 v[%d:%d], v%d offset:%d" % (A + 2, A + 3, base, ks * 3072 + 768))
        out.append("ds_read_b128 v[%d:%d], v%d offset:%d" % (B, B + 3, self.C_XA + ks, xo))
        out.append("ds_read_b128 v[%d:%d], v%d offset:%d" % (B + 4, B + 7, self.C_XA + ks, xo + 4096))
        return out

    def c_loop(self, w3):
        a = self.a
        nr = 3 if w3 else 4
        ACC = self.C_ACC
        def mfs(ks, first):
            A = self.C_FA + 4 * ks; B = self.C_FB + 8 * ks
            out = []
            for st in range(2):
                D = ACC + 16 * st
                cc = "0" if first else "v[%d:%d]" % (D, D + 15)
                if w3: out.append("v_mfma_f32_32x32x16_bf16 v[%d:%d], v[%d:%d], v[%d:%d], %s" % (D, D + 15, B + 4 * st, B + 4 * st + 3, A, A + 3, cc))
                else: out.append("v_mfma_f32_32x32x16_bf16 v[%d:%d], v[%d:%d], v[%d:%d], %s" % (D, D + 15, A, A + 3, B + 4 * st, B + 4 * st + 3, cc))
            return out
        a("s_mov_b32 s64, %d" % SLOT)
        if "pf2" in self.exp:
            a("v_lshlrev_b32 v9, 4, v%d" % V_LANE)
            lab = a.newlabel("pf2")
            a("s_cmp_lg_u32 s%d, 0" % S_PASS)
            a("s_cbranch_scc1 %s_b" % lab)
            for i in range(4): a("s_mov_b32 s%d, s%d" % (72 + i, SRD_WSP + i) if i < 3 else "s_mov_b32 s75, 0x20000")
            a("s_lshl_b32 s76, s%d, 6" % S_MB)
            a("s_lshl_b32 s3, s%d, 3" % S_J)
            a("s_add_u32 s76, s76, s3")
            a("s_lshl_b32 s3, s%d, 1" % S_W)
            a("s_add_u32 s76, s76, s3")
            a("s_lshl_b32 s76, s76, 12")
            a("s_branch %s_d" % lab)
            a.label(lab + "_b")
            for i in range(4): a("s_mov_b32 s%d, s%d" % (72 + i, SRD_WOUT + i) if i < 3 else "s_mov_b32 s75, 0x20000")
            a("s_and_b32 s76, s%d, 3" % S_MB)
            a("s_lshl_b32 s76, s76, 3")
            a("s_add_u32 s76, s76, s%d" % S_J)
            a("s_lshl_b32 s76, s76, 2")
            a("s_add_u32 s76, s76, s%d" % S_W)
            a("s_mul_i32 s76, s76, 43")
            a("s_lshr_b32 s76, s76, 3")
            a("s_lshl_b32 s76, s76, 10")
            a.label(lab + "_d")
        if w3:
            for ks in range(4): a("v_add_u32 v%d, s%d, v%d" % (120 + ks, S_SLOT, 116 + ks))
        for r in self.c_reads(w3, 0, 0, False): a(r)
        for r in self.c_reads(w3, 0, 1, False): a(r)
        for c in range(8):
            a("s_barrier")
            extra = []
            if w3:
                extra += ["s_add_u32 s%d, s%d, %d" % (S_T1, S_SLOT, SLOT), "s_cmp_eq_u32 s%d, %d" % (S_T1, NSLOT * SLOT), "s_cselect_b32 s%d, 0, s%d" % (S_T1, S_T1),
                          "v_add_u32 v124, s%d, v116" % S_T1, "v_add_u32 v125, s%d, v117" % S_T1]
            for ks in range(4):
                if ks < 2: rd = self.c_reads(w3, c, ks + 2, False)
                else: rd = self.c_reads(w3, c + 1, ks - 2, True)
                if "cnoread" in self.exp: rd = []
                m = mfs(ks, c == 0 and ks == 0)
                if "cnomfma" in self.exp: m = []
                a("s_waitcnt lgkmcnt(%d)" % nr)
                half = (len(rd) + 1) // 2
                if m: a(m[0])
                if ks == 0:
                    for e in extra: a(e)
                    if "pf2" in self.exp:
                        a("buffer_load_dwordx4 a[16:19], v9, s[72:75], s76 offen")
                        a("s_add_u32 s76, s76, 1024")
                for r in rd[:half]: a(r)
                if m: a(m[1])
                for r in rd[half:]: a(r)
                if ks == 3:
                    if w3:
                        a("s_mov_b32 s%d, s%d" % (S_SLOT, S_T1))
                        for k2 in range(4): a("v_add_u32 v%d, s%d, v%d" % (120 + k2, S_SLOT, 116 + k2))
                    else:
                        a("v_mov_b32 v%d, v%d" % (self.C_AC, self.C_AN))
                        a("s_add_u32 s%d, s%d, %d" % (S_SLOT, S_SLOT, SLOT))
                        a("s_cmp_eq_u32 s%d, %d" % (S_SLOT, NSLOT * SLOT))
                        a("s_cselect_b32 s%d, 0x%x, s64" % (S_T1, (-(NSLOT - 1) * SLOT) & 0xffffffff))
                        a("s_cselect_b32 s%d, 0, s%d" % (S_SLOT, S_SLOT))
                        a("v_add_u32 v%d, s%d, v%d" % (self.C_AN, S_T1, self.C_AN))
        a("s_waitcnt lgkmcnt(0)")

    def gelu_epilogue(self, dst, hook=None, hook_at=8):
        a = self.a
        E = 16
        c1 = -2.0 * math.sqrt(2.0 / math.pi) * math.log2(math.e)
        c2 = c1 * 0.044715
        a("v_mov_b32 v6, 0x%x" % f2u(c1))
        a("s_mov_b32 s%d, 0x%x" % (S_K2, f2u(c2)))
        a("s_mov_b32 s%d, 0x%x" % (S_K2 + 1, f2u(c2)))
        for pp in range(0, 16, 2):
            if hook is not None and pp == hook_at: hook()
            seq = [[], []]
            for u in range(2):
                pre = self.C_ACC + 2 * (pp + u)
                p2, e = E + u * 4, E + u * 4 + 2
                s = seq[u]
                s.append("v_pk_mul_f32 v[%d:%d], v[%d:%d], v[%d:%d]" % (p2, p2 + 1, pre, pre + 1, pre, pre + 1))
                s.append("v_pk_fma_f32 v[%d:%d], v[%d:%d], s[%d:%d], v[6:7] op_sel_hi:[1,1,0]" % (p2, p2 + 1, p2, p2 + 1, S_K2, S_K2 + 1))
                s.append("v_pk_mul_f32 v[%d:%d], v[%d:%d], v[%d:%d]" % (p2, p2 + 1, p2, p2 + 1, pre, pre + 1))
                s.append("v_exp_f32 v%d, v%d" % (e, p2))
                s.append("v_exp_f32 v%d, v%d" % (e + 1, p2 + 1))
                s.append("v_pk_add_f32 v[%d:%d], v[%d:%d], 1.0 op_sel_hi:[1,0]" % (e, e + 1, e, e + 1))
                s.append("v_rcp_f32 v%d, v%d" % (e, e))
                s.append("v_rcp_f32 v%d, v%d" % (e + 1, e + 1))
                s.append("v_pk_mul_f32 v[%d:%d], v[%d:%d], v[%d:%d]" % (e, e + 1, pre, pre + 1, e, e + 1))
                s.append("v_cvt_pk_bf16_f32 v%d, v%d, v%d" % (dst + pp + u, e, e + 1))
            for i in range(len(seq[0])):
                a(seq[0][i]); a(seq[1][i])

    def stats2_partial(self, src):
        a = self.a
        E = 16
        a("v_mov_b32 v24, 0x3f803f80")
        for i in range(4): a("v_mov_b32 v%d, 0" % (E + i))
        for r in range(8):
            for st in range(2):
                a("v_dot2c_f32_bf16 v%d, v%d, v24" % (E + 2 * st, src + 8 * st + r))
                a("v_dot2c_f32_bf16 v%d, v%d, v%d" % (E + 2 * st + 1, src + 8 * st + r, src + 8 * st + r))
        self.hsum([E, E + 1, E + 2, E + 3], E + 4)
        a("s_lshl_b32 s3, s%d, 9" % S_W)
        a("s_add_u32 s3, s3, %d" % LDS_T4)
        a("v_lshlrev_b32 v8, 3, v%d" % V_JL)
        a("v_add_u32 v8, s3, v8")
        a("ds_write_b64 v8, v[%d:%d]" % (E, E + 1))
        a("ds_write_b64 v8, v[%d:%d] offset:256" % (E + 2, E + 3))
        a("s_waitcnt lgkmcnt(0)")

    def dft_store(self, part):
        a = self.a
        a("v_and_b32 v5, 7, v%d" % V_SIG)
        a("v_xor_b32 v5, v5, v%d" % V_H)
        a("v_lshlrev_b32 v5, 4, v5")
        a("v_lshl_add_u32 v5, v%d, 7, v5" % V_SIG)
        a("v_add_u32 v5, %d, v5" % LDS_AT)
        for st in range(2):
            for Q in range(2):
                o = 16 + (st * 2 + Q) * 4
                for p in range(4):
                    acc = self.C_ACC + 16 * st + 8 * Q + 2 * p
                    a("v_cvt_pk_bf16_f32 v%d, v%d, v%d" % (o + p, acc, acc + 1))
                a("v_xor_b32 v6, %d, v5" % ((4 * st + 2 * Q) * 16))
                a("ds_write_b128 v6, v[%d:%d]" % (o, o + 3))
        a("v_lshrrev_b32 v7, 3, v%d" % V_LANE)
        a("v_and_b32 v8, 7, v%d" % V_LANE)
        a("v_xor_b32 v6, v7, v8")
        a("v_lshlrev_b32 v6, 4, v6")
        a("v_lshl_add_u32 v6, v7, 7, v6")
        a("v_add_u32 v6, %d, v6" % LDS_AT)
        a("s_waitcnt lgkmcnt(0)")
        for i in range(4):
            a("ds_read_b128 v[%d:%d], v6 offset:%d" % (32 + 4 * i, 35 + 4 * i, i * 1024))
        a("v_lshlrev_b32 v7, 13, v7")
        a("v_lshl_add_u32 v7, v8, 4, v7")
        a("s_lshl_b32 s%d, s%d, 18" % (S_T0, S_J))
        a("s_lshl_b32 s3, s%d, 7" % S_MB)
        a("s_add_u32 s%d, s%d, s3" % (S_T0, S_T0))
        a("s_add_u32 s%d, s%d, 0x%x" % (S_T0, S_T0, WS_AB + part * 4096))
        a("s_waitcnt lgkmcnt(0)")
        for i in range(4):
            a("buffer_store_dwordx4 v[%d:%d], v7, s[%d:%d], s%d offen sc1" % (32 + 4 * i, 35 + 4 * i, SRD_WS, SRD_WS + 3, S_T0))
            if i < 3: a("s_add_u32 s%d, s%d, %d" % (S_T0, S_T0, 8 * 8192))

    def z2n_publish(self):
        a = self.a
        a("v_lshlrev_b32 v5, 3, v%d" % V_JL)
        a("v_add_u32 v5, %d, v5" % LDS_T5)
        a("ds_read_b64 v[6:7], v5")
        a("ds_read_b64 v[8:9], v5 offset:256")
        a("s_waitcnt lgkmcnt(0)")
        N = 48
        for st in range(2):
            r2 = 6 + 2 * st
            for r in range(8):
                src = self.C_Z2P + 8 * st + r
                t = 16 + 2 * (r % 4)
                a("v_lshlrev_b32 v%d, 16, v%d" % (t, src))
                a("v_and_b32 v%d, 0xffff0000, v%d" % (t + 1, src))
                a("v_pk_fma_f32 v[%d:%d], v[%d:%d], v[%d:%d], v[%d:%d] op_sel:[0,0,1] op_sel_hi:[1,0,1]" % (t, t + 1, t, t + 1, r2, r2 + 1, r2, r2 + 1))
                a("v_cvt_pk_bf16_f32 v%d, v%d, v%d" % (N + 8 * st + r, t, t + 1))
        DT = 16
        for st in range(2):
            D = DT + 16 * st
            a("v_mfma_f32_32x32x16_bf16 v[%d:%d], v[%d:%d], a[0:3], 0" % (D, D + 15, N + 8 * st, N + 8 * st + 3))
        for st in range(2):
            D = DT + 16 * st
            a("v_mfma_f32_32x32x16_bf16 v[%d:%d], v[%d:%d], a[4:7], v[%d:%d]" % (D, D + 15, N + 8 * st + 4, N + 8 * st + 7, D, D + 15))
        a("s_lshl_b32 s%d, s%d, 7" % (S_T0, S_J))
        a("s_lshl_b32 s%d, s%d, 2" % (S_T1, S_MB))
        a("s_add_u32 s%d, s%d, s%d" % (S_T0, S_T0, S_T1))
        a("s_mul_i32 s%d, s%d, 3" % (S_T0, S_T0))
        a("s_add_u32 s%d, s%d, s%d" % (S_T0, S_T0, S_W))
        a("s_lshl_b32 s%d, s%d, 10" % (S_T0, S_T0))
        a("s_add_u32 s%d, s%d, 0x%x" % (S_T0, S_T0, WS_Z2N))
        a("v_lshlrev_b32 v5, 4, v%d" % V_LANE)
        for st in range(2):
            for Q in range(2):
                D = DT + 16 * st + 8 * Q
                o = 48 + (st * 2 + Q) * 4
                for p in range(4):
                    a("v_cvt_pk_bf16_f32 v%d, v%d, v%d" % (o + p, D + 2 * p, D + 2 * p + 1))
                a("s_add_u32 s%d, s%d, %d" % (S_T1, S_T0, (2 * st + Q) * 3072))
                if "nozstore" not in self.exp: a("buffer_store_dwordx4 v[%d:%d], v5, s[%d:%d], s%d offen sc1" % (o, o + 3, SRD_WS, SRD_WS + 3, S_T1))

    def zero_acc(self):
        for i in range(32): self.a("v_mov_b32 v%d, 0" % (self.C_ACC + i))

    def p1_compute(self):
        a = self.a
        a("s_cmp_eq_u32 s%d, 3" % S_W)
        a("s_cbranch_scc1 L_c3")
        self.c_setup(False)
        a("s_mov_b32 s%d, 0" % S_C)
        a("s_mov_b32 s%d, %d" % (S_SLOT, SLOT))
        a("s_mov_b32 s%d, 0" % S_PASS)
        a("s_waitcnt lgkmcnt(0)")
        a("s_barrier")
        if "nopf" not in self.exp: self.prefetch_b()
        self.stamp(1)
        self.stamp(28)
        a.label("L_pass")
        self.c_loop(False)
        a("s_cmp_lg_u32 s%d, 0" % S_PASS)
        a("s_cbranch_scc1 L_passB_done")
        self.stamp(29)
        self.stamp(2)
        if "nopf" not in self.exp: self.prefetch_wsp()
        self.gelu_epilogue(self.C_Z2P)
        self.stats2_partial(self.C_Z2P)
        a("s_barrier")
        a("v_mov_b32 v6, 0")
        a("buffer_load_dword a8, v6, s[%d:%d], 0 offen sc1" % (SRD_DBG, SRD_DBG + 3))
        a("s_lshl_b32 s%d, s%d, 7" % (S_T0, S_MB))
        a("v_lshlrev_b32 v5, 1, v%d" % V_SIG)
        a("buffer_load_ushort a9, v5, s[%d:%d], s%d offen" % (SRD_BSP, SRD_BSP + 3, S_T0))
        a("buffer_load_ushort a10, v5, s[%d:%d], s%d offen offset:64" % (SRD_BSP, SRD_BSP + 3, S_T0))
        if "nopf" not in self.exp: self.prefetch_wout()
        self.stamp(3)
        a("s_mov_b32 s%d, 1" % S_PASS)
        a("s_branch L_pass")
        a.label("L_passB_done")
        self.stamp(4)
        a("s_waitcnt vmcnt(0)")
        a("v_accvgpr_read_b32 v39, a8")
        self.nonce_from(39)
        self.stamp(22)
        a("s_barrier")
        self.stamp(5)
        self.z2n_publish()
        if "b3b" in self.exp: a("s_barrier")
        def hook():
            a("s_waitcnt vmcnt(0)")
            self.flag_store(1, 0, S_W, vt=(8, 9))
            self.stamp(7)
        self.gelu_epilogue(self.C_Z1P, hook, 8)
        a("s_branch L_c_join")
        a.label("L_c3")
        self.c_setup(True)
        a("s_mov_b32 s%d, 0" % S_C)
        a("s_mov_b32 s%d, 0" % S_SLOT)
        a("s_mov_b32 s%d, 0" % S_PASS)
        a("s_waitcnt lgkmcnt(0)")
        a("s_barrier")
        if "nopf" not in self.exp: self.prefetch_b()
        a.label("L_pass3")
        self.c_loop(True)
        a("s_cmp_lg_u32 s%d, 0" % S_PASS)
        a("s_cbranch_scc1 L_passB3_done")
        if "nopf" not in self.exp: self.prefetch_wsp()
        self.dft_store(0)
        a("s_barrier")
        a("v_mov_b32 v6, 0")
        a("buffer_load_dword a8, v6, s[%d:%d], 0 offen sc1" % (SRD_DBG, SRD_DBG + 3))
        if "nopf" not in self.exp: self.prefetch_wout()
        a("s_mov_b32 s%d, 1" % S_PASS)
        a("s_branch L_pass3")
        a.label("L_passB3_done")
        self.dft_store(1)
        a("s_waitcnt vmcnt(0)")
        a("v_accvgpr_read_b32 v39, a8")
        self.nonce_from(39)
        self.flag_store(1, 3)
        a("s_barrier")
        if "b3b" in self.exp: a("s_barrier")
        a.label("L_c_join")

    def fix_x_after_pass(self):
        a = self.a
        a("v_subrev_u32 v%d, 8192, v%d" % (self.C_XA, self.C_XA))
        a("v_subrev_u32 v%d, 8192, v%d" % (self.C_XA + 1, self.C_XA + 1))

    def capture(self, fn):
        save = self.a
        tmp = Asm(); tmp.uid = save.uid + 1000
        self.a = tmp
        fn()
        self.a = save
        save.uid = tmp.uid
        return [i.text for i in tmp.ins]

    def h_loop(self, k0):
        a = self.a
        consts = self.capture(self.fft_consts) if (k0 == 8 and "nofft" not in self.exp) else []
        per = (len(consts) + 7) // 8
        st = self.stage_loads() if k0 == 8 else []
        nst = 0
        for k in range(k0, k0 + 8):
            if k + 1 <= 15 and "hnowait" not in self.exp:
                younger = 4 * (min(k + 3, 15) - (k + 1))
                if k >= 12:
                    lab = a.newlabel("hw")
                    a("s_cmp_ge_u32 s%d, 2" % S_HW)
                    a("s_cbranch_scc1 %s_b" % lab)
                    a("s_waitcnt vmcnt(%d)" % (younger + nst))
                    a("s_branch %s_d" % lab)
                    a.label(lab + "_b")
                    a("s_cmp_eq_u32 s%d, 2" % S_HW)
                    a("s_cbranch_scc1 %s_c" % lab)
                    a("s_waitcnt vmcnt(%d)" % younger)
                    a("s_branch %s_d" % lab)
                    a.label(lab + "_c")
                    a("s_waitcnt vmcnt(%d)" % (younger + (16 if k >= 14 else 0)))
                    a.label(lab + "_d")
                else:
                    a("s_waitcnt vmcnt(%d)" % younger)
            a("s_barrier")
            if k + 4 <= 15: self.dma_chunk(k + 4)
            if k == 13:
                lab = a.newlabel("si")
                a("s_cmp_lg_u32 s%d, 2" % S_HW)
                a("s_cbranch_scc1 %s" % lab)
                self.stats2_issue()
                a.label(lab)
            if k == 15:
                lab = a.newlabel("si")
                a("s_cmp_lg_u32 s%d, 2" % S_HW)
                a("s_cbranch_scc1 %s" % lab)
                self.stats2_consume()
                a.label(lab)
            if k == 11:
                self.wsp_voffsets(120)
                a("s_lshl_b32 s%d, s%d, 18" % (S_T1, S_MB))
                a("s_lshl_b32 s3, s%d, 10" % S_HW)
                a("s_add_u32 s%d, s%d, s3" % (S_T1, S_T1))
                a("s_add_u32 s67, s%d, %d" % (S_T1, 2 * 256))
                a("s_add_u32 s68, s%d, %d" % (S_T1, 3 * 256))
                a("s_add_u32 s69, s%d, %d" % (S_T1, 2 * 1024 + 2 * 256))
            if k0 == 0: continue
            lab = a.newlabel("role")
            a("s_cmp_lt_u32 s%d, 2" % S_HW)
            a("s_cbranch_scc1 %s_s" % lab)
            if consts:
                for t in consts[(k - k0) * per:(k - k0 + 1) * per]: a(t)
            a("s_branch %s_d" % lab)
            a.label(lab + "_s")
            if st and k >= 12:
                n = 12
                for t in st[2 * nst:2 * (nst + n)]: a(t)
                nst += n
            a.label(lab + "_d")

    def stats2_publish(self):
        a = self.a
        E = 16
        a("v_lshlrev_b32 v8, 3, v%d" % V_JL)
        a("v_add_u32 v8, %d, v8" % LDS_T4)
        for w in range(3):
            for st in range(2):
                d = E + w * 4 + st * 2
                a("ds_read_b64 v[%d:%d], v8 offset:%d" % (d, d + 1, w * 512 + st * 256))
        a("s_waitcnt lgkmcnt(0)")
        for w in range(1, 3):
            for st in range(2):
                a("v_pk_add_f32 v[%d:%d], v[%d:%d], v[%d:%d]" % (E + st * 2, E + st * 2 + 1, E + st * 2, E + st * 2 + 1, E + w * 4 + st * 2, E + w * 4 + st * 2 + 1))
        for st in range(2):
            o = 32 + 4 * st
            a("v_mov_b32 v%d, v%d" % (o, E + 2 * st))
            a("v_mov_b32 v%d, s%d" % (o + 1, S_NONCE))
            a("v_mov_b32 v%d, v%d" % (o + 2, E + 2 * st + 1))
            a("v_mov_b32 v%d, s%d" % (o + 3, S_NONCE))
        a("s_lshl_b32 s%d, s%d, 3" % (S_T0, S_MB))
        a("s_add_u32 s%d, s%d, s%d" % (S_T0, S_T0, S_J))
        a("s_lshl_b32 s%d, s%d, 10" % (S_T0, S_T0))
        a("s_add_u32 s%d, s%d, 0x%x" % (S_T0, S_T0, WS_STATS))
        a("v_lshlrev_b32 v8, 4, v%d" % V_JL)
        a("s_mov_b32 exec_hi, 0")
        a("buffer_store_dwordx4 v[32:35], v8, s[%d:%d], s%d offen sc1" % (SRD_WS, SRD_WS + 3, S_T0))
        a("buffer_store_dwordx4 v[36:39], v8, s[%d:%d], s%d offen offset:512 sc1" % (SRD_WS, SRD_WS + 3, S_T0))
        a("s_mov_b64 exec, -1")

    ST = 48
    def stats2_issue(self):
        a = self.a
        a("s_lshl_b32 s%d, s%d, 13" % (S_T0, S_MB))
        a("s_add_u32 s%d, s%d, 0x%x" % (S_T0, S_T0, WS_STATS))
        a("v_lshlrev_b32 v8, 4, v%d" % V_JL)
        for jj in range(8):
            for st in range(2):
                r = self.ST + (jj * 2 + st) * 4
                a("buffer_load_dwordx4 v[%d:%d], v8, s[%d:%d], s%d offen offset:%d sc1" % (r, r + 3, SRD_WS, SRD_WS + 3, S_T0, st * 512))
            if jj < 7: a("s_add_u32 s%d, s%d, 1024" % (S_T0, S_T0))

    def stats2_consume(self):
        a = self.a
        lab = a.newlabel("sc")
        a("s_mov_b32 s%d, 0" % S_SPIN)
        a.label(lab)
        a("s_waitcnt vmcnt(0)")
        a("s_mov_b64 s[%d:%d], 0" % (S_EX, S_EX + 1))
        for g in range(16):
            r = self.ST + 4 * g
            a("v_cmp_ne_u32 vcc, s%d, v%d" % (S_NONCE, r + 1))
            a("s_or_b64 s[%d:%d], s[%d:%d], vcc" % (S_EX, S_EX + 1, S_EX, S_EX + 1))
            a("v_cmp_ne_u32 vcc, s%d, v%d" % (S_NONCE, r + 3))
            a("s_or_b64 s[%d:%d], s[%d:%d], vcc" % (S_EX, S_EX + 1, S_EX, S_EX + 1))
        a("s_cmp_eq_u64 s[%d:%d], 0" % (S_EX, S_EX + 1))
        a("s_cbranch_scc1 %s_ok" % lab)
        a("s_add_u32 s%d, s%d, 1" % (S_SPIN, S_SPIN))
        a("s_cmp_gt_u32 s%d, 0x8000" % S_SPIN)
        a("s_cbranch_scc1 %s_ok" % lab)
        self.stats2_issue()
        a("s_branch %s" % lab)
        a.label(lab + "_ok")
        for st in range(2):
            b = self.ST + 4 * st
            for jj in range(1, 8):
                r = self.ST + (jj * 2 + st) * 4
                a("v_add_f32 v%d, v%d, v%d" % (b, b, r))
                a("v_add_f32 v%d, v%d, v%d" % (b + 2, b + 2, r + 2))
        for st in range(2):
            b = self.ST + 4 * st
            self.mean_rstd(b, b + 2, 688, 112 + 2 * st, 113 + 2 * st, 116)
        a("v_lshlrev_b32 v8, 3, v%d" % V_JL)
        a("v_add_u32 v8, %d, v8" % LDS_T5)
        a("ds_write_b64 v8, v[112:113]")
        a("ds_write_b64 v8, v[114:115] offset:256")
        a("s_waitcnt lgkmcnt(0)")

    def angles(self, n_list, tq, base, dst):
        a = self.a
        for idx, n in enumerate(n_list):
            if n == 0: a("v_mov_b32 v%d, v%d" % (dst + idx, base))
            else: a("v_fmamk_f32 v%d, v%d, 0x%x, v%d" % (dst + idx, tq, f2u(float(n)), base))

    H_T1F, H_8H = 46, 47
    def fft_consts(self):
        a = self.a
        T = 16
        a("v_bfe_u32 v%d, v%d, 2, 1" % (T, V_JL))
        a("v_lshlrev_b32 v%d, 4, v%d" % (T, T))
        a("v_bfe_u32 v%d, v%d, 3, 2" % (T + 1, V_JL))
        a("v_lshl_or_b32 v%d, v%d, 2, v%d" % (T, T + 1, T))
        a("v_and_b32 v%d, 3, v%d" % (T + 1, V_JL))
        a("v_or_b32 v%d, v%d, v%d" % (T, T, T + 1))
        a("v_cvt_f32_u32 v%d, v%d" % (self.H_T1F, T))
        a("v_cvt_f32_u32 v%d, v%d" % (self.H_8H, V_H))
        a("v_mul_f32 v%d, 0x%x, v%d" % (self.H_8H, f2u(8.0), self.H_8H))
        a("v_mul_f32 v%d, 0x%x, v%d" % (T + 2, f2u(1.0 / 32), self.H_T1F))
        a("v_mul_f32 v%d, v%d, v%d" % (T + 3, T + 2, self.H_8H))
        A = T + 4; C = T + 12; S = T + 20
        for ks in range(2):
            self.angles([16 * ks + i for i in range(8)], T + 2, T + 3, A)
            for i in range(8): a("v_fract_f32 v%d, v%d" % (A + i, A + i))
            for i in range(8):
                a("v_cos_f32 v%d, v%d" % (C + i, A + i))
                a("v_sin_f32 v%d, v%d" % (S + i, A + i))
            for p in range(4):
                a("v_cvt_pk_bf16_f32 v%d, v%d, v%d" % (A + 0, C + 2 * p, C + 2 * p + 1))
                a("v_cvt_pk_bf16_f32 v%d, -v%d, -v%d" % (A + 1, S + 2 * p, S + 2 * p + 1))
                a("v_cvt_pk_bf16_f32 v%d, v%d, v%d" % (A + 2, S + 2 * p, S + 2 * p + 1))
                a("v_accvgpr_write_b32 a%d, v%d" % (4 * ks + p, A + 0))
                a("v_accvgpr_write_b32 a%d, v%d" % (8 + 4 * ks + p, A + 1))
                a("v_accvgpr_write_b32 a%d, v%d" % (16 + 4 * ks + p, A + 2))
        a("v_accvgpr_write_b32 a60, v%d" % self.H_T1F)
        a("v_accvgpr_write_b32 a61, v%d" % self.H_8H)
        a("s_sub_u32 s3, s%d, 2" % S_HW)
        a("s_lshl_b32 s3, s3, 5")
        a("v_add_u32 v%d, s3, v%d" % (T + 2, V_JL))
        a("v_cvt_f32_u32 v%d, v%d" % (T + 2, T + 2))
        a("v_mul_f32 v%d, 0x%x, v%d" % (T + 2, f2u(1.0 / 64), T + 2))
        a("v_mul_f32 v%d, v%d, v%d" % (T + 3, T + 2, self.H_8H))
        for kt in range(2):
            for kp in range(2):
                self.angles([32 * kt + 16 * kp + i for i in range(8)], T + 2, T + 3, A)
                for i in range(8): a("v_fract_f32 v%d, v%d" % (A + i, A + i))
                for i in range(8):
                    a("v_cos_f32 v%d, v%d" % (C + i, A + i))
                    a("v_sin_f32 v%d, v%d" % (S + i, A + i))
                for p in range(4):
                    a("v_cvt_pk_bf16_f32 v%d, v%d, v%d" % (A + 0, C + 2 * p, C + 2 * p + 1))
                    a("v_cvt_pk_bf16_f32 v%d, v%d, v%d" % (A + 1, S + 2 * p, S + 2 * p + 1))
                    a("v_accvgpr_write_b32 a%d, v%d" % (24 + 16 * kt + 4 * kp + p, A + 0))
                    a("v_accvgpr_write_b32 a%d, v%d" % (24 + 16 * kt + 8 + 4 * kp + p, A + 1))

    def p1_helper(self):
        a = self.a
        a("s_mov_b32 s%d, 0" % S_C)
        a("v_mov_b32 v6, 0")
        a("buffer_load_dword v%d, v6, s[%d:%d], 0 offen sc1" % (self.V_NON, SRD_DBG, SRD_DBG + 3))
        a("s_waitcnt vmcnt(13) lgkmcnt(0)")
        a("s_barrier")
        self.h_loop(0)
        self.nonce_from(self.V_NON)
        a("s_barrier")
        a("s_cmp_lg_u32 s%d, 0" % S_HW)
        a("s_cbranch_scc1 L_h_nopub")
        self.stats2_publish()
        a.label("L_h_nopub")
        self.h_loop(8)
        self.stamp(22)
        a("s_barrier")
        if "b3b" in self.exp: a("s_barrier")

    G_B = 16
    G_VB = 10
    G_VZ = 32
    G_L16 = 35
    G_BS = 36
    G_RV = 40
    def ring_reg(self, f):
        if f < 8: return "a[%d:%d]" % (96 + 4 * f, 96 + 4 * f + 3)
        r = self.G_RV + 4 * (f - 8)
        return "v[%d:%d]" % (r, r + 3)

    def g_compute(self):
        a = self.a
        a("v_lshlrev_b32 v%d, 4, v%d" % (self.G_L16, V_LANE))
        a("v_and_b32 v5, 15, v%d" % V_SIG)
        a("v_xor_b32 v5, v5, v%d" % V_H)
        a("v_lshlrev_b32 v5, 4, v5")
        a("v_lshl_add_u32 v5, v%d, 8, v5" % V_SIG)
        a("s_lshl_b32 s3, s%d, 15" % S_W)
        a("v_add_u32 v104, s3, v5")
        for k in range(1, 8): a("v_xor_b32 v%d, %d, v104" % (104 + k, k * 32))
        a("s_sub_u32 s%d, s%d, 64" % (S_T2, S_WID))
        for tau in range(3):
            a("s_add_u32 s%d, s%d, %d" % (S_T0, S_W, tau))
            a("s_cmp_ge_u32 s%d, 3" % S_T0)
            a("s_cselect_b32 s%d, 3, 0" % S_T1)
            a("s_sub_u32 s%d, s%d, s%d" % (S_T0, S_T0, S_T1))
            a("s_lshl_b32 s%d, s%d, 10" % (S_T1, S_T0))
            a("v_add_u32 v5, s%d, v%d" % (S_T1, self.G_L16))
            a("v_mov_b32 v6, 0x%x" % OOB)
            a("v_cmp_le_u32 vcc, s%d, v%d" % (S_T2, V_SIG))
            a("s_cmp_eq_u32 s%d, 2" % S_T0)
            a("s_cselect_b64 s[%d:%d], vcc, 0" % (S_EX, S_EX + 1))
            a("v_cndmask_b32 v%d, v5, v6, s[%d:%d]" % (self.G_VZ + tau, S_EX, S_EX + 1))
        a("s_lshl_b32 s3, s%d, 5" % S_J)
        a("s_lshl_b32 s%d, s%d, 3" % (S_T0, S_W))
        a("s_add_u32 s3, s3, s%d" % S_T0)
        a("v_add_u32 v38, s3, v%d" % V_LANE)
        a("v_lshlrev_b32 v38, 7, v38")
        a("v_add_u32 v38, 0x%x, v38" % (WS_FLAG + 256 * 128))
        a("s_lshl_b32 s%d, s%d, 7" % (S_B0, S_J))
        a("s_lshl_b32 s3, s%d, 5" % S_W)
        a("s_add_u32 s%d, s%d, s3" % (S_B0, S_B0))
        a("s_mov_b32 s%d, 0" % S_RHO)
        for cc in range(4):
            a("s_add_u32 s3, s%d, %d" % (S_RHO, cc))
            a("s_and_b32 s3, s3, 3")
            a("s_lshl_b32 s3, s3, 3")
            a("s_add_u32 s3, s3, s%d" % S_B0)
            a("s_mul_i32 s3, s3, 3072")
            a("s_add_u32 s%d, s3, 0x%x" % (67 + cc, WS_Z2N))
        a("v_accvgpr_read_b32 v%d, a9" % self.G_BS)
        a("v_accvgpr_read_b32 v%d, a10" % (self.G_BS + 1))
        self.poll_flags_n(38, 8, 3, 16)
        self.stamp(8)
        self.stamp(26)
        vq = VQ(a)
        def zload(n):
            a("s_add_u32 s%d, s%d, %d" % (S_T0, 67 + n // 8, (n % 8) * 3072))
            for tau in range(3):
                f = (n % 8) * 3 + tau
                a("buffer_load_dwordx4 %s, v%d, s[%d:%d], s%d offen %s" % (self.ring_reg(f), self.G_VZ + tau, SRD_WS, SRD_WS + 3, S_T0, "" if "gplain" in self.exp else "sc1"))
                vq.issue(("z", n))
        for n in range(8): zload(n)
        B = self.G_B
        SY_FREE = LDS_SY + 0
        SY_LAND = LDS_SY + 16
        a("s_lshl_b32 s3, s%d, 2" % S_W)
        a("s_add_u32 s3, s3, %d" % LDS_SY)
        a("v_mov_b32 v14, s3")
        def land_check(cnt):
            lab = a.newlabel("ld")
            a("s_mov_b32 s%d, 0" % S_SPIN)
            a.label(lab)
            a("ds_read_b32 v15, v14 offset:16")
            a("s_waitcnt lgkmcnt(0)")
            a("v_readfirstlane_b32 s%d, v15" % S_T1)
            a("s_add_u32 s%d, s%d, 1" % (S_SPIN, S_SPIN))
            a("s_cmp_gt_u32 s%d, 0x100000" % S_SPIN)
            a("s_cbranch_scc1 %s_x" % lab)
            a("s_cmp_lt_u32 s%d, %d" % (S_T1, cnt))
            a("s_cbranch_scc1 %s" % lab)
            a.label(lab + "_x")
        def bread(n, st):
            cc, k = divmod(n, 8)
            r = B + (n & 1) * 8 + st * 4
            return "ds_read_b128 v[%d:%d], v%d offset:%d" % (r, r + 3, 104 + k, (cc & 1) * 16384 + st * 8192)
        if "cprio" in self.exp: a("s_setprio 1")
        land_check(1)
        a(bread(0, 0)); a(bread(0, 1))
        for n in range(32):
            cc, k = divmod(n, 8)
            buf = n & 1
            vq.wait(("z", n))
            nxt = n + 1 < 32
            need_land = nxt and (n + 1) % 8 == 0 and "gnoland" not in self.exp
            a("s_waitcnt lgkmcnt(0)")
            if need_land:
                if "landpf" in self.exp:
                    lab = a.newlabel("lp")
                    a("v_readfirstlane_b32 s%d, v15" % S_T1)
                    a("s_cmp_ge_u32 s%d, %d" % (S_T1, (n + 1) // 8 + 1))
                    a("s_cbranch_scc1 %s" % lab)
                    land_check((n + 1) // 8 + 1)
                    a.label(lab)
                else:
                    land_check((n + 1) // 8 + 1)
            fill = []
            if nxt: fill += [bread(n + 1, 0), bread(n + 1, 1)]
            if "landpf" in self.exp and (n + 2) % 8 == 0 and n + 2 < 32: fill.append("ds_read_b32 v15, v14 offset:16")
            zl = []
            if n + 8 < 32:
                zl.append("s_add_u32 s%d, s%d, %d" % (S_T0, 67 + (n + 8) // 8, ((n + 8) % 8) * 3072))
            mi = 0
            for tau in range(3):
                for st in range(2):
                    D = (tau * 2 + st) * 16
                    Br = B + buf * 8 + st * 4
                    cc_ = "0" if n == 0 else "a[%d:%d]" % (D, D + 15)
                    a("v_mfma_f32_32x32x16_bf16 a[%d:%d], %s, v[%d:%d], %s" % (D, D + 15, self.ring_reg((n % 8) * 3 + tau), Br, Br + 3, cc_))
                    if mi == 0:
                        for f in fill: a(f)
                        for f in zl: a(f)
                    if st == 1 and n + 8 < 32 and "gnoz" not in self.exp:
                        f = (n % 8) * 3 + tau
                        a("buffer_load_dwordx4 %s, v%d, s[%d:%d], s%d offen %s" % (self.ring_reg(f), self.G_VZ + tau, SRD_WS, SRD_WS + 3, S_T0, "" if "gplain" in self.exp else "sc1"))
                        vq.issue(("z", n + 8))
                    mi += 1
            if k == 7 and cc < 2:
                a("v_mov_b32 v15, %d" % (cc + 1))
                a("ds_write_b32 v14, v15")
        if "cprio" in self.exp: a("s_setprio 0")
        self.stamp(27)
        self.stamp(10)
        self.g_reduce()

    def wsp_dma16(self, cc, sbase, slds):
        a = self.a
        for q in range(16):
            a("s_add_u32 s%d, s%d, %d" % (S_T0, 67 + cc, q * 4 * 4096))
            a("s_add_u32 m0, s%d, %d" % (slds, (cc & 1) * 16384 + q * 1024))
            a("buffer_load_dwordx4 v%d, s[%d:%d], s%d offen lds" % (16 + (q & 3), SRD_WSP, SRD_WSP + 3, S_T0))

    def wsp_voffsets(self, base):
        a = self.a
        L = V_LANE
        a("v_lshrrev_b32 v5, 4, v%d" % L)
        a("v_and_b32 v6, 15, v%d" % L)
        for qq in range(4):
            a("v_add_u32 v7, %d, v5" % (4 * qq))
            a("v_xor_b32 v7, v7, v6")
            a("v_lshlrev_b32 v7, 4, v7")
            a("v_lshl_add_u32 v%d, v5, 12, v7" % (base + qq))

    def stage_reg(self, unit, q):
        if unit < 2:
            r = unit * 64 + 4 * q
            return "a[%d:%d]" % (r, r + 3)
        r = 32 + 4 * q
        return "v[%d:%d]" % (r, r + 3)

    def stage_loads(self):
        out = []
        for unit in range(3):
            for q in range(16):
                out.append("s_add_u32 s%d, s%d, %d" % (S_T0, 67 + unit, q * 4 * 4096))
                out.append("buffer_load_dwordx4 %s, v%d, s[%d:%d], s%d offen" % (self.stage_reg(unit, q), 120 + (q & 3), SRD_WSP, SRD_WSP + 3, S_T0))
        return out

    def g_helper(self):
        a = self.a
        L = V_LANE
        self.wsp_voffsets(16)
        a("s_lshl_b32 s%d, s%d, 18" % (S_B0, S_MB))
        a("s_lshl_b32 s3, s%d, 10" % S_HW)
        a("s_add_u32 s%d, s%d, s3" % (S_B0, S_B0))
        a("s_mov_b32 s70, s%d" % S_B0)
        a("s_add_u32 s71, s%d, 256" % S_B0)
        a("s_lshl_b32 s%d, s%d, 15" % (S_T3, S_HW))
        for cc in range(2):
            for q in range(16):
                a("s_add_u32 s%d, s%d, %d" % (S_T0, 70 + cc, q * 4 * 4096))
                a("s_add_u32 m0, s%d, %d" % (S_T3, cc * 16384 + q * 1024))
                a("buffer_load_dwordx4 v%d, s[%d:%d], s%d offen lds" % (16 + (q & 3), SRD_WSP, SRD_WSP + 3, S_T0))
        a("s_lshl_b32 s3, s%d, 2" % S_HW)
        a("s_add_u32 s3, s3, %d" % LDS_SY)
        a("v_mov_b32 v12, s3")
        def wait_free(off, cnt):
            lab = a.newlabel("fr")
            a("s_mov_b32 s%d, 0" % S_SPIN)
            a.label(lab)
            a("ds_read_b32 v5, v12 offset:%d" % off)
            a("s_waitcnt lgkmcnt(0)")
            a("v_readfirstlane_b32 s%d, v5" % S_T0)
            a("s_add_u32 s%d, s%d, 1" % (S_SPIN, S_SPIN))
            a("s_cmp_gt_u32 s%d, 0x100000" % S_SPIN)
            a("s_cbranch_scc1 %s_x" % lab)
            a("s_cmp_lt_u32 s%d, %d" % (S_T0, cnt))
            a("s_cbranch_scc0 %s_x" % lab)
            a("s_sleep 1")
            a("s_branch %s" % lab)
            a.label(lab + "_x")
        a("s_cmp_ge_u32 s%d, 2" % S_HW)
        a("s_cbranch_scc1 L_gh_fft")
        for (n, val) in ((16, 1), (0, 2)):
            a("s_waitcnt vmcnt(%d)" % n)
            a("v_mov_b32 v6, %d" % val)
            a("ds_write_b32 v12, v6 offset:16")
        a("v_lshlrev_b32 v13, 4, v%d" % L)
        a("s_lshl_b32 s3, s%d, 15" % S_HW)
        a("v_add_u32 v13, s3, v13")
        a("v_add_u32 v14, 65536, v13")
        def put(unit, vaddr, slot, landoff, cnt):
            for q in range(16 if "noput" not in self.exp else 0):
                a("ds_write_b128 v%d, %s offset:%d" % (vaddr, self.stage_reg(unit, q), slot * 16384 + q * 1024))
            a("v_mov_b32 v6, %d" % cnt)
            a("s_waitcnt lgkmcnt(0)")
            a("ds_write_b32 v12, v6 offset:%d" % landoff)
        wait_free(0, 1); put(0, 13, 0, 16, 3)
        for q in range(16):
            a("s_add_u32 s%d, s69, %d" % (S_T0, 256 + q * 4 * 4096))
            a("buffer_load_dwordx4 a[%d:%d], v%d, s[%d:%d], s%d offen" % (4 * q, 4 * q + 3, 120 + (q & 3), SRD_WSP, SRD_WSP + 3, S_T0))
        wait_free(8, 1); put(2, 14, 0, 24, 3)
        wait_free(0, 2); put(1, 13, 1, 16, 4)
        wait_free(8, 2)
        a("s_waitcnt vmcnt(0)")
        put(0, 14, 1, 24, 4)
        a("s_branch L_gh_done")
        a.label("L_gh_fft")
        for (n, val) in ((16, 1), (0, 2)):
            a("s_waitcnt vmcnt(%d)" % n)
            a("v_mov_b32 v6, %d" % val)
            a("ds_write_b32 v12, v6 offset:16")
        if "nofft" not in self.exp:
            if "fftprio0" not in self.exp: a("s_setprio 3")
            self.fft()
            a("s_setprio 0")
        a("s_waitcnt vmcnt(0)")
        a("s_sub_u32 s%d, s%d, 2" % (S_T1, S_HW))
        self.flag_store(3, 0, S_T1)
        self.stamp(19)
        a.label("L_gh_done")
        self.stamp(9)
        a("v_lshrrev_b32 v5, 3, v%d" % L)
        a("v_and_b32 v6, 7, v%d" % L)
        a("v_bfe_u32 v7, v%d, 4, 1" % L)
        a("v_lshlrev_b32 v7, 2, v7")
        a("v_xor_b32 v6, v6, v7")
        a("v_lshlrev_b32 v6, 4, v6")
        a("v_lshl_add_u32 v9, v5, 10, v6")
        a("s_lshl_b32 s3, s%d, 7" % S_J)
        a("v_add_u32 v9, s3, v9")
        def wo(g):
            a("s_mov_b32 m0, %d" % (LDS_WO + g * 1024))
            a("s_mov_b32 s%d, %d" % (S_T0, g * 8192))
            a("buffer_load_dwordx4 v9, s[%d:%d], s%d offen lds" % (SRD_WOUT, SRD_WOUT + 3, S_T0))
        early = {2: list(range(56, 64)) + list(range(75, 81)), 3: list(range(64, 72)) + list(range(81, 88))}
        done = set(early[2]) | set(early[3])
        rest = [g for g in range(88) if g not in done]
        assert LDS_SY + 64 <= LDS_WO + 75 * 1024 and LDS_AT >= LDS_WO + 75 * 1024
        for hw in (2, 3):
            lab = a.newlabel("wo")
            a("s_cmp_lg_u32 s%d, %d" % (S_HW, hw))
            a("s_cbranch_scc1 %s" % lab)
            for g in early[hw]: wo(g)
            a.label(lab)
        a("s_barrier")
        n = len(rest)
        per = (n + 3) // 4
        for hw in range(4):
            mine = rest[hw * per:(hw + 1) * per]
            lab = a.newlabel("wo")
            a("s_cmp_lg_u32 s%d, %d" % (S_HW, hw))
            a("s_cbranch_scc1 %s" % lab)
            for g in mine: wo(g)
            a.label(lab)
        a("s_barrier")
        self.final_pre()
        a("s_waitcnt vmcnt(0)")
        self.stamp(23)
        a("s_barrier")
        self.y_to_lds()
        a("s_barrier")
        self.stamp(6)
        self.final_h()

    def fft(self):
        a = self.a
        a("v_accvgpr_read_b32 v10, a60")
        a("v_accvgpr_read_b32 v11, a61")
        a("s_lshl_b32 s3, s%d, 5" % S_J)
        a("v_add_u32 v12, s3, v%d" % V_LANE)
        a("v_lshlrev_b32 v12, 7, v12")
        a("v_add_u32 v12, 0x%x, v12" % (WS_FLAG + 256 * 128 + 12))
        self.poll_flags_n(12, 32, 1, 16)
        a("v_lshlrev_b32 v13, 4, v%d" % V_LANE)
        a("s_lshl_b32 s3, s%d, 13" % S_L)
        a("s_add_u32 s3, s3, 0x%x" % WS_AB)
        X = 32
        for i in range(8):
            a("buffer_load_dwordx4 v[%d:%d], v13, s[%d:%d], s3 offen sc1" % (X + 4 * i, X + 4 * i + 3, SRD_WS, SRD_WS + 3))
            if i < 7: a("s_add_u32 s3, s3, 1024")
        a("s_sub_u32 s%d, s%d, 2" % (S_T1, S_HW))
        a("s_lshl_b32 s%d, s%d, 13" % (S_T2, S_T1))
        a("s_add_u32 s%d, s%d, %d" % (S_T2, S_T2, LDS_FX))
        a("v_add_u32 v14, s%d, v13" % S_T2)
        a("v_bfe_u32 v7, v%d, 2, 2" % V_LANE)
        a("v_lshl_add_u32 v7, v%d, 3, v7" % V_H)
        a("v_lshlrev_b32 v7, 7, v7")
        a("v_bfe_u32 v8, v%d, 4, 1" % V_LANE)
        a("v_lshlrev_b32 v8, 5, v8")
        a("v_and_b32 v9, 1, v%d" % V_LANE)
        a("v_lshl_add_u32 v8, v9, 4, v8")
        a("v_bfe_u32 v9, v%d, 1, 1" % V_LANE)
        a("v_lshl_add_u32 v8, v9, 3, v8")
        a("v_add_u32 v7, v7, v8")
        a("v_add_u32 v15, s%d, v7" % S_T2)
        a("s_waitcnt vmcnt(0)")
        for i in range(8):
            a("ds_write_b128 v14, v[%d:%d] offset:%d" % (X + 4 * i, X + 4 * i + 3, i * 1024))
        URE, UIM, A1, TC, TS, A2 = 32, 48, 16, 64, 80, 104
        D2 = 64
        def mm(D, A, B, first, dfile="v", afile="v", bfile="a"):
            a("v_mfma_f32_32x32x16_bf16 %s[%d:%d], %s[%d:%d], %s[%d:%d], %s" % (dfile, D, D + 15, afile, A, A + 3, bfile, B, B + 3, "0" if first else "%s[%d:%d]" % (dfile, D, D + 15)))
        for kt in range(2):
            a("v_mul_f32 v12, 0x%x, v10" % (f2u(1.0 / 2048)))
            a("v_mul_f32 v13, v12, v11")
            if kt == 0: a("s_waitcnt lgkmcnt(0)")
            for ks in range(4):
                for q in range(2):
                    r = A1 + 4 * ks + 2 * q
                    a("ds_read_b64_tr_b16 v[%d:%d], v15 offset:%d" % (r, r + 1, (ks >> 1) * 4096 + (ks & 1) * 2048 + q * 512 + kt * 64))
            for half in range(2):
                self.angles([32 * kt + 16 * half + i for i in range(8)], 12, 13, 120)
                for i in range(8):
                    a("v_cos_f32 v%d, v%d" % (TC + 8 * half + i, 120 + i))
                    a("v_sin_f32 v%d, v%d" % (TS + 8 * half + i, 120 + i))
            a("s_waitcnt lgkmcnt(0)")
            FRE, FIM, NFIM = 0, 8, 16
            mm(URE, A1, FRE, True); mm(UIM, A1, FIM, True)
            mm(URE, A1 + 4, FRE + 4, False); mm(UIM, A1 + 4, FIM + 4, False)
            mm(URE, A1 + 8, NFIM, False); mm(UIM, A1 + 8, FRE, False)
            mm(URE, A1 + 12, NFIM + 4, False); mm(UIM, A1 + 12, FRE + 4, False)
            for p in range(8):
                t0 = 96 + (p % 2) * 4
                for e in range(2):
                    re, im, c, s_ = URE + 2 * p + e, UIM + 2 * p + e, TC + 2 * p + e, TS + 2 * p + e
                    a("v_mul_f32 v%d, v%d, v%d" % (t0 + e, im, s_))
                    a("v_mul_f32 v%d, v%d, v%d" % (t0 + 2 + e, re, s_))
                    a("v_fmac_f32 v%d, v%d, v%d" % (t0 + e, re, c))
                    a("v_fma_f32 v%d, v%d, v%d, -v%d" % (t0 + 2 + e, im, c, t0 + 2 + e))
                a("v_cvt_pk_bf16_f32 v%d, v%d, v%d" % (A2 + p, t0, t0 + 1))
                a("v_cvt_pk_bf16_f32 v%d, v%d, v%d" % (A2 + 8 + p, t0 + 2, t0 + 3))
            G = 24 + 16 * kt
            mm(D2, A2, G, kt == 0, dfile="a"); mm(D2, A2 + 4, G + 4, False, dfile="a")
            mm(D2, A2 + 8, G + 8, False, dfile="a"); mm(D2, A2 + 12, G + 12, False, dfile="a")
        a("v_lshlrev_b32 v6, 7, v%d" % V_JL)
        a("v_lshl_add_u32 v6, v%d, 6, v6" % V_H)
        a("v_add_u32 v6, s%d, v6" % S_T2)
        for q in range(4):
            a("ds_write_b128 v6, a[%d:%d] offset:%d" % (D2 + 4 * q, D2 + 4 * q + 3, q * 16))
        a("s_waitcnt lgkmcnt(0)")
        for q in range(4):
            a("ds_read_b128 v[%d:%d], v14 offset:%d" % (32 + 4 * q, 35 + 4 * q, q * 1024))
        a("s_cmp_eq_u32 s%d, 0" % S_L)
        a("s_cselect_b32 s%d, 256, s%d" % (S_T0, S_L))
        a("s_lshl_b32 s%d, s%d, 13" % (S_T0, S_T0))
        a("s_lshl_b32 s3, s%d, 12" % S_T1)
        a("s_add_u32 s3, s3, s%d" % S_T0)
        a("s_add_u32 s3, s3, 0x%x" % WS_YT)
        a("v_lshlrev_b32 v6, 4, v%d" % V_LANE)
        a("v_lshlrev_b32 v7, 4, v%d" % V_LANE)
        a("v_sub_u32 v7, %d, v7" % (4096 - 12))
        a("v_add_u32 v7, s%d, v7" % S_T2)
        for i in range(4):
            for e in range(4):
                off = 12 - 4 * e - 1024 * i
                if off >= 0: a("ds_read_b32 v%d, v7 offset:%d" % (48 + 4 * i + e, off))
                else: a("ds_read_b32 v%d, v%d offset:%d" % (48 + 4 * i + e, 8, off + 3072))
            if i == 0: a("v_subrev_u32 v8, 3072, v7")
        a("s_waitcnt lgkmcnt(15)")
        a("s_waitcnt lgkmcnt(0)")
        for q in range(4):
            a("buffer_store_dwordx4 v[%d:%d], v6, s[%d:%d], s3 offen offset:%d sc1" % (32 + 4 * q, 35 + 4 * q, SRD_WS, SRD_WS + 3, q * 1024))
        a("s_cmp_eq_u32 s%d, 0" % S_L)
        a("s_cbranch_scc1 L_fft_nomir")
        a("s_sub_u32 s%d, 512, s%d" % (S_T0, S_L))
        a("s_lshl_b32 s%d, s%d, 13" % (S_T0, S_T0))
        a("s_xor_b32 s3, s%d, 1" % S_T1)
        a("s_lshl_b32 s3, s3, 12")
        a("s_add_u32 s3, s3, s%d" % S_T0)
        a("s_add_u32 s3, s3, 0x%x" % WS_YT)
        a("s_mov_b64 exec, 0xfffffffffffffffe" if False else "s_mov_b64 exec, -2")
        a("buffer_store_dwordx4 v[48:51], v6, s[%d:%d], s3 offen sc1" % (SRD_WS, SRD_WS + 3))
        a("s_mov_b64 exec, 1")
        a("buffer_store_dword v49, v6, s[%d:%d], s3 offen offset:4 sc1" % (SRD_WS, SRD_WS + 3))
        a("buffer_store_dwordx2 v[50:51], v6, s[%d:%d], s3 offen offset:8 sc1" % (SRD_WS, SRD_WS + 3))
        a("s_mov_b64 exec, -1")
        for q in range(1, 4):
            a("buffer_store_dwordx4 v[%d:%d], v6, s[%d:%d], s3 offen offset:%d sc1" % (48 + 4 * q, 51 + 4 * q, SRD_WS, SRD_WS + 3, q * 1024))
        a("s_lshl_b32 s3, s%d, 12" % S_T1)
        a("s_add_u32 s3, s3, s%d" % S_T0)
        a("s_add_u32 s3, s3, 0x%x" % WS_YT)
        a("s_mov_b64 exec, 1")
        a("buffer_store_dword v32, v6, s[%d:%d], s3 offen sc1" % (SRD_WS, SRD_WS + 3))
        a("s_mov_b64 exec, -1")
        a.label("L_fft_nomir")

    def g_reduce(self):
        a = self.a
        L16 = self.G_L16
        a("s_barrier")
        self.stamp(16)
        for tau in (1, 2, 0):
            if tau == 0:
                a("s_cmp_lg_u32 s%d, 3" % S_W)
                a("s_cbranch_scc1 L_exp_done")
            a("s_add_u32 s%d, s%d, %d" % (S_T0, S_W, tau))
            a("s_cmp_ge_u32 s%d, 3" % S_T0)
            a("s_cselect_b32 s%d, 3, 0" % S_T1)
            a("s_sub_u32 s%d, s%d, s%d" % (S_T0, S_T0, S_T1))
            a("s_sub_u32 s%d, s%d, s%d" % (S_T1, S_W, S_T0))
            a("s_sub_u32 s%d, s%d, 1" % (S_T1, S_T1))
            a("s_and_b32 s%d, s%d, 3" % (S_T1, S_T1))
            a("s_mul_i32 s%d, s%d, 3" % (S_T0, S_T0))
            a("s_add_u32 s%d, s%d, s%d" % (S_T0, S_T0, S_T1))
            a("s_lshl_b32 s%d, s%d, 13" % (S_T0, S_T0))
            a("v_add_u32 v5, s%d, v%d" % (S_T0, L16))
            for st in range(2):
                for q in range(4):
                    r = (tau * 2 + st) * 16 + 4 * q
                    a("ds_write_b128 v5, a[%d:%d] offset:%d" % (r, r + 3, st * 4096 + q * 1024))
        a.label("L_exp_done")
        a("s_waitcnt lgkmcnt(0)")
        self.stamp(17)
        a("s_barrier")
        self.stamp(11)
        a("s_cmp_eq_u32 s%d, 3" % S_W)
        a("s_cbranch_scc1 L_h_done")
        G = 40
        I = 72
        a("s_mul_i32 s%d, s%d, %d" % (S_T0, S_W, 3 * 8192))
        a("v_add_u32 v5, s%d, v%d" % (S_T0, L16))
        for st in range(2):
            for q in range(4):
                r = G + st * 16 + 4 * q
                a("ds_read_b128 v[%d:%d], v5 offset:%d" % (r, r + 3, 0 * 8192 + st * 4096 + q * 1024))
        for st in range(2):
            for q in range(4):
                r = I + st * 16 + 4 * q
                a("ds_read_b128 v[%d:%d], v5 offset:%d" % (r, r + 3, 1 * 8192 + st * 4096 + q * 1024))
        a("s_waitcnt lgkmcnt(0)")
        for p in range(16): a("v_pk_add_f32 v[%d:%d], v[%d:%d], v[%d:%d]" % (G + 2 * p, G + 2 * p + 1, G + 2 * p, G + 2 * p + 1, I + 2 * p, I + 2 * p + 1))
        for st in range(2):
            for q in range(4):
                r = I + st * 16 + 4 * q
                a("ds_read_b128 v[%d:%d], v5 offset:%d" % (r, r + 3, 2 * 8192 + st * 4096 + q * 1024))
        for i in range(0, 32, 8):
            for k in range(8): a("v_accvgpr_read_b32 v%d, a%d" % (16 + k, i + k))
            for p in range(4): a("v_pk_add_f32 v[%d:%d], v[%d:%d], v[%d:%d]" % (G + i + 2 * p, G + i + 2 * p + 1, G + i + 2 * p, G + i + 2 * p + 1, 16 + 2 * p, 16 + 2 * p + 1))
        a("s_waitcnt lgkmcnt(0)")
        for p in range(16): a("v_pk_add_f32 v[%d:%d], v[%d:%d], v[%d:%d]" % (G + 2 * p, G + 2 * p + 1, G + 2 * p, G + 2 * p + 1, I + 2 * p, I + 2 * p + 1))
        self.stamp(18)
        for st in range(2): a("v_lshlrev_b32 v%d, 16, v%d" % (self.G_BS + st, self.G_BS + st))
        for st in range(2):
            for r in range(8):
                src = self.C_Z1P + 8 * st + r
                g = G + 16 * st + 2 * r
                t = 16 + 2 * (r % 4)
                a("v_lshlrev_b32 v%d, 16, v%d" % (t, src))
                a("v_and_b32 v%d, 0xffff0000, v%d" % (t + 1, src))
                sel = "op_sel:[0,%d] op_sel_hi:[1,%d]" % (st, st)
                a("v_pk_add_f32 v[%d:%d], v[%d:%d], v[%d:%d] %s" % (g, g + 1, g, g + 1, self.G_BS, self.G_BS + 1, sel))
                a("v_pk_mul_f32 v[%d:%d], v[%d:%d], v[%d:%d]" % (g, g + 1, g, g + 1, t, t + 1))
                a("v_cvt_pk_bf16_f32 v%d, v%d, v%d" % (I + 8 * st + r, g, g + 1))
        a("s_mul_i32 s%d, s%d, 96" % (S_T0, S_MB))
        a("s_mul_i32 s%d, s%d, 6" % (S_T1, S_J))
        a("s_add_u32 s%d, s%d, s%d" % (S_T0, S_T0, S_T1))
        a("s_lshl_b32 s%d, s%d, 1" % (S_T1, S_W))
        a("s_add_u32 s%d, s%d, s%d" % (S_T0, S_T0, S_T1))
        a("s_lshl_b32 s%d, s%d, 10" % (S_T0, S_T0))
        a("s_add_u32 s%d, s%d, 0x%x" % (S_T0, S_T0, WS_H))
        for st in range(2):
            for Q in range(2):
                r = I + 8 * st + 4 * Q
                a("s_add_u32 s%d, s%d, %d" % (S_T1, S_T0, (st * 48 + Q) * 1024))
                if "nohstore" not in self.exp: a("buffer_store_dwordx4 v[%d:%d], v%d, s[%d:%d], s%d offen sc1" % (r, r + 3, L16, SRD_WS, SRD_WS + 3, S_T1))
                if "hdouble" in self.exp: a("buffer_store_dwordx4 v[%d:%d], v%d, s[%d:%d], s%d offen" % (r, r + 3, L16, SRD_WS, SRD_WS + 3, S_T1))
        self.stamp(20)
        a("s_waitcnt vmcnt(0)")
        self.stamp(21)
        self.flag_store(2, 0, S_W)
        a.label("L_h_done")
        self.o_pre()
        self.stamp(12)

    def o_pre(self):
        a = self.a
        a("s_lshr_b32 s%d, s%d, 1" % (S_T0, S_W))
        a("s_lshl_b32 s3, s%d, 2" % S_T0)
        a("v_add_u32 v40, s3, v%d" % V_LANE)
        a("v_lshlrev_b32 v40, 5, v40")
        a("v_add_u32 v40, s%d, v40" % S_MB)
        a("v_lshlrev_b32 v40, 7, v40")
        a("v_add_u32 v40, 0x%x, v40" % (WS_FLAG + 2 * 256 * 128))
        a("v_bfe_u32 v5, v%d, 2, 2" % V_LANE)
        a("v_lshl_add_u32 v5, v%d, 3, v5" % V_H)
        a("v_lshlrev_b32 v5, 7, v5")
        a("v_bfe_u32 v6, v%d, 4, 1" % V_LANE)
        a("v_lshlrev_b32 v6, 1, v6")
        a("v_and_b32 v7, 1, v%d" % V_LANE)
        a("v_or_b32 v6, v6, v7")
        a("v_bfe_u32 v7, v%d, 3, 1" % V_LANE)
        a("v_lshlrev_b32 v7, 2, v7")
        a("v_xor_b32 v6, v6, v7")
        a("s_lshl_b32 s3, s%d, 2" % S_T0)
        a("v_xor_b32 v6, s3, v6")
        a("v_bfe_u32 v7, v%d, 1, 1" % V_LANE)
        a("v_lshlrev_b32 v7, 3, v7")
        a("v_add_u32 v5, v5, v7")
        a("s_mul_i32 s3, s%d, %d" % (S_T0, 352 * 128))
        a("s_add_u32 s3, s3, %d" % LDS_WO)
        a("v_add_u32 v5, s3, v5")
        WA = 52
        a("v_lshl_add_u32 v%d, v6, 4, v5" % WA)
        a("v_xor_b32 v6, 4, v6")
        a("v_lshl_add_u32 v%d, v6, 4, v5" % (WA + 1))
        a("s_cmp_eq_u32 s%d, 0" % S_T0)
        a("s_cselect_b32 s3, 8, 0")
        a("s_add_u32 s3, s3, 256")
        a("s_lshl_b32 s3, s3, 7")
        a("v_add_u32 v%d, s3, v%d" % (WA + 2, WA))
        a("v_add_u32 v%d, s3, v%d" % (WA + 3, WA + 1))
        a("s_and_b32 s%d, s%d, 1" % (S_T1, S_W))
        a("s_lshl_b32 s3, s%d, 1" % S_MB)
        a("s_add_u32 s3, s3, s%d" % S_T1)
        a("s_mul_i32 s3, s3, 48")
        a("s_mul_i32 s%d, s%d, 24" % (S_B0, S_T0))
        a("s_add_u32 s%d, s%d, s3" % (S_B0, S_B0))
        a("s_lshl_b32 s%d, s%d, 10" % (S_B0, S_B0))
        a("s_add_u32 s%d, s%d, 0x%x" % (S_B0, S_B0, WS_H))

    def phase_o(self):
        a = self.a
        L16 = self.G_L16
        WA = 52
        self.poll_flags_n(40, 4, 3, 60)
        self.stamp(13)
        vq = VQ(a)
        NUP = 8
        def hload(n):
            r = 32 + 4 * n
            a("s_add_u32 s%d, s%d, %d" % (S_T0, S_B0, n * 1024))
            a("buffer_load_dwordx4 a[%d:%d], v%d, s[%d:%d], s%d offen sc1" % (r, r + 3, L16, SRD_WS, SRD_WS + 3, S_T0)); vq.issue(("h", n))
        for n in range(NUP): hload(n)
        a("s_barrier")
        SETS = [16, 24, 60, 68]
        def areads(n):
            jj, rem = divmod(n, 6); ft, Q = divmod(rem, 2)
            out = []
            for tp in range(2):
                base = WA + tp if jj < 3 else WA + 2 + tp
                off = ((88 * jj if jj < 3 else 0) + 32 * ft + 16 * Q) * 128
                r = SETS[n % 4] + tp * 4
                out.append("ds_read_b64_tr_b16 v[%d:%d], v%d offset:%d" % (r, r + 1, base, off))
                out.append("ds_read_b64_tr_b16 v[%d:%d], v%d offset:%d" % (r + 2, r + 3, base, off + 512))
            return out
        for n in range(3):
            for r in areads(n): a(r)
        for n in range(24):
            vq.wait(("h", n))
            later = min(2, 23 - n)
            a("s_waitcnt lgkmcnt(%d)" % (4 * later))
            rd = areads(n + 3) if n + 3 < 24 else []
            for tp in range(2):
                D = tp * 16
                Ar = SETS[n % 4] + tp * 4
                Br = 32 + 4 * n
                cc = "0" if n == 0 else "a[%d:%d]" % (D, D + 15)
                a("v_mfma_f32_32x32x16_bf16 a[%d:%d], v[%d:%d], a[%d:%d], %s" % (D, D + 15, Ar, Ar + 3, Br, Br + 3, cc))
                for r in rd[2 * tp:2 * tp + 2]: a(r)
                if tp == 0 and n + NUP < 24: hload(n + NUP)
        self.stamp(14)
        a("s_lshl_b32 s3, s%d, 13" % S_W)
        a("v_add_u32 v58, s3, v%d" % L16)
        for tp in range(2):
            for q in range(4):
                a("ds_write_b128 v58, a[%d:%d] offset:%d" % (16 * tp + 4 * q, 16 * tp + 4 * q + 3, tp * 4096 + q * 1024))
        a("s_waitcnt lgkmcnt(0)")
        a("s_barrier")

    def final_pre(self):
        a = self.a
        a("s_lshr_b32 s%d, s%d, 1" % (S_T0, S_HW))
        a("s_lshl_b32 s3, s%d, 6" % S_J)
        a("s_lshl_b32 s%d, s%d, 5" % (S_T2, S_T0))
        a("s_add_u32 s%d, s3, s%d" % (S_T2, S_T2))
        a("s_and_b32 s%d, s%d, 1" % (S_T1, S_HW))
        a("s_lshl_b32 s3, s%d, 6" % S_MB)
        a("s_lshl_b32 s%d, s%d, 5" % (S_T3, S_T1))
        a("s_add_u32 s3, s3, s%d" % S_T3)
        a("v_add_u32 v41, s3, v%d" % V_SIG)
        a("v_lshlrev_b32 v42, 10, v41")
        a("v_lshl_add_u32 v42, v%d, 4, v42" % V_H)
        a("s_lshl_b32 s3, s%d, 1" % S_T2)
        a("v_add_u32 v42, s3, v42")
        XR = 44
        a("buffer_load_dwordx4 v[%d:%d], v42, s[%d:%d], 0 offen" % (XR, XR + 3, SRD_X, SRD_X + 3))
        a("buffer_load_dwordx4 v[%d:%d], v42, s[%d:%d], 0 offen offset:32" % (XR + 4, XR + 7, SRD_X, SRD_X + 3))
        a("s_lshl_b32 s3, s%d, 6" % S_J)
        a("s_lshl_b32 s%d, s%d, 4" % (S_T0, S_HW))
        a("s_add_u32 s%d, s3, s%d" % (S_T0, S_T0))
        a("v_add_u32 v5, s%d, v%d" % (S_T0, V_LANE))
        a("v_sub_u32 v6, 512, v5")
        a("v_cmp_lt_u32 vcc, 256, v5")
        a("v_cndmask_b32 v6, v5, v6, vcc")
        a("v_and_b32 v6, 255, v6")
        a("v_lshlrev_b32 v43, 7, v6")
        a("v_add_u32 v43, 0x%x, v43" % (WS_FLAG + 3 * 256 * 128))
        a("v_lshrrev_b32 v5, 4, v%d" % V_LANE)
        a("v_add_u32 v5, s%d, v5" % S_T0)
        a("v_and_b32 v6, 15, v%d" % V_LANE)
        a("v_lshlrev_b32 v6, 4, v6")
        a("v_lshl_add_u32 v56, v5, 13, v6")
        a("v_mov_b32 v7, 0x%x" % OOB)
        a("v_cmp_eq_u32 vcc, 0, v5")
        a("v_cndmask_b32 v57, v56, v7, vcc")
        a("s_lshl_b32 s%d, s%d, 8" % (S_T3, S_MB))
        a("s_add_u32 s%d, s%d, 0x%x" % (S_T3, S_T3, WS_YT))
        self.poll_flags_n(43, 16, 2, 60)
        for i in range(4):
            a("buffer_load_dwordx4 v[%d:%d], v%d, s[%d:%d], s%d offen sc1" % (64 + 4 * i, 67 + 4 * i, 57 if i == 0 else 56, SRD_WS, SRD_WS + 3, S_T3))
            if i < 3: a("s_add_u32 s%d, s%d, %d" % (S_T3, S_T3, 4 * 8192))

    def y_to_lds(self):
        a = self.a
        a("v_lshrrev_b32 v5, 4, v%d" % V_LANE)
        a("v_and_b32 v6, 15, v%d" % V_LANE)
        a("v_lshlrev_b32 v6, 4, v6")
        a("v_lshl_add_u32 v5, v5, 8, v6")
        a("s_lshl_b32 s3, s%d, 12" % S_HW)
        a("s_add_u32 s3, s3, %d" % LDS_YS)
        a("v_add_u32 v5, s3, v5")
        a("s_waitcnt vmcnt(0)")
        for i in range(4):
            a("ds_write_b128 v5, v[%d:%d] offset:%d" % (64 + 4 * i, 67 + 4 * i, i * 1024))
        a("s_waitcnt lgkmcnt(0)")

    def final_h(self):
        a = self.a
        XR, Y, O = 44, 64, 80
        a("v_lshlrev_b32 v10, 4, v%d" % V_LANE)
        a("s_lshl_b32 s3, s%d, 13" % S_HW)
        a("v_add_u32 v11, s3, v10")
        a("s_xor_b32 s3, s%d, 2" % S_HW)
        a("s_lshl_b32 s3, s3, 13")
        a("s_add_u32 s3, s3, 4096")
        a("v_add_u32 v12, s3, v10")
        for q in range(4):
            a("ds_read_b128 v[%d:%d], v11 offset:%d" % (O + 4 * q, O + 4 * q + 3, q * 1024))
        for q in range(4):
            a("ds_read_b128 v[%d:%d], v12 offset:%d" % (96 + 4 * q, 96 + 4 * q + 3, q * 1024))
        a("s_lshr_b32 s%d, s%d, 1" % (S_T0, S_HW))
        a("s_lshl_b32 s3, s%d, 13" % S_T0)
        a("s_and_b32 s%d, s%d, 1" % (S_T1, S_HW))
        a("s_lshl_b32 s%d, s%d, 7" % (S_T1, S_T1))
        a("s_add_u32 s3, s3, s%d" % S_T1)
        a("s_add_u32 s3, s3, %d" % LDS_YS)
        a("v_lshlrev_b32 v5, 11, v%d" % V_H)
        a("v_lshl_add_u32 v5, v%d, 2, v5" % V_SIG)
        a("v_add_u32 v5, s3, v5")
        for rho in range(16):
            k = 16 * (rho >> 3) + (rho & 7)
            a("ds_read_b32 v%d, v5 offset:%d" % (Y + rho, k * 256))
        nl2e = f2u(-math.log2(math.e))
        a("s_mov_b32 s%d, 0x%x" % (S_K2, nl2e))
        a("s_mov_b32 s%d, 0x%x" % (S_K2 + 1, nl2e))
        a("s_and_b32 s%d, s%d, 1" % (S_T1, S_HW))
        a("s_lshl_b32 s3, s%d, 5" % S_T1)
        a("v_add_u32 v13, s3, v%d" % V_SIG)
        a("v_and_b32 v14, 7, v13")
        a("s_lshr_b32 s%d, s%d, 1" % (S_T0, S_HW))
        a("s_lshl_b32 s3, s%d, 2" % S_T0)
        a("v_add_u32 v15, s3, v%d" % V_H)
        a("v_xor_b32 v14, v14, v15")
        a("v_lshlrev_b32 v14, 4, v14")
        a("v_lshl_add_u32 v14, v13, 7, v14")
        a("v_add_u32 v14, 32768, v14")
        a("s_waitcnt lgkmcnt(0)")
        for p in range(8):
            a("v_pk_add_f32 v[%d:%d], v[%d:%d], v[%d:%d]" % (O + 2 * p, O + 2 * p + 1, O + 2 * p, O + 2 * p + 1, 96 + 2 * p, 96 + 2 * p + 1))
        for p in range(8):
            o = O + 2 * p; t = 96 + 2 * p
            a("v_pk_mul_f32 v[%d:%d], v[%d:%d], s[%d:%d]" % (t, t + 1, o, o + 1, S_K2, S_K2 + 1))
            a("v_exp_f32 v%d, v%d" % (t, t))
            a("v_exp_f32 v%d, v%d" % (t + 1, t + 1))
            a("v_pk_add_f32 v[%d:%d], v[%d:%d], 1.0 op_sel_hi:[1,0]" % (t, t + 1, t, t + 1))
            a("v_rcp_f32 v%d, v%d" % (t, t))
            a("v_rcp_f32 v%d, v%d" % (t + 1, t + 1))
            a("v_pk_mul_f32 v[%d:%d], v[%d:%d], v[%d:%d]" % (o, o + 1, o, o + 1, t, t + 1))
        for p in range(8):
            o = O + 2 * p; t = 96 + 2 * p; y = Y + 2 * p; xr = XR + p
            a("v_lshlrev_b32 v%d, 16, v%d" % (t, xr))
            a("v_and_b32 v%d, 0xffff0000, v%d" % (t + 1, xr))
            a("v_pk_fma_f32 v[%d:%d], v[%d:%d], v[%d:%d], v[%d:%d]" % (t, t + 1, y, y + 1, o, o + 1, t, t + 1))
            a("v_cvt_pk_bf16_f32 v%d, v%d, v%d" % (112 + p, t, t + 1))
        a("ds_write_b128 v14, v[112:115]")
        a("v_xor_b32 v14, 32, v14")
        a("ds_write_b128 v14, v[116:119]")
        a("s_waitcnt lgkmcnt(0)")
        a("s_barrier")
        a("v_lshrrev_b32 v5, 3, v%d" % V_LANE)
        a("v_and_b32 v6, 7, v%d" % V_LANE)
        a("v_xor_b32 v7, v5, v6")
        a("v_lshlrev_b32 v7, 4, v7")
        a("v_lshl_add_u32 v7, v5, 7, v7")
        a("s_lshl_b32 s3, s%d, 11" % S_HW)
        a("s_add_u32 s3, s3, 32768")
        a("v_add_u32 v7, s3, v7")
        a("ds_read_b128 v[16:19], v7")
        a("ds_read_b128 v[20:23], v7 offset:1024")
        a("v_lshlrev_b32 v8, 10, v5")
        a("v_lshl_add_u32 v8, v6, 4, v8")
        a("s_lshl_b32 s%d, s%d, 6" % (S_T0, S_MB))
        a("s_lshl_b32 s3, s%d, 4" % S_HW)
        a("s_add_u32 s%d, s%d, s3" % (S_T0, S_T0))
        a("s_lshl_b32 s%d, s%d, 10" % (S_T0, S_T0))
        a("s_lshl_b32 s3, s%d, 7" % S_J)
        a("s_add_u32 s%d, s%d, s3" % (S_T0, S_T0))
        a("s_waitcnt lgkmcnt(0)")
        fl = "" if "outplain" in self.exp else "sc1"
        a("buffer_store_dwordx4 v[16:19], v8, s[%d:%d], s%d offen %s" % (SRD_OUT, SRD_OUT + 3, S_T0, fl))
        a("s_add_u32 s%d, s%d, 8192" % (S_T0, S_T0))
        a("buffer_store_dwordx4 v[20:23], v8, s[%d:%d], s%d offen %s" % (SRD_OUT, SRD_OUT + 3, S_T0, fl))
        self.stamp(15)
        self.stamp(25)

    def build(self):
        a = self.a
        self.prologue()
        self.xstage()
        a("s_cmp_ge_u32 s%d, 4" % S_W)
        a("s_cbranch_scc1 L_helper")
        self.p1_compute()
        self.g_compute()
        self.phase_o()
        a("s_branch L_end")
        a.label("L_helper")
        self.p1_helper()
        self.g_helper()
        a.label("L_end")
        a("s_endpgm")
        a.finalize()
        hdr = open("cdna_kernels/%s.s.ref" % NAME).read().split("\n")
        head = []
        for line in hdr:
            if line.startswith("; @launch"):
                head.append("; @launch grid=(256,1,1) block=(512,1,1) lds=%d" % LDS_TOTAL)
            elif line.startswith(";"): head.append(line)
            else: break
        txt = "\n".join(head) + "\n"
        txt += '.amdgcn_target "amdgcn-amd-amdhsa--gfx950"\n.text\n.globl %s_kernel\n.p2align 8\n.type %s_kernel,@function\n%s_kernel:\n' % (NAME, NAME, NAME)
        body = a.text()
        if "codepf" in self.exp:
            body = body.replace("CODE_LEN", "(L_end - L_pc_here - 16)")
        txt += body
        txt += '.section .rodata,"a"\n.p2align 6\n.amdhsa_kernel %s_kernel\n' % NAME
        txt += "  .amdhsa_next_free_vgpr 256\n  .amdhsa_next_free_sgpr 102\n  .amdhsa_accum_offset 128\n"
        txt += "  .amdhsa_group_segment_fixed_size 0\n  .amdhsa_kernarg_size 104\n  .amdhsa_user_sgpr_count 2\n"
        txt += "  .amdhsa_user_sgpr_kernarg_segment_ptr 1\n  .amdhsa_system_sgpr_workgroup_id_x 1\n"
        txt += "  .amdhsa_float_denorm_mode_32 3\n"
        txt += ".end_amdhsa_kernel\n"
        return txt

if __name__ == "__main__":
    import argparse
    ap = argparse.ArgumentParser()
    ap.add_argument("--stamps", action="store_true")
    ap.add_argument("--exp", default="")
    ap.add_argument("-o", default="cdna_kernels/%s.s" % NAME)
    args = ap.parse_args()
    g = Gen(stamps=args.stamps, exp=[e for e in args.exp.split(',') if e])
    txt = g.build()
    open(args.o, "w").write(txt)
    print("wrote", args.o, len(txt), "bytes;", len([i for i in g.a.ins if i.kind not in ("label", "dir")]), "instrs")
```

```python
import sys, math, struct
sys.path.insert(0, "gen")
from asmlib import *

NAME = "recurrent_scan__spectral_fnet__mixer_gmlp__prompt"

WS_FLAG = 0x000000
WS_STATS = 0x020000
WS_Z2N = 0x100000
WS_AB = 0x400000
WS_H = 0x600000
WS_YT = 0x900000
WS_STAMP = 0xF00000
WS_SIZE = 0x4000000
OOB = 0x80000000

LDS_WR = 65536
SLOT = 16384
NSLOT = 5
LDS_T4 = 147456
LDS_T5 = LDS_T4 + 1536
LDS_SY = LDS_T5 + 512
LDS_AT = 151552
LDS_YS = 40960
LDS_FX = 131072
LDS_WO = 73728
LDS_TOTAL = 163840

SRD_X, SRD_WIN, SRD_DFT, SRD_WSP, SRD_WOUT, SRD_WS, SRD_OUT, SRD_BSP, SRD_DBG = 4, 8, 12, 20, 24, 28, 32, 36, 40
S_IMLO, S_IMHI = 16, 17
S_MB, S_J, S_W, S_F0, S_WID, S_NONCE, S_L = 44, 45, 46, 47, 48, 49, 50
S_C, S_SLOT, S_XD = 51, 52, 53
S_CN, S_KC128, S_WSOFF, S_SLOTN = 54, 55, 56, 57
S_HW = 58
S_DL0, S_WL0, S_W2 = 60, 61, 62
S_T0, S_T1, S_T2, S_T3 = 63, 90, 91, 92
S_PASS = 93
S_EX = 94
S_K2 = 96
S_SPIN = 98
S_B0 = 99
S_ST0 = 100
S_ROT1 = 59
S_RHO = 51

V_LANE, V_JL, V_H, V_SIG = 1, 2, 3, 4

def f2u(x): return struct.unpack("<I", struct.pack("<f", x))[0]

class Gen:
    def __init__(self, stop_after=None, stamps=False, exp=()):
        self.a = Asm()
        self.stop_after = stop_after
        self.stamps = stamps
        self.exp = set(exp)

    def stamp(self, idx):
        if "dbgst" in self.exp:
            mm_ = {0: (1, 0), 1: (2, 0), 2: (3, 0), 3: (4, 0), 4: (5, 0), 5: (6, 0), 7: (7, 0), 8: (8, 0), 10: (9, 0), 16: (10, 0), 11: (11, 0), 21: (12, 0), 13: (13, 0), 14: (14, 0), 15: (15, 4)}
            m = {k: v[0] for k, v in mm_.items()}
            if idx in m:
                a = self.a
                lab = a.newlabel("ds")
                a("s_cmp_lg_u32 s%d, %d" % (S_L, 37))
                a("s_cbranch_scc1 %s" % lab)
                a("s_cmp_lg_u32 s%d, %d" % (S_W, mm_[idx][1]))
                a("s_cbranch_scc1 %s" % lab)
                a("s_memrealtime s[%d:%d]" % (S_ST0, S_ST0 + 1))
                a("s_waitcnt lgkmcnt(0)")
                a("v_mov_b32 v9, s%d" % S_ST0)
                a("v_mov_b32 v8, %d" % (4 * m[idx]))
                a("s_mov_b64 exec, 1")
                a("buffer_store_dword v9, v8, s[%d:%d], 0 offen sc1" % (SRD_DBG, SRD_DBG + 3))
                a("s_mov_b64 exec, -1")
                a.label(lab)
            return
        if not self.stamps: return
        a = self.a
        a(("s_memtime s[%d:%d]" if idx >= 24 else "s_memrealtime s[%d:%d]") % (S_ST0, S_ST0 + 1))
        a("s_waitcnt lgkmcnt(0)")
        a("v_mov_b32 v9, s%d" % S_ST0)
        a("s_lshl_b32 s%d, s%d, 3" % (S_ST0, S_L))
        a("s_add_u32 s%d, s%d, s%d" % (S_ST0, S_ST0, S_W))
        a("s_lshl_b32 s%d, s%d, 7" % (S_ST0, S_ST0))
        a("s_add_u32 s%d, s%d, 0x%x" % (S_ST0, S_ST0, WS_STAMP + idx * 4))
        a("v_mov_b32 v8, 0")
        a("s_mov_b64 s[%d:%d], exec" % (S_EX, S_EX + 1))
        a("s_mov_b64 exec, 1")
        a("buffer_store_dword v9, v8, s[%d:%d], s%d offen" % (SRD_WS, SRD_WS + 3, S_ST0))
        a("s_mov_b64 exec, s[%d:%d]" % (S_EX, S_EX + 1))

    def srd(self, base, plo, size):
        a = self.a
        a("s_mov_b32 s%d, s%d" % (base, plo))
        a("s_and_b32 s%d, s%d, 0xffff" % (base + 1, plo + 1))
        a("s_mov_b32 s%d, 0x%x" % (base + 2, size))
        a("s_mov_b32 s%d, 0x20000" % (base + 3))

    def flag_store(self, kind, dw=0, dw_sreg=None, vt=(5, 6)):
        a = self.a
        a("s_lshl_b32 s%d, s%d, 7" % (S_T0, S_L))
        a("s_add_u32 s%d, s%d, 0x%x" % (S_T0, S_T0, WS_FLAG + kind * 256 * 128 + dw * 4))
        if dw_sreg is not None:
            a("s_lshl_b32 s3, s%d, 2" % dw_sreg)
            a("s_add_u32 s%d, s%d, s3" % (S_T0, S_T0))
        a("v_mov_b32 v%d, s%d" % (vt[0], S_NONCE))
        a("v_mov_b32 v%d, 0" % vt[1])
        a("s_mov_b64 exec, 1")
        a("buffer_store_dword v%d, v%d, s[%d:%d], s%d offen sc1" % (vt[0], vt[1], SRD_WS, SRD_WS + 3, S_T0))
        a("s_mov_b64 exec, -1")

    def poll_flags_n(self, vaddr, nlanes, ndw, vt):
        a = self.a
        lab = a.newlabel("poll")
        a("s_mov_b32 s%d, 0" % S_SPIN)
        mask = (1 << nlanes) - 1
        a("s_mov_b32 exec_lo, 0x%x" % (mask & 0xffffffff))
        a("s_mov_b32 exec_hi, 0x%x" % (mask >> 32))
        a.label(lab)
        if ndw == 1: a("buffer_load_dword v%d, v%d, s[%d:%d], 0 offen sc1" % (vt, vaddr, SRD_WS, SRD_WS + 3))
        elif ndw == 2: a("buffer_load_dwordx2 v[%d:%d], v%d, s[%d:%d], 0 offen sc1" % (vt, vt + 1, vaddr, SRD_WS, SRD_WS + 3))
        else: a("buffer_load_dwordx4 v[%d:%d], v%d, s[%d:%d], 0 offen sc1" % (vt, vt + 3, vaddr, SRD_WS, SRD_WS + 3))
        a("s_waitcnt vmcnt(0)")
        a("v_cmp_ne_u32 vcc, s%d, v%d" % (S_NONCE, vt))
        for i in range(1, ndw):
            a("v_cmp_ne_u32 s[%d:%d], s%d, v%d" % (S_EX, S_EX + 1, S_NONCE, vt + i))
            a("s_or_b64 vcc, vcc, s[%d:%d]" % (S_EX, S_EX + 1))
        a("s_add_u32 s%d, s%d, 1" % (S_SPIN, S_SPIN))
        a("s_cmp_gt_u32 s%d, 0x8000" % S_SPIN)
        a("s_cbranch_scc1 %s_x" % lab)
        if "pollsleep" in self.exp:
            a("s_cbranch_vccz %s_x" % lab)
            a("s_sleep 2")
            a("s_branch %s" % lab)
        else:
            a("s_cbranch_vccnz %s" % lab)
        a.label(lab + "_x")
        a("s_mov_b64 exec, -1")

    def get_nonce(self):
        a = self.a
        lab = a.newlabel("nonce")
        a("v_mov_b32 v6, 0")
        a("s_mov_b32 s%d, 0" % S_SPIN)
        a.label(lab)
        a("buffer_load_dword v5, v6, s[%d:%d], 0 offen sc1" % (SRD_DBG, SRD_DBG + 3))
        a("s_waitcnt vmcnt(0)")
        a("v_readfirstlane_b32 s%d, v5" % S_NONCE)
        a("s_add_u32 s%d, s%d, 1" % (S_SPIN, S_SPIN))
        a("s_cmp_gt_u32 s%d, 0x8000" % S_SPIN)
        a("s_cbranch_scc1 %s_x" % lab)
        a("s_cmp_eq_u32 s%d, 0" % S_NONCE)
        a("s_cbranch_scc1 %s" % lab)
        a.label(lab + "_x")

    def nonce_from(self, vreg):
        a = self.a
        lab = a.newlabel("hn")
        a("v_readfirstlane_b32 s%d, v%d" % (S_NONCE, vreg))
        a("s_cmp_lg_u32 s%d, 0" % S_NONCE)
        a("s_cbranch_scc1 %s" % lab)
        self.get_nonce()
        a.label(lab)

    def poll_flags(self, vaddr, nlanes):
        a = self.a
        lab = a.newlabel("poll")
        a("s_mov_b32 s%d, 0" % S_SPIN)
        mask = (1 << nlanes) - 1
        a("s_mov_b32 exec_lo, 0x%x" % (mask & 0xffffffff))
        a("s_mov_b32 exec_hi, 0x%x" % (mask >> 32))
        a.label(lab)
        a("buffer_load_dword v5, v%d, s[%d:%d], 0 offen sc1" % (vaddr, SRD_WS, SRD_WS + 3))
        a("s_waitcnt vmcnt(0)")
        a("v_cmp_ne_u32 vcc, s%d, v5" % S_NONCE)
        a("s_add_u32 s%d, s%d, 1" % (S_SPIN, S_SPIN))
        a("s_cmp_gt_u32 s%d, 0x8000" % S_SPIN)
        a("s_cbranch_scc1 %s_x" % lab)
        if "pollsleep" in self.exp:
            a("s_cbranch_vccz %s_x" % lab)
            a("s_sleep 2")
            a("s_branch %s" % lab)
        else:
            a("s_cbranch_vccnz %s" % lab)
        a.label(lab + "_x")
        a("s_mov_b64 exec, -1")

    def lds_wait_ge(self, addr, val, vt=5):
        a = self.a
        lab = a.newlabel("lw")
        a("s_mov_b32 s%d, 0" % S_SPIN)
        a("v_mov_b32 v%d, %d" % (vt + 1, addr))
        a.label(lab)
        a("ds_read_b32 v%d, v%d" % (vt, vt + 1))
        a("s_waitcnt lgkmcnt(0)")
        a("v_readfirstlane_b32 s%d, v%d" % (S_T0, vt))
        a("s_add_u32 s%d, s%d, 1" % (S_SPIN, S_SPIN))
        a("s_cmp_gt_u32 s%d, 0x100000" % S_SPIN)
        a("s_cbranch_scc1 %s_x" % lab)
        a("s_cmp_lt_u32 s%d, %d" % (S_T0, val))
        a("s_cbranch_scc1 %s" % lab)
        a.label(lab + "_x")

    def hsum(self, regs, tmp):
        a = self.a
        for i, r in enumerate(regs): a("v_mov_b32 v%d, v%d" % (tmp + i, r))
        for i, r in enumerate(regs): a("v_permlane32_swap_b32 v%d, v%d" % (r, tmp + i))
        for i, r in enumerate(regs): a("v_add_f32 v%d, v%d, v%d" % (r, r, tmp + i))

    def mean_rstd(self, vsum, vsq, n, dst_r, dst_nm, t):
        a = self.a
        a("v_mul_f32 v%d, 0x%x, v%d" % (t, f2u(1.0 / n), vsum))
        a("v_mul_f32 v%d, 0x%x, v%d" % (t + 1, f2u(1.0 / n), vsq))
        a("v_fma_f32 v%d, -v%d, v%d, v%d" % (t + 1, t, t, t + 1))
        a("v_max_f32 v%d, 0, v%d" % (t + 1, t + 1))
        a("v_add_f32 v%d, 0x%x, v%d" % (t + 1, f2u(1e-5), t + 1))
        a("v_rsq_f32 v%d, v%d" % (dst_r, t + 1))
        a("v_mul_f32 v%d, v%d, v%d" % (dst_nm, t, dst_r))
        a("v_sub_f32 v%d, 0, v%d" % (dst_nm, dst_nm))

    V_OD, V_OW = 10, 11
    V_NON = 14
    def prologue(self):
        a = self.a
        a("s_cmp_ge_u32 s2, 256")
        a("s_cbranch_scc1 L_end")
        a("s_load_dwordx16 s[64:79], s[0:1], 0")
        a("s_load_dwordx8 s[80:87], s[0:1], 64")
        a("s_load_dwordx2 s[88:89], s[0:1], 96")
        if "map42" in self.exp:
            a("s_bfe_u32 s%d, s2, 0x20001" % S_MB)
            a("s_lshl_b32 s%d, s%d, 3" % (S_MB, S_MB))
            a("s_bfe_u32 s3, s2, 0x30003")
            a("s_add_u32 s%d, s%d, s3" % (S_MB, S_MB))
            a("s_and_b32 s%d, s2, 1" % S_J)
            a("s_lshl_b32 s%d, s%d, 2" % (S_J, S_J))
            a("s_lshr_b32 s3, s2, 6")
            a("s_add_u32 s%d, s%d, s3" % (S_J, S_J))
        else:
            a("s_and_b32 s%d, s2, 7" % S_MB)
            a("s_lshl_b32 s%d, s%d, 2" % (S_MB, S_MB))
            a("s_bfe_u32 s3, s2, 0x20003")
            a("s_add_u32 s%d, s%d, s3" % (S_MB, S_MB))
            a("s_lshr_b32 s%d, s2, 5" % S_J)
        a("s_lshl_b32 s%d, s%d, 5" % (S_L, S_J))
        a("s_add_u32 s%d, s%d, s%d" % (S_L, S_L, S_MB))
        a("v_lshrrev_b32 v5, 6, v0")
        a("v_and_b32 v%d, 63, v0" % V_LANE)
        a("v_readfirstlane_b32 s%d, v5" % S_W)
        a("v_lshrrev_b32 v20, 3, v0")
        a("v_and_b32 v21, 7, v0")
        a("v_lshlrev_b32 v22, 10, v20")
        a("v_lshl_add_u32 v22, v21, 4, v22")
        a("s_lshl_b32 s%d, s%d, 16" % (S_T1, S_MB))
        a("s_and_b32 s%d, s%d, 3" % (S_HW, S_W))
        a("v_and_b32 v%d, 31, v0" % V_JL)
        a("v_bfe_u32 v%d, v0, 5, 1" % V_H)
        a("v_and_b32 v5, 0x13, v%d" % V_JL)
        a("v_and_b32 v6, 4, v%d" % V_JL)
        a("v_lshl_or_b32 v5, v6, 1, v5")
        a("v_and_b32 v6, 8, v%d" % V_JL)
        a("v_lshrrev_b32 v6, 1, v6")
        a("v_or_b32 v%d, v5, v6" % V_SIG)
        a("s_mul_i32 s%d, s%d, 88" % (S_F0, S_J))
        a("s_cmp_eq_u32 s%d, 7" % S_J)
        a("s_cselect_b32 s3, 8, 0")
        a("s_sub_u32 s%d, s%d, s3" % (S_F0, S_F0))
        a("s_cmp_ge_u32 s%d, 6" % S_J)
        a("s_cselect_b32 s3, 8, 0")
        a("s_sub_u32 s%d, 88, s3" % S_WID)
        for i in range(10, 14): a("v_mov_b32 v%d, 0" % i)
        if "codepf" in self.exp:
            a("s_getpc_b64 s[92:93]")
            a.label("L_pc_here")
            a("s_lshr_b32 s3, s2, 3")
            a("s_lshl_b32 s3, s3, 3")
            a("s_add_u32 s3, s3, s%d" % S_W)
            a("s_mul_i32 s3, s3, 192")
            a("v_lshlrev_b32 v5, 4, v%d" % V_LANE)
            a("v_add_u32 v5, s3, v5")
            a("v_min_u32 v5, CODE_LEN, v5")
            a("s_mov_b64 exec, 0xfff")
            a("global_load_dwordx4 a[20:23], v5, s[92:93]")
            a("s_mov_b64 exec, -1")
        a("s_waitcnt lgkmcnt(0)")
        self.srd(SRD_X, 64, 2048 * 1024)
        a("s_and_b32 s%d, s%d, 3" % (S_ROT1, S_MB))
        a("s_lshl_b32 s%d, s%d, 1" % (S_ROT1, S_ROT1))
        a("s_add_u32 s%d, s%d, s%d" % (S_ROT1, S_ROT1, S_J))
        a("s_and_b32 s%d, s%d, 7" % (S_ROT1, S_ROT1))
        if "norot" in self.exp: a("s_mov_b32 s%d, 0" % S_ROT1)
        for i in range(8):
            a("s_add_u32 s3, s%d, %d" % (S_ROT1, i))
            a("s_and_b32 s3, s3, 7")
            a("s_lshl_b32 s3, s3, 7")
            a("s_add_u32 s3, s3, s%d" % S_T1)
            a("buffer_load_dwordx4 v[%d:%d], v22, s[%d:%d], s3 offen" % (32 + 4 * i, 35 + 4 * i, SRD_X, SRD_X + 3))
        self.srd(SRD_WIN, 76, 512 * 2752)
        self.srd(SRD_DFT, 70, 512 * 1024)
        self.srd(S_IMLO, 72, 512 * 1024)
        self.srd(SRD_WS, 88, WS_SIZE)
        self.srd(SRD_DBG, 86, 256)
        self.srd(SRD_WSP, 78, 2048 * 4096)
        self.srd(SRD_WOUT, 82, 688 * 1024)
        self.srd(SRD_OUT, 84, 2048 * 1024)
        self.srd(SRD_BSP, 80, 4096)
        if "tlbwarm" in self.exp:
            a("s_cmp_lg_u32 s%d, 7" % S_W)
            a("s_cbranch_scc1 L_tlb_d")
            a("v_lshlrev_b32 v5, 20, v%d" % V_LANE)
            a("v_add_u32 v5, 0x7f000, v5")
            a("s_mov_b64 exec, 0x3fff")
            a("buffer_load_dword a24, v5, s[%d:%d], 0 offen sc1" % (SRD_WS, SRD_WS + 3))
            a("s_mov_b64 exec, 1")
            a("s_lshl_b32 s3, s%d, 16" % S_MB)
            a("v_mov_b32 v5, s3")
            a("buffer_load_dword a25, v5, s[%d:%d], 0 offen" % (SRD_OUT, SRD_OUT + 3))
            a("s_lshl_b32 s3, s%d, 18" % S_MB)
            a("v_mov_b32 v5, s3")
            a("buffer_load_dword a26, v5, s[%d:%d], 0 offen" % (SRD_WSP, SRD_WSP + 3))
            a("v_mov_b32 v5, 0")
            a("buffer_load_dword a27, v5, s[%d:%d], 0 offen" % (SRD_WOUT, SRD_WOUT + 3))
            a("buffer_load_dword a28, v5, s[%d:%d], 0 offen" % (SRD_BSP, SRD_BSP + 3))
            a("s_mov_b64 exec, -1")
            a.label("L_tlb_d")
        self.npf3 = 0
        if "pf3" in self.exp:
            a("s_lshr_b32 s3, s2, 3")
            a("s_lshl_b32 s3, s3, 3")
            a("s_add_u32 s3, s3, s%d" % S_W)
            a("s_mul_i32 s%d, s3, 5504" % S_T0)
            a("v_lshlrev_b32 v5, 4, v%d" % V_LANE)
            for i in range(6):
                a("buffer_load_dwordx4 a[16:19], v5, s[%d:%d], s%d offen" % (SRD_WIN, SRD_WIN + 3, S_T0))
                a("s_add_u32 s%d, s%d, 1024" % (S_T0, S_T0))
            a("s_lshl_b32 s%d, s3, 10" % S_T0)
            a("s_add_u32 s%d, s%d, 1024" % (S_T0, S_T0))
            a("buffer_load_dwordx4 a[16:19], v5, s[%d:%d], s%d offen" % (SRD_DFT, SRD_DFT + 3, S_T0))
            a("buffer_load_dwordx4 a[16:19], v5, s[%d:%d], s%d offen" % (S_IMLO, S_IMLO + 3, S_T0))
            self.npf3 = 8
        a("s_cmp_lt_u32 s%d, 4" % S_W)
        a("s_cbranch_scc0 L_pro_h")
        self.npf = (self.prefetch_start() if "nopf" not in self.exp else 0) + self.npf3
        a("s_branch L_pro_c")
        a.label("L_pro_h")
        L = V_LANE
        a("v_lshrrev_b32 v5, 3, v%d" % L)
        a("v_and_b32 v6, 7, v%d" % L)
        a("v_lshrrev_b32 v7, 4, v%d" % L)
        a("v_xor_b32 v8, v6, v7")
        a("v_lshlrev_b32 v8, 4, v8")
        a("s_lshl_b32 s3, s%d, 5" % S_J)
        a("s_lshl_b32 s%d, s%d, 3" % (S_T0, S_HW))
        a("s_add_u32 s3, s3, s%d" % S_T0)
        a("v_add_u32 v9, s3, v5")
        a("v_cmp_eq_u32 vcc, 0, v9")
        a("v_mov_b32 v6, 256")
        a("v_cndmask_b32 v9, v9, v6, vcc")
        a("s_and_b32 s%d, s%d, 1" % (S_T0, S_HW))
        a("s_lshl_b32 s%d, s%d, 6" % (S_T0, S_T0))
        a("v_xor_b32 v8, s%d, v8" % S_T0)
        a("v_lshl_add_u32 v%d, v9, 10, v8" % self.V_OD)
        for p in range(3):
            a("v_add_u32 v5, %d, v%d" % (64 * p, L))
            a("v_mul_u32_u24 v6, 171, v5")
            a("v_lshrrev_b32 v6, 11, v6")
            a("v_mul_u32_u24 v7, 12, v6")
            a("v_sub_u32 v7, v5, v7")
            a("v_mul_u32_u24 v6, 2752, v6")
            a("v_lshl_add_u32 v6, v7, 4, v6")
            a("v_lshlrev_b32 v7, 3, v7")
            a("v_cmp_gt_u32 vcc, s%d, v7" % S_WID)
            a("v_mov_b32 v8, 0x%x" % OOB)
            a("v_cndmask_b32 v%d, v8, v6, vcc" % (self.V_OW + p))
        a("s_lshl_b32 s%d, s%d, 10" % (S_DL0, S_HW))
        a("s_mul_i32 s%d, s%d, 3072" % (S_WL0, S_HW))
        a("s_mul_i32 s%d, s%d, %d" % (S_W2, S_HW, 16 * 2752))
        a("s_lshl_b32 s3, s%d, 1" % S_F0)
        a("s_add_u32 s%d, s%d, s3" % (S_W2, S_W2))
        a("s_add_u32 s%d, s%d, %d" % (S_WSOFF, S_W2, 688 * 2))
        for k in range(4): self.dma_chunk(k)
        a("s_cmp_lg_u32 s2, 0")
        a("s_cbranch_scc1 L_nononce")
        a("s_cmp_lg_u32 s%d, 4" % S_W)
        a("s_cbranch_scc1 L_nononce")
        a("s_memrealtime s[%d:%d]" % (S_ST0, S_ST0 + 1))
        a("s_waitcnt lgkmcnt(0)")
        a("s_or_b32 s3, s%d, 1" % S_ST0)
        a("v_mov_b32 v5, s3")
        a("v_mov_b32 v6, 0")
        a("s_mov_b64 exec, 1")
        a("buffer_store_dword v5, v6, s[%d:%d], 0 offen sc1" % (SRD_DBG, SRD_DBG + 3))
        a("s_mov_b64 exec, -1")
        a.label("L_nononce")
        a("v_lshlrev_b32 v5, 2, v%d" % V_LANE)
        a("v_add_u32 v5, %d, v5" % LDS_SY)
        a("v_mov_b32 v6, 0")
        a("s_mov_b64 exec, 0xffff")
        a("ds_write_b32 v5, v6")
        a("s_mov_b64 exec, -1")
        a.label("L_pro_c")
        self.stamp(0)
        self.stamp(24)

    def pf_wrows(self, colbyte_sreg, row0_sreg, nrows16, dst):
        a = self.a
        a("v_lshrrev_b32 v5, 2, v%d" % V_LANE)
        a("v_add_u32 v5, s%d, v5" % row0_sreg)
        a("v_mul_u32_u24 v5, 2752, v5")
        a("v_and_b32 v6, 3, v%d" % V_LANE)
        a("v_lshlrev_b32 v6, 6, v6")
        a("v_min_u32 v6, 172, v6")
        a("v_add_u32 v5, v5, v6")
        for i in range(nrows16):
            a("s_add_u32 s3, s%d, %d" % (colbyte_sreg, i * 16 * 2752))
            a("buffer_load_dword a%d, v5, s[%d:%d], s3 offen" % (dst, SRD_WIN, SRD_WIN + 3))
        return nrows16

    def prefetch_start(self):
        a = self.a
        a("s_and_b32 s%d, s%d, 3" % (S_T0, S_MB))
        a("s_lshl_b32 s%d, s%d, 6" % (S_T0, S_T0))
        a("s_lshl_b32 s3, s%d, 4" % S_W)
        a("s_add_u32 s%d, s%d, s3" % (S_T0, S_T0))
        a("s_add_u32 s%d, s%d, 256" % (S_T0, S_T0))
        a("s_add_u32 s%d, s%d, 688" % (S_T1, S_F0))
        a("s_lshl_b32 s%d, s%d, 1" % (S_T1, S_T1))
        return self.pf_wrows(S_T1, S_T0, 1, 16)

    def prefetch_b(self):
        a = self.a
        a("s_and_b32 s%d, s%d, 3" % (S_T0, S_MB))
        a("s_lshl_b32 s%d, s%d, 7" % (S_T0, S_T0))
        a("s_lshl_b32 s3, s%d, 5" % S_W)
        a("s_add_u32 s%d, s%d, s3" % (S_T0, S_T0))
        a("s_lshl_b32 s%d, s%d, 1" % (S_T1, S_F0))
        self.pf_wrows(S_T1, S_T0, 2, 16)
        a("s_lshl_b32 s%d, s%d, 5" % (S_T0, S_J))
        a("s_and_b32 s3, s%d, 3" % S_MB)
        a("s_lshl_b32 s3, s3, 3")
        a("s_add_u32 s%d, s%d, s3" % (S_T0, S_T0))
        a("s_lshl_b32 s3, s%d, 1" % S_W)
        a("s_add_u32 s%d, s%d, s3" % (S_T0, S_T0))
        a("s_lshl_b32 s%d, s%d, 10" % (S_T0, S_T0))
        a("v_lshlrev_b32 v5, 4, v%d" % V_LANE)
        for i in range(2):
            a("buffer_load_dwordx4 a[16:19], v5, s[%d:%d], s%d offen offset:%d" % (S_IMLO, S_IMLO + 3, S_T0, i * 1024))

    def prefetch_wsp(self):
        a = self.a
        a("s_lshl_b32 s%d, s%d, 6" % (S_T0, S_MB))
        a("s_lshl_b32 s3, s%d, 3" % S_J)
        a("s_add_u32 s%d, s%d, s3" % (S_T0, S_T0))
        a("s_lshl_b32 s3, s%d, 1" % S_W)
        a("s_add_u32 s%d, s%d, s3" % (S_T0, S_T0))
        a("s_lshl_b32 s%d, s%d, 12" % (S_T0, S_T0))
        a("v_lshlrev_b32 v5, 4, v%d" % V_LANE)
        for i in range(8):
            a("buffer_load_dwordx4 a[16:19], v5, s[%d:%d], s%d offen" % (SRD_WSP, SRD_WSP + 3, S_T0))
            if i < 7: a("s_add_u32 s%d, s%d, 1024" % (S_T0, S_T0))

    def prefetch_wout(self):
        a = self.a
        a("s_and_b32 s3, s%d, 3" % S_MB)
        a("s_lshl_b32 s3, s3, 2")
        a("s_add_u32 s3, s3, s%d" % S_W)
        a("s_mul_i32 s%d, s3, 43" % S_T0)
        a("v_lshrrev_b32 v5, 1, v%d" % V_LANE)
        a("v_add_u32 v5, s%d, v5" % S_T0)
        a("v_lshlrev_b32 v5, 10, v5")
        a("v_and_b32 v6, 1, v%d" % V_LANE)
        a("v_lshl_add_u32 v5, v6, 6, v5")
        a("s_lshl_b32 s%d, s%d, 7" % (S_T0, S_J))
        a("buffer_load_dword a16, v5, s[%d:%d], s%d offen" % (SRD_WOUT, SRD_WOUT + 3, S_T0))
        a("s_add_u32 s%d, s%d, %d" % (S_T0, S_T0, 32 * 1024))
        a("buffer_load_dword a16, v5, s[%d:%d], s%d offen" % (SRD_WOUT, SRD_WOUT + 3, S_T0))

    def dma_chunk(self, k):
        a = self.a
        slot = LDS_WR + (k % NSLOT) * SLOT
        srd = SRD_DFT if k < 8 else S_IMLO
        a("s_add_u32 s%d, s%d, %d" % (S_T1, S_ROT1, k & 7))
        a("s_and_b32 s%d, s%d, 7" % (S_T1, S_T1))
        a("s_add_u32 m0, s%d, %d" % (S_DL0, slot + 12288))
        a("s_lshl_b32 s%d, s%d, 7" % (S_T0, S_T1))
        a("buffer_load_dwordx4 v%d, s[%d:%d], s%d offen lds" % (self.V_OD, srd, srd + 3, S_T0))
        a("s_mul_i32 s%d, s%d, %d" % (S_T1, S_T1, 64 * 2752))
        a("s_add_u32 m0, s%d, %d" % (S_WL0, slot))
        a("s_add_u32 s%d, s%d, s%d" % (S_T0, S_WSOFF if k < 8 else S_W2, S_T1))
        for p in range(3):
            a("buffer_load_dwordx4 v%d, s[%d:%d], s%d offen lds" % (self.V_OW + p, SRD_WIN, SRD_WIN + 3, S_T0))
            if p < 2:
                a("s_add_u32 m0, m0, 1024")
                a("s_nop 0")

    def xstage(self):
        a = self.a
        X = 32
        a("v_mov_b32 v23, 0x3f803f80")
        for i in range(4): a("v_mov_b32 v%d, 0" % (24 + i))
        a("v_bfe_u32 v5, v20, 1, 3")
        a("v_xor_b32 v5, v5, v21")
        a("v_lshlrev_b32 v5, 4, v5")
        a("v_lshl_add_u32 v28, v20, 7, v5")
        a("s_cmp_lt_u32 s%d, 4" % S_W)
        a("s_cbranch_scc1 L_xw_c")
        for path, younger in (("h", 16 + self.npf3), ("c", self.npf)):
            if path == "c": a.label("L_xw_c")
            for i in range(8):
                a("s_waitcnt vmcnt(%d)" % (younger + 7 - i))
                for r in range(4):
                    k = 4 * i + r
                    a("v_dot2c_f32_bf16 v%d, v%d, v23" % (24 + (k & 1), X + k))
                    a("v_dot2c_f32_bf16 v%d, v%d, v%d" % (26 + (k & 1), X + k, X + k))
            if path == "h": a("s_branch L_xw_d")
        a.label("L_xw_d")
        a("v_add_f32 v24, v24, v25")
        a("v_add_f32 v26, v26, v27")
        for dpp in ("quad_perm:[1,0,3,2]", "quad_perm:[2,3,0,1]", "row_half_mirror"):
            a("v_add_f32_dpp v25, v24, v24 %s row_mask:0xf bank_mask:0xf" % dpp)
            a("v_add_f32_dpp v27, v26, v26 %s row_mask:0xf bank_mask:0xf" % dpp)
            a("v_mov_b32 v24, v25")
            a("v_mov_b32 v26, v27")
        self.mean_rstd(24, 26, 512, 30, 31, 6)
        U = 64
        for i in range(8):
            for r in range(4):
                src = X + 4 * i + r
                t = U + 2 * ((4 * i + r) % 8)
                a("v_lshlrev_b32 v%d, 16, v%d" % (t, src))
                a("v_and_b32 v%d, 0xffff0000, v%d" % (t + 1, src))
                a("v_pk_fma_f32 v[%d:%d], v[%d:%d], v[30:31], v[30:31] op_sel:[0,0,1] op_sel_hi:[1,0,1]" % (t, t + 1, t, t + 1))
                a("v_cvt_pk_bf16_f32 v%d, v%d, v%d" % (src, t, t + 1))
            a("ds_write_b128 v28, v[%d:%d] offset:%d" % (X + 4 * i, X + 4 * i + 3, i * 8192))

    C_XA, C_AC, C_AN = 10, 14, 15
    C_FA, C_FB = 16, 32
    C_ACC = 64
    C_Z2P, C_Z1P = 96, 112
    C_GC1 = 6

    def c_setup(self, w3):
        a = self.a
        a("v_bfe_u32 v5, v%d, 1, 3" % V_SIG)
        a("v_lshlrev_b32 v6, 7, v%d" % V_SIG)
        for ks in range(4):
            a("v_add_u32 v8, %d, v%d" % (2 * ks, V_H))
            a("v_xor_b32 v8, v8, v5")
            a("v_lshl_add_u32 v%d, v8, 4, v6" % (self.C_XA + ks))
        if w3:
            for ks in range(4):
                a("v_add_u32 v%d, %d, v%d" % (116 + ks, LDS_WR + 12288, self.C_XA + ks))
        else:
            a("v_bfe_u32 v7, v%d, 2, 2" % V_LANE)
            a("v_lshl_add_u32 v7, v%d, 3, v7" % V_H)
            a("v_mul_u32_u24 v7, 192, v7")
            a("v_bfe_u32 v8, v%d, 4, 1" % V_LANE)
            a("v_lshlrev_b32 v8, 5, v8")
            a("v_and_b32 v9, 1, v%d" % V_LANE)
            a("v_lshl_add_u32 v8, v9, 4, v8")
            a("v_bfe_u32 v9, v%d, 1, 1" % V_LANE)
            a("v_lshl_add_u32 v8, v9, 3, v8")
            a("v_add_u32 v7, v7, v8")
            a("s_lshl_b32 s3, s%d, 6" % S_W)
            a("s_add_u32 s3, s3, %d" % LDS_WR)
            a("v_add_u32 v%d, s3, v7" % self.C_AC)
            a("v_add_u32 v%d, %d, v%d" % (self.C_AN, SLOT, self.C_AC))
            for Q in range(2):
                a("v_lshlrev_b32 v5, 3, v%d" % V_H)
                a("v_sub_u32 v5, v%d, v5" % V_SIG)
                if Q: a("v_subrev_u32 v5, 16, v5")
                a("v_and_b32 v6, 1, v5")
                a("v_lshlrev_b32 v6, 4, v6")
                a("v_mov_b32 v7, 0x3f80")
                a("v_lshlrev_b32 v6, v6, v7")
                a("v_lshrrev_b32 v5, 1, v5")
                for r in range(4):
                    a("v_cmp_eq_u32 vcc, %d, v5" % r)
                    a("v_cndmask_b32 v7, 0, v6, vcc")
                    a("v_accvgpr_write_b32 a%d, v7" % (4 * Q + r))

    def c_reads(self, w3, c, ks, nxt):
        A = self.C_FA + 4 * ks; B = self.C_FB + 8 * ks
        out = []
        xo = (c & 7) * 8192
        if w3:
            base = 124 + ks if nxt else 120 + ks
            out.append("ds_read_b128 v[%d:%d], v%d" % (A, A + 3, base))
        else:
            base = self.C_AN if nxt else self.C_AC
            out.append("ds_read_b64_tr_b16 v[%d:%d], v%d offset:%d" % (A, A + 1, base, ks * 3072))
            out.append("ds_read_b64_tr_b16 v[%d:%d], v%d offset:%d" % (A + 2, A + 3, base, ks * 3072 + 768))
        out.append("ds_read_b128 v[%d:%d], v%d offset:%d" % (B, B + 3, self.C_XA + ks, xo))
        out.append("ds_read_b128 v[%d:%d], v%d offset:%d" % (B + 4, B + 7, self.C_XA + ks, xo + 4096))
        return out

    def c_loop(self, w3):
        a = self.a
        nr = 3 if w3 else 4
        ACC = self.C_ACC
        def mfs(ks, first):
            A = self.C_FA + 4 * ks; B = self.C_FB + 8 * ks
            out = []
            for st in range(2):
                D = ACC + 16 * st
                cc = "0" if first else "v[%d:%d]" % (D, D + 15)
                if w3: out.append("v_mfma_f32_32x32x16_bf16 v[%d:%d], v[%d:%d], v[%d:%d], %s" % (D, D + 15, B + 4 * st, B + 4 * st + 3, A, A + 3, cc))
                else: out.append("v_mfma_f32_32x32x16_bf16 v[%d:%d], v[%d:%d], v[%d:%d], %s" % (D, D + 15, A, A + 3, B + 4 * st, B + 4 * st + 3, cc))
            return out
        a("s_mov_b32 s64, %d" % SLOT)
        if "pf2" in self.exp:
            a("v_lshlrev_b32 v9, 4, v%d" % V_LANE)
            lab = a.newlabel("pf2")
            a("s_cmp_lg_u32 s%d, 0" % S_PASS)
            a("s_cbranch_scc1 %s_b" % lab)
            for i in range(4): a("s_mov_b32 s%d, s%d" % (72 + i, SRD_WSP + i) if i < 3 else "s_mov_b32 s75, 0x20000")
            a("s_lshl_b32 s76, s%d, 6" % S_MB)
            a("s_lshl_b32 s3, s%d, 3" % S_J)
            a("s_add_u32 s76, s76, s3")
            a("s_lshl_b32 s3, s%d, 1" % S_W)
            a("s_add_u32 s76, s76, s3")
            a("s_lshl_b32 s76, s76, 12")
            a("s_branch %s_d" % lab)
            a.label(lab + "_b")
            for i in range(4): a("s_mov_b32 s%d, s%d" % (72 + i, SRD_WOUT + i) if i < 3 else "s_mov_b32 s75, 0x20000")
            a("s_and_b32 s76, s%d, 3" % S_MB)
            a("s_lshl_b32 s76, s76, 3")
            a("s_add_u32 s76, s76, s%d" % S_J)
            a("s_lshl_b32 s76, s76, 2")
            a("s_add_u32 s76, s76, s%d" % S_W)
            a("s_mul_i32 s76, s76, 43")
            a("s_lshr_b32 s76, s76, 3")
            a("s_lshl_b32 s76, s76, 10")
            a.label(lab + "_d")
        if w3:
            for ks in range(4): a("v_add_u32 v%d, s%d, v%d" % (120 + ks, S_SLOT, 116 + ks))
        for r in self.c_reads(w3, 0, 0, False): a(r)
        for r in self.c_reads(w3, 0, 1, False): a(r)
        for c in range(8):
            a("s_barrier")
            extra = []
            if w3:
                extra += ["s_add_u32 s%d, s%d, %d" % (S_T1, S_SLOT, SLOT), "s_cmp_eq_u32 s%d, %d" % (S_T1, NSLOT * SLOT), "s_cselect_b32 s%d, 0, s%d" % (S_T1, S_T1),
                          "v_add_u32 v124, s%d, v116" % S_T1, "v_add_u32 v125, s%d, v117" % S_T1]
            for ks in range(4):
                if ks < 2: rd = self.c_reads(w3, c, ks + 2, False)
                else: rd = self.c_reads(w3, c + 1, ks - 2, True)
                if "cnoread" in self.exp: rd = []
                m = mfs(ks, c == 0 and ks == 0)
                if "cnomfma" in self.exp: m = []
                a("s_waitcnt lgkmcnt(%d)" % nr)
                half = (len(rd) + 1) // 2
                if m: a(m[0])
                if ks == 0:
                    for e in extra: a(e)
                    if "pf2" in self.exp:
                        a("buffer_load_dwordx4 a[16:19], v9, s[72:75], s76 offen")
                        a("s_add_u32 s76, s76, 1024")
                for r in rd[:half]: a(r)
                if m: a(m[1])
                for r in rd[half:]: a(r)
                if ks == 3:
                    if w3:
                        a("s_mov_b32 s%d, s%d" % (S_SLOT, S_T1))
                        for k2 in range(4): a("v_add_u32 v%d, s%d, v%d" % (120 + k2, S_SLOT, 116 + k2))
                    else:
                        a("v_mov_b32 v%d, v%d" % (self.C_AC, self.C_AN))
                        a("s_add_u32 s%d, s%d, %d" % (S_SLOT, S_SLOT, SLOT))
                        a("s_cmp_eq_u32 s%d, %d" % (S_SLOT, NSLOT * SLOT))
                        a("s_cselect_b32 s%d, 0x%x, s64" % (S_T1, (-(NSLOT - 1) * SLOT) & 0xffffffff))
                        a("s_cselect_b32 s%d, 0, s%d" % (S_SLOT, S_SLOT))
                        a("v_add_u32 v%d, s%d, v%d" % (self.C_AN, S_T1, self.C_AN))
        a("s_waitcnt lgkmcnt(0)")

    def gelu_epilogue(self, dst, hook=None, hook_at=8):
        a = self.a
        E = 16
        c1 = -2.0 * math.sqrt(2.0 / math.pi) * math.log2(math.e)
        c2 = c1 * 0.044715
        a("v_mov_b32 v6, 0x%x" % f2u(c1))
        a("s_mov_b32 s%d, 0x%x" % (S_K2, f2u(c2)))
        a("s_mov_b32 s%d, 0x%x" % (S_K2 + 1, f2u(c2)))
        for pp in range(0, 16, 2):
            if hook is not None and pp == hook_at: hook()
            seq = [[], []]
            for u in range(2):
                pre = self.C_ACC + 2 * (pp + u)
                p2, e = E + u * 4, E + u * 4 + 2
                s = seq[u]
                s.append("v_pk_mul_f32 v[%d:%d], v[%d:%d], v[%d:%d]" % (p2, p2 + 1, pre, pre + 1, pre, pre + 1))
                s.append("v_pk_fma_f32 v[%d:%d], v[%d:%d], s[%d:%d], v[6:7] op_sel_hi:[1,1,0]" % (p2, p2 + 1, p2, p2 + 1, S_K2, S_K2 + 1))
                s.append("v_pk_mul_f32 v[%d:%d], v[%d:%d], v[%d:%d]" % (p2, p2 + 1, p2, p2 + 1, pre, pre + 1))
                s.append("v_exp_f32 v%d, v%d" % (e, p2))
                s.append("v_exp_f32 v%d, v%d" % (e + 1, p2 + 1))
                s.append("v_pk_add_f32 v[%d:%d], v[%d:%d], 1.0 op_sel_hi:[1,0]" % (e, e + 1, e, e + 1))
                s.append("v_rcp_f32 v%d, v%d" % (e, e))
                s.append("v_rcp_f32 v%d, v%d" % (e + 1, e + 1))
                s.append("v_pk_mul_f32 v[%d:%d], v[%d:%d], v[%d:%d]" % (e, e + 1, pre, pre + 1, e, e + 1))
                s.append("v_cvt_pk_bf16_f32 v%d, v%d, v%d" % (dst + pp + u, e, e + 1))
            for i in range(len(seq[0])):
                a(seq[0][i]); a(seq[1][i])

    def stats2_partial(self, src):
        a = self.a
        E = 16
        a("v_mov_b32 v24, 0x3f803f80")
        for i in range(4): a("v_mov_b32 v%d, 0" % (E + i))
        for r in range(8):
            for st in range(2):
                a("v_dot2c_f32_bf16 v%d, v%d, v24" % (E + 2 * st, src + 8 * st + r))
                a("v_dot2c_f32_bf16 v%d, v%d, v%d" % (E + 2 * st + 1, src + 8 * st + r, src + 8 * st + r))
        self.hsum([E, E + 1, E + 2, E + 3], E + 4)
        a("s_lshl_b32 s3, s%d, 9" % S_W)
        a("s_add_u32 s3, s3, %d" % LDS_T4)
        a("v_lshlrev_b32 v8, 3, v%d" % V_JL)
        a("v_add_u32 v8, s3, v8")
        a("ds_write_b64 v8, v[%d:%d]" % (E, E + 1))
        a("ds_write_b64 v8, v[%d:%d] offset:256" % (E + 2, E + 3))
        a("s_waitcnt lgkmcnt(0)")

    def dft_store(self, part):
        a = self.a
        a("v_and_b32 v5, 7, v%d" % V_SIG)
        a("v_xor_b32 v5, v5, v%d" % V_H)
        a("v_lshlrev_b32 v5, 4, v5")
        a("v_lshl_add_u32 v5, v%d, 7, v5" % V_SIG)
        a("v_add_u32 v5, %d, v5" % LDS_AT)
        for st in range(2):
            for Q in range(2):
                o = 16 + (st * 2 + Q) * 4
                for p in range(4):
                    acc = self.C_ACC + 16 * st + 8 * Q + 2 * p
                    a("v_cvt_pk_bf16_f32 v%d, v%d, v%d" % (o + p, acc, acc + 1))
                a("v_xor_b32 v6, %d, v5" % ((4 * st + 2 * Q) * 16))
                a("ds_write_b128 v6, v[%d:%d]" % (o, o + 3))
        a("v_lshrrev_b32 v7, 3, v%d" % V_LANE)
        a("v_and_b32 v8, 7, v%d" % V_LANE)
        a("v_xor_b32 v6, v7, v8")
        a("v_lshlrev_b32 v6, 4, v6")
        a("v_lshl_add_u32 v6, v7, 7, v6")
        a("v_add_u32 v6, %d, v6" % LDS_AT)
        a("s_waitcnt lgkmcnt(0)")
        for i in range(4):
            a("ds_read_b128 v[%d:%d], v6 offset:%d" % (32 + 4 * i, 35 + 4 * i, i * 1024))
        a("v_lshlrev_b32 v7, 13, v7")
        a("v_lshl_add_u32 v7, v8, 4, v7")
        a("s_lshl_b32 s%d, s%d, 18" % (S_T0, S_J))
        a("s_lshl_b32 s3, s%d, 7" % S_MB)
        a("s_add_u32 s%d, s%d, s3" % (S_T0, S_T0))
        a("s_add_u32 s%d, s%d, 0x%x" % (S_T0, S_T0, WS_AB + part * 4096))
        a("s_waitcnt lgkmcnt(0)")
        for i in range(4):
            a("buffer_store_dwordx4 v[%d:%d], v7, s[%d:%d], s%d offen sc1" % (32 + 4 * i, 35 + 4 * i, SRD_WS, SRD_WS + 3, S_T0))
            if i < 3: a("s_add_u32 s%d, s%d, %d" % (S_T0, S_T0, 8 * 8192))

    def z2n_publish(self):
        a = self.a
        a("v_lshlrev_b32 v5, 3, v%d" % V_JL)
        a("v_add_u32 v5, %d, v5" % LDS_T5)
        a("ds_read_b64 v[6:7], v5")
        a("ds_read_b64 v[8:9], v5 offset:256")
        a("s_waitcnt lgkmcnt(0)")
        N = 48
        for st in range(2):
            r2 = 6 + 2 * st
            for r in range(8):
                src = self.C_Z2P + 8 * st + r
                t = 16 + 2 * (r % 4)
                a("v_lshlrev_b32 v%d, 16, v%d" % (t, src))
                a("v_and_b32 v%d, 0xffff0000, v%d" % (t + 1, src))
                a("v_pk_fma_f32 v[%d:%d], v[%d:%d], v[%d:%d], v[%d:%d] op_sel:[0,0,1] op_sel_hi:[1,0,1]" % (t, t + 1, t, t + 1, r2, r2 + 1, r2, r2 + 1))
                a("v_cvt_pk_bf16_f32 v%d, v%d, v%d" % (N + 8 * st + r, t, t + 1))
        DT = 16
        for st in range(2):
            D = DT + 16 * st
            a("v_mfma_f32_32x32x16_bf16 v[%d:%d], v[%d:%d], a[0:3], 0" % (D, D + 15, N + 8 * st, N + 8 * st + 3))
        for st in range(2):
            D = DT + 16 * st
            a("v_mfma_f32_32x32x16_bf16 v[%d:%d], v[%d:%d], a[4:7], v[%d:%d]" % (D, D + 15, N + 8 * st + 4, N + 8 * st + 7, D, D + 15))
        a("s_lshl_b32 s%d, s%d, 7" % (S_T0, S_J))
        a("s_lshl_b32 s%d, s%d, 2" % (S_T1, S_MB))
        a("s_add_u32 s%d, s%d, s%d" % (S_T0, S_T0, S_T1))
        a("s_mul_i32 s%d, s%d, 3" % (S_T0, S_T0))
        a("s_add_u32 s%d, s%d, s%d" % (S_T0, S_T0, S_W))
        a("s_lshl_b32 s%d, s%d, 10" % (S_T0, S_T0))
        a("s_add_u32 s%d, s%d, 0x%x" % (S_T0, S_T0, WS_Z2N))
        a("v_lshlrev_b32 v5, 4, v%d" % V_LANE)
        for st in range(2):
            for Q in range(2):
                D = DT + 16 * st + 8 * Q
                o = 48 + (st * 2 + Q) * 4
                for p in range(4):
                    a("v_cvt_pk_bf16_f32 v%d, v%d, v%d" % (o + p, D + 2 * p, D + 2 * p + 1))
                a("s_add_u32 s%d, s%d, %d" % (S_T1, S_T0, (2 * st + Q) * 3072))
                if "nozstore" not in self.exp: a("buffer_store_dwordx4 v[%d:%d], v5, s[%d:%d], s%d offen sc1" % (o, o + 3, SRD_WS, SRD_WS + 3, S_T1))

    def zero_acc(self):
        for i in range(32): self.a("v_mov_b32 v%d, 0" % (self.C_ACC + i))

    def p1_compute(self):
        a = self.a
        a("s_cmp_eq_u32 s%d, 3" % S_W)
        a("s_cbranch_scc1 L_c3")
        self.c_setup(False)
        a("s_mov_b32 s%d, 0" % S_C)
        a("s_mov_b32 s%d, %d" % (S_SLOT, SLOT))
        a("s_mov_b32 s%d, 0" % S_PASS)
        a("s_waitcnt lgkmcnt(0)")
        a("s_barrier")
        if "nopf" not in self.exp: self.prefetch_b()
        self.stamp(1)
        self.stamp(28)
        a.label("L_pass")
        self.c_loop(False)
        a("s_cmp_lg_u32 s%d, 0" % S_PASS)
        a("s_cbranch_scc1 L_passB_done")
        self.stamp(29)
        self.stamp(2)
        if "nopf" not in self.exp: self.prefetch_wsp()
        self.gelu_epilogue(self.C_Z2P)
        self.stats2_partial(self.C_Z2P)
        a("s_barrier")
        a("v_mov_b32 v6, 0")
        a("buffer_load_dword a8, v6, s[%d:%d], 0 offen sc1" % (SRD_DBG, SRD_DBG + 3))
        a("s_lshl_b32 s%d, s%d, 7" % (S_T0, S_MB))
        a("v_lshlrev_b32 v5, 1, v%d" % V_SIG)
        a("buffer_load_ushort a9, v5, s[%d:%d], s%d offen" % (SRD_BSP, SRD_BSP + 3, S_T0))
        a("buffer_load_ushort a10, v5, s[%d:%d], s%d offen offset:64" % (SRD_BSP, SRD_BSP + 3, S_T0))
        if "nopf" not in self.exp: self.prefetch_wout()
        self.stamp(3)
        a("s_mov_b32 s%d, 1" % S_PASS)
        a("s_branch L_pass")
        a.label("L_passB_done")
        self.stamp(4)
        a("s_waitcnt vmcnt(0)")
        a("v_accvgpr_read_b32 v39, a8")
        self.nonce_from(39)
        self.stamp(22)
        a("s_barrier")
        self.stamp(5)
        self.z2n_publish()
        if "b3b" in self.exp: a("s_barrier")
        def hook():
            a("s_waitcnt vmcnt(0)")
            self.flag_store(1, 0, S_W, vt=(8, 9))
            self.stamp(7)
        self.gelu_epilogue(self.C_Z1P, hook, 8)
        a("s_branch L_c_join")
        a.label("L_c3")
        self.c_setup(True)
        a("s_mov_b32 s%d, 0" % S_C)
        a("s_mov_b32 s%d, 0" % S_SLOT)
        a("s_mov_b32 s%d, 0" % S_PASS)
        a("s_waitcnt lgkmcnt(0)")
        a("s_barrier")
        if "nopf" not in self.exp: self.prefetch_b()
        a.label("L_pass3")
        self.c_loop(True)
        a("s_cmp_lg_u32 s%d, 0" % S_PASS)
        a("s_cbranch_scc1 L_passB3_done")
        if "nopf" not in self.exp: self.prefetch_wsp()
        self.dft_store(0)
        a("s_barrier")
        a("v_mov_b32 v6, 0")
        a("buffer_load_dword a8, v6, s[%d:%d], 0 offen sc1" % (SRD_DBG, SRD_DBG + 3))
        if "nopf" not in self.exp: self.prefetch_wout()
        a("s_mov_b32 s%d, 1" % S_PASS)
        a("s_branch L_pass3")
        a.label("L_passB3_done")
        self.dft_store(1)
        a("s_waitcnt vmcnt(0)")
        a("v_accvgpr_read_b32 v39, a8")
        self.nonce_from(39)
        self.flag_store(1, 3)
        a("s_barrier")
        if "b3b" in self.exp: a("s_barrier")
        a.label("L_c_join")

    def fix_x_after_pass(self):
        a = self.a
        a("v_subrev_u32 v%d, 8192, v%d" % (self.C_XA, self.C_XA))
        a("v_subrev_u32 v%d, 8192, v%d" % (self.C_XA + 1, self.C_XA + 1))

    def capture(self, fn):
        save = self.a
        tmp = Asm(); tmp.uid = save.uid + 1000
        self.a = tmp
        fn()
        self.a = save
        save.uid = tmp.uid
        return [i.text for i in tmp.ins]

    def h_loop(self, k0):
        a = self.a
        consts = self.capture(self.fft_consts) if (k0 == 8 and "nofft" not in self.exp) else []
        per = (len(consts) + 7) // 8
        st = self.stage_loads() if k0 == 8 else []
        nst = 0
        for k in range(k0, k0 + 8):
            if k + 1 <= 15 and "hnowait" not in self.exp:
                younger = 4 * (min(k + 3, 15) - (k + 1))
                if k >= 12:
                    lab = a.newlabel("hw")
                    a("s_cmp_ge_u32 s%d, 2" % S_HW)
                    a("s_cbranch_scc1 %s_b" % lab)
                    a("s_waitcnt vmcnt(%d)" % (younger + nst))
                    a("s_branch %s_d" % lab)
                    a.label(lab + "_b")
                    a("s_cmp_eq_u32 s%d, 2" % S_HW)
                    a("s_cbranch_scc1 %s_c" % lab)
                    a("s_waitcnt vmcnt(%d)" % younger)
                    a("s_branch %s_d" % lab)
                    a.label(lab + "_c")
                    a("s_waitcnt vmcnt(%d)" % (younger + (16 if k >= 14 else 0)))
                    a.label(lab + "_d")
                else:
                    a("s_waitcnt vmcnt(%d)" % younger)
            a("s_barrier")
            if k + 4 <= 15: self.dma_chunk(k + 4)
            if k == 13:
                lab = a.newlabel("si")
                a("s_cmp_lg_u32 s%d, 2" % S_HW)
                a("s_cbranch_scc1 %s" % lab)
                self.stats2_issue()
                a.label(lab)
            if k == 15:
                lab = a.newlabel("si")
                a("s_cmp_lg_u32 s%d, 2" % S_HW)
                a("s_cbranch_scc1 %s" % lab)
                self.stats2_consume()
                a.label(lab)
            if k == 11:
                self.wsp_voffsets(120)
                a("s_lshl_b32 s%d, s%d, 18" % (S_T1, S_MB))
                a("s_lshl_b32 s3, s%d, 10" % S_HW)
                a("s_add_u32 s%d, s%d, s3" % (S_T1, S_T1))
                a("s_add_u32 s67, s%d, %d" % (S_T1, 2 * 256))
                a("s_add_u32 s68, s%d, %d" % (S_T1, 3 * 256))
                a("s_add_u32 s69, s%d, %d" % (S_T1, 2 * 1024 + 2 * 256))
            if k0 == 0: continue
            lab = a.newlabel("role")
            a("s_cmp_lt_u32 s%d, 2" % S_HW)
            a("s_cbranch_scc1 %s_s" % lab)
            if consts:
                for t in consts[(k - k0) * per:(k - k0 + 1) * per]: a(t)
            a("s_branch %s_d" % lab)
            a.label(lab + "_s")
            if st and k >= 12:
                n = 12
                for t in st[2 * nst:2 * (nst + n)]: a(t)
                nst += n
            a.label(lab + "_d")

    def stats2_publish(self):
        a = self.a
        E = 16
        a("v_lshlrev_b32 v8, 3, v%d" % V_JL)
        a("v_add_u32 v8, %d, v8" % LDS_T4)
        for w in range(3):
            for st in range(2):
                d = E + w * 4 + st * 2
                a("ds_read_b64 v[%d:%d], v8 offset:%d" % (d, d + 1, w * 512 + st * 256))
        a("s_waitcnt lgkmcnt(0)")
        for w in range(1, 3):
            for st in range(2):
                a("v_pk_add_f32 v[%d:%d], v[%d:%d], v[%d:%d]" % (E + st * 2, E + st * 2 + 1, E + st * 2, E + st * 2 + 1, E + w * 4 + st * 2, E + w * 4 + st * 2 + 1))
        for st in range(2):
            o = 32 + 4 * st
            a("v_mov_b32 v%d, v%d" % (o, E + 2 * st))
            a("v_mov_b32 v%d, s%d" % (o + 1, S_NONCE))
            a("v_mov_b32 v%d, v%d" % (o + 2, E + 2 * st + 1))
            a("v_mov_b32 v%d, s%d" % (o + 3, S_NONCE))
        a("s_lshl_b32 s%d, s%d, 3" % (S_T0, S_MB))
        a("s_add_u32 s%d, s%d, s%d" % (S_T0, S_T0, S_J))
        a("s_lshl_b32 s%d, s%d, 10" % (S_T0, S_T0))
        a("s_add_u32 s%d, s%d, 0x%x" % (S_T0, S_T0, WS_STATS))
        a("v_lshlrev_b32 v8, 4, v%d" % V_JL)
        a("s_mov_b32 exec_hi, 0")
        a("buffer_store_dwordx4 v[32:35], v8, s[%d:%d], s%d offen sc1" % (SRD_WS, SRD_WS + 3, S_T0))
        a("buffer_store_dwordx4 v[36:39], v8, s[%d:%d], s%d offen offset:512 sc1" % (SRD_WS, SRD_WS + 3, S_T0))
        a("s_mov_b64 exec, -1")

    ST = 48
    def stats2_issue(self):
        a = self.a
        a("s_lshl_b32 s%d, s%d, 13" % (S_T0, S_MB))
        a("s_add_u32 s%d, s%d, 0x%x" % (S_T0, S_T0, WS_STATS))
        a("v_lshlrev_b32 v8, 4, v%d" % V_JL)
        for jj in range(8):
            for st in range(2):
                r = self.ST + (jj * 2 + st) * 4
                a("buffer_load_dwordx4 v[%d:%d], v8, s[%d:%d], s%d offen offset:%d sc1" % (r, r + 3, SRD_WS, SRD_WS + 3, S_T0, st * 512))
            if jj < 7: a("s_add_u32 s%d, s%d, 1024" % (S_T0, S_T0))

    def stats2_consume(self):
        a = self.a
        lab = a.newlabel("sc")
        a("s_mov_b32 s%d, 0" % S_SPIN)
        a.label(lab)
        a("s_waitcnt vmcnt(0)")
        a("s_mov_b64 s[%d:%d], 0" % (S_EX, S_EX + 1))
        for g in range(16):
            r = self.ST + 4 * g
            a("v_cmp_ne_u32 vcc, s%d, v%d" % (S_NONCE, r + 1))
            a("s_or_b64 s[%d:%d], s[%d:%d], vcc" % (S_EX, S_EX + 1, S_EX, S_EX + 1))
            a("v_cmp_ne_u32 vcc, s%d, v%d" % (S_NONCE, r + 3))
            a("s_or_b64 s[%d:%d], s[%d:%d], vcc" % (S_EX, S_EX + 1, S_EX, S_EX + 1))
        a("s_cmp_eq_u64 s[%d:%d], 0" % (S_EX, S_EX + 1))
        a("s_cbranch_scc1 %s_ok" % lab)
        a("s_add_u32 s%d, s%d, 1" % (S_SPIN, S_SPIN))
        a("s_cmp_gt_u32 s%d, 0x8000" % S_SPIN)
        a("s_cbranch_scc1 %s_ok" % lab)
        self.stats2_issue()
        a("s_branch %s" % lab)
        a.label(lab + "_ok")
        for st in range(2):
            b = self.ST + 4 * st
            for jj in range(1, 8):
                r = self.ST + (jj * 2 + st) * 4
                a("v_add_f32 v%d, v%d, v%d" % (b, b, r))
                a("v_add_f32 v%d, v%d, v%d" % (b + 2, b + 2, r + 2))
        for st in range(2):
            b = self.ST + 4 * st
            self.mean_rstd(b, b + 2, 688, 112 + 2 * st, 113 + 2 * st, 116)
        a("v_lshlrev_b32 v8, 3, v%d" % V_JL)
        a("v_add_u32 v8, %d, v8" % LDS_T5)
        a("ds_write_b64 v8, v[112:113]")
        a("ds_write_b64 v8, v[114:115] offset:256")
        a("s_waitcnt lgkmcnt(0)")

    def angles(self, n_list, tq, base, dst):
        a = self.a
        for idx, n in enumerate(n_list):
            if n == 0: a("v_mov_b32 v%d, v%d" % (dst + idx, base))
            else: a("v_fmamk_f32 v%d, v%d, 0x%x, v%d" % (dst + idx, tq, f2u(float(n)), base))

    H_T1F, H_8H = 46, 47
    def fft_consts(self):
        a = self.a
        T = 16
        a("v_bfe_u32 v%d, v%d, 2, 1" % (T, V_JL))
        a("v_lshlrev_b32 v%d, 4, v%d" % (T, T))
        a("v_bfe_u32 v%d, v%d, 3, 2" % (T + 1, V_JL))
        a("v_lshl_or_b32 v%d, v%d, 2, v%d" % (T, T + 1, T))
        a("v_and_b32 v%d, 3, v%d" % (T + 1, V_JL))
        a("v_or_b32 v%d, v%d, v%d" % (T, T, T + 1))
        a("v_cvt_f32_u32 v%d, v%d" % (self.H_T1F, T))
        a("v_cvt_f32_u32 v%d, v%d" % (self.H_8H, V_H))
        a("v_mul_f32 v%d, 0x%x, v%d" % (self.H_8H, f2u(8.0), self.H_8H))
        a("v_mul_f32 v%d, 0x%x, v%d" % (T + 2, f2u(1.0 / 32), self.H_T1F))
        a("v_mul_f32 v%d, v%d, v%d" % (T + 3, T + 2, self.H_8H))
        A = T + 4; C = T + 12; S = T + 20
        for ks in range(2):
            self.angles([16 * ks + i for i in range(8)], T + 2, T + 3, A)
            for i in range(8): a("v_fract_f32 v%d, v%d" % (A + i, A + i))
            for i in range(8):
                a("v_cos_f32 v%d, v%d" % (C + i, A + i))
                a("v_sin_f32 v%d, v%d" % (S + i, A + i))
            for p in range(4):
                a("v_cvt_pk_bf16_f32 v%d, v%d, v%d" % (A + 0, C + 2 * p, C + 2 * p + 1))
                a("v_cvt_pk_bf16_f32 v%d, -v%d, -v%d" % (A + 1, S + 2 * p, S + 2 * p + 1))
                a("v_cvt_pk_bf16_f32 v%d, v%d, v%d" % (A + 2, S + 2 * p, S + 2 * p + 1))
                a("v_accvgpr_write_b32 a%d, v%d" % (4 * ks + p, A + 0))
                a("v_accvgpr_write_b32 a%d, v%d" % (8 + 4 * ks + p, A + 1))
                a("v_accvgpr_write_b32 a%d, v%d" % (16 + 4 * ks + p, A + 2))
        a("v_accvgpr_write_b32 a60, v%d" % self.H_T1F)
        a("v_accvgpr_write_b32 a61, v%d" % self.H_8H)
        a("s_sub_u32 s3, s%d, 2" % S_HW)
        a("s_lshl_b32 s3, s3, 5")
        a("v_add_u32 v%d, s3, v%d" % (T + 2, V_JL))
        a("v_cvt_f32_u32 v%d, v%d" % (T + 2, T + 2))
        a("v_mul_f32 v%d, 0x%x, v%d" % (T + 2, f2u(1.0 / 64), T + 2))
        a("v_mul_f32 v%d, v%d, v%d" % (T + 3, T + 2, self.H_8H))
        for kt in range(2):
            for kp in range(2):
                self.angles([32 * kt + 16 * kp + i for i in range(8)], T + 2, T + 3, A)
                for i in range(8): a("v_fract_f32 v%d, v%d" % (A + i, A + i))
                for i in range(8):
                    a("v_cos_f32 v%d, v%d" % (C + i, A + i))
                    a("v_sin_f32 v%d, v%d" % (S + i, A + i))
                for p in range(4):
                    a("v_cvt_pk_bf16_f32 v%d, v%d, v%d" % (A + 0, C + 2 * p, C + 2 * p + 1))
                    a("v_cvt_pk_bf16_f32 v%d, v%d, v%d" % (A + 1, S + 2 * p, S + 2 * p + 1))
                    a("v_accvgpr_write_b32 a%d, v%d" % (24 + 16 * kt + 4 * kp + p, A + 0))
                    a("v_accvgpr_write_b32 a%d, v%d" % (24 + 16 * kt + 8 + 4 * kp + p, A + 1))

    def p1_helper(self):
        a = self.a
        a("s_mov_b32 s%d, 0" % S_C)
        a("v_mov_b32 v6, 0")
        a("buffer_load_dword v%d, v6, s[%d:%d], 0 offen sc1" % (self.V_NON, SRD_DBG, SRD_DBG + 3))
        a("s_waitcnt vmcnt(13) lgkmcnt(0)")
        a("s_barrier")
        self.h_loop(0)
        self.nonce_from(self.V_NON)
        a("s_barrier")
        a("s_cmp_lg_u32 s%d, 0" % S_HW)
        a("s_cbranch_scc1 L_h_nopub")
        self.stats2_publish()
        a.label("L_h_nopub")
        self.h_loop(8)
        self.stamp(22)
        a("s_barrier")
        if "b3b" in self.exp: a("s_barrier")

    G_B = 16
    G_VB = 10
    G_VZ = 32
    G_L16 = 35
    G_BS = 36
    G_RV = 40
    def ring_reg(self, f):
        if f < 8: return "a[%d:%d]" % (96 + 4 * f, 96 + 4 * f + 3)
        r = self.G_RV + 4 * (f - 8)
        return "v[%d:%d]" % (r, r + 3)

    def g_compute(self):
        a = self.a
        a("v_lshlrev_b32 v%d, 4, v%d" % (self.G_L16, V_LANE))
        a("v_and_b32 v5, 15, v%d" % V_SIG)
        a("v_xor_b32 v5, v5, v%d" % V_H)
        a("v_lshlrev_b32 v5, 4, v5")
        a("v_lshl_add_u32 v5, v%d, 8, v5" % V_SIG)
        a("s_lshl_b32 s3, s%d, 15" % S_W)
        a("v_add_u32 v104, s3, v5")
        for k in range(1, 8): a("v_xor_b32 v%d, %d, v104" % (104 + k, k * 32))
        a("s_sub_u32 s%d, s%d, 64" % (S_T2, S_WID))
        for tau in range(3):
            a("s_add_u32 s%d, s%d, %d" % (S_T0, S_W, tau))
            a("s_cmp_ge_u32 s%d, 3" % S_T0)
            a("s_cselect_b32 s%d, 3, 0" % S_T1)
            a("s_sub_u32 s%d, s%d, s%d" % (S_T0, S_T0, S_T1))
            a("s_lshl_b32 s%d, s%d, 10" % (S_T1, S_T0))
            a("v_add_u32 v5, s%d, v%d" % (S_T1, self.G_L16))
            a("v_mov_b32 v6, 0x%x" % OOB)
            a("v_cmp_le_u32 vcc, s%d, v%d" % (S_T2, V_SIG))
            a("s_cmp_eq_u32 s%d, 2" % S_T0)
            a("s_cselect_b64 s[%d:%d], vcc, 0" % (S_EX, S_EX + 1))
            a("v_cndmask_b32 v%d, v5, v6, s[%d:%d]" % (self.G_VZ + tau, S_EX, S_EX + 1))
        a("s_lshl_b32 s3, s%d, 5" % S_J)
        a("s_lshl_b32 s%d, s%d, 3" % (S_T0, S_W))
        a("s_add_u32 s3, s3, s%d" % S_T0)
        a("v_add_u32 v38, s3, v%d" % V_LANE)
        a("v_lshlrev_b32 v38, 7, v38")
        a("v_add_u32 v38, 0x%x, v38" % (WS_FLAG + 256 * 128))
        a("s_lshl_b32 s%d, s%d, 7" % (S_B0, S_J))
        a("s_lshl_b32 s3, s%d, 5" % S_W)
        a("s_add_u32 s%d, s%d, s3" % (S_B0, S_B0))
        a("s_mov_b32 s%d, 0" % S_RHO)
        for cc in range(4):
            a("s_add_u32 s3, s%d, %d" % (S_RHO, cc))
            a("s_and_b32 s3, s3, 3")
            a("s_lshl_b32 s3, s3, 3")
            a("s_add_u32 s3, s3, s%d" % S_B0)
            a("s_mul_i32 s3, s3, 3072")
            a("s_add_u32 s%d, s3, 0x%x" % (67 + cc, WS_Z2N))
        a("v_accvgpr_read_b32 v%d, a9" % self.G_BS)
        a("v_accvgpr_read_b32 v%d, a10" % (self.G_BS + 1))
        self.poll_flags_n(38, 8, 3, 16)
        self.stamp(8)
        self.stamp(26)
        vq = VQ(a)
        def zload(n):
            a("s_add_u32 s%d, s%d, %d" % (S_T0, 67 + n // 8, (n % 8) * 3072))
            for tau in range(3):
                f = (n % 8) * 3 + tau
                a("buffer_load_dwordx4 %s, v%d, s[%d:%d], s%d offen %s" % (self.ring_reg(f), self.G_VZ + tau, SRD_WS, SRD_WS + 3, S_T0, "" if "gplain" in self.exp else "sc1"))
                vq.issue(("z", n))
        for n in range(8): zload(n)
        B = self.G_B
        SY_FREE = LDS_SY + 0
        SY_LAND = LDS_SY + 16
        a("s_lshl_b32 s3, s%d, 2" % S_W)
        a("s_add_u32 s3, s3, %d" % LDS_SY)
        a("v_mov_b32 v14, s3")
        def land_check(cnt):
            lab = a.newlabel("ld")
            a("s_mov_b32 s%d, 0" % S_SPIN)
            a.label(lab)
            a("ds_read_b32 v15, v14 offset:16")
            a("s_waitcnt lgkmcnt(0)")
            a("v_readfirstlane_b32 s%d, v15" % S_T1)
            a("s_add_u32 s%d, s%d, 1" % (S_SPIN, S_SPIN))
            a("s_cmp_gt_u32 s%d, 0x100000" % S_SPIN)
            a("s_cbranch_scc1 %s_x" % lab)
            a("s_cmp_lt_u32 s%d, %d" % (S_T1, cnt))
            a("s_cbranch_scc1 %s" % lab)
            a.label(lab + "_x")
        def bread(n, st):
            cc, k = divmod(n, 8)
            r = B + (n & 1) * 8 + st * 4
            return "ds_read_b128 v[%d:%d], v%d offset:%d" % (r, r + 3, 104 + k, (cc & 1) * 16384 + st * 8192)
        if "cprio" in self.exp: a("s_setprio 1")
        land_check(1)
        a(bread(0, 0)); a(bread(0, 1))
        for n in range(32):
            cc, k = divmod(n, 8)
            buf = n & 1
            vq.wait(("z", n))
            nxt = n + 1 < 32
            need_land = nxt and (n + 1) % 8 == 0 and "gnoland" not in self.exp
            a("s_waitcnt lgkmcnt(0)")
            if need_land:
                if "landpf" in self.exp:
                    lab = a.newlabel("lp")
                    a("v_readfirstlane_b32 s%d, v15" % S_T1)
                    a("s_cmp_ge_u32 s%d, %d" % (S_T1, (n + 1) // 8 + 1))
                    a("s_cbranch_scc1 %s" % lab)
                    land_check((n + 1) // 8 + 1)
                    a.label(lab)
                else:
                    land_check((n + 1) // 8 + 1)
            fill = []
            if nxt: fill += [bread(n + 1, 0), bread(n + 1, 1)]
            if "landpf" in self.exp and (n + 2) % 8 == 0 and n + 2 < 32: fill.append("ds_read_b32 v15, v14 offset:16")
            zl = []
            if n + 8 < 32:
                zl.append("s_add_u32 s%d, s%d, %d" % (S_T0, 67 + (n + 8) // 8, ((n + 8) % 8) * 3072))
            mi = 0
            for tau in range(3):
                for st in range(2):
                    D = (tau * 2 + st) * 16
                    Br = B + buf * 8 + st * 4
                    cc_ = "0" if n == 0 else "a[%d:%d]" % (D, D + 15)
                    a("v_mfma_f32_32x32x16_bf16 a[%d:%d], %s, v[%d:%d], %s" % (D, D + 15, self.ring_reg((n % 8) * 3 + tau), Br, Br + 3, cc_))
                    if mi == 0:
                        for f in fill: a(f)
                        for f in zl: a(f)
                    if st == 1 and n + 8 < 32 and "gnoz" not in self.exp:
                        f = (n % 8) * 3 + tau
                        a("buffer_load_dwordx4 %s, v%d, s[%d:%d], s%d offen %s" % (self.ring_reg(f), self.G_VZ + tau, SRD_WS, SRD_WS + 3, S_T0, "" if "gplain" in self.exp else "sc1"))
                        vq.issue(("z", n + 8))
                    mi += 1
            if k == 7 and cc < 2:
                a("v_mov_b32 v15, %d" % (cc + 1))
                a("ds_write_b32 v14, v15")
        if "cprio" in self.exp: a("s_setprio 0")
        self.stamp(27)
        self.stamp(10)
        self.g_reduce()

    def wsp_dma16(self, cc, sbase, slds):
        a = self.a
        for q in range(16):
            a("s_add_u32 s%d, s%d, %d" % (S_T0, 67 + cc, q * 4 * 4096))
            a("s_add_u32 m0, s%d, %d" % (slds, (cc & 1) * 16384 + q * 1024))
            a("buffer_load_dwordx4 v%d, s[%d:%d], s%d offen lds" % (16 + (q & 3), SRD_WSP, SRD_WSP + 3, S_T0))

    def wsp_voffsets(self, base):
        a = self.a
        L = V_LANE
        a("v_lshrrev_b32 v5, 4, v%d" % L)
        a("v_and_b32 v6, 15, v%d" % L)
        for qq in range(4):
            a("v_add_u32 v7, %d, v5" % (4 * qq))
            a("v_xor_b32 v7, v7, v6")
            a("v_lshlrev_b32 v7, 4, v7")
            a("v_lshl_add_u32 v%d, v5, 12, v7" % (base + qq))

    def stage_reg(self, unit, q):
        if unit < 2:
            r = unit * 64 + 4 * q
            return "a[%d:%d]" % (r, r + 3)
        r = 32 + 4 * q
        return "v[%d:%d]" % (r, r + 3)

    def stage_loads(self):
        out = []
        for unit in range(3):
            for q in range(16):
                out.append("s_add_u32 s%d, s%d, %d" % (S_T0, 67 + unit, q * 4 * 4096))
                out.append("buffer_load_dwordx4 %s, v%d, s[%d:%d], s%d offen" % (self.stage_reg(unit, q), 120 + (q & 3), SRD_WSP, SRD_WSP + 3, S_T0))
        return out

    def g_helper(self):
        a = self.a
        L = V_LANE
        self.wsp_voffsets(16)
        a("s_lshl_b32 s%d, s%d, 18" % (S_B0, S_MB))
        a("s_lshl_b32 s3, s%d, 10" % S_HW)
        a("s_add_u32 s%d, s%d, s3" % (S_B0, S_B0))
        a("s_mov_b32 s70, s%d" % S_B0)
        a("s_add_u32 s71, s%d, 256" % S_B0)
        a("s_lshl_b32 s%d, s%d, 15" % (S_T3, S_HW))
        for cc in range(2):
            for q in range(16):
                a("s_add_u32 s%d, s%d, %d" % (S_T0, 70 + cc, q * 4 * 4096))
                a("s_add_u32 m0, s%d, %d" % (S_T3, cc * 16384 + q * 1024))
                a("buffer_load_dwordx4 v%d, s[%d:%d], s%d offen lds" % (16 + (q & 3), SRD_WSP, SRD_WSP + 3, S_T0))
        a("s_lshl_b32 s3, s%d, 2" % S_HW)
        a("s_add_u32 s3, s3, %d" % LDS_SY)
        a("v_mov_b32 v12, s3")
        def wait_free(off, cnt):
            lab = a.newlabel("fr")
            a("s_mov_b32 s%d, 0" % S_SPIN)
            a.label(lab)
            a("ds_read_b32 v5, v12 offset:%d" % off)
            a("s_waitcnt lgkmcnt(0)")
            a("v_readfirstlane_b32 s%d, v5" % S_T0)
            a("s_add_u32 s%d, s%d, 1" % (S_SPIN, S_SPIN))
            a("s_cmp_gt_u32 s%d, 0x100000" % S_SPIN)
            a("s_cbranch_scc1 %s_x" % lab)
            a("s_cmp_lt_u32 s%d, %d" % (S_T0, cnt))
            a("s_cbranch_scc0 %s_x" % lab)
            a("s_sleep 1")
            a("s_branch %s" % lab)
            a.label(lab + "_x")
        a("s_cmp_ge_u32 s%d, 2" % S_HW)
        a("s_cbranch_scc1 L_gh_fft")
        for (n, val) in ((16, 1), (0, 2)):
            a("s_waitcnt vmcnt(%d)" % n)
            a("v_mov_b32 v6, %d" % val)
            a("ds_write_b32 v12, v6 offset:16")
        a("v_lshlrev_b32 v13, 4, v%d" % L)
        a("s_lshl_b32 s3, s%d, 15" % S_HW)
        a("v_add_u32 v13, s3, v13")
        a("v_add_u32 v14, 65536, v13")
        def put(unit, vaddr, slot, landoff, cnt):
            for q in range(16 if "noput" not in self.exp else 0):
                a("ds_write_b128 v%d, %s offset:%d" % (vaddr, self.stage_reg(unit, q), slot * 16384 + q * 1024))
            a("v_mov_b32 v6, %d" % cnt)
            a("s_waitcnt lgkmcnt(0)")
            a("ds_write_b32 v12, v6 offset:%d" % landoff)
        wait_free(0, 1); put(0, 13, 0, 16, 3)
        for q in range(16):
            a("s_add_u32 s%d, s69, %d" % (S_T0, 256 + q * 4 * 4096))
            a("buffer_load_dwordx4 a[%d:%d], v%d, s[%d:%d], s%d offen" % (4 * q, 4 * q + 3, 120 + (q & 3), SRD_WSP, SRD_WSP + 3, S_T0))
        wait_free(8, 1); put(2, 14, 0, 24, 3)
        wait_free(0, 2); put(1, 13, 1, 16, 4)
        wait_free(8, 2)
        a("s_waitcnt vmcnt(0)")
        put(0, 14, 1, 24, 4)
        a("s_branch L_gh_done")
        a.label("L_gh_fft")
        for (n, val) in ((16, 1), (0, 2)):
            a("s_waitcnt vmcnt(%d)" % n)
            a("v_mov_b32 v6, %d" % val)
            a("ds_write_b32 v12, v6 offset:16")
        if "nofft" not in self.exp:
            if "fftprio0" not in self.exp: a("s_setprio 3")
            self.fft()
            a("s_setprio 0")
        a("s_waitcnt vmcnt(0)")
        a("s_sub_u32 s%d, s%d, 2" % (S_T1, S_HW))
        self.flag_store(3, 0, S_T1)
        self.stamp(19)
        a.label("L_gh_done")
        self.stamp(9)
        a("v_lshrrev_b32 v5, 3, v%d" % L)
        a("v_and_b32 v6, 7, v%d" % L)
        a("v_bfe_u32 v7, v%d, 4, 1" % L)
        a("v_lshlrev_b32 v7, 2, v7")
        a("v_xor_b32 v6, v6, v7")
        a("v_lshlrev_b32 v6, 4, v6")
        a("v_lshl_add_u32 v9, v5, 10, v6")
        a("s_lshl_b32 s3, s%d, 7" % S_J)
        a("v_add_u32 v9, s3, v9")
        def wo(g):
            a("s_mov_b32 m0, %d" % (LDS_WO + g * 1024))
            a("s_mov_b32 s%d, %d" % (S_T0, g * 8192))
            a("buffer_load_dwordx4 v9, s[%d:%d], s%d offen lds" % (SRD_WOUT, SRD_WOUT + 3, S_T0))
        early = {2: list(range(56, 64)) + list(range(75, 81)), 3: list(range(64, 72)) + list(range(81, 88))}
        done = set(early[2]) | set(early[3])
        rest = [g for g in range(88) if g not in done]
        assert LDS_SY + 64 <= LDS_WO + 75 * 1024 and LDS_AT >= LDS_WO + 75 * 1024
        for hw in (2, 3):
            lab = a.newlabel("wo")
            a("s_cmp_lg_u32 s%d, %d" % (S_HW, hw))
            a("s_cbranch_scc1 %s" % lab)
            for g in early[hw]: wo(g)
            a.label(lab)
        a("s_barrier")
        n = len(rest)
        per = (n + 3) // 4
        for hw in range(4):
            mine = rest[hw * per:(hw + 1) * per]
            lab = a.newlabel("wo")
            a("s_cmp_lg_u32 s%d, %d" % (S_HW, hw))
            a("s_cbranch_scc1 %s" % lab)
            for g in mine: wo(g)
            a.label(lab)
        a("s_barrier")
        self.final_pre()
        a("s_waitcnt vmcnt(0)")
        self.stamp(23)
        a("s_barrier")
        self.y_to_lds()
        a("s_barrier")
        self.stamp(6)
        self.final_h()

    def fft(self):
        a = self.a
        a("v_accvgpr_read_b32 v10, a60")
        a("v_accvgpr_read_b32 v11, a61")
        a("s_lshl_b32 s3, s%d, 5" % S_J)
        a("v_add_u32 v12, s3, v%d" % V_LANE)
        a("v_lshlrev_b32 v12, 7, v12")
        a("v_add_u32 v12, 0x%x, v12" % (WS_FLAG + 256 * 128 + 12))
        self.poll_flags_n(12, 32, 1, 16)
        a("v_lshlrev_b32 v13, 4, v%d" % V_LANE)
        a("s_lshl_b32 s3, s%d, 13" % S_L)
        a("s_add_u32 s3, s3, 0x%x" % WS_AB)
        X = 32
        for i in range(8):
            a("buffer_load_dwordx4 v[%d:%d], v13, s[%d:%d], s3 offen sc1" % (X + 4 * i, X + 4 * i + 3, SRD_WS, SRD_WS + 3))
            if i < 7: a("s_add_u32 s3, s3, 1024")
        a("s_sub_u32 s%d, s%d, 2" % (S_T1, S_HW))
        a("s_lshl_b32 s%d, s%d, 13" % (S_T2, S_T1))
        a("s_add_u32 s%d, s%d, %d" % (S_T2, S_T2, LDS_FX))
        a("v_add_u32 v14, s%d, v13" % S_T2)
        a("v_bfe_u32 v7, v%d, 2, 2" % V_LANE)
        a("v_lshl_add_u32 v7, v%d, 3, v7" % V_H)
        a("v_lshlrev_b32 v7, 7, v7")
        a("v_bfe_u32 v8, v%d, 4, 1" % V_LANE)
        a("v_lshlrev_b32 v8, 5, v8")
        a("v_and_b32 v9, 1, v%d" % V_LANE)
        a("v_lshl_add_u32 v8, v9, 4, v8")
        a("v_bfe_u32 v9, v%d, 1, 1" % V_LANE)
        a("v_lshl_add_u32 v8, v9, 3, v8")
        a("v_add_u32 v7, v7, v8")
        a("v_add_u32 v15, s%d, v7" % S_T2)
        a("s_waitcnt vmcnt(0)")
        for i in range(8):
            a("ds_write_b128 v14, v[%d:%d] offset:%d" % (X + 4 * i, X + 4 * i + 3, i * 1024))
        URE, UIM, A1, TC, TS, A2 = 32, 48, 16, 64, 80, 104
        D2 = 64
        def mm(D, A, B, first, dfile="v", afile="v", bfile="a"):
            a("v_mfma_f32_32x32x16_bf16 %s[%d:%d], %s[%d:%d], %s[%d:%d], %s" % (dfile, D, D + 15, afile, A, A + 3, bfile, B, B + 3, "0" if first else "%s[%d:%d]" % (dfile, D, D + 15)))
        for kt in range(2):
            a("v_mul_f32 v12, 0x%x, v10" % (f2u(1.0 / 2048)))
            a("v_mul_f32 v13, v12, v11")
            if kt == 0: a("s_waitcnt lgkmcnt(0)")
            for ks in range(4):
                for q in range(2):
                    r = A1 + 4 * ks + 2 * q
                    a("ds_read_b64_tr_b16 v[%d:%d], v15 offset:%d" % (r, r + 1, (ks >> 1) * 4096 + (ks & 1) * 2048 + q * 512 + kt * 64))
            for half in range(2):
                self.angles([32 * kt + 16 * half + i for i in range(8)], 12, 13, 120)
                for i in range(8):
                    a("v_cos_f32 v%d, v%d" % (TC + 8 * half + i, 120 + i))
                    a("v_sin_f32 v%d, v%d" % (TS + 8 * half + i, 120 + i))
            a("s_waitcnt lgkmcnt(0)")
            FRE, FIM, NFIM = 0, 8, 16
            mm(URE, A1, FRE, True); mm(UIM, A1, FIM, True)
            mm(URE, A1 + 4, FRE + 4, False); mm(UIM, A1 + 4, FIM + 4, False)
            mm(URE, A1 + 8, NFIM, False); mm(UIM, A1 + 8, FRE, False)
            mm(URE, A1 + 12, NFIM + 4, False); mm(UIM, A1 + 12, FRE + 4, False)
            for p in range(8):
                t0 = 96 + (p % 2) * 4
                for e in range(2):
                    re, im, c, s_ = URE + 2 * p + e, UIM + 2 * p + e, TC + 2 * p + e, TS + 2 * p + e
                    a("v_mul_f32 v%d, v%d, v%d" % (t0 + e, im, s_))
                    a("v_mul_f32 v%d, v%d, v%d" % (t0 + 2 + e, re, s_))
                    a("v_fmac_f32 v%d, v%d, v%d" % (t0 + e, re, c))
                    a("v_fma_f32 v%d, v%d, v%d, -v%d" % (t0 + 2 + e, im, c, t0 + 2 + e))
                a("v_cvt_pk_bf16_f32 v%d, v%d, v%d" % (A2 + p, t0, t0 + 1))
                a("v_cvt_pk_bf16_f32 v%d, v%d, v%d" % (A2 + 8 + p, t0 + 2, t0 + 3))
            G = 24 + 16 * kt
            mm(D2, A2, G, kt == 0, dfile="a"); mm(D2, A2 + 4, G + 4, False, dfile="a")
            mm(D2, A2 + 8, G + 8, False, dfile="a"); mm(D2, A2 + 12, G + 12, False, dfile="a")
        a("v_lshlrev_b32 v6, 7, v%d" % V_JL)
        a("v_lshl_add_u32 v6, v%d, 6, v6" % V_H)
        a("v_add_u32 v6, s%d, v6" % S_T2)
        for q in range(4):
            a("ds_write_b128 v6, a[%d:%d] offset:%d" % (D2 + 4 * q, D2 + 4 * q + 3, q * 16))
        a("s_waitcnt lgkmcnt(0)")
        for q in range(4):
            a("ds_read_b128 v[%d:%d], v14 offset:%d" % (32 + 4 * q, 35 + 4 * q, q * 1024))
        a("s_cmp_eq_u32 s%d, 0" % S_L)
        a("s_cselect_b32 s%d, 256, s%d" % (S_T0, S_L))
        a("s_lshl_b32 s%d, s%d, 13" % (S_T0, S_T0))
        a("s_lshl_b32 s3, s%d, 12" % S_T1)
        a("s_add_u32 s3, s3, s%d" % S_T0)
        a("s_add_u32 s3, s3, 0x%x" % WS_YT)
        a("v_lshlrev_b32 v6, 4, v%d" % V_LANE)
        a("v_lshlrev_b32 v7, 4, v%d" % V_LANE)
        a("v_sub_u32 v7, %d, v7" % (4096 - 12))
        a("v_add_u32 v7, s%d, v7" % S_T2)
        for i in range(4):
            for e in range(4):
                off = 12 - 4 * e - 1024 * i
                if off >= 0: a("ds_read_b32 v%d, v7 offset:%d" % (48 + 4 * i + e, off))
                else: a("ds_read_b32 v%d, v%d offset:%d" % (48 + 4 * i + e, 8, off + 3072))
            if i == 0: a("v_subrev_u32 v8, 3072, v7")
        a("s_waitcnt lgkmcnt(15)")
        a("s_waitcnt lgkmcnt(0)")
        for q in range(4):
            a("buffer_store_dwordx4 v[%d:%d], v6, s[%d:%d], s3 offen offset:%d sc1" % (32 + 4 * q, 35 + 4 * q, SRD_WS, SRD_WS + 3, q * 1024))
        a("s_cmp_eq_u32 s%d, 0" % S_L)
        a("s_cbranch_scc1 L_fft_nomir")
        a("s_sub_u32 s%d, 512, s%d" % (S_T0, S_L))
        a("s_lshl_b32 s%d, s%d, 13" % (S_T0, S_T0))
        a("s_xor_b32 s3, s%d, 1" % S_T1)
        a("s_lshl_b32 s3, s3, 12")
        a("s_add_u32 s3, s3, s%d" % S_T0)
        a("s_add_u32 s3, s3, 0x%x" % WS_YT)
        a("s_mov_b64 exec, 0xfffffffffffffffe" if False else "s_mov_b64 exec, -2")
        a("buffer_store_dwordx4 v[48:51], v6, s[%d:%d], s3 offen sc1" % (SRD_WS, SRD_WS + 3))
        a("s_mov_b64 exec, 1")
        a("buffer_store_dword v49, v6, s[%d:%d], s3 offen offset:4 sc1" % (SRD_WS, SRD_WS + 3))
        a("buffer_store_dwordx2 v[50:51], v6, s[%d:%d], s3 offen offset:8 sc1" % (SRD_WS, SRD_WS + 3))
        a("s_mov_b64 exec, -1")
        for q in range(1, 4):
            a("buffer_store_dwordx4 v[%d:%d], v6, s[%d:%d], s3 offen offset:%d sc1" % (48 + 4 * q, 51 + 4 * q, SRD_WS, SRD_WS + 3, q * 1024))
        a("s_lshl_b32 s3, s%d, 12" % S_T1)
        a("s_add_u32 s3, s3, s%d" % S_T0)
        a("s_add_u32 s3, s3, 0x%x" % WS_YT)
        a("s_mov_b64 exec, 1")
        a("buffer_store_dword v32, v6, s[%d:%d], s3 offen sc1" % (SRD_WS, SRD_WS + 3))
        a("s_mov_b64 exec, -1")
        a.label("L_fft_nomir")

    def g_reduce(self):
        a = self.a
        L16 = self.G_L16
        a("s_barrier")
        self.stamp(16)
        for tau in (1, 2, 0):
            if tau == 0:
                a("s_cmp_lg_u32 s%d, 3" % S_W)
                a("s_cbranch_scc1 L_exp_done")
            a("s_add_u32 s%d, s%d, %d" % (S_T0, S_W, tau))
            a("s_cmp_ge_u32 s%d, 3" % S_T0)
            a("s_cselect_b32 s%d, 3, 0" % S_T1)
            a("s_sub_u32 s%d, s%d, s%d" % (S_T0, S_T0, S_T1))
            a("s_sub_u32 s%d, s%d, s%d" % (S_T1, S_W, S_T0))
            a("s_sub_u32 s%d, s%d, 1" % (S_T1, S_T1))
            a("s_and_b32 s%d, s%d, 3" % (S_T1, S_T1))
            a("s_mul_i32 s%d, s%d, 3" % (S_T0, S_T0))
            a("s_add_u32 s%d, s%d, s%d" % (S_T0, S_T0, S_T1))
            a("s_lshl_b32 s%d, s%d, 13" % (S_T0, S_T0))
            a("v_add_u32 v5, s%d, v%d" % (S_T0, L16))
            for st in range(2):
                for q in range(4):
                    r = (tau * 2 + st) * 16 + 4 * q
                    a("ds_write_b128 v5, a[%d:%d] offset:%d" % (r, r + 3, st * 4096 + q * 1024))
        a.label("L_exp_done")
        a("s_waitcnt lgkmcnt(0)")
        self.stamp(17)
        a("s_barrier")
        self.stamp(11)
        a("s_cmp_eq_u32 s%d, 3" % S_W)
        a("s_cbranch_scc1 L_h_done")
        G = 40
        I = 72
        a("s_mul_i32 s%d, s%d, %d" % (S_T0, S_W, 3 * 8192))
        a("v_add_u32 v5, s%d, v%d" % (S_T0, L16))
        for st in range(2):
            for q in range(4):
                r = G + st * 16 + 4 * q
                a("ds_read_b128 v[%d:%d], v5 offset:%d" % (r, r + 3, 0 * 8192 + st * 4096 + q * 1024))
        for st in range(2):
            for q in range(4):
                r = I + st * 16 + 4 * q
                a("ds_read_b128 v[%d:%d], v5 offset:%d" % (r, r + 3, 1 * 8192 + st * 4096 + q * 1024))
        a("s_waitcnt lgkmcnt(0)")
        for p in range(16): a("v_pk_add_f32 v[%d:%d], v[%d:%d], v[%d:%d]" % (G + 2 * p, G + 2 * p + 1, G + 2 * p, G + 2 * p + 1, I + 2 * p, I + 2 * p + 1))
        for st in range(2):
            for q in range(4):
                r = I + st * 16 + 4 * q
                a("ds_read_b128 v[%d:%d], v5 offset:%d" % (r, r + 3, 2 * 8192 + st * 4096 + q * 1024))
        for i in range(0, 32, 8):
            for k in range(8): a("v_accvgpr_read_b32 v%d, a%d" % (16 + k, i + k))
            for p in range(4): a("v_pk_add_f32 v[%d:%d], v[%d:%d], v[%d:%d]" % (G + i + 2 * p, G + i + 2 * p + 1, G + i + 2 * p, G + i + 2 * p + 1, 16 + 2 * p, 16 + 2 * p + 1))
        a("s_waitcnt lgkmcnt(0)")
        for p in range(16): a("v_pk_add_f32 v[%d:%d], v[%d:%d], v[%d:%d]" % (G + 2 * p, G + 2 * p + 1, G + 2 * p, G + 2 * p + 1, I + 2 * p, I + 2 * p + 1))
        self.stamp(18)
        for st in range(2): a("v_lshlrev_b32 v%d, 16, v%d" % (self.G_BS + st, self.G_BS + st))
        for st in range(2):
            for r in range(8):
                src = self.C_Z1P + 8 * st + r
                g = G + 16 * st + 2 * r
                t = 16 + 2 * (r % 4)
                a("v_lshlrev_b32 v%d, 16, v%d" % (t, src))
                a("v_and_b32 v%d, 0xffff0000, v%d" % (t + 1, src))
                sel = "op_sel:[0,%d] op_sel_hi:[1,%d]" % (st, st)
                a("v_pk_add_f32 v[%d:%d], v[%d:%d], v[%d:%d] %s" % (g, g + 1, g, g + 1, self.G_BS, self.G_BS + 1, sel))
                a("v_pk_mul_f32 v[%d:%d], v[%d:%d], v[%d:%d]" % (g, g + 1, g, g + 1, t, t + 1))
                a("v_cvt_pk_bf16_f32 v%d, v%d, v%d" % (I + 8 * st + r, g, g + 1))
        a("s_mul_i32 s%d, s%d, 96" % (S_T0, S_MB))
        a("s_mul_i32 s%d, s%d, 6" % (S_T1, S_J))
        a("s_add_u32 s%d, s%d, s%d" % (S_T0, S_T0, S_T1))
        a("s_lshl_b32 s%d, s%d, 1" % (S_T1, S_W))
        a("s_add_u32 s%d, s%d, s%d" % (S_T0, S_T0, S_T1))
        a("s_lshl_b32 s%d, s%d, 10" % (S_T0, S_T0))
        a("s_add_u32 s%d, s%d, 0x%x" % (S_T0, S_T0, WS_H))
        for st in range(2):
            for Q in range(2):
                r = I + 8 * st + 4 * Q
                a("s_add_u32 s%d, s%d, %d" % (S_T1, S_T0, (st * 48 + Q) * 1024))
                if "nohstore" not in self.exp: a("buffer_store_dwordx4 v[%d:%d], v%d, s[%d:%d], s%d offen sc1" % (r, r + 3, L16, SRD_WS, SRD_WS + 3, S_T1))
                if "hdouble" in self.exp: a("buffer_store_dwordx4 v[%d:%d], v%d, s[%d:%d], s%d offen" % (r, r + 3, L16, SRD_WS, SRD_WS + 3, S_T1))
        self.stamp(20)
        a("s_waitcnt vmcnt(0)")
        self.stamp(21)
        self.flag_store(2, 0, S_W)
        a.label("L_h_done")
        self.o_pre()
        self.stamp(12)

    def o_pre(self):
        a = self.a
        a("s_lshr_b32 s%d, s%d, 1" % (S_T0, S_W))
        a("s_lshl_b32 s3, s%d, 2" % S_T0)
        a("v_add_u32 v40, s3, v%d" % V_LANE)
        a("v_lshlrev_b32 v40, 5, v40")
        a("v_add_u32 v40, s%d, v40" % S_MB)
        a("v_lshlrev_b32 v40, 7, v40")
        a("v_add_u32 v40, 0x%x, v40" % (WS_FLAG + 2 * 256 * 128))
        a("v_bfe_u32 v5, v%d, 2, 2" % V_LANE)
        a("v_lshl_add_u32 v5, v%d, 3, v5" % V_H)
        a("v_lshlrev_b32 v5, 7, v5")
        a("v_bfe_u32 v6, v%d, 4, 1" % V_LANE)
        a("v_lshlrev_b32 v6, 1, v6")
        a("v_and_b32 v7, 1, v%d" % V_LANE)
        a("v_or_b32 v6, v6, v7")
        a("v_bfe_u32 v7, v%d, 3, 1" % V_LANE)
        a("v_lshlrev_b32 v7, 2, v7")
        a("v_xor_b32 v6, v6, v7")
        a("s_lshl_b32 s3, s%d, 2" % S_T0)
        a("v_xor_b32 v6, s3, v6")
        a("v_bfe_u32 v7, v%d, 1, 1" % V_LANE)
        a("v_lshlrev_b32 v7, 3, v7")
        a("v_add_u32 v5, v5, v7")
        a("s_mul_i32 s3, s%d, %d" % (S_T0, 352 * 128))
        a("s_add_u32 s3, s3, %d" % LDS_WO)
        a("v_add_u32 v5, s3, v5")
        WA = 52
        a("v_lshl_add_u32 v%d, v6, 4, v5" % WA)
        a("v_xor_b32 v6, 4, v6")
        a("v_lshl_add_u32 v%d, v6, 4, v5" % (WA + 1))
        a("s_cmp_eq_u32 s%d, 0" % S_T0)
        a("s_cselect_b32 s3, 8, 0")
        a("s_add_u32 s3, s3, 256")
        a("s_lshl_b32 s3, s3, 7")
        a("v_add_u32 v%d, s3, v%d" % (WA + 2, WA))
        a("v_add_u32 v%d, s3, v%d" % (WA + 3, WA + 1))
        a("s_and_b32 s%d, s%d, 1" % (S_T1, S_W))
        a("s_lshl_b32 s3, s%d, 1" % S_MB)
        a("s_add_u32 s3, s3, s%d" % S_T1)
        a("s_mul_i32 s3, s3, 48")
        a("s_mul_i32 s%d, s%d, 24" % (S_B0, S_T0))
        a("s_add_u32 s%d, s%d, s3" % (S_B0, S_B0))
        a("s_lshl_b32 s%d, s%d, 10" % (S_B0, S_B0))
        a("s_add_u32 s%d, s%d, 0x%x" % (S_B0, S_B0, WS_H))

    def phase_o(self):
        a = self.a
        L16 = self.G_L16
        WA = 52
        self.poll_flags_n(40, 4, 3, 60)
        self.stamp(13)
        vq = VQ(a)
        NUP = 8
        def hload(n):
            r = 32 + 4 * n
            a("s_add_u32 s%d, s%d, %d" % (S_T0, S_B0, n * 1024))
            a("buffer_load_dwordx4 a[%d:%d], v%d, s[%d:%d], s%d offen sc1" % (r, r + 3, L16, SRD_WS, SRD_WS + 3, S_T0)); vq.issue(("h", n))
        for n in range(NUP): hload(n)
        a("s_barrier")
        SETS = [16, 24, 60, 68]
        def areads(n):
            jj, rem = divmod(n, 6); ft, Q = divmod(rem, 2)
            out = []
            for tp in range(2):
                base = WA + tp if jj < 3 else WA + 2 + tp
                off = ((88 * jj if jj < 3 else 0) + 32 * ft + 16 * Q) * 128
                r = SETS[n % 4] + tp * 4
                out.append("ds_read_b64_tr_b16 v[%d:%d], v%d offset:%d" % (r, r + 1, base, off))
                out.append("ds_read_b64_tr_b16 v[%d:%d], v%d offset:%d" % (r + 2, r + 3, base, off + 512))
            return out
        for n in range(3):
            for r in areads(n): a(r)
        for n in range(24):
            vq.wait(("h", n))
            later = min(2, 23 - n)
            a("s_waitcnt lgkmcnt(%d)" % (4 * later))
            rd = areads(n + 3) if n + 3 < 24 else []
            for tp in range(2):
                D = tp * 16
                Ar = SETS[n % 4] + tp * 4
                Br = 32 + 4 * n
                cc = "0" if n == 0 else "a[%d:%d]" % (D, D + 15)
                a("v_mfma_f32_32x32x16_bf16 a[%d:%d], v[%d:%d], a[%d:%d], %s" % (D, D + 15, Ar, Ar + 3, Br, Br + 3, cc))
                for r in rd[2 * tp:2 * tp + 2]: a(r)
                if tp == 0 and n + NUP < 24: hload(n + NUP)
        self.stamp(14)
        a("s_lshl_b32 s3, s%d, 13" % S_W)
        a("v_add_u32 v58, s3, v%d" % L16)
        for tp in range(2):
            for q in range(4):
                a("ds_write_b128 v58, a[%d:%d] offset:%d" % (16 * tp + 4 * q, 16 * tp + 4 * q + 3, tp * 4096 + q * 1024))
        a("s_waitcnt lgkmcnt(0)")
        a("s_barrier")

    def final_pre(self):
        a = self.a
        a("s_lshr_b32 s%d, s%d, 1" % (S_T0, S_HW))
        a("s_lshl_b32 s3, s%d, 6" % S_J)
        a("s_lshl_b32 s%d, s%d, 5" % (S_T2, S_T0))
        a("s_add_u32 s%d, s3, s%d" % (S_T2, S_T2))
        a("s_and_b32 s%d, s%d, 1" % (S_T1, S_HW))
        a("s_lshl_b32 s3, s%d, 6" % S_MB)
        a("s_lshl_b32 s%d, s%d, 5" % (S_T3, S_T1))
        a("s_add_u32 s3, s3, s%d" % S_T3)
        a("v_add_u32 v41, s3, v%d" % V_SIG)
        a("v_lshlrev_b32 v42, 10, v41")
        a("v_lshl_add_u32 v42, v%d, 4, v42" % V_H)
        a("s_lshl_b32 s3, s%d, 1" % S_T2)
        a("v_add_u32 v42, s3, v42")
        XR = 44
        a("buffer_load_dwordx4 v[%d:%d], v42, s[%d:%d], 0 offen" % (XR, XR + 3, SRD_X, SRD_X + 3))
        a("buffer_load_dwordx4 v[%d:%d], v42, s[%d:%d], 0 offen offset:32" % (XR + 4, XR + 7, SRD_X, SRD_X + 3))
        a("s_lshl_b32 s3, s%d, 6" % S_J)
        a("s_lshl_b32 s%d, s%d, 4" % (S_T0, S_HW))
        a("s_add_u32 s%d, s3, s%d" % (S_T0, S_T0))
        a("v_add_u32 v5, s%d, v%d" % (S_T0, V_LANE))
        a("v_sub_u32 v6, 512, v5")
        a("v_cmp_lt_u32 vcc, 256, v5")
        a("v_cndmask_b32 v6, v5, v6, vcc")
        a("v_and_b32 v6, 255, v6")
        a("v_lshlrev_b32 v43, 7, v6")
        a("v_add_u32 v43, 0x%x, v43" % (WS_FLAG + 3 * 256 * 128))
        a("v_lshrrev_b32 v5, 4, v%d" % V_LANE)
        a("v_add_u32 v5, s%d, v5" % S_T0)
        a("v_and_b32 v6, 15, v%d" % V_LANE)
        a("v_lshlrev_b32 v6, 4, v6")
        a("v_lshl_add_u32 v56, v5, 13, v6")
        a("v_mov_b32 v7, 0x%x" % OOB)
        a("v_cmp_eq_u32 vcc, 0, v5")
        a("v_cndmask_b32 v57, v56, v7, vcc")
        a("s_lshl_b32 s%d, s%d, 8" % (S_T3, S_MB))
        a("s_add_u32 s%d, s%d, 0x%x" % (S_T3, S_T3, WS_YT))
        self.poll_flags_n(43, 16, 2, 60)
        for i in range(4):
            a("buffer_load_dwordx4 v[%d:%d], v%d, s[%d:%d], s%d offen sc1" % (64 + 4 * i, 67 + 4 * i, 57 if i == 0 else 56, SRD_WS, SRD_WS + 3, S_T3))
            if i < 3: a("s_add_u32 s%d, s%d, %d" % (S_T3, S_T3, 4 * 8192))

    def y_to_lds(self):
        a = self.a
        a("v_lshrrev_b32 v5, 4, v%d" % V_LANE)
        a("v_and_b32 v6, 15, v%d" % V_LANE)
        a("v_lshlrev_b32 v6, 4, v6")
        a("v_lshl_add_u32 v5, v5, 8, v6")
        a("s_lshl_b32 s3, s%d, 12" % S_HW)
        a("s_add_u32 s3, s3, %d" % LDS_YS)
        a("v_add_u32 v5, s3, v5")
        a("s_waitcnt vmcnt(0)")
        for i in range(4):
            a("ds_write_b128 v5, v[%d:%d] offset:%d" % (64 + 4 * i, 67 + 4 * i, i * 1024))
        a("s_waitcnt lgkmcnt(0)")

    def final_h(self):
        a = self.a
        XR, Y, O = 44, 64, 80
        a("v_lshlrev_b32 v10, 4, v%d" % V_LANE)
        a("s_lshl_b32 s3, s%d, 13" % S_HW)
        a("v_add_u32 v11, s3, v10")
        a("s_xor_b32 s3, s%d, 2" % S_HW)
        a("s_lshl_b32 s3, s3, 13")
        a("s_add_u32 s3, s3, 4096")
        a("v_add_u32 v12, s3, v10")
        for q in range(4):
            a("ds_read_b128 v[%d:%d], v11 offset:%d" % (O + 4 * q, O + 4 * q + 3, q * 1024))
        for q in range(4):
            a("ds_read_b128 v[%d:%d], v12 offset:%d" % (96 + 4 * q, 96 + 4 * q + 3, q * 1024))
        a("s_lshr_b32 s%d, s%d, 1" % (S_T0, S_HW))
        a("s_lshl_b32 s3, s%d, 13" % S_T0)
        a("s_and_b32 s%d, s%d, 1" % (S_T1, S_HW))
        a("s_lshl_b32 s%d, s%d, 7" % (S_T1, S_T1))
        a("s_add_u32 s3, s3, s%d" % S_T1)
        a("s_add_u32 s3, s3, %d" % LDS_YS)
        a("v_lshlrev_b32 v5, 11, v%d" % V_H)
        a("v_lshl_add_u32 v5, v%d, 2, v5" % V_SIG)
        a("v_add_u32 v5, s3, v5")
        for rho in range(16):
            k = 16 * (rho >> 3) + (rho & 7)
            a("ds_read_b32 v%d, v5 offset:%d" % (Y + rho, k * 256))
        nl2e = f2u(-math.log2(math.e))
        a("s_mov_b32 s%d, 0x%x" % (S_K2, nl2e))
        a("s_mov_b32 s%d, 0x%x" % (S_K2 + 1, nl2e))
        a("s_and_b32 s%d, s%d, 1" % (S_T1, S_HW))
        a("s_lshl_b32 s3, s%d, 5" % S_T1)
        a("v_add_u32 v13, s3, v%d" % V_SIG)
        a("v_and_b32 v14, 7, v13")
        a("s_lshr_b32 s%d, s%d, 1" % (S_T0, S_HW))
        a("s_lshl_b32 s3, s%d, 2" % S_T0)
        a("v_add_u32 v15, s3, v%d" % V_H)
        a("v_xor_b32 v14, v14, v15")
        a("v_lshlrev_b32 v14, 4, v14")
        a("v_lshl_add_u32 v14, v13, 7, v14")
        a("v_add_u32 v14, 32768, v14")
        a("s_waitcnt lgkmcnt(0)")
        for p in range(8):
            a("v_pk_add_f32 v[%d:%d], v[%d:%d], v[%d:%d]" % (O + 2 * p, O + 2 * p + 1, O + 2 * p, O + 2 * p + 1, 96 + 2 * p, 96 + 2 * p + 1))
        for p in range(8):
            o = O + 2 * p; t = 96 + 2 * p
            a("v_pk_mul_f32 v[%d:%d], v[%d:%d], s[%d:%d]" % (t, t + 1, o, o + 1, S_K2, S_K2 + 1))
            a("v_exp_f32 v%d, v%d" % (t, t))
            a("v_exp_f32 v%d, v%d" % (t + 1, t + 1))
            a("v_pk_add_f32 v[%d:%d], v[%d:%d], 1.0 op_sel_hi:[1,0]" % (t, t + 1, t, t + 1))
            a("v_rcp_f32 v%d, v%d" % (t, t))
            a("v_rcp_f32 v%d, v%d" % (t + 1, t + 1))
            a("v_pk_mul_f32 v[%d:%d], v[%d:%d], v[%d:%d]" % (o, o + 1, o, o + 1, t, t + 1))
        for p in range(8):
            o = O + 2 * p; t = 96 + 2 * p; y = Y + 2 * p; xr = XR + p
            a("v_lshlrev_b32 v%d, 16, v%d" % (t, xr))
            a("v_and_b32 v%d, 0xffff0000, v%d" % (t + 1, xr))
            a("v_pk_fma_f32 v[%d:%d], v[%d:%d], v[%d:%d], v[%d:%d]" % (t, t + 1, y, y + 1, o, o + 1, t, t + 1))
            a("v_cvt_pk_bf16_f32 v%d, v%d, v%d" % (112 + p, t, t + 1))
        a("ds_write_b128 v14, v[112:115]")
        a("v_xor_b32 v14, 32, v14")
        a("ds_write_b128 v14, v[116:119]")
        a("s_waitcnt lgkmcnt(0)")
        a("s_barrier")
        a("v_lshrrev_b32 v5, 3, v%d" % V_LANE)
        a("v_and_b32 v6, 7, v%d" % V_LANE)
        a("v_xor_b32 v7, v5, v6")
        a("v_lshlrev_b32 v7, 4, v7")
        a("v_lshl_add_u32 v7, v5, 7, v7")
        a("s_lshl_b32 s3, s%d, 11" % S_HW)
        a("s_add_u32 s3, s3, 32768")
        a("v_add_u32 v7, s3, v7")
        a("ds_read_b128 v[16:19], v7")
        a("ds_read_b128 v[20:23], v7 offset:1024")
        a("v_lshlrev_b32 v8, 10, v5")
        a("v_lshl_add_u32 v8, v6, 4, v8")
        a("s_lshl_b32 s%d, s%d, 6" % (S_T0, S_MB))
        a("s_lshl_b32 s3, s%d, 4" % S_HW)
        a("s_add_u32 s%d, s%d, s3" % (S_T0, S_T0))
        a("s_lshl_b32 s%d, s%d, 10" % (S_T0, S_T0))
        a("s_lshl_b32 s3, s%d, 7" % S_J)
        a("s_add_u32 s%d, s%d, s3" % (S_T0, S_T0))
        a("s_waitcnt lgkmcnt(0)")
        fl = "" if "outplain" in self.exp else "sc1"
        a("buffer_store_dwordx4 v[16:19], v8, s[%d:%d], s%d offen %s" % (SRD_OUT, SRD_OUT + 3, S_T0, fl))
        a("s_add_u32 s%d, s%d, 8192" % (S_T0, S_T0))
        a("buffer_store_dwordx4 v[20:23], v8, s[%d:%d], s%d offen %s" % (SRD_OUT, SRD_OUT + 3, S_T0, fl))
        self.stamp(15)
        self.stamp(25)

    def build(self):
        a = self.a
        self.prologue()
        self.xstage()
        a("s_cmp_ge_u32 s%d, 4" % S_W)
        a("s_cbranch_scc1 L_helper")
        self.p1_compute()
        self.g_compute()
        self.phase_o()
        a("s_branch L_end")
        a.label("L_helper")
        self.p1_helper()
        self.g_helper()
        a.label("L_end")
        a("s_endpgm")
        a.finalize()
        hdr = open("cdna_kernels/%s.s.ref" % NAME).read().split("\n")
        head = []
        for line in hdr:
            if line.startswith("; @launch"):
                head.append("; @launch grid=(256,1,1) block=(512,1,1) lds=%d" % LDS_TOTAL)
            elif line.startswith(";"): head.append(line)
            else: break
        txt = "\n".join(head) + "\n"
        txt += '.amdgcn_target "amdgcn-amd-amdhsa--gfx950"\n.text\n.globl %s_kernel\n.p2align 8\n.type %s_kernel,@function\n%s_kernel:\n' % (NAME, NAME, NAME)
        body = a.text()
        if "codepf" in self.exp:
            body = body.replace("CODE_LEN", "(L_end - L_pc_here - 16)")
        txt += body
        txt += '.section .rodata,"a"\n.p2align 6\n.amdhsa_kernel %s_kernel\n' % NAME
        txt += "  .amdhsa_next_free_vgpr 256\n  .amdhsa_next_free_sgpr 102\n  .amdhsa_accum_offset 128\n"
        txt += "  .amdhsa_group_segment_fixed_size 0\n  .amdhsa_kernarg_size 104\n  .amdhsa_user_sgpr_count 2\n"
        txt += "  .amdhsa_user_sgpr_kernarg_segment_ptr 1\n  .amdhsa_system_sgpr_workgroup_id_x 1\n"
        txt += "  .amdhsa_float_denorm_mode_32 3\n"
        txt += ".end_amdhsa_kernel\n"
        return txt

if __name__ == "__main__":
    import argparse
    ap = argparse.ArgumentParser()
    ap.add_argument("--stamps", action="store_true")
    ap.add_argument("--exp", default="")
    ap.add_argument("-o", default="cdna_kernels/%s.s" % NAME)
    args = ap.parse_args()
    g = Gen(stamps=args.stamps, exp=[e for e in args.exp.split(',') if e])
    txt = g.build()
    open(args.o, "w").write(txt)
    print("wrote", args.o, len(txt), "bytes;", len([i for i in g.a.ins if i.kind not in ("label", "dir")]), "instrs")
```

```python
import sys, math, struct
sys.path.insert(0, "gen")
from asmlib import *

NAME = "recurrent_scan__spectral_fnet__mixer_gmlp__prompt"

WS_FLAG = 0x000000
WS_STATS = 0x020000
WS_Z2N = 0x100000
WS_AB = 0x400000
WS_H = 0x600000
WS_YT = 0x900000
WS_STAMP = 0xF00000
WS_SIZE = 0x4000000
OOB = 0x80000000

LDS_WR = 65536
SLOT = 16384
NSLOT = 5
LDS_T4 = 147456
LDS_T5 = LDS_T4 + 1536
LDS_SY = LDS_T5 + 512
LDS_AT = 151552
LDS_YS = 40960
LDS_FX = 131072
LDS_WO = 73728
LDS_TOTAL = 163840

SRD_X, SRD_WIN, SRD_DFT, SRD_WSP, SRD_WOUT, SRD_WS, SRD_OUT, SRD_BSP, SRD_DBG = 4, 8, 12, 20, 24, 28, 32, 36, 40
S_IMLO, S_IMHI = 16, 17
S_MB, S_J, S_W, S_F0, S_WID, S_NONCE, S_L = 44, 45, 46, 47, 48, 49, 50
S_C, S_SLOT, S_XD = 51, 52, 53
S_CN, S_KC128, S_WSOFF, S_SLOTN = 54, 55, 56, 57
S_HW = 58
S_DL0, S_WL0, S_W2 = 60, 61, 62
S_T0, S_T1, S_T2, S_T3 = 63, 90, 91, 92
S_PASS = 93
S_EX = 94
S_K2 = 96
S_SPIN = 98
S_B0 = 99
S_ST0 = 100
S_ROT1 = 59
S_RHO = 51

V_LANE, V_JL, V_H, V_SIG = 1, 2, 3, 4

def f2u(x): return struct.unpack("<I", struct.pack("<f", x))[0]

class Gen:
    def __init__(self, stop_after=None, stamps=False, exp=()):
        self.a = Asm()
        self.stop_after = stop_after
        self.stamps = stamps
        self.exp = set(exp)

    def stamp(self, idx):
        if "dbgst" in self.exp:
            mm_ = {0: (1, 0), 1: (2, 0), 2: (3, 0), 3: (4, 0), 4: (5, 0), 5: (6, 0), 7: (7, 0), 8: (8, 0), 10: (9, 0), 16: (10, 0), 11: (11, 0), 21: (12, 0), 13: (13, 0), 14: (14, 0), 15: (15, 4)}
            m = {k: v[0] for k, v in mm_.items()}
            if idx in m:
                a = self.a
                lab = a.newlabel("ds")
                a("s_cmp_lg_u32 s%d, %d" % (S_L, 37))
                a("s_cbranch_scc1 %s" % lab)
                a("s_cmp_lg_u32 s%d, %d" % (S_W, mm_[idx][1]))
                a("s_cbranch_scc1 %s" % lab)
                a("s_memrealtime s[%d:%d]" % (S_ST0, S_ST0 + 1))
                a("s_waitcnt lgkmcnt(0)")
                a("v_mov_b32 v9, s%d" % S_ST0)
                a("v_mov_b32 v8, %d" % (4 * m[idx]))
                a("s_mov_b64 exec, 1")
                a("buffer_store_dword v9, v8, s[%d:%d], 0 offen sc1" % (SRD_DBG, SRD_DBG + 3))
                a("s_mov_b64 exec, -1")
                a.label(lab)
            return
        if not self.stamps: return
        if "gst" in self.exp and not getattr(self, "_gst_on", False) and idx not in (0, 8, 10, 24, 25, 26, 27, 15, 19, 9): return
        a = self.a
        a(("s_memtime s[%d:%d]" if idx >= 24 else "s_memrealtime s[%d:%d]") % (S_ST0, S_ST0 + 1))
        a("s_waitcnt lgkmcnt(0)")
        a("v_mov_b32 v9, s%d" % S_ST0)
        a("s_lshl_b32 s%d, s%d, 3" % (S_ST0, S_L))
        a("s_add_u32 s%d, s%d, s%d" % (S_ST0, S_ST0, S_W))
        a("s_lshl_b32 s%d, s%d, 7" % (S_ST0, S_ST0))
        a("s_add_u32 s%d, s%d, 0x%x" % (S_ST0, S_ST0, WS_STAMP + idx * 4))
        a("v_mov_b32 v8, 0")
        a("s_mov_b64 s[%d:%d], exec" % (S_EX, S_EX + 1))
        a("s_mov_b64 exec, 1")
        a("buffer_store_dword v9, v8, s[%d:%d], s%d offen" % (SRD_WS, SRD_WS + 3, S_ST0))
        a("s_mov_b64 exec, s[%d:%d]" % (S_EX, S_EX + 1))

    def srd(self, base, plo, size):
        a = self.a
        a("s_mov_b32 s%d, s%d" % (base, plo))
        a("s_and_b32 s%d, s%d, 0xffff" % (base + 1, plo + 1))
        a("s_mov_b32 s%d, 0x%x" % (base + 2, size))
        a("s_mov_b32 s%d, 0x20000" % (base + 3))

    def flag_store(self, kind, dw=0, dw_sreg=None, vt=(5, 6)):
        a = self.a
        a("s_lshl_b32 s%d, s%d, 7" % (S_T0, S_L))
        a("s_add_u32 s%d, s%d, 0x%x" % (S_T0, S_T0, WS_FLAG + kind * 256 * 128 + dw * 4))
        if dw_sreg is not None:
            a("s_lshl_b32 s3, s%d, 2" % dw_sreg)
            a("s_add_u32 s%d, s%d, s3" % (S_T0, S_T0))
        a("v_mov_b32 v%d, s%d" % (vt[0], S_NONCE))
        a("v_mov_b32 v%d, 0" % vt[1])
        a("s_mov_b64 exec, 1")
        a("buffer_store_dword v%d, v%d, s[%d:%d], s%d offen sc1" % (vt[0], vt[1], SRD_WS, SRD_WS + 3, S_T0))
        a("s_mov_b64 exec, -1")

    def poll_flags_n(self, vaddr, nlanes, ndw, vt):
        a = self.a
        lab = a.newlabel("poll")
        a("s_mov_b32 s%d, 0" % S_SPIN)
        mask = (1 << nlanes) - 1
        a("s_mov_b32 exec_lo, 0x%x" % (mask & 0xffffffff))
        a("s_mov_b32 exec_hi, 0x%x" % (mask >> 32))
        a.label(lab)
        if ndw == 1: a("buffer_load_dword v%d, v%d, s[%d:%d], 0 offen sc1" % (vt, vaddr, SRD_WS, SRD_WS + 3))
        elif ndw == 2: a("buffer_load_dwordx2 v[%d:%d], v%d, s[%d:%d], 0 offen sc1" % (vt, vt + 1, vaddr, SRD_WS, SRD_WS + 3))
        else: a("buffer_load_dwordx4 v[%d:%d], v%d, s[%d:%d], 0 offen sc1" % (vt, vt + 3, vaddr, SRD_WS, SRD_WS + 3))
        a("s_waitcnt vmcnt(0)")
        a("v_cmp_ne_u32 vcc, s%d, v%d" % (S_NONCE, vt))
        for i in range(1, ndw):
            a("v_cmp_ne_u32 s[%d:%d], s%d, v%d" % (S_EX, S_EX + 1, S_NONCE, vt + i))
            a("s_or_b64 vcc, vcc, s[%d:%d]" % (S_EX, S_EX + 1))
        a("s_add_u32 s%d, s%d, 1" % (S_SPIN, S_SPIN))
        a("s_cmp_gt_u32 s%d, 0x8000" % S_SPIN)
        a("s_cbranch_scc1 %s_x" % lab)
        if "pollsleep" in self.exp:
            a("s_cbranch_vccz %s_x" % lab)
            a("s_sleep 2")
            a("s_branch %s" % lab)
        else:
            a("s_cbranch_vccnz %s" % lab)
        a.label(lab + "_x")
        a("s_mov_b64 exec, -1")

    def get_nonce(self):
        a = self.a
        lab = a.newlabel("nonce")
        a("v_mov_b32 v6, 0")
        a("s_mov_b32 s%d, 0" % S_SPIN)
        a.label(lab)
        a("buffer_load_dword v5, v6, s[%d:%d], 0 offen sc1" % (SRD_DBG, SRD_DBG + 3))
        a("s_waitcnt vmcnt(0)")
        a("v_readfirstlane_b32 s%d, v5" % S_NONCE)
        a("s_add_u32 s%d, s%d, 1" % (S_SPIN, S_SPIN))
        a("s_cmp_gt_u32 s%d, 0x8000" % S_SPIN)
        a("s_cbranch_scc1 %s_x" % lab)
        a("s_cmp_eq_u32 s%d, 0" % S_NONCE)
        a("s_cbranch_scc1 %s" % lab)
        a.label(lab + "_x")

    def nonce_from(self, vreg):
        a = self.a
        lab = a.newlabel("hn")
        a("v_readfirstlane_b32 s%d, v%d" % (S_NONCE, vreg))
        a("s_cmp_lg_u32 s%d, 0" % S_NONCE)
        a("s_cbranch_scc1 %s" % lab)
        self.get_nonce()
        a.label(lab)

    def poll_flags(self, vaddr, nlanes):
        a = self.a
        lab = a.newlabel("poll")
        a("s_mov_b32 s%d, 0" % S_SPIN)
        mask = (1 << nlanes) - 1
        a("s_mov_b32 exec_lo, 0x%x" % (mask & 0xffffffff))
        a("s_mov_b32 exec_hi, 0x%x" % (mask >> 32))
        a.label(lab)
        a("buffer_load_dword v5, v%d, s[%d:%d], 0 offen sc1" % (vaddr, SRD_WS, SRD_WS + 3))
        a("s_waitcnt vmcnt(0)")
        a("v_cmp_ne_u32 vcc, s%d, v5" % S_NONCE)
        a("s_add_u32 s%d, s%d, 1" % (S_SPIN, S_SPIN))
        a("s_cmp_gt_u32 s%d, 0x8000" % S_SPIN)
        a("s_cbranch_scc1 %s_x" % lab)
        if "pollsleep" in self.exp:
            a("s_cbranch_vccz %s_x" % lab)
            a("s_sleep 2")
            a("s_branch %s" % lab)
        else:
            a("s_cbranch_vccnz %s" % lab)
        a.label(lab + "_x")
        a("s_mov_b64 exec, -1")

    def lds_wait_ge(self, addr, val, vt=5):
        a = self.a
        lab = a.newlabel("lw")
        a("s_mov_b32 s%d, 0" % S_SPIN)
        a("v_mov_b32 v%d, %d" % (vt + 1, addr))
        a.label(lab)
        a("ds_read_b32 v%d, v%d" % (vt, vt + 1))
        a("s_waitcnt lgkmcnt(0)")
        a("v_readfirstlane_b32 s%d, v%d" % (S_T0, vt))
        a("s_add_u32 s%d, s%d, 1" % (S_SPIN, S_SPIN))
        a("s_cmp_gt_u32 s%d, 0x100000" % S_SPIN)
        a("s_cbranch_scc1 %s_x" % lab)
        a("s_cmp_lt_u32 s%d, %d" % (S_T0, val))
        a("s_cbranch_scc1 %s" % lab)
        a.label(lab + "_x")

    def hsum(self, regs, tmp):
        a = self.a
        for i, r in enumerate(regs): a("v_mov_b32 v%d, v%d" % (tmp + i, r))
        for i, r in enumerate(regs): a("v_permlane32_swap_b32 v%d, v%d" % (r, tmp + i))
        for i, r in enumerate(regs): a("v_add_f32 v%d, v%d, v%d" % (r, r, tmp + i))

    def mean_rstd(self, vsum, vsq, n, dst_r, dst_nm, t):
        a = self.a
        a("v_mul_f32 v%d, 0x%x, v%d" % (t, f2u(1.0 / n), vsum))
        a("v_mul_f32 v%d, 0x%x, v%d" % (t + 1, f2u(1.0 / n), vsq))
        a("v_fma_f32 v%d, -v%d, v%d, v%d" % (t + 1, t, t, t + 1))
        a("v_max_f32 v%d, 0, v%d" % (t + 1, t + 1))
        a("v_add_f32 v%d, 0x%x, v%d" % (t + 1, f2u(1e-5), t + 1))
        a("v_rsq_f32 v%d, v%d" % (dst_r, t + 1))
        a("v_mul_f32 v%d, v%d, v%d" % (dst_nm, t, dst_r))
        a("v_sub_f32 v%d, 0, v%d" % (dst_nm, dst_nm))

    V_OD, V_OW = 10, 11
    V_NON = 14
    def prologue(self):
        a = self.a
        a("s_cmp_ge_u32 s2, 256")
        a("s_cbranch_scc1 L_end")
        a("s_load_dwordx16 s[64:79], s[0:1], 0")
        a("s_load_dwordx8 s[80:87], s[0:1], 64")
        a("s_load_dwordx2 s[88:89], s[0:1], 96")
        if "map42" in self.exp:
            a("s_bfe_u32 s%d, s2, 0x20001" % S_MB)
            a("s_lshl_b32 s%d, s%d, 3" % (S_MB, S_MB))
            a("s_bfe_u32 s3, s2, 0x30003")
            a("s_add_u32 s%d, s%d, s3" % (S_MB, S_MB))
            a("s_and_b32 s%d, s2, 1" % S_J)
            a("s_lshl_b32 s%d, s%d, 2" % (S_J, S_J))
            a("s_lshr_b32 s3, s2, 6")
            a("s_add_u32 s%d, s%d, s3" % (S_J, S_J))
        else:
            a("s_and_b32 s%d, s2, 7" % S_MB)
            a("s_lshl_b32 s%d, s%d, 2" % (S_MB, S_MB))
            a("s_bfe_u32 s3, s2, 0x20003")
            a("s_add_u32 s%d, s%d, s3" % (S_MB, S_MB))
            a("s_lshr_b32 s%d, s2, 5" % S_J)
        a("s_lshl_b32 s%d, s%d, 5" % (S_L, S_J))
        a("s_add_u32 s%d, s%d, s%d" % (S_L, S_L, S_MB))
        a("v_lshrrev_b32 v5, 6, v0")
        a("v_and_b32 v%d, 63, v0" % V_LANE)
        a("v_readfirstlane_b32 s%d, v5" % S_W)
        a("v_lshrrev_b32 v20, 3, v0")
        a("v_and_b32 v21, 7, v0")
        a("v_lshlrev_b32 v22, 10, v20")
        a("v_lshl_add_u32 v22, v21, 4, v22")
        a("s_lshl_b32 s%d, s%d, 16" % (S_T1, S_MB))
        a("s_and_b32 s%d, s%d, 3" % (S_HW, S_W))
        a("v_and_b32 v%d, 31, v0" % V_JL)
        a("v_bfe_u32 v%d, v0, 5, 1" % V_H)
        a("v_and_b32 v5, 0x13, v%d" % V_JL)
        a("v_and_b32 v6, 4, v%d" % V_JL)
        a("v_lshl_or_b32 v5, v6, 1, v5")
        a("v_and_b32 v6, 8, v%d" % V_JL)
        a("v_lshrrev_b32 v6, 1, v6")
        a("v_or_b32 v%d, v5, v6" % V_SIG)
        a("s_mul_i32 s%d, s%d, 88" % (S_F0, S_J))
        a("s_cmp_eq_u32 s%d, 7" % S_J)
        a("s_cselect_b32 s3, 8, 0")
        a("s_sub_u32 s%d, s%d, s3" % (S_F0, S_F0))
        a("s_cmp_ge_u32 s%d, 6" % S_J)
        a("s_cselect_b32 s3, 8, 0")
        a("s_sub_u32 s%d, 88, s3" % S_WID)
        for i in range(10, 14): a("v_mov_b32 v%d, 0" % i)
        if "codepf" in self.exp:
            a("s_getpc_b64 s[92:93]")
            a.label("L_pc_here")
            a("s_lshr_b32 s3, s2, 3")
            a("s_lshl_b32 s3, s3, 3")
            a("s_add_u32 s3, s3, s%d" % S_W)
            a("s_mul_i32 s3, s3, 192")
            a("v_lshlrev_b32 v5, 4, v%d" % V_LANE)
            a("v_add_u32 v5, s3, v5")
            a("v_min_u32 v5, CODE_LEN, v5")
            a("s_mov_b64 exec, 0xfff")
            a("global_load_dwordx4 a[20:23], v5, s[92:93]")
            a("s_mov_b64 exec, -1")
        a("s_waitcnt lgkmcnt(0)")
        self.srd(SRD_X, 64, 2048 * 1024)
        a("s_and_b32 s%d, s%d, 3" % (S_ROT1, S_MB))
        a("s_lshl_b32 s%d, s%d, 1" % (S_ROT1, S_ROT1))
        a("s_add_u32 s%d, s%d, s%d" % (S_ROT1, S_ROT1, S_J))
        a("s_and_b32 s%d, s%d, 7" % (S_ROT1, S_ROT1))
        if "norot" in self.exp: a("s_mov_b32 s%d, 0" % S_ROT1)
        for i in range(8):
            a("s_add_u32 s3, s%d, %d" % (S_ROT1, i))
            a("s_and_b32 s3, s3, 7")
            a("s_lshl_b32 s3, s3, 7")
            a("s_add_u32 s3, s3, s%d" % S_T1)
            a("buffer_load_dwordx4 v[%d:%d], v22, s[%d:%d], s3 offen" % (32 + 4 * i, 35 + 4 * i, SRD_X, SRD_X + 3))
        self.srd(SRD_WIN, 76, 512 * 2752)
        self.srd(SRD_DFT, 70, 512 * 1024)
        self.srd(S_IMLO, 72, 512 * 1024)
        self.srd(SRD_WS, 88, WS_SIZE)
        self.srd(SRD_DBG, 86, 256)
        self.srd(SRD_WSP, 78, 2048 * 4096)
        self.srd(SRD_WOUT, 82, 688 * 1024)
        self.srd(SRD_OUT, 84, 2048 * 1024)
        self.srd(SRD_BSP, 80, 4096)
        if "tlbwarm" in self.exp:
            a("s_cmp_lg_u32 s%d, 7" % S_W)
            a("s_cbranch_scc1 L_tlb_d")
            a("v_lshlrev_b32 v5, 20, v%d" % V_LANE)
            a("v_add_u32 v5, 0x7f000, v5")
            a("s_mov_b64 exec, 0x3fff")
            a("buffer_load_dword a24, v5, s[%d:%d], 0 offen sc1" % (SRD_WS, SRD_WS + 3))
            a("s_mov_b64 exec, 1")
            a("s_lshl_b32 s3, s%d, 16" % S_MB)
            a("v_mov_b32 v5, s3")
            a("buffer_load_dword a25, v5, s[%d:%d], 0 offen" % (SRD_OUT, SRD_OUT + 3))
            a("s_lshl_b32 s3, s%d, 18" % S_MB)
            a("v_mov_b32 v5, s3")
            a("buffer_load_dword a26, v5, s[%d:%d], 0 offen" % (SRD_WSP, SRD_WSP + 3))
            a("v_mov_b32 v5, 0")
            a("buffer_load_dword a27, v5, s[%d:%d], 0 offen" % (SRD_WOUT, SRD_WOUT + 3))
            a("buffer_load_dword a28, v5, s[%d:%d], 0 offen" % (SRD_BSP, SRD_BSP + 3))
            a("s_mov_b64 exec, -1")
            a.label("L_tlb_d")
        self.npf3 = 0
        if "pf3" in self.exp:
            a("s_lshr_b32 s3, s2, 3")
            a("s_lshl_b32 s3, s3, 3")
            a("s_add_u32 s3, s3, s%d" % S_W)
            a("s_mul_i32 s%d, s3, 5504" % S_T0)
            a("v_lshlrev_b32 v5, 4, v%d" % V_LANE)
            for i in range(6):
                a("buffer_load_dwordx4 a[16:19], v5, s[%d:%d], s%d offen" % (SRD_WIN, SRD_WIN + 3, S_T0))
                a("s_add_u32 s%d, s%d, 1024" % (S_T0, S_T0))
            a("s_lshl_b32 s%d, s3, 10" % S_T0)
            a("s_add_u32 s%d, s%d, 1024" % (S_T0, S_T0))
            a("buffer_load_dwordx4 a[16:19], v5, s[%d:%d], s%d offen" % (SRD_DFT, SRD_DFT + 3, S_T0))
            a("buffer_load_dwordx4 a[16:19], v5, s[%d:%d], s%d offen" % (S_IMLO, S_IMLO + 3, S_T0))
            self.npf3 = 8
        a("s_cmp_lt_u32 s%d, 4" % S_W)
        a("s_cbranch_scc0 L_pro_h")
        self.npf = (self.prefetch_start() if "nopf" not in self.exp else 0) + self.npf3
        a("s_branch L_pro_c")
        a.label("L_pro_h")
        L = V_LANE
        a("v_lshrrev_b32 v5, 3, v%d" % L)
        a("v_and_b32 v6, 7, v%d" % L)
        a("v_lshrrev_b32 v7, 4, v%d" % L)
        a("v_xor_b32 v8, v6, v7")
        a("v_lshlrev_b32 v8, 4, v8")
        a("s_lshl_b32 s3, s%d, 5" % S_J)
        a("s_lshl_b32 s%d, s%d, 3" % (S_T0, S_HW))
        a("s_add_u32 s3, s3, s%d" % S_T0)
        a("v_add_u32 v9, s3, v5")
        a("v_cmp_eq_u32 vcc, 0, v9")
        a("v_mov_b32 v6, 256")
        a("v_cndmask_b32 v9, v9, v6, vcc")
        a("s_and_b32 s%d, s%d, 1" % (S_T0, S_HW))
        a("s_lshl_b32 s%d, s%d, 6" % (S_T0, S_T0))
        a("v_xor_b32 v8, s%d, v8" % S_T0)
        a("v_lshl_add_u32 v%d, v9, 10, v8" % self.V_OD)
        for p in range(3):
            a("v_add_u32 v5, %d, v%d" % (64 * p, L))
            a("v_mul_u32_u24 v6, 171, v5")
            a("v_lshrrev_b32 v6, 11, v6")
            a("v_mul_u32_u24 v7, 12, v6")
            a("v_sub_u32 v7, v5, v7")
            a("v_mul_u32_u24 v6, 2752, v6")
            a("v_lshl_add_u32 v6, v7, 4, v6")
            a("v_lshlrev_b32 v7, 3, v7")
            a("v_cmp_gt_u32 vcc, s%d, v7" % S_WID)
            a("v_mov_b32 v8, 0x%x" % OOB)
            a("v_cndmask_b32 v%d, v8, v6, vcc" % (self.V_OW + p))
        a("s_lshl_b32 s%d, s%d, 10" % (S_DL0, S_HW))
        a("s_mul_i32 s%d, s%d, 3072" % (S_WL0, S_HW))
        a("s_mul_i32 s%d, s%d, %d" % (S_W2, S_HW, 16 * 2752))
        a("s_lshl_b32 s3, s%d, 1" % S_F0)
        a("s_add_u32 s%d, s%d, s3" % (S_W2, S_W2))
        a("s_add_u32 s%d, s%d, %d" % (S_WSOFF, S_W2, 688 * 2))
        for k in range(4): self.dma_chunk(k)
        a("s_cmp_lg_u32 s2, 0")
        a("s_cbranch_scc1 L_nononce")
        a("s_cmp_lg_u32 s%d, 4" % S_W)
        a("s_cbranch_scc1 L_nononce")
        a("s_memrealtime s[%d:%d]" % (S_ST0, S_ST0 + 1))
        a("s_waitcnt lgkmcnt(0)")
        a("s_or_b32 s3, s%d, 1" % S_ST0)
        a("v_mov_b32 v5, s3")
        a("v_mov_b32 v6, 0")
        a("s_mov_b64 exec, 1")
        a("buffer_store_dword v5, v6, s[%d:%d], 0 offen sc1" % (SRD_DBG, SRD_DBG + 3))
        a("s_mov_b64 exec, -1")
        a.label("L_nononce")
        a("v_lshlrev_b32 v5, 2, v%d" % V_LANE)
        a("v_add_u32 v5, %d, v5" % LDS_SY)
        a("v_mov_b32 v6, 0")
        a("s_mov_b64 exec, 0xffff")
        a("ds_write_b32 v5, v6")
        a("s_mov_b64 exec, -1")
        a.label("L_pro_c")
        self.stamp(0)
        self.stamp(24)

    def pf_wrows(self, colbyte_sreg, row0_sreg, nrows16, dst):
        a = self.a
        a("v_lshrrev_b32 v5, 2, v%d" % V_LANE)
        a("v_add_u32 v5, s%d, v5" % row0_sreg)
        a("v_mul_u32_u24 v5, 2752, v5")
        a("v_and_b32 v6, 3, v%d" % V_LANE)
        a("v_lshlrev_b32 v6, 6, v6")
        a("v_min_u32 v6, 172, v6")
        a("v_add_u32 v5, v5, v6")
        for i in range(nrows16):
            a("s_add_u32 s3, s%d, %d" % (colbyte_sreg, i * 16 * 2752))
            a("buffer_load_dword a%d, v5, s[%d:%d], s3 offen" % (dst, SRD_WIN, SRD_WIN + 3))
        return nrows16

    def prefetch_start(self):
        a = self.a
        a("s_and_b32 s%d, s%d, 3" % (S_T0, S_MB))
        a("s_lshl_b32 s%d, s%d, 6" % (S_T0, S_T0))
        a("s_lshl_b32 s3, s%d, 4" % S_W)
        a("s_add_u32 s%d, s%d, s3" % (S_T0, S_T0))
        a("s_add_u32 s%d, s%d, 256" % (S_T0, S_T0))
        a("s_add_u32 s%d, s%d, 688" % (S_T1, S_F0))
        a("s_lshl_b32 s%d, s%d, 1" % (S_T1, S_T1))
        return self.pf_wrows(S_T1, S_T0, 1, 16)

    def prefetch_b(self):
        a = self.a
        a("s_and_b32 s%d, s%d, 3" % (S_T0, S_MB))
        a("s_lshl_b32 s%d, s%d, 7" % (S_T0, S_T0))
        a("s_lshl_b32 s3, s%d, 5" % S_W)
        a("s_add_u32 s%d, s%d, s3" % (S_T0, S_T0))
        a("s_lshl_b32 s%d, s%d, 1" % (S_T1, S_F0))
        self.pf_wrows(S_T1, S_T0, 2, 16)
        a("s_lshl_b32 s%d, s%d, 5" % (S_T0, S_J))
        a("s_and_b32 s3, s%d, 3" % S_MB)
        a("s_lshl_b32 s3, s3, 3")
        a("s_add_u32 s%d, s%d, s3" % (S_T0, S_T0))
        a("s_lshl_b32 s3, s%d, 1" % S_W)
        a("s_add_u32 s%d, s%d, s3" % (S_T0, S_T0))
        a("s_lshl_b32 s%d, s%d, 10" % (S_T0, S_T0))
        a("v_lshlrev_b32 v5, 4, v%d" % V_LANE)
        for i in range(2):
            a("buffer_load_dwordx4 a[16:19], v5, s[%d:%d], s%d offen offset:%d" % (S_IMLO, S_IMLO + 3, S_T0, i * 1024))

    def prefetch_wsp(self):
        a = self.a
        a("s_lshl_b32 s%d, s%d, 6" % (S_T0, S_MB))
        a("s_lshl_b32 s3, s%d, 3" % S_J)
        a("s_add_u32 s%d, s%d, s3" % (S_T0, S_T0))
        a("s_lshl_b32 s3, s%d, 1" % S_W)
        a("s_add_u32 s%d, s%d, s3" % (S_T0, S_T0))
        a("s_lshl_b32 s%d, s%d, 12" % (S_T0, S_T0))
        a("v_lshlrev_b32 v5, 4, v%d" % V_LANE)
        for i in range(8):
            a("buffer_load_dwordx4 a[16:19], v5, s[%d:%d], s%d offen" % (SRD_WSP, SRD_WSP + 3, S_T0))
            if i < 7: a("s_add_u32 s%d, s%d, 1024" % (S_T0, S_T0))

    def prefetch_wout(self):
        a = self.a
        a("s_and_b32 s3, s%d, 3" % S_MB)
        a("s_lshl_b32 s3, s3, 2")
        a("s_add_u32 s3, s3, s%d" % S_W)
        a("s_mul_i32 s%d, s3, 43" % S_T0)
        a("v_lshrrev_b32 v5, 1, v%d" % V_LANE)
        a("v_add_u32 v5, s%d, v5" % S_T0)
        a("v_lshlrev_b32 v5, 10, v5")
        a("v_and_b32 v6, 1, v%d" % V_LANE)
        a("v_lshl_add_u32 v5, v6, 6, v5")
        a("s_lshl_b32 s%d, s%d, 7" % (S_T0, S_J))
        a("buffer_load_dword a16, v5, s[%d:%d], s%d offen" % (SRD_WOUT, SRD_WOUT + 3, S_T0))
        a("s_add_u32 s%d, s%d, %d" % (S_T0, S_T0, 32 * 1024))
        a("buffer_load_dword a16, v5, s[%d:%d], s%d offen" % (SRD_WOUT, SRD_WOUT + 3, S_T0))

    def dma_chunk(self, k):
        a = self.a
        slot = LDS_WR + (k % NSLOT) * SLOT
        srd = SRD_DFT if k < 8 else S_IMLO
        a("s_add_u32 s%d, s%d, %d" % (S_T1, S_ROT1, k & 7))
        a("s_and_b32 s%d, s%d, 7" % (S_T1, S_T1))
        a("s_add_u32 m0, s%d, %d" % (S_DL0, slot + 12288))
        a("s_lshl_b32 s%d, s%d, 7" % (S_T0, S_T1))
        a("buffer_load_dwordx4 v%d, s[%d:%d], s%d offen lds" % (self.V_OD, srd, srd + 3, S_T0))
        a("s_mul_i32 s%d, s%d, %d" % (S_T1, S_T1, 64 * 2752))
        a("s_add_u32 m0, s%d, %d" % (S_WL0, slot))
        a("s_add_u32 s%d, s%d, s%d" % (S_T0, S_WSOFF if k < 8 else S_W2, S_T1))
        for p in range(3):
            a("buffer_load_dwordx4 v%d, s[%d:%d], s%d offen lds" % (self.V_OW + p, SRD_WIN, SRD_WIN + 3, S_T0))
            if p < 2:
                a("s_add_u32 m0, m0, 1024")
                a("s_nop 0")

    def xstage(self):
        a = self.a
        X = 32
        a("v_mov_b32 v23, 0x3f803f80")
        for i in range(4): a("v_mov_b32 v%d, 0" % (24 + i))
        a("v_bfe_u32 v5, v20, 1, 3")
        a("v_xor_b32 v5, v5, v21")
        a("v_lshlrev_b32 v5, 4, v5")
        a("v_lshl_add_u32 v28, v20, 7, v5")
        a("s_cmp_lt_u32 s%d, 4" % S_W)
        a("s_cbranch_scc1 L_xw_c")
        for path, younger in (("h", 16 + self.npf3), ("c", self.npf)):
            if path == "c": a.label("L_xw_c")
            for i in range(8):
                a("s_waitcnt vmcnt(%d)" % (younger + 7 - i))
                for r in range(4):
                    k = 4 * i + r
                    a("v_dot2c_f32_bf16 v%d, v%d, v23" % (24 + (k & 1), X + k))
                    a("v_dot2c_f32_bf16 v%d, v%d, v%d" % (26 + (k & 1), X + k, X + k))
            if path == "h": a("s_branch L_xw_d")
        a.label("L_xw_d")
        a("v_add_f32 v24, v24, v25")
        a("v_add_f32 v26, v26, v27")
        for dpp in ("quad_perm:[1,0,3,2]", "quad_perm:[2,3,0,1]", "row_half_mirror"):
            a("v_add_f32_dpp v25, v24, v24 %s row_mask:0xf bank_mask:0xf" % dpp)
            a("v_add_f32_dpp v27, v26, v26 %s row_mask:0xf bank_mask:0xf" % dpp)
            a("v_mov_b32 v24, v25")
            a("v_mov_b32 v26, v27")
        self.mean_rstd(24, 26, 512, 30, 31, 6)
        U = 64
        for i in range(8):
            for r in range(4):
                src = X + 4 * i + r
                t = U + 2 * ((4 * i + r) % 8)
                a("v_lshlrev_b32 v%d, 16, v%d" % (t, src))
                a("v_and_b32 v%d, 0xffff0000, v%d" % (t + 1, src))
                a("v_pk_fma_f32 v[%d:%d], v[%d:%d], v[30:31], v[30:31] op_sel:[0,0,1] op_sel_hi:[1,0,1]" % (t, t + 1, t, t + 1))
                a("v_cvt_pk_bf16_f32 v%d, v%d, v%d" % (src, t, t + 1))
            a("ds_write_b128 v28, v[%d:%d] offset:%d" % (X + 4 * i, X + 4 * i + 3, i * 8192))

    C_XA, C_AC, C_AN = 10, 14, 15
    C_FA, C_FB = 16, 32
    C_ACC = 64
    C_Z2P, C_Z1P = 96, 112
    C_GC1 = 6

    def c_setup(self, w3):
        a = self.a
        a("v_bfe_u32 v5, v%d, 1, 3" % V_SIG)
        a("v_lshlrev_b32 v6, 7, v%d" % V_SIG)
        for ks in range(4):
            a("v_add_u32 v8, %d, v%d" % (2 * ks, V_H))
            a("v_xor_b32 v8, v8, v5")
            a("v_lshl_add_u32 v%d, v8, 4, v6" % (self.C_XA + ks))
        if w3:
            for ks in range(4):
                a("v_add_u32 v%d, %d, v%d" % (116 + ks, LDS_WR + 12288, self.C_XA + ks))
        else:
            a("v_bfe_u32 v7, v%d, 2, 2" % V_LANE)
            a("v_lshl_add_u32 v7, v%d, 3, v7" % V_H)
            a("v_mul_u32_u24 v7, 192, v7")
            a("v_bfe_u32 v8, v%d, 4, 1" % V_LANE)
            a("v_lshlrev_b32 v8, 5, v8")
            a("v_and_b32 v9, 1, v%d" % V_LANE)
            a("v_lshl_add_u32 v8, v9, 4, v8")
            a("v_bfe_u32 v9, v%d, 1, 1" % V_LANE)
            a("v_lshl_add_u32 v8, v9, 3, v8")
            a("v_add_u32 v7, v7, v8")
            a("s_lshl_b32 s3, s%d, 6" % S_W)
            a("s_add_u32 s3, s3, %d" % LDS_WR)
            a("v_add_u32 v%d, s3, v7" % self.C_AC)
            a("v_add_u32 v%d, %d, v%d" % (self.C_AN, SLOT, self.C_AC))
            for Q in range(2):
                a("v_lshlrev_b32 v5, 3, v%d" % V_H)
                a("v_sub_u32 v5, v%d, v5" % V_SIG)
                if Q: a("v_subrev_u32 v5, 16, v5")
                a("v_and_b32 v6, 1, v5")
                a("v_lshlrev_b32 v6, 4, v6")
                a("v_mov_b32 v7, 0x3f80")
                a("v_lshlrev_b32 v6, v6, v7")
                a("v_lshrrev_b32 v5, 1, v5")
                for r in range(4):
                    a("v_cmp_eq_u32 vcc, %d, v5" % r)
                    a("v_cndmask_b32 v7, 0, v6, vcc")
                    a("v_accvgpr_write_b32 a%d, v7" % (4 * Q + r))

    def c_reads(self, w3, c, ks, nxt):
        A = self.C_FA + 4 * ks; B = self.C_FB + 8 * ks
        out = []
        xo = (c & 7) * 8192
        if w3:
            base = 124 + ks if nxt else 120 + ks
            out.append("ds_read_b128 v[%d:%d], v%d" % (A, A + 3, base))
        else:
            base = self.C_AN if nxt else self.C_AC
            out.append("ds_read_b64_tr_b16 v[%d:%d], v%d offset:%d" % (A, A + 1, base, ks * 3072))
            out.append("ds_read_b64_tr_b16 v[%d:%d], v%d offset:%d" % (A + 2, A + 3, base, ks * 3072 + 768))
        out.append("ds_read_b128 v[%d:%d], v%d offset:%d" % (B, B + 3, self.C_XA + ks, xo))
        out.append("ds_read_b128 v[%d:%d], v%d offset:%d" % (B + 4, B + 7, self.C_XA + ks, xo + 4096))
        return out

    def c_loop(self, w3):
        a = self.a
        nr = 3 if w3 else 4
        ACC = self.C_ACC
        def mfs(ks, first):
            A = self.C_FA + 4 * ks; B = self.C_FB + 8 * ks
            out = []
            for st in range(2):
                D = ACC + 16 * st
                cc = "0" if first else "v[%d:%d]" % (D, D + 15)
                if w3: out.append("v_mfma_f32_32x32x16_bf16 v[%d:%d], v[%d:%d], v[%d:%d], %s" % (D, D + 15, B + 4 * st, B + 4 * st + 3, A, A + 3, cc))
                else: out.append("v_mfma_f32_32x32x16_bf16 v[%d:%d], v[%d:%d], v[%d:%d], %s" % (D, D + 15, A, A + 3, B + 4 * st, B + 4 * st + 3, cc))
            return out
        a("s_mov_b32 s64, %d" % SLOT)
        if "pf2" in self.exp:
            a("v_lshlrev_b32 v9, 4, v%d" % V_LANE)
            lab = a.newlabel("pf2")
            a("s_cmp_lg_u32 s%d, 0" % S_PASS)
            a("s_cbranch_scc1 %s_b" % lab)
            for i in range(4): a("s_mov_b32 s%d, s%d" % (72 + i, SRD_WSP + i) if i < 3 else "s_mov_b32 s75, 0x20000")
            a("s_lshl_b32 s76, s%d, 6" % S_MB)
            a("s_lshl_b32 s3, s%d, 3" % S_J)
            a("s_add_u32 s76, s76, s3")
            a("s_lshl_b32 s3, s%d, 1" % S_W)
            a("s_add_u32 s76, s76, s3")
            a("s_lshl_b32 s76, s76, 12")
            a("s_branch %s_d" % lab)
            a.label(lab + "_b")
            for i in range(4): a("s_mov_b32 s%d, s%d" % (72 + i, SRD_WOUT + i) if i < 3 else "s_mov_b32 s75, 0x20000")
            a("s_and_b32 s76, s%d, 3" % S_MB)
            a("s_lshl_b32 s76, s76, 3")
            a("s_add_u32 s76, s76, s%d" % S_J)
            a("s_lshl_b32 s76, s76, 2")
            a("s_add_u32 s76, s76, s%d" % S_W)
            a("s_mul_i32 s76, s76, 43")
            a("s_lshr_b32 s76, s76, 3")
            a("s_lshl_b32 s76, s76, 10")
            a.label(lab + "_d")
        if w3:
            for ks in range(4): a("v_add_u32 v%d, s%d, v%d" % (120 + ks, S_SLOT, 116 + ks))
        for r in self.c_reads(w3, 0, 0, False): a(r)
        for r in self.c_reads(w3, 0, 1, False): a(r)
        for c in range(8):
            a("s_barrier")
            extra = []
            if w3:
                extra += ["s_add_u32 s%d, s%d, %d" % (S_T1, S_SLOT, SLOT), "s_cmp_eq_u32 s%d, %d" % (S_T1, NSLOT * SLOT), "s_cselect_b32 s%d, 0, s%d" % (S_T1, S_T1),
                          "v_add_u32 v124, s%d, v116" % S_T1, "v_add_u32 v125, s%d, v117" % S_T1]
            for ks in range(4):
                if ks < 2: rd = self.c_reads(w3, c, ks + 2, False)
                else: rd = self.c_reads(w3, c + 1, ks - 2, True)
                if "cnoread" in self.exp: rd = []
                m = mfs(ks, c == 0 and ks == 0)
                if "cnomfma" in self.exp: m = []
                a("s_waitcnt lgkmcnt(%d)" % nr)
                half = (len(rd) + 1) // 2
                if m: a(m[0])
                if ks == 0:
                    for e in extra: a(e)
                    if "pf2" in self.exp:
                        a("buffer_load_dwordx4 a[16:19], v9, s[72:75], s76 offen")
                        a("s_add_u32 s76, s76, 1024")
                for r in rd[:half]: a(r)
                if m: a(m[1])
                for r in rd[half:]: a(r)
                if ks == 3:
                    if w3:
                        a("s_mov_b32 s%d, s%d" % (S_SLOT, S_T1))
                        for k2 in range(4): a("v_add_u32 v%d, s%d, v%d" % (120 + k2, S_SLOT, 116 + k2))
                    else:
                        a("v_mov_b32 v%d, v%d" % (self.C_AC, self.C_AN))
                        a("s_add_u32 s%d, s%d, %d" % (S_SLOT, S_SLOT, SLOT))
                        a("s_cmp_eq_u32 s%d, %d" % (S_SLOT, NSLOT * SLOT))
                        a("s_cselect_b32 s%d, 0x%x, s64" % (S_T1, (-(NSLOT - 1) * SLOT) & 0xffffffff))
                        a("s_cselect_b32 s%d, 0, s%d" % (S_SLOT, S_SLOT))
                        a("v_add_u32 v%d, s%d, v%d" % (self.C_AN, S_T1, self.C_AN))
        a("s_waitcnt lgkmcnt(0)")

    def gelu_epilogue(self, dst, hook=None, hook_at=8):
        a = self.a
        E = 16
        c1 = -2.0 * math.sqrt(2.0 / math.pi) * math.log2(math.e)
        c2 = c1 * 0.044715
        a("v_mov_b32 v6, 0x%x" % f2u(c1))
        a("s_mov_b32 s%d, 0x%x" % (S_K2, f2u(c2)))
        a("s_mov_b32 s%d, 0x%x" % (S_K2 + 1, f2u(c2)))
        for pp in range(0, 16, 2):
            if hook is not None and pp == hook_at: hook()
            seq = [[], []]
            for u in range(2):
                pre = self.C_ACC + 2 * (pp + u)
                p2, e = E + u * 4, E + u * 4 + 2
                s = seq[u]
                s.append("v_pk_mul_f32 v[%d:%d], v[%d:%d], v[%d:%d]" % (p2, p2 + 1, pre, pre + 1, pre, pre + 1))
                s.append("v_pk_fma_f32 v[%d:%d], v[%d:%d], s[%d:%d], v[6:7] op_sel_hi:[1,1,0]" % (p2, p2 + 1, p2, p2 + 1, S_K2, S_K2 + 1))
                s.append("v_pk_mul_f32 v[%d:%d], v[%d:%d], v[%d:%d]" % (p2, p2 + 1, p2, p2 + 1, pre, pre + 1))
                s.append("v_exp_f32 v%d, v%d" % (e, p2))
                s.append("v_exp_f32 v%d, v%d" % (e + 1, p2 + 1))
                s.append("v_pk_add_f32 v[%d:%d], v[%d:%d], 1.0 op_sel_hi:[1,0]" % (e, e + 1, e, e + 1))
                s.append("v_rcp_f32 v%d, v%d" % (e, e))
                s.append("v_rcp_f32 v%d, v%d" % (e + 1, e + 1))
                s.append("v_pk_mul_f32 v[%d:%d], v[%d:%d], v[%d:%d]" % (e, e + 1, pre, pre + 1, e, e + 1))
                s.append("v_cvt_pk_bf16_f32 v%d, v%d, v%d" % (dst + pp + u, e, e + 1))
            for i in range(len(seq[0])):
                a(seq[0][i]); a(seq[1][i])

    def stats2_partial(self, src):
        a = self.a
        E = 16
        a("v_mov_b32 v24, 0x3f803f80")
        for i in range(4): a("v_mov_b32 v%d, 0" % (E + i))
        for r in range(8):
            for st in range(2):
                a("v_dot2c_f32_bf16 v%d, v%d, v24" % (E + 2 * st, src + 8 * st + r))
                a("v_dot2c_f32_bf16 v%d, v%d, v%d" % (E + 2 * st + 1, src + 8 * st + r, src + 8 * st + r))
        self.hsum([E, E + 1, E + 2, E + 3], E + 4)
        a("s_lshl_b32 s3, s%d, 9" % S_W)
        a("s_add_u32 s3, s3, %d" % LDS_T4)
        a("v_lshlrev_b32 v8, 3, v%d" % V_JL)
        a("v_add_u32 v8, s3, v8")
        a("ds_write_b64 v8, v[%d:%d]" % (E, E + 1))
        a("ds_write_b64 v8, v[%d:%d] offset:256" % (E + 2, E + 3))
        a("s_waitcnt lgkmcnt(0)")

    def dft_store(self, part):
        a = self.a
        a("v_and_b32 v5, 7, v%d" % V_SIG)
        a("v_xor_b32 v5, v5, v%d" % V_H)
        a("v_lshlrev_b32 v5, 4, v5")
        a("v_lshl_add_u32 v5, v%d, 7, v5" % V_SIG)
        a("v_add_u32 v5, %d, v5" % LDS_AT)
        for st in range(2):
            for Q in range(2):
                o = 16 + (st * 2 + Q) * 4
                for p in range(4):
                    acc = self.C_ACC + 16 * st + 8 * Q + 2 * p
                    a("v_cvt_pk_bf16_f32 v%d, v%d, v%d" % (o + p, acc, acc + 1))
                a("v_xor_b32 v6, %d, v5" % ((4 * st + 2 * Q) * 16))
                a("ds_write_b128 v6, v[%d:%d]" % (o, o + 3))
        a("v_lshrrev_b32 v7, 3, v%d" % V_LANE)
        a("v_and_b32 v8, 7, v%d" % V_LANE)
        a("v_xor_b32 v6, v7, v8")
        a("v_lshlrev_b32 v6, 4, v6")
        a("v_lshl_add_u32 v6, v7, 7, v6")
        a("v_add_u32 v6, %d, v6" % LDS_AT)
        a("s_waitcnt lgkmcnt(0)")
        for i in range(4):
            a("ds_read_b128 v[%d:%d], v6 offset:%d" % (32 + 4 * i, 35 + 4 * i, i * 1024))
        a("v_lshlrev_b32 v7, 13, v7")
        a("v_lshl_add_u32 v7, v8, 4, v7")
        a("s_lshl_b32 s%d, s%d, 18" % (S_T0, S_J))
        a("s_lshl_b32 s3, s%d, 7" % S_MB)
        a("s_add_u32 s%d, s%d, s3" % (S_T0, S_T0))
        a("s_add_u32 s%d, s%d, 0x%x" % (S_T0, S_T0, WS_AB + part * 4096))
        a("s_waitcnt lgkmcnt(0)")
        for i in range(4):
            a("buffer_store_dwordx4 v[%d:%d], v7, s[%d:%d], s%d offen sc1" % (32 + 4 * i, 35 + 4 * i, SRD_WS, SRD_WS + 3, S_T0))
            if i < 3: a("s_add_u32 s%d, s%d, %d" % (S_T0, S_T0, 8 * 8192))

    def z2n_publish(self):
        a = self.a
        a("v_lshlrev_b32 v5, 3, v%d" % V_JL)
        a("v_add_u32 v5, %d, v5" % LDS_T5)
        a("ds_read_b64 v[6:7], v5")
        a("ds_read_b64 v[8:9], v5 offset:256")
        a("s_waitcnt lgkmcnt(0)")
        N = 48
        for st in range(2):
            r2 = 6 + 2 * st
            for r in range(8):
                src = self.C_Z2P + 8 * st + r
                t = 16 + 2 * (r % 4)
                a("v_lshlrev_b32 v%d, 16, v%d" % (t, src))
                a("v_and_b32 v%d, 0xffff0000, v%d" % (t + 1, src))
                a("v_pk_fma_f32 v[%d:%d], v[%d:%d], v[%d:%d], v[%d:%d] op_sel:[0,0,1] op_sel_hi:[1,0,1]" % (t, t + 1, t, t + 1, r2, r2 + 1, r2, r2 + 1))
                a("v_cvt_pk_bf16_f32 v%d, v%d, v%d" % (N + 8 * st + r, t, t + 1))
        DT = 16
        for st in range(2):
            D = DT + 16 * st
            a("v_mfma_f32_32x32x16_bf16 v[%d:%d], v[%d:%d], a[0:3], 0" % (D, D + 15, N + 8 * st, N + 8 * st + 3))
        for st in range(2):
            D = DT + 16 * st
            a("v_mfma_f32_32x32x16_bf16 v[%d:%d], v[%d:%d], a[4:7], v[%d:%d]" % (D, D + 15, N + 8 * st + 4, N + 8 * st + 7, D, D + 15))
        a("s_lshl_b32 s%d, s%d, 7" % (S_T0, S_J))
        a("s_lshl_b32 s%d, s%d, 2" % (S_T1, S_MB))
        a("s_add_u32 s%d, s%d, s%d" % (S_T0, S_T0, S_T1))
        a("s_mul_i32 s%d, s%d, 3" % (S_T0, S_T0))
        a("s_add_u32 s%d, s%d, s%d" % (S_T0, S_T0, S_W))
        a("s_lshl_b32 s%d, s%d, 10" % (S_T0, S_T0))
        a("s_add_u32 s%d, s%d, 0x%x" % (S_T0, S_T0, WS_Z2N))
        a("v_lshlrev_b32 v5, 4, v%d" % V_LANE)
        for st in range(2):
            for Q in range(2):
                D = DT + 16 * st + 8 * Q
                o = 48 + (st * 2 + Q) * 4
                for p in range(4):
                    a("v_cvt_pk_bf16_f32 v%d, v%d, v%d" % (o + p, D + 2 * p, D + 2 * p + 1))
                a("s_add_u32 s%d, s%d, %d" % (S_T1, S_T0, (2 * st + Q) * 3072))
                if "nozstore" not in self.exp: a("buffer_store_dwordx4 v[%d:%d], v5, s[%d:%d], s%d offen sc1" % (o, o + 3, SRD_WS, SRD_WS + 3, S_T1))

    def zero_acc(self):
        for i in range(32): self.a("v_mov_b32 v%d, 0" % (self.C_ACC + i))

    def p1_compute(self):
        a = self.a
        a("s_cmp_eq_u32 s%d, 3" % S_W)
        a("s_cbranch_scc1 L_c3")
        self.c_setup(False)
        a("s_mov_b32 s%d, 0" % S_C)
        a("s_mov_b32 s%d, %d" % (S_SLOT, SLOT))
        a("s_mov_b32 s%d, 0" % S_PASS)
        a("s_waitcnt lgkmcnt(0)")
        a("s_barrier")
        if "nopf" not in self.exp: self.prefetch_b()
        self.stamp(1)
        self.stamp(28)
        a.label("L_pass")
        self.c_loop(False)
        a("s_cmp_lg_u32 s%d, 0" % S_PASS)
        a("s_cbranch_scc1 L_passB_done")
        self.stamp(29)
        self.stamp(2)
        if "nopf" not in self.exp: self.prefetch_wsp()
        self.gelu_epilogue(self.C_Z2P)
        self.stats2_partial(self.C_Z2P)
        a("s_barrier")
        a("v_mov_b32 v6, 0")
        a("buffer_load_dword a8, v6, s[%d:%d], 0 offen sc1" % (SRD_DBG, SRD_DBG + 3))
        a("s_lshl_b32 s%d, s%d, 7" % (S_T0, S_MB))
        a("v_lshlrev_b32 v5, 1, v%d" % V_SIG)
        a("buffer_load_ushort a9, v5, s[%d:%d], s%d offen" % (SRD_BSP, SRD_BSP + 3, S_T0))
        a("buffer_load_ushort a10, v5, s[%d:%d], s%d offen offset:64" % (SRD_BSP, SRD_BSP + 3, S_T0))
        if "nopf" not in self.exp: self.prefetch_wout()
        self.stamp(3)
        a("s_mov_b32 s%d, 1" % S_PASS)
        a("s_branch L_pass")
        a.label("L_passB_done")
        self.stamp(4)
        a("s_waitcnt vmcnt(0)")
        a("v_accvgpr_read_b32 v39, a8")
        self.nonce_from(39)
        self.stamp(22)
        a("s_barrier")
        self.stamp(5)
        self.z2n_publish()
        if "b3b" in self.exp: a("s_barrier")
        def hook():
            a("s_waitcnt vmcnt(0)")
            self.flag_store(1, 0, S_W, vt=(8, 9))
            self.stamp(7)
        self.gelu_epilogue(self.C_Z1P, hook, 8)
        a("s_branch L_c_join")
        a.label("L_c3")
        self.c_setup(True)
        a("s_mov_b32 s%d, 0" % S_C)
        a("s_mov_b32 s%d, 0" % S_SLOT)
        a("s_mov_b32 s%d, 0" % S_PASS)
        a("s_waitcnt lgkmcnt(0)")
        a("s_barrier")
        if "nopf" not in self.exp: self.prefetch_b()
        a.label("L_pass3")
        self.c_loop(True)
        a("s_cmp_lg_u32 s%d, 0" % S_PASS)
        a("s_cbranch_scc1 L_passB3_done")
        if "nopf" not in self.exp: self.prefetch_wsp()
        self.dft_store(0)
        a("s_barrier")
        a("v_mov_b32 v6, 0")
        a("buffer_load_dword a8, v6, s[%d:%d], 0 offen sc1" % (SRD_DBG, SRD_DBG + 3))
        if "nopf" not in self.exp: self.prefetch_wout()
        a("s_mov_b32 s%d, 1" % S_PASS)
        a("s_branch L_pass3")
        a.label("L_passB3_done")
        self.dft_store(1)
        a("s_waitcnt vmcnt(0)")
        a("v_accvgpr_read_b32 v39, a8")
        self.nonce_from(39)
        self.flag_store(1, 3)
        a("s_barrier")
        if "b3b" in self.exp: a("s_barrier")
        a.label("L_c_join")

    def fix_x_after_pass(self):
        a = self.a
        a("v_subrev_u32 v%d, 8192, v%d" % (self.C_XA, self.C_XA))
        a("v_subrev_u32 v%d, 8192, v%d" % (self.C_XA + 1, self.C_XA + 1))

    def capture(self, fn):
        save = self.a
        tmp = Asm(); tmp.uid = save.uid + 1000
        self.a = tmp
        fn()
        self.a = save
        save.uid = tmp.uid
        return [i.text for i in tmp.ins]

    def h_loop(self, k0):
        a = self.a
        consts = self.capture(self.fft_consts) if (k0 == 8 and "nofft" not in self.exp) else []
        per = (len(consts) + 7) // 8
        st = self.stage_loads() if k0 == 8 else []
        nst = 0
        for k in range(k0, k0 + 8):
            if k + 1 <= 15 and "hnowait" not in self.exp:
                younger = 4 * (min(k + 3, 15) - (k + 1))
                if k >= 12:
                    lab = a.newlabel("hw")
                    a("s_cmp_ge_u32 s%d, 2" % S_HW)
                    a("s_cbranch_scc1 %s_b" % lab)
                    a("s_waitcnt vmcnt(%d)" % (younger + nst))
                    a("s_branch %s_d" % lab)
                    a.label(lab + "_b")
                    a("s_cmp_eq_u32 s%d, 2" % S_HW)
                    a("s_cbranch_scc1 %s_c" % lab)
                    a("s_waitcnt vmcnt(%d)" % younger)
                    a("s_branch %s_d" % lab)
                    a.label(lab + "_c")
                    a("s_waitcnt vmcnt(%d)" % (younger + (16 if k >= 14 else 0)))
                    a.label(lab + "_d")
                else:
                    a("s_waitcnt vmcnt(%d)" % younger)
            a("s_barrier")
            if k + 4 <= 15: self.dma_chunk(k + 4)
            if k == 13:
                lab = a.newlabel("si")
                a("s_cmp_lg_u32 s%d, 2" % S_HW)
                a("s_cbranch_scc1 %s" % lab)
                self.stats2_issue()
                a.label(lab)
            if k == 15:
                lab = a.newlabel("si")
                a("s_cmp_lg_u32 s%d, 2" % S_HW)
                a("s_cbranch_scc1 %s" % lab)
                self.stats2_consume()
                a.label(lab)
            if k == 11:
                self.wsp_voffsets(120)
                a("s_lshl_b32 s%d, s%d, 18" % (S_T1, S_MB))
                a("s_lshl_b32 s3, s%d, 10" % S_HW)
                a("s_add_u32 s%d, s%d, s3" % (S_T1, S_T1))
                a("s_add_u32 s67, s%d, %d" % (S_T1, 2 * 256))
                a("s_add_u32 s68, s%d, %d" % (S_T1, 3 * 256))
                a("s_add_u32 s69, s%d, %d" % (S_T1, 2 * 1024 + 2 * 256))
            if k0 == 0: continue
            lab = a.newlabel("role")
            a("s_cmp_lt_u32 s%d, 2" % S_HW)
            a("s_cbranch_scc1 %s_s" % lab)
            if consts:
                for t in consts[(k - k0) * per:(k - k0 + 1) * per]: a(t)
            a("s_branch %s_d" % lab)
            a.label(lab + "_s")
            if st and k >= 12:
                n = 12
                for t in st[2 * nst:2 * (nst + n)]: a(t)
                nst += n
            a.label(lab + "_d")

    def stats2_publish(self):
        a = self.a
        E = 16
        a("v_lshlrev_b32 v8, 3, v%d" % V_JL)
        a("v_add_u32 v8, %d, v8" % LDS_T4)
        for w in range(3):
            for st in range(2):
                d = E + w * 4 + st * 2
                a("ds_read_b64 v[%d:%d], v8 offset:%d" % (d, d + 1, w * 512 + st * 256))
        a("s_waitcnt lgkmcnt(0)")
        for w in range(1, 3):
            for st in range(2):
                a("v_pk_add_f32 v[%d:%d], v[%d:%d], v[%d:%d]" % (E + st * 2, E + st * 2 + 1, E + st * 2, E + st * 2 + 1, E + w * 4 + st * 2, E + w * 4 + st * 2 + 1))
        for st in range(2):
            o = 32 + 4 * st
            a("v_mov_b32 v%d, v%d" % (o, E + 2 * st))
            a("v_mov_b32 v%d, s%d" % (o + 1, S_NONCE))
            a("v_mov_b32 v%d, v%d" % (o + 2, E + 2 * st + 1))
            a("v_mov_b32 v%d, s%d" % (o + 3, S_NONCE))
        a("s_lshl_b32 s%d, s%d, 3" % (S_T0, S_MB))
        a("s_add_u32 s%d, s%d, s%d" % (S_T0, S_T0, S_J))
        a("s_lshl_b32 s%d, s%d, 10" % (S_T0, S_T0))
        a("s_add_u32 s%d, s%d, 0x%x" % (S_T0, S_T0, WS_STATS))
        a("v_lshlrev_b32 v8, 4, v%d" % V_JL)
        a("s_mov_b32 exec_hi, 0")
        a("buffer_store_dwordx4 v[32:35], v8, s[%d:%d], s%d offen sc1" % (SRD_WS, SRD_WS + 3, S_T0))
        a("buffer_store_dwordx4 v[36:39], v8, s[%d:%d], s%d offen offset:512 sc1" % (SRD_WS, SRD_WS + 3, S_T0))
        a("s_mov_b64 exec, -1")

    ST = 48
    def stats2_issue(self):
        a = self.a
        a("s_lshl_b32 s%d, s%d, 13" % (S_T0, S_MB))
        a("s_add_u32 s%d, s%d, 0x%x" % (S_T0, S_T0, WS_STATS))
        a("v_lshlrev_b32 v8, 4, v%d" % V_JL)
        for jj in range(8):
            for st in range(2):
                r = self.ST + (jj * 2 + st) * 4
                a("buffer_load_dwordx4 v[%d:%d], v8, s[%d:%d], s%d offen offset:%d sc1" % (r, r + 3, SRD_WS, SRD_WS + 3, S_T0, st * 512))
            if jj < 7: a("s_add_u32 s%d, s%d, 1024" % (S_T0, S_T0))

    def stats2_consume(self):
        a = self.a
        lab = a.newlabel("sc")
        a("s_mov_b32 s%d, 0" % S_SPIN)
        a.label(lab)
        a("s_waitcnt vmcnt(0)")
        a("s_mov_b64 s[%d:%d], 0" % (S_EX, S_EX + 1))
        for g in range(16):
            r = self.ST + 4 * g
            a("v_cmp_ne_u32 vcc, s%d, v%d" % (S_NONCE, r + 1))
            a("s_or_b64 s[%d:%d], s[%d:%d], vcc" % (S_EX, S_EX + 1, S_EX, S_EX + 1))
            a("v_cmp_ne_u32 vcc, s%d, v%d" % (S_NONCE, r + 3))
            a("s_or_b64 s[%d:%d], s[%d:%d], vcc" % (S_EX, S_EX + 1, S_EX, S_EX + 1))
        a("s_cmp_eq_u64 s[%d:%d], 0" % (S_EX, S_EX + 1))
        a("s_cbranch_scc1 %s_ok" % lab)
        a("s_add_u32 s%d, s%d, 1" % (S_SPIN, S_SPIN))
        a("s_cmp_gt_u32 s%d, 0x8000" % S_SPIN)
        a("s_cbranch_scc1 %s_ok" % lab)
        self.stats2_issue()
        a("s_branch %s" % lab)
        a.label(lab + "_ok")
        for st in range(2):
            b = self.ST + 4 * st
            for jj in range(1, 8):
                r = self.ST + (jj * 2 + st) * 4
                a("v_add_f32 v%d, v%d, v%d" % (b, b, r))
                a("v_add_f32 v%d, v%d, v%d" % (b + 2, b + 2, r + 2))
        for st in range(2):
            b = self.ST + 4 * st
            self.mean_rstd(b, b + 2, 688, 112 + 2 * st, 113 + 2 * st, 116)
        a("v_lshlrev_b32 v8, 3, v%d" % V_JL)
        a("v_add_u32 v8, %d, v8" % LDS_T5)
        a("ds_write_b64 v8, v[112:113]")
        a("ds_write_b64 v8, v[114:115] offset:256")
        a("s_waitcnt lgkmcnt(0)")

    def angles(self, n_list, tq, base, dst):
        a = self.a
        for idx, n in enumerate(n_list):
            if n == 0: a("v_mov_b32 v%d, v%d" % (dst + idx, base))
            else: a("v_fmamk_f32 v%d, v%d, 0x%x, v%d" % (dst + idx, tq, f2u(float(n)), base))

    H_T1F, H_8H = 46, 47
    def fft_consts(self):
        a = self.a
        T = 16
        a("v_bfe_u32 v%d, v%d, 2, 1" % (T, V_JL))
        a("v_lshlrev_b32 v%d, 4, v%d" % (T, T))
        a("v_bfe_u32 v%d, v%d, 3, 2" % (T + 1, V_JL))
        a("v_lshl_or_b32 v%d, v%d, 2, v%d" % (T, T + 1, T))
        a("v_and_b32 v%d, 3, v%d" % (T + 1, V_JL))
        a("v_or_b32 v%d, v%d, v%d" % (T, T, T + 1))
        a("v_cvt_f32_u32 v%d, v%d" % (self.H_T1F, T))
        a("v_cvt_f32_u32 v%d, v%d" % (self.H_8H, V_H))
        a("v_mul_f32 v%d, 0x%x, v%d" % (self.H_8H, f2u(8.0), self.H_8H))
        a("v_mul_f32 v%d, 0x%x, v%d" % (T + 2, f2u(1.0 / 32), self.H_T1F))
        a("v_mul_f32 v%d, v%d, v%d" % (T + 3, T + 2, self.H_8H))
        A = T + 4; C = T + 12; S = T + 20
        for ks in range(2):
            self.angles([16 * ks + i for i in range(8)], T + 2, T + 3, A)
            for i in range(8): a("v_fract_f32 v%d, v%d" % (A + i, A + i))
            for i in range(8):
                a("v_cos_f32 v%d, v%d" % (C + i, A + i))
                a("v_sin_f32 v%d, v%d" % (S + i, A + i))
            for p in range(4):
                a("v_cvt_pk_bf16_f32 v%d, v%d, v%d" % (A + 0, C + 2 * p, C + 2 * p + 1))
                a("v_cvt_pk_bf16_f32 v%d, -v%d, -v%d" % (A + 1, S + 2 * p, S + 2 * p + 1))
                a("v_cvt_pk_bf16_f32 v%d, v%d, v%d" % (A + 2, S + 2 * p, S + 2 * p + 1))
                a("v_accvgpr_write_b32 a%d, v%d" % (4 * ks + p, A + 0))
                a("v_accvgpr_write_b32 a%d, v%d" % (8 + 4 * ks + p, A + 1))
                a("v_accvgpr_write_b32 a%d, v%d" % (16 + 4 * ks + p, A + 2))
        a("v_accvgpr_write_b32 a60, v%d" % self.H_T1F)
        a("v_accvgpr_write_b32 a61, v%d" % self.H_8H)
        a("s_sub_u32 s3, s%d, 2" % S_HW)
        a("s_lshl_b32 s3, s3, 5")
        a("v_add_u32 v%d, s3, v%d" % (T + 2, V_JL))
        a("v_cvt_f32_u32 v%d, v%d" % (T + 2, T + 2))
        a("v_mul_f32 v%d, 0x%x, v%d" % (T + 2, f2u(1.0 / 64), T + 2))
        a("v_mul_f32 v%d, v%d, v%d" % (T + 3, T + 2, self.H_8H))
        for kt in range(2):
            for kp in range(2):
                self.angles([32 * kt + 16 * kp + i for i in range(8)], T + 2, T + 3, A)
                for i in range(8): a("v_fract_f32 v%d, v%d" % (A + i, A + i))
                for i in range(8):
                    a("v_cos_f32 v%d, v%d" % (C + i, A + i))
                    a("v_sin_f32 v%d, v%d" % (S + i, A + i))
                for p in range(4):
                    a("v_cvt_pk_bf16_f32 v%d, v%d, v%d" % (A + 0, C + 2 * p, C + 2 * p + 1))
                    a("v_cvt_pk_bf16_f32 v%d, v%d, v%d" % (A + 1, S + 2 * p, S + 2 * p + 1))
                    a("v_accvgpr_write_b32 a%d, v%d" % (24 + 16 * kt + 4 * kp + p, A + 0))
                    a("v_accvgpr_write_b32 a%d, v%d" % (24 + 16 * kt + 8 + 4 * kp + p, A + 1))

    def p1_helper(self):
        a = self.a
        a("s_mov_b32 s%d, 0" % S_C)
        a("v_mov_b32 v6, 0")
        a("buffer_load_dword v%d, v6, s[%d:%d], 0 offen sc1" % (self.V_NON, SRD_DBG, SRD_DBG + 3))
        a("s_waitcnt vmcnt(13) lgkmcnt(0)")
        a("s_barrier")
        self.h_loop(0)
        self.nonce_from(self.V_NON)
        a("s_barrier")
        a("s_cmp_lg_u32 s%d, 0" % S_HW)
        a("s_cbranch_scc1 L_h_nopub")
        self.stats2_publish()
        a.label("L_h_nopub")
        self.h_loop(8)
        self.stamp(22)
        a("s_barrier")
        if "b3b" in self.exp: a("s_barrier")

    G_B = 16
    G_VB = 10
    G_VZ = 32
    G_L16 = 35
    G_BS = 36
    G_RV = 40
    def ring_reg(self, f):
        if f < 8: return "a[%d:%d]" % (96 + 4 * f, 96 + 4 * f + 3)
        r = self.G_RV + 4 * (f - 8)
        return "v[%d:%d]" % (r, r + 3)

    def g_compute(self):
        a = self.a
        self._gst_on = True
        a("v_lshlrev_b32 v%d, 4, v%d" % (self.G_L16, V_LANE))
        a("v_and_b32 v5, 15, v%d" % V_SIG)
        a("v_xor_b32 v5, v5, v%d" % V_H)
        a("v_lshlrev_b32 v5, 4, v5")
        a("v_lshl_add_u32 v5, v%d, 8, v5" % V_SIG)
        a("s_lshl_b32 s3, s%d, 15" % S_W)
        a("v_add_u32 v104, s3, v5")
        for k in range(1, 8): a("v_xor_b32 v%d, %d, v104" % (104 + k, k * 32))
        a("s_sub_u32 s%d, s%d, 64" % (S_T2, S_WID))
        for tau in range(3):
            a("s_add_u32 s%d, s%d, %d" % (S_T0, S_W, tau))
            a("s_cmp_ge_u32 s%d, 3" % S_T0)
            a("s_cselect_b32 s%d, 3, 0" % S_T1)
            a("s_sub_u32 s%d, s%d, s%d" % (S_T0, S_T0, S_T1))
            a("s_lshl_b32 s%d, s%d, 10" % (S_T1, S_T0))
            a("v_add_u32 v5, s%d, v%d" % (S_T1, self.G_L16))
            a("v_mov_b32 v6, 0x%x" % OOB)
            a("v_cmp_le_u32 vcc, s%d, v%d" % (S_T2, V_SIG))
            a("s_cmp_eq_u32 s%d, 2" % S_T0)
            a("s_cselect_b64 s[%d:%d], vcc, 0" % (S_EX, S_EX + 1))
            a("v_cndmask_b32 v%d, v5, v6, s[%d:%d]" % (self.G_VZ + tau, S_EX, S_EX + 1))
        a("s_lshl_b32 s3, s%d, 5" % S_J)
        a("s_lshl_b32 s%d, s%d, 3" % (S_T0, S_W))
        a("s_add_u32 s3, s3, s%d" % S_T0)
        a("v_add_u32 v38, s3, v%d" % V_LANE)
        a("v_lshlrev_b32 v38, 7, v38")
        a("v_add_u32 v38, 0x%x, v38" % (WS_FLAG + 256 * 128))
        a("s_lshl_b32 s%d, s%d, 7" % (S_B0, S_J))
        a("s_lshl_b32 s3, s%d, 5" % S_W)
        a("s_add_u32 s%d, s%d, s3" % (S_B0, S_B0))
        a("s_mov_b32 s%d, 0" % S_RHO)
        for cc in range(4):
            a("s_add_u32 s3, s%d, %d" % (S_RHO, cc))
            a("s_and_b32 s3, s3, 3")
            a("s_lshl_b32 s3, s3, 3")
            a("s_add_u32 s3, s3, s%d" % S_B0)
            a("s_mul_i32 s3, s3, 3072")
            a("s_add_u32 s%d, s3, 0x%x" % (67 + cc, WS_Z2N))
        a("v_accvgpr_read_b32 v%d, a9" % self.G_BS)
        a("v_accvgpr_read_b32 v%d, a10" % (self.G_BS + 1))
        self.poll_flags_n(38, 8, 3, 16)
        self.stamp(8)
        self.stamp(26)
        vq = VQ(a)
        def zload(n):
            a("s_add_u32 s%d, s%d, %d" % (S_T0, 67 + n // 8, (n % 8) * 3072))
            for tau in range(3):
                f = (n % 8) * 3 + tau
                a("buffer_load_dwordx4 %s, v%d, s[%d:%d], s%d offen %s" % (self.ring_reg(f), self.G_VZ + tau, SRD_WS, SRD_WS + 3, S_T0, "" if "gplain" in self.exp else "sc1"))
                vq.issue(("z", n))
        NINIT = 4 if "gfast" in self.exp else 8
        for n in range(NINIT): zload(n)
        B = self.G_B
        SY_FREE = LDS_SY + 0
        SY_LAND = LDS_SY + 16
        a("s_lshl_b32 s3, s%d, 2" % S_W)
        a("s_add_u32 s3, s3, %d" % LDS_SY)
        a("v_mov_b32 v14, s3")
        def land_check(cnt):
            lab = a.newlabel("ld")
            a("s_mov_b32 s%d, 0" % S_SPIN)
            a.label(lab)
            a("ds_read_b32 v15, v14 offset:16")
            a("s_waitcnt lgkmcnt(0)")
            a("v_readfirstlane_b32 s%d, v15" % S_T1)
            a("s_add_u32 s%d, s%d, 1" % (S_SPIN, S_SPIN))
            a("s_cmp_gt_u32 s%d, 0x100000" % S_SPIN)
            a("s_cbranch_scc1 %s_x" % lab)
            a("s_cmp_lt_u32 s%d, %d" % (S_T1, cnt))
            a("s_cbranch_scc1 %s" % lab)
            a.label(lab + "_x")
        def bread(n, st):
            cc, k = divmod(n, 8)
            r = B + (n & 1) * 8 + st * 4
            return "ds_read_b128 v[%d:%d], v%d offset:%d" % (r, r + 3, 104 + k, (cc & 1) * 16384 + st * 8192)
        if "cprio" in self.exp: a("s_setprio 1")
        land_check(1)
        a(bread(0, 0)); a(bread(0, 1))
        for n in range(32):
            cc, k = divmod(n, 8)
            buf = n & 1
            vq.wait(("z", n))
            nxt = n + 1 < 32
            need_land = nxt and (n + 1) % 8 == 0 and "gnoland" not in self.exp
            a("s_waitcnt lgkmcnt(0)")
            if need_land and "gst" in self.exp: self.stamp({7: 16, 15: 18, 23: 21}[n])
            if need_land:
                if "landpf" in self.exp:
                    lab = a.newlabel("lp")
                    a("v_readfirstlane_b32 s%d, v15" % S_T1)
                    a("s_cmp_ge_u32 s%d, %d" % (S_T1, (n + 1) // 8 + 1))
                    a("s_cbranch_scc1 %s" % lab)
                    land_check((n + 1) // 8 + 1)
                    a.label(lab)
                else:
                    land_check((n + 1) // 8 + 1)
            if need_land and "gst" in self.exp: self.stamp({7: 17, 15: 20, 23: 22}[n])
            fill = []
            if nxt: fill += [bread(n + 1, 0), bread(n + 1, 1)]
            if "landpf" in self.exp and (n + 2) % 8 == 0 and n + 2 < 32: fill.append("ds_read_b32 v15, v14 offset:16")
            zl = []
            if n + 8 < 32:
                zl.append("s_add_u32 s%d, s%d, %d" % (S_T0, 67 + (n + 8) // 8, ((n + 8) % 8) * 3072))
            mi = 0
            for tau in range(3):
                for st in range(2):
                    D = (tau * 2 + st) * 16
                    Br = B + buf * 8 + st * 4
                    cc_ = "0" if n == 0 else "a[%d:%d]" % (D, D + 15)
                    a("v_mfma_f32_32x32x16_bf16 a[%d:%d], %s, v[%d:%d], %s" % (D, D + 15, self.ring_reg((n % 8) * 3 + tau), Br, Br + 3, cc_))
                    if mi == 0:
                        for f in fill: a(f)
                        if n + NINIT < 8: zload(n + NINIT)
                        for f in zl: a(f)
                    if st == 1 and n + 8 < 32 and "gnoz" not in self.exp:
                        f = (n % 8) * 3 + tau
                        a("buffer_load_dwordx4 %s, v%d, s[%d:%d], s%d offen %s" % (self.ring_reg(f), self.G_VZ + tau, SRD_WS, SRD_WS + 3, S_T0, "" if "gplain" in self.exp else "sc1"))
                        vq.issue(("z", n + 8))
                    mi += 1
            if k == 7 and cc < 2:
                a("v_mov_b32 v15, %d" % (cc + 1))
                a("ds_write_b32 v14, v15")
        if "cprio" in self.exp: a("s_setprio 0")
        self.stamp(27)
        self.stamp(10)
        self._gst_on = False
        self.g_reduce()

    def wsp_dma16(self, cc, sbase, slds):
        a = self.a
        for q in range(16):
            a("s_add_u32 s%d, s%d, %d" % (S_T0, 67 + cc, q * 4 * 4096))
            a("s_add_u32 m0, s%d, %d" % (slds, (cc & 1) * 16384 + q * 1024))
            a("buffer_load_dwordx4 v%d, s[%d:%d], s%d offen lds" % (16 + (q & 3), SRD_WSP, SRD_WSP + 3, S_T0))

    def wsp_voffsets(self, base):
        a = self.a
        L = V_LANE
        a("v_lshrrev_b32 v5, 4, v%d" % L)
        a("v_and_b32 v6, 15, v%d" % L)
        for qq in range(4):
            a("v_add_u32 v7, %d, v5" % (4 * qq))
            a("v_xor_b32 v7, v7, v6")
            a("v_lshlrev_b32 v7, 4, v7")
            a("v_lshl_add_u32 v%d, v5, 12, v7" % (base + qq))

    def stage_reg(self, unit, q):
        if unit < 2:
            r = unit * 64 + 4 * q
            return "a[%d:%d]" % (r, r + 3)
        r = 32 + 4 * q
        return "v[%d:%d]" % (r, r + 3)

    def stage_loads(self):
        out = []
        for unit in range(3):
            for q in range(16):
                out.append("s_add_u32 s%d, s%d, %d" % (S_T0, 67 + unit, q * 4 * 4096))
                out.append("buffer_load_dwordx4 %s, v%d, s[%d:%d], s%d offen" % (self.stage_reg(unit, q), 120 + (q & 3), SRD_WSP, SRD_WSP + 3, S_T0))
        return out

    def g_helper(self):
        a = self.a
        self._gst_on = True
        L = V_LANE
        self.wsp_voffsets(16)
        a("s_lshl_b32 s%d, s%d, 18" % (S_B0, S_MB))
        a("s_lshl_b32 s3, s%d, 10" % S_HW)
        a("s_add_u32 s%d, s%d, s3" % (S_B0, S_B0))
        a("s_mov_b32 s70, s%d" % S_B0)
        a("s_add_u32 s71, s%d, 256" % S_B0)
        a("s_lshl_b32 s%d, s%d, 15" % (S_T3, S_HW))
        for cc in range(2):
            for q in range(16):
                a("s_add_u32 s%d, s%d, %d" % (S_T0, 70 + cc, q * 4 * 4096))
                a("s_add_u32 m0, s%d, %d" % (S_T3, cc * 16384 + q * 1024))
                a("buffer_load_dwordx4 v%d, s[%d:%d], s%d offen lds" % (16 + (q & 3), SRD_WSP, SRD_WSP + 3, S_T0))
        a("s_lshl_b32 s3, s%d, 2" % S_HW)
        a("s_add_u32 s3, s3, %d" % LDS_SY)
        a("v_mov_b32 v12, s3")
        def wait_free(off, cnt):
            lab = a.newlabel("fr")
            a("s_mov_b32 s%d, 0" % S_SPIN)
            a.label(lab)
            a("ds_read_b32 v5, v12 offset:%d" % off)
            a("s_waitcnt lgkmcnt(0)")
            a("v_readfirstlane_b32 s%d, v5" % S_T0)
            a("s_add_u32 s%d, s%d, 1" % (S_SPIN, S_SPIN))
            a("s_cmp_gt_u32 s%d, 0x100000" % S_SPIN)
            a("s_cbranch_scc1 %s_x" % lab)
            a("s_cmp_lt_u32 s%d, %d" % (S_T0, cnt))
            a("s_cbranch_scc0 %s_x" % lab)
            a("s_sleep 1")
            a("s_branch %s" % lab)
            a.label(lab + "_x")
        a("s_cmp_ge_u32 s%d, 2" % S_HW)
        a("s_cbranch_scc1 L_gh_fft")
        for (n, val) in ((16, 1), (0, 2)):
            a("s_waitcnt vmcnt(%d)" % n)
            a("v_mov_b32 v6, %d" % val)
            a("ds_write_b32 v12, v6 offset:16")
        a("v_lshlrev_b32 v13, 4, v%d" % L)
        a("s_lshl_b32 s3, s%d, 15" % S_HW)
        a("v_add_u32 v13, s3, v13")
        a("v_add_u32 v14, 65536, v13")
        def put(unit, vaddr, slot, landoff, cnt):
            for q in range(16 if "noput" not in self.exp else 0):
                a("ds_write_b128 v%d, %s offset:%d" % (vaddr, self.stage_reg(unit, q), slot * 16384 + q * 1024))
            a("v_mov_b32 v6, %d" % cnt)
            a("s_waitcnt lgkmcnt(0)")
            a("ds_write_b32 v12, v6 offset:%d" % landoff)
        wait_free(0, 1); self.stamp(1) if "gst" in self.exp else None; put(0, 13, 0, 16, 3)
        if "gst" in self.exp: self.stamp(2)
        for q in range(16):
            a("s_add_u32 s%d, s69, %d" % (S_T0, 256 + q * 4 * 4096))
            a("buffer_load_dwordx4 a[%d:%d], v%d, s[%d:%d], s%d offen" % (4 * q, 4 * q + 3, 120 + (q & 3), SRD_WSP, SRD_WSP + 3, S_T0))
        if "gst" in self.exp: self.stamp(3)
        wait_free(8, 1); put(2, 14, 0, 24, 3)
        if "gst" in self.exp: self.stamp(4)
        wait_free(0, 2)
        if "gst" in self.exp: self.stamp(5)
        put(1, 13, 1, 16, 4)
        if "gst" in self.exp: self.stamp(7)
        wait_free(8, 2)
        a("s_waitcnt vmcnt(0)")
        put(0, 14, 1, 24, 4)
        a("s_branch L_gh_done")
        a.label("L_gh_fft")
        for (n, val) in ((16, 1), (0, 2)):
            a("s_waitcnt vmcnt(%d)" % n)
            a("v_mov_b32 v6, %d" % val)
            a("ds_write_b32 v12, v6 offset:16")
        if "nofft" not in self.exp:
            if "fftprio0" not in self.exp: a("s_setprio 3")
            self.fft()
            a("s_setprio 0")
        a("s_waitcnt vmcnt(0)")
        a("s_sub_u32 s%d, s%d, 2" % (S_T1, S_HW))
        self.flag_store(3, 0, S_T1)
        self.stamp(19)
        a.label("L_gh_done")
        self.stamp(9)
        self._gst_on = False
        a("v_lshrrev_b32 v5, 3, v%d" % L)
        a("v_and_b32 v6, 7, v%d" % L)
        a("v_bfe_u32 v7, v%d, 4, 1" % L)
        a("v_lshlrev_b32 v7, 2, v7")
        a("v_xor_b32 v6, v6, v7")
        a("v_lshlrev_b32 v6, 4, v6")
        a("v_lshl_add_u32 v9, v5, 10, v6")
        a("s_lshl_b32 s3, s%d, 7" % S_J)
        a("v_add_u32 v9, s3, v9")
        def wo(g):
            a("s_mov_b32 m0, %d" % (LDS_WO + g * 1024))
            a("s_mov_b32 s%d, %d" % (S_T0, g * 8192))
            a("buffer_load_dwordx4 v9, s[%d:%d], s%d offen lds" % (SRD_WOUT, SRD_WOUT + 3, S_T0))
        early = {2: list(range(56, 64)) + list(range(75, 81)), 3: list(range(64, 72)) + list(range(81, 88))}
        done = set(early[2]) | set(early[3])
        rest = [g for g in range(88) if g not in done]
        assert LDS_SY + 64 <= LDS_WO + 75 * 1024 and LDS_AT >= LDS_WO + 75 * 1024
        for hw in (2, 3):
            lab = a.newlabel("wo")
            a("s_cmp_lg_u32 s%d, %d" % (S_HW, hw))
            a("s_cbranch_scc1 %s" % lab)
            for g in early[hw]: wo(g)
            a.label(lab)
        a("s_barrier")
        n = len(rest)
        per = (n + 3) // 4
        for hw in range(4):
            mine = rest[hw * per:(hw + 1) * per]
            lab = a.newlabel("wo")
            a("s_cmp_lg_u32 s%d, %d" % (S_HW, hw))
            a("s_cbranch_scc1 %s" % lab)
            for g in mine: wo(g)
            a.label(lab)
        a("s_barrier")
        self.final_pre()
        a("s_waitcnt vmcnt(0)")
        self.stamp(23)
        a("s_barrier")
        self.y_to_lds()
        a("s_barrier")
        self.stamp(6)
        self.final_h()

    def fft(self):
        a = self.a
        a("v_accvgpr_read_b32 v10, a60")
        a("v_accvgpr_read_b32 v11, a61")
        a("s_lshl_b32 s3, s%d, 5" % S_J)
        a("v_add_u32 v12, s3, v%d" % V_LANE)
        a("v_lshlrev_b32 v12, 7, v12")
        a("v_add_u32 v12, 0x%x, v12" % (WS_FLAG + 256 * 128 + 12))
        self.poll_flags_n(12, 32, 1, 16)
        a("v_lshlrev_b32 v13, 4, v%d" % V_LANE)
        a("s_lshl_b32 s3, s%d, 13" % S_L)
        a("s_add_u32 s3, s3, 0x%x" % WS_AB)
        X = 32
        for i in range(8):
            a("buffer_load_dwordx4 v[%d:%d], v13, s[%d:%d], s3 offen sc1" % (X + 4 * i, X + 4 * i + 3, SRD_WS, SRD_WS + 3))
            if i < 7: a("s_add_u32 s3, s3, 1024")
        a("s_sub_u32 s%d, s%d, 2" % (S_T1, S_HW))
        a("s_lshl_b32 s%d, s%d, 13" % (S_T2, S_T1))
        a("s_add_u32 s%d, s%d, %d" % (S_T2, S_T2, LDS_FX))
        a("v_add_u32 v14, s%d, v13" % S_T2)
        a("v_bfe_u32 v7, v%d, 2, 2" % V_LANE)
        a("v_lshl_add_u32 v7, v%d, 3, v7" % V_H)
        a("v_lshlrev_b32 v7, 7, v7")
        a("v_bfe_u32 v8, v%d, 4, 1" % V_LANE)
        a("v_lshlrev_b32 v8, 5, v8")
        a("v_and_b32 v9, 1, v%d" % V_LANE)
        a("v_lshl_add_u32 v8, v9, 4, v8")
        a("v_bfe_u32 v9, v%d, 1, 1" % V_LANE)
        a("v_lshl_add_u32 v8, v9, 3, v8")
        a("v_add_u32 v7, v7, v8")
        a("v_add_u32 v15, s%d, v7" % S_T2)
        a("s_waitcnt vmcnt(0)")
        for i in range(8):
            a("ds_write_b128 v14, v[%d:%d] offset:%d" % (X + 4 * i, X + 4 * i + 3, i * 1024))
        URE, UIM, A1, TC, TS, A2 = 32, 48, 16, 64, 80, 104
        D2 = 64
        def mm(D, A, B, first, dfile="v", afile="v", bfile="a"):
            a("v_mfma_f32_32x32x16_bf16 %s[%d:%d], %s[%d:%d], %s[%d:%d], %s" % (dfile, D, D + 15, afile, A, A + 3, bfile, B, B + 3, "0" if first else "%s[%d:%d]" % (dfile, D, D + 15)))
        for kt in range(2):
            a("v_mul_f32 v12, 0x%x, v10" % (f2u(1.0 / 2048)))
            a("v_mul_f32 v13, v12, v11")
            if kt == 0: a("s_waitcnt lgkmcnt(0)")
            for ks in range(4):
                for q in range(2):
                    r = A1 + 4 * ks + 2 * q
                    a("ds_read_b64_tr_b16 v[%d:%d], v15 offset:%d" % (r, r + 1, (ks >> 1) * 4096 + (ks & 1) * 2048 + q * 512 + kt * 64))
            for half in range(2):
                self.angles([32 * kt + 16 * half + i for i in range(8)], 12, 13, 120)
                for i in range(8):
                    a("v_cos_f32 v%d, v%d" % (TC + 8 * half + i, 120 + i))
                    a("v_sin_f32 v%d, v%d" % (TS + 8 * half + i, 120 + i))
            a("s_waitcnt lgkmcnt(0)")
            FRE, FIM, NFIM = 0, 8, 16
            mm(URE, A1, FRE, True); mm(UIM, A1, FIM, True)
            mm(URE, A1 + 4, FRE + 4, False); mm(UIM, A1 + 4, FIM + 4, False)
            mm(URE, A1 + 8, NFIM, False); mm(UIM, A1 + 8, FRE, False)
            mm(URE, A1 + 12, NFIM + 4, False); mm(UIM, A1 + 12, FRE + 4, False)
            for p in range(8):
                t0 = 96 + (p % 2) * 4
                for e in range(2):
                    re, im, c, s_ = URE + 2 * p + e, UIM + 2 * p + e, TC + 2 * p + e, TS + 2 * p + e
                    a("v_mul_f32 v%d, v%d, v%d" % (t0 + e, im, s_))
                    a("v_mul_f32 v%d, v%d, v%d" % (t0 + 2 + e, re, s_))
                    a("v_fmac_f32 v%d, v%d, v%d" % (t0 + e, re, c))
                    a("v_fma_f32 v%d, v%d, v%d, -v%d" % (t0 + 2 + e, im, c, t0 + 2 + e))
                a("v_cvt_pk_bf16_f32 v%d, v%d, v%d" % (A2 + p, t0, t0 + 1))
                a("v_cvt_pk_bf16_f32 v%d, v%d, v%d" % (A2 + 8 + p, t0 + 2, t0 + 3))
            G = 24 + 16 * kt
            mm(D2, A2, G, kt == 0, dfile="a"); mm(D2, A2 + 4, G + 4, False, dfile="a")
            mm(D2, A2 + 8, G + 8, False, dfile="a"); mm(D2, A2 + 12, G + 12, False, dfile="a")
        a("v_lshlrev_b32 v6, 7, v%d" % V_JL)
        a("v_lshl_add_u32 v6, v%d, 6, v6" % V_H)
        a("v_add_u32 v6, s%d, v6" % S_T2)
        for q in range(4):
            a("ds_write_b128 v6, a[%d:%d] offset:%d" % (D2 + 4 * q, D2 + 4 * q + 3, q * 16))
        a("s_waitcnt lgkmcnt(0)")
        for q in range(4):
            a("ds_read_b128 v[%d:%d], v14 offset:%d" % (32 + 4 * q, 35 + 4 * q, q * 1024))
        a("s_cmp_eq_u32 s%d, 0" % S_L)
        a("s_cselect_b32 s%d, 256, s%d" % (S_T0, S_L))
        a("s_lshl_b32 s%d, s%d, 13" % (S_T0, S_T0))
        a("s_lshl_b32 s3, s%d, 12" % S_T1)
        a("s_add_u32 s3, s3, s%d" % S_T0)
        a("s_add_u32 s3, s3, 0x%x" % WS_YT)
        a("v_lshlrev_b32 v6, 4, v%d" % V_LANE)
        a("v_lshlrev_b32 v7, 4, v%d" % V_LANE)
        a("v_sub_u32 v7, %d, v7" % (4096 - 12))
        a("v_add_u32 v7, s%d, v7" % S_T2)
        for i in range(4):
            for e in range(4):
                off = 12 - 4 * e - 1024 * i
                if off >= 0: a("ds_read_b32 v%d, v7 offset:%d" % (48 + 4 * i + e, off))
                else: a("ds_read_b32 v%d, v%d offset:%d" % (48 + 4 * i + e, 8, off + 3072))
            if i == 0: a("v_subrev_u32 v8, 3072, v7")
        a("s_waitcnt lgkmcnt(15)")
        a("s_waitcnt lgkmcnt(0)")
        for q in range(4):
            a("buffer_store_dwordx4 v[%d:%d], v6, s[%d:%d], s3 offen offset:%d sc1" % (32 + 4 * q, 35 + 4 * q, SRD_WS, SRD_WS + 3, q * 1024))
        a("s_cmp_eq_u32 s%d, 0" % S_L)
        a("s_cbranch_scc1 L_fft_nomir")
        a("s_sub_u32 s%d, 512, s%d" % (S_T0, S_L))
        a("s_lshl_b32 s%d, s%d, 13" % (S_T0, S_T0))
        a("s_xor_b32 s3, s%d, 1" % S_T1)
        a("s_lshl_b32 s3, s3, 12")
        a("s_add_u32 s3, s3, s%d" % S_T0)
        a("s_add_u32 s3, s3, 0x%x" % WS_YT)
        a("s_mov_b64 exec, 0xfffffffffffffffe" if False else "s_mov_b64 exec, -2")
        a("buffer_store_dwordx4 v[48:51], v6, s[%d:%d], s3 offen sc1" % (SRD_WS, SRD_WS + 3))
        a("s_mov_b64 exec, 1")
        a("buffer_store_dword v49, v6, s[%d:%d], s3 offen offset:4 sc1" % (SRD_WS, SRD_WS + 3))
        a("buffer_store_dwordx2 v[50:51], v6, s[%d:%d], s3 offen offset:8 sc1" % (SRD_WS, SRD_WS + 3))
        a("s_mov_b64 exec, -1")
        for q in range(1, 4):
            a("buffer_store_dwordx4 v[%d:%d], v6, s[%d:%d], s3 offen offset:%d sc1" % (48 + 4 * q, 51 + 4 * q, SRD_WS, SRD_WS + 3, q * 1024))
        a("s_lshl_b32 s3, s%d, 12" % S_T1)
        a("s_add_u32 s3, s3, s%d" % S_T0)
        a("s_add_u32 s3, s3, 0x%x" % WS_YT)
        a("s_mov_b64 exec, 1")
        a("buffer_store_dword v32, v6, s[%d:%d], s3 offen sc1" % (SRD_WS, SRD_WS + 3))
        a("s_mov_b64 exec, -1")
        a.label("L_fft_nomir")

    def g_reduce(self):
        a = self.a
        L16 = self.G_L16
        a("s_barrier")
        self.stamp(16)
        for tau in (1, 2, 0):
            if tau == 0:
                a("s_cmp_lg_u32 s%d, 3" % S_W)
                a("s_cbranch_scc1 L_exp_done")
            a("s_add_u32 s%d, s%d, %d" % (S_T0, S_W, tau))
            a("s_cmp_ge_u32 s%d, 3" % S_T0)
            a("s_cselect_b32 s%d, 3, 0" % S_T1)
            a("s_sub_u32 s%d, s%d, s%d" % (S_T0, S_T0, S_T1))
            a("s_sub_u32 s%d, s%d, s%d" % (S_T1, S_W, S_T0))
            a("s_sub_u32 s%d, s%d, 1" % (S_T1, S_T1))
            a("s_and_b32 s%d, s%d, 3" % (S_T1, S_T1))
            a("s_mul_i32 s%d, s%d, 3" % (S_T0, S_T0))
            a("s_add_u32 s%d, s%d, s%d" % (S_T0, S_T0, S_T1))
            a("s_lshl_b32 s%d, s%d, 13" % (S_T0, S_T0))
            a("v_add_u32 v5, s%d, v%d" % (S_T0, L16))
            for st in range(2):
                for q in range(4):
                    r = (tau * 2 + st) * 16 + 4 * q
                    a("ds_write_b128 v5, a[%d:%d] offset:%d" % (r, r + 3, st * 4096 + q * 1024))
        a.label("L_exp_done")
        a("s_waitcnt lgkmcnt(0)")
        self.stamp(17)
        a("s_barrier")
        self.stamp(11)
        a("s_cmp_eq_u32 s%d, 3" % S_W)
        a("s_cbranch_scc1 L_h_done")
        G = 40
        I = 72
        a("s_mul_i32 s%d, s%d, %d" % (S_T0, S_W, 3 * 8192))
        a("v_add_u32 v5, s%d, v%d" % (S_T0, L16))
        for st in range(2):
            for q in range(4):
                r = G + st * 16 + 4 * q
                a("ds_read_b128 v[%d:%d], v5 offset:%d" % (r, r + 3, 0 * 8192 + st * 4096 + q * 1024))
        for st in range(2):
            for q in range(4):
                r = I + st * 16 + 4 * q
                a("ds_read_b128 v[%d:%d], v5 offset:%d" % (r, r + 3, 1 * 8192 + st * 4096 + q * 1024))
        a("s_waitcnt lgkmcnt(0)")
        for p in range(16): a("v_pk_add_f32 v[%d:%d], v[%d:%d], v[%d:%d]" % (G + 2 * p, G + 2 * p + 1, G + 2 * p, G + 2 * p + 1, I + 2 * p, I + 2 * p + 1))
        for st in range(2):
            for q in range(4):
                r = I + st * 16 + 4 * q
                a("ds_read_b128 v[%d:%d], v5 offset:%d" % (r, r + 3, 2 * 8192 + st * 4096 + q * 1024))
        for i in range(0, 32, 8):
            for k in range(8): a("v_accvgpr_read_b32 v%d, a%d" % (16 + k, i + k))
            for p in range(4): a("v_pk_add_f32 v[%d:%d], v[%d:%d], v[%d:%d]" % (G + i + 2 * p, G + i + 2 * p + 1, G + i + 2 * p, G + i + 2 * p + 1, 16 + 2 * p, 16 + 2 * p + 1))
        a("s_waitcnt lgkmcnt(0)")
        for p in range(16): a("v_pk_add_f32 v[%d:%d], v[%d:%d], v[%d:%d]" % (G + 2 * p, G + 2 * p + 1, G + 2 * p, G + 2 * p + 1, I + 2 * p, I + 2 * p + 1))
        self.stamp(18)
        for st in range(2): a("v_lshlrev_b32 v%d, 16, v%d" % (self.G_BS + st, self.G_BS + st))
        for st in range(2):
            for r in range(8):
                src = self.C_Z1P + 8 * st + r
                g = G + 16 * st + 2 * r
                t = 16 + 2 * (r % 4)
                a("v_lshlrev_b32 v%d, 16, v%d" % (t, src))
                a("v_and_b32 v%d, 0xffff0000, v%d" % (t + 1, src))
                sel = "op_sel:[0,%d] op_sel_hi:[1,%d]" % (st, st)
                a("v_pk_add_f32 v[%d:%d], v[%d:%d], v[%d:%d] %s" % (g, g + 1, g, g + 1, self.G_BS, self.G_BS + 1, sel))
                a("v_pk_mul_f32 v[%d:%d], v[%d:%d], v[%d:%d]" % (g, g + 1, g, g + 1, t, t + 1))
                a("v_cvt_pk_bf16_f32 v%d, v%d, v%d" % (I + 8 * st + r, g, g + 1))
        a("s_mul_i32 s%d, s%d, 96" % (S_T0, S_MB))
        a("s_mul_i32 s%d, s%d, 6" % (S_T1, S_J))
        a("s_add_u32 s%d, s%d, s%d" % (S_T0, S_T0, S_T1))
        a("s_lshl_b32 s%d, s%d, 1" % (S_T1, S_W))
        a("s_add_u32 s%d, s%d, s%d" % (S_T0, S_T0, S_T1))
        a("s_lshl_b32 s%d, s%d, 10" % (S_T0, S_T0))
        a("s_add_u32 s%d, s%d, 0x%x" % (S_T0, S_T0, WS_H))
        for st in range(2):
            for Q in range(2):
                r = I + 8 * st + 4 * Q
                a("s_add_u32 s%d, s%d, %d" % (S_T1, S_T0, (st * 48 + Q) * 1024))
                if "nohstore" not in self.exp: a("buffer_store_dwordx4 v[%d:%d], v%d, s[%d:%d], s%d offen sc1" % (r, r + 3, L16, SRD_WS, SRD_WS + 3, S_T1))
                if "hdouble" in self.exp: a("buffer_store_dwordx4 v[%d:%d], v%d, s[%d:%d], s%d offen" % (r, r + 3, L16, SRD_WS, SRD_WS + 3, S_T1))
        self.stamp(20)
        a("s_waitcnt vmcnt(0)")
        self.stamp(21)
        self.flag_store(2, 0, S_W)
        a.label("L_h_done")
        self.o_pre()
        self.stamp(12)

    def o_pre(self):
        a = self.a
        a("s_lshr_b32 s%d, s%d, 1" % (S_T0, S_W))
        a("s_lshl_b32 s3, s%d, 2" % S_T0)
        a("v_add_u32 v40, s3, v%d" % V_LANE)
        a("v_lshlrev_b32 v40, 5, v40")
        a("v_add_u32 v40, s%d, v40" % S_MB)
        a("v_lshlrev_b32 v40, 7, v40")
        a("v_add_u32 v40, 0x%x, v40" % (WS_FLAG + 2 * 256 * 128))
        a("v_bfe_u32 v5, v%d, 2, 2" % V_LANE)
        a("v_lshl_add_u32 v5, v%d, 3, v5" % V_H)
        a("v_lshlrev_b32 v5, 7, v5")
        a("v_bfe_u32 v6, v%d, 4, 1" % V_LANE)
        a("v_lshlrev_b32 v6, 1, v6")
        a("v_and_b32 v7, 1, v%d" % V_LANE)
        a("v_or_b32 v6, v6, v7")
        a("v_bfe_u32 v7, v%d, 3, 1" % V_LANE)
        a("v_lshlrev_b32 v7, 2, v7")
        a("v_xor_b32 v6, v6, v7")
        a("s_lshl_b32 s3, s%d, 2" % S_T0)
        a("v_xor_b32 v6, s3, v6")
        a("v_bfe_u32 v7, v%d, 1, 1" % V_LANE)
        a("v_lshlrev_b32 v7, 3, v7")
        a("v_add_u32 v5, v5, v7")
        a("s_mul_i32 s3, s%d, %d" % (S_T0, 352 * 128))
        a("s_add_u32 s3, s3, %d" % LDS_WO)
        a("v_add_u32 v5, s3, v5")
        WA = 52
        a("v_lshl_add_u32 v%d, v6, 4, v5" % WA)
        a("v_xor_b32 v6, 4, v6")
        a("v_lshl_add_u32 v%d, v6, 4, v5" % (WA + 1))
        a("s_cmp_eq_u32 s%d, 0" % S_T0)
        a("s_cselect_b32 s3, 8, 0")
        a("s_add_u32 s3, s3, 256")
        a("s_lshl_b32 s3, s3, 7")
        a("v_add_u32 v%d, s3, v%d" % (WA + 2, WA))
        a("v_add_u32 v%d, s3, v%d" % (WA + 3, WA + 1))
        a("s_and_b32 s%d, s%d, 1" % (S_T1, S_W))
        a("s_lshl_b32 s3, s%d, 1" % S_MB)
        a("s_add_u32 s3, s3, s%d" % S_T1)
        a("s_mul_i32 s3, s3, 48")
        a("s_mul_i32 s%d, s%d, 24" % (S_B0, S_T0))
        a("s_add_u32 s%d, s%d, s3" % (S_B0, S_B0))
        a("s_lshl_b32 s%d, s%d, 10" % (S_B0, S_B0))
        a("s_add_u32 s%d, s%d, 0x%x" % (S_B0, S_B0, WS_H))

    def phase_o(self):
        a = self.a
        L16 = self.G_L16
        WA = 52
        self.poll_flags_n(40, 4, 3, 60)
        self.stamp(13)
        vq = VQ(a)
        NUP = 8
        def hload(n):
            r = 32 + 4 * n
            a("s_add_u32 s%d, s%d, %d" % (S_T0, S_B0, n * 1024))
            a("buffer_load_dwordx4 a[%d:%d], v%d, s[%d:%d], s%d offen sc1" % (r, r + 3, L16, SRD_WS, SRD_WS + 3, S_T0)); vq.issue(("h", n))
        for n in range(NUP): hload(n)
        a("s_barrier")
        SETS = [16, 24, 60, 68]
        def areads(n):
            jj, rem = divmod(n, 6); ft, Q = divmod(rem, 2)
            out = []
            for tp in range(2):
                base = WA + tp if jj < 3 else WA + 2 + tp
                off = ((88 * jj if jj < 3 else 0) + 32 * ft + 16 * Q) * 128
                r = SETS[n % 4] + tp * 4
                out.append("ds_read_b64_tr_b16 v[%d:%d], v%d offset:%d" % (r, r + 1, base, off))
                out.append("ds_read_b64_tr_b16 v[%d:%d], v%d offset:%d" % (r + 2, r + 3, base, off + 512))
            return out
        for n in range(3):
            for r in areads(n): a(r)
        for n in range(24):
            vq.wait(("h", n))
            later = min(2, 23 - n)
            a("s_waitcnt lgkmcnt(%d)" % (4 * later))
            rd = areads(n + 3) if n + 3 < 24 else []
            for tp in range(2):
                D = tp * 16
                Ar = SETS[n % 4] + tp * 4
                Br = 32 + 4 * n
                cc = "0" if n == 0 else "a[%d:%d]" % (D, D + 15)
                a("v_mfma_f32_32x32x16_bf16 a[%d:%d], v[%d:%d], a[%d:%d], %s" % (D, D + 15, Ar, Ar + 3, Br, Br + 3, cc))
                for r in rd[2 * tp:2 * tp + 2]: a(r)
                if tp == 0 and n + NUP < 24: hload(n + NUP)
        self.stamp(14)
        a("s_lshl_b32 s3, s%d, 13" % S_W)
        a("v_add_u32 v58, s3, v%d" % L16)
        for tp in range(2):
            for q in range(4):
                a("ds_write_b128 v58, a[%d:%d] offset:%d" % (16 * tp + 4 * q, 16 * tp + 4 * q + 3, tp * 4096 + q * 1024))
        a("s_waitcnt lgkmcnt(0)")
        a("s_barrier")

    def final_pre(self):
        a = self.a
        a("s_lshr_b32 s%d, s%d, 1" % (S_T0, S_HW))
        a("s_lshl_b32 s3, s%d, 6" % S_J)
        a("s_lshl_b32 s%d, s%d, 5" % (S_T2, S_T0))
        a("s_add_u32 s%d, s3, s%d" % (S_T2, S_T2))
        a("s_and_b32 s%d, s%d, 1" % (S_T1, S_HW))
        a("s_lshl_b32 s3, s%d, 6" % S_MB)
        a("s_lshl_b32 s%d, s%d, 5" % (S_T3, S_T1))
        a("s_add_u32 s3, s3, s%d" % S_T3)
        a("v_add_u32 v41, s3, v%d" % V_SIG)
        a("v_lshlrev_b32 v42, 10, v41")
        a("v_lshl_add_u32 v42, v%d, 4, v42" % V_H)
        a("s_lshl_b32 s3, s%d, 1" % S_T2)
        a("v_add_u32 v42, s3, v42")
        XR = 44
        a("buffer_load_dwordx4 v[%d:%d], v42, s[%d:%d], 0 offen" % (XR, XR + 3, SRD_X, SRD_X + 3))
        a("buffer_load_dwordx4 v[%d:%d], v42, s[%d:%d], 0 offen offset:32" % (XR + 4, XR + 7, SRD_X, SRD_X + 3))
        a("s_lshl_b32 s3, s%d, 6" % S_J)
        a("s_lshl_b32 s%d, s%d, 4" % (S_T0, S_HW))
        a("s_add_u32 s%d, s3, s%d" % (S_T0, S_T0))
        a("v_add_u32 v5, s%d, v%d" % (S_T0, V_LANE))
        a("v_sub_u32 v6, 512, v5")
        a("v_cmp_lt_u32 vcc, 256, v5")
        a("v_cndmask_b32 v6, v5, v6, vcc")
        a("v_and_b32 v6, 255, v6")
        a("v_lshlrev_b32 v43, 7, v6")
        a("v_add_u32 v43, 0x%x, v43" % (WS_FLAG + 3 * 256 * 128))
        a("v_lshrrev_b32 v5, 4, v%d" % V_LANE)
        a("v_add_u32 v5, s%d, v5" % S_T0)
        a("v_and_b32 v6, 15, v%d" % V_LANE)
        a("v_lshlrev_b32 v6, 4, v6")
        a("v_lshl_add_u32 v56, v5, 13, v6")
        a("v_mov_b32 v7, 0x%x" % OOB)
        a("v_cmp_eq_u32 vcc, 0, v5")
        a("v_cndmask_b32 v57, v56, v7, vcc")
        a("s_lshl_b32 s%d, s%d, 8" % (S_T3, S_MB))
        a("s_add_u32 s%d, s%d, 0x%x" % (S_T3, S_T3, WS_YT))
        self.poll_flags_n(43, 16, 2, 60)
        for i in range(4):
            a("buffer_load_dwordx4 v[%d:%d], v%d, s[%d:%d], s%d offen sc1" % (64 + 4 * i, 67 + 4 * i, 57 if i == 0 else 56, SRD_WS, SRD_WS + 3, S_T3))
            if i < 3: a("s_add_u32 s%d, s%d, %d" % (S_T3, S_T3, 4 * 8192))

    def y_to_lds(self):
        a = self.a
        a("v_lshrrev_b32 v5, 4, v%d" % V_LANE)
        a("v_and_b32 v6, 15, v%d" % V_LANE)
        a("v_lshlrev_b32 v6, 4, v6")
        a("v_lshl_add_u32 v5, v5, 8, v6")
        a("s_lshl_b32 s3, s%d, 12" % S_HW)
        a("s_add_u32 s3, s3, %d" % LDS_YS)
        a("v_add_u32 v5, s3, v5")
        a("s_waitcnt vmcnt(0)")
        for i in range(4):
            a("ds_write_b128 v5, v[%d:%d] offset:%d" % (64 + 4 * i, 67 + 4 * i, i * 1024))
        a("s_waitcnt lgkmcnt(0)")

    def final_h(self):
        a = self.a
        XR, Y, O = 44, 64, 80
        a("v_lshlrev_b32 v10, 4, v%d" % V_LANE)
        a("s_lshl_b32 s3, s%d, 13" % S_HW)
        a("v_add_u32 v11, s3, v10")
        a("s_xor_b32 s3, s%d, 2" % S_HW)
        a("s_lshl_b32 s3, s3, 13")
        a("s_add_u32 s3, s3, 4096")
        a("v_add_u32 v12, s3, v10")
        for q in range(4):
            a("ds_read_b128 v[%d:%d], v11 offset:%d" % (O + 4 * q, O + 4 * q + 3, q * 1024))
        for q in range(4):
            a("ds_read_b128 v[%d:%d], v12 offset:%d" % (96 + 4 * q, 96 + 4 * q + 3, q * 1024))
        a("s_lshr_b32 s%d, s%d, 1" % (S_T0, S_HW))
        a("s_lshl_b32 s3, s%d, 13" % S_T0)
        a("s_and_b32 s%d, s%d, 1" % (S_T1, S_HW))
        a("s_lshl_b32 s%d, s%d, 7" % (S_T1, S_T1))
        a("s_add_u32 s3, s3, s%d" % S_T1)
        a("s_add_u32 s3, s3, %d" % LDS_YS)
        a("v_lshlrev_b32 v5, 11, v%d" % V_H)
        a("v_lshl_add_u32 v5, v%d, 2, v5" % V_SIG)
        a("v_add_u32 v5, s3, v5")
        for rho in range(16):
            k = 16 * (rho >> 3) + (rho & 7)
            a("ds_read_b32 v%d, v5 offset:%d" % (Y + rho, k * 256))
        nl2e = f2u(-math.log2(math.e))
        a("s_mov_b32 s%d, 0x%x" % (S_K2, nl2e))
        a("s_mov_b32 s%d, 0x%x" % (S_K2 + 1, nl2e))
        a("s_and_b32 s%d, s%d, 1" % (S_T1, S_HW))
        a("s_lshl_b32 s3, s%d, 5" % S_T1)
        a("v_add_u32 v13, s3, v%d" % V_SIG)
        a("v_and_b32 v14, 7, v13")
        a("s_lshr_b32 s%d, s%d, 1" % (S_T0, S_HW))
        a("s_lshl_b32 s3, s%d, 2" % S_T0)
        a("v_add_u32 v15, s3, v%d" % V_H)
        a("v_xor_b32 v14, v14, v15")
        a("v_lshlrev_b32 v14, 4, v14")
        a("v_lshl_add_u32 v14, v13, 7, v14")
        a("v_add_u32 v14, 32768, v14")
        a("s_waitcnt lgkmcnt(0)")
        for p in range(8):
            a("v_pk_add_f32 v[%d:%d], v[%d:%d], v[%d:%d]" % (O + 2 * p, O + 2 * p + 1, O + 2 * p, O + 2 * p + 1, 96 + 2 * p, 96 + 2 * p + 1))
        for p in range(8):
            o = O + 2 * p; t = 96 + 2 * p
            a("v_pk_mul_f32 v[%d:%d], v[%d:%d], s[%d:%d]" % (t, t + 1, o, o + 1, S_K2, S_K2 + 1))
            a("v_exp_f32 v%d, v%d" % (t, t))
            a("v_exp_f32 v%d, v%d" % (t + 1, t + 1))
            a("v_pk_add_f32 v[%d:%d], v[%d:%d], 1.0 op_sel_hi:[1,0]" % (t, t + 1, t, t + 1))
            a("v_rcp_f32 v%d, v%d" % (t, t))
            a("v_rcp_f32 v%d, v%d" % (t + 1, t + 1))
            a("v_pk_mul_f32 v[%d:%d], v[%d:%d], v[%d:%d]" % (o, o + 1, o, o + 1, t, t + 1))
        for p in range(8):
            o = O + 2 * p; t = 96 + 2 * p; y = Y + 2 * p; xr = XR + p
            a("v_lshlrev_b32 v%d, 16, v%d" % (t, xr))
            a("v_and_b32 v%d, 0xffff0000, v%d" % (t + 1, xr))
            a("v_pk_fma_f32 v[%d:%d], v[%d:%d], v[%d:%d], v[%d:%d]" % (t, t + 1, y, y + 1, o, o + 1, t, t + 1))
            a("v_cvt_pk_bf16_f32 v%d, v%d, v%d" % (112 + p, t, t + 1))
        a("ds_write_b128 v14, v[112:115]")
        a("v_xor_b32 v14, 32, v14")
        a("ds_write_b128 v14, v[116:119]")
        a("s_waitcnt lgkmcnt(0)")
        a("s_barrier")
        a("v_lshrrev_b32 v5, 3, v%d" % V_LANE)
        a("v_and_b32 v6, 7, v%d" % V_LANE)
        a("v_xor_b32 v7, v5, v6")
        a("v_lshlrev_b32 v7, 4, v7")
        a("v_lshl_add_u32 v7, v5, 7, v7")
        a("s_lshl_b32 s3, s%d, 11" % S_HW)
        a("s_add_u32 s3, s3, 32768")
        a("v_add_u32 v7, s3, v7")
        a("ds_read_b128 v[16:19], v7")
        a("ds_read_b128 v[20:23], v7 offset:1024")
        a("v_lshlrev_b32 v8, 10, v5")
        a("v_lshl_add_u32 v8, v6, 4, v8")
        a("s_lshl_b32 s%d, s%d, 6" % (S_T0, S_MB))
        a("s_lshl_b32 s3, s%d, 4" % S_HW)
        a("s_add_u32 s%d, s%d, s3" % (S_T0, S_T0))
        a("s_lshl_b32 s%d, s%d, 10" % (S_T0, S_T0))
        a("s_lshl_b32 s3, s%d, 7" % S_J)
        a("s_add_u32 s%d, s%d, s3" % (S_T0, S_T0))
        a("s_waitcnt lgkmcnt(0)")
        fl = "" if "outplain" in self.exp else "sc1"
        a("buffer_store_dwordx4 v[16:19], v8, s[%d:%d], s%d offen %s" % (SRD_OUT, SRD_OUT + 3, S_T0, fl))
        a("s_add_u32 s%d, s%d, 8192" % (S_T0, S_T0))
        a("buffer_store_dwordx4 v[20:23], v8, s[%d:%d], s%d offen %s" % (SRD_OUT, SRD_OUT + 3, S_T0, fl))
        self.stamp(15)
        self.stamp(25)

    def build(self):
        a = self.a
        self.prologue()
        self.xstage()
        a("s_cmp_ge_u32 s%d, 4" % S_W)
        a("s_cbranch_scc1 L_helper")
        self.p1_compute()
        self.g_compute()
        self.phase_o()
        a("s_branch L_end")
        a.label("L_helper")
        self.p1_helper()
        self.g_helper()
        a.label("L_end")
        a("s_endpgm")
        a.finalize()
        hdr = open("cdna_kernels/%s.s.ref" % NAME).read().split("\n")
        head = []
        for line in hdr:
            if line.startswith("; @launch"):
                head.append("; @launch grid=(256,1,1) block=(512,1,1) lds=%d" % LDS_TOTAL)
            elif line.startswith(";"): head.append(line)
            else: break
        txt = "\n".join(head) + "\n"
        txt += '.amdgcn_target "amdgcn-amd-amdhsa--gfx950"\n.text\n.globl %s_kernel\n.p2align 8\n.type %s_kernel,@function\n%s_kernel:\n' % (NAME, NAME, NAME)
        body = a.text()
        if "codepf" in self.exp:
            body = body.replace("CODE_LEN", "(L_end - L_pc_here - 16)")
        txt += body
        txt += '.section .rodata,"a"\n.p2align 6\n.amdhsa_kernel %s_kernel\n' % NAME
        txt += "  .amdhsa_next_free_vgpr 256\n  .amdhsa_next_free_sgpr 102\n  .amdhsa_accum_offset 128\n"
        txt += "  .amdhsa_group_segment_fixed_size 0\n  .amdhsa_kernarg_size 104\n  .amdhsa_user_sgpr_count 2\n"
        txt += "  .amdhsa_user_sgpr_kernarg_segment_ptr 1\n  .amdhsa_system_sgpr_workgroup_id_x 1\n"
        txt += "  .amdhsa_float_denorm_mode_32 3\n"
        txt += ".end_amdhsa_kernel\n"
        return txt

if __name__ == "__main__":
    import argparse
    ap = argparse.ArgumentParser()
    ap.add_argument("--stamps", action="store_true")
    ap.add_argument("--exp", default="")
    ap.add_argument("-o", default="cdna_kernels/%s.s" % NAME)
    args = ap.parse_args()
    g = Gen(stamps=args.stamps, exp=[e for e in args.exp.split(',') if e])
    txt = g.build()
    open(args.o, "w").write(txt)
    print("wrote", args.o, len(txt), "bytes;", len([i for i in g.a.ins if i.kind not in ("label", "dir")]), "instrs")
```
